```python
import torch

def _softmax(x, axis=-1):
    return torch.softmax(x, dim=axis)
def _gelu(x):
    return torch.nn.functional.gelu(x, approximate="tanh")
def _silu(x):
    return torch.nn.functional.silu(x)
def _sigmoid(x):
    return torch.sigmoid(x)
def _layernorm(x, axis=-1, eps=1e-5):
    m = x.mean(dim=axis, keepdim=True)
    v = x.var(dim=axis, keepdim=True, unbiased=False)
    return (x - m) / torch.sqrt(v + eps)
def _scatter_add(tgt, idx, src, axis=0):
    return tgt.clone().index_add_(axis, idx, src)
def _segment_sum(src, seg, n):
    out = torch.zeros((n,) + src.shape[1:], dtype=src.dtype)
    return out.index_add_(0, seg, src)
def _pad(x, pw):
    flat = tuple(v for pair in reversed(pw) for v in pair)
    return torch.nn.functional.pad(x, flat)

kernel_name = 'gated_mix__sliding_block__dense_activation_gelu__prompt'

def setup_inputs():

    _w = (lambda a: (lambda t: t.to(torch.bfloat16) if t.is_floating_point() else t)(torch.as_tensor(a)))
    def _A_setup():
        B, S, D = 1, 2048, 448
        return {
            "x": _w((lambda *s: torch.randn(*s, dtype=torch.bfloat16) * 0.05)(B, S, D)),
            "wqkv": _w((lambda *s: torch.randn(*s, dtype=torch.bfloat16) * 0.8)(D, 3 * D)),
            "wo": _w((lambda *s: torch.randn(*s, dtype=torch.bfloat16) * 0.05)(D, D)),
        }
    _A_in = _A_setup()

    def _B_setup():
        B, S, D, F = 1, 2048, 448, 1792
        return {
            "x": _w((lambda *s: torch.randn(*s, dtype=torch.bfloat16) * 0.05)(B, S, D)),
            "w1": _w((lambda *s: torch.randn(*s, dtype=torch.bfloat16) * 12.8)(D, F) * (D ** -0.5)),
            "b1": _w((lambda *s: torch.randn(*s, dtype=torch.bfloat16) * 12.8)(F) * 0.01),
            "w2": _w((lambda *s: torch.randn(*s, dtype=torch.bfloat16) * 0.8)(F, D) * (F ** -0.5)),
            "b2": _w((lambda *s: torch.randn(*s, dtype=torch.bfloat16) * 6.4)(D) * 0.01),
        }
    _B_in = _B_setup()

    return {
        "A_x": _A_in["x"],
        "A_wqkv": _A_in["wqkv"],
        "A_wo": _A_in["wo"],
        "B_x": _B_in["x"],
        "B_w1": _B_in["w1"],
        "B_b1": _B_in["b1"],
        "B_w2": _B_in["w2"],
        "B_b2": _B_in["b2"],
        "gate_w": _w((lambda *s: torch.randn(*s, dtype=torch.bfloat16) * 0.05)(448) * 16.0),
    }

def reference(A_x, A_wqkv, A_wo, B_x, B_w1, B_b1, B_w2, B_b2, gate_w):
    def _A_ref(x, wqkv, wo):
        B, S, D = x.shape
        H = 16; Dh = D // H; W = 256
        qkv = (lambda x, *d: x.permute(*d))((x @ wqkv).reshape(B, S, 3, H, Dh), 2, 0, 3, 1, 4)
        q, k, v = qkv[0], qkv[1], qkv[2]
        scores = torch.einsum("bhqd,bhkd->bhqk", q, k) * (Dh ** -0.5)
        idx = torch.arange(S)
        mask = (idx[:, None] - idx[None, :] >= 0) & (idx[:, None] - idx[None, :] < W)
        scores = torch.where(mask[None, None], scores, -1e9)
        p = _softmax(scores, axis=-1)
        o = torch.einsum("bhqk,bhkd->bhqd", p, v)
        return (lambda x, *d: x.permute(*d))(o, 0, 2, 1, 3).reshape(B, S, D) @ wo

    def _B_ref(x, w1, b1, w2, b2):
        h = torch.einsum("bsd,df->bsf", x, w1) + b1
        h = _gelu(h)
        return torch.einsum("bsf,fd->bsd", h, w2) + b2

    x = A_x
    g = _sigmoid((x * gate_w).sum(-1, keepdims=True))
    a = _A_ref(x, A_wqkv, A_wo)
    b = _B_ref(x, B_w1, B_b1, B_w2, B_b2)
    return g * a + (1 - g) * b
```

```python
import re

REG_RE = re.compile(r'^(-|\|)?(abs\()?([vas])(\d+|\[(\d+):(\d+)\])\)?\|?$')

def parse_reg(tok):
    tok = tok.strip()
    if tok in ('vcc',): return [('s', 'vcc_lo'), ('s', 'vcc_hi')]
    if tok in ('vcc_lo', 'vcc_hi', 'exec_lo', 'exec_hi', 'm0'): return [('s', tok)]
    if tok == 'exec': return [('s', 'exec_lo'), ('s', 'exec_hi')]
    m = REG_RE.match(tok)
    if not m: return []
    k = m.group(3)
    if m.group(5) is not None:
        return [(k, i) for i in range(int(m.group(5)), int(m.group(6)) + 1)]
    return [(k, int(m.group(4)))]

TRANS = ('v_exp_f32', 'v_log_f32', 'v_rcp_f32', 'v_rsq_f32', 'v_sqrt_f32', 'v_sin_f32', 'v_cos_f32', 'v_rcp_iflag_f32')

class I:
    def __init__(self, text, tag=None):
        self.text = text
        self.tag = tag
        self.kind = 'other'
        self.dst = []; self.src = []
        self.srcC = []; self.srcAB = []
        self.stdata = []
        self.op = ''
        self.parse()

    def parse(self):
        t = self.text.split(';')[0].strip()
        if not t: self.kind = 'comment'; return
        if t.endswith(':'): self.kind = 'label'; return
        if t.startswith('.'): self.kind = 'directive'; return
        parts = t.split(None, 1)
        op = parts[0]; self.op = op
        base = re.sub(r'_(e32|e64|sdwa|dpp)$', '', op)
        self.base = base
        rest = parts[1] if len(parts) > 1 else ''
        ops = [o.strip() for o in re.split(r',(?![^\[]*\])', rest)] if rest else []
        mods = ''
        if ops:
            last = ops[-1].split(None, 1)
            ops[-1] = last[0]
            if len(last) > 1: mods = last[1]
        self.mods = mods
        R = [parse_reg(o) for o in ops]
        flat = lambda L: [x for l in L for x in l]
        if op.startswith('v_mfma'):
            self.kind = 'mfma'; self.dst = R[0]; self.srcAB = R[1] + R[2]; self.srcC = R[3]; self.src = flat(R[1:])
            self.passes = 8 if '32x32' in op else 4
        elif op.startswith('v_'):
            self.kind = 'valu'
            self.trans = base in TRANS
            if base.startswith('v_cmp'):
                self.dst = R[0]; self.src = flat(R[1:])
                if base.startswith('v_cmpx'): self.dst = self.dst + parse_reg('exec')
            elif base.startswith('v_permlane') and 'swap' in base:
                self.dst = R[0] + R[1]; self.src = R[0] + R[1]
            elif base in ('v_add_co_u32', 'v_sub_co_u32', 'v_subrev_co_u32'):
                self.dst = R[0] + R[1]; self.src = flat(R[2:])
            elif base in ('v_addc_co_u32', 'v_subb_co_u32'):
                self.dst = R[0] + R[1]; self.src = flat(R[2:])
            elif base == 'v_nop':
                pass
            else:
                self.dst = R[0]; self.src = flat(R[1:])
                if base in ('v_fmac_f32', 'v_dot2c_f32_bf16', 'v_pk_fmac_f16', 'v_writelane_b32') or 'dpp' in op or 'row_' in mods or 'quad_perm' in mods:
                    self.src = self.src + R[0]
                if base == 'v_cndmask_b32' and len(ops) == 3: self.src = self.src + parse_reg('vcc')
            self.dpp = ('dpp' in op) or ('quad_perm' in mods) or ('row_' in mods)
        elif op.startswith('buffer_load') or op.startswith('global_load'):
            self.kind = 'vmem'
            if ' lds' in (' ' + mods) or 'load_lds' in op:
                self.lds_dma = True; self.src = flat(R) + [('s', 'm0')]
            else:
                self.lds_dma = False; self.dst = R[0]; self.src = flat(R[1:])
        elif op.startswith('buffer_store'):
            self.kind = 'vmem'; self.lds_dma = False; self.src = flat(R); self.stdata = R[0]
        elif op.startswith('global_store'):
            self.kind = 'vmem'; self.lds_dma = False; self.src = flat(R); self.stdata = R[1]
        elif op.startswith('ds_read'):
            self.kind = 'ds'; self.dst = R[0]; self.src = flat(R[1:])
        elif op.startswith('ds_write'):
            self.kind = 'ds'; self.src = flat(R)
        elif op.startswith('ds_bpermute') or op.startswith('ds_swizzle'):
            self.kind = 'ds'; self.dst = R[0]; self.src = flat(R[1:])
        elif op.startswith('s_load') or op in ('s_memtime', 's_memrealtime'):
            self.kind = 'smem'; self.dst = R[0]; self.src = flat(R[1:])
        elif op == 's_waitcnt':
            self.kind = 'wait'
            m = re.search(r'vmcnt\((\d+)\)', rest); self.vm = int(m.group(1)) if m else None
            m = re.search(r'lgkmcnt\((\d+)\)', rest); self.lg = int(m.group(1)) if m else None
        elif op == 's_nop':
            self.kind = 'nop'; self.n = int(rest, 0) + 1
        elif op in ('s_branch',) or op.startswith('s_cbranch'):
            self.kind = 'branch'
        elif op in ('s_barrier', 's_endpgm', 's_setprio', 's_sleep'):
            self.kind = 'salu'
        elif op.startswith('s_cmp') or op.startswith('s_bitcmp'):
            self.kind = 'salu'; self.src = flat(R)
        elif op.startswith('s_'):
            self.kind = 'salu'; self.dst = R[0]; self.src = flat(R[1:])
            if 'saveexec' in op: self.dst = self.dst + parse_reg('exec'); self.src = self.src + parse_reg('exec')
        else:
            raise ValueError('unknown instr: ' + t)

class Pseudo:
    def __init__(self, kind, tag=None, extra=0):
        self.kind = kind; self.tag = tag; self.extra = extra; self.text = ''
        self.dst = []; self.src = []

class Prog:
    def __init__(self):
        self.L = []
    def __call__(self, text, tag=None):
        for line in text.split('\n'):
            if line.strip() == '': continue
            self.L.append(I(line.strip(), tag))
    def add(self, items):
        for x in items:
            if isinstance(x, str): self(x)
            elif isinstance(x, tuple): self(x[0], x[1])
            else: self.L.append(x)
    def wait_vm(self, tag):
        self.L.append(Pseudo('wait_vm', tag))
    def wait_lg(self, tag):
        self.L.append(Pseudo('wait_lg', tag))
    def forget(self):
        self.L.append(Pseudo('forget'))

def WVM(tag): return Pseudo('wait_vm', tag)
def WLG(tag): return Pseudo('wait_lg', tag)

def insert_waits(L):
    out = []
    vm = []
    lg = []
    smem = []
    def emit_wait(vmn=None, lgn=None):
        nonlocal vm, lg, smem
        s = []
        if vmn is not None:
            vmn = min(vmn, 63); s.append(f'vmcnt({vmn})'); vm = vm[len(vm) - vmn:] if vmn < len(vm) else vm
            if vmn == 0: vm = []
        if lgn is not None:
            lgn = min(lgn, 15); s.append(f'lgkmcnt({lgn})')
            if lgn == 0: lg = []; smem = []
            elif lgn < len(lg): lg = lg[len(lg) - lgn:]
        if out and isinstance(out[-1], I) and out[-1].kind == 'wait' and getattr(out[-1], 'auto', False):
            p = out.pop()
            v = p.vm if vmn is None else (vmn if p.vm is None else min(p.vm, vmn))
            g = p.lg if lgn is None else (lgn if p.lg is None else min(p.lg, lgn))
            s = ([f'vmcnt({v})'] if v is not None else []) + ([f'lgkmcnt({g})'] if g is not None else [])
        w = I('s_waitcnt ' + ' '.join(s)); w.auto = True
        out.append(w)
    for x in L:
        if isinstance(x, Pseudo):
            if x.kind == 'wait_vm':
                idx = [i for i, y in enumerate(vm) if y.tag == x.tag]
                if idx: emit_wait(vmn=len(vm) - 1 - max(idx))
            elif x.kind == 'wait_lg':
                idx = [i for i, y in enumerate(lg) if y.tag == x.tag]
                if idx: emit_wait(lgn=0 if smem else len(lg) - 1 - max(idx))
            elif x.kind == 'forget':
                vm = []; lg = []; smem = []
            continue
        if x.kind in ('label', 'comment', 'directive'):
            out.append(x); continue
        if x.kind == 'wait':
            if x.vm is not None:
                vm = vm[len(vm) - x.vm:] if 0 < x.vm < len(vm) else ([] if x.vm == 0 else vm)
            if x.lg is not None:
                if x.lg == 0: lg = []; smem = []
                elif x.lg < len(lg): lg = lg[len(lg) - x.lg:]
            out.append(x); continue
        touched = set(x.src) | set(x.dst)
        need_vm = None; need_lg = None
        for i, y in enumerate(vm):
            if touched & set(y.dst):
                n = len(vm) - 1 - i
                need_vm = n if need_vm is None else min(need_vm, n)
        for i, y in enumerate(lg):
            if touched & set(y.dst):
                n = len(lg) - 1 - i
                need_lg = n if need_lg is None else min(need_lg, n)
        for y in smem:
            if touched & set(y.dst): need_lg = 0
        if need_lg is not None and smem: need_lg = 0
        if need_vm is not None or need_lg is not None:
            emit_wait(need_vm, need_lg)
        out.append(x)
        if x.kind == 'vmem':
            vm.append(x)
            if len(vm) > 63: vm = vm[-63:] if False else vm
        elif x.kind == 'ds': lg.append(x)
        elif x.kind == 'smem': smem.append(x)
    return out

def slots(x):
    if x.kind == 'nop': return x.n
    if x.kind in ('label', 'comment', 'directive'): return 0
    return 1

def need_distance(p, c):
    n = 0
    pd = set(p.dst); cs = set(c.src); cd = set(c.dst)
    isv = lambda S: {r for r in S if r[0] in 'va'}
    iss = lambda S: {r for r in S if r[0] == 's'}
    if p.kind == 'valu':
        pv = isv(pd); ps = iss(pd)
        if c.kind == 'mfma' and pv & cs: n = max(n, 2)
        if c.kind == 'mfma' and (('s', 'exec_lo') in ps): n = max(n, 4)
        if c.kind == 'valu':
            if p.trans and not c.trans and pv & cs: n = max(n, 1)
            if c.base.startswith('v_permlane') and pv & cs: n = max(n, 2)
            if c.base in ('v_readfirstlane_b32', 'v_readlane_b32') and pv & cs: n = max(n, 1)
            if c.dpp and pv & cs: n = max(n, 2)
            if ps & cs: n = max(n, 4 if c.base in ('v_readlane_b32', 'v_writelane_b32') else 2)
            if ('s', 'exec_lo') in ps and (c.dpp): n = max(n, 5)
            if ('s', 'exec_lo') in ps and (c.base.startswith('v_permlane') or c.base.startswith('v_read')): n = max(n, 4)
        if c.kind == 'vmem' and ps & cs: n = max(n, 5)
        if c.kind in ('salu',) and ps & cs: n = max(n, 1)
    if p.kind == 'mfma':
        P = p.passes
        t = {4: (6, 8, 3), 8: (10, 12, 7)}[P]
        if c.kind == 'mfma':
            if pd & set(c.srcAB): n = max(n, t[1])
            if pd & set(c.srcC):
                if not (p.dst == c.srcC and p.passes == c.passes): n = max(n, t[0])
            if pd & cd and not (p.dst == c.dst): n = max(n, t[1])
        elif c.kind in ('valu', 'vmem', 'ds'):
            if pd & (cs | cd): n = max(n, t[1])
            if c.kind == 'valu' and set(p.srcC) & cd: n = max(n, t[2])
            if c.kind in ('vmem', 'ds') and set(p.srcC) & cd: n = max(n, t[2])
    if p.kind == 'vmem' and p.stdata and len(p.stdata) >= 3:
        if set(p.stdata) & cd: n = max(n, 2 if c.kind in ('valu', 'mfma') else 1)
    if p.kind == 'salu' and ('s', 'm0') in pd and c.kind == 'vmem' and getattr(c, 'lds_dma', False): n = max(n, 1)
    return n

def insert_nops(L, window=24):
    out = []
    added = 0
    for x in L:
        if x.kind in ('label', 'comment', 'directive'):
            out.append(x); continue
        need = 0
        d = 0
        for p in reversed(out):
            if d >= 20: break
            if p.kind not in ('label', 'comment', 'directive', 'nop', 'wait', 'branch'):
                r = need_distance(p, x)
                if r > d: need = max(need, r - d)
            d += slots(p)
        if need:
            out.append(I(f's_nop {need - 1}')); added += need
        out.append(x)
    return out, added

def finalize(prog, verbose=False):
    L = insert_waits(prog.L)
    L, added = insert_nops(L)
    if verbose: print('nop states added:', added)
    return L

def text(L):
    return '\n'.join(('' if x.kind == 'label' else '    ') + x.text for x in L) + '\n'

def interleave(main, fill, start=0, every=None, per=None):
    out = []
    n = len(main); fi = 0
    for i, m in enumerate(main):
        out += m if isinstance(m, list) else [m]
        if per is not None:
            k = per(i) if callable(per) else per[i]
        else:
            k = ((i + 1) * len(fill)) // n - (i * len(fill)) // n
        for _ in range(k):
            if fi < len(fill):
                f = fill[fi]; fi += 1
                out += f if isinstance(f, list) else [f]
    while fi < len(fill):
        f = fill[fi]; fi += 1
        out += f if isinstance(f, list) else [f]
    return out
```

```python
import sys, math, struct
from asmlib import *

NAME = "gated_mix__sliding_block__dense_activation_gelu__prompt"

def f2u(x): return struct.unpack('<I', struct.pack('<f', x))[0]

WS_E      = 0
FL_PREP   = 0x1000
G_OFF     = 0x4000
FL_QKV    = 0x20000
FL_H      = 0x40000
FL_O      = 0x60000
QKV_OFF   = 0x100000
A_OFF     = 0x700000
BP_OFF    = 0x1000000
WS_SIZE   = 0x1200000
STAMP_OFF = 0x1400000
QKV_TB = 168 * 512
A_TB = 144 * 1024
BP_C = 144 * 2048

LX = 0; LX_SLOT = 16384
LF = 49152; LF_SLOT = 16384
LQ = 98304; LQ_SLOT = 12288
LBIAS = 135168
LKV = 0
LRED = 49152
LDS_BYTES = 160 * 1024

S_X, S_WQ, S_WO, S_W1, S_B1, S_W2, S_B2, S_GW, S_OUT, S_WS = 4, 6, 8, 12, 14, 16, 18, 20, 22, 24
SRD_X, SRD_WQ, SRD_W1, SRD_WS, SRD_OUT, SRD_P = 28, 32, 36, 40, 44, 48
S_WAVE, S_XCD, S_SLOT = 3, 10, 11
S_TAG = 26
S_RB, S_B, S_TB, S_ROT = 52, 53, 54, 55
S_T0, S_T1, S_T2, S_T3 = 56, 57, 58, 59
S_CNT = 60
S_QST, S_HST = 61, 62
S_T4 = 63
S_TAB = 64
S_BOFF = 13
S_BT = [4, 5, 6, 7, 8, 9, 12]
S_R, S_C = 98, 99
S_J = 100
S_PAR = 101

def sr(b, n=2): return f"s[{b}:{b+n-1}]"
def vr(b, n): return f"v[{b}:{b+n-1}]" if n > 1 else f"v{b}"
def ar(b, n): return f"a[{b}:{b+n-1}]"

V_TID, V_LANE = 0, 1
V_L16 = 2
V_L16H = 3
V_FLAGOFF = 4
V_TAG = 6
V_POLL = 8
V_PA = 10
V_T = 11

class Opt:
    fused = True
    stamps = False
    code_bytes = 24576

def mfma(d, a, b, c, areg='v'):
    A = ar(a, 4) if areg == 'a' else vr(a, 4)
    C = '0' if c is None else vr(c, 16)
    return f"v_mfma_f32_32x32x16_bf16 {vr(d,16)}, {A}, {vr(b,4)}, {C}"

def srd(P, d, ptr, size):
    P(f"s_mov_b32 s{d}, s{ptr}")
    P(f"s_and_b32 s{d+1}, s{ptr+1}, 0xffff")
    P(f"s_mov_b32 s{d+2}, {size}")
    P(f"s_mov_b32 s{d+3}, 0x20000")

stamp_idx = [0]
def stamp(P, o, name):
    if not o.stamps: return
    i = stamp_idx[0]; stamp_idx[0] += 1
    o.stamp_names.append(name)
    P(f"s_memrealtime s[96:97]")
    P("s_waitcnt lgkmcnt(0)")
    P(f"v_mov_b32 v{240+i}, s96")

def stamp_flush(P, o):
    if not o.stamps: return
    P("s_waitcnt vmcnt(0)")
    P(f"s_lshl_b32 s{S_T0}, s2, 2")
    P(f"s_add_u32 s{S_T0}, s{S_T0}, s{S_WAVE}")
    P(f"s_lshl_b32 s{S_T0}, s{S_T0}, 6")
    P(f"s_add_u32 s{S_T0}, s{S_T0}, {STAMP_OFF + o.kidx*0x20000}")
    P(f"s_mov_b32 s{SRD_WS+2}, {STAMP_OFF + 0x100000}")
    for q in range(4):
        P(f"buffer_store_dwordx4 {vr(240+4*q,4)}, v{V_FLAGOFF}, {sr(SRD_WS,4)}, s{S_T0} offen offset:{16*q}")

def setup(P, o, end_label):
    P("s_load_dwordx4 s[4:7], s[0:1], 0")
    P("s_load_dwordx2 s[8:9], s[0:1], 16")
    P("s_load_dwordx8 s[12:19], s[0:1], 32")
    P("s_load_dwordx4 s[20:23], s[0:1], 64")
    P("s_load_dwordx2 s[24:25], s[0:1], 88")
    P("s_cmp_ge_u32 s2, 256")
    P(f"s_cbranch_scc1 {end_label}")
    if o.stamps:
        for i in range(16): P(f"v_mov_b32 v{240+i}, 0")
    P(f"s_getpc_b64 s[{S_T0}:{S_T1}]")
    P(f"v_lshlrev_b32 v{V_T}, 4, v0")
    for i in range(o.code_bytes // 4096):
        P(f"global_load_dwordx4 v[236:239], v{V_T}, s[{S_T0}:{S_T1}]", tag='pf')
        if i + 1 < o.code_bytes // 4096: P(f"v_add_u32 v{V_T}, 0x1000, v{V_T}")
    P(f"v_and_b32 v{V_LANE}, 63, v0")
    P(f"v_lshrrev_b32 v5, 6, v0")
    P(f"v_lshlrev_b32 v{V_L16}, 4, v{V_LANE}")
    P(f"v_readfirstlane_b32 s{S_WAVE}, v5")
    P(f"v_add_u32 v{V_L16H}, 0x1000, v{V_L16}")
    P(f"v_cmp_eq_u32 vcc, 0, v{V_LANE}")
    P(f"v_mov_b32 v5, 0x7fff0000")
    P(f"s_and_b32 s{S_XCD}, s2, 7")
    P(f"s_lshr_b32 s{S_SLOT}, s2, 3")
    P(f"v_cndmask_b32_e64 v{V_FLAGOFF}, v5, 0, vcc")
    P(f"s_mul_i32 s{S_T2}, s{S_SLOT}, 37")
    P(f"s_lshr_b32 s{S_T2}, s{S_T2}, 8")
    P(f"s_mul_i32 s{S_T3}, s{S_T2}, 7")
    P(f"s_sub_u32 s{S_C}, s{S_SLOT}, s{S_T3}")
    P(f"s_lshl_b32 s{S_R}, s{S_XCD}, 2")
    P(f"s_add_u32 s{S_R}, s{S_R}, s{S_T2}")
    P(f"s_and_b32 s{S_RB}, s{S_XCD}, 3")
    P(f"s_lshl_b32 s{S_RB}, s{S_RB}, 2")
    P(f"s_add_u32 s{S_RB}, s{S_RB}, s{S_T2}")
    P(f"s_lshr_b32 s{S_B}, s{S_XCD}, 2")
    P(f"s_mul_i32 s{S_B}, s{S_B}, 7")
    P(f"s_add_u32 s{S_B}, s{S_B}, s{S_C}")
    P(f"s_lshl_b32 s{S_T2}, s{S_T2}, 1")
    P(f"s_add_u32 s{S_ROT}, s{S_C}, s{S_T2}")
    P(f"s_add_u32 s{S_ROT}, s{S_ROT}, s{S_XCD}")
    P(f"s_mul_i32 s{S_T2}, s{S_ROT}, 37")
    P(f"s_lshr_b32 s{S_T2}, s{S_T2}, 8")
    P(f"s_mul_i32 s{S_T2}, s{S_T2}, 7")
    P(f"s_sub_u32 s{S_ROT}, s{S_ROT}, s{S_T2}")
    P("s_waitcnt lgkmcnt(0)")
    if o.fused:
        P(f"s_load_dword s{S_TAG}, {sr(S_WS)}, {WS_E}")
    srd(P, SRD_X, S_X, 2048 * 896)
    srd(P, SRD_WQ, S_WQ, 448 * 2688)
    srd(P, SRD_W1, S_W1, 448 * 3584)
    srd(P, SRD_WS, S_WS, WS_SIZE)
    srd(P, SRD_OUT, S_OUT, 2048 * 896)
    srd(P, SRD_P, S_W2, 1792 * 896)

def make_tag(P, o):
    if not o.fused: return
    P("s_waitcnt lgkmcnt(0)")
    P(f"s_mul_i32 s{S_TAG}, s{S_TAG}, 0x9e3779b1")
    P(f"s_add_u32 s{S_TAG}, s{S_TAG}, 0x7f4a7c15")
    P(f"s_xor_b32 s{S_TAG+1}, s{S_TAG}, 0x5bd1e995")
    P(f"v_mov_b32 v{V_TAG}, s{S_TAG}")
    P(f"v_mov_b32 v{V_TAG+1}, s{S_TAG+1}")

lab = [0]
def poll(P, o, addr_v, limit=4000):
    if not o.fused: return
    lab[0] += 1
    L = f"L_poll{lab[0]}"
    P(f"s_mov_b32 s{S_CNT}, {limit}")
    P("s_waitcnt vmcnt(0) lgkmcnt(0)")
    P(f"{L}:")
    P(f"buffer_load_dwordx2 {vr(V_POLL,2)}, v{addr_v}, {sr(SRD_WS,4)}, 0 offen sc1")
    P(f"s_sub_u32 s{S_CNT}, s{S_CNT}, 1")
    P("s_waitcnt vmcnt(0)")
    P(f"v_cmp_ne_u64 vcc, {sr(S_TAG)}, {vr(V_POLL,2)}")
    P(f"s_cbranch_scc1 {L}_x")
    P(f"s_cbranch_vccnz {L}")
    P(f"{L}_x:")

def flag_store(o, soff):
    if not o.fused: return []
    return [f"buffer_store_dwordx2 {vr(V_TAG,2)}, v{V_FLAGOFF}, {sr(SRD_WS,4)}, s{soff} offen sc1"]

SC = 'sc1'

ACC_Q, ACC_F = 16, 64
FR = 128
V_XD, V_QD, V_FD = 192, 196, 199
V_XR, V_QR, V_FRD = 203, 207, 208
V_CA, V_CB = 212, 214
GT = 128

def s1_dma(c_slot, ci):
    L = []
    tagn = f'dma{ci}'
    L.append([f"s_mov_b32 m0, s{S_TAB+21+c_slot}"])
    for i in range(4):
        L.append([(f"buffer_load_dwordx4 v{V_XD+i}, {sr(SRD_X,4)}, s{S_TAB+ci} offen offset:{i*1024} lds", tagn)])
    L.append([f"s_mov_b32 m0, s{S_TAB+24+c_slot}"])
    for i in range(3):
        L.append([(f"buffer_load_dwordx4 v{V_QD+i}, {sr(SRD_WQ,4)}, s{S_TAB+7+ci} offen offset:{i*1024} lds", tagn)])
    L.append([f"s_mov_b32 m0, s{S_TAB+27+c_slot}"])
    for i in range(4):
        L.append([(f"buffer_load_dwordx4 v{V_FD+i}, {sr(SRD_W1,4)}, s{S_TAB+14+ci} offen offset:{i*1024} lds", tagn)])
    return L

def s1_reads(slot, s, fset):
    base = FR + 32 * fset
    L = [f"ds_read_b128 {vr(base,4)}, v{V_XR+s} offset:{LX + slot*LX_SLOT}"]
    for t in range(7):
        for rho in range(2):
            d = base + 4 + 4 * t + 2 * rho
            if t < 3:
                L.append(f"ds_read_b64_tr_b16 {vr(d,2)}, v{V_QR} offset:{slot*LQ_SLOT + (16*s+4*rho)*192 + t*64}")
            else:
                L.append(f"ds_read_b64_tr_b16 {vr(d,2)}, v{V_FRD+t-3} offset:{slot*LF_SLOT + (16*s+4*rho)*256}")
    return L

def stage1_setup(P, o):
    T = V_T
    P(f"s_lshl_b32 s{S_TB}, s{S_RB}, 2")
    P(f"s_add_u32 s{S_TB}, s{S_TB}, s{S_WAVE}")
    P(f"s_mov_b32 s{S_T0}, s{S_ROT}")
    for i in range(7):
        P(f"s_lshl_b32 s{S_TAB+i}, s{S_T0}, 7")
        P(f"s_mul_i32 s{S_TAB+7+i}, s{S_T0}, {64*2688}")
        P(f"s_mul_i32 s{S_TAB+14+i}, s{S_T0}, {64*3584}")
        if i < 6:
            P(f"s_add_u32 s{S_T0}, s{S_T0}, 1")
            P(f"s_cmp_eq_u32 s{S_T0}, 7")
            P(f"s_cselect_b32 s{S_T0}, 0, s{S_T0}")
    P(f"s_lshl_b32 s{S_T0}, s{S_WAVE}, 12")
    P(f"s_mul_i32 s{S_T1}, s{S_WAVE}, 3072")
    for k in range(3):
        P(f"s_add_u32 s{S_TAB+21+k}, s{S_T0}, {LX + k*LX_SLOT}")
        P(f"s_add_u32 s{S_TAB+24+k}, s{S_T1}, {LQ + k*LQ_SLOT}")
        P(f"s_add_u32 s{S_TAB+27+k}, s{S_T0}, {LF + k*LF_SLOT}")
    P(f"v_lshrrev_b32 v{T}, 3, v{V_LANE}")
    P(f"v_and_b32 v{T+1}, 7, v{V_LANE}")
    P(f"v_lshrrev_b32 v{T+2}, 4, v{V_LANE}")
    P(f"s_lshl_b32 s{S_T0}, s{S_TB}, 5")
    P(f"v_add_u32 v{T}, s{S_T0}, v{T}")
    P(f"v_mul_u32_u24 v{T}, 896, v{T}")
    for i in range(4):
        P(f"v_xor_b32 v{T+3}, {(4*i) & 7}, v{T+2}")
        P(f"v_xor_b32 v{T+3}, v{T+3}, v{T+1}")
        P(f"v_lshl_add_u32 v{V_XD+i}, v{T+3}, 4, v{T}")
        if i: P(f"v_add_u32 v{V_XD+i}, {i*(8*896-1024)}, v{V_XD+i}")
    P(f"s_mul_i32 s{S_T0}, s{S_WAVE}, 192")
    P(f"s_mul_i32 s{S_T1}, s{S_B}, 192")
    P(f"s_mov_b32 s{S_T2}, 43691")
    for i in range(3):
        P(f"v_add_u32 v{T}, s{S_T0}, v{V_LANE}")
        if i: P(f"v_add_u32 v{T}, {64*i}, v{T}")
        P(f"v_mul_lo_u32 v{T+1}, v{T}, s{S_T2}")
        P(f"v_lshrrev_b32 v{T+1}, 19, v{T+1}")
        P(f"v_mul_u32_u24 v{T+2}, 12, v{T+1}")
        P(f"v_sub_u32 v{T+2}, v{T}, v{T+2}")
        P(f"v_mul_u32_u24 v{T+1}, 2688, v{T+1}")
        P(f"v_lshl_add_u32 v{T+1}, v{T+2}, 4, v{T+1}")
        P(f"v_add_u32 v{V_QD+i}, s{S_T1}, v{T+1}")
        if i: P(f"v_subrev_u32 v{V_QD+i}, {i*1024}, v{V_QD+i}")
    P(f"v_lshrrev_b32 v{T}, 4, v{V_LANE}")
    P(f"v_bfe_u32 v{T+1}, v{V_LANE}, 2, 2")
    P(f"v_xor_b32 v{T+1}, v{T+1}, v{T}")
    P(f"v_and_b32 v{T+2}, 3, v{V_LANE}")
    P(f"v_lshlrev_b32 v{T+2}, 4, v{T+2}")
    P(f"v_lshl_add_u32 v{T+1}, v{T+1}, 6, v{T+2}")
    P(f"s_lshl_b32 s{S_T0}, s{S_WAVE}, 4")
    P(f"v_add_u32 v{T}, s{S_T0}, v{T}")
    P(f"v_mul_u32_u24 v{T}, 3584, v{T}")
    P(f"s_lshl_b32 s{S_T1}, s{S_B}, 8")
    P(f"v_add3_u32 v{V_FD}, v{T}, v{T+1}, s{S_T1}")
    for i in range(1, 4):
        P(f"v_add_u32 v{V_FD+i}, {i*(4*3584-1024)}, v{V_FD}")

def stage1_setup2(P, o):
    T = V_T
    P(f"v_and_b32 v{T}, 31, v{V_LANE}")
    P(f"v_lshrrev_b32 v{T+1}, 5, v{V_LANE}")
    P(f"v_bfe_u32 v{T+2}, v{V_LANE}, 1, 3")
    P(f"v_xor_b32 v{T+2}, v{T+2}, v{T+1}")
    P(f"s_lshl_b32 s{S_T0}, s{S_WAVE}, 12")
    P(f"v_lshl_add_u32 v{T}, v{T}, 7, s{S_T0}")
    for s in range(4):
        P(f"v_xor_b32 v{T+3}, {2*s}, v{T+2}")
        P(f"v_lshl_add_u32 v{V_XR+s}, v{T+3}, 4, v{T}")
    P(f"v_bfe_u32 v{T}, v{V_LANE}, 2, 2")
    P(f"v_lshl_add_u32 v{T+1}, v{T+1}, 3, v{T}")
    P(f"v_bfe_u32 v{T+2}, v{V_LANE}, 4, 1")
    P(f"v_lshlrev_b32 v{T+2}, 5, v{T+2}")
    P(f"v_and_b32 v{T+3}, 3, v{V_LANE}")
    P(f"v_lshl_add_u32 v{T+2}, v{T+3}, 3, v{T+2}")
    P(f"v_mul_u32_u24 v{T+3}, 192, v{T+1}")
    P(f"v_add_u32 v{T+3}, {LQ}, v{T+3}")
    P(f"v_add_u32 v{V_QR}, v{T+3}, v{T+2}")
    P(f"v_lshl_add_u32 v{T+2}, v{T+1}, 8, v{T+2}")
    P(f"v_add_u32 v{T+2}, {LF}, v{T+2}")
    for c in range(4):
        P(f"v_xor_b32 v{T+3}, {c}, v{T}")
        P(f"v_lshl_add_u32 v{V_FRD+c}, v{T+3}, 6, v{T+2}")
    A = -2.0 * math.sqrt(2.0 / math.pi) * 0.044715 * math.log2(math.e)
    B = -2.0 * math.sqrt(2.0 / math.pi) * math.log2(math.e)
    P(f"v_mov_b32 v{V_CA}, {hex(f2u(A))}")
    P(f"v_mov_b32 v{V_CB}, {hex(f2u(B))}")
    P(f"s_mul_i32 s{S_QST}, s{S_TB}, {QKV_TB}")
    P(f"s_mul_i32 s{S_T0}, s{S_B}, {3*2048}")
    P(f"s_add_u32 s{S_QST}, s{S_QST}, s{S_T0}")
    P(f"s_add_u32 s{S_QST}, s{S_QST}, {QKV_OFF}")
    P(f"s_mul_i32 s{S_HST}, s{S_TB}, {A_TB}")
    P(f"s_lshl_b32 s{S_T0}, s{S_B}, 13")
    P(f"s_add_u32 s{S_HST}, s{S_HST}, s{S_T0}")
    P(f"s_add_u32 s{S_HST}, s{S_HST}, {A_OFF}")

def bias_to_acc(P, src_v, acc, ntiles, tmp, lane_sel=None):
    P(f"v_lshlrev_b32 v{tmp}, 16, v{src_v}")
    P(f"v_and_b32 v{tmp+1}, 0xffff0000, v{src_v}")
    P(f"s_lshl_b32 s{S_T0}, s{S_WAVE}, 9")
    P(f"s_add_u32 s{S_T0}, s{S_T0}, {LBIAS}")
    P(f"v_lshl_add_u32 v{tmp+2}, v{V_LANE}, 3, s{S_T0}")
    P(f"ds_write_b64 v{tmp+2}, {vr(tmp,2)}", tag='biasw')
    P(f"v_lshrrev_b32 v{tmp+2}, 5, v{V_LANE}")
    P(f"v_lshl_add_u32 v{tmp+2}, v{tmp+2}, 4, s{S_T0}")
    if lane_sel is not None: P(f"v_add_u32 v{tmp+2}, s{lane_sel}, v{tmp+2}")
    P.wait_lg('biasw')
    return tmp + 2

def b_loads(o):
    L = []
    for g in range(7):
        for k in range(4):
            for ct in range(2):
                idx = (g * 4 + k) * 2 + ct
                L.append([(f"buffer_load_dwordx4 {ar(4*idx,4)}, v{V_BA+ct*2+(k>>1)}, {sr(SRD_WS,4)}, s{S_BT[g]} offen offset:{(k&1)*2048} {SC}", 'bld')])
    for k in range(4):
        for ct in range(2):
            idx = 56 + k * 2 + ct
            L.append([(f"buffer_load_dwordx4 {ar(4*idx,4)}, v{V_BA+ct*2+(k>>1)}, {sr(SRD_WS,4)}, s{S_BOFF} offen offset:{(k&1)*2048} {SC}", 'bld')])
    return L

V_BA = 216
V_AA = 220

def stage1(P, o, bl):
    stage1_setup(P, o)
    P(f"s_lshl_b32 s{S_T0}, s{S_B}, 8")
    P(f"v_lshl_add_u32 v{V_T}, v{V_LANE}, 2, s{S_T0}")
    P(f"global_load_dword v15, v{V_T}, {sr(S_B1)}", tag='b1')
    for c in range(3):
        for it in s1_dma(c, c): P.add(it)
    stage1_setup2(P, o)
    make_tag(P, o)
    stamp(P, o, 's1_issued')
    a = bias_to_acc(P, 15, ACC_F, 4, 12)
    for F in range(4):
        for q in range(4):
            P(f"ds_read_b128 {vr(ACC_F+16*F+4*q,4)}, v{a} offset:{(32*F+8*q)*4}")
    P.wait_vm('dma0')
    P("s_waitcnt lgkmcnt(0)")
    P("s_barrier")
    stamp(P, o, 's1_first')
    P.add(s1_reads(0, 0, 0))
    for c in range(7):
        for s in range(4):
            g = 4 * c + s
            fs = g & 1
            base = FR + 32 * fs
            P("s_waitcnt lgkmcnt(0)")
            if s == 3 and c < 6:
                P.wait_vm(f'dma{c+1}')
                P("s_barrier")
            M = []
            for t in range(7):
                acc = ACC_Q + 16 * t
                Cin = None if (g == 0 and t < 3) else acc
                M.append([mfma(acc, base + 4 + 4 * t, base, Cin)])
            rd = []
            if g < 27:
                nc, ns = (c, s + 1) if s < 3 else (c + 1, 0)
                rd = s1_reads(nc % 3, ns, fs ^ 1)
            ex = []
            cc, ph = (c, 0) if s == 3 else (c - 1, s + 1)
            if 0 <= cc and cc + 3 < 7:
                d = s1_dma(cc % 3, cc + 3)
                cut = [0, 4, 7, 11, 14]
                ex = d[cut[ph]:cut[ph + 1]]
            elif cc + 3 >= 7 and o.fused and o.early_b:
                if cc == 4 and ph == 0: pass
            seq = []
            per = [3, 3, 3, 3, 3, 0, 0]
            ri = 0; ei = 0
            for t in range(7):
                seq += M[t]
                seq += rd[ri:ri + per[t]]; ri += per[t]
                if t >= 3 and ei < len(ex):
                    seq += ex[ei]; ei += 1
            while ei < len(ex):
                seq += ex[ei]; ei += 1
            P.add(seq)
    stamp(P, o, 's1_loop')

def qkv_epilogue(P, o):
    c = (28.0 ** -0.5) * math.log2(math.e)
    PK = GT
    P(f"s_mul_i32 s{S_T0}, s{S_B}, 3")
    for t in range(3):
        acc = ACC_Q + 16 * t
        P(f"s_add_u32 s{S_T1}, s{S_T0}, {t}")
        P(f"s_cmp_lt_u32 s{S_T1}, 14")
        P(f"s_cselect_b32 s{S_T2}, {hex(f2u(c))}, 1.0")
        for i in range(8):
            P(f"v_pk_mul_f32 {vr(acc+2*i,2)}, {vr(acc+2*i,2)}, s[{S_T2}:{S_T3}] op_sel_hi:[1,0]")
        p = PK + 8 * t
        for i in range(8):
            P(f"v_cvt_pk_bf16_f32 v{p+i}, v{acc+2*i}, v{acc+2*i+1}")
        for h in range(2):
            P(f"v_permlane32_swap_b32 v{p+4*h}, v{p+4*h+2}")
            P(f"v_permlane32_swap_b32 v{p+4*h+1}, v{p+4*h+3}")
        for h in range(2):
            off = t * 2048 + h * 1024
            P(f"buffer_store_dwordx4 {vr(p+4*h,4)}, v{V_L16H if off >= 4096 else V_L16}, {sr(SRD_WS,4)}, s{S_QST} offen offset:{off & 4095} {SC}", tag='qst')

def gelu_tile(F):
    u = ACC_F + 16 * F
    t = GT + 32 + 16 * (F & 1)
    p = GT + 24 + 0
    p = 160 + 32 + 0
    L = []
    pr = lambda b, i: vr(b + 2 * i, 2)
    for i in range(8): L.append(f"v_pk_mul_f32 {pr(t,i)}, {pr(u,i)}, {pr(u,i)}")
    for i in range(8): L.append(f"v_pk_fma_f32 {pr(t,i)}, {pr(t,i)}, {vr(V_CA,2)}, {vr(V_CB,2)} op_sel_hi:[1,0,0]")
    for i in range(8): L.append(f"v_pk_mul_f32 {pr(t,i)}, {pr(t,i)}, {pr(u,i)}")
    for i in range(16): L.append(f"v_exp_f32 v{t+i}, v{t+i}")
    for i in range(8): L.append(f"v_pk_add_f32 {pr(t,i)}, {pr(t,i)}, 1.0 op_sel_hi:[1,0]")
    for i in range(16): L.append(f"v_rcp_f32 v{t+i}, v{t+i}")
    for i in range(8): L.append(f"v_pk_mul_f32 {pr(t,i)}, {pr(t,i)}, {pr(u,i)}")
    for i in range(8): L.append(f"v_cvt_pk_bf16_f32 v{u+i}, v{t+2*i}, v{t+2*i+1}")
    for h in range(2):
        off = (2 * F + h) * 1024
        L.append((f"buffer_store_dwordx4 {vr(u+4*h,4)}, v{V_L16H if off >= 4096 else V_L16}, {sr(SRD_WS,4)}, s{S_HST} offen offset:{off & 4095} {SC}", 'hst'))
    return L

def prep(P, o):
    T = V_T
    S_SP = S_RB
    P(f"s_sub_u32 s{S_SP}, s2, 224")
    P(f"s_lshl_b32 s{S_T4}, s{S_SP}, 2")
    P(f"s_add_u32 s{S_T4}, s{S_T4}, s{S_WAVE}")
    P(f"v_lshrrev_b32 v{T}, 2, v{V_LANE}")
    P(f"s_lshl_b32 s{S_T0}, s{S_T4}, 4")
    P(f"v_add_u32 v20, s{S_T0}, v{T}")
    P(f"v_mul_u32_u24 v{T}, 896, v20")
    P(f"v_and_b32 v{T+1}, 3, v{V_LANE}")
    P(f"v_lshlrev_b32 v{T+1}, 4, v{T+1}")
    P(f"v_add_u32 v{T}, v{T}, v{T+1}")
    P(f"v_lshrrev_b32 v21, 3, v{V_LANE}")
    P(f"v_and_b32 v22, 7, v{V_LANE}")
    P(f"v_bfe_u32 v23, v{V_LANE}, 4, 1")
    P(f"v_lshlrev_b32 v23, 2, v23")
    P(f"v_xor_b32 v22, v22, v23")
    P(f"v_lshlrev_b32 v22, 4, v22")
    P(f"s_lshl_b32 s{S_TAB+20}, s{S_WAVE}, 14")
    srd(P, SRD_WQ, S_WO, 448 * 896)
    for i in range(8):
        it, ks, cc = S_TAB + 21, S_TAB + i, S_TAB + 8 + i
        P(f"s_lshl_b32 s{it}, s{S_T4}, 3")
        P(f"s_add_u32 s{it}, s{it}, {i}")
        P(f"s_min_u32 s{it}, s{it}, 1007")
        P(f"s_mul_i32 s{ks}, s{it}, 9363")
        P(f"s_lshr_b32 s{ks}, s{ks}, 16")
        P(f"s_mul_i32 s{cc}, s{ks}, 7")
        P(f"s_sub_u32 s{cc}, s{it}, s{cc}")
        P(f"s_add_u32 m0, s{S_TAB+20}, {i*2048}")
        P(f"s_cmp_lt_u32 s{ks}, 112")
        P(f"s_cbranch_scc0 L_prep_o{i}")
        P(f"s_lshl_b32 s{S_T0}, s{ks}, 4")
        P(f"v_add_u32 v24, s{S_T0}, v21")
        P(f"v_mul_u32_u24 v24, 896, v24")
        P(f"v_add_u32 v24, v24, v22")
        P(f"v_add_u32 v25, {8*896-1024}, v24")
        P(f"s_lshl_b32 s{S_T0}, s{cc}, 7")
        P(f"buffer_load_dwordx4 v24, {sr(SRD_P,4)}, s{S_T0} offen lds")
        P(f"buffer_load_dwordx4 v25, {sr(SRD_P,4)}, s{S_T0} offen offset:1024 lds")
        P(f"s_branch L_prep_n{i}")
        P(f"L_prep_o{i}:")
        P(f"s_sub_u32 s{S_T0}, s{ks}, 112")
        P(f"s_lshr_b32 s{S_T1}, s{S_T0}, 1")
        P(f"s_and_b32 s{S_T0}, s{S_T0}, 1")
        P(f"s_lshl_b32 s{S_T0}, s{S_T0}, 4")
        P(f"s_mul_i32 s{S_T2}, s{S_T1}, 7")
        P(f"s_lshr_b32 s{S_T2}, s{S_T2}, 1")
        P(f"s_lshl_b32 s{S_T2}, s{S_T2}, 3")
        P(f"s_add_u32 s{S_T2}, s{S_T2}, s{S_T0}")
        P(f"s_mul_i32 s{S_T1}, s{S_T1}, 28")
        for hh in range(2):
            P(f"v_add_u32 v26, s{S_T2}, v21")
            if hh: P(f"v_add_u32 v26, 8, v26")
            P(f"v_subrev_u32 v27, s{S_T1}, v26")
            P(f"v_cmp_gt_u32 vcc, 28, v27")
            P(f"v_mul_u32_u24 v26, 896, v26")
            P(f"v_add_u32 v26, v26, v22")
            if hh: P(f"v_subrev_u32 v26, 1024, v26")
            P(f"v_mov_b32 v27, 0x7fff0000")
            P(f"v_cndmask_b32 v{24+hh}, v27, v26, vcc")
        P(f"s_lshl_b32 s{S_T0}, s{cc}, 7")
        P(f"buffer_load_dwordx4 v24, {sr(SRD_WQ,4)}, s{S_T0} offen lds")
        P(f"buffer_load_dwordx4 v25, {sr(SRD_WQ,4)}, s{S_T0} offen offset:1024 lds")
        P(f"L_prep_n{i}:")
    for i in range(14):
        P(f"buffer_load_dwordx4 {vr(32+4*i,4)}, v{T}, {sr(SRD_X,4)}, 0 offen offset:{64*i}")
    for i in range(14):
        P(f"global_load_dwordx4 {vr(96+4*i,4)}, v{T+1}, {sr(S_GW)} offset:{64*i}")
    make_tag(P, o)
    P(f"v_bfe_u32 v21, v{V_LANE}, 2, 2")
    P(f"v_lshrrev_b32 v22, 5, v{V_LANE}")
    P(f"v_lshl_add_u32 v22, v22, 2, v21")
    P(f"v_lshlrev_b32 v22, 7, v22")
    P(f"v_bfe_u32 v23, v{V_LANE}, 4, 1")
    P(f"v_lshl_add_u32 v22, v23, 5, v22")
    P(f"v_and_b32 v23, 3, v{V_LANE}")
    P(f"v_lshl_add_u32 v22, v23, 3, v22")
    P(f"v_add_u32 v22, s{S_TAB+20}, v22")
    P(f"v_lshrrev_b32 v21, 1, v21")
    P(f"v_lshl_add_u32 v23, v21, 6, v22")
    P(f"v_xor_b32 v21, 1, v21")
    P(f"v_lshl_add_u32 v22, v21, 6, v22")
    P("s_waitcnt vmcnt(28)")
    for i in range(8):
        ks, cc = S_TAB + i, S_TAB + 8 + i
        d = 160 + 8 * i
        for ct in range(2):
            for rho in range(2):
                P(f"ds_read_b64_tr_b16 {vr(d+4*ct+2*rho,2)}, v{23-ct} offset:{i*2048 + rho*1024}")
        P(f"s_mul_i32 s{S_T0}, s{cc}, {BP_C}")
        P(f"s_lshl_b32 s{S_T1}, s{ks}, 11")
        P(f"s_add_u32 s{S_T0}, s{S_T0}, s{S_T1}")
        P(f"s_add_u32 s{ks}, s{S_T0}, {BP_OFF}")
    for i in range(8):
        d = 160 + 8 * i
        for ct in range(2):
            P(f"buffer_store_dwordx4 {vr(d+4*ct,4)}, v{V_L16}, {sr(SRD_WS,4)}, s{S_TAB+i} offen offset:{ct*1024} {SC}")
    P("v_mov_b32 v24, 0")
    P("v_mov_b32 v25, 0")
    for i in range(56):
        P(f"v_dot2_f32_bf16 v{24+(i&1)}, v{32+i}, v{96+i}, v{24+(i&1)}")
    P("s_nop 2")
    P("v_add_f32 v24, v24, v25")
    P("v_add_f32_dpp v24, v24, v24 quad_perm:[1,0,3,2] row_mask:0xf bank_mask:0xf")
    P("v_add_f32_dpp v24, v24, v24 quad_perm:[2,3,0,1] row_mask:0xf bank_mask:0xf")
    P(f"v_mul_f32 v24, {hex(f2u(-math.log2(math.e)))}, v24")
    P("v_exp_f32 v24, v24")
    P("v_add_f32 v24, 1.0, v24")
    P("v_rcp_f32 v24, v24")
    P(f"v_lshlrev_b32 v20, 2, v20")
    P(f"v_and_b32 v25, 3, v{V_LANE}")
    P(f"v_cmp_eq_u32 vcc, 0, v25")
    P(f"v_mov_b32 v27, 0x7fff0000")
    P(f"v_cndmask_b32 v20, v27, v20, vcc")
    P(f"s_mov_b32 s{S_T0}, {G_OFF}")
    P(f"buffer_store_dword v24, v20, {sr(SRD_WS,4)}, s{S_T0} offen {SC}")
    P("s_waitcnt vmcnt(0) lgkmcnt(0)")
    P("s_barrier")
    if o.fused:
        P(f"s_lshl_b32 s{S_T0}, s{S_SP}, 7")
        P(f"s_add_u32 s{S_T0}, s{S_T0}, {FL_PREP}")
        P(f"s_cmp_eq_u32 s{S_WAVE}, 0")
        P("s_cbranch_scc0 L_prep_nf")
        P.add(flag_store(o, S_T0))
        P("L_prep_nf:")

AQ = 16
AK = 24
AV = 40
AS = 64
AN = 112
AO = 128
AP = 144
AM = 168
A_KR, A_VR = 176, 177
A_KD, A_VD = 179, 180
A_PA, A_PV = 182, 183
A_G = 186
A_MX = 187

def att_scalars(P, o):
    P(f"s_and_b32 s{S_RB}, s{S_SLOT}, 15")
    P(f"s_lshr_b32 s{S_J}, s{S_SLOT}, 4")
    P(f"s_lshl_b32 s{S_T0}, s{S_XCD}, 1")
    P(f"s_add_u32 s{S_J}, s{S_J}, s{S_T0}")
    P(f"s_lshl_b32 s{S_TB}, s{S_RB}, 2")
    P(f"s_add_u32 s{S_TB}, s{S_TB}, s{S_WAVE}")
    P(f"s_and_b32 s{S_PAR}, s{S_J}, 1")

def att_poll_addr(P, o):
    if not o.fused: return
    T = V_T
    P(f"v_min_u32 v{T}, 13, v{V_LANE}")
    P(f"v_lshrrev_b32 v{T+1}, 1, v{T}")
    P(f"v_and_b32 v{T}, 1, v{T}")
    P(f"s_mul_i32 s{S_T0}, s{S_J}, 7")
    P(f"s_lshr_b32 s{S_T0}, s{S_T0}, 1")
    P(f"s_lshl_b32 s{S_T0}, s{S_T0}, 3")
    P(f"v_mad_u32_u24 v{T}, v{T}, 31, s{S_T0}")
    P(f"v_cmp_gt_u32 vcc, 3, v{T+1}")
    P(f"v_mov_b32 v{T+2}, 896")
    P(f"v_mov_b32 v{T+3}, 448")
    P(f"v_cndmask_b32 v{T+2}, v{T+2}, v{T+3}, vcc")
    P(f"v_subrev_u32 v{T+3}, 3, v{T+1}")
    P(f"v_cndmask_b32 v{T+3}, v{T+3}, v{T+1}, vcc")
    P(f"v_cmp_eq_u32 vcc, 6, v{T+1}")
    P(f"s_mul_i32 s{S_T1}, s{S_WAVE}, 3")
    P(f"s_lshl_b32 s{S_T2}, s{S_RB}, 2")
    P(f"s_add_u32 s{S_T1}, s{S_T1}, s{S_T2}")
    P(f"s_sub_u32 s{S_T1}, s{S_T1}, 8")
    P(f"v_cndmask_b32_e64 v{T+2}, v{T+2}, 0, vcc")
    P(f"v_add_u32 v{T}, v{T}, v{T+2}")
    P(f"v_mul_u32_u24 v{T}, 683, v{T}")
    P(f"v_lshrrev_b32 v{T}, 16, v{T}")
    P(f"v_add_u32 v{T+3}, s{S_T1}, v{T+3}")
    P(f"v_max_i32 v{T+3}, 0, v{T+3}")
    P(f"v_mov_b32 v{T+2}, s{S_TB}")
    P(f"v_cndmask_b32 v{T+3}, v{T+3}, v{T+2}, vcc")
    P(f"v_lshl_add_u32 v{T}, v{T+3}, 4, v{T}")
    P(f"v_lshlrev_b32 v{T}, 7, v{T}")
    P(f"v_add_u32 v{V_PA}, {FL_QKV}, v{T}")

def att_addr(P, o):
    T = V_T
    P(f"s_mul_i32 s{S_T0}, s{S_J}, 7")
    P(f"s_lshr_b32 s{S_T0}, s{S_T0}, 1")
    P(f"s_lshl_b32 s{S_T4}, s{S_T0}, 9")
    P(f"s_add_u32 s{S_T1}, s{S_T4}, {56*512}")
    P(f"v_add_u32 v{A_KD}, s{S_T1}, v{V_L16}")
    P(f"v_lshrrev_b32 v{T}, 5, v{V_LANE}")
    P(f"v_and_b32 v{T+1}, 31, v{V_LANE}")
    P(f"s_add_u32 s{S_T1}, s{S_T4}, {112*512 - 2048}")
    for t in range(2):
        P(f"v_lshlrev_b32 v{T+2}, 2, v{T}")
        P(f"v_xor_b32 v{T+2}, v{T+2}, v{T+1}")
        if t: P(f"v_xor_b32 v{T+2}, 8, v{T+2}")
        P(f"v_lshlrev_b32 v{T+2}, 4, v{T+2}")
        P(f"v_lshl_add_u32 v{T+2}, v{T}, 9, v{T+2}")
        P(f"v_add_u32 v{A_VD+t}, s{S_T1}, v{T+2}")
    P(f"s_lshl_b32 s{S_T1}, s{S_WAVE}, 12")
    P(f"v_add_u32 v{A_KR}, s{S_T1}, v{V_L16}")
    P(f"v_bfe_u32 v{T+1}, v{V_LANE}, 4, 1")
    P(f"v_bfe_u32 v{T+2}, v{V_LANE}, 1, 1")
    P(f"v_lshl_add_u32 v{T+3}, v{T+1}, 1, v{T+2}")
    P(f"v_lshlrev_b32 v{T+4}, 9, v{T+3}")
    P(f"v_xor_b32 v{T+3}, v{T+3}, v{T}")
    P(f"v_lshl_add_u32 v{T+4}, v{T+3}, 6, v{T+4}")
    P(f"v_bfe_u32 v{T+3}, v{V_LANE}, 2, 2")
    P(f"v_lshl_add_u32 v{T+4}, v{T+3}, 4, v{T+4}")
    P(f"v_and_b32 v{T+3}, 1, v{V_LANE}")
    P(f"v_lshl_add_u32 v{T+4}, v{T+3}, 3, v{T+4}")
    P(f"s_add_u32 s{S_T1}, s{S_T1}, 2048")
    P(f"v_add_u32 v{A_VR}, s{S_T1}, v{T+4}")
    P(f"v_xor_b32 v{A_VR+1}, 128, v{A_VR}")
    P(f"v_and_b32 v{T+1}, 31, v{V_LANE}")
    P(f"v_mul_u32_u24 v{T+2}, 12, v{T}")
    P(f"s_cmp_eq_u32 s{S_PAR}, 0")
    P(f"s_cselect_b32 s{S_T1}, -1, 0")
    P(f"s_cselect_b32 s{S_T2}, 1544, 0")
    P(f"v_and_b32 v{T+2}, s{S_T1}, v{T+2}")
    P(f"v_xor_b32 v{T+1}, v{T+1}, v{T+2}")
    P(f"v_lshlrev_b32 v{T+1}, 4, v{T+1}")
    P(f"v_lshl_add_u32 v{T+1}, v{T}, 11, v{T+1}")
    P(f"s_mul_i32 s{S_T3}, s{S_WAVE}, {3*4096}")
    P(f"s_add_u32 s{S_T2}, s{S_T2}, s{S_T3}")
    P(f"v_add_u32 v{A_PA}, s{S_T2}, v{T+1}")
    P(f"v_cmp_gt_u32 vcc, 32, v{V_LANE}")
    P(f"s_mul_i32 s{S_T1}, s{S_WAVE}, 3")
    P(f"s_lshl_b32 s{S_T2}, s{S_RB}, 2")
    P(f"s_add_u32 s{S_T1}, s{S_T1}, s{S_T2}")
    P(f"v_mov_b32 v{T+1}, 0x3f80")
    for k in range(3):
        P(f"s_add_u32 s{S_T2}, s{S_T1}, {k}")
        P(f"s_cmp_lt_u32 s{S_T2}, 8")
        P(f"s_cselect_b32 s{S_T2}, 0xf14a, 0")
        P(f"v_mov_b32 v{T+2}, s{S_T2}")
        P(f"v_cndmask_b32 v{A_PV+k}, v{T+1}, v{T+2}, vcc")
    for r in range(16):
        k0 = (r & 3) + 8 * (r >> 2)
        lo = (0xffffffff << k0) & 0xffffffff
        hi = (0xffffffff << (k0 + 4)) & 0xffffffff
        P(f"s_mov_b32 s{S_TAB+2*r}, {hex(lo)}")
        P(f"s_mov_b32 s{S_TAB+2*r+1}, {hex(hi)}")
    P(f"v_mov_b32 v{T+1}, 0xffff")
    P(f"v_mov_b32 v{T+2}, 0xffff0000")
    for i in range(8):
        P(f"v_cndmask_b32_e64 v{T+3}, 0, v{T+1}, {sr(S_TAB+4*i)}")
        P(f"v_cndmask_b32_e64 v{T+4}, 0, v{T+2}, {sr(S_TAB+4*i+2)}")
        P(f"v_or_b32 v{AM+i}, v{T+3}, v{T+4}")

def att_loads(P, o):
    P(f"s_mul_i32 s{S_T1}, s{S_WAVE}, 3")
    P(f"s_lshl_b32 s{S_T2}, s{S_RB}, 2")
    P(f"s_add_u32 s{S_T1}, s{S_T1}, s{S_T2}")
    P(f"s_mul_i32 s{S_T3}, s{S_WAVE}, {3*4096}")
    for k in range(3):
        P(f"s_add_i32 s{S_T2}, s{S_T1}, {k-8}")
        P(f"s_max_i32 s{S_T2}, s{S_T2}, 0")
        P(f"s_mul_i32 s{S_T2}, s{S_T2}, {QKV_TB}")
        P(f"s_add_u32 m0, s{S_T3}, {LKV + k*4096}")
        P(f"s_add_u32 s{S_T2}, s{S_T2}, {QKV_OFF}")
        for t in range(2):
            P(f"buffer_load_dwordx4 v{A_KD}, {sr(SRD_WS,4)}, s{S_T2} offen offset:{t*1024} {SC} lds", tag='kv')
        for t in range(2):
            P(f"buffer_load_dwordx4 v{A_VD+t}, {sr(SRD_WS,4)}, s{S_T2} offen offset:{2048+t*1024} {SC} lds", tag='kv')
    P(f"s_mul_i32 s{S_T2}, s{S_TB}, {QKV_TB}")
    P(f"s_add_u32 s{S_T2}, s{S_T2}, s{S_T4}")
    P(f"s_add_u32 s{S_T2}, s{S_T2}, {QKV_OFF}")
    for t in range(2):
        P(f"buffer_load_dwordx4 {vr(AQ+4*t,4)}, v{V_L16}, {sr(SRD_WS,4)}, s{S_T2} offen offset:{t*1024} {SC}")
    P(f"v_and_b32 v{V_T}, 31, v{V_LANE}")
    P(f"v_lshlrev_b32 v{V_T}, 2, v{V_T}")
    P(f"s_lshl_b32 s{S_T2}, s{S_TB}, 7")
    P(f"s_add_u32 s{S_T2}, s{S_T2}, {G_OFF}")
    P(f"buffer_load_dword v{A_G}, v{V_T}, {sr(SRD_WS,4)}, s{S_T2} offen {SC}")

def kread(i, buf):
    return [f"ds_read_b128 {vr(AK+8*buf+4*t,4)}, v{A_KR} offset:{LKV + i*4096 + t*1024}" for t in range(2)]
def vread(i, buf):
    return [f"ds_read_b64_tr_b16 {vr(AV+8*buf+4*t+2*rho,2)}, v{A_VR+rho} offset:{LKV + i*4096 + t*256}" for t in range(2) for rho in range(2)]
def qk(i, sbuf, kbuf, c):
    s = AS + 16 * sbuf
    return [mfma(s, AK + 8 * kbuf, AQ, c), mfma(s, AK + 8 * kbuf + 4, AQ + 4, s)]

def attention(P, o, fill):
    T = V_T
    P.wait_vm('kv')
    for k in range(3):
        P(f"ds_write_b16 v{A_PA}, v{A_PV+k} offset:{LKV + k*4096}")
    P(f"s_cmp_eq_u32 s{S_PAR}, 0")
    P(f"s_cselect_b32 s{S_T0}, 0, -1")
    P(f"s_mov_b32 s{S_T1}, 0")
    P(f"s_mov_b32 s{S_T2}, 0")
    P(f"s_cselect_b32 s{S_T3}, -1, 0")
    P(f"v_mov_b32 v{T}, 0x3f80")
    P(f"v_cndmask_b32_e64 v{AQ}, v{AQ}, v{T}, {sr(S_T0)}")
    P(f"v_cndmask_b32_e64 v{AQ+1}, v{AQ+1}, 0, {sr(S_T0)}")
    P(f"v_cndmask_b32_e64 v{AQ+6}, v{AQ+6}, v{T}, {sr(S_T2)}")
    P(f"v_cndmask_b32_e64 v{AQ+7}, v{AQ+7}, 0, {sr(S_T2)}")
    P("s_waitcnt lgkmcnt(0)")
    P("s_barrier")
    stamp(P, o, 'att_go')
    order = [0, 8, 1, 2, 3, 4, 5, 6, 7]
    sb = lambda n: n % 4
    P.add(kread(order[0], 0)); P.add(kread(order[1], 1))
    def maxops(s, first):
        L = []
        for i in range(8):
            if first and i == 0: L.append(f"v_max_f32 v{A_MX}, v{s}, v{s+1}")
            else: L.append(f"v_max3_f32 v{A_MX}, v{s+2*i}, v{s+2*i+1}, v{A_MX}")
        return L
    merge = [f"v_cndmask_b32_e64 v{AS+16+r}, v{AS+r}, v{AS+16+r}, {sr(S_TAB+2*r)}" for r in range(16)]
    for n in range(9):
        m = qk(order[n], sb(n), n & 1, None)
        post = []
        if n == 3: post = merge
        if n == 4: post = maxops(AS + 16, True) + maxops(AS + 16 * sb(2), False)
        if n >= 5: post = maxops(AS + 16 * sb(n - 2), False)
        nxt = kread(order[n + 2], n & 1) if n + 2 < 9 else kread(order[n + 2 - 9], n & 1)
        h = len(post) // 2
        P.add([m[0]] + post[:h] + [m[1]] + nxt + post[h:])
    P.add(vread(0, 0)); P.add(vread(8, 1))
    P.add(maxops(AS + 16 * sb(7), False))
    P.add(maxops(AS + 16 * sb(8), False))
    P(f"v_mov_b32 v{T}, v{A_MX}")
    P(f"v_permlane32_swap_b32 v{A_MX}, v{T}")
    P(f"v_max_f32 v{A_MX}, v{A_MX}, v{T}")
    P(f"v_sub_f32 v{AN}, 0, v{A_MX}")
    P(f"v_sub_f32 v{AN+1}, 0, v{A_MX}")
    for i in range(1, 8): P(f"v_mov_b64 {vr(AN+2*i,2)}, {vr(AN,2)}")
    stamp(P, o, 'att_p1')
    kb = lambda n: (n + 1) & 1
    def expcvt(s, p):
        L = []
        for i in range(8):
            L += [f"v_exp_f32 v{s+2*i}, v{s+2*i}", f"v_exp_f32 v{s+2*i+1}, v{s+2*i+1}"]
            if i >= 1: L.append(f"v_cvt_pk_bf16_f32 v{p+i-1}, v{s+2*i-2}, v{s+2*i-1}")
        L.append(f"v_cvt_pk_bf16_f32 v{p+7}, v{s+14}, v{s+15}")
        return L
    def pv(p, vbuf, first=False):
        return [mfma(AO, AV + 8 * vbuf, p, None if first else AO), mfma(AO, AV + 8 * vbuf + 4, p + 4, AO)]
    m0 = qk(0, 0, kb(0), AN); m1 = qk(8, 1, kb(1), AN)
    P.add(m0 + kread(order[2], kb(2)) + m1 + kread(order[3], kb(3)))
    m2 = qk(order[2], 2, kb(2), AN)
    P.add([m2[0], m2[1]] + merge)
    ec = expcvt(AS + 16, AP)
    sp = []
    for i in range(8):
        sp += [f"v_and_b32 v{AP+8+i}, v{AP+i}, v{AM+i}", f"v_xor_b32 v{AP+16+i}, v{AP+i}, v{AP+8+i}"]
    m3 = qk(order[3], 0, kb(3), AN)
    P.add(kread(order[4], kb(4)) + ec[:8] + [m3[0]] + ec[8:16] + [m3[1]] + kread(order[5], kb(5)) + ec[16:] + sp)
    pend = pv(AP + 16, 0, True) + pv(AP + 8, 1)
    pend_rd = vread(order[2], 0) + vread(order[3], 1)
    sbuf2 = lambda n: n % 3
    for n in range(2, 9):
        p = AP if (n & 1) == 0 else AP + 8
        if n == 2: p = AP
        ec = expcvt(AS + 16 * sbuf2(n), p if n != 3 else AP + 16)
        if n == 3: p = AP + 16
        mq = qk(order[n + 2], sbuf2(n + 2), kb(n + 2), AN) if n + 2 < 9 else []
        kr = kread(order[n + 4], kb(n + 4)) if n + 4 < 9 else []
        ms = pend + mq
        seq = []
        k = len(ms)
        step = max(1, len(ec) // max(k, 1))
        ei = 0
        for j, mm in enumerate(ms):
            seq.append(mm)
            if j == len(pend) - 1: seq += pend_rd
            if j == k - 1 and mq: seq += kr
            take = ec[ei:ei + step] if j < k - 1 else ec[ei:]
            seq += take; ei += len(take)
        P.add(seq)
        vb = n & 1
        pend = pv(p, vb)
        pend_rd = vread(order[n + 2], vb) if n + 2 < 9 else []
    P.add(pend)
    stamp(P, o, 'att_p2')
    P(f"s_cmp_eq_u32 s{S_PAR}, 0")
    P(f"s_cselect_b64 {sr(S_T0)}, -1, 0")
    P(f"s_mul_i32 s{S_T2}, s{S_TB}, {A_TB}")
    P(f"s_lshl_b32 s{S_T3}, s{S_J}, 11")
    P(f"s_add_u32 s{S_T2}, s{S_T2}, s{S_T3}")
    P(f"s_add_u32 s{S_T2}, s{S_T2}, {A_OFF + 112*1024}")
    P(f"v_cndmask_b32_e64 v{T}, v{AO}, v{AO+12}, {sr(S_T0)}")
    P(f"v_mov_b32 v{T+1}, v{T}")
    P(f"v_permlane32_swap_b32 v{T}, v{T+1}")
    P(f"v_cndmask_b32_e64 v{T}, v{T}, v{T+1}, {sr(S_T0)}")
    P(f"v_rcp_f32 v{T}, v{T}")
    P(f"v_mul_f32 v{T+1}, v{T}, v{A_G}")
    for i in range(8):
        P(f"v_pk_mul_f32 {vr(AO+2*i,2)}, {vr(AO+2*i,2)}, {vr(T+1,2)} op_sel_hi:[1,0]")
    for i in range(8):
        P(f"v_cvt_pk_bf16_f32 v{AP+i}, v{AO+2*i}, v{AO+2*i+1}")
    for t in range(2):
        P(f"buffer_store_dwordx4 {vr(AP+4*t,4)}, v{V_L16}, {sr(SRD_WS,4)}, s{S_T2} offen offset:{t*1024} {SC}", tag='ost')

LACC = 16
LA = 80
NA = 16
L_G = 208
L_RW = 224
L_RR = 227
L_OA = 228
S_AT = 72

def last_baddr(P, o):
    T = V_T
    P(f"s_mul_i32 s{S_T0}, s{S_C}, {BP_C}")
    P(f"s_add_u32 s{S_T0}, s{S_T0}, {BP_OFF}")
    P(f"s_lshl_b32 s{S_T1}, s{S_WAVE}, 14")
    P(f"s_add_u32 s{S_BOFF}, s{S_T0}, {112*2048}")
    P(f"s_add_u32 s{S_BOFF}, s{S_BOFF}, s{S_T1}")
    P(f"s_mul_i32 s{S_T1}, s{S_WAVE}, {28*2048}")
    P(f"s_add_u32 s{S_T0}, s{S_T0}, s{S_T1}")
    P(f"s_mov_b32 s{S_T1}, s{S_ROT}")
    for g in range(7):
        P(f"s_lshl_b32 s{S_T2}, s{S_T1}, 13")
        P(f"s_add_u32 s{S_BT[g]}, s{S_T0}, s{S_T2}")
        if g < 6:
            P(f"s_add_u32 s{S_T1}, s{S_T1}, 1")
            P(f"s_cmp_eq_u32 s{S_T1}, 7")
            P(f"s_cselect_b32 s{S_T1}, 0, s{S_T1}")
    P(f"s_lshr_b32 s{S_T0}, s{S_WAVE}, 1")
    P(f"s_lshl_b32 s{S_T0}, s{S_T0}, 10")
    P(f"s_xor_b32 s{S_T1}, s{S_T0}, 1024")
    P(f"v_add_u32 v{V_BA}, s{S_T1}, v{V_L16}")
    P(f"v_add_u32 v{V_BA+1}, s{S_T1}, v{V_L16H}")
    P(f"v_add_u32 v{V_BA+2}, s{S_T0}, v{V_L16}")
    P(f"v_add_u32 v{V_BA+3}, s{S_T0}, v{V_L16H}")

def last_setup(P, o):
    T = V_T
    P(f"s_lshl_b32 s{S_T0}, s{S_C}, 7")
    P(f"v_and_b32 v{T}, 31, v{V_LANE}")
    P(f"v_lshl_add_u32 v{T+1}, v{T}, 2, s{S_T0}")
    P(f"global_load_dword v15, v{T+1}, {sr(S_B2)}")
    P(f"s_and_b32 s{S_T1}, s{S_WAVE}, 1")
    P(f"s_lshl_b32 s{S_T0}, s{S_R}, 8")
    P(f"s_add_u32 s{S_T0}, s{S_T0}, {G_OFF}")
    P(f"s_lshl_b32 s{S_T2}, s{S_T1}, 7")
    P(f"s_xor_b32 s{S_T3}, s{S_T2}, 128")
    P(f"s_add_u32 s{S_T2}, s{S_T2}, s{S_T0}")
    P(f"s_add_u32 s{S_T3}, s{S_T3}, s{S_T0}")
    P(f"v_lshlrev_b32 v{T+1}, 2, v{T}")
    P(f"buffer_load_dword v{L_G}, v{T+1}, {sr(SRD_WS,4)}, s{S_T3} offen {SC}")
    P(f"buffer_load_dword v{L_G+2}, v{T+1}, {sr(SRD_WS,4)}, s{S_T2} offen {SC}")
    P(f"s_mul_i32 s{S_T2}, s{S_T1}, {A_TB}")
    P(f"s_sub_u32 s{S_T3}, {A_TB}, s{S_T2}")
    P(f"v_add_u32 v{V_AA}, s{S_T3}, v{V_L16}")
    P(f"v_add_u32 v{V_AA+1}, s{S_T2}, v{V_L16}")
    P(f"s_mul_i32 s{S_T0}, s{S_R}, {2*A_TB}")
    P(f"s_add_u32 s{S_T0}, s{S_T0}, {A_OFF}")
    P(f"s_lshl_b32 s{S_T2}, s{S_WAVE}, 13")
    P(f"s_add_u32 s{S_AT+7}, s{S_T0}, s{S_T2}")
    P(f"s_add_u32 s{S_AT+7}, s{S_AT+7}, {112*1024}")
    P(f"s_add_u32 s{S_AT+8}, s{S_AT+7}, 4096")
    P(f"s_add_u32 s{S_AT+9}, s{S_BOFF}, 8192")
    P(f"s_mul_i32 s{S_T2}, s{S_WAVE}, {28*1024}")
    P(f"s_add_u32 s{S_T0}, s{S_T0}, s{S_T2}")
    P(f"s_mov_b32 s{S_T2}, s{S_ROT}")
    for g in range(7):
        P(f"s_lshl_b32 s{S_T3}, s{S_T2}, 12")
        P(f"s_add_u32 s{S_AT+g}, s{S_T0}, s{S_T3}")
        if g < 6:
            P(f"s_add_u32 s{S_T2}, s{S_T2}, 1")
            P(f"s_cmp_eq_u32 s{S_T2}, 7")
            P(f"s_cselect_b32 s{S_T2}, 0, s{S_T2}")
    if o.fused:
        P(f"v_and_b32 v{T+1}, 1, v{V_LANE}")
        P(f"s_lshl_b32 s{S_T0}, s{S_R}, 1")
        P(f"v_add_u32 v{T+1}, s{S_T0}, v{T+1}")
        P(f"v_lshlrev_b32 v{T+1}, 4, v{T+1}")
        P(f"v_bfe_u32 v{T+2}, v{V_LANE}, 1, 2")
        P(f"v_add_u32 v{T+1}, v{T+1}, v{T+2}")
        P(f"v_lshlrev_b32 v{T+1}, 7, v{T+1}")
        P(f"s_mul_i32 s{S_T0}, s{S_WAVE}, 7")
        P(f"s_lshr_b32 s{S_T0}, s{S_T0}, 1")
        P(f"s_lshl_b32 s{S_T0}, s{S_T0}, 7")
        P(f"s_add_u32 s{S_T0}, s{S_T0}, {FL_H}")
        P(f"v_add_u32 v{V_PA}, s{S_T0}, v{T+1}")
        P(f"s_lshl_b32 s{S_T0}, s{S_WAVE}, 9")
        P(f"s_add_u32 s{S_T0}, s{S_T0}, {FL_O}")
        P(f"v_add_u32 v{L_OA+1}, s{S_T0}, v{T+1}")
    for d in range(1, 4):
        P(f"s_xor_b32 s{S_T0}, s{S_WAVE}, {d}")
        P(f"s_mul_i32 s{S_T0}, s{S_T0}, 12288")
        P(f"s_add_u32 s{S_T0}, s{S_T0}, {LRED + (d-1)*4096}")
        P(f"v_add_u32 v{L_RW+d-1}, s{S_T0}, v{V_L16}")
    P(f"s_mul_i32 s{S_T0}, s{S_WAVE}, 12288")
    P(f"s_add_u32 s{S_T0}, s{S_T0}, {LRED}")
    P(f"v_add_u32 v{L_RR}, s{S_T0}, v{V_L16}")
    P(f"s_lshl_b32 s{S_T0}, s{S_R}, 6")
    P(f"s_lshl_b32 s{S_T2}, s{S_T1}, 5")
    P(f"s_add_u32 s{S_T0}, s{S_T0}, s{S_T2}")
    P(f"v_add_u32 v{T+1}, s{S_T0}, v{T}")
    P(f"v_mul_u32_u24 v{T+1}, 896, v{T+1}")
    P(f"v_lshrrev_b32 v{T+2}, 5, v{V_LANE}")
    P(f"v_lshl_add_u32 v{T+1}, v{T+2}, 4, v{T+1}")
    P(f"s_lshl_b32 s{S_T0}, s{S_C}, 7")
    P(f"s_lshr_b32 s{S_T2}, s{S_WAVE}, 1")
    P(f"s_lshl_b32 s{S_T2}, s{S_T2}, 6")
    P(f"s_add_u32 s{S_T0}, s{S_T0}, s{S_T2}")
    P(f"v_add_u32 v{L_OA}, s{S_T0}, v{T+1}")
    P(f"s_cmp_eq_u32 s{S_WAVE}, 0")
    P(f"s_cselect_b32 s{S_T3}, -1, 0")
    P(f"v_and_b32 v15, s{S_T3}, v15")
    a = bias_to_acc(P, 15, LACC, 2, 12)
    P(f"s_lshr_b32 s{S_T2}, s{S_WAVE}, 1")
    P(f"s_lshl_b32 s{S_T2}, s{S_T2}, 7")
    P(f"s_xor_b32 s{S_T3}, s{S_T2}, 128")
    P(f"v_add_u32 v{a-1}, s{S_T3}, v{a}")
    P(f"v_add_u32 v{a}, s{S_T2}, v{a}")
    for ttl in range(2):
        for ctl in range(2):
            for q in range(4):
                P(f"ds_read_b128 {vr(LACC+32*ttl+16*ctl+4*q,4)}, v{a-1+ctl} offset:{32*q}")
    P(f"v_sub_f32 v{L_G}, 1.0, v{L_G}")
    P(f"v_sub_f32 v{L_G+2}, 1.0, v{L_G+2}")

def a_load(n):
    L = []
    for ttl in range(2):
        d = LA + 8 * (n % NA) + 4 * ttl
        if n < 28:
            L.append((f"buffer_load_dwordx4 {vr(d,4)}, v{V_AA+ttl}, {sr(SRD_WS,4)}, s{S_AT+(n>>2)} offen offset:{(n&3)*1024} {SC}", 'ald'))
        else:
            k = n - 28
            L.append((f"buffer_load_dwordx4 {vr(d,4)}, v{V_AA+ttl}, {sr(SRD_WS,4)}, s{S_AT+7+(k>>2)} offen offset:{(k&3)*1024} {SC}", 'ald'))
    return L

def breg(n, ctl):
    if n < 32: return 4 * (2 * n + ctl)
    return 4 * (2 * (n - 32) + ctl)

def last(P, o):
    q = lambda ttl, ctl: LACC + 32 * ttl + 16 * ctl
    poll(P, o, V_PA)
    if o.fused:
        P(f"s_lshl_b32 s{S_T0}, s{S_TB}, 4")
        P(f"s_add_u32 s{S_T0}, s{S_T0}, s{S_J}")
        P(f"s_lshl_b32 s{S_T0}, s{S_T0}, 7")
        P(f"s_add_u32 s{S_T0}, s{S_T0}, {FL_O}")
    stamp(P, o, 'last_go')
    for n in range(NA): P.add(a_load(n))
    for n in range(28):
        a = LA + 8 * (n % NA)
        M = [mfma(q(ttl, ctl), breg(n, ctl), a + 4 * ttl, q(ttl, ctl), 'a') for ttl in range(2) for ctl in range(2)]
        ex = []
        if n + NA < 28: ex = a_load(n + NA)
        if 4 <= n < 8:
            k = n
            ex = ex + [(f"buffer_load_dwordx4 {ar(breg(28+k, ct),4)}, v{V_BA+ct*2+((k-4)>>1)}, {sr(SRD_WS,4)}, s{S_AT+9} offen offset:{((k-4)&1)*2048} {SC}", 'bld2') for ct in range(2)]
        P.add(M + ex)
    stamp(P, o, 'last_h')
    if o.fused:
        P(f"v_mov_b32 v{V_PA}, v{L_OA+1}")
        poll(P, o, V_PA)
    for n in range(28, 36): P.add(a_load(n))
    sc = lambda ttl, ctl: [f"v_mul_f32 v{q(ttl,ctl)+i}, v{L_G+2*ttl}, v{q(ttl,ctl)+i}" for i in range(16)]
    P.add(sc(0, 0) + sc(0, 1) + sc(1, 0) + sc(1, 1))
    stamp(P, o, 'last_ogo')
    wr = lambda ttl, ctl: [f"ds_write_b128 v{L_RW + ((1-ttl) | ((1-ctl) << 1)) - 1}, {vr(q(ttl,ctl)+4*i,4)} offset:{i*1024}" for i in range(4)]
    mm = lambda n, ttl, ctl: mfma(q(ttl, ctl), breg(n, ctl), LA + 8 * (n % NA) + 4 * ttl, q(ttl, ctl), 'a')
    for n in range(28, 36): P.add([mm(n, 0, 0), mm(n, 0, 1)])
    w = wr(0, 0) + wr(0, 1)
    seq = []
    for i, n in enumerate(range(28, 36)):
        seq.append(mm(n, 1, 0))
        if i >= 2: seq += w[:2]; w = w[2:]
    seq += w
    w = wr(1, 0)
    for i, n in enumerate(range(28, 36)):
        seq.append(mm(n, 1, 1))
        if i >= 3 and w: seq.append(w.pop(0))
    P.add(seq + w)
    P("s_waitcnt lgkmcnt(0)")
    P("s_barrier")
    R = LA
    for d in range(3):
        for i in range(4):
            P(f"ds_read_b128 {vr(R+16*d+4*i,4)}, v{L_RR} offset:{d*4096 + i*1024}")
    o_ = q(1, 1)
    for d in range(3):
        for i in range(8):
            P(f"v_pk_add_f32 {vr(o_+2*i,2)}, {vr(o_+2*i,2)}, {vr(R+16*d+2*i,2)}")
    p = R + 48
    for i in range(8): P(f"v_cvt_pk_bf16_f32 v{p+i}, v{o_+2*i}, v{o_+2*i+1}")
    for h in range(2):
        P(f"v_permlane32_swap_b32 v{p+4*h}, v{p+4*h+2}")
        P(f"v_permlane32_swap_b32 v{p+4*h+1}, v{p+4*h+3}")
    for h in range(2):
        P(f"buffer_store_dwordx4 {vr(p+4*h,4)}, v{L_OA}, {sr(SRD_OUT,4)}, 0 offen offset:{32*h}")
    stamp(P, o, 'end')

HEADER = open('cdna_kernels/' + NAME + '.s.ref').read().split('; Override launch')[0]

def kernel_text(name, L):
    return f".globl {name}\n.p2align 8\n.type {name},@function\n{name}:\n" + text(L)

def descriptor(name):
    return f""".p2align 6
.amdhsa_kernel {name}
  .amdhsa_next_free_vgpr 512
  .amdhsa_next_free_sgpr 102
  .amdhsa_accum_offset 256
  .amdhsa_group_segment_fixed_size 0
  .amdhsa_kernarg_size 96
  .amdhsa_user_sgpr_count 2
  .amdhsa_user_sgpr_kernarg_segment_ptr 1
  .amdhsa_system_sgpr_workgroup_id_x 1
.end_amdhsa_kernel
"""

def build_multi(o):
    o.fused = False
    o.stamp_names = []
    ks = []
    o.kidx = 0; stamp_idx[0] = 0; o.code_bytes = 16384
    P = Prog(); setup(P, o, "L_end1")
    stamp(P, o, 'k1_start')
    P(f"s_cmp_ge_u32 s{S_SLOT}, 28")
    P("s_cbranch_scc1 L_prep")
    stage1(P, o, [])
    qkv_epilogue(P, o)
    stamp(P, o, 'qkv_epi')
    for F in range(4): P.add(gelu_tile(F))
    stamp(P, o, 'gelu')
    stamp_flush(P, o)
    P("s_endpgm")
    P.forget()
    P("L_prep:")
    prep(P, o)
    P("L_end1:")
    P("s_endpgm")
    ks.append(("s1_kernel", finalize(P, True)))
    o.kidx = 1; stamp_idx[0] = 0; o.code_bytes = 8192
    P = Prog(); setup(P, o, "L_end2")
    stamp(P, o, 'k2_start')
    att_scalars(P, o); att_addr(P, o); att_loads(P, o); attention(P, o, [])
    stamp(P, o, 'att_end')
    stamp_flush(P, o)
    P("L_end2:")
    P("s_endpgm")
    ks.append(("att_kernel", finalize(P, True)))
    o.kidx = 2; stamp_idx[0] = 0; o.code_bytes = 8192
    P = Prog(); setup(P, o, "L_end3")
    stamp(P, o, 'k3_start')
    P(f"s_cmp_ge_u32 s{S_SLOT}, 28")
    P("s_cbranch_scc1 L_end3")
    last_baddr(P, o)
    last_setup(P, o)
    for it in b_loads(o): P.add(it)
    last(P, o)
    stamp_flush(P, o)
    P("L_end3:")
    P("s_endpgm")
    ks.append(("last_kernel", finalize(P, True)))
    out = HEADER
    for n, _ in ks: out += f"; @launch kernel={n} grid=(256,1,1) block=(256,1,1) lds={LDS_BYTES}\n"
    out += '.amdgcn_target "amdgcn-amd-amdhsa--gfx950"\n.text\n'
    for n, L in ks: out += kernel_text(n, L)
    out += ".fill 6144, 4, 0xbf800000\n"
    out += '.section .rodata,"a"\n'
    for n, _ in ks: out += descriptor(n)
    return out

if __name__ == '__main__':
    o = Opt()
    mode = sys.argv[1]
    o.stamps = 'stamps' in sys.argv
    o.early_b = False
    if mode == 'multi': s = build_multi(o)
    open(sys.argv[2], 'w').write(s)
    if o.stamps: open(sys.argv[2] + '.names', 'w').write('\n'.join(o.stamp_names))
```

```python
import sys, math, struct
from asmlib import *

NAME = "gated_mix__sliding_block__dense_activation_gelu__prompt"

def f2u(x): return struct.unpack('<I', struct.pack('<f', x))[0]

WS_E      = 0
FL_PREP   = 0x1000
G_OFF     = 0x4000
FL_QKV    = 0x20000
FL_H      = 0x40000
FL_O      = 0x60000
QKV_OFF   = 0x100000
A_OFF     = 0x700000
BP_OFF    = 0x1000000
WS_SIZE   = 0x1200000
STAMP_OFF = 0x1400000
QKV_TB = 168 * 512
A_TB = 144 * 1024
BP_C = 144 * 2048

LX = 0; LX_SLOT = 16384
LF = 49152; LF_SLOT = 16384
LQ = 98304; LQ_SLOT = 12288
LBIAS = 135168
LKV = 0
LRED = 49152
LDS_BYTES = 160 * 1024

S_X, S_WQ, S_WO, S_W1, S_B1, S_W2, S_B2, S_GW, S_OUT, S_WS = 4, 6, 8, 12, 14, 16, 18, 20, 22, 24
SRD_X, SRD_WQ, SRD_W1, SRD_WS, SRD_OUT, SRD_P = 28, 32, 36, 40, 44, 48
S_WAVE, S_XCD, S_SLOT = 3, 10, 11
S_TAG = 26
S_RB, S_B, S_TB, S_ROT = 52, 53, 54, 55
S_T0, S_T1, S_T2, S_T3 = 56, 57, 58, 59
S_CNT = 60
S_QST, S_HST = 61, 62
S_T4 = 63
S_TAB = 64
S_BOFF = 13
S_BT = [4, 5, 6, 7, 8, 9, 12]
S_R, S_C = 98, 99
S_J = 100
S_PAR = 101

def sr(b, n=2): return f"s[{b}:{b+n-1}]"
def vr(b, n): return f"v[{b}:{b+n-1}]" if n > 1 else f"v{b}"
def ar(b, n): return f"a[{b}:{b+n-1}]"

V_TID, V_LANE = 0, 1
V_L16 = 2
V_L16H = 3
V_FLAGOFF = 4
V_TAG = 6
V_POLL = 8
V_PA = 10
V_T = 11

class Opt:
    fused = True
    stamps = False
    code_bytes = 24576

def mfma(d, a, b, c, areg='v'):
    A = ar(a, 4) if areg == 'a' else vr(a, 4)
    C = '0' if c is None else vr(c, 16)
    return f"v_mfma_f32_32x32x16_bf16 {vr(d,16)}, {A}, {vr(b,4)}, {C}"

def srd(P, d, ptr, size):
    P(f"s_mov_b32 s{d}, s{ptr}")
    P(f"s_and_b32 s{d+1}, s{ptr+1}, 0xffff")
    P(f"s_mov_b32 s{d+2}, {size}")
    P(f"s_mov_b32 s{d+3}, 0x20000")

stamp_idx = [0]
def stamp(P, o, name):
    if not o.stamps: return
    i = stamp_idx[0]; stamp_idx[0] += 1
    o.stamp_names.append(name)
    P(f"s_memrealtime s[96:97]")
    P("s_waitcnt lgkmcnt(0)")
    P(f"v_mov_b32 v{240+i}, s96")

def stamp_flush(P, o):
    if not o.stamps: return
    P("s_waitcnt vmcnt(0)")
    P(f"s_lshl_b32 s{S_T0}, s2, 2")
    P(f"s_add_u32 s{S_T0}, s{S_T0}, s{S_WAVE}")
    P(f"s_lshl_b32 s{S_T0}, s{S_T0}, 6")
    P(f"s_add_u32 s{S_T0}, s{S_T0}, {STAMP_OFF + o.kidx*0x20000}")
    P(f"s_mov_b32 s{SRD_WS+2}, {STAMP_OFF + 0x100000}")
    for q in range(4):
        P(f"buffer_store_dwordx4 {vr(240+4*q,4)}, v{V_FLAGOFF}, {sr(SRD_WS,4)}, s{S_T0} offen offset:{16*q}")

def setup(P, o, end_label):
    P("s_load_dwordx4 s[4:7], s[0:1], 0")
    P("s_load_dwordx2 s[8:9], s[0:1], 16")
    P("s_load_dwordx8 s[12:19], s[0:1], 32")
    P("s_load_dwordx4 s[20:23], s[0:1], 64")
    P("s_load_dwordx2 s[24:25], s[0:1], 88")
    P("s_cmp_ge_u32 s2, 256")
    P(f"s_cbranch_scc1 {end_label}")
    if o.stamps:
        for i in range(16): P(f"v_mov_b32 v{240+i}, 0")
    P(f"s_getpc_b64 s[{S_T0}:{S_T1}]")
    P(f"v_lshlrev_b32 v{V_T}, 4, v0")
    for i in range(o.code_bytes // 4096):
        P(f"global_load_dwordx4 v[236:239], v{V_T}, s[{S_T0}:{S_T1}]", tag='pf')
        if i + 1 < o.code_bytes // 4096: P(f"v_add_u32 v{V_T}, 0x1000, v{V_T}")
    P(f"v_and_b32 v{V_LANE}, 63, v0")
    P(f"v_lshrrev_b32 v5, 6, v0")
    P(f"v_lshlrev_b32 v{V_L16}, 4, v{V_LANE}")
    P(f"v_readfirstlane_b32 s{S_WAVE}, v5")
    P(f"v_add_u32 v{V_L16H}, 0x1000, v{V_L16}")
    P(f"v_cmp_eq_u32 vcc, 0, v{V_LANE}")
    P(f"v_mov_b32 v5, 0x7fff0000")
    P(f"s_and_b32 s{S_XCD}, s2, 7")
    P(f"s_lshr_b32 s{S_SLOT}, s2, 3")
    P(f"v_cndmask_b32_e64 v{V_FLAGOFF}, v5, 0, vcc")
    P(f"s_mul_i32 s{S_T2}, s{S_SLOT}, 37")
    P(f"s_lshr_b32 s{S_T2}, s{S_T2}, 8")
    P(f"s_mul_i32 s{S_T3}, s{S_T2}, 7")
    P(f"s_sub_u32 s{S_C}, s{S_SLOT}, s{S_T3}")
    P(f"s_lshl_b32 s{S_R}, s{S_XCD}, 2")
    P(f"s_add_u32 s{S_R}, s{S_R}, s{S_T2}")
    P(f"s_and_b32 s{S_RB}, s{S_XCD}, 3")
    P(f"s_lshl_b32 s{S_RB}, s{S_RB}, 2")
    P(f"s_add_u32 s{S_RB}, s{S_RB}, s{S_T2}")
    P(f"s_lshr_b32 s{S_B}, s{S_XCD}, 2")
    P(f"s_mul_i32 s{S_B}, s{S_B}, 7")
    P(f"s_add_u32 s{S_B}, s{S_B}, s{S_C}")
    P(f"s_lshl_b32 s{S_T2}, s{S_T2}, 1")
    P(f"s_add_u32 s{S_ROT}, s{S_C}, s{S_T2}")
    P(f"s_add_u32 s{S_ROT}, s{S_ROT}, s{S_XCD}")
    P(f"s_mul_i32 s{S_T2}, s{S_ROT}, 37")
    P(f"s_lshr_b32 s{S_T2}, s{S_T2}, 8")
    P(f"s_mul_i32 s{S_T2}, s{S_T2}, 7")
    P(f"s_sub_u32 s{S_ROT}, s{S_ROT}, s{S_T2}")
    P("s_waitcnt lgkmcnt(0)")
    if o.fused:
        P(f"s_load_dword s{S_TAG}, {sr(S_WS)}, {WS_E}")
    srd(P, SRD_X, S_X, 2048 * 896)
    srd(P, SRD_WQ, S_WQ, 448 * 2688)
    srd(P, SRD_W1, S_W1, 448 * 3584)
    srd(P, SRD_WS, S_WS, WS_SIZE)
    srd(P, SRD_OUT, S_OUT, 2048 * 896)
    srd(P, SRD_P, S_W2, 1792 * 896)

def make_tag(P, o):
    if not o.fused: return
    P("s_waitcnt lgkmcnt(0)")
    P(f"s_mul_i32 s{S_TAG}, s{S_TAG}, 0x9e3779b1")
    P(f"s_add_u32 s{S_TAG}, s{S_TAG}, 0x7f4a7c15")
    P(f"s_xor_b32 s{S_TAG+1}, s{S_TAG}, 0x5bd1e995")
    P(f"v_mov_b32 v{V_TAG}, s{S_TAG}")
    P(f"v_mov_b32 v{V_TAG+1}, s{S_TAG+1}")

lab = [0]
def poll(P, o, addr_v, limit=4000):
    if not o.fused: return
    lab[0] += 1
    L = f"L_poll{lab[0]}"
    P(f"s_mov_b32 s{S_CNT}, {limit}")
    P("s_waitcnt vmcnt(0) lgkmcnt(0)")
    P(f"{L}:")
    P(f"buffer_load_dwordx2 {vr(V_POLL,2)}, v{addr_v}, {sr(SRD_WS,4)}, 0 offen sc1")
    P(f"s_sub_u32 s{S_CNT}, s{S_CNT}, 1")
    P("s_waitcnt vmcnt(0)")
    P(f"v_cmp_ne_u64 vcc, {sr(S_TAG)}, {vr(V_POLL,2)}")
    P(f"s_cbranch_scc1 {L}_x")
    P(f"s_cbranch_vccnz {L}")
    P(f"{L}_x:")

slow_paths = []
def poll_issue(o, addr_v, dst):
    return [f"buffer_load_dwordx2 {vr(dst,2)}, v{addr_v}, {sr(SRD_WS,4)}, 0 offen sc1"]
def poll_check(P, o, addr_v, dst, limit=4000):
    lab[0] += 1
    L = f"L_pc{lab[0]}"
    P(f"v_cmp_ne_u64 vcc, {sr(S_TAG)}, {vr(dst,2)}")
    P(f"s_cbranch_vccnz {L}_slow")
    P(f"{L}_back:")
    slow_paths.append(f"""{L}_slow:
s_mov_b32 s{S_CNT}, {limit}
{L}_loop:
buffer_load_dwordx2 {vr(dst,2)}, v{addr_v}, {sr(SRD_WS,4)}, 0 offen sc1
s_sub_u32 s{S_CNT}, s{S_CNT}, 1
s_waitcnt vmcnt(0)
v_cmp_ne_u64 vcc, {sr(S_TAG)}, {vr(dst,2)}
s_cbranch_scc1 {L}_back
s_cbranch_vccnz {L}_loop
s_branch {L}_back""")

def flag_store(o, soff):
    if not o.fused: return []
    return [f"buffer_store_dwordx2 {vr(V_TAG,2)}, v{V_FLAGOFF}, {sr(SRD_WS,4)}, s{soff} offen sc1"]

SC = 'sc1'

ACC_Q, ACC_F = 16, 64
FR = 128
V_XD, V_QD, V_FD = 192, 196, 199
V_XR, V_QR, V_FRD = 203, 207, 208
V_CA, V_CB = 212, 214
GT = 128

def s1_dma(c_slot, ci):
    L = []
    tagn = f'dma{ci}'
    L.append([f"s_mov_b32 m0, s{S_TAB+21+c_slot}"])
    for i in range(4):
        L.append([(f"buffer_load_dwordx4 v{V_XD+i}, {sr(SRD_X,4)}, s{S_TAB+ci} offen offset:{i*1024} lds", tagn)])
    L.append([f"s_mov_b32 m0, s{S_TAB+24+c_slot}"])
    for i in range(3):
        L.append([(f"buffer_load_dwordx4 v{V_QD+i}, {sr(SRD_WQ,4)}, s{S_TAB+7+ci} offen offset:{i*1024} lds", tagn)])
    L.append([f"s_mov_b32 m0, s{S_TAB+27+c_slot}"])
    for i in range(4):
        L.append([(f"buffer_load_dwordx4 v{V_FD+i}, {sr(SRD_W1,4)}, s{S_TAB+14+ci} offen offset:{i*1024} lds", tagn)])
    return L

def s1_reads(slot, s, fset):
    base = FR + 32 * fset
    L = [f"ds_read_b128 {vr(base,4)}, v{V_XR+s} offset:{LX + slot*LX_SLOT}"]
    for t in range(7):
        for rho in range(2):
            d = base + 4 + 4 * t + 2 * rho
            if t < 3:
                L.append(f"ds_read_b64_tr_b16 {vr(d,2)}, v{V_QR} offset:{slot*LQ_SLOT + (16*s+4*rho)*192 + t*64}")
            else:
                L.append(f"ds_read_b64_tr_b16 {vr(d,2)}, v{V_FRD+t-3} offset:{slot*LF_SLOT + (16*s+4*rho)*256}")
    return L

def stage1_setup(P, o):
    T = V_T
    P(f"s_lshl_b32 s{S_TB}, s{S_RB}, 2")
    P(f"s_add_u32 s{S_TB}, s{S_TB}, s{S_WAVE}")
    P(f"s_mov_b32 s{S_T0}, s{S_ROT}")
    for i in range(7):
        P(f"s_lshl_b32 s{S_TAB+i}, s{S_T0}, 7")
        P(f"s_mul_i32 s{S_TAB+7+i}, s{S_T0}, {64*2688}")
        P(f"s_mul_i32 s{S_TAB+14+i}, s{S_T0}, {64*3584}")
        if i < 6:
            P(f"s_add_u32 s{S_T0}, s{S_T0}, 1")
            P(f"s_cmp_eq_u32 s{S_T0}, 7")
            P(f"s_cselect_b32 s{S_T0}, 0, s{S_T0}")
    P(f"s_lshl_b32 s{S_T0}, s{S_WAVE}, 12")
    P(f"s_mul_i32 s{S_T1}, s{S_WAVE}, 3072")
    for k in range(3):
        P(f"s_add_u32 s{S_TAB+21+k}, s{S_T0}, {LX + k*LX_SLOT}")
        P(f"s_add_u32 s{S_TAB+24+k}, s{S_T1}, {LQ + k*LQ_SLOT}")
        P(f"s_add_u32 s{S_TAB+27+k}, s{S_T0}, {LF + k*LF_SLOT}")
    P(f"v_lshrrev_b32 v{T}, 3, v{V_LANE}")
    P(f"v_and_b32 v{T+1}, 7, v{V_LANE}")
    P(f"v_lshrrev_b32 v{T+2}, 4, v{V_LANE}")
    P(f"s_lshl_b32 s{S_T0}, s{S_TB}, 5")
    P(f"v_add_u32 v{T}, s{S_T0}, v{T}")
    P(f"v_mul_u32_u24 v{T}, 896, v{T}")
    for i in range(4):
        P(f"v_xor_b32 v{T+3}, {(4*i) & 7}, v{T+2}")
        P(f"v_xor_b32 v{T+3}, v{T+3}, v{T+1}")
        P(f"v_lshl_add_u32 v{V_XD+i}, v{T+3}, 4, v{T}")
        if i: P(f"v_add_u32 v{V_XD+i}, {i*(8*896-1024)}, v{V_XD+i}")
    P(f"s_mul_i32 s{S_T0}, s{S_WAVE}, 192")
    P(f"s_mul_i32 s{S_T1}, s{S_B}, 192")
    P(f"s_mov_b32 s{S_T2}, 43691")
    for i in range(3):
        P(f"v_add_u32 v{T}, s{S_T0}, v{V_LANE}")
        if i: P(f"v_add_u32 v{T}, {64*i}, v{T}")
        P(f"v_mul_lo_u32 v{T+1}, v{T}, s{S_T2}")
        P(f"v_lshrrev_b32 v{T+1}, 19, v{T+1}")
        P(f"v_mul_u32_u24 v{T+2}, 12, v{T+1}")
        P(f"v_sub_u32 v{T+2}, v{T}, v{T+2}")
        P(f"v_mul_u32_u24 v{T+1}, 2688, v{T+1}")
        P(f"v_lshl_add_u32 v{T+1}, v{T+2}, 4, v{T+1}")
        P(f"v_add_u32 v{V_QD+i}, s{S_T1}, v{T+1}")
        if i: P(f"v_subrev_u32 v{V_QD+i}, {i*1024}, v{V_QD+i}")
    P(f"v_lshrrev_b32 v{T}, 4, v{V_LANE}")
    P(f"v_bfe_u32 v{T+1}, v{V_LANE}, 2, 2")
    P(f"v_xor_b32 v{T+1}, v{T+1}, v{T}")
    P(f"v_and_b32 v{T+2}, 3, v{V_LANE}")
    P(f"v_lshlrev_b32 v{T+2}, 4, v{T+2}")
    P(f"v_lshl_add_u32 v{T+1}, v{T+1}, 6, v{T+2}")
    P(f"s_lshl_b32 s{S_T0}, s{S_WAVE}, 4")
    P(f"v_add_u32 v{T}, s{S_T0}, v{T}")
    P(f"v_mul_u32_u24 v{T}, 3584, v{T}")
    P(f"s_lshl_b32 s{S_T1}, s{S_B}, 8")
    P(f"v_add3_u32 v{V_FD}, v{T}, v{T+1}, s{S_T1}")
    for i in range(1, 4):
        P(f"v_add_u32 v{V_FD+i}, {i*(4*3584-1024)}, v{V_FD}")

def stage1_setup2(P, o):
    T = V_T
    P(f"v_and_b32 v{T}, 31, v{V_LANE}")
    P(f"v_lshrrev_b32 v{T+1}, 5, v{V_LANE}")
    P(f"v_bfe_u32 v{T+2}, v{V_LANE}, 1, 3")
    P(f"v_xor_b32 v{T+2}, v{T+2}, v{T+1}")
    P(f"s_lshl_b32 s{S_T0}, s{S_WAVE}, 12")
    P(f"v_lshl_add_u32 v{T}, v{T}, 7, s{S_T0}")
    for s in range(4):
        P(f"v_xor_b32 v{T+3}, {2*s}, v{T+2}")
        P(f"v_lshl_add_u32 v{V_XR+s}, v{T+3}, 4, v{T}")
    P(f"v_bfe_u32 v{T}, v{V_LANE}, 2, 2")
    P(f"v_lshl_add_u32 v{T+1}, v{T+1}, 3, v{T}")
    P(f"v_bfe_u32 v{T+2}, v{V_LANE}, 4, 1")
    P(f"v_lshlrev_b32 v{T+2}, 5, v{T+2}")
    P(f"v_and_b32 v{T+3}, 3, v{V_LANE}")
    P(f"v_lshl_add_u32 v{T+2}, v{T+3}, 3, v{T+2}")
    P(f"v_mul_u32_u24 v{T+3}, 192, v{T+1}")
    P(f"v_add_u32 v{T+3}, {LQ}, v{T+3}")
    P(f"v_add_u32 v{V_QR}, v{T+3}, v{T+2}")
    P(f"v_lshl_add_u32 v{T+2}, v{T+1}, 8, v{T+2}")
    P(f"v_add_u32 v{T+2}, {LF}, v{T+2}")
    for c in range(4):
        P(f"v_xor_b32 v{T+3}, {c}, v{T}")
        P(f"v_lshl_add_u32 v{V_FRD+c}, v{T+3}, 6, v{T+2}")
    A = -2.0 * math.sqrt(2.0 / math.pi) * 0.044715 * math.log2(math.e)
    B = -2.0 * math.sqrt(2.0 / math.pi) * math.log2(math.e)
    P(f"v_mov_b32 v{V_CA}, {hex(f2u(A))}")
    P(f"v_mov_b32 v{V_CB}, {hex(f2u(B))}")
    P(f"s_mul_i32 s{S_QST}, s{S_TB}, {QKV_TB}")
    P(f"s_mul_i32 s{S_T0}, s{S_B}, {3*2048}")
    P(f"s_add_u32 s{S_QST}, s{S_QST}, s{S_T0}")
    P(f"s_add_u32 s{S_QST}, s{S_QST}, {QKV_OFF}")
    P(f"s_mul_i32 s{S_HST}, s{S_TB}, {A_TB}")
    P(f"s_lshl_b32 s{S_T0}, s{S_B}, 13")
    P(f"s_add_u32 s{S_HST}, s{S_HST}, s{S_T0}")
    P(f"s_add_u32 s{S_HST}, s{S_HST}, {A_OFF}")

def bias_to_acc(P, src_v, acc, ntiles, tmp, lane_sel=None):
    P(f"v_lshlrev_b32 v{tmp}, 16, v{src_v}")
    P(f"v_and_b32 v{tmp+1}, 0xffff0000, v{src_v}")
    P(f"s_lshl_b32 s{S_T0}, s{S_WAVE}, 9")
    P(f"s_add_u32 s{S_T0}, s{S_T0}, {LBIAS}")
    P(f"v_lshl_add_u32 v{tmp+2}, v{V_LANE}, 3, s{S_T0}")
    P(f"ds_write_b64 v{tmp+2}, {vr(tmp,2)}", tag='biasw')
    P(f"v_lshrrev_b32 v{tmp+2}, 5, v{V_LANE}")
    P(f"v_lshl_add_u32 v{tmp+2}, v{tmp+2}, 4, s{S_T0}")
    if lane_sel is not None: P(f"v_add_u32 v{tmp+2}, s{lane_sel}, v{tmp+2}")
    P.wait_lg('biasw')
    return tmp + 2

def b_loads(o):
    L = []
    for g in range(7):
        for k in range(4):
            for ct in range(2):
                idx = (g * 4 + k) * 2 + ct
                L.append([(f"buffer_load_dwordx4 {ar(4*idx,4)}, v{V_BA+ct*2+(k>>1)}, {sr(SRD_WS,4)}, s{S_BT[g]} offen offset:{(k&1)*2048} {SC}", 'bld')])
    for k in range(4):
        for ct in range(2):
            idx = 56 + k * 2 + ct
            L.append([(f"buffer_load_dwordx4 {ar(4*idx,4)}, v{V_BA+ct*2+(k>>1)}, {sr(SRD_WS,4)}, s{S_BOFF} offen offset:{(k&1)*2048} {SC}", 'bld')])
    return L

V_BA = 216
V_AA = 220

def stage1(P, o, bl):
    stage1_setup(P, o)
    P(f"s_lshl_b32 s{S_T0}, s{S_B}, 8")
    P(f"v_lshl_add_u32 v{V_T}, v{V_LANE}, 2, s{S_T0}")
    P(f"global_load_dword v15, v{V_T}, {sr(S_B1)}", tag='b1')
    for c in range(3):
        for it in s1_dma(c, c): P.add(it)
    stage1_setup2(P, o)
    make_tag(P, o)
    stamp(P, o, 's1_issued')
    a = bias_to_acc(P, 15, ACC_F, 4, 12)
    for F in range(4):
        for q in range(4):
            P(f"ds_read_b128 {vr(ACC_F+16*F+4*q,4)}, v{a} offset:{(32*F+8*q)*4}")
    P.wait_vm('dma0')
    P("s_waitcnt lgkmcnt(0)")
    P("s_barrier")
    stamp(P, o, 's1_first')
    P.add(s1_reads(0, 0, 0))
    for c in range(7):
        for s in range(4):
            g = 4 * c + s
            fs = g & 1
            base = FR + 32 * fs
            P("s_waitcnt lgkmcnt(0)")
            if s == 3 and c < 6:
                P.wait_vm(f'dma{c+1}')
                P("s_barrier")
            M = []
            for t in range(7):
                acc = ACC_Q + 16 * t
                Cin = None if (g == 0 and t < 3) else acc
                M.append([mfma(acc, base + 4 + 4 * t, base, Cin)])
            rd = []
            if g < 27:
                nc, ns = (c, s + 1) if s < 3 else (c + 1, 0)
                rd = s1_reads(nc % 3, ns, fs ^ 1)
            ex = []
            cc, ph = (c, 0) if s == 3 else (c - 1, s + 1)
            if 0 <= cc and cc + 3 < 7:
                d = s1_dma(cc % 3, cc + 3)
                cut = [0, 4, 7, 11, 14]
                ex = d[cut[ph]:cut[ph + 1]]
            ex = ex + bl.get(g, [])
            seq = []
            per = [3, 3, 3, 3, 3, 0, 0]
            ri = 0; ei = 0
            for t in range(7):
                seq += M[t]
                seq += rd[ri:ri + per[t]]; ri += per[t]
                if t >= 3 and ei < len(ex):
                    seq += ex[ei]; ei += 1
            while ei < len(ex):
                seq += ex[ei]; ei += 1
            P.add(seq)
    stamp(P, o, 's1_loop')

def qkv_epilogue(P, o):
    c = (28.0 ** -0.5) * math.log2(math.e)
    PK = GT
    P(f"s_mul_i32 s{S_T0}, s{S_B}, 3")
    for t in range(3):
        acc = ACC_Q + 16 * t
        P(f"s_add_u32 s{S_T1}, s{S_T0}, {t}")
        P(f"s_cmp_lt_u32 s{S_T1}, 14")
        P(f"s_cselect_b32 s{S_T2}, {hex(f2u(c))}, 1.0")
        for i in range(8):
            P(f"v_pk_mul_f32 {vr(acc+2*i,2)}, {vr(acc+2*i,2)}, s[{S_T2}:{S_T3}] op_sel_hi:[1,0]")
        p = PK + 8 * t
        for i in range(8):
            P(f"v_cvt_pk_bf16_f32 v{p+i}, v{acc+2*i}, v{acc+2*i+1}")
        for h in range(2):
            P(f"v_permlane32_swap_b32 v{p+4*h}, v{p+4*h+2}")
            P(f"v_permlane32_swap_b32 v{p+4*h+1}, v{p+4*h+3}")
        for h in range(2):
            off = t * 2048 + h * 1024
            P(f"buffer_store_dwordx4 {vr(p+4*h,4)}, v{V_L16H if off >= 4096 else V_L16}, {sr(SRD_WS,4)}, s{S_QST} offen offset:{off & 4095} {SC}", tag='qst')

def gelu_tile(F):
    u = ACC_F + 16 * F
    t = GT + 32 + 16 * (F & 1)
    p = GT + 24 + 0
    p = 160 + 32 + 0
    L = []
    pr = lambda b, i: vr(b + 2 * i, 2)
    for i in range(8): L.append(f"v_pk_mul_f32 {pr(t,i)}, {pr(u,i)}, {pr(u,i)}")
    for i in range(8): L.append(f"v_pk_fma_f32 {pr(t,i)}, {pr(t,i)}, {vr(V_CA,2)}, {vr(V_CB,2)} op_sel_hi:[1,0,0]")
    for i in range(8): L.append(f"v_pk_mul_f32 {pr(t,i)}, {pr(t,i)}, {pr(u,i)}")
    for i in range(16): L.append(f"v_exp_f32 v{t+i}, v{t+i}")
    for i in range(8): L.append(f"v_pk_add_f32 {pr(t,i)}, {pr(t,i)}, 1.0 op_sel_hi:[1,0]")
    for i in range(16): L.append(f"v_rcp_f32 v{t+i}, v{t+i}")
    for i in range(8): L.append(f"v_pk_mul_f32 {pr(t,i)}, {pr(t,i)}, {pr(u,i)}")
    for i in range(8): L.append(f"v_cvt_pk_bf16_f32 v{u+i}, v{t+2*i}, v{t+2*i+1}")
    for h in range(2):
        off = (2 * F + h) * 1024
        L.append((f"buffer_store_dwordx4 {vr(u+4*h,4)}, v{V_L16H if off >= 4096 else V_L16}, {sr(SRD_WS,4)}, s{S_HST} offen offset:{off & 4095} {SC}", 'hst'))
    return L

def prep(P, o):
    T = V_T
    S_SP = S_RB
    P(f"s_sub_u32 s{S_SP}, s2, 224")
    P(f"s_lshl_b32 s{S_T4}, s{S_SP}, 2")
    P(f"s_add_u32 s{S_T4}, s{S_T4}, s{S_WAVE}")
    P(f"v_lshrrev_b32 v{T}, 2, v{V_LANE}")
    P(f"s_lshl_b32 s{S_T0}, s{S_T4}, 4")
    P(f"v_add_u32 v20, s{S_T0}, v{T}")
    P(f"v_mul_u32_u24 v{T}, 896, v20")
    P(f"v_and_b32 v{T+1}, 3, v{V_LANE}")
    P(f"v_lshlrev_b32 v{T+1}, 4, v{T+1}")
    P(f"v_add_u32 v{T}, v{T}, v{T+1}")
    P(f"v_lshrrev_b32 v21, 3, v{V_LANE}")
    P(f"v_and_b32 v22, 7, v{V_LANE}")
    P(f"v_bfe_u32 v23, v{V_LANE}, 4, 1")
    P(f"v_lshlrev_b32 v23, 2, v23")
    P(f"v_xor_b32 v22, v22, v23")
    P(f"v_lshlrev_b32 v22, 4, v22")
    P(f"s_lshl_b32 s{S_TAB+20}, s{S_WAVE}, 14")
    srd(P, SRD_WQ, S_WO, 448 * 896)
    for i in range(8):
        it, ks, cc = S_TAB + 21, S_TAB + i, S_TAB + 8 + i
        P(f"s_lshl_b32 s{it}, s{S_T4}, 3")
        P(f"s_add_u32 s{it}, s{it}, {i}")
        P(f"s_min_u32 s{it}, s{it}, 1007")
        P(f"s_mul_i32 s{ks}, s{it}, 9363")
        P(f"s_lshr_b32 s{ks}, s{ks}, 16")
        P(f"s_mul_i32 s{cc}, s{ks}, 7")
        P(f"s_sub_u32 s{cc}, s{it}, s{cc}")
        P(f"s_add_u32 m0, s{S_TAB+20}, {i*2048}")
        P(f"s_cmp_lt_u32 s{ks}, 112")
        P(f"s_cbranch_scc0 L_prep_o{i}")
        P(f"s_lshl_b32 s{S_T0}, s{ks}, 4")
        P(f"v_add_u32 v24, s{S_T0}, v21")
        P(f"v_mul_u32_u24 v24, 896, v24")
        P(f"v_add_u32 v24, v24, v22")
        P(f"v_add_u32 v25, {8*896-1024}, v24")
        P(f"s_lshl_b32 s{S_T0}, s{cc}, 7")
        P(f"buffer_load_dwordx4 v24, {sr(SRD_P,4)}, s{S_T0} offen lds")
        P(f"buffer_load_dwordx4 v25, {sr(SRD_P,4)}, s{S_T0} offen offset:1024 lds")
        P(f"s_branch L_prep_n{i}")
        P(f"L_prep_o{i}:")
        P(f"s_sub_u32 s{S_T0}, s{ks}, 112")
        P(f"s_lshr_b32 s{S_T1}, s{S_T0}, 1")
        P(f"s_and_b32 s{S_T0}, s{S_T0}, 1")
        P(f"s_lshl_b32 s{S_T0}, s{S_T0}, 4")
        P(f"s_mul_i32 s{S_T2}, s{S_T1}, 7")
        P(f"s_lshr_b32 s{S_T2}, s{S_T2}, 1")
        P(f"s_lshl_b32 s{S_T2}, s{S_T2}, 3")
        P(f"s_add_u32 s{S_T2}, s{S_T2}, s{S_T0}")
        P(f"s_mul_i32 s{S_T1}, s{S_T1}, 28")
        for hh in range(2):
            P(f"v_add_u32 v26, s{S_T2}, v21")
            if hh: P(f"v_add_u32 v26, 8, v26")
            P(f"v_subrev_u32 v27, s{S_T1}, v26")
            P(f"v_cmp_gt_u32 vcc, 28, v27")
            P(f"v_mul_u32_u24 v26, 896, v26")
            P(f"v_add_u32 v26, v26, v22")
            if hh: P(f"v_subrev_u32 v26, 1024, v26")
            P(f"v_mov_b32 v27, 0x7fff0000")
            P(f"v_cndmask_b32 v{24+hh}, v27, v26, vcc")
        P(f"s_lshl_b32 s{S_T0}, s{cc}, 7")
        P(f"buffer_load_dwordx4 v24, {sr(SRD_WQ,4)}, s{S_T0} offen lds")
        P(f"buffer_load_dwordx4 v25, {sr(SRD_WQ,4)}, s{S_T0} offen offset:1024 lds")
        P(f"L_prep_n{i}:")
    for i in range(14):
        P(f"buffer_load_dwordx4 {vr(32+4*i,4)}, v{T}, {sr(SRD_X,4)}, 0 offen offset:{64*i}")
    for i in range(14):
        P(f"global_load_dwordx4 {vr(96+4*i,4)}, v{T+1}, {sr(S_GW)} offset:{64*i}")
    make_tag(P, o)
    P(f"v_bfe_u32 v21, v{V_LANE}, 2, 2")
    P(f"v_lshrrev_b32 v22, 5, v{V_LANE}")
    P(f"v_lshl_add_u32 v22, v22, 2, v21")
    P(f"v_lshlrev_b32 v22, 7, v22")
    P(f"v_bfe_u32 v23, v{V_LANE}, 4, 1")
    P(f"v_lshl_add_u32 v22, v23, 5, v22")
    P(f"v_and_b32 v23, 3, v{V_LANE}")
    P(f"v_lshl_add_u32 v22, v23, 3, v22")
    P(f"v_add_u32 v22, s{S_TAB+20}, v22")
    P(f"v_lshrrev_b32 v21, 1, v21")
    P(f"v_lshl_add_u32 v23, v21, 6, v22")
    P(f"v_xor_b32 v21, 1, v21")
    P(f"v_lshl_add_u32 v22, v21, 6, v22")
    P("s_waitcnt vmcnt(28)")
    for i in range(8):
        ks, cc = S_TAB + i, S_TAB + 8 + i
        d = 160 + 8 * i
        for ct in range(2):
            for rho in range(2):
                P(f"ds_read_b64_tr_b16 {vr(d+4*ct+2*rho,2)}, v{23-ct} offset:{i*2048 + rho*1024}")
        P(f"s_mul_i32 s{S_T0}, s{cc}, {BP_C}")
        P(f"s_lshl_b32 s{S_T1}, s{ks}, 11")
        P(f"s_add_u32 s{S_T0}, s{S_T0}, s{S_T1}")
        P(f"s_add_u32 s{ks}, s{S_T0}, {BP_OFF}")
    for i in range(8):
        d = 160 + 8 * i
        for ct in range(2):
            P(f"buffer_store_dwordx4 {vr(d+4*ct,4)}, v{V_L16}, {sr(SRD_WS,4)}, s{S_TAB+i} offen offset:{ct*1024} {SC}")
    P("v_mov_b32 v24, 0")
    P("v_mov_b32 v25, 0")
    for i in range(56):
        P(f"v_dot2_f32_bf16 v{24+(i&1)}, v{32+i}, v{96+i}, v{24+(i&1)}")
    P("s_nop 2")
    P("v_add_f32 v24, v24, v25")
    P("v_add_f32_dpp v24, v24, v24 quad_perm:[1,0,3,2] row_mask:0xf bank_mask:0xf")
    P("v_add_f32_dpp v24, v24, v24 quad_perm:[2,3,0,1] row_mask:0xf bank_mask:0xf")
    P(f"v_mul_f32 v24, {hex(f2u(-math.log2(math.e)))}, v24")
    P("v_exp_f32 v24, v24")
    P("v_add_f32 v24, 1.0, v24")
    P("v_rcp_f32 v24, v24")
    P(f"v_lshlrev_b32 v20, 2, v20")
    P(f"v_and_b32 v25, 3, v{V_LANE}")
    P(f"v_cmp_eq_u32 vcc, 0, v25")
    P(f"v_mov_b32 v27, 0x7fff0000")
    P(f"v_cndmask_b32 v20, v27, v20, vcc")
    P(f"s_mov_b32 s{S_T0}, {G_OFF}")
    P(f"buffer_store_dword v24, v20, {sr(SRD_WS,4)}, s{S_T0} offen {SC}")
    P("s_waitcnt vmcnt(0) lgkmcnt(0)")
    P("s_barrier")
    if o.fused:
        P(f"s_lshl_b32 s{S_T0}, s{S_SP}, 7")
        P(f"s_add_u32 s{S_T0}, s{S_T0}, {FL_PREP}")
        P(f"s_cmp_eq_u32 s{S_WAVE}, 0")
        P("s_cbranch_scc0 L_prep_nf")
        P.add(flag_store(o, S_T0))
        P("L_prep_nf:")

AQ = 16
AK = 24
AV = 40
AS = 64
AN = 112
AO = 128
AP = 144
AM = 168
A_KR, A_VR = 176, 177
A_KD, A_VD = 179, 180
A_PA, A_PV = 182, 183
A_G = 186
A_MX = 187

def att_scalars(P, o):
    P(f"s_and_b32 s{S_RB}, s{S_SLOT}, 15")
    P(f"s_lshr_b32 s{S_J}, s{S_SLOT}, 4")
    P(f"s_lshl_b32 s{S_T0}, s{S_XCD}, 1")
    P(f"s_add_u32 s{S_J}, s{S_J}, s{S_T0}")
    P(f"s_lshl_b32 s{S_TB}, s{S_RB}, 2")
    P(f"s_add_u32 s{S_TB}, s{S_TB}, s{S_WAVE}")
    P(f"s_and_b32 s{S_PAR}, s{S_J}, 1")

def att_poll_addr(P, o):
    if not o.fused: return
    T = V_T
    P(f"v_min_u32 v{T}, 13, v{V_LANE}")
    P(f"v_lshrrev_b32 v{T+1}, 1, v{T}")
    P(f"v_and_b32 v{T}, 1, v{T}")
    P(f"s_mul_i32 s{S_T0}, s{S_J}, 7")
    P(f"s_lshr_b32 s{S_T0}, s{S_T0}, 1")
    P(f"s_lshl_b32 s{S_T0}, s{S_T0}, 3")
    P(f"v_mad_u32_u24 v{T}, v{T}, 31, s{S_T0}")
    P(f"v_cmp_gt_u32 vcc, 3, v{T+1}")
    P(f"v_mov_b32 v{T+2}, 896")
    P(f"v_mov_b32 v{T+3}, 448")
    P(f"v_cndmask_b32 v{T+2}, v{T+2}, v{T+3}, vcc")
    P(f"v_subrev_u32 v{T+3}, 3, v{T+1}")
    P(f"v_cndmask_b32 v{T+3}, v{T+3}, v{T+1}, vcc")
    P(f"v_cmp_eq_u32 vcc, 6, v{T+1}")
    P(f"s_mul_i32 s{S_T1}, s{S_WAVE}, 3")
    P(f"s_lshl_b32 s{S_T2}, s{S_RB}, 2")
    P(f"s_add_u32 s{S_T1}, s{S_T1}, s{S_T2}")
    P(f"s_sub_u32 s{S_T1}, s{S_T1}, 8")
    P(f"v_cndmask_b32_e64 v{T+2}, v{T+2}, 0, vcc")
    P(f"v_add_u32 v{T}, v{T}, v{T+2}")
    P(f"v_mul_u32_u24 v{T}, 683, v{T}")
    P(f"v_lshrrev_b32 v{T}, 16, v{T}")
    P(f"v_add_u32 v{T+3}, s{S_T1}, v{T+3}")
    P(f"v_max_i32 v{T+3}, 0, v{T+3}")
    P(f"v_mov_b32 v{T+2}, s{S_TB}")
    P(f"v_cndmask_b32 v{T+3}, v{T+3}, v{T+2}, vcc")
    P(f"v_lshl_add_u32 v{T}, v{T+3}, 4, v{T}")
    P(f"v_lshlrev_b32 v{T}, 7, v{T}")
    P(f"v_add_u32 v{V_PA}, {FL_QKV}, v{T}")

def att_addr(P, o):
    T = V_T
    P(f"s_mul_i32 s{S_T0}, s{S_J}, 7")
    P(f"s_lshr_b32 s{S_T0}, s{S_T0}, 1")
    P(f"s_lshl_b32 s{S_T4}, s{S_T0}, 9")
    P(f"s_add_u32 s{S_T1}, s{S_T4}, {56*512}")
    P(f"v_add_u32 v{A_KD}, s{S_T1}, v{V_L16}")
    P(f"v_lshrrev_b32 v{T}, 5, v{V_LANE}")
    P(f"v_and_b32 v{T+1}, 31, v{V_LANE}")
    P(f"s_add_u32 s{S_T1}, s{S_T4}, {112*512 - 2048}")
    for t in range(2):
        P(f"v_lshlrev_b32 v{T+2}, 2, v{T}")
        P(f"v_xor_b32 v{T+2}, v{T+2}, v{T+1}")
        if t: P(f"v_xor_b32 v{T+2}, 8, v{T+2}")
        P(f"v_lshlrev_b32 v{T+2}, 4, v{T+2}")
        P(f"v_lshl_add_u32 v{T+2}, v{T}, 9, v{T+2}")
        P(f"v_add_u32 v{A_VD+t}, s{S_T1}, v{T+2}")
    P(f"s_lshl_b32 s{S_T1}, s{S_WAVE}, 12")
    P(f"v_add_u32 v{A_KR}, s{S_T1}, v{V_L16}")
    P(f"v_bfe_u32 v{T+1}, v{V_LANE}, 4, 1")
    P(f"v_bfe_u32 v{T+2}, v{V_LANE}, 1, 1")
    P(f"v_lshl_add_u32 v{T+3}, v{T+1}, 1, v{T+2}")
    P(f"v_lshlrev_b32 v{T+4}, 9, v{T+3}")
    P(f"v_xor_b32 v{T+3}, v{T+3}, v{T}")
    P(f"v_lshl_add_u32 v{T+4}, v{T+3}, 6, v{T+4}")
    P(f"v_bfe_u32 v{T+3}, v{V_LANE}, 2, 2")
    P(f"v_lshl_add_u32 v{T+4}, v{T+3}, 4, v{T+4}")
    P(f"v_and_b32 v{T+3}, 1, v{V_LANE}")
    P(f"v_lshl_add_u32 v{T+4}, v{T+3}, 3, v{T+4}")
    P(f"s_add_u32 s{S_T1}, s{S_T1}, 2048")
    P(f"v_add_u32 v{A_VR}, s{S_T1}, v{T+4}")
    P(f"v_xor_b32 v{A_VR+1}, 128, v{A_VR}")
    P(f"v_and_b32 v{T+1}, 31, v{V_LANE}")
    P(f"v_mul_u32_u24 v{T+2}, 12, v{T}")
    P(f"s_cmp_eq_u32 s{S_PAR}, 0")
    P(f"s_cselect_b32 s{S_T1}, -1, 0")
    P(f"s_cselect_b32 s{S_T2}, 1544, 0")
    P(f"v_and_b32 v{T+2}, s{S_T1}, v{T+2}")
    P(f"v_xor_b32 v{T+1}, v{T+1}, v{T+2}")
    P(f"v_lshlrev_b32 v{T+1}, 4, v{T+1}")
    P(f"v_lshl_add_u32 v{T+1}, v{T}, 11, v{T+1}")
    P(f"s_mul_i32 s{S_T3}, s{S_WAVE}, {3*4096}")
    P(f"s_add_u32 s{S_T2}, s{S_T2}, s{S_T3}")
    P(f"v_add_u32 v{A_PA}, s{S_T2}, v{T+1}")
    P(f"v_cmp_gt_u32 vcc, 32, v{V_LANE}")
    P(f"s_mul_i32 s{S_T1}, s{S_WAVE}, 3")
    P(f"s_lshl_b32 s{S_T2}, s{S_RB}, 2")
    P(f"s_add_u32 s{S_T1}, s{S_T1}, s{S_T2}")
    P(f"v_mov_b32 v{T+1}, 0x3f80")
    for k in range(3):
        P(f"s_add_u32 s{S_T2}, s{S_T1}, {k}")
        P(f"s_cmp_lt_u32 s{S_T2}, 8")
        P(f"s_cselect_b32 s{S_T2}, 0xf14a, 0")
        P(f"v_mov_b32 v{T+2}, s{S_T2}")
        P(f"v_cndmask_b32 v{A_PV+k}, v{T+1}, v{T+2}, vcc")
    for r in range(16):
        k0 = (r & 3) + 8 * (r >> 2)
        lo = (0xffffffff << k0) & 0xffffffff
        hi = (0xffffffff << (k0 + 4)) & 0xffffffff
        P(f"s_mov_b32 s{S_TAB+2*r}, {hex(lo)}")
        P(f"s_mov_b32 s{S_TAB+2*r+1}, {hex(hi)}")
    P(f"v_mov_b32 v{T+1}, 0xffff")
    P(f"v_mov_b32 v{T+2}, 0xffff0000")
    for i in range(8):
        P(f"v_cndmask_b32_e64 v{T+3}, 0, v{T+1}, {sr(S_TAB+4*i)}")
        P(f"v_cndmask_b32_e64 v{T+4}, 0, v{T+2}, {sr(S_TAB+4*i+2)}")
        P(f"v_or_b32 v{AM+i}, v{T+3}, v{T+4}")

def att_loads(P, o):
    P(f"s_mul_i32 s{S_T1}, s{S_WAVE}, 3")
    P(f"s_lshl_b32 s{S_T2}, s{S_RB}, 2")
    P(f"s_add_u32 s{S_T1}, s{S_T1}, s{S_T2}")
    P(f"s_mul_i32 s{S_T3}, s{S_WAVE}, {3*4096}")
    for k in range(3):
        P(f"s_add_i32 s{S_T2}, s{S_T1}, {k-8}")
        P(f"s_max_i32 s{S_T2}, s{S_T2}, 0")
        P(f"s_mul_i32 s{S_T2}, s{S_T2}, {QKV_TB}")
        P(f"s_add_u32 m0, s{S_T3}, {LKV + k*4096}")
        P(f"s_add_u32 s{S_T2}, s{S_T2}, {QKV_OFF}")
        for t in range(2):
            P(f"buffer_load_dwordx4 v{A_KD}, {sr(SRD_WS,4)}, s{S_T2} offen offset:{t*1024} {SC} lds", tag='kv')
        for t in range(2):
            P(f"buffer_load_dwordx4 v{A_VD+t}, {sr(SRD_WS,4)}, s{S_T2} offen offset:{2048+t*1024} {SC} lds", tag='kv')
    P(f"s_mul_i32 s{S_T2}, s{S_TB}, {QKV_TB}")
    P(f"s_add_u32 s{S_T2}, s{S_T2}, s{S_T4}")
    P(f"s_add_u32 s{S_T2}, s{S_T2}, {QKV_OFF}")
    for t in range(2):
        P(f"buffer_load_dwordx4 {vr(AQ+4*t,4)}, v{V_L16}, {sr(SRD_WS,4)}, s{S_T2} offen offset:{t*1024} {SC}")
    P(f"v_and_b32 v{V_T}, 31, v{V_LANE}")
    P(f"v_lshlrev_b32 v{V_T}, 2, v{V_T}")
    P(f"s_lshl_b32 s{S_T2}, s{S_TB}, 7")
    P(f"s_add_u32 s{S_T2}, s{S_T2}, {G_OFF}")
    P(f"buffer_load_dword v{A_G}, v{V_T}, {sr(SRD_WS,4)}, s{S_T2} offen {SC}")

def kread(i, buf):
    return [f"ds_read_b128 {vr(AK+8*buf+4*t,4)}, v{A_KR} offset:{LKV + i*4096 + t*1024}" for t in range(2)]
def vread(i, buf):
    return [f"ds_read_b64_tr_b16 {vr(AV+8*buf+4*t+2*rho,2)}, v{A_VR+rho} offset:{LKV + i*4096 + t*256}" for t in range(2) for rho in range(2)]
def qk(i, sbuf, kbuf, c):
    s = AS + 16 * sbuf
    return [mfma(s, AK + 8 * kbuf, AQ, c), mfma(s, AK + 8 * kbuf + 4, AQ + 4, s)]

def attention(P, o, fill):
    T = V_T
    P.wait_vm('kv')
    for k in range(3):
        P(f"ds_write_b16 v{A_PA}, v{A_PV+k} offset:{LKV + k*4096}")
    P(f"s_cmp_eq_u32 s{S_PAR}, 0")
    P(f"s_cselect_b32 s{S_T0}, 0, -1")
    P(f"s_mov_b32 s{S_T1}, 0")
    P(f"s_mov_b32 s{S_T2}, 0")
    P(f"s_cselect_b32 s{S_T3}, -1, 0")
    P(f"v_mov_b32 v{T}, 0x3f80")
    P(f"v_cndmask_b32_e64 v{AQ}, v{AQ}, v{T}, {sr(S_T0)}")
    P(f"v_cndmask_b32_e64 v{AQ+1}, v{AQ+1}, 0, {sr(S_T0)}")
    P(f"v_cndmask_b32_e64 v{AQ+6}, v{AQ+6}, v{T}, {sr(S_T2)}")
    P(f"v_cndmask_b32_e64 v{AQ+7}, v{AQ+7}, 0, {sr(S_T2)}")
    P("s_waitcnt lgkmcnt(0)")
    P("s_barrier")
    stamp(P, o, 'att_go')
    order = [0, 8, 1, 2, 3, 4, 5, 6, 7]
    sb = lambda n: n % 4
    P.add(kread(order[0], 0)); P.add(kread(order[1], 1))
    def maxops(s, first):
        L = []
        for i in range(8):
            if first and i == 0: L.append(f"v_max_f32 v{A_MX}, v{s}, v{s+1}")
            else: L.append(f"v_max3_f32 v{A_MX}, v{s+2*i}, v{s+2*i+1}, v{A_MX}")
        return L
    merge = [f"v_cndmask_b32_e64 v{AS+16+r}, v{AS+r}, v{AS+16+r}, {sr(S_TAB+2*r)}" for r in range(16)]
    for n in range(9):
        m = qk(order[n], sb(n), n & 1, None)
        post = []
        if n == 3: post = merge
        if n == 4: post = maxops(AS + 16, True) + maxops(AS + 16 * sb(2), False)
        if n >= 5: post = maxops(AS + 16 * sb(n - 2), False)
        nxt = kread(order[n + 2], n & 1) if n + 2 < 9 else kread(order[n + 2 - 9], n & 1)
        h = len(post) // 2
        P.add([m[0]] + post[:h] + [m[1]] + nxt + post[h:])
    P.add(vread(0, 0)); P.add(vread(8, 1))
    P.add(maxops(AS + 16 * sb(7), False))
    P.add(maxops(AS + 16 * sb(8), False))
    P(f"v_mov_b32 v{T}, v{A_MX}")
    P(f"v_permlane32_swap_b32 v{A_MX}, v{T}")
    P(f"v_max_f32 v{A_MX}, v{A_MX}, v{T}")
    P(f"v_sub_f32 v{AN}, 0, v{A_MX}")
    P(f"v_sub_f32 v{AN+1}, 0, v{A_MX}")
    for i in range(1, 8): P(f"v_mov_b64 {vr(AN+2*i,2)}, {vr(AN,2)}")
    stamp(P, o, 'att_p1')
    kb = lambda n: (n + 1) & 1
    def expcvt(s, p):
        L = []
        for i in range(8):
            L += [f"v_exp_f32 v{s+2*i}, v{s+2*i}", f"v_exp_f32 v{s+2*i+1}, v{s+2*i+1}"]
            if i >= 1: L.append(f"v_cvt_pk_bf16_f32 v{p+i-1}, v{s+2*i-2}, v{s+2*i-1}")
        L.append(f"v_cvt_pk_bf16_f32 v{p+7}, v{s+14}, v{s+15}")
        return L
    def pv(p, vbuf, first=False):
        return [mfma(AO, AV + 8 * vbuf, p, None if first else AO), mfma(AO, AV + 8 * vbuf + 4, p + 4, AO)]
    m0 = qk(0, 0, kb(0), AN); m1 = qk(8, 1, kb(1), AN)
    P.add(m0 + kread(order[2], kb(2)) + m1 + kread(order[3], kb(3)))
    m2 = qk(order[2], 2, kb(2), AN)
    P.add([m2[0], m2[1]] + merge)
    ec = expcvt(AS + 16, AP)
    sp = []
    for i in range(8):
        sp += [f"v_and_b32 v{AP+8+i}, v{AP+i}, v{AM+i}", f"v_xor_b32 v{AP+16+i}, v{AP+i}, v{AP+8+i}"]
    m3 = qk(order[3], 0, kb(3), AN)
    P.add(kread(order[4], kb(4)) + ec[:8] + [m3[0]] + ec[8:16] + [m3[1]] + kread(order[5], kb(5)) + ec[16:] + sp)
    pend = pv(AP + 16, 0, True) + pv(AP + 8, 1)
    pend_rd = vread(order[2], 0) + vread(order[3], 1)
    sbuf2 = lambda n: n % 3
    for n in range(2, 9):
        p = AP if (n & 1) == 0 else AP + 8
        if n == 2: p = AP
        ec = expcvt(AS + 16 * sbuf2(n), p if n != 3 else AP + 16)
        if n == 3: p = AP + 16
        mq = qk(order[n + 2], sbuf2(n + 2), kb(n + 2), AN) if n + 2 < 9 else []
        kr = kread(order[n + 4], kb(n + 4)) if n + 4 < 9 else []
        ms = pend + mq
        seq = []
        k = len(ms)
        step = max(1, len(ec) // max(k, 1))
        ei = 0
        for j, mm in enumerate(ms):
            seq.append(mm)
            if j == len(pend) - 1: seq += pend_rd
            if j == k - 1 and mq: seq += kr
            take = ec[ei:ei + step] if j < k - 1 else ec[ei:]
            seq += take; ei += len(take)
        P.add(seq)
        vb = n & 1
        pend = pv(p, vb)
        pend_rd = vread(order[n + 2], vb) if n + 2 < 9 else []
    P.add(pend)
    stamp(P, o, 'att_p2')
    P(f"s_cmp_eq_u32 s{S_PAR}, 0")
    P(f"s_cselect_b64 {sr(S_T0)}, -1, 0")
    P(f"s_mul_i32 s{S_T2}, s{S_TB}, {A_TB}")
    P(f"s_lshl_b32 s{S_T3}, s{S_J}, 11")
    P(f"s_add_u32 s{S_T2}, s{S_T2}, s{S_T3}")
    P(f"s_add_u32 s{S_T2}, s{S_T2}, {A_OFF + 112*1024}")
    P(f"v_cndmask_b32_e64 v{T}, v{AO}, v{AO+12}, {sr(S_T0)}")
    P(f"v_mov_b32 v{T+1}, v{T}")
    P(f"v_permlane32_swap_b32 v{T}, v{T+1}")
    P(f"v_cndmask_b32_e64 v{T}, v{T}, v{T+1}, {sr(S_T0)}")
    P(f"v_rcp_f32 v{T}, v{T}")
    P(f"v_mul_f32 v{T+1}, v{T}, v{A_G}")
    for i in range(8):
        P(f"v_pk_mul_f32 {vr(AO+2*i,2)}, {vr(AO+2*i,2)}, {vr(T+1,2)} op_sel_hi:[1,0]")
    for i in range(8):
        P(f"v_cvt_pk_bf16_f32 v{AP+i}, v{AO+2*i}, v{AO+2*i+1}")
    for t in range(2):
        P(f"buffer_store_dwordx4 {vr(AP+4*t,4)}, v{V_L16}, {sr(SRD_WS,4)}, s{S_T2} offen offset:{t*1024} {SC}", tag='ost')

LACC = 16
LA = 80
NA = 16
L_G = 208
L_RW = 224
L_RR = 227
L_OA = 228
S_AT = 72

def last_baddr(P, o):
    T = V_T
    P(f"s_mul_i32 s{S_T0}, s{S_C}, {BP_C}")
    P(f"s_add_u32 s{S_T0}, s{S_T0}, {BP_OFF}")
    P(f"s_lshl_b32 s{S_T1}, s{S_WAVE}, 14")
    P(f"s_add_u32 s{S_BOFF}, s{S_T0}, {112*2048}")
    P(f"s_add_u32 s{S_BOFF}, s{S_BOFF}, s{S_T1}")
    P(f"s_mul_i32 s{S_T1}, s{S_WAVE}, {28*2048}")
    P(f"s_add_u32 s{S_T0}, s{S_T0}, s{S_T1}")
    P(f"s_mov_b32 s{S_T1}, s{S_ROT}")
    for g in range(7):
        P(f"s_lshl_b32 s{S_T2}, s{S_T1}, 13")
        P(f"s_add_u32 s{S_BT[g]}, s{S_T0}, s{S_T2}")
        if g < 6:
            P(f"s_add_u32 s{S_T1}, s{S_T1}, 1")
            P(f"s_cmp_eq_u32 s{S_T1}, 7")
            P(f"s_cselect_b32 s{S_T1}, 0, s{S_T1}")
    P(f"s_lshr_b32 s{S_T0}, s{S_WAVE}, 1")
    P(f"s_lshl_b32 s{S_T0}, s{S_T0}, 10")
    P(f"s_xor_b32 s{S_T1}, s{S_T0}, 1024")
    P(f"v_add_u32 v{V_BA}, s{S_T1}, v{V_L16}")
    P(f"v_add_u32 v{V_BA+1}, s{S_T1}, v{V_L16H}")
    P(f"v_add_u32 v{V_BA+2}, s{S_T0}, v{V_L16}")
    P(f"v_add_u32 v{V_BA+3}, s{S_T0}, v{V_L16H}")

def last_setup(P, o):
    T = V_T
    P(f"s_lshl_b32 s{S_T0}, s{S_C}, 7")
    P(f"v_and_b32 v{T}, 31, v{V_LANE}")
    P(f"v_lshl_add_u32 v{T+1}, v{T}, 2, s{S_T0}")
    P(f"global_load_dword v15, v{T+1}, {sr(S_B2)}")
    P(f"s_and_b32 s{S_T1}, s{S_WAVE}, 1")
    P(f"s_lshl_b32 s{S_T0}, s{S_R}, 8")
    P(f"s_add_u32 s{S_T0}, s{S_T0}, {G_OFF}")
    P(f"s_lshl_b32 s{S_T2}, s{S_T1}, 7")
    P(f"s_xor_b32 s{S_T3}, s{S_T2}, 128")
    P(f"s_add_u32 s{S_T2}, s{S_T2}, s{S_T0}")
    P(f"s_add_u32 s{S_T3}, s{S_T3}, s{S_T0}")
    P(f"v_lshlrev_b32 v{T+1}, 2, v{T}")
    P(f"buffer_load_dword v{L_G}, v{T+1}, {sr(SRD_WS,4)}, s{S_T3} offen {SC}")
    P(f"buffer_load_dword v{L_G+2}, v{T+1}, {sr(SRD_WS,4)}, s{S_T2} offen {SC}")
    P(f"s_mul_i32 s{S_T2}, s{S_T1}, {A_TB}")
    P(f"s_sub_u32 s{S_T3}, {A_TB}, s{S_T2}")
    P(f"v_add_u32 v{V_AA}, s{S_T3}, v{V_L16}")
    P(f"v_add_u32 v{V_AA+1}, s{S_T2}, v{V_L16}")
    P(f"s_mul_i32 s{S_T0}, s{S_R}, {2*A_TB}")
    P(f"s_add_u32 s{S_T0}, s{S_T0}, {A_OFF}")
    P(f"s_lshl_b32 s{S_T2}, s{S_WAVE}, 13")
    P(f"s_add_u32 s{S_AT+7}, s{S_T0}, s{S_T2}")
    P(f"s_add_u32 s{S_AT+7}, s{S_AT+7}, {112*1024}")
    P(f"s_add_u32 s{S_AT+8}, s{S_AT+7}, 4096")
    P(f"s_add_u32 s{S_AT+9}, s{S_BOFF}, 8192")
    P(f"s_mul_i32 s{S_T2}, s{S_WAVE}, {28*1024}")
    P(f"s_add_u32 s{S_T0}, s{S_T0}, s{S_T2}")
    P(f"s_mov_b32 s{S_T2}, s{S_ROT}")
    for g in range(7):
        P(f"s_lshl_b32 s{S_T3}, s{S_T2}, 12")
        P(f"s_add_u32 s{S_AT+g}, s{S_T0}, s{S_T3}")
        if g < 6:
            P(f"s_add_u32 s{S_T2}, s{S_T2}, 1")
            P(f"s_cmp_eq_u32 s{S_T2}, 7")
            P(f"s_cselect_b32 s{S_T2}, 0, s{S_T2}")
    if o.fused:
        P(f"v_and_b32 v{T+1}, 1, v{V_LANE}")
        P(f"s_lshl_b32 s{S_T0}, s{S_R}, 1")
        P(f"v_add_u32 v{T+1}, s{S_T0}, v{T+1}")
        P(f"v_lshlrev_b32 v{T+1}, 4, v{T+1}")
        P(f"v_bfe_u32 v{T+2}, v{V_LANE}, 1, 2")
        P(f"v_add_u32 v{T+1}, v{T+1}, v{T+2}")
        P(f"v_lshlrev_b32 v{T+1}, 7, v{T+1}")
        P(f"s_mul_i32 s{S_T0}, s{S_WAVE}, 7")
        P(f"s_lshr_b32 s{S_T0}, s{S_T0}, 1")
        P(f"s_lshl_b32 s{S_T0}, s{S_T0}, 7")
        P(f"s_add_u32 s{S_T0}, s{S_T0}, {FL_H}")
        P(f"v_add_u32 v{V_PA}, s{S_T0}, v{T+1}")
        P(f"s_lshl_b32 s{S_T0}, s{S_WAVE}, 9")
        P(f"s_add_u32 s{S_T0}, s{S_T0}, {FL_O}")
        P(f"v_add_u32 v{L_OA+1}, s{S_T0}, v{T+1}")
    for d in range(1, 4):
        P(f"s_xor_b32 s{S_T0}, s{S_WAVE}, {d}")
        P(f"s_mul_i32 s{S_T0}, s{S_T0}, 12288")
        P(f"s_add_u32 s{S_T0}, s{S_T0}, {LRED + (d-1)*4096}")
        P(f"v_add_u32 v{L_RW+d-1}, s{S_T0}, v{V_L16}")
    P(f"s_mul_i32 s{S_T0}, s{S_WAVE}, 12288")
    P(f"s_add_u32 s{S_T0}, s{S_T0}, {LRED}")
    P(f"v_add_u32 v{L_RR}, s{S_T0}, v{V_L16}")
    P(f"s_lshl_b32 s{S_T0}, s{S_R}, 6")
    P(f"s_lshl_b32 s{S_T2}, s{S_T1}, 5")
    P(f"s_add_u32 s{S_T0}, s{S_T0}, s{S_T2}")
    P(f"v_add_u32 v{T+1}, s{S_T0}, v{T}")
    P(f"v_mul_u32_u24 v{T+1}, 896, v{T+1}")
    P(f"v_lshrrev_b32 v{T+2}, 5, v{V_LANE}")
    P(f"v_lshl_add_u32 v{T+1}, v{T+2}, 4, v{T+1}")
    P(f"s_lshl_b32 s{S_T0}, s{S_C}, 7")
    P(f"s_lshr_b32 s{S_T2}, s{S_WAVE}, 1")
    P(f"s_lshl_b32 s{S_T2}, s{S_T2}, 6")
    P(f"s_add_u32 s{S_T0}, s{S_T0}, s{S_T2}")
    P(f"v_add_u32 v{L_OA}, s{S_T0}, v{T+1}")
    P(f"s_cmp_eq_u32 s{S_WAVE}, 0")
    P(f"s_cselect_b32 s{S_T3}, -1, 0")
    P(f"v_and_b32 v15, s{S_T3}, v15")
    a = bias_to_acc(P, 15, LACC, 2, 12)
    P(f"s_lshr_b32 s{S_T2}, s{S_WAVE}, 1")
    P(f"s_lshl_b32 s{S_T2}, s{S_T2}, 7")
    P(f"s_xor_b32 s{S_T3}, s{S_T2}, 128")
    P(f"v_add_u32 v{a-1}, s{S_T3}, v{a}")
    P(f"v_add_u32 v{a}, s{S_T2}, v{a}")
    for ttl in range(2):
        for ctl in range(2):
            for q in range(4):
                P(f"ds_read_b128 {vr(LACC+32*ttl+16*ctl+4*q,4)}, v{a-1+ctl} offset:{32*q}")
    P(f"v_sub_f32 v{L_G}, 1.0, v{L_G}")
    P(f"v_sub_f32 v{L_G+2}, 1.0, v{L_G+2}")

def a_load(n):
    L = []
    for ttl in range(2):
        d = LA + 8 * (n % NA) + 4 * ttl
        if n < 28:
            L.append((f"buffer_load_dwordx4 {vr(d,4)}, v{V_AA+ttl}, {sr(SRD_WS,4)}, s{S_AT+(n>>2)} offen offset:{(n&3)*1024} {SC}", 'ald'))
        else:
            k = n - 28
            L.append((f"buffer_load_dwordx4 {vr(d,4)}, v{V_AA+ttl}, {sr(SRD_WS,4)}, s{S_AT+7+(k>>2)} offen offset:{(k&3)*1024} {SC}", 'ald'))
    return L

def breg(n, ctl):
    if n < 32: return 4 * (2 * n + ctl)
    return 4 * (2 * (n - 32) + ctl)

def last(P, o):
    q = lambda ttl, ctl: LACC + 32 * ttl + 16 * ctl
    poll(P, o, V_PA)
    if o.fused:
        P(f"s_lshl_b32 s{S_T0}, s{S_TB}, 4")
        P(f"s_add_u32 s{S_T0}, s{S_T0}, s{S_J}")
        P(f"s_lshl_b32 s{S_T0}, s{S_T0}, 7")
        P(f"s_add_u32 s{S_T0}, s{S_T0}, {FL_O}")
        P.add(flag_store(o, S_T0))
    stamp(P, o, 'last_go')
    for n in range(NA): P.add(a_load(n))
    for n in range(28):
        a = LA + 8 * (n % NA)
        M = [mfma(q(ttl, ctl), breg(n, ctl), a + 4 * ttl, q(ttl, ctl), 'a') for ttl in range(2) for ctl in range(2)]
        ex = []
        if n + NA < 28: ex = a_load(n + NA)
        if 4 <= n < 8:
            k = n
            ex = ex + [(f"buffer_load_dwordx4 {ar(breg(28+k, ct),4)}, v{V_BA+ct*2+((k-4)>>1)}, {sr(SRD_WS,4)}, s{S_AT+9} offen offset:{((k-4)&1)*2048} {SC}", 'bld2') for ct in range(2)]
        P.add(M + ex)
    stamp(P, o, 'last_h')
    if o.fused:
        P(f"v_mov_b32 v{V_PA}, v{L_OA+1}")
        poll(P, o, V_PA)
    for n in range(28, 36): P.add(a_load(n))
    sc = lambda ttl, ctl: [f"v_mul_f32 v{q(ttl,ctl)+i}, v{L_G+2*ttl}, v{q(ttl,ctl)+i}" for i in range(16)]
    P.add(sc(0, 0) + sc(0, 1) + sc(1, 0) + sc(1, 1))
    stamp(P, o, 'last_ogo')
    wr = lambda ttl, ctl: [f"ds_write_b128 v{L_RW + ((1-ttl) | ((1-ctl) << 1)) - 1}, {vr(q(ttl,ctl)+4*i,4)} offset:{i*1024}" for i in range(4)]
    mm = lambda n, ttl, ctl: mfma(q(ttl, ctl), breg(n, ctl), LA + 8 * (n % NA) + 4 * ttl, q(ttl, ctl), 'a')
    for n in range(28, 36): P.add([mm(n, 0, 0), mm(n, 0, 1)])
    w = wr(0, 0) + wr(0, 1)
    seq = []
    for i, n in enumerate(range(28, 36)):
        seq.append(mm(n, 1, 0))
        if i >= 2: seq += w[:2]; w = w[2:]
    seq += w
    w = wr(1, 0)
    for i, n in enumerate(range(28, 36)):
        seq.append(mm(n, 1, 1))
        if i >= 3 and w: seq.append(w.pop(0))
    P.add(seq + w)
    P("s_waitcnt lgkmcnt(0)")
    P("s_barrier")
    R = LA
    for d in range(3):
        for i in range(4):
            P(f"ds_read_b128 {vr(R+16*d+4*i,4)}, v{L_RR} offset:{d*4096 + i*1024}")
    o_ = q(1, 1)
    for d in range(3):
        for i in range(8):
            P(f"v_pk_add_f32 {vr(o_+2*i,2)}, {vr(o_+2*i,2)}, {vr(R+16*d+2*i,2)}")
    p = R + 48
    for i in range(8): P(f"v_cvt_pk_bf16_f32 v{p+i}, v{o_+2*i}, v{o_+2*i+1}")
    for h in range(2):
        P(f"v_permlane32_swap_b32 v{p+4*h}, v{p+4*h+2}")
        P(f"v_permlane32_swap_b32 v{p+4*h+1}, v{p+4*h+3}")
    for h in range(2):
        P(f"buffer_store_dwordx4 {vr(p+4*h,4)}, v{L_OA}, {sr(SRD_OUT,4)}, 0 offen offset:{32*h}")
    stamp(P, o, 'end')

HEADER = open('cdna_kernels/' + NAME + '.s.ref').read().split('; Override launch')[0]

def kernel_text(name, L):
    return f".globl {name}\n.p2align 8\n.type {name},@function\n{name}:\n" + text(L)

def descriptor(name):
    return f""".p2align 6
.amdhsa_kernel {name}
  .amdhsa_next_free_vgpr 512
  .amdhsa_next_free_sgpr 102
  .amdhsa_accum_offset 256
  .amdhsa_group_segment_fixed_size 0
  .amdhsa_kernarg_size 96
  .amdhsa_user_sgpr_count 2
  .amdhsa_user_sgpr_kernarg_segment_ptr 1
  .amdhsa_system_sgpr_workgroup_id_x 1
.end_amdhsa_kernel
"""

def build_multi(o):
    o.fused = False
    o.stamp_names = []
    ks = []
    o.kidx = 0; stamp_idx[0] = 0; o.code_bytes = 16384
    P = Prog(); setup(P, o, "L_end1")
    stamp(P, o, 'k1_start')
    P(f"s_cmp_ge_u32 s{S_SLOT}, 28")
    P("s_cbranch_scc1 L_prep")
    stage1(P, o, {})
    qkv_epilogue(P, o)
    stamp(P, o, 'qkv_epi')
    for F in range(4): P.add(gelu_tile(F))
    stamp(P, o, 'gelu')
    stamp_flush(P, o)
    P("s_endpgm")
    P.forget()
    P("L_prep:")
    prep(P, o)
    P("L_end1:")
    P("s_endpgm")
    ks.append(("s1_kernel", finalize(P, True)))
    o.kidx = 1; stamp_idx[0] = 0; o.code_bytes = 8192
    P = Prog(); setup(P, o, "L_end2")
    stamp(P, o, 'k2_start')
    att_scalars(P, o); att_addr(P, o); att_loads(P, o); attention(P, o, [])
    stamp(P, o, 'att_end')
    stamp_flush(P, o)
    P("L_end2:")
    P("s_endpgm")
    ks.append(("att_kernel", finalize(P, True)))
    o.kidx = 2; stamp_idx[0] = 0; o.code_bytes = 8192
    P = Prog(); setup(P, o, "L_end3")
    stamp(P, o, 'k3_start')
    P(f"s_cmp_ge_u32 s{S_SLOT}, 28")
    P("s_cbranch_scc1 L_end3")
    last_baddr(P, o)
    last_setup(P, o)
    for it in b_loads(o): P.add(it)
    last(P, o)
    stamp_flush(P, o)
    P("L_end3:")
    P("s_endpgm")
    ks.append(("last_kernel", finalize(P, True)))
    out = HEADER
    for n, _ in ks: out += f"; @launch kernel={n} grid=(256,1,1) block=(256,1,1) lds={LDS_BYTES}\n"
    out += '.amdgcn_target "amdgcn-amd-amdhsa--gfx950"\n.text\n'
    for n, L in ks: out += kernel_text(n, L)
    out += ".fill 6144, 4, 0xbf800000\n"
    out += '.section .rodata,"a"\n'
    for n, _ in ks: out += descriptor(n)
    return out

V_PP = 230
def prep_poll_addr(P):
    P(f"v_and_b32 v{V_PP}, 31, v{V_LANE}")
    P(f"v_lshlrev_b32 v{V_PP}, 7, v{V_PP}")
    P(f"v_add_u32 v{V_PP}, {FL_PREP}, v{V_PP}")

def build_fused(o):
    o.fused = True
    o.stamp_names = []; o.kidx = 0; stamp_idx[0] = 0
    name = NAME + "_kernel"
    P = Prog(); setup(P, o, "L_end")
    stamp(P, o, 'start')
    prep_poll_addr(P)
    P(f"s_cmp_ge_u32 s{S_SLOT}, 28")
    P("s_cbranch_scc1 L_prep")
    hooks = {24: [poll_issue(o, V_PP, 232)]}
    stage1(P, o, hooks)
    P("s_barrier")
    qkv_epilogue(P, o)
    P(f"s_lshl_b32 s{S_T0}, s{S_TB}, 4")
    P(f"s_add_u32 s{S_T0}, s{S_T0}, s{S_B}")
    P(f"s_lshl_b32 s{S_T0}, s{S_T0}, 7")
    P(f"s_add_u32 s{S_QST}, s{S_T0}, {FL_QKV}")
    P(f"s_add_u32 s{S_B}, s{S_T0}, {FL_H}")
    last_baddr(P, o)
    poll_check(P, o, V_PP, 232)
    stamp(P, o, 'qkv_epi')
    bl = b_loads(o)
    nb = o.nb_gelu
    for F in range(4):
        g = gelu_tile(F)
        take = bl[:nb[F]]; bl = bl[nb[F]:]
        P.add(interleave([[x] for x in g[:-2]], take) + g[-2:])
        if F == o.qflag_after:
            P.wait_vm('qst'); P.add(flag_store(o, S_QST))
    stamp(P, o, 'gelu')
    for it in bl: P.add(it)
    att_scalars(P, o); att_poll_addr(P, o); att_addr(P, o)
    P.wait_vm('hst'); P.add(flag_store(o, S_B))
    stamp(P, o, 'hflag')
    P("L_att:")
    poll(P, o, V_PA)
    stamp(P, o, 'qkv_seen')
    att_loads(P, o)
    attention(P, o, [])
    stamp(P, o, 'att_end')
    P(f"s_cmp_ge_u32 s{S_SLOT}, 28")
    P("s_cbranch_scc1 L_spare_end")
    last_setup(P, o)
    last(P, o)
    stamp_flush(P, o)
    P("s_endpgm")
    P.forget()
    P("L_prep:")
    prep(P, o)
    poll(P, o, V_PP)
    att_scalars(P, o); att_poll_addr(P, o); att_addr(P, o)
    P("s_branch L_att")
    P.forget()
    P("L_spare_end:")
    P("s_waitcnt vmcnt(0)")
    P(f"s_lshl_b32 s{S_T0}, s{S_TB}, 4")
    P(f"s_add_u32 s{S_T0}, s{S_T0}, s{S_J}")
    P(f"s_lshl_b32 s{S_T0}, s{S_T0}, 7")
    P(f"s_add_u32 s{S_T0}, s{S_T0}, {FL_O}")
    P.add(flag_store(o, S_T0))
    stamp_flush(P, o)
    P(f"s_cmp_eq_u32 s2, 224")
    P("s_cbranch_scc0 L_end")
    P(f"s_cmp_eq_u32 s{S_WAVE}, 0")
    P("s_cbranch_scc0 L_end")
    P(f"v_lshlrev_b32 v{V_PA}, 7, v{V_LANE}")
    P(f"s_mov_b32 s{S_CNT}, 4000")
    P("L_ep:")
    for i in range(16):
        P(f"s_mov_b32 s{S_T0}, {FL_O + i*8192}")
        P(f"buffer_load_dwordx2 {vr(16+2*i,2)}, v{V_PA}, {sr(SRD_WS,4)}, s{S_T0} offen sc1")
    P("s_waitcnt vmcnt(0)")
    P(f"s_mov_b64 {sr(S_T0)}, 0")
    for i in range(16):
        P(f"v_cmp_ne_u64 vcc, {sr(S_TAG)}, {vr(16+2*i,2)}")
        P(f"s_or_b64 {sr(S_T0)}, {sr(S_T0)}, vcc")
    P(f"s_sub_u32 s{S_CNT}, s{S_CNT}, 1")
    P("s_cbranch_scc1 L_end")
    P(f"s_cmp_eq_u64 {sr(S_T0)}, 0")
    P("s_cbranch_scc0 L_ep")
    P(f"buffer_store_dword v{V_TAG}, v{V_FLAGOFF}, {sr(SRD_WS,4)}, 0 offen sc1")
    P("L_end:")
    P("s_endpgm")
    for sp in slow_paths:
        P.forget(); P(sp)
    L = finalize(P, True)
    out = HEADER + f"; @launch grid=(256,1,1) block=(256,1,1) lds={LDS_BYTES}\n"
    out += '.amdgcn_target "amdgcn-amd-amdhsa--gfx950"\n.text\n'
    out += kernel_text(name, L)
    out += "s_endpgm\n.fill 2048, 4, 0xbf800000\n"
    out += '.section .rodata,"a"\n' + descriptor(name)
    return out

if __name__ == '__main__':
    o = Opt()
    mode = sys.argv[1]
    o.stamps = 'stamps' in sys.argv
    o.early_b = False
    o.nb_gelu = [6, 6, 6, 6]; o.qflag_after = 2; o.code_bytes = 24576
    if mode == 'multi': s = build_multi(o)
    if mode == 'fused': s = build_fused(o)
    open(sys.argv[2], 'w').write(s)
    if o.stamps: open(sys.argv[2] + '.names', 'w').write('\n'.join(o.stamp_names))
```

```python
import sys, math, struct
from asmlib import *

NAME = "gated_mix__sliding_block__dense_activation_gelu__prompt"

def f2u(x): return struct.unpack('<I', struct.pack('<f', x))[0]

WS_E      = 0
FL_PREP   = 0x1000
G_OFF     = 0x4000
FL_QKV    = 0x20000
FL_H      = 0x40000
FL_O      = 0x60000
QKV_OFF   = 0x100000
A_OFF     = 0x700000
BP_OFF    = 0x1000000
WS_SIZE   = 0x1200000
STAMP_OFF = 0x1400000
QKV_TB = 168 * 512
A_TB = 144 * 1024
BP_C = 144 * 2048

LX = 0; LX_SLOT = 16384
LF = 49152; LF_SLOT = 16384
LQ = 98304; LQ_SLOT = 12288
LBIAS = 135168
LKV = 0
LRED = 49152
LDS_BYTES = 160 * 1024

S_X, S_WQ, S_WO, S_W1, S_B1, S_W2, S_B2, S_GW, S_OUT, S_WS = 4, 6, 8, 12, 14, 16, 18, 20, 22, 24
SRD_X, SRD_WQ, SRD_W1, SRD_WS, SRD_OUT, SRD_P = 28, 32, 36, 40, 44, 48
S_WAVE, S_XCD, S_SLOT = 3, 10, 11
S_TAG = 26
S_RB, S_B, S_TB, S_ROT = 52, 53, 54, 55
S_T0, S_T1, S_T2, S_T3 = 56, 57, 58, 59
S_CNT = 60
S_QST, S_HST = 61, 62
S_T4 = 63
S_TAB = 64
S_BOFF = 13
S_BT = [4, 5, 6, 7, 8, 9, 12]
S_R, S_C = 98, 99
S_J = 100
S_PAR = 101

def sr(b, n=2): return f"s[{b}:{b+n-1}]"
def vr(b, n): return f"v[{b}:{b+n-1}]" if n > 1 else f"v{b}"
def ar(b, n): return f"a[{b}:{b+n-1}]"

V_TID, V_LANE = 0, 1
V_L16 = 2
V_L16H = 3
V_FLAGOFF = 4
V_TAG = 6
V_POLL = 8
V_PA = 10
V_T = 11

class Opt:
    fused = True
    stamps = False
    code_bytes = 24576

def mfma(d, a, b, c, areg='v'):
    A = ar(a, 4) if areg == 'a' else vr(a, 4)
    C = '0' if c is None else vr(c, 16)
    return f"v_mfma_f32_32x32x16_bf16 {vr(d,16)}, {A}, {vr(b,4)}, {C}"

def srd(P, d, ptr, size):
    P(f"s_mov_b32 s{d}, s{ptr}")
    P(f"s_and_b32 s{d+1}, s{ptr+1}, 0xffff")
    P(f"s_mov_b32 s{d+2}, {size}")
    P(f"s_mov_b32 s{d+3}, 0x20000")

stamp_idx = [0]
def stamp(P, o, name):
    if not o.stamps: return
    i = stamp_idx[0]; stamp_idx[0] += 1
    o.stamp_names.append(name)
    P(f"s_memrealtime s[96:97]")
    P("s_waitcnt lgkmcnt(0)")
    P(f"v_mov_b32 v{240+i}, s96")

def stamp_flush(P, o):
    if not o.stamps: return
    if o.diag is not None:
        i, j, K = o.diag
        i = o.stamp_names.index(i); j = o.stamp_names.index(j)
        lab[0] += 1
        P(f"v_readfirstlane_b32 s{S_T0}, v{240+i}")
        P(f"v_readfirstlane_b32 s{S_T1}, v{240+j}")
        P("s_nop 4")
        P(f"s_sub_u32 s{S_T0}, s{S_T1}, s{S_T0}")
        P(f"s_mul_i32 s{S_T0}, s{S_T0}, {K}")
        P(f"s_min_u32 s{S_T0}, s{S_T0}, 20000")
        P(f"s_cmp_ge_u32 s{S_SLOT}, 28")
        P(f"s_cselect_b32 s{S_T0}, 0, s{S_T0}")
        P("s_memrealtime s[96:97]")
        P("s_waitcnt lgkmcnt(0)")
        P(f"s_mov_b32 s{S_T1}, s96")
        P(f"L_dg{lab[0]}:")
        P("s_memrealtime s[96:97]")
        P("s_waitcnt lgkmcnt(0)")
        P(f"s_sub_u32 s{S_T2}, s96, s{S_T1}")
        P(f"s_cmp_lt_u32 s{S_T2}, s{S_T0}")
        P(f"s_cbranch_scc1 L_dg{lab[0]}")
        return
    P("s_waitcnt vmcnt(0)")
    P(f"s_lshl_b32 s{S_T0}, s2, 2")
    P(f"s_add_u32 s{S_T0}, s{S_T0}, s{S_WAVE}")
    P(f"s_lshl_b32 s{S_T0}, s{S_T0}, 6")
    P(f"s_add_u32 s{S_T0}, s{S_T0}, {STAMP_OFF + o.kidx*0x20000}")
    P(f"s_mov_b32 s{SRD_WS+2}, {STAMP_OFF + 0x100000}")
    for q in range(4):
        P(f"buffer_store_dwordx4 {vr(240+4*q,4)}, v{V_FLAGOFF}, {sr(SRD_WS,4)}, s{S_T0} offen offset:{16*q}")

def setup(P, o, end_label):
    P("s_load_dwordx4 s[4:7], s[0:1], 0")
    P("s_load_dwordx2 s[8:9], s[0:1], 16")
    P("s_load_dwordx8 s[12:19], s[0:1], 32")
    P("s_load_dwordx4 s[20:23], s[0:1], 64")
    P("s_load_dwordx2 s[24:25], s[0:1], 88")
    P("s_cmp_ge_u32 s2, 256")
    P(f"s_cbranch_scc1 {end_label}")
    if o.stamps:
        for i in range(16): P(f"v_mov_b32 v{240+i}, 0")
    P(f"s_getpc_b64 s[{S_T0}:{S_T1}]")
    P(f"v_lshlrev_b32 v{V_T}, 4, v0")
    for i in range(o.code_bytes // 4096):
        P(f"global_load_dwordx4 v[236:239], v{V_T}, s[{S_T0}:{S_T1}]", tag='pf')
        if i + 1 < o.code_bytes // 4096: P(f"v_add_u32 v{V_T}, 0x1000, v{V_T}")
    P(f"v_and_b32 v{V_LANE}, 63, v0")
    P(f"v_lshrrev_b32 v5, 6, v0")
    P(f"v_lshlrev_b32 v{V_L16}, 4, v{V_LANE}")
    P(f"v_readfirstlane_b32 s{S_WAVE}, v5")
    P(f"v_add_u32 v{V_L16H}, 0x1000, v{V_L16}")
    P(f"v_cmp_eq_u32 vcc, 0, v{V_LANE}")
    P(f"v_mov_b32 v5, 0x7fff0000")
    P(f"s_and_b32 s{S_XCD}, s2, 7")
    P(f"s_lshr_b32 s{S_SLOT}, s2, 3")
    P(f"v_cndmask_b32_e64 v{V_FLAGOFF}, v5, 0, vcc")
    P(f"s_mul_i32 s{S_T2}, s{S_SLOT}, 37")
    P(f"s_lshr_b32 s{S_T2}, s{S_T2}, 8")
    P(f"s_mul_i32 s{S_T3}, s{S_T2}, 7")
    P(f"s_sub_u32 s{S_C}, s{S_SLOT}, s{S_T3}")
    P(f"s_lshl_b32 s{S_R}, s{S_XCD}, 2")
    P(f"s_add_u32 s{S_R}, s{S_R}, s{S_T2}")
    P(f"s_and_b32 s{S_RB}, s{S_XCD}, 3")
    P(f"s_lshl_b32 s{S_RB}, s{S_RB}, 2")
    P(f"s_add_u32 s{S_RB}, s{S_RB}, s{S_T2}")
    P(f"s_lshr_b32 s{S_B}, s{S_XCD}, 2")
    P(f"s_mul_i32 s{S_B}, s{S_B}, 7")
    P(f"s_add_u32 s{S_B}, s{S_B}, s{S_C}")
    P(f"s_lshl_b32 s{S_T2}, s{S_T2}, 1")
    P(f"s_add_u32 s{S_ROT}, s{S_C}, s{S_T2}")
    P(f"s_add_u32 s{S_ROT}, s{S_ROT}, s{S_XCD}")
    P(f"s_mul_i32 s{S_T2}, s{S_ROT}, 37")
    P(f"s_lshr_b32 s{S_T2}, s{S_T2}, 8")
    P(f"s_mul_i32 s{S_T2}, s{S_T2}, 7")
    P(f"s_sub_u32 s{S_ROT}, s{S_ROT}, s{S_T2}")
    P("s_waitcnt lgkmcnt(0)")
    if o.fused:
        P(f"s_load_dword s{S_TAG}, {sr(S_WS)}, {WS_E}")
    srd(P, SRD_X, S_X, 2048 * 896)
    srd(P, SRD_WQ, S_WQ, 448 * 2688)
    srd(P, SRD_W1, S_W1, 448 * 3584)
    srd(P, SRD_WS, S_WS, WS_SIZE)
    srd(P, SRD_OUT, S_OUT, 2048 * 896)
    srd(P, SRD_P, S_W2, 1792 * 896)

def make_tag(P, o):
    if not o.fused: return
    P("s_waitcnt lgkmcnt(0)")
    P(f"s_mul_i32 s{S_TAG}, s{S_TAG}, 0x9e3779b1")
    P(f"s_add_u32 s{S_TAG}, s{S_TAG}, 0x7f4a7c15")
    P(f"s_xor_b32 s{S_TAG+1}, s{S_TAG}, 0x5bd1e995")
    P(f"v_mov_b32 v{V_TAG}, s{S_TAG}")
    P(f"v_mov_b32 v{V_TAG+1}, s{S_TAG+1}")

lab = [0]
def poll(P, o, addr_v, limit=4000):
    if not o.fused: return
    lab[0] += 1
    L = f"L_poll{lab[0]}"
    P(f"s_mov_b32 s{S_CNT}, {limit}")
    P("s_waitcnt vmcnt(0) lgkmcnt(0)")
    P(f"{L}:")
    P(f"buffer_load_dwordx2 {vr(V_POLL,2)}, v{addr_v}, {sr(SRD_WS,4)}, 0 offen sc1")
    P(f"s_sub_u32 s{S_CNT}, s{S_CNT}, 1")
    P("s_waitcnt vmcnt(0)")
    P(f"v_cmp_ne_u64 vcc, {sr(S_TAG)}, {vr(V_POLL,2)}")
    P(f"s_cbranch_scc1 {L}_x")
    P(f"s_cbranch_vccnz {L}")
    P(f"{L}_x:")

slow_paths = []
def poll_issue(o, addr_v, dst):
    return [f"buffer_load_dwordx2 {vr(dst,2)}, v{addr_v}, {sr(SRD_WS,4)}, 0 offen sc1"]
def poll_check(P, o, addr_v, dst, limit=4000):
    lab[0] += 1
    L = f"L_pc{lab[0]}"
    P(f"v_cmp_ne_u64 vcc, {sr(S_TAG)}, {vr(dst,2)}")
    P(f"s_cbranch_vccnz {L}_slow")
    P(f"{L}_back:")
    slow_paths.append(f"""{L}_slow:
s_mov_b32 s{S_CNT}, {limit}
{L}_loop:
buffer_load_dwordx2 {vr(dst,2)}, v{addr_v}, {sr(SRD_WS,4)}, 0 offen sc1
s_sub_u32 s{S_CNT}, s{S_CNT}, 1
s_waitcnt vmcnt(0)
v_cmp_ne_u64 vcc, {sr(S_TAG)}, {vr(dst,2)}
s_cbranch_scc1 {L}_back
s_cbranch_vccnz {L}_loop
s_branch {L}_back""")

def flag_store(o, soff):
    if not o.fused: return []
    return [f"buffer_store_dwordx2 {vr(V_TAG,2)}, v{V_FLAGOFF}, {sr(SRD_WS,4)}, s{soff} offen sc1"]

SC = 'sc1'

ACC_Q, ACC_F = 16, 64
FR = 128
V_XD, V_QD, V_FD = 192, 196, 199
V_XR, V_QR, V_FRD = 203, 207, 208
V_CA, V_CB = 212, 214
GT = 128

def s1_dma(c_slot, ci):
    L = []
    tagn = f'dma{ci}'
    L.append([f"s_mov_b32 m0, s{S_TAB+21+c_slot}"])
    for i in range(4):
        L.append([(f"buffer_load_dwordx4 v{V_XD+i}, {sr(SRD_X,4)}, s{S_TAB+ci} offen offset:{i*1024} lds", tagn)])
    L.append([f"s_mov_b32 m0, s{S_TAB+24+c_slot}"])
    for i in range(3):
        L.append([(f"buffer_load_dwordx4 v{V_QD+i}, {sr(SRD_WQ,4)}, s{S_TAB+7+ci} offen offset:{i*1024} lds", tagn)])
    L.append([f"s_mov_b32 m0, s{S_TAB+27+c_slot}"])
    for i in range(4):
        L.append([(f"buffer_load_dwordx4 v{V_FD+i}, {sr(SRD_W1,4)}, s{S_TAB+14+ci} offen offset:{i*1024} lds", tagn)])
    return L

def s1_reads(slot, s, fset):
    base = FR + 32 * fset
    L = [f"ds_read_b128 {vr(base,4)}, v{V_XR+s} offset:{LX + slot*LX_SLOT}"]
    for t in range(7):
        for rho in range(2):
            d = base + 4 + 4 * t + 2 * rho
            if t < 3:
                L.append(f"ds_read_b64_tr_b16 {vr(d,2)}, v{V_QR} offset:{slot*LQ_SLOT + (16*s+4*rho)*192 + t*64}")
            else:
                L.append(f"ds_read_b64_tr_b16 {vr(d,2)}, v{V_FRD+t-3} offset:{slot*LF_SLOT + (16*s+4*rho)*256}")
    return L

def stage1_setup(P, o):
    T = V_T
    P(f"s_lshl_b32 s{S_TB}, s{S_RB}, 2")
    P(f"s_add_u32 s{S_TB}, s{S_TB}, s{S_WAVE}")
    P(f"s_mov_b32 s{S_T0}, s{S_ROT}")
    for i in range(7):
        P(f"s_lshl_b32 s{S_TAB+i}, s{S_T0}, 7")
        P(f"s_mul_i32 s{S_TAB+7+i}, s{S_T0}, {64*2688}")
        P(f"s_mul_i32 s{S_TAB+14+i}, s{S_T0}, {64*3584}")
        if i < 6:
            P(f"s_add_u32 s{S_T0}, s{S_T0}, 1")
            P(f"s_cmp_eq_u32 s{S_T0}, 7")
            P(f"s_cselect_b32 s{S_T0}, 0, s{S_T0}")
    P(f"s_lshl_b32 s{S_T0}, s{S_WAVE}, 12")
    P(f"s_mul_i32 s{S_T1}, s{S_WAVE}, 3072")
    for k in range(3):
        P(f"s_add_u32 s{S_TAB+21+k}, s{S_T0}, {LX + k*LX_SLOT}")
        P(f"s_add_u32 s{S_TAB+24+k}, s{S_T1}, {LQ + k*LQ_SLOT}")
        P(f"s_add_u32 s{S_TAB+27+k}, s{S_T0}, {LF + k*LF_SLOT}")
    P(f"v_lshrrev_b32 v{T}, 3, v{V_LANE}")
    P(f"v_and_b32 v{T+1}, 7, v{V_LANE}")
    P(f"v_lshrrev_b32 v{T+2}, 4, v{V_LANE}")
    P(f"s_lshl_b32 s{S_T0}, s{S_TB}, 5")
    P(f"v_add_u32 v{T}, s{S_T0}, v{T}")
    P(f"v_mul_u32_u24 v{T}, 896, v{T}")
    for i in range(4):
        P(f"v_xor_b32 v{T+3}, {(4*i) & 7}, v{T+2}")
        P(f"v_xor_b32 v{T+3}, v{T+3}, v{T+1}")
        P(f"v_lshl_add_u32 v{V_XD+i}, v{T+3}, 4, v{T}")
        if i: P(f"v_add_u32 v{V_XD+i}, {i*(8*896-1024)}, v{V_XD+i}")
    P(f"s_mul_i32 s{S_T0}, s{S_WAVE}, 192")
    P(f"s_mul_i32 s{S_T1}, s{S_B}, 192")
    P(f"s_mov_b32 s{S_T2}, 43691")
    for i in range(3):
        P(f"v_add_u32 v{T}, s{S_T0}, v{V_LANE}")
        if i: P(f"v_add_u32 v{T}, {64*i}, v{T}")
        P(f"v_mul_lo_u32 v{T+1}, v{T}, s{S_T2}")
        P(f"v_lshrrev_b32 v{T+1}, 19, v{T+1}")
        P(f"v_mul_u32_u24 v{T+2}, 12, v{T+1}")
        P(f"v_sub_u32 v{T+2}, v{T}, v{T+2}")
        P(f"v_mul_u32_u24 v{T+1}, 2688, v{T+1}")
        P(f"v_lshl_add_u32 v{T+1}, v{T+2}, 4, v{T+1}")
        P(f"v_add_u32 v{V_QD+i}, s{S_T1}, v{T+1}")
        if i: P(f"v_subrev_u32 v{V_QD+i}, {i*1024}, v{V_QD+i}")
    P(f"v_lshrrev_b32 v{T}, 4, v{V_LANE}")
    P(f"v_bfe_u32 v{T+1}, v{V_LANE}, 2, 2")
    P(f"v_xor_b32 v{T+1}, v{T+1}, v{T}")
    P(f"v_and_b32 v{T+2}, 3, v{V_LANE}")
    P(f"v_lshlrev_b32 v{T+2}, 4, v{T+2}")
    P(f"v_lshl_add_u32 v{T+1}, v{T+1}, 6, v{T+2}")
    P(f"s_lshl_b32 s{S_T0}, s{S_WAVE}, 4")
    P(f"v_add_u32 v{T}, s{S_T0}, v{T}")
    P(f"v_mul_u32_u24 v{T}, 3584, v{T}")
    P(f"s_lshl_b32 s{S_T1}, s{S_B}, 8")
    P(f"v_add3_u32 v{V_FD}, v{T}, v{T+1}, s{S_T1}")
    for i in range(1, 4):
        P(f"v_add_u32 v{V_FD+i}, {i*(4*3584-1024)}, v{V_FD}")

def stage1_setup2(P, o):
    T = V_T
    P(f"v_and_b32 v{T}, 31, v{V_LANE}")
    P(f"v_lshrrev_b32 v{T+1}, 5, v{V_LANE}")
    P(f"v_bfe_u32 v{T+2}, v{V_LANE}, 1, 3")
    P(f"v_xor_b32 v{T+2}, v{T+2}, v{T+1}")
    P(f"s_lshl_b32 s{S_T0}, s{S_WAVE}, 12")
    P(f"v_lshl_add_u32 v{T}, v{T}, 7, s{S_T0}")
    for s in range(4):
        P(f"v_xor_b32 v{T+3}, {2*s}, v{T+2}")
        P(f"v_lshl_add_u32 v{V_XR+s}, v{T+3}, 4, v{T}")
    P(f"v_bfe_u32 v{T}, v{V_LANE}, 2, 2")
    P(f"v_lshl_add_u32 v{T+1}, v{T+1}, 3, v{T}")
    P(f"v_bfe_u32 v{T+2}, v{V_LANE}, 4, 1")
    P(f"v_lshlrev_b32 v{T+2}, 5, v{T+2}")
    P(f"v_and_b32 v{T+3}, 3, v{V_LANE}")
    P(f"v_lshl_add_u32 v{T+2}, v{T+3}, 3, v{T+2}")
    P(f"v_mul_u32_u24 v{T+3}, 192, v{T+1}")
    P(f"v_add_u32 v{T+3}, {LQ}, v{T+3}")
    P(f"v_add_u32 v{V_QR}, v{T+3}, v{T+2}")
    P(f"v_lshl_add_u32 v{T+2}, v{T+1}, 8, v{T+2}")
    P(f"v_add_u32 v{T+2}, {LF}, v{T+2}")
    for c in range(4):
        P(f"v_xor_b32 v{T+3}, {c}, v{T}")
        P(f"v_lshl_add_u32 v{V_FRD+c}, v{T+3}, 6, v{T+2}")
    A = -2.0 * math.sqrt(2.0 / math.pi) * 0.044715 * math.log2(math.e)
    B = -2.0 * math.sqrt(2.0 / math.pi) * math.log2(math.e)
    P(f"v_mov_b32 v{V_CA}, {hex(f2u(A))}")
    P(f"v_mov_b32 v{V_CB}, {hex(f2u(B))}")
    P(f"s_mul_i32 s{S_QST}, s{S_TB}, {QKV_TB}")
    P(f"s_mul_i32 s{S_T0}, s{S_B}, {3*2048}")
    P(f"s_add_u32 s{S_QST}, s{S_QST}, s{S_T0}")
    P(f"s_add_u32 s{S_QST}, s{S_QST}, {QKV_OFF}")
    P(f"s_mul_i32 s{S_HST}, s{S_TB}, {A_TB}")
    P(f"s_lshl_b32 s{S_T0}, s{S_B}, 13")
    P(f"s_add_u32 s{S_HST}, s{S_HST}, s{S_T0}")
    P(f"s_add_u32 s{S_HST}, s{S_HST}, {A_OFF}")

def bias_to_acc(P, src_v, acc, ntiles, tmp, lane_sel=None):
    P(f"v_lshlrev_b32 v{tmp}, 16, v{src_v}")
    P(f"v_and_b32 v{tmp+1}, 0xffff0000, v{src_v}")
    P(f"s_lshl_b32 s{S_T0}, s{S_WAVE}, 9")
    P(f"s_add_u32 s{S_T0}, s{S_T0}, {LBIAS}")
    P(f"v_lshl_add_u32 v{tmp+2}, v{V_LANE}, 3, s{S_T0}")
    P(f"ds_write_b64 v{tmp+2}, {vr(tmp,2)}", tag='biasw')
    P(f"v_lshrrev_b32 v{tmp+2}, 5, v{V_LANE}")
    P(f"v_lshl_add_u32 v{tmp+2}, v{tmp+2}, 4, s{S_T0}")
    if lane_sel is not None: P(f"v_add_u32 v{tmp+2}, s{lane_sel}, v{tmp+2}")
    P.wait_lg('biasw')
    return tmp + 2

def b_loads(o):
    L = []
    for g in range(7):
        for k in range(4):
            for ct in range(2):
                idx = (g * 4 + k) * 2 + ct
                L.append([(f"buffer_load_dwordx4 {ar(4*idx,4)}, v{V_BA+ct*2+(k>>1)}, {sr(SRD_WS,4)}, s{S_BT[g]} offen offset:{(k&1)*2048} {SC}", 'bld')])
    for k in range(4):
        for ct in range(2):
            idx = 56 + k * 2 + ct
            L.append([(f"buffer_load_dwordx4 {ar(4*idx,4)}, v{V_BA+ct*2+(k>>1)}, {sr(SRD_WS,4)}, s{S_BOFF} offen offset:{(k&1)*2048} {SC}", 'bld')])
    return L

V_BA = 216
V_AA = 220

def stage1(P, o, bl):
    stage1_setup(P, o)
    P(f"s_lshl_b32 s{S_T0}, s{S_B}, 8")
    P(f"v_lshl_add_u32 v{V_T}, v{V_LANE}, 2, s{S_T0}")
    P(f"global_load_dword v15, v{V_T}, {sr(S_B1)}", tag='b1')
    for c in range(3):
        for it in s1_dma(c, c): P.add(it)
    stage1_setup2(P, o)
    make_tag(P, o)
    stamp(P, o, 's1_issued')
    a = bias_to_acc(P, 15, ACC_F, 4, 12)
    for F in range(4):
        for q in range(4):
            P(f"ds_read_b128 {vr(ACC_F+16*F+4*q,4)}, v{a} offset:{(32*F+8*q)*4}")
    P.wait_vm('dma0')
    P("s_waitcnt lgkmcnt(0)")
    P("s_barrier")
    stamp(P, o, 's1_first')
    P.add(s1_reads(0, 0, 0))
    for c in range(7):
        for s in range(4):
            g = 4 * c + s
            fs = g & 1
            base = FR + 32 * fs
            P("s_waitcnt lgkmcnt(0)")
            if s == 3 and c < 6:
                P.wait_vm(f'dma{c+1}')
                P("s_barrier")
            M = []
            for t in range(7):
                acc = ACC_Q + 16 * t
                Cin = None if (g == 0 and t < 3) else acc
                M.append([mfma(acc, base + 4 + 4 * t, base, Cin)])
            rd = []
            if g < 27:
                nc, ns = (c, s + 1) if s < 3 else (c + 1, 0)
                rd = s1_reads(nc % 3, ns, fs ^ 1)
            ex = []
            cc, ph = (c, 0) if s == 3 else (c - 1, s + 1)
            if 0 <= cc and cc + 3 < 7:
                d = s1_dma(cc % 3, cc + 3)
                cut = [0, 4, 7, 11, 14]
                ex = d[cut[ph]:cut[ph + 1]]
            ex = ex + bl.get(g, [])
            seq = []
            per = [3, 3, 3, 3, 3, 0, 0]
            ri = 0; ei = 0
            for t in range(7):
                seq += M[t]
                seq += rd[ri:ri + per[t]]; ri += per[t]
                if t >= 3 and ei < len(ex):
                    seq += ex[ei]; ei += 1
            while ei < len(ex):
                seq += ex[ei]; ei += 1
            P.add(seq)
    stamp(P, o, 's1_loop')

def qkv_epilogue(P, o):
    c = (28.0 ** -0.5) * math.log2(math.e)
    PK = GT
    P(f"s_mul_i32 s{S_T0}, s{S_B}, 3")
    for t in range(3):
        acc = ACC_Q + 16 * t
        P(f"s_add_u32 s{S_T1}, s{S_T0}, {t}")
        P(f"s_cmp_lt_u32 s{S_T1}, 14")
        P(f"s_cselect_b32 s{S_T2}, {hex(f2u(c))}, 1.0")
        for i in range(8):
            P(f"v_pk_mul_f32 {vr(acc+2*i,2)}, {vr(acc+2*i,2)}, s[{S_T2}:{S_T3}] op_sel_hi:[1,0]")
        p = PK + 8 * t
        for i in range(8):
            P(f"v_cvt_pk_bf16_f32 v{p+i}, v{acc+2*i}, v{acc+2*i+1}")
        for h in range(2):
            P(f"v_permlane32_swap_b32 v{p+4*h}, v{p+4*h+2}")
            P(f"v_permlane32_swap_b32 v{p+4*h+1}, v{p+4*h+3}")
        for h in range(2):
            off = t * 2048 + h * 1024
            P(f"buffer_store_dwordx4 {vr(p+4*h,4)}, v{V_L16H if off >= 4096 else V_L16}, {sr(SRD_WS,4)}, s{S_QST} offen offset:{off & 4095} {SC}", tag='qst')

def gelu_tile(F):
    u = ACC_F + 16 * F
    t = GT + 32 + 16 * (F & 1)
    p = GT + 24 + 0
    p = 160 + 32 + 0
    L = []
    pr = lambda b, i: vr(b + 2 * i, 2)
    for i in range(8): L.append(f"v_pk_mul_f32 {pr(t,i)}, {pr(u,i)}, {pr(u,i)}")
    for i in range(8): L.append(f"v_pk_fma_f32 {pr(t,i)}, {pr(t,i)}, {vr(V_CA,2)}, {vr(V_CB,2)} op_sel_hi:[1,0,0]")
    for i in range(8): L.append(f"v_pk_mul_f32 {pr(t,i)}, {pr(t,i)}, {pr(u,i)}")
    for i in range(16): L.append(f"v_exp_f32 v{t+i}, v{t+i}")
    for i in range(8): L.append(f"v_pk_add_f32 {pr(t,i)}, {pr(t,i)}, 1.0 op_sel_hi:[1,0]")
    for i in range(16): L.append(f"v_rcp_f32 v{t+i}, v{t+i}")
    for i in range(8): L.append(f"v_pk_mul_f32 {pr(t,i)}, {pr(t,i)}, {pr(u,i)}")
    for i in range(8): L.append(f"v_cvt_pk_bf16_f32 v{u+i}, v{t+2*i}, v{t+2*i+1}")
    for h in range(2):
        off = (2 * F + h) * 1024
        L.append((f"buffer_store_dwordx4 {vr(u+4*h,4)}, v{V_L16H if off >= 4096 else V_L16}, {sr(SRD_WS,4)}, s{S_HST} offen offset:{off & 4095} {SC}", 'hst'))
    return L

def prep(P, o):
    T = V_T
    S_SP = S_RB
    P(f"s_sub_u32 s{S_SP}, s2, 224")
    P(f"s_lshl_b32 s{S_T4}, s{S_SP}, 2")
    P(f"s_add_u32 s{S_T4}, s{S_T4}, s{S_WAVE}")
    P(f"v_lshrrev_b32 v{T}, 2, v{V_LANE}")
    P(f"s_lshl_b32 s{S_T0}, s{S_T4}, 4")
    P(f"v_add_u32 v20, s{S_T0}, v{T}")
    P(f"v_mul_u32_u24 v{T}, 896, v20")
    P(f"v_and_b32 v{T+1}, 3, v{V_LANE}")
    P(f"v_lshlrev_b32 v{T+1}, 4, v{T+1}")
    P(f"v_add_u32 v{T}, v{T}, v{T+1}")
    P(f"v_lshrrev_b32 v21, 3, v{V_LANE}")
    P(f"v_and_b32 v22, 7, v{V_LANE}")
    P(f"v_bfe_u32 v23, v{V_LANE}, 4, 1")
    P(f"v_lshlrev_b32 v23, 2, v23")
    P(f"v_xor_b32 v22, v22, v23")
    P(f"v_lshlrev_b32 v22, 4, v22")
    P(f"s_lshl_b32 s{S_TAB+20}, s{S_WAVE}, 14")
    srd(P, SRD_WQ, S_WO, 448 * 896)
    for i in range(8):
        it, ks, cc = S_TAB + 21, S_TAB + i, S_TAB + 8 + i
        P(f"s_lshl_b32 s{it}, s{S_T4}, 3")
        P(f"s_add_u32 s{it}, s{it}, {i}")
        P(f"s_min_u32 s{it}, s{it}, 1007")
        P(f"s_mul_i32 s{ks}, s{it}, 9363")
        P(f"s_lshr_b32 s{ks}, s{ks}, 16")
        P(f"s_mul_i32 s{cc}, s{ks}, 7")
        P(f"s_sub_u32 s{cc}, s{it}, s{cc}")
        P(f"s_add_u32 m0, s{S_TAB+20}, {i*2048}")
        P(f"s_cmp_lt_u32 s{ks}, 112")
        P(f"s_cbranch_scc0 L_prep_o{i}")
        P(f"s_lshl_b32 s{S_T0}, s{ks}, 4")
        P(f"v_add_u32 v24, s{S_T0}, v21")
        P(f"v_mul_u32_u24 v24, 896, v24")
        P(f"v_add_u32 v24, v24, v22")
        P(f"v_add_u32 v25, {8*896-1024}, v24")
        P(f"s_lshl_b32 s{S_T0}, s{cc}, 7")
        P(f"buffer_load_dwordx4 v24, {sr(SRD_P,4)}, s{S_T0} offen lds")
        P(f"buffer_load_dwordx4 v25, {sr(SRD_P,4)}, s{S_T0} offen offset:1024 lds")
        P(f"s_branch L_prep_n{i}")
        P(f"L_prep_o{i}:")
        P(f"s_sub_u32 s{S_T0}, s{ks}, 112")
        P(f"s_lshr_b32 s{S_T1}, s{S_T0}, 1")
        P(f"s_and_b32 s{S_T0}, s{S_T0}, 1")
        P(f"s_lshl_b32 s{S_T0}, s{S_T0}, 4")
        P(f"s_mul_i32 s{S_T2}, s{S_T1}, 7")
        P(f"s_lshr_b32 s{S_T2}, s{S_T2}, 1")
        P(f"s_lshl_b32 s{S_T2}, s{S_T2}, 3")
        P(f"s_add_u32 s{S_T2}, s{S_T2}, s{S_T0}")
        P(f"s_mul_i32 s{S_T1}, s{S_T1}, 28")
        for hh in range(2):
            P(f"v_add_u32 v26, s{S_T2}, v21")
            if hh: P(f"v_add_u32 v26, 8, v26")
            P(f"v_subrev_u32 v27, s{S_T1}, v26")
            P(f"v_cmp_gt_u32 vcc, 28, v27")
            P(f"v_mul_u32_u24 v26, 896, v26")
            P(f"v_add_u32 v26, v26, v22")
            if hh: P(f"v_subrev_u32 v26, 1024, v26")
            P(f"v_mov_b32 v27, 0x7fff0000")
            P(f"v_cndmask_b32 v{24+hh}, v27, v26, vcc")
        P(f"s_lshl_b32 s{S_T0}, s{cc}, 7")
        P(f"buffer_load_dwordx4 v24, {sr(SRD_WQ,4)}, s{S_T0} offen lds")
        P(f"buffer_load_dwordx4 v25, {sr(SRD_WQ,4)}, s{S_T0} offen offset:1024 lds")
        P(f"L_prep_n{i}:")
    for i in range(14):
        P(f"buffer_load_dwordx4 {vr(32+4*i,4)}, v{T}, {sr(SRD_X,4)}, 0 offen offset:{64*i}")
    for i in range(14):
        P(f"global_load_dwordx4 {vr(96+4*i,4)}, v{T+1}, {sr(S_GW)} offset:{64*i}")
    make_tag(P, o)
    P(f"v_bfe_u32 v21, v{V_LANE}, 2, 2")
    P(f"v_lshrrev_b32 v22, 5, v{V_LANE}")
    P(f"v_lshl_add_u32 v22, v22, 2, v21")
    P(f"v_lshlrev_b32 v22, 7, v22")
    P(f"v_bfe_u32 v23, v{V_LANE}, 4, 1")
    P(f"v_lshl_add_u32 v22, v23, 5, v22")
    P(f"v_and_b32 v23, 3, v{V_LANE}")
    P(f"v_lshl_add_u32 v22, v23, 3, v22")
    P(f"v_add_u32 v22, s{S_TAB+20}, v22")
    P(f"v_lshrrev_b32 v21, 1, v21")
    P(f"v_lshl_add_u32 v23, v21, 6, v22")
    P(f"v_xor_b32 v21, 1, v21")
    P(f"v_lshl_add_u32 v22, v21, 6, v22")
    P("s_waitcnt vmcnt(28)")
    for i in range(8):
        ks, cc = S_TAB + i, S_TAB + 8 + i
        d = 160 + 8 * i
        for ct in range(2):
            for rho in range(2):
                P(f"ds_read_b64_tr_b16 {vr(d+4*ct+2*rho,2)}, v{23-ct} offset:{i*2048 + rho*1024}")
        P(f"s_mul_i32 s{S_T0}, s{cc}, {BP_C}")
        P(f"s_lshl_b32 s{S_T1}, s{ks}, 11")
        P(f"s_add_u32 s{S_T0}, s{S_T0}, s{S_T1}")
        P(f"s_add_u32 s{ks}, s{S_T0}, {BP_OFF}")
    for i in range(8):
        d = 160 + 8 * i
        for ct in range(2):
            P(f"buffer_store_dwordx4 {vr(d+4*ct,4)}, v{V_L16}, {sr(SRD_WS,4)}, s{S_TAB+i} offen offset:{ct*1024} {SC}")
    P("v_mov_b32 v24, 0")
    P("v_mov_b32 v25, 0")
    for i in range(56):
        P(f"v_dot2_f32_bf16 v{24+(i&1)}, v{32+i}, v{96+i}, v{24+(i&1)}")
    P("s_nop 2")
    P("v_add_f32 v24, v24, v25")
    P("v_add_f32_dpp v24, v24, v24 quad_perm:[1,0,3,2] row_mask:0xf bank_mask:0xf")
    P("v_add_f32_dpp v24, v24, v24 quad_perm:[2,3,0,1] row_mask:0xf bank_mask:0xf")
    P(f"v_mul_f32 v24, {hex(f2u(-math.log2(math.e)))}, v24")
    P("v_exp_f32 v24, v24")
    P("v_add_f32 v24, 1.0, v24")
    P("v_rcp_f32 v24, v24")
    P(f"v_lshlrev_b32 v20, 2, v20")
    P(f"v_and_b32 v25, 3, v{V_LANE}")
    P(f"v_cmp_eq_u32 vcc, 0, v25")
    P(f"v_mov_b32 v27, 0x7fff0000")
    P(f"v_cndmask_b32 v20, v27, v20, vcc")
    P(f"s_mov_b32 s{S_T0}, {G_OFF}")
    P(f"buffer_store_dword v24, v20, {sr(SRD_WS,4)}, s{S_T0} offen {SC}")
    P("s_waitcnt vmcnt(0) lgkmcnt(0)")
    P("s_barrier")
    if o.fused:
        P(f"s_lshl_b32 s{S_T0}, s{S_SP}, 7")
        P(f"s_add_u32 s{S_T0}, s{S_T0}, {FL_PREP}")
        P(f"s_cmp_eq_u32 s{S_WAVE}, 0")
        P("s_cbranch_scc0 L_prep_nf")
        P.add(flag_store(o, S_T0))
        P("L_prep_nf:")

AQ = 16
AK = 24
AV = 40
AS = 64
AN = 112
AO = 128
AP = 144
AM = 168
A_KR, A_VR = 176, 177
A_KD, A_VD = 179, 180
A_PA, A_PV = 182, 183
A_G = 186
A_MX = 187

def att_scalars(P, o):
    P(f"s_and_b32 s{S_RB}, s{S_SLOT}, 15")
    P(f"s_lshr_b32 s{S_J}, s{S_SLOT}, 4")
    P(f"s_lshl_b32 s{S_T0}, s{S_XCD}, 1")
    P(f"s_add_u32 s{S_J}, s{S_J}, s{S_T0}")
    P(f"s_lshl_b32 s{S_TB}, s{S_RB}, 2")
    P(f"s_add_u32 s{S_TB}, s{S_TB}, s{S_WAVE}")
    P(f"s_and_b32 s{S_PAR}, s{S_J}, 1")

def att_poll_addr(P, o):
    if not o.fused: return
    T = V_T
    P(f"v_min_u32 v{T}, 13, v{V_LANE}")
    P(f"v_lshrrev_b32 v{T+1}, 1, v{T}")
    P(f"v_and_b32 v{T}, 1, v{T}")
    P(f"s_mul_i32 s{S_T0}, s{S_J}, 7")
    P(f"s_lshr_b32 s{S_T0}, s{S_T0}, 1")
    P(f"s_lshl_b32 s{S_T0}, s{S_T0}, 3")
    P(f"v_mad_u32_u24 v{T}, v{T}, 31, s{S_T0}")
    P(f"v_cmp_gt_u32 vcc, 3, v{T+1}")
    P(f"v_mov_b32 v{T+2}, 896")
    P(f"v_mov_b32 v{T+3}, 448")
    P(f"v_cndmask_b32 v{T+2}, v{T+2}, v{T+3}, vcc")
    P(f"v_subrev_u32 v{T+3}, 3, v{T+1}")
    P(f"v_cndmask_b32 v{T+3}, v{T+3}, v{T+1}, vcc")
    P(f"v_cmp_eq_u32 vcc, 6, v{T+1}")
    P(f"s_mul_i32 s{S_T1}, s{S_WAVE}, 3")
    P(f"s_lshl_b32 s{S_T2}, s{S_RB}, 2")
    P(f"s_add_u32 s{S_T1}, s{S_T1}, s{S_T2}")
    P(f"s_sub_u32 s{S_T1}, s{S_T1}, 8")
    P(f"v_cndmask_b32_e64 v{T+2}, v{T+2}, 0, vcc")
    P(f"v_add_u32 v{T}, v{T}, v{T+2}")
    P(f"v_mul_u32_u24 v{T}, 683, v{T}")
    P(f"v_lshrrev_b32 v{T}, 16, v{T}")
    P(f"v_add_u32 v{T+3}, s{S_T1}, v{T+3}")
    P(f"v_max_i32 v{T+3}, 0, v{T+3}")
    P(f"v_mov_b32 v{T+2}, s{S_TB}")
    P(f"v_cndmask_b32 v{T+3}, v{T+3}, v{T+2}, vcc")
    P(f"v_lshl_add_u32 v{T}, v{T+3}, 4, v{T}")
    P(f"v_lshlrev_b32 v{T}, 7, v{T}")
    P(f"v_add_u32 v{V_PA}, {FL_QKV}, v{T}")

def att_addr(P, o):
    T = V_T
    P(f"s_mul_i32 s{S_T0}, s{S_J}, 7")
    P(f"s_lshr_b32 s{S_T0}, s{S_T0}, 1")
    P(f"s_lshl_b32 s{S_T4}, s{S_T0}, 9")
    P(f"s_add_u32 s{S_T1}, s{S_T4}, {56*512}")
    P(f"v_add_u32 v{A_KD}, s{S_T1}, v{V_L16}")
    P(f"v_lshrrev_b32 v{T}, 5, v{V_LANE}")
    P(f"v_and_b32 v{T+1}, 31, v{V_LANE}")
    P(f"s_add_u32 s{S_T1}, s{S_T4}, {112*512 - 2048}")
    for t in range(2):
        P(f"v_lshlrev_b32 v{T+2}, 2, v{T}")
        P(f"v_xor_b32 v{T+2}, v{T+2}, v{T+1}")
        if t: P(f"v_xor_b32 v{T+2}, 8, v{T+2}")
        P(f"v_lshlrev_b32 v{T+2}, 4, v{T+2}")
        P(f"v_lshl_add_u32 v{T+2}, v{T}, 9, v{T+2}")
        P(f"v_add_u32 v{A_VD+t}, s{S_T1}, v{T+2}")
    P(f"s_lshl_b32 s{S_T1}, s{S_WAVE}, 12")
    P(f"v_add_u32 v{A_KR}, s{S_T1}, v{V_L16}")
    P(f"v_bfe_u32 v{T+1}, v{V_LANE}, 4, 1")
    P(f"v_bfe_u32 v{T+2}, v{V_LANE}, 1, 1")
    P(f"v_lshl_add_u32 v{T+3}, v{T+1}, 1, v{T+2}")
    P(f"v_lshlrev_b32 v{T+4}, 9, v{T+3}")
    P(f"v_xor_b32 v{T+3}, v{T+3}, v{T}")
    P(f"v_lshl_add_u32 v{T+4}, v{T+3}, 6, v{T+4}")
    P(f"v_bfe_u32 v{T+3}, v{V_LANE}, 2, 2")
    P(f"v_lshl_add_u32 v{T+4}, v{T+3}, 4, v{T+4}")
    P(f"v_and_b32 v{T+3}, 1, v{V_LANE}")
    P(f"v_lshl_add_u32 v{T+4}, v{T+3}, 3, v{T+4}")
    P(f"s_add_u32 s{S_T1}, s{S_T1}, 2048")
    P(f"v_add_u32 v{A_VR}, s{S_T1}, v{T+4}")
    P(f"v_xor_b32 v{A_VR+1}, 128, v{A_VR}")
    P(f"v_and_b32 v{T+1}, 31, v{V_LANE}")
    P(f"v_mul_u32_u24 v{T+2}, 12, v{T}")
    P(f"s_cmp_eq_u32 s{S_PAR}, 0")
    P(f"s_cselect_b32 s{S_T1}, -1, 0")
    P(f"s_cselect_b32 s{S_T2}, 1544, 0")
    P(f"v_and_b32 v{T+2}, s{S_T1}, v{T+2}")
    P(f"v_xor_b32 v{T+1}, v{T+1}, v{T+2}")
    P(f"v_lshlrev_b32 v{T+1}, 4, v{T+1}")
    P(f"v_lshl_add_u32 v{T+1}, v{T}, 11, v{T+1}")
    P(f"s_mul_i32 s{S_T3}, s{S_WAVE}, {3*4096}")
    P(f"s_add_u32 s{S_T2}, s{S_T2}, s{S_T3}")
    P(f"v_add_u32 v{A_PA}, s{S_T2}, v{T+1}")
    P(f"v_cmp_gt_u32 vcc, 32, v{V_LANE}")
    P(f"s_mul_i32 s{S_T1}, s{S_WAVE}, 3")
    P(f"s_lshl_b32 s{S_T2}, s{S_RB}, 2")
    P(f"s_add_u32 s{S_T1}, s{S_T1}, s{S_T2}")
    P(f"v_mov_b32 v{T+1}, 0x3f80")
    for k in range(3):
        P(f"s_add_u32 s{S_T2}, s{S_T1}, {k}")
        P(f"s_cmp_lt_u32 s{S_T2}, 8")
        P(f"s_cselect_b32 s{S_T2}, 0xf14a, 0")
        P(f"v_mov_b32 v{T+2}, s{S_T2}")
        P(f"v_cndmask_b32 v{A_PV+k}, v{T+1}, v{T+2}, vcc")
    for r in range(16):
        k0 = (r & 3) + 8 * (r >> 2)
        lo = (0xffffffff << k0) & 0xffffffff
        hi = (0xffffffff << (k0 + 4)) & 0xffffffff
        P(f"s_mov_b32 s{S_TAB+2*r}, {hex(lo)}")
        P(f"s_mov_b32 s{S_TAB+2*r+1}, {hex(hi)}")
    P(f"v_mov_b32 v{T+1}, 0xffff")
    P(f"v_mov_b32 v{T+2}, 0xffff0000")
    for i in range(8):
        P(f"v_cndmask_b32_e64 v{T+3}, 0, v{T+1}, {sr(S_TAB+4*i)}")
        P(f"v_cndmask_b32_e64 v{T+4}, 0, v{T+2}, {sr(S_TAB+4*i+2)}")
        P(f"v_or_b32 v{AM+i}, v{T+3}, v{T+4}")

def att_loads(P, o):
    P(f"s_mul_i32 s{S_T1}, s{S_WAVE}, 3")
    P(f"s_lshl_b32 s{S_T2}, s{S_RB}, 2")
    P(f"s_add_u32 s{S_T1}, s{S_T1}, s{S_T2}")
    P(f"s_mul_i32 s{S_T3}, s{S_WAVE}, {3*4096}")
    for k in range(3):
        P(f"s_add_i32 s{S_T2}, s{S_T1}, {k-8}")
        P(f"s_max_i32 s{S_T2}, s{S_T2}, 0")
        P(f"s_mul_i32 s{S_T2}, s{S_T2}, {QKV_TB}")
        P(f"s_add_u32 m0, s{S_T3}, {LKV + k*4096}")
        P(f"s_add_u32 s{S_T2}, s{S_T2}, {QKV_OFF}")
        for t in range(2):
            P(f"buffer_load_dwordx4 v{A_KD}, {sr(SRD_WS,4)}, s{S_T2} offen offset:{t*1024} {SC} lds", tag='kv')
        for t in range(2):
            P(f"buffer_load_dwordx4 v{A_VD+t}, {sr(SRD_WS,4)}, s{S_T2} offen offset:{2048+t*1024} {SC} lds", tag='kv')
    P(f"s_mul_i32 s{S_T2}, s{S_TB}, {QKV_TB}")
    P(f"s_add_u32 s{S_T2}, s{S_T2}, s{S_T4}")
    P(f"s_add_u32 s{S_T2}, s{S_T2}, {QKV_OFF}")
    for t in range(2):
        P(f"buffer_load_dwordx4 {vr(AQ+4*t,4)}, v{V_L16}, {sr(SRD_WS,4)}, s{S_T2} offen offset:{t*1024} {SC}")
    P(f"v_and_b32 v{V_T}, 31, v{V_LANE}")
    P(f"v_lshlrev_b32 v{V_T}, 2, v{V_T}")
    P(f"s_lshl_b32 s{S_T2}, s{S_TB}, 7")
    P(f"s_add_u32 s{S_T2}, s{S_T2}, {G_OFF}")
    P(f"buffer_load_dword v{A_G}, v{V_T}, {sr(SRD_WS,4)}, s{S_T2} offen {SC}")

def kread(i, buf):
    return [f"ds_read_b128 {vr(AK+8*buf+4*t,4)}, v{A_KR} offset:{LKV + i*4096 + t*1024}" for t in range(2)]
def vread(i, buf):
    return [f"ds_read_b64_tr_b16 {vr(AV+8*buf+4*t+2*rho,2)}, v{A_VR+rho} offset:{LKV + i*4096 + t*256}" for t in range(2) for rho in range(2)]
def qk(i, sbuf, kbuf, c):
    s = AS + 16 * sbuf
    return [mfma(s, AK + 8 * kbuf, AQ, c), mfma(s, AK + 8 * kbuf + 4, AQ + 4, s)]

def attention(P, o, fill):
    T = V_T
    P.wait_vm('kv')
    for k in range(3):
        P(f"ds_write_b16 v{A_PA}, v{A_PV+k} offset:{LKV + k*4096}")
    P(f"s_cmp_eq_u32 s{S_PAR}, 0")
    P(f"s_cselect_b32 s{S_T0}, 0, -1")
    P(f"s_mov_b32 s{S_T1}, 0")
    P(f"s_mov_b32 s{S_T2}, 0")
    P(f"s_cselect_b32 s{S_T3}, -1, 0")
    P(f"v_mov_b32 v{T}, 0x3f80")
    P(f"v_cndmask_b32_e64 v{AQ}, v{AQ}, v{T}, {sr(S_T0)}")
    P(f"v_cndmask_b32_e64 v{AQ+1}, v{AQ+1}, 0, {sr(S_T0)}")
    P(f"v_cndmask_b32_e64 v{AQ+6}, v{AQ+6}, v{T}, {sr(S_T2)}")
    P(f"v_cndmask_b32_e64 v{AQ+7}, v{AQ+7}, 0, {sr(S_T2)}")
    P("s_waitcnt lgkmcnt(0)")
    P("s_barrier")
    stamp(P, o, 'att_go')
    order = [0, 8, 1, 2, 3, 4, 5, 6, 7]
    sb = lambda n: n % 4
    P.add(kread(order[0], 0)); P.add(kread(order[1], 1))
    def maxops(s, first):
        L = []
        for i in range(8):
            if first and i == 0: L.append(f"v_max_f32 v{A_MX}, v{s}, v{s+1}")
            else: L.append(f"v_max3_f32 v{A_MX}, v{s+2*i}, v{s+2*i+1}, v{A_MX}")
        return L
    merge = [f"v_cndmask_b32_e64 v{AS+16+r}, v{AS+r}, v{AS+16+r}, {sr(S_TAB+2*r)}" for r in range(16)]
    for n in range(9):
        m = qk(order[n], sb(n), n & 1, None)
        post = []
        if n == 3: post = merge
        if n == 4: post = maxops(AS + 16, True) + maxops(AS + 16 * sb(2), False)
        if n >= 5: post = maxops(AS + 16 * sb(n - 2), False)
        nxt = kread(order[n + 2], n & 1) if n + 2 < 9 else kread(order[n + 2 - 9], n & 1)
        h = len(post) // 2
        P.add([m[0]] + post[:h] + [m[1]] + nxt + post[h:])
    P.add(vread(0, 0)); P.add(vread(8, 1))
    P.add(maxops(AS + 16 * sb(7), False))
    P.add(maxops(AS + 16 * sb(8), False))
    P(f"v_mov_b32 v{T}, v{A_MX}")
    P(f"v_permlane32_swap_b32 v{A_MX}, v{T}")
    P(f"v_max_f32 v{A_MX}, v{A_MX}, v{T}")
    P(f"v_sub_f32 v{AN}, 0, v{A_MX}")
    P(f"v_sub_f32 v{AN+1}, 0, v{A_MX}")
    for i in range(1, 8): P(f"v_mov_b64 {vr(AN+2*i,2)}, {vr(AN,2)}")
    stamp(P, o, 'att_p1')
    kb = lambda n: (n + 1) & 1
    def expcvt(s, p):
        L = []
        for i in range(8):
            L += [f"v_exp_f32 v{s+2*i}, v{s+2*i}", f"v_exp_f32 v{s+2*i+1}, v{s+2*i+1}"]
            if i >= 1: L.append(f"v_cvt_pk_bf16_f32 v{p+i-1}, v{s+2*i-2}, v{s+2*i-1}")
        L.append(f"v_cvt_pk_bf16_f32 v{p+7}, v{s+14}, v{s+15}")
        return L
    def pv(p, vbuf, first=False):
        return [mfma(AO, AV + 8 * vbuf, p, None if first else AO), mfma(AO, AV + 8 * vbuf + 4, p + 4, AO)]
    m0 = qk(0, 0, kb(0), AN); m1 = qk(8, 1, kb(1), AN)
    P.add(m0 + kread(order[2], kb(2)) + m1 + kread(order[3], kb(3)))
    m2 = qk(order[2], 2, kb(2), AN)
    P.add([m2[0], m2[1]] + merge)
    ec = expcvt(AS + 16, AP)
    sp = []
    for i in range(8):
        sp += [f"v_and_b32 v{AP+8+i}, v{AP+i}, v{AM+i}", f"v_xor_b32 v{AP+16+i}, v{AP+i}, v{AP+8+i}"]
    m3 = qk(order[3], 0, kb(3), AN)
    P.add(kread(order[4], kb(4)) + ec[:8] + [m3[0]] + ec[8:16] + [m3[1]] + kread(order[5], kb(5)) + ec[16:] + sp)
    pend = pv(AP + 16, 0, True) + pv(AP + 8, 1)
    pend_rd = vread(order[2], 0) + vread(order[3], 1)
    sbuf2 = lambda n: n % 3
    for n in range(2, 9):
        p = AP if (n & 1) == 0 else AP + 8
        if n == 2: p = AP
        ec = expcvt(AS + 16 * sbuf2(n), p if n != 3 else AP + 16)
        if n == 3: p = AP + 16
        mq = qk(order[n + 2], sbuf2(n + 2), kb(n + 2), AN) if n + 2 < 9 else []
        kr = kread(order[n + 4], kb(n + 4)) if n + 4 < 9 else []
        ms = pend + mq
        seq = []
        k = len(ms)
        step = max(1, len(ec) // max(k, 1))
        ei = 0
        for j, mm in enumerate(ms):
            seq.append(mm)
            if j == len(pend) - 1: seq += pend_rd
            if j == k - 1 and mq: seq += kr
            take = ec[ei:ei + step] if j < k - 1 else ec[ei:]
            seq += take; ei += len(take)
        P.add(seq)
        vb = n & 1
        pend = pv(p, vb)
        pend_rd = vread(order[n + 2], vb) if n + 2 < 9 else []
    P.add(pend)
    stamp(P, o, 'att_p2')
    P(f"s_cmp_eq_u32 s{S_PAR}, 0")
    P(f"s_cselect_b64 {sr(S_T0)}, -1, 0")
    P(f"s_mul_i32 s{S_T2}, s{S_TB}, {A_TB}")
    P(f"s_lshl_b32 s{S_T3}, s{S_J}, 11")
    P(f"s_add_u32 s{S_T2}, s{S_T2}, s{S_T3}")
    P(f"s_add_u32 s{S_T2}, s{S_T2}, {A_OFF + 112*1024}")
    P(f"v_cndmask_b32_e64 v{T}, v{AO}, v{AO+12}, {sr(S_T0)}")
    P(f"v_mov_b32 v{T+1}, v{T}")
    P(f"v_permlane32_swap_b32 v{T}, v{T+1}")
    P(f"v_cndmask_b32_e64 v{T}, v{T}, v{T+1}, {sr(S_T0)}")
    P(f"v_rcp_f32 v{T}, v{T}")
    P(f"v_mul_f32 v{T+1}, v{T}, v{A_G}")
    for i in range(8):
        P(f"v_pk_mul_f32 {vr(AO+2*i,2)}, {vr(AO+2*i,2)}, {vr(T+1,2)} op_sel_hi:[1,0]")
    for i in range(8):
        P(f"v_cvt_pk_bf16_f32 v{AP+i}, v{AO+2*i}, v{AO+2*i+1}")
    for t in range(2):
        P(f"buffer_store_dwordx4 {vr(AP+4*t,4)}, v{V_L16}, {sr(SRD_WS,4)}, s{S_T2} offen offset:{t*1024} {SC}", tag='ost')

LACC = 16
LA = 80
NA = 16
L_G = 208
L_RW = 224
L_RR = 227
L_OA = 228
S_AT = 72

def last_baddr(P, o):
    T = V_T
    P(f"s_mul_i32 s{S_T0}, s{S_C}, {BP_C}")
    P(f"s_add_u32 s{S_T0}, s{S_T0}, {BP_OFF}")
    P(f"s_lshl_b32 s{S_T1}, s{S_WAVE}, 14")
    P(f"s_add_u32 s{S_BOFF}, s{S_T0}, {112*2048}")
    P(f"s_add_u32 s{S_BOFF}, s{S_BOFF}, s{S_T1}")
    P(f"s_mul_i32 s{S_T1}, s{S_WAVE}, {28*2048}")
    P(f"s_add_u32 s{S_T0}, s{S_T0}, s{S_T1}")
    P(f"s_mov_b32 s{S_T1}, s{S_ROT}")
    for g in range(7):
        P(f"s_lshl_b32 s{S_T2}, s{S_T1}, 13")
        P(f"s_add_u32 s{S_BT[g]}, s{S_T0}, s{S_T2}")
        if g < 6:
            P(f"s_add_u32 s{S_T1}, s{S_T1}, 1")
            P(f"s_cmp_eq_u32 s{S_T1}, 7")
            P(f"s_cselect_b32 s{S_T1}, 0, s{S_T1}")
    P(f"s_lshr_b32 s{S_T0}, s{S_WAVE}, 1")
    P(f"s_lshl_b32 s{S_T0}, s{S_T0}, 10")
    P(f"s_xor_b32 s{S_T1}, s{S_T0}, 1024")
    P(f"v_add_u32 v{V_BA}, s{S_T1}, v{V_L16}")
    P(f"v_add_u32 v{V_BA+1}, s{S_T1}, v{V_L16H}")
    P(f"v_add_u32 v{V_BA+2}, s{S_T0}, v{V_L16}")
    P(f"v_add_u32 v{V_BA+3}, s{S_T0}, v{V_L16H}")

def last_setup(P, o):
    T = V_T
    P(f"s_lshl_b32 s{S_T0}, s{S_C}, 7")
    P(f"v_and_b32 v{T}, 31, v{V_LANE}")
    P(f"v_lshl_add_u32 v{T+1}, v{T}, 2, s{S_T0}")
    P(f"global_load_dword v15, v{T+1}, {sr(S_B2)}")
    P(f"s_and_b32 s{S_T1}, s{S_WAVE}, 1")
    P(f"s_lshl_b32 s{S_T0}, s{S_R}, 8")
    P(f"s_add_u32 s{S_T0}, s{S_T0}, {G_OFF}")
    P(f"s_lshl_b32 s{S_T2}, s{S_T1}, 7")
    P(f"s_xor_b32 s{S_T3}, s{S_T2}, 128")
    P(f"s_add_u32 s{S_T2}, s{S_T2}, s{S_T0}")
    P(f"s_add_u32 s{S_T3}, s{S_T3}, s{S_T0}")
    P(f"v_lshlrev_b32 v{T+1}, 2, v{T}")
    P(f"buffer_load_dword v{L_G}, v{T+1}, {sr(SRD_WS,4)}, s{S_T3} offen {SC}")
    P(f"buffer_load_dword v{L_G+2}, v{T+1}, {sr(SRD_WS,4)}, s{S_T2} offen {SC}")
    P(f"s_mul_i32 s{S_T2}, s{S_T1}, {A_TB}")
    P(f"s_sub_u32 s{S_T3}, {A_TB}, s{S_T2}")
    P(f"v_add_u32 v{V_AA}, s{S_T3}, v{V_L16}")
    P(f"v_add_u32 v{V_AA+1}, s{S_T2}, v{V_L16}")
    P(f"s_mul_i32 s{S_T0}, s{S_R}, {2*A_TB}")
    P(f"s_add_u32 s{S_T0}, s{S_T0}, {A_OFF}")
    P(f"s_lshl_b32 s{S_T2}, s{S_WAVE}, 13")
    P(f"s_add_u32 s{S_AT+7}, s{S_T0}, s{S_T2}")
    P(f"s_add_u32 s{S_AT+7}, s{S_AT+7}, {112*1024}")
    P(f"s_add_u32 s{S_AT+8}, s{S_AT+7}, 4096")
    P(f"s_add_u32 s{S_AT+9}, s{S_BOFF}, 8192")
    P(f"s_mul_i32 s{S_T2}, s{S_WAVE}, {28*1024}")
    P(f"s_add_u32 s{S_T0}, s{S_T0}, s{S_T2}")
    P(f"s_mov_b32 s{S_T2}, s{S_ROT}")
    for g in range(7):
        P(f"s_lshl_b32 s{S_T3}, s{S_T2}, 12")
        P(f"s_add_u32 s{S_AT+g}, s{S_T0}, s{S_T3}")
        if g < 6:
            P(f"s_add_u32 s{S_T2}, s{S_T2}, 1")
            P(f"s_cmp_eq_u32 s{S_T2}, 7")
            P(f"s_cselect_b32 s{S_T2}, 0, s{S_T2}")
    if o.fused:
        P(f"v_and_b32 v{T+1}, 1, v{V_LANE}")
        P(f"s_lshl_b32 s{S_T0}, s{S_R}, 1")
        P(f"v_add_u32 v{T+1}, s{S_T0}, v{T+1}")
        P(f"v_lshlrev_b32 v{T+1}, 4, v{T+1}")
        P(f"v_bfe_u32 v{T+2}, v{V_LANE}, 1, 2")
        P(f"v_add_u32 v{T+1}, v{T+1}, v{T+2}")
        P(f"v_lshlrev_b32 v{T+1}, 7, v{T+1}")
        P(f"s_mul_i32 s{S_T0}, s{S_WAVE}, 7")
        P(f"s_lshr_b32 s{S_T0}, s{S_T0}, 1")
        P(f"s_lshl_b32 s{S_T0}, s{S_T0}, 7")
        P(f"s_add_u32 s{S_T0}, s{S_T0}, {FL_H}")
        P(f"v_add_u32 v{V_PA}, s{S_T0}, v{T+1}")
        P(f"s_lshl_b32 s{S_T0}, s{S_WAVE}, 9")
        P(f"s_add_u32 s{S_T0}, s{S_T0}, {FL_O}")
        P(f"v_add_u32 v{L_OA+1}, s{S_T0}, v{T+1}")
    for d in range(1, 4):
        P(f"s_xor_b32 s{S_T0}, s{S_WAVE}, {d}")
        P(f"s_mul_i32 s{S_T0}, s{S_T0}, 12288")
        P(f"s_add_u32 s{S_T0}, s{S_T0}, {LRED + (d-1)*4096}")
        P(f"v_add_u32 v{L_RW+d-1}, s{S_T0}, v{V_L16}")
    P(f"s_mul_i32 s{S_T0}, s{S_WAVE}, 12288")
    P(f"s_add_u32 s{S_T0}, s{S_T0}, {LRED}")
    P(f"v_add_u32 v{L_RR}, s{S_T0}, v{V_L16}")
    P(f"s_lshl_b32 s{S_T0}, s{S_R}, 6")
    P(f"s_lshl_b32 s{S_T2}, s{S_T1}, 5")
    P(f"s_add_u32 s{S_T0}, s{S_T0}, s{S_T2}")
    P(f"v_add_u32 v{T+1}, s{S_T0}, v{T}")
    P(f"v_mul_u32_u24 v{T+1}, 896, v{T+1}")
    P(f"v_lshrrev_b32 v{T+2}, 5, v{V_LANE}")
    P(f"v_lshl_add_u32 v{T+1}, v{T+2}, 4, v{T+1}")
    P(f"s_lshl_b32 s{S_T0}, s{S_C}, 7")
    P(f"s_lshr_b32 s{S_T2}, s{S_WAVE}, 1")
    P(f"s_lshl_b32 s{S_T2}, s{S_T2}, 6")
    P(f"s_add_u32 s{S_T0}, s{S_T0}, s{S_T2}")
    P(f"v_add_u32 v{L_OA}, s{S_T0}, v{T+1}")
    P(f"s_cmp_eq_u32 s{S_WAVE}, 0")
    P(f"s_cselect_b32 s{S_T3}, -1, 0")
    P(f"v_and_b32 v15, s{S_T3}, v15")
    a = bias_to_acc(P, 15, LACC, 2, 12)
    P(f"s_lshr_b32 s{S_T2}, s{S_WAVE}, 1")
    P(f"s_lshl_b32 s{S_T2}, s{S_T2}, 7")
    P(f"s_xor_b32 s{S_T3}, s{S_T2}, 128")
    P(f"v_add_u32 v{a-1}, s{S_T3}, v{a}")
    P(f"v_add_u32 v{a}, s{S_T2}, v{a}")
    for ttl in range(2):
        for ctl in range(2):
            for q in range(4):
                P(f"ds_read_b128 {vr(LACC+32*ttl+16*ctl+4*q,4)}, v{a-1+ctl} offset:{32*q}")
    P(f"v_sub_f32 v{L_G}, 1.0, v{L_G}")
    P(f"v_sub_f32 v{L_G+2}, 1.0, v{L_G+2}")

def a_load(n):
    L = []
    for ttl in range(2):
        d = LA + 8 * (n % NA) + 4 * ttl
        if n < 28:
            L.append((f"buffer_load_dwordx4 {vr(d,4)}, v{V_AA+ttl}, {sr(SRD_WS,4)}, s{S_AT+(n>>2)} offen offset:{(n&3)*1024} {SC}", 'ald'))
        else:
            k = n - 28
            L.append((f"buffer_load_dwordx4 {vr(d,4)}, v{V_AA+ttl}, {sr(SRD_WS,4)}, s{S_AT+7+(k>>2)} offen offset:{(k&3)*1024} {SC}", 'ald'))
    return L

def breg(n, ctl):
    if n < 32: return 4 * (2 * n + ctl)
    return 4 * (2 * (n - 32) + ctl)

def last(P, o):
    q = lambda ttl, ctl: LACC + 32 * ttl + 16 * ctl
    poll(P, o, V_PA)
    if o.fused:
        P(f"s_lshl_b32 s{S_T0}, s{S_TB}, 4")
        P(f"s_add_u32 s{S_T0}, s{S_T0}, s{S_J}")
        P(f"s_lshl_b32 s{S_T0}, s{S_T0}, 7")
        P(f"s_add_u32 s{S_T0}, s{S_T0}, {FL_O}")
        P.add(flag_store(o, S_T0))
    stamp(P, o, 'last_go')
    for n in range(NA): P.add(a_load(n))
    for n in range(28):
        a = LA + 8 * (n % NA)
        M = [mfma(q(ttl, ctl), breg(n, ctl), a + 4 * ttl, q(ttl, ctl), 'a') for ttl in range(2) for ctl in range(2)]
        ex = []
        if n + NA < 28: ex = a_load(n + NA)
        if 4 <= n < 8:
            k = n
            ex = ex + [(f"buffer_load_dwordx4 {ar(breg(28+k, ct),4)}, v{V_BA+ct*2+((k-4)>>1)}, {sr(SRD_WS,4)}, s{S_AT+9} offen offset:{((k-4)&1)*2048} {SC}", 'bld2') for ct in range(2)]
        P.add(M + ex)
    stamp(P, o, 'last_h')
    if o.fused:
        P(f"v_mov_b32 v{V_PA}, v{L_OA+1}")
        poll(P, o, V_PA)
    for n in range(28, 36): P.add(a_load(n))
    sc = lambda ttl, ctl: [f"v_mul_f32 v{q(ttl,ctl)+i}, v{L_G+2*ttl}, v{q(ttl,ctl)+i}" for i in range(16)]
    P.add(sc(0, 0) + sc(0, 1) + sc(1, 0) + sc(1, 1))
    stamp(P, o, 'last_ogo')
    wr = lambda ttl, ctl: [f"ds_write_b128 v{L_RW + ((1-ttl) | ((1-ctl) << 1)) - 1}, {vr(q(ttl,ctl)+4*i,4)} offset:{i*1024}" for i in range(4)]
    mm = lambda n, ttl, ctl: mfma(q(ttl, ctl), breg(n, ctl), LA + 8 * (n % NA) + 4 * ttl, q(ttl, ctl), 'a')
    for n in range(28, 36): P.add([mm(n, 0, 0), mm(n, 0, 1)])
    w = wr(0, 0) + wr(0, 1)
    seq = []
    for i, n in enumerate(range(28, 36)):
        seq.append(mm(n, 1, 0))
        if i >= 2: seq += w[:2]; w = w[2:]
    seq += w
    w = wr(1, 0)
    for i, n in enumerate(range(28, 36)):
        seq.append(mm(n, 1, 1))
        if i >= 3 and w: seq.append(w.pop(0))
    P.add(seq + w)
    P("s_waitcnt lgkmcnt(0)")
    P("s_barrier")
    R = LA
    for d in range(3):
        for i in range(4):
            P(f"ds_read_b128 {vr(R+16*d+4*i,4)}, v{L_RR} offset:{d*4096 + i*1024}")
    o_ = q(1, 1)
    for d in range(3):
        for i in range(8):
            P(f"v_pk_add_f32 {vr(o_+2*i,2)}, {vr(o_+2*i,2)}, {vr(R+16*d+2*i,2)}")
    p = R + 48
    for i in range(8): P(f"v_cvt_pk_bf16_f32 v{p+i}, v{o_+2*i}, v{o_+2*i+1}")
    for h in range(2):
        P(f"v_permlane32_swap_b32 v{p+4*h}, v{p+4*h+2}")
        P(f"v_permlane32_swap_b32 v{p+4*h+1}, v{p+4*h+3}")
    for h in range(2):
        P(f"buffer_store_dwordx4 {vr(p+4*h,4)}, v{L_OA}, {sr(SRD_OUT,4)}, 0 offen offset:{32*h}")
    stamp(P, o, 'end')

HEADER = open('cdna_kernels/' + NAME + '.s.ref').read().split('; Override launch')[0]

def kernel_text(name, L):
    return f".globl {name}\n.p2align 8\n.type {name},@function\n{name}:\n" + text(L)

def descriptor(name):
    return f""".p2align 6
.amdhsa_kernel {name}
  .amdhsa_next_free_vgpr 512
  .amdhsa_next_free_sgpr 102
  .amdhsa_accum_offset 256
  .amdhsa_group_segment_fixed_size 0
  .amdhsa_kernarg_size 96
  .amdhsa_user_sgpr_count 2
  .amdhsa_user_sgpr_kernarg_segment_ptr 1
  .amdhsa_system_sgpr_workgroup_id_x 1
.end_amdhsa_kernel
"""

def build_multi(o):
    o.fused = False
    o.stamp_names = []
    ks = []
    o.kidx = 0; stamp_idx[0] = 0; o.code_bytes = 16384
    P = Prog(); setup(P, o, "L_end1")
    stamp(P, o, 'k1_start')
    P(f"s_cmp_ge_u32 s{S_SLOT}, 28")
    P("s_cbranch_scc1 L_prep")
    stage1(P, o, {})
    qkv_epilogue(P, o)
    stamp(P, o, 'qkv_epi')
    for F in range(4): P.add(gelu_tile(F))
    stamp(P, o, 'gelu')
    stamp_flush(P, o)
    P("s_endpgm")
    P.forget()
    P("L_prep:")
    prep(P, o)
    P("L_end1:")
    P("s_endpgm")
    ks.append(("s1_kernel", finalize(P, True)))
    o.kidx = 1; stamp_idx[0] = 0; o.code_bytes = 8192
    P = Prog(); setup(P, o, "L_end2")
    stamp(P, o, 'k2_start')
    att_scalars(P, o); att_addr(P, o); att_loads(P, o); attention(P, o, [])
    stamp(P, o, 'att_end')
    stamp_flush(P, o)
    P("L_end2:")
    P("s_endpgm")
    ks.append(("att_kernel", finalize(P, True)))
    o.kidx = 2; stamp_idx[0] = 0; o.code_bytes = 8192
    P = Prog(); setup(P, o, "L_end3")
    stamp(P, o, 'k3_start')
    P(f"s_cmp_ge_u32 s{S_SLOT}, 28")
    P("s_cbranch_scc1 L_end3")
    last_baddr(P, o)
    last_setup(P, o)
    for it in b_loads(o): P.add(it)
    last(P, o)
    stamp_flush(P, o)
    P("L_end3:")
    P("s_endpgm")
    ks.append(("last_kernel", finalize(P, True)))
    out = HEADER
    for n, _ in ks: out += f"; @launch kernel={n} grid=(256,1,1) block=(256,1,1) lds={LDS_BYTES}\n"
    out += '.amdgcn_target "amdgcn-amd-amdhsa--gfx950"\n.text\n'
    for n, L in ks: out += kernel_text(n, L)
    out += ".fill 6144, 4, 0xbf800000\n"
    out += '.section .rodata,"a"\n'
    for n, _ in ks: out += descriptor(n)
    return out

V_PP = 230
def prep_poll_addr(P):
    P(f"v_and_b32 v{V_PP}, 31, v{V_LANE}")
    P(f"v_lshlrev_b32 v{V_PP}, 7, v{V_PP}")
    P(f"v_add_u32 v{V_PP}, {FL_PREP}, v{V_PP}")

def build_fused(o):
    o.fused = True
    o.stamp_names = []; o.kidx = 0; stamp_idx[0] = 0
    name = NAME + "_kernel"
    P = Prog(); setup(P, o, "L_end")
    stamp(P, o, 'start')
    prep_poll_addr(P)
    P(f"s_cmp_ge_u32 s{S_SLOT}, 28")
    P("s_cbranch_scc1 L_prep")
    hooks = {24: [poll_issue(o, V_PP, 232)]}
    stage1(P, o, hooks)
    P("s_barrier")
    qkv_epilogue(P, o)
    P(f"s_lshl_b32 s{S_T0}, s{S_TB}, 4")
    P(f"s_add_u32 s{S_T0}, s{S_T0}, s{S_B}")
    P(f"s_lshl_b32 s{S_T0}, s{S_T0}, 7")
    P(f"s_add_u32 s{S_QST}, s{S_T0}, {FL_QKV}")
    P(f"s_add_u32 s{S_B}, s{S_T0}, {FL_H}")
    last_baddr(P, o)
    poll_check(P, o, V_PP, 232)
    stamp(P, o, 'qkv_epi')
    bl = b_loads(o)
    nb = o.nb_gelu
    for F in range(4):
        g = gelu_tile(F)
        take = bl[:nb[F]]; bl = bl[nb[F]:]
        P.add(interleave([[x] for x in g[:-2]], take) + g[-2:])
        if F == o.qflag_after:
            P.wait_vm('qst'); P.add(flag_store(o, S_QST))
    stamp(P, o, 'gelu')
    for it in bl: P.add(it)
    att_scalars(P, o); att_poll_addr(P, o); att_addr(P, o)
    P.wait_vm('hst'); P.add(flag_store(o, S_B))
    stamp(P, o, 'hflag')
    P("L_att:")
    poll(P, o, V_PA)
    stamp(P, o, 'qkv_seen')
    att_loads(P, o)
    attention(P, o, [])
    stamp(P, o, 'att_end')
    P(f"s_cmp_ge_u32 s{S_SLOT}, 28")
    P("s_cbranch_scc1 L_spare_end")
    last_setup(P, o)
    last(P, o)
    stamp_flush(P, o)
    P("s_endpgm")
    P.forget()
    P("L_prep:")
    prep(P, o)
    poll(P, o, V_PP)
    att_scalars(P, o); att_poll_addr(P, o); att_addr(P, o)
    P("s_branch L_att")
    P.forget()
    P("L_spare_end:")
    P("s_waitcnt vmcnt(0)")
    P(f"s_lshl_b32 s{S_T0}, s{S_TB}, 4")
    P(f"s_add_u32 s{S_T0}, s{S_T0}, s{S_J}")
    P(f"s_lshl_b32 s{S_T0}, s{S_T0}, 7")
    P(f"s_add_u32 s{S_T0}, s{S_T0}, {FL_O}")
    P.add(flag_store(o, S_T0))
    stamp_flush(P, o)
    P(f"s_cmp_eq_u32 s2, 224")
    P("s_cbranch_scc0 L_end")
    P(f"s_cmp_eq_u32 s{S_WAVE}, 0")
    P("s_cbranch_scc0 L_end")
    P(f"v_lshlrev_b32 v{V_PA}, 7, v{V_LANE}")
    P(f"s_mov_b32 s{S_CNT}, 4000")
    P("L_ep:")
    for i in range(16):
        P(f"s_mov_b32 s{S_T0}, {FL_O + i*8192}")
        P(f"buffer_load_dwordx2 {vr(16+2*i,2)}, v{V_PA}, {sr(SRD_WS,4)}, s{S_T0} offen sc1")
    P("s_waitcnt vmcnt(0)")
    P(f"s_mov_b64 {sr(S_T0)}, 0")
    for i in range(16):
        P(f"v_cmp_ne_u64 vcc, {sr(S_TAG)}, {vr(16+2*i,2)}")
        P(f"s_or_b64 {sr(S_T0)}, {sr(S_T0)}, vcc")
    P(f"s_sub_u32 s{S_CNT}, s{S_CNT}, 1")
    P("s_cbranch_scc1 L_end")
    P(f"s_cmp_eq_u64 {sr(S_T0)}, 0")
    P("s_cbranch_scc0 L_ep")
    P(f"buffer_store_dword v{V_TAG}, v{V_FLAGOFF}, {sr(SRD_WS,4)}, 0 offen sc1")
    P("L_end:")
    P("s_endpgm")
    for sp in slow_paths:
        P.forget(); P(sp)
    L = finalize(P, True)
    out = HEADER + f"; @launch grid=(256,1,1) block=(256,1,1) lds={LDS_BYTES}\n"
    out += '.amdgcn_target "amdgcn-amd-amdhsa--gfx950"\n.text\n'
    out += kernel_text(name, L)
    out += "s_endpgm\n.fill 2048, 4, 0xbf800000\n"
    out += '.section .rodata,"a"\n' + descriptor(name)
    return out

if __name__ == '__main__':
    o = Opt()
    mode = sys.argv[1]
    o.stamps = 'stamps' in sys.argv
    o.diag = None
    for a in sys.argv:
        if a.startswith('diag='):
            i, j, K = a[5:].split(','); o.diag = (i, j, int(K)); o.stamps = True
    o.early_b = False
    o.nb_gelu = [6, 6, 6, 6]; o.qflag_after = 2; o.code_bytes = 24576
    if mode == 'multi': s = build_multi(o)
    if mode == 'fused': s = build_fused(o)
    open(sys.argv[2], 'w').write(s)
    if o.stamps: open(sys.argv[2] + '.names', 'w').write('\n'.join(o.stamp_names))
```

```python
import sys, math, struct
from asmlib import *

NAME = "gated_mix__sliding_block__dense_activation_gelu__prompt"

def f2u(x): return struct.unpack('<I', struct.pack('<f', x))[0]

WS_E      = 0
FL_PREP   = 0x1000
G_OFF     = 0x4000
FL_QKV    = 0x20000
FL_H      = 0x40000
FL_O      = 0x60000
QKV_OFF   = 0x100000
A_OFF     = 0x700000
BP_OFF    = 0x1000000
WS_SIZE   = 0x1200000
STAMP_OFF = 0x1400000
QKV_TB = 168 * 512
A_TB = 144 * 1024
BP_C = 144 * 2048

LX = 0; LX_SLOT = 16384
LF = 49152; LF_SLOT = 16384
LQ = 98304; LQ_SLOT = 12288
LBIAS = 135168
LKV = 0
LRED = 49152
LDS_BYTES = 160 * 1024

S_X, S_WQ, S_WO, S_W1, S_B1, S_W2, S_B2, S_GW, S_OUT, S_WS = 4, 6, 8, 12, 14, 16, 18, 20, 22, 24
SRD_X, SRD_WQ, SRD_W1, SRD_WS, SRD_OUT, SRD_P = 28, 32, 36, 40, 44, 48
S_WAVE, S_XCD, S_SLOT = 3, 10, 11
S_TAG = 26
S_RB, S_B, S_TB, S_ROT = 52, 53, 54, 55
S_T0, S_T1, S_T2, S_T3 = 56, 57, 58, 59
S_CNT = 60
S_QST, S_HST = 61, 62
S_T4 = 63
S_TAB = 64
S_BOFF = 13
S_BT = [4, 5, 6, 7, 8, 9, 12]
S_R, S_C = 98, 99
S_J = 100
S_PAR = 101

def sr(b, n=2): return f"s[{b}:{b+n-1}]"
def vr(b, n): return f"v[{b}:{b+n-1}]" if n > 1 else f"v{b}"
def ar(b, n): return f"a[{b}:{b+n-1}]"

V_TID, V_LANE = 0, 1
V_L16 = 2
V_L16H = 3
V_FLAGOFF = 4
V_TAG = 6
V_POLL = 8
V_PA = 10
V_T = 11

class Opt:
    fused = True
    stamps = False
    code_bytes = 24576

def mfma(d, a, b, c, areg='v'):
    A = ar(a, 4) if areg == 'a' else vr(a, 4)
    C = '0' if c is None else vr(c, 16)
    return f"v_mfma_f32_32x32x16_bf16 {vr(d,16)}, {A}, {vr(b,4)}, {C}"

def srd(P, d, ptr, size):
    P(f"s_mov_b32 s{d}, s{ptr}")
    P(f"s_and_b32 s{d+1}, s{ptr+1}, 0xffff")
    P(f"s_mov_b32 s{d+2}, {size}")
    P(f"s_mov_b32 s{d+3}, 0x20000")

stamp_idx = [0]
def stamp(P, o, name):
    if not o.stamps: return
    i = stamp_idx[0]; stamp_idx[0] += 1
    o.stamp_names.append(name)
    P(f"s_memrealtime s[96:97]")
    P("s_waitcnt lgkmcnt(0)")
    P(f"v_mov_b32 v{240+i}, s96")

def stamp_flush(P, o):
    if not o.stamps: return
    if o.diag is not None:
        i, j, K = o.diag
        i = o.stamp_names.index(i); j = o.stamp_names.index(j)
        lab[0] += 1
        P(f"v_readfirstlane_b32 s{S_T0}, v{240+i}")
        P(f"v_readfirstlane_b32 s{S_T1}, v{240+j}")
        P("s_nop 4")
        P(f"s_sub_u32 s{S_T0}, s{S_T1}, s{S_T0}")
        P(f"s_mul_i32 s{S_T0}, s{S_T0}, {K}")
        P(f"s_min_u32 s{S_T0}, s{S_T0}, 20000")
        P(f"s_cmp_ge_u32 s{S_SLOT}, 28")
        P(f"s_cselect_b32 s{S_T0}, 0, s{S_T0}")
        P("s_memrealtime s[96:97]")
        P("s_waitcnt lgkmcnt(0)")
        P(f"s_mov_b32 s{S_T1}, s96")
        P(f"L_dg{lab[0]}:")
        P("s_memrealtime s[96:97]")
        P("s_waitcnt lgkmcnt(0)")
        P(f"s_sub_u32 s{S_T2}, s96, s{S_T1}")
        P(f"s_cmp_lt_u32 s{S_T2}, s{S_T0}")
        P(f"s_cbranch_scc1 L_dg{lab[0]}")
        return
    P("s_waitcnt vmcnt(0)")
    P(f"s_lshl_b32 s{S_T0}, s2, 2")
    P(f"s_add_u32 s{S_T0}, s{S_T0}, s{S_WAVE}")
    P(f"s_lshl_b32 s{S_T0}, s{S_T0}, 6")
    P(f"s_add_u32 s{S_T0}, s{S_T0}, {STAMP_OFF + o.kidx*0x20000}")
    P(f"s_mov_b32 s{SRD_WS+2}, {STAMP_OFF + 0x100000}")
    for q in range(4):
        P(f"buffer_store_dwordx4 {vr(240+4*q,4)}, v{V_FLAGOFF}, {sr(SRD_WS,4)}, s{S_T0} offen offset:{16*q}")

def setup(P, o, end_label):
    if o.stamps and o.fused: P("s_memrealtime s[94:95]")
    P("s_load_dwordx4 s[4:7], s[0:1], 0")
    P("s_load_dwordx2 s[8:9], s[0:1], 16")
    P("s_load_dwordx8 s[12:19], s[0:1], 32")
    P("s_load_dwordx4 s[20:23], s[0:1], 64")
    P("s_load_dwordx2 s[24:25], s[0:1], 88")
    P("s_cmp_ge_u32 s2, 256")
    P(f"s_cbranch_scc1 {end_label}")
    if o.stamps:
        for i in range(16): P(f"v_mov_b32 v{240+i}, 0")
    P(f"s_getpc_b64 s[{S_T0}:{S_T1}]")
    P(f"v_lshlrev_b32 v{V_T}, 4, v0")
    for i in range(o.code_bytes // 4096):
        P(f"global_load_dwordx4 v[236:239], v{V_T}, s[{S_T0}:{S_T1}]", tag='pf')
        if i + 1 < o.code_bytes // 4096: P(f"v_add_u32 v{V_T}, 0x1000, v{V_T}")
    P(f"v_and_b32 v{V_LANE}, 63, v0")
    P(f"v_lshrrev_b32 v5, 6, v0")
    P(f"v_lshlrev_b32 v{V_L16}, 4, v{V_LANE}")
    P(f"v_readfirstlane_b32 s{S_WAVE}, v5")
    P(f"v_add_u32 v{V_L16H}, 0x1000, v{V_L16}")
    P(f"v_cmp_eq_u32 vcc, 0, v{V_LANE}")
    P(f"v_mov_b32 v5, 0x7fff0000")
    P(f"s_and_b32 s{S_XCD}, s2, 7")
    P(f"s_lshr_b32 s{S_SLOT}, s2, 3")
    P(f"v_cndmask_b32_e64 v{V_FLAGOFF}, v5, 0, vcc")
    P(f"s_mul_i32 s{S_T2}, s{S_SLOT}, 37")
    P(f"s_lshr_b32 s{S_T2}, s{S_T2}, 8")
    P(f"s_mul_i32 s{S_T3}, s{S_T2}, 7")
    P(f"s_sub_u32 s{S_C}, s{S_SLOT}, s{S_T3}")
    P(f"s_lshl_b32 s{S_R}, s{S_XCD}, 2")
    P(f"s_add_u32 s{S_R}, s{S_R}, s{S_T2}")
    P(f"s_and_b32 s{S_RB}, s{S_XCD}, 3")
    P(f"s_lshl_b32 s{S_RB}, s{S_RB}, 2")
    P(f"s_add_u32 s{S_RB}, s{S_RB}, s{S_T2}")
    P(f"s_lshr_b32 s{S_B}, s{S_XCD}, 2")
    P(f"s_mul_i32 s{S_B}, s{S_B}, 7")
    P(f"s_add_u32 s{S_B}, s{S_B}, s{S_C}")
    P(f"s_lshl_b32 s{S_T2}, s{S_T2}, 1")
    P(f"s_add_u32 s{S_ROT}, s{S_C}, s{S_T2}")
    P(f"s_add_u32 s{S_ROT}, s{S_ROT}, s{S_XCD}")
    P(f"s_mul_i32 s{S_T2}, s{S_ROT}, 37")
    P(f"s_lshr_b32 s{S_T2}, s{S_T2}, 8")
    P(f"s_mul_i32 s{S_T2}, s{S_T2}, 7")
    P(f"s_sub_u32 s{S_ROT}, s{S_ROT}, s{S_T2}")
    P("s_waitcnt lgkmcnt(0)")
    if o.stamps and o.fused:
        P("v_mov_b32 v240, s94"); o.stamp_names.append('entry'); stamp_idx[0] += 1
    if o.fused:
        P(f"s_load_dword s{S_TAG}, {sr(S_WS)}, {WS_E}")
    srd(P, SRD_X, S_X, 2048 * 896)
    srd(P, SRD_WQ, S_WQ, 448 * 2688)
    srd(P, SRD_W1, S_W1, 448 * 3584)
    srd(P, SRD_WS, S_WS, WS_SIZE)
    srd(P, SRD_OUT, S_OUT, 2048 * 896)
    srd(P, SRD_P, S_W2, 1792 * 896)

def make_tag(P, o):
    if not o.fused: return
    P("s_waitcnt lgkmcnt(0)")
    P(f"s_mul_i32 s{S_TAG}, s{S_TAG}, 0x9e3779b1")
    P(f"s_add_u32 s{S_TAG}, s{S_TAG}, 0x7f4a7c15")
    P(f"s_xor_b32 s{S_TAG+1}, s{S_TAG}, 0x5bd1e995")
    P(f"v_mov_b32 v{V_TAG}, s{S_TAG}")
    P(f"v_mov_b32 v{V_TAG+1}, s{S_TAG+1}")

lab = [0]
def poll(P, o, addr_v, limit=4000):
    if not o.fused: return
    lab[0] += 1
    L = f"L_poll{lab[0]}"
    P(f"s_mov_b32 s{S_CNT}, {limit}")
    P("s_waitcnt vmcnt(0) lgkmcnt(0)")
    P(f"{L}:")
    P(f"buffer_load_dwordx2 {vr(V_POLL,2)}, v{addr_v}, {sr(SRD_WS,4)}, 0 offen sc1")
    P(f"s_sub_u32 s{S_CNT}, s{S_CNT}, 1")
    P("s_waitcnt vmcnt(0)")
    P(f"v_cmp_ne_u64 vcc, {sr(S_TAG)}, {vr(V_POLL,2)}")
    P(f"s_cbranch_scc1 {L}_x")
    P(f"s_cbranch_vccnz {L}")
    P(f"{L}_x:")

slow_paths = []
def poll_issue(o, addr_v, dst):
    return [f"buffer_load_dwordx2 {vr(dst,2)}, v{addr_v}, {sr(SRD_WS,4)}, 0 offen sc1"]
def poll_check(P, o, addr_v, dst, limit=4000):
    lab[0] += 1
    L = f"L_pc{lab[0]}"
    P(f"v_cmp_ne_u64 vcc, {sr(S_TAG)}, {vr(dst,2)}")
    P(f"s_cbranch_vccnz {L}_slow")
    P(f"{L}_back:")
    slow_paths.append(f"""{L}_slow:
s_mov_b32 s{S_CNT}, {limit}
{L}_loop:
buffer_load_dwordx2 {vr(dst,2)}, v{addr_v}, {sr(SRD_WS,4)}, 0 offen sc1
s_sub_u32 s{S_CNT}, s{S_CNT}, 1
s_waitcnt vmcnt(0)
v_cmp_ne_u64 vcc, {sr(S_TAG)}, {vr(dst,2)}
s_cbranch_scc1 {L}_back
s_cbranch_vccnz {L}_loop
s_branch {L}_back""")

def flag_store(o, soff):
    if not o.fused: return []
    return [f"buffer_store_dwordx2 {vr(V_TAG,2)}, v{V_FLAGOFF}, {sr(SRD_WS,4)}, s{soff} offen sc1"]

SC = 'sc1'

ACC_Q, ACC_F = 16, 64
FR = 128
V_XD, V_QD, V_FD = 192, 196, 199
V_XR, V_QR, V_FRD = 203, 207, 208
V_CA, V_CB = 212, 214
GT = 128

def s1_dma(c_slot, ci):
    L = []
    tagn = f'dma{ci}'
    L.append([f"s_mov_b32 m0, s{S_TAB+21+c_slot}"])
    for i in range(4):
        L.append([(f"buffer_load_dwordx4 v{V_XD+i}, {sr(SRD_X,4)}, s{S_TAB+ci} offen offset:{i*1024} lds", tagn)])
    L.append([f"s_mov_b32 m0, s{S_TAB+24+c_slot}"])
    for i in range(3):
        L.append([(f"buffer_load_dwordx4 v{V_QD+i}, {sr(SRD_WQ,4)}, s{S_TAB+7+ci} offen offset:{i*1024} lds", tagn)])
    L.append([f"s_mov_b32 m0, s{S_TAB+27+c_slot}"])
    for i in range(4):
        L.append([(f"buffer_load_dwordx4 v{V_FD+i}, {sr(SRD_W1,4)}, s{S_TAB+14+ci} offen offset:{i*1024} lds", tagn)])
    return L

def s1_reads(slot, s, fset):
    base = FR + 32 * fset
    L = [f"ds_read_b128 {vr(base,4)}, v{V_XR+s} offset:{LX + slot*LX_SLOT}"]
    for t in range(7):
        for rho in range(2):
            d = base + 4 + 4 * t + 2 * rho
            if t < 3:
                L.append(f"ds_read_b64_tr_b16 {vr(d,2)}, v{V_QR} offset:{slot*LQ_SLOT + (16*s+4*rho)*192 + t*64}")
            else:
                L.append(f"ds_read_b64_tr_b16 {vr(d,2)}, v{V_FRD+t-3} offset:{slot*LF_SLOT + (16*s+4*rho)*256}")
    return L

def stage1_setup(P, o):
    T = V_T
    P(f"s_lshl_b32 s{S_TB}, s{S_RB}, 2")
    P(f"s_add_u32 s{S_TB}, s{S_TB}, s{S_WAVE}")
    P(f"s_mov_b32 s{S_T0}, s{S_ROT}")
    for i in range(7):
        P(f"s_lshl_b32 s{S_TAB+i}, s{S_T0}, 7")
        P(f"s_mul_i32 s{S_TAB+7+i}, s{S_T0}, {64*2688}")
        P(f"s_mul_i32 s{S_TAB+14+i}, s{S_T0}, {64*3584}")
        if i < 6:
            P(f"s_add_u32 s{S_T0}, s{S_T0}, 1")
            P(f"s_cmp_eq_u32 s{S_T0}, 7")
            P(f"s_cselect_b32 s{S_T0}, 0, s{S_T0}")
    P(f"s_lshl_b32 s{S_T0}, s{S_WAVE}, 12")
    P(f"s_mul_i32 s{S_T1}, s{S_WAVE}, 3072")
    for k in range(3):
        P(f"s_add_u32 s{S_TAB+21+k}, s{S_T0}, {LX + k*LX_SLOT}")
        P(f"s_add_u32 s{S_TAB+24+k}, s{S_T1}, {LQ + k*LQ_SLOT}")
        P(f"s_add_u32 s{S_TAB+27+k}, s{S_T0}, {LF + k*LF_SLOT}")
    P(f"v_lshrrev_b32 v{T}, 3, v{V_LANE}")
    P(f"v_and_b32 v{T+1}, 7, v{V_LANE}")
    P(f"v_lshrrev_b32 v{T+2}, 4, v{V_LANE}")
    P(f"s_lshl_b32 s{S_T0}, s{S_TB}, 5")
    P(f"v_add_u32 v{T}, s{S_T0}, v{T}")
    P(f"v_mul_u32_u24 v{T}, 896, v{T}")
    for i in range(4):
        P(f"v_xor_b32 v{T+3}, {(4*i) & 7}, v{T+2}")
        P(f"v_xor_b32 v{T+3}, v{T+3}, v{T+1}")
        P(f"v_lshl_add_u32 v{V_XD+i}, v{T+3}, 4, v{T}")
        if i: P(f"v_add_u32 v{V_XD+i}, {i*(8*896-1024)}, v{V_XD+i}")
    P(f"s_mul_i32 s{S_T0}, s{S_WAVE}, 192")
    P(f"s_mul_i32 s{S_T1}, s{S_B}, 192")
    P(f"s_mov_b32 s{S_T2}, 43691")
    for i in range(3):
        P(f"v_add_u32 v{T}, s{S_T0}, v{V_LANE}")
        if i: P(f"v_add_u32 v{T}, {64*i}, v{T}")
        P(f"v_mul_lo_u32 v{T+1}, v{T}, s{S_T2}")
        P(f"v_lshrrev_b32 v{T+1}, 19, v{T+1}")
        P(f"v_mul_u32_u24 v{T+2}, 12, v{T+1}")
        P(f"v_sub_u32 v{T+2}, v{T}, v{T+2}")
        P(f"v_mul_u32_u24 v{T+1}, 2688, v{T+1}")
        P(f"v_lshl_add_u32 v{T+1}, v{T+2}, 4, v{T+1}")
        P(f"v_add_u32 v{V_QD+i}, s{S_T1}, v{T+1}")
        if i: P(f"v_subrev_u32 v{V_QD+i}, {i*1024}, v{V_QD+i}")
    P(f"v_lshrrev_b32 v{T}, 4, v{V_LANE}")
    P(f"v_bfe_u32 v{T+1}, v{V_LANE}, 2, 2")
    P(f"v_xor_b32 v{T+1}, v{T+1}, v{T}")
    P(f"v_and_b32 v{T+2}, 3, v{V_LANE}")
    P(f"v_lshlrev_b32 v{T+2}, 4, v{T+2}")
    P(f"v_lshl_add_u32 v{T+1}, v{T+1}, 6, v{T+2}")
    P(f"s_lshl_b32 s{S_T0}, s{S_WAVE}, 4")
    P(f"v_add_u32 v{T}, s{S_T0}, v{T}")
    P(f"v_mul_u32_u24 v{T}, 3584, v{T}")
    P(f"s_lshl_b32 s{S_T1}, s{S_B}, 8")
    P(f"v_add3_u32 v{V_FD}, v{T}, v{T+1}, s{S_T1}")
    for i in range(1, 4):
        P(f"v_add_u32 v{V_FD+i}, {i*(4*3584-1024)}, v{V_FD}")

def stage1_setup2(P, o):
    T = V_T
    P(f"v_and_b32 v{T}, 31, v{V_LANE}")
    P(f"v_lshrrev_b32 v{T+1}, 5, v{V_LANE}")
    P(f"v_bfe_u32 v{T+2}, v{V_LANE}, 1, 3")
    P(f"v_xor_b32 v{T+2}, v{T+2}, v{T+1}")
    P(f"s_lshl_b32 s{S_T0}, s{S_WAVE}, 12")
    P(f"v_lshl_add_u32 v{T}, v{T}, 7, s{S_T0}")
    for s in range(4):
        P(f"v_xor_b32 v{T+3}, {2*s}, v{T+2}")
        P(f"v_lshl_add_u32 v{V_XR+s}, v{T+3}, 4, v{T}")
    P(f"v_bfe_u32 v{T}, v{V_LANE}, 2, 2")
    P(f"v_lshl_add_u32 v{T+1}, v{T+1}, 3, v{T}")
    P(f"v_bfe_u32 v{T+2}, v{V_LANE}, 4, 1")
    P(f"v_lshlrev_b32 v{T+2}, 5, v{T+2}")
    P(f"v_and_b32 v{T+3}, 3, v{V_LANE}")
    P(f"v_lshl_add_u32 v{T+2}, v{T+3}, 3, v{T+2}")
    P(f"v_mul_u32_u24 v{T+3}, 192, v{T+1}")
    P(f"v_add_u32 v{T+3}, {LQ}, v{T+3}")
    P(f"v_add_u32 v{V_QR}, v{T+3}, v{T+2}")
    P(f"v_lshl_add_u32 v{T+2}, v{T+1}, 8, v{T+2}")
    P(f"v_add_u32 v{T+2}, {LF}, v{T+2}")
    for c in range(4):
        P(f"v_xor_b32 v{T+3}, {c}, v{T}")
        P(f"v_lshl_add_u32 v{V_FRD+c}, v{T+3}, 6, v{T+2}")
    A = -2.0 * math.sqrt(2.0 / math.pi) * 0.044715 * math.log2(math.e)
    B = -2.0 * math.sqrt(2.0 / math.pi) * math.log2(math.e)
    P(f"v_mov_b32 v{V_CA}, {hex(f2u(A))}")
    P(f"v_mov_b32 v{V_CB}, {hex(f2u(B))}")
    P(f"s_mul_i32 s{S_QST}, s{S_TB}, {QKV_TB}")
    P(f"s_mul_i32 s{S_T0}, s{S_B}, {3*2048}")
    P(f"s_add_u32 s{S_QST}, s{S_QST}, s{S_T0}")
    P(f"s_add_u32 s{S_QST}, s{S_QST}, {QKV_OFF}")
    P(f"s_mul_i32 s{S_HST}, s{S_TB}, {A_TB}")
    P(f"s_lshl_b32 s{S_T0}, s{S_B}, 13")
    P(f"s_add_u32 s{S_HST}, s{S_HST}, s{S_T0}")
    P(f"s_add_u32 s{S_HST}, s{S_HST}, {A_OFF}")

def bias_to_acc(P, src_v, acc, ntiles, tmp, lane_sel=None):
    P(f"v_lshlrev_b32 v{tmp}, 16, v{src_v}")
    P(f"v_and_b32 v{tmp+1}, 0xffff0000, v{src_v}")
    P(f"s_lshl_b32 s{S_T0}, s{S_WAVE}, 9")
    P(f"s_add_u32 s{S_T0}, s{S_T0}, {LBIAS}")
    P(f"v_lshl_add_u32 v{tmp+2}, v{V_LANE}, 3, s{S_T0}")
    P(f"ds_write_b64 v{tmp+2}, {vr(tmp,2)}", tag='biasw')
    P(f"v_lshrrev_b32 v{tmp+2}, 5, v{V_LANE}")
    P(f"v_lshl_add_u32 v{tmp+2}, v{tmp+2}, 4, s{S_T0}")
    if lane_sel is not None: P(f"v_add_u32 v{tmp+2}, s{lane_sel}, v{tmp+2}")
    P.wait_lg('biasw')
    return tmp + 2

def b_loads(o):
    L = []
    for g in range(7):
        for k in range(4):
            for ct in range(2):
                idx = (g * 4 + k) * 2 + ct
                L.append([(f"buffer_load_dwordx4 {ar(4*idx,4)}, v{V_BA+ct*2+(k>>1)}, {sr(SRD_WS,4)}, s{S_BT[g]} offen offset:{(k&1)*2048} {SC}", 'bld')])
    for k in range(4):
        for ct in range(2):
            idx = 56 + k * 2 + ct
            L.append([(f"buffer_load_dwordx4 {ar(4*idx,4)}, v{V_BA+ct*2+(k>>1)}, {sr(SRD_WS,4)}, s{S_BOFF} offen offset:{(k&1)*2048} {SC}", 'bld')])
    return L

V_BA = 216
V_AA = 220

def stage1(P, o, bl):
    stage1_setup(P, o)
    P(f"s_lshl_b32 s{S_T0}, s{S_B}, 8")
    P(f"v_lshl_add_u32 v{V_T}, v{V_LANE}, 2, s{S_T0}")
    P(f"global_load_dword v15, v{V_T}, {sr(S_B1)}", tag='b1')
    for c in range(3):
        for it in s1_dma(c, c): P.add(it)
    stage1_setup2(P, o)
    make_tag(P, o)
    stamp(P, o, 's1_issued')
    a = bias_to_acc(P, 15, ACC_F, 4, 12)
    for F in range(4):
        for q in range(4):
            P(f"ds_read_b128 {vr(ACC_F+16*F+4*q,4)}, v{a} offset:{(32*F+8*q)*4}")
    P.wait_vm('dma0')
    P("s_waitcnt lgkmcnt(0)")
    P("s_barrier")
    stamp(P, o, 's1_first')
    P.add(s1_reads(0, 0, 0))
    for c in range(7):
        for s in range(4):
            g = 4 * c + s
            fs = g & 1
            base = FR + 32 * fs
            P("s_waitcnt lgkmcnt(0)")
            if s == 3 and c < 6:
                P.wait_vm(f'dma{c+1}')
                P("s_barrier")
            M = []
            for t in range(7):
                acc = ACC_Q + 16 * t
                Cin = None if (g == 0 and t < 3) else acc
                M.append([mfma(acc, base + 4 + 4 * t, base, Cin)])
            rd = []
            if g < 27:
                nc, ns = (c, s + 1) if s < 3 else (c + 1, 0)
                rd = s1_reads(nc % 3, ns, fs ^ 1)
            ex = []
            cc, ph = (c, 0) if s == 3 else (c - 1, s + 1)
            if 0 <= cc and cc + 3 < 7:
                d = s1_dma(cc % 3, cc + 3)
                cut = [0, 4, 7, 11, 14]
                ex = d[cut[ph]:cut[ph + 1]]
            ex = ex + bl.get(g, [])
            seq = []
            per = [3, 3, 3, 3, 3, 0, 0]
            ri = 0; ei = 0
            for t in range(7):
                seq += M[t]
                seq += rd[ri:ri + per[t]]; ri += per[t]
                if t >= 3 and ei < len(ex):
                    seq += ex[ei]; ei += 1
            while ei < len(ex):
                seq += ex[ei]; ei += 1
            P.add(seq)
    stamp(P, o, 's1_loop')

def qkv_epilogue(P, o):
    c = (28.0 ** -0.5) * math.log2(math.e)
    PK = GT
    P(f"s_mul_i32 s{S_T0}, s{S_B}, 3")
    for t in range(3):
        acc = ACC_Q + 16 * t
        P(f"s_add_u32 s{S_T1}, s{S_T0}, {t}")
        P(f"s_cmp_lt_u32 s{S_T1}, 14")
        P(f"s_cselect_b32 s{S_T2}, {hex(f2u(c))}, 1.0")
        for i in range(8):
            P(f"v_pk_mul_f32 {vr(acc+2*i,2)}, {vr(acc+2*i,2)}, s[{S_T2}:{S_T3}] op_sel_hi:[1,0]")
        p = PK + 8 * t
        for i in range(8):
            P(f"v_cvt_pk_bf16_f32 v{p+i}, v{acc+2*i}, v{acc+2*i+1}")
        for h in range(2):
            P(f"v_permlane32_swap_b32 v{p+4*h}, v{p+4*h+2}")
            P(f"v_permlane32_swap_b32 v{p+4*h+1}, v{p+4*h+3}")
        for h in range(2):
            off = t * 2048 + h * 1024
            P(f"buffer_store_dwordx4 {vr(p+4*h,4)}, v{V_L16H if off >= 4096 else V_L16}, {sr(SRD_WS,4)}, s{S_QST} offen offset:{off & 4095} {SC}", tag='qst')

def gelu_tile(F):
    u = ACC_F + 16 * F
    t = GT + 32 + 16 * (F & 1)
    p = GT + 24 + 0
    p = 160 + 32 + 0
    L = []
    pr = lambda b, i: vr(b + 2 * i, 2)
    for i in range(8): L.append(f"v_pk_mul_f32 {pr(t,i)}, {pr(u,i)}, {pr(u,i)}")
    for i in range(8): L.append(f"v_pk_fma_f32 {pr(t,i)}, {pr(t,i)}, {vr(V_CA,2)}, {vr(V_CB,2)} op_sel_hi:[1,0,0]")
    for i in range(8): L.append(f"v_pk_mul_f32 {pr(t,i)}, {pr(t,i)}, {pr(u,i)}")
    for i in range(16): L.append(f"v_exp_f32 v{t+i}, v{t+i}")
    for i in range(8): L.append(f"v_pk_add_f32 {pr(t,i)}, {pr(t,i)}, 1.0 op_sel_hi:[1,0]")
    for i in range(16): L.append(f"v_rcp_f32 v{t+i}, v{t+i}")
    for i in range(8): L.append(f"v_pk_mul_f32 {pr(t,i)}, {pr(t,i)}, {pr(u,i)}")
    for i in range(8): L.append(f"v_cvt_pk_bf16_f32 v{u+i}, v{t+2*i}, v{t+2*i+1}")
    for h in range(2):
        off = (2 * F + h) * 1024
        L.append((f"buffer_store_dwordx4 {vr(u+4*h,4)}, v{V_L16H if off >= 4096 else V_L16}, {sr(SRD_WS,4)}, s{S_HST} offen offset:{off & 4095} {SC}", 'hst'))
    return L

def prep(P, o):
    T = V_T
    S_SP = S_RB
    P(f"s_sub_u32 s{S_SP}, s2, 224")
    P(f"s_lshl_b32 s{S_T4}, s{S_SP}, 2")
    P(f"s_add_u32 s{S_T4}, s{S_T4}, s{S_WAVE}")
    P(f"v_lshrrev_b32 v{T}, 2, v{V_LANE}")
    P(f"s_lshl_b32 s{S_T0}, s{S_T4}, 4")
    P(f"v_add_u32 v20, s{S_T0}, v{T}")
    P(f"v_mul_u32_u24 v{T}, 896, v20")
    P(f"v_and_b32 v{T+1}, 3, v{V_LANE}")
    P(f"v_lshlrev_b32 v{T+1}, 4, v{T+1}")
    P(f"v_add_u32 v{T}, v{T}, v{T+1}")
    P(f"v_lshrrev_b32 v21, 3, v{V_LANE}")
    P(f"v_and_b32 v22, 7, v{V_LANE}")
    P(f"v_bfe_u32 v23, v{V_LANE}, 4, 1")
    P(f"v_lshlrev_b32 v23, 2, v23")
    P(f"v_xor_b32 v22, v22, v23")
    P(f"v_lshlrev_b32 v22, 4, v22")
    P(f"s_lshl_b32 s{S_TAB+20}, s{S_WAVE}, 14")
    srd(P, SRD_WQ, S_WO, 448 * 896)
    for i in range(8):
        it, ks, cc = S_TAB + 21, S_TAB + i, S_TAB + 8 + i
        P(f"s_lshl_b32 s{it}, s{S_T4}, 3")
        P(f"s_add_u32 s{it}, s{it}, {i}")
        P(f"s_min_u32 s{it}, s{it}, 1007")
        P(f"s_mul_i32 s{ks}, s{it}, 9363")
        P(f"s_lshr_b32 s{ks}, s{ks}, 16")
        P(f"s_mul_i32 s{cc}, s{ks}, 7")
        P(f"s_sub_u32 s{cc}, s{it}, s{cc}")
        P(f"s_add_u32 m0, s{S_TAB+20}, {i*2048}")
        P(f"s_cmp_lt_u32 s{ks}, 112")
        P(f"s_cbranch_scc0 L_prep_o{i}")
        P(f"s_lshl_b32 s{S_T0}, s{ks}, 4")
        P(f"v_add_u32 v24, s{S_T0}, v21")
        P(f"v_mul_u32_u24 v24, 896, v24")
        P(f"v_add_u32 v24, v24, v22")
        P(f"v_add_u32 v25, {8*896-1024}, v24")
        P(f"s_lshl_b32 s{S_T0}, s{cc}, 7")
        P(f"buffer_load_dwordx4 v24, {sr(SRD_P,4)}, s{S_T0} offen lds")
        P(f"buffer_load_dwordx4 v25, {sr(SRD_P,4)}, s{S_T0} offen offset:1024 lds")
        P(f"s_branch L_prep_n{i}")
        P(f"L_prep_o{i}:")
        P(f"s_sub_u32 s{S_T0}, s{ks}, 112")
        P(f"s_lshr_b32 s{S_T1}, s{S_T0}, 1")
        P(f"s_and_b32 s{S_T0}, s{S_T0}, 1")
        P(f"s_lshl_b32 s{S_T0}, s{S_T0}, 4")
        P(f"s_mul_i32 s{S_T2}, s{S_T1}, 7")
        P(f"s_lshr_b32 s{S_T2}, s{S_T2}, 1")
        P(f"s_lshl_b32 s{S_T2}, s{S_T2}, 3")
        P(f"s_add_u32 s{S_T2}, s{S_T2}, s{S_T0}")
        P(f"s_mul_i32 s{S_T1}, s{S_T1}, 28")
        for hh in range(2):
            P(f"v_add_u32 v26, s{S_T2}, v21")
            if hh: P(f"v_add_u32 v26, 8, v26")
            P(f"v_subrev_u32 v27, s{S_T1}, v26")
            P(f"v_cmp_gt_u32 vcc, 28, v27")
            P(f"v_mul_u32_u24 v26, 896, v26")
            P(f"v_add_u32 v26, v26, v22")
            if hh: P(f"v_subrev_u32 v26, 1024, v26")
            P(f"v_mov_b32 v27, 0x7fff0000")
            P(f"v_cndmask_b32 v{24+hh}, v27, v26, vcc")
        P(f"s_lshl_b32 s{S_T0}, s{cc}, 7")
        P(f"buffer_load_dwordx4 v24, {sr(SRD_WQ,4)}, s{S_T0} offen lds")
        P(f"buffer_load_dwordx4 v25, {sr(SRD_WQ,4)}, s{S_T0} offen offset:1024 lds")
        P(f"L_prep_n{i}:")
    for i in range(14):
        P(f"buffer_load_dwordx4 {vr(32+4*i,4)}, v{T}, {sr(SRD_X,4)}, 0 offen offset:{64*i}")
    for i in range(14):
        P(f"global_load_dwordx4 {vr(96+4*i,4)}, v{T+1}, {sr(S_GW)} offset:{64*i}")
    make_tag(P, o)
    P(f"v_bfe_u32 v21, v{V_LANE}, 2, 2")
    P(f"v_lshrrev_b32 v22, 5, v{V_LANE}")
    P(f"v_lshl_add_u32 v22, v22, 2, v21")
    P(f"v_lshlrev_b32 v22, 7, v22")
    P(f"v_bfe_u32 v23, v{V_LANE}, 4, 1")
    P(f"v_lshl_add_u32 v22, v23, 5, v22")
    P(f"v_and_b32 v23, 3, v{V_LANE}")
    P(f"v_lshl_add_u32 v22, v23, 3, v22")
    P(f"v_add_u32 v22, s{S_TAB+20}, v22")
    P(f"v_lshrrev_b32 v21, 1, v21")
    P(f"v_lshl_add_u32 v23, v21, 6, v22")
    P(f"v_xor_b32 v21, 1, v21")
    P(f"v_lshl_add_u32 v22, v21, 6, v22")
    P("s_waitcnt vmcnt(28)")
    for i in range(8):
        ks, cc = S_TAB + i, S_TAB + 8 + i
        d = 160 + 8 * i
        for ct in range(2):
            for rho in range(2):
                P(f"ds_read_b64_tr_b16 {vr(d+4*ct+2*rho,2)}, v{23-ct} offset:{i*2048 + rho*1024}")
        P(f"s_mul_i32 s{S_T0}, s{cc}, {BP_C}")
        P(f"s_lshl_b32 s{S_T1}, s{ks}, 11")
        P(f"s_add_u32 s{S_T0}, s{S_T0}, s{S_T1}")
        P(f"s_add_u32 s{ks}, s{S_T0}, {BP_OFF}")
    for i in range(8):
        d = 160 + 8 * i
        for ct in range(2):
            P(f"buffer_store_dwordx4 {vr(d+4*ct,4)}, v{V_L16}, {sr(SRD_WS,4)}, s{S_TAB+i} offen offset:{ct*1024} {SC}")
    P("v_mov_b32 v24, 0")
    P("v_mov_b32 v25, 0")
    for i in range(56):
        P(f"v_dot2_f32_bf16 v{24+(i&1)}, v{32+i}, v{96+i}, v{24+(i&1)}")
    P("s_nop 2")
    P("v_add_f32 v24, v24, v25")
    P("v_add_f32_dpp v24, v24, v24 quad_perm:[1,0,3,2] row_mask:0xf bank_mask:0xf")
    P("v_add_f32_dpp v24, v24, v24 quad_perm:[2,3,0,1] row_mask:0xf bank_mask:0xf")
    P(f"v_mul_f32 v24, {hex(f2u(-math.log2(math.e)))}, v24")
    P("v_exp_f32 v24, v24")
    P("v_add_f32 v24, 1.0, v24")
    P("v_rcp_f32 v24, v24")
    P(f"v_lshlrev_b32 v20, 2, v20")
    P(f"v_and_b32 v25, 3, v{V_LANE}")
    P(f"v_cmp_eq_u32 vcc, 0, v25")
    P(f"v_mov_b32 v27, 0x7fff0000")
    P(f"v_cndmask_b32 v20, v27, v20, vcc")
    P(f"s_mov_b32 s{S_T0}, {G_OFF}")
    P(f"buffer_store_dword v24, v20, {sr(SRD_WS,4)}, s{S_T0} offen {SC}")
    P("s_waitcnt vmcnt(0) lgkmcnt(0)")
    P("s_barrier")
    if o.fused:
        P(f"s_lshl_b32 s{S_T0}, s{S_SP}, 7")
        P(f"s_add_u32 s{S_T0}, s{S_T0}, {FL_PREP}")
        P(f"s_cmp_eq_u32 s{S_WAVE}, 0")
        P("s_cbranch_scc0 L_prep_nf")
        P.add(flag_store(o, S_T0))
        P("L_prep_nf:")

AQ = 16
AK = 24
AV = 40
AS = 64
AN = 112
AO = 128
AP = 144
AM = 168
A_KR, A_VR = 176, 177
A_KD, A_VD = 179, 180
A_PA, A_PV = 182, 183
A_G = 186
A_MX = 187

def att_scalars(P, o):
    P(f"s_and_b32 s{S_RB}, s{S_SLOT}, 15")
    P(f"s_lshr_b32 s{S_J}, s{S_SLOT}, 4")
    P(f"s_lshl_b32 s{S_T0}, s{S_XCD}, 1")
    P(f"s_add_u32 s{S_J}, s{S_J}, s{S_T0}")
    P(f"s_lshl_b32 s{S_TB}, s{S_RB}, 2")
    P(f"s_add_u32 s{S_TB}, s{S_TB}, s{S_WAVE}")
    P(f"s_and_b32 s{S_PAR}, s{S_J}, 1")

def att_poll_addr(P, o):
    if not o.fused: return
    T = V_T
    P(f"v_min_u32 v{T}, 13, v{V_LANE}")
    P(f"v_lshrrev_b32 v{T+1}, 1, v{T}")
    P(f"v_and_b32 v{T}, 1, v{T}")
    P(f"s_mul_i32 s{S_T0}, s{S_J}, 7")
    P(f"s_lshr_b32 s{S_T0}, s{S_T0}, 1")
    P(f"s_lshl_b32 s{S_T0}, s{S_T0}, 3")
    P(f"v_mad_u32_u24 v{T}, v{T}, 31, s{S_T0}")
    P(f"v_cmp_gt_u32 vcc, 3, v{T+1}")
    P(f"v_mov_b32 v{T+2}, 896")
    P(f"v_mov_b32 v{T+3}, 448")
    P(f"v_cndmask_b32 v{T+2}, v{T+2}, v{T+3}, vcc")
    P(f"v_subrev_u32 v{T+3}, 3, v{T+1}")
    P(f"v_cndmask_b32 v{T+3}, v{T+3}, v{T+1}, vcc")
    P(f"v_cmp_eq_u32 vcc, 6, v{T+1}")
    P(f"s_mul_i32 s{S_T1}, s{S_WAVE}, 3")
    P(f"s_lshl_b32 s{S_T2}, s{S_RB}, 2")
    P(f"s_add_u32 s{S_T1}, s{S_T1}, s{S_T2}")
    P(f"s_sub_u32 s{S_T1}, s{S_T1}, 8")
    P(f"v_cndmask_b32_e64 v{T+2}, v{T+2}, 0, vcc")
    P(f"v_add_u32 v{T}, v{T}, v{T+2}")
    P(f"v_mul_u32_u24 v{T}, 683, v{T}")
    P(f"v_lshrrev_b32 v{T}, 16, v{T}")
    P(f"v_add_u32 v{T+3}, s{S_T1}, v{T+3}")
    P(f"v_max_i32 v{T+3}, 0, v{T+3}")
    P(f"v_mov_b32 v{T+2}, s{S_TB}")
    P(f"v_cndmask_b32 v{T+3}, v{T+3}, v{T+2}, vcc")
    P(f"v_lshl_add_u32 v{T}, v{T+3}, 4, v{T}")
    P(f"v_lshlrev_b32 v{T}, 7, v{T}")
    P(f"v_add_u32 v{V_PA}, {FL_QKV}, v{T}")

def att_addr(P, o):
    T = V_T
    P(f"s_mul_i32 s{S_T0}, s{S_J}, 7")
    P(f"s_lshr_b32 s{S_T0}, s{S_T0}, 1")
    P(f"s_lshl_b32 s{S_T4}, s{S_T0}, 9")
    P(f"s_add_u32 s{S_T1}, s{S_T4}, {56*512}")
    P(f"v_add_u32 v{A_KD}, s{S_T1}, v{V_L16}")
    P(f"v_lshrrev_b32 v{T}, 5, v{V_LANE}")
    P(f"v_and_b32 v{T+1}, 31, v{V_LANE}")
    P(f"s_add_u32 s{S_T1}, s{S_T4}, {112*512 - 2048}")
    for t in range(2):
        P(f"v_lshlrev_b32 v{T+2}, 2, v{T}")
        P(f"v_xor_b32 v{T+2}, v{T+2}, v{T+1}")
        if t: P(f"v_xor_b32 v{T+2}, 8, v{T+2}")
        P(f"v_lshlrev_b32 v{T+2}, 4, v{T+2}")
        P(f"v_lshl_add_u32 v{T+2}, v{T}, 9, v{T+2}")
        P(f"v_add_u32 v{A_VD+t}, s{S_T1}, v{T+2}")
    P(f"s_lshl_b32 s{S_T1}, s{S_WAVE}, 12")
    P(f"v_add_u32 v{A_KR}, s{S_T1}, v{V_L16}")
    P(f"v_bfe_u32 v{T+1}, v{V_LANE}, 4, 1")
    P(f"v_bfe_u32 v{T+2}, v{V_LANE}, 1, 1")
    P(f"v_lshl_add_u32 v{T+3}, v{T+1}, 1, v{T+2}")
    P(f"v_lshlrev_b32 v{T+4}, 9, v{T+3}")
    P(f"v_xor_b32 v{T+3}, v{T+3}, v{T}")
    P(f"v_lshl_add_u32 v{T+4}, v{T+3}, 6, v{T+4}")
    P(f"v_bfe_u32 v{T+3}, v{V_LANE}, 2, 2")
    P(f"v_lshl_add_u32 v{T+4}, v{T+3}, 4, v{T+4}")
    P(f"v_and_b32 v{T+3}, 1, v{V_LANE}")
    P(f"v_lshl_add_u32 v{T+4}, v{T+3}, 3, v{T+4}")
    P(f"s_add_u32 s{S_T1}, s{S_T1}, 2048")
    P(f"v_add_u32 v{A_VR}, s{S_T1}, v{T+4}")
    P(f"v_xor_b32 v{A_VR+1}, 128, v{A_VR}")
    P(f"v_and_b32 v{T+1}, 31, v{V_LANE}")
    P(f"v_mul_u32_u24 v{T+2}, 12, v{T}")
    P(f"s_cmp_eq_u32 s{S_PAR}, 0")
    P(f"s_cselect_b32 s{S_T1}, -1, 0")
    P(f"s_cselect_b32 s{S_T2}, 1544, 0")
    P(f"v_and_b32 v{T+2}, s{S_T1}, v{T+2}")
    P(f"v_xor_b32 v{T+1}, v{T+1}, v{T+2}")
    P(f"v_lshlrev_b32 v{T+1}, 4, v{T+1}")
    P(f"v_lshl_add_u32 v{T+1}, v{T}, 11, v{T+1}")
    P(f"s_mul_i32 s{S_T3}, s{S_WAVE}, {3*4096}")
    P(f"s_add_u32 s{S_T2}, s{S_T2}, s{S_T3}")
    P(f"v_add_u32 v{A_PA}, s{S_T2}, v{T+1}")
    P(f"v_cmp_gt_u32 vcc, 32, v{V_LANE}")
    P(f"s_mul_i32 s{S_T1}, s{S_WAVE}, 3")
    P(f"s_lshl_b32 s{S_T2}, s{S_RB}, 2")
    P(f"s_add_u32 s{S_T1}, s{S_T1}, s{S_T2}")
    P(f"v_mov_b32 v{T+1}, 0x3f80")
    for k in range(3):
        P(f"s_add_u32 s{S_T2}, s{S_T1}, {k}")
        P(f"s_cmp_lt_u32 s{S_T2}, 8")
        P(f"s_cselect_b32 s{S_T2}, 0xf14a, 0")
        P(f"v_mov_b32 v{T+2}, s{S_T2}")
        P(f"v_cndmask_b32 v{A_PV+k}, v{T+1}, v{T+2}, vcc")
    for r in range(16):
        k0 = (r & 3) + 8 * (r >> 2)
        lo = (0xffffffff << k0) & 0xffffffff
        hi = (0xffffffff << (k0 + 4)) & 0xffffffff
        P(f"s_mov_b32 s{S_TAB+2*r}, {hex(lo)}")
        P(f"s_mov_b32 s{S_TAB+2*r+1}, {hex(hi)}")
    P(f"v_mov_b32 v{T+1}, 0xffff")
    P(f"v_mov_b32 v{T+2}, 0xffff0000")
    for i in range(8):
        P(f"v_cndmask_b32_e64 v{T+3}, 0, v{T+1}, {sr(S_TAB+4*i)}")
        P(f"v_cndmask_b32_e64 v{T+4}, 0, v{T+2}, {sr(S_TAB+4*i+2)}")
        P(f"v_or_b32 v{AM+i}, v{T+3}, v{T+4}")

def att_loads(P, o):
    P(f"s_mul_i32 s{S_T1}, s{S_WAVE}, 3")
    P(f"s_lshl_b32 s{S_T2}, s{S_RB}, 2")
    P(f"s_add_u32 s{S_T1}, s{S_T1}, s{S_T2}")
    P(f"s_mul_i32 s{S_T3}, s{S_WAVE}, {3*4096}")
    for k in range(3):
        P(f"s_add_i32 s{S_T2}, s{S_T1}, {k-8}")
        P(f"s_max_i32 s{S_T2}, s{S_T2}, 0")
        P(f"s_mul_i32 s{S_T2}, s{S_T2}, {QKV_TB}")
        P(f"s_add_u32 m0, s{S_T3}, {LKV + k*4096}")
        P(f"s_add_u32 s{S_T2}, s{S_T2}, {QKV_OFF}")
        for t in range(2):
            P(f"buffer_load_dwordx4 v{A_KD}, {sr(SRD_WS,4)}, s{S_T2} offen offset:{t*1024} {SC} lds", tag='kv')
        for t in range(2):
            P(f"buffer_load_dwordx4 v{A_VD+t}, {sr(SRD_WS,4)}, s{S_T2} offen offset:{2048+t*1024} {SC} lds", tag='kv')
    P(f"s_mul_i32 s{S_T2}, s{S_TB}, {QKV_TB}")
    P(f"s_add_u32 s{S_T2}, s{S_T2}, s{S_T4}")
    P(f"s_add_u32 s{S_T2}, s{S_T2}, {QKV_OFF}")
    for t in range(2):
        P(f"buffer_load_dwordx4 {vr(AQ+4*t,4)}, v{V_L16}, {sr(SRD_WS,4)}, s{S_T2} offen offset:{t*1024} {SC}")
    P(f"v_and_b32 v{V_T}, 31, v{V_LANE}")
    P(f"v_lshlrev_b32 v{V_T}, 2, v{V_T}")
    P(f"s_lshl_b32 s{S_T2}, s{S_TB}, 7")
    P(f"s_add_u32 s{S_T2}, s{S_T2}, {G_OFF}")
    P(f"buffer_load_dword v{A_G}, v{V_T}, {sr(SRD_WS,4)}, s{S_T2} offen {SC}")

def kread(i, buf):
    return [f"ds_read_b128 {vr(AK+8*buf+4*t,4)}, v{A_KR} offset:{LKV + i*4096 + t*1024}" for t in range(2)]
def vread(i, buf):
    return [f"ds_read_b64_tr_b16 {vr(AV+8*buf+4*t+2*rho,2)}, v{A_VR+rho} offset:{LKV + i*4096 + t*256}" for t in range(2) for rho in range(2)]
def qk(i, sbuf, kbuf, c):
    s = AS + 16 * sbuf
    return [mfma(s, AK + 8 * kbuf, AQ, c), mfma(s, AK + 8 * kbuf + 4, AQ + 4, s)]

def attention(P, o, fill):
    T = V_T
    P.wait_vm('kv')
    for k in range(3):
        P(f"ds_write_b16 v{A_PA}, v{A_PV+k} offset:{LKV + k*4096}")
    P(f"s_cmp_eq_u32 s{S_PAR}, 0")
    P(f"s_cselect_b32 s{S_T0}, 0, -1")
    P(f"s_mov_b32 s{S_T1}, 0")
    P(f"s_mov_b32 s{S_T2}, 0")
    P(f"s_cselect_b32 s{S_T3}, -1, 0")
    P(f"v_mov_b32 v{T}, 0x3f80")
    P(f"v_cndmask_b32_e64 v{AQ}, v{AQ}, v{T}, {sr(S_T0)}")
    P(f"v_cndmask_b32_e64 v{AQ+1}, v{AQ+1}, 0, {sr(S_T0)}")
    P(f"v_cndmask_b32_e64 v{AQ+6}, v{AQ+6}, v{T}, {sr(S_T2)}")
    P(f"v_cndmask_b32_e64 v{AQ+7}, v{AQ+7}, 0, {sr(S_T2)}")
    P("s_waitcnt lgkmcnt(0)")
    P("s_barrier")
    stamp(P, o, 'att_go')
    order = [0, 8, 1, 2, 3, 4, 5, 6, 7]
    sb = lambda n: n % 4
    P.add(kread(order[0], 0)); P.add(kread(order[1], 1))
    def maxops(s, first):
        L = []
        for i in range(8):
            if first and i == 0: L.append(f"v_max_f32 v{A_MX}, v{s}, v{s+1}")
            else: L.append(f"v_max3_f32 v{A_MX}, v{s+2*i}, v{s+2*i+1}, v{A_MX}")
        return L
    merge = [f"v_cndmask_b32_e64 v{AS+16+r}, v{AS+r}, v{AS+16+r}, {sr(S_TAB+2*r)}" for r in range(16)]
    for n in range(9):
        m = qk(order[n], sb(n), n & 1, None)
        post = []
        if n == 3: post = merge
        if n == 4: post = maxops(AS + 16, True) + maxops(AS + 16 * sb(2), False)
        if n >= 5: post = maxops(AS + 16 * sb(n - 2), False)
        nxt = kread(order[n + 2], n & 1) if n + 2 < 9 else kread(order[n + 2 - 9], n & 1)
        h = len(post) // 2
        P.add([m[0]] + post[:h] + [m[1]] + nxt + post[h:])
    P.add(vread(0, 0)); P.add(vread(8, 1))
    P.add(maxops(AS + 16 * sb(7), False))
    P.add(maxops(AS + 16 * sb(8), False))
    P(f"v_mov_b32 v{T}, v{A_MX}")
    P(f"v_permlane32_swap_b32 v{A_MX}, v{T}")
    P(f"v_max_f32 v{A_MX}, v{A_MX}, v{T}")
    P(f"v_sub_f32 v{AN}, 0, v{A_MX}")
    P(f"v_sub_f32 v{AN+1}, 0, v{A_MX}")
    for i in range(1, 8): P(f"v_mov_b64 {vr(AN+2*i,2)}, {vr(AN,2)}")
    stamp(P, o, 'att_p1')
    kb = lambda n: (n + 1) & 1
    def expcvt(s, p):
        L = []
        for i in range(8):
            L += [f"v_exp_f32 v{s+2*i}, v{s+2*i}", f"v_exp_f32 v{s+2*i+1}, v{s+2*i+1}"]
            if i >= 1: L.append(f"v_cvt_pk_bf16_f32 v{p+i-1}, v{s+2*i-2}, v{s+2*i-1}")
        L.append(f"v_cvt_pk_bf16_f32 v{p+7}, v{s+14}, v{s+15}")
        return L
    def pv(p, vbuf, first=False):
        return [mfma(AO, AV + 8 * vbuf, p, None if first else AO), mfma(AO, AV + 8 * vbuf + 4, p + 4, AO)]
    m0 = qk(0, 0, kb(0), AN); m1 = qk(8, 1, kb(1), AN)
    P.add(m0 + kread(order[2], kb(2)) + m1 + kread(order[3], kb(3)))
    m2 = qk(order[2], 2, kb(2), AN)
    P.add([m2[0], m2[1]] + merge)
    ec = expcvt(AS + 16, AP)
    sp = []
    for i in range(8):
        sp += [f"v_and_b32 v{AP+8+i}, v{AP+i}, v{AM+i}", f"v_xor_b32 v{AP+16+i}, v{AP+i}, v{AP+8+i}"]
    m3 = qk(order[3], 0, kb(3), AN)
    P.add(kread(order[4], kb(4)) + ec[:8] + [m3[0]] + ec[8:16] + [m3[1]] + kread(order[5], kb(5)) + ec[16:] + sp)
    pend = pv(AP + 16, 0, True) + pv(AP + 8, 1)
    pend_rd = vread(order[2], 0) + vread(order[3], 1)
    sbuf2 = lambda n: n % 3
    for n in range(2, 9):
        p = AP if (n & 1) == 0 else AP + 8
        if n == 2: p = AP
        ec = expcvt(AS + 16 * sbuf2(n), p if n != 3 else AP + 16)
        if n == 3: p = AP + 16
        mq = qk(order[n + 2], sbuf2(n + 2), kb(n + 2), AN) if n + 2 < 9 else []
        kr = kread(order[n + 4], kb(n + 4)) if n + 4 < 9 else []
        ms = pend + mq
        seq = []
        k = len(ms)
        step = max(1, len(ec) // max(k, 1))
        ei = 0
        for j, mm in enumerate(ms):
            seq.append(mm)
            if j == len(pend) - 1: seq += pend_rd
            if j == k - 1 and mq: seq += kr
            take = ec[ei:ei + step] if j < k - 1 else ec[ei:]
            seq += take; ei += len(take)
        P.add(seq)
        vb = n & 1
        pend = pv(p, vb)
        pend_rd = vread(order[n + 2], vb) if n + 2 < 9 else []
    P.add(pend)
    stamp(P, o, 'att_p2')
    P(f"s_cmp_eq_u32 s{S_PAR}, 0")
    P(f"s_cselect_b64 {sr(S_T0)}, -1, 0")
    P(f"s_mul_i32 s{S_T2}, s{S_TB}, {A_TB}")
    P(f"s_lshl_b32 s{S_T3}, s{S_J}, 11")
    P(f"s_add_u32 s{S_T2}, s{S_T2}, s{S_T3}")
    P(f"s_add_u32 s{S_T2}, s{S_T2}, {A_OFF + 112*1024}")
    P(f"v_cndmask_b32_e64 v{T}, v{AO}, v{AO+12}, {sr(S_T0)}")
    P(f"v_mov_b32 v{T+1}, v{T}")
    P(f"v_permlane32_swap_b32 v{T}, v{T+1}")
    P(f"v_cndmask_b32_e64 v{T}, v{T}, v{T+1}, {sr(S_T0)}")
    P(f"v_rcp_f32 v{T}, v{T}")
    P(f"v_mul_f32 v{T+1}, v{T}, v{A_G}")
    for i in range(8):
        P(f"v_pk_mul_f32 {vr(AO+2*i,2)}, {vr(AO+2*i,2)}, {vr(T+1,2)} op_sel_hi:[1,0]")
    for i in range(8):
        P(f"v_cvt_pk_bf16_f32 v{AP+i}, v{AO+2*i}, v{AO+2*i+1}")
    for t in range(2):
        P(f"buffer_store_dwordx4 {vr(AP+4*t,4)}, v{V_L16}, {sr(SRD_WS,4)}, s{S_T2} offen offset:{t*1024} {SC}", tag='ost')

LACC = 16
LA = 80
NA = 16
L_G = 208
L_RW = 224
L_RR = 227
L_OA = 228
S_AT = 72

def last_baddr(P, o):
    T = V_T
    P(f"s_mul_i32 s{S_T0}, s{S_C}, {BP_C}")
    P(f"s_add_u32 s{S_T0}, s{S_T0}, {BP_OFF}")
    P(f"s_lshl_b32 s{S_T1}, s{S_WAVE}, 14")
    P(f"s_add_u32 s{S_BOFF}, s{S_T0}, {112*2048}")
    P(f"s_add_u32 s{S_BOFF}, s{S_BOFF}, s{S_T1}")
    P(f"s_mul_i32 s{S_T1}, s{S_WAVE}, {28*2048}")
    P(f"s_add_u32 s{S_T0}, s{S_T0}, s{S_T1}")
    P(f"s_mov_b32 s{S_T1}, s{S_ROT}")
    for g in range(7):
        P(f"s_lshl_b32 s{S_T2}, s{S_T1}, 13")
        P(f"s_add_u32 s{S_BT[g]}, s{S_T0}, s{S_T2}")
        if g < 6:
            P(f"s_add_u32 s{S_T1}, s{S_T1}, 1")
            P(f"s_cmp_eq_u32 s{S_T1}, 7")
            P(f"s_cselect_b32 s{S_T1}, 0, s{S_T1}")
    P(f"s_lshr_b32 s{S_T0}, s{S_WAVE}, 1")
    P(f"s_lshl_b32 s{S_T0}, s{S_T0}, 10")
    P(f"s_xor_b32 s{S_T1}, s{S_T0}, 1024")
    P(f"v_add_u32 v{V_BA}, s{S_T1}, v{V_L16}")
    P(f"v_add_u32 v{V_BA+1}, s{S_T1}, v{V_L16H}")
    P(f"v_add_u32 v{V_BA+2}, s{S_T0}, v{V_L16}")
    P(f"v_add_u32 v{V_BA+3}, s{S_T0}, v{V_L16H}")

def last_setup(P, o):
    T = V_T
    P(f"s_lshl_b32 s{S_T0}, s{S_C}, 7")
    P(f"v_and_b32 v{T}, 31, v{V_LANE}")
    P(f"v_lshl_add_u32 v{T+1}, v{T}, 2, s{S_T0}")
    P(f"global_load_dword v15, v{T+1}, {sr(S_B2)}")
    P(f"s_and_b32 s{S_T1}, s{S_WAVE}, 1")
    P(f"s_lshl_b32 s{S_T0}, s{S_R}, 8")
    P(f"s_add_u32 s{S_T0}, s{S_T0}, {G_OFF}")
    P(f"s_lshl_b32 s{S_T2}, s{S_T1}, 7")
    P(f"s_xor_b32 s{S_T3}, s{S_T2}, 128")
    P(f"s_add_u32 s{S_T2}, s{S_T2}, s{S_T0}")
    P(f"s_add_u32 s{S_T3}, s{S_T3}, s{S_T0}")
    P(f"v_lshlrev_b32 v{T+1}, 2, v{T}")
    P(f"buffer_load_dword v{L_G}, v{T+1}, {sr(SRD_WS,4)}, s{S_T3} offen {SC}")
    P(f"buffer_load_dword v{L_G+2}, v{T+1}, {sr(SRD_WS,4)}, s{S_T2} offen {SC}")
    P(f"s_mul_i32 s{S_T2}, s{S_T1}, {A_TB}")
    P(f"s_sub_u32 s{S_T3}, {A_TB}, s{S_T2}")
    P(f"v_add_u32 v{V_AA}, s{S_T3}, v{V_L16}")
    P(f"v_add_u32 v{V_AA+1}, s{S_T2}, v{V_L16}")
    P(f"s_mul_i32 s{S_T0}, s{S_R}, {2*A_TB}")
    P(f"s_add_u32 s{S_T0}, s{S_T0}, {A_OFF}")
    P(f"s_lshl_b32 s{S_T2}, s{S_WAVE}, 13")
    P(f"s_add_u32 s{S_AT+7}, s{S_T0}, s{S_T2}")
    P(f"s_add_u32 s{S_AT+7}, s{S_AT+7}, {112*1024}")
    P(f"s_add_u32 s{S_AT+8}, s{S_AT+7}, 4096")
    P(f"s_add_u32 s{S_AT+9}, s{S_BOFF}, 8192")
    P(f"s_mul_i32 s{S_T2}, s{S_WAVE}, {28*1024}")
    P(f"s_add_u32 s{S_T0}, s{S_T0}, s{S_T2}")
    P(f"s_mov_b32 s{S_T2}, s{S_ROT}")
    for g in range(7):
        P(f"s_lshl_b32 s{S_T3}, s{S_T2}, 12")
        P(f"s_add_u32 s{S_AT+g}, s{S_T0}, s{S_T3}")
        if g < 6:
            P(f"s_add_u32 s{S_T2}, s{S_T2}, 1")
            P(f"s_cmp_eq_u32 s{S_T2}, 7")
            P(f"s_cselect_b32 s{S_T2}, 0, s{S_T2}")
    if o.fused:
        P(f"v_and_b32 v{T+1}, 1, v{V_LANE}")
        P(f"s_lshl_b32 s{S_T0}, s{S_R}, 1")
        P(f"v_add_u32 v{T+1}, s{S_T0}, v{T+1}")
        P(f"v_lshlrev_b32 v{T+1}, 4, v{T+1}")
        P(f"v_bfe_u32 v{T+2}, v{V_LANE}, 1, 2")
        P(f"v_add_u32 v{T+1}, v{T+1}, v{T+2}")
        P(f"v_lshlrev_b32 v{T+1}, 7, v{T+1}")
        P(f"s_mul_i32 s{S_T0}, s{S_WAVE}, 7")
        P(f"s_lshr_b32 s{S_T0}, s{S_T0}, 1")
        P(f"s_lshl_b32 s{S_T0}, s{S_T0}, 7")
        P(f"s_add_u32 s{S_T0}, s{S_T0}, {FL_H}")
        P(f"v_add_u32 v{V_PA}, s{S_T0}, v{T+1}")
        P(f"s_lshl_b32 s{S_T0}, s{S_WAVE}, 9")
        P(f"s_add_u32 s{S_T0}, s{S_T0}, {FL_O}")
        P(f"v_add_u32 v{L_OA+1}, s{S_T0}, v{T+1}")
    for d in range(1, 4):
        P(f"s_xor_b32 s{S_T0}, s{S_WAVE}, {d}")
        P(f"s_mul_i32 s{S_T0}, s{S_T0}, 12288")
        P(f"s_add_u32 s{S_T0}, s{S_T0}, {LRED + (d-1)*4096}")
        P(f"v_add_u32 v{L_RW+d-1}, s{S_T0}, v{V_L16}")
    P(f"s_mul_i32 s{S_T0}, s{S_WAVE}, 12288")
    P(f"s_add_u32 s{S_T0}, s{S_T0}, {LRED}")
    P(f"v_add_u32 v{L_RR}, s{S_T0}, v{V_L16}")
    P(f"s_lshl_b32 s{S_T0}, s{S_R}, 6")
    P(f"s_lshl_b32 s{S_T2}, s{S_T1}, 5")
    P(f"s_add_u32 s{S_T0}, s{S_T0}, s{S_T2}")
    P(f"v_add_u32 v{T+1}, s{S_T0}, v{T}")
    P(f"v_mul_u32_u24 v{T+1}, 896, v{T+1}")
    P(f"v_lshrrev_b32 v{T+2}, 5, v{V_LANE}")
    P(f"v_lshl_add_u32 v{T+1}, v{T+2}, 4, v{T+1}")
    P(f"s_lshl_b32 s{S_T0}, s{S_C}, 7")
    P(f"s_lshr_b32 s{S_T2}, s{S_WAVE}, 1")
    P(f"s_lshl_b32 s{S_T2}, s{S_T2}, 6")
    P(f"s_add_u32 s{S_T0}, s{S_T0}, s{S_T2}")
    P(f"v_add_u32 v{L_OA}, s{S_T0}, v{T+1}")
    P(f"s_cmp_eq_u32 s{S_WAVE}, 0")
    P(f"s_cselect_b32 s{S_T3}, -1, 0")
    P(f"v_and_b32 v15, s{S_T3}, v15")
    a = bias_to_acc(P, 15, LACC, 2, 12)
    P(f"s_lshr_b32 s{S_T2}, s{S_WAVE}, 1")
    P(f"s_lshl_b32 s{S_T2}, s{S_T2}, 7")
    P(f"s_xor_b32 s{S_T3}, s{S_T2}, 128")
    P(f"v_add_u32 v{a-1}, s{S_T3}, v{a}")
    P(f"v_add_u32 v{a}, s{S_T2}, v{a}")
    for ttl in range(2):
        for ctl in range(2):
            for q in range(4):
                P(f"ds_read_b128 {vr(LACC+32*ttl+16*ctl+4*q,4)}, v{a-1+ctl} offset:{32*q}")
    P(f"v_sub_f32 v{L_G}, 1.0, v{L_G}")
    P(f"v_sub_f32 v{L_G+2}, 1.0, v{L_G+2}")

def a_load(n):
    L = []
    for ttl in range(2):
        d = LA + 8 * (n % NA) + 4 * ttl
        if n < 28:
            L.append((f"buffer_load_dwordx4 {vr(d,4)}, v{V_AA+ttl}, {sr(SRD_WS,4)}, s{S_AT+(n>>2)} offen offset:{(n&3)*1024} {SC}", 'ald'))
        else:
            k = n - 28
            L.append((f"buffer_load_dwordx4 {vr(d,4)}, v{V_AA+ttl}, {sr(SRD_WS,4)}, s{S_AT+7+(k>>2)} offen offset:{(k&3)*1024} {SC}", 'ald'))
    return L

def breg(n, ctl):
    if n < 32: return 4 * (2 * n + ctl)
    return 4 * (2 * (n - 32) + ctl)

def last(P, o):
    q = lambda ttl, ctl: LACC + 32 * ttl + 16 * ctl
    poll(P, o, V_PA)
    if o.fused:
        P(f"s_lshl_b32 s{S_T0}, s{S_TB}, 4")
        P(f"s_add_u32 s{S_T0}, s{S_T0}, s{S_J}")
        P(f"s_lshl_b32 s{S_T0}, s{S_T0}, 7")
        P(f"s_add_u32 s{S_T0}, s{S_T0}, {FL_O}")
        P.add(flag_store(o, S_T0))
    stamp(P, o, 'last_go')
    for n in range(NA): P.add(a_load(n))
    for n in range(28):
        a = LA + 8 * (n % NA)
        M = [mfma(q(ttl, ctl), breg(n, ctl), a + 4 * ttl, q(ttl, ctl), 'a') for ttl in range(2) for ctl in range(2)]
        ex = []
        if n + NA < 28: ex = a_load(n + NA)
        if 4 <= n < 8:
            k = n
            ex = ex + [(f"buffer_load_dwordx4 {ar(breg(28+k, ct),4)}, v{V_BA+ct*2+((k-4)>>1)}, {sr(SRD_WS,4)}, s{S_AT+9} offen offset:{((k-4)&1)*2048} {SC}", 'bld2') for ct in range(2)]
        P.add(M + ex)
    stamp(P, o, 'last_h')
    if o.fused:
        P(f"v_mov_b32 v{V_PA}, v{L_OA+1}")
        poll(P, o, V_PA)
    for n in range(28, 36): P.add(a_load(n))
    sc = lambda ttl, ctl: [f"v_mul_f32 v{q(ttl,ctl)+i}, v{L_G+2*ttl}, v{q(ttl,ctl)+i}" for i in range(16)]
    P.add(sc(0, 0) + sc(0, 1) + sc(1, 0) + sc(1, 1))
    wr = lambda ttl, ctl: [f"ds_write_b128 v{L_RW + ((1-ttl) | ((1-ctl) << 1)) - 1}, {vr(q(ttl,ctl)+4*i,4)} offset:{i*1024}" for i in range(4)]
    mm = lambda n, ttl, ctl: mfma(q(ttl, ctl), breg(n, ctl), LA + 8 * (n % NA) + 4 * ttl, q(ttl, ctl), 'a')
    for n in range(28, 36): P.add([mm(n, 0, 0), mm(n, 0, 1)])
    w = wr(0, 0) + wr(0, 1)
    seq = []
    for i, n in enumerate(range(28, 36)):
        seq.append(mm(n, 1, 0))
        if i >= 2: seq += w[:2]; w = w[2:]
    seq += w
    w = wr(1, 0)
    for i, n in enumerate(range(28, 36)):
        seq.append(mm(n, 1, 1))
        if i >= 3 and w: seq.append(w.pop(0))
    P.add(seq + w)
    P("s_waitcnt lgkmcnt(0)")
    P("s_barrier")
    R = LA
    for d in range(3):
        for i in range(4):
            P(f"ds_read_b128 {vr(R+16*d+4*i,4)}, v{L_RR} offset:{d*4096 + i*1024}")
    o_ = q(1, 1)
    for d in range(3):
        for i in range(8):
            P(f"v_pk_add_f32 {vr(o_+2*i,2)}, {vr(o_+2*i,2)}, {vr(R+16*d+2*i,2)}")
    p = R + 48
    for i in range(8): P(f"v_cvt_pk_bf16_f32 v{p+i}, v{o_+2*i}, v{o_+2*i+1}")
    for h in range(2):
        P(f"v_permlane32_swap_b32 v{p+4*h}, v{p+4*h+2}")
        P(f"v_permlane32_swap_b32 v{p+4*h+1}, v{p+4*h+3}")
    for h in range(2):
        P(f"buffer_store_dwordx4 {vr(p+4*h,4)}, v{L_OA}, {sr(SRD_OUT,4)}, 0 offen offset:{32*h} {o.outsc}")
    stamp(P, o, 'end')

HEADER = open('cdna_kernels/' + NAME + '.s.ref').read().split('; Override launch')[0]

def kernel_text(name, L):
    return f".globl {name}\n.p2align 8\n.type {name},@function\n{name}:\n" + text(L)

def descriptor(name):
    return f""".p2align 6
.amdhsa_kernel {name}
  .amdhsa_next_free_vgpr 512
  .amdhsa_next_free_sgpr 102
  .amdhsa_accum_offset 256
  .amdhsa_group_segment_fixed_size 0
  .amdhsa_kernarg_size 96
  .amdhsa_user_sgpr_count 2
  .amdhsa_user_sgpr_kernarg_segment_ptr 1
  .amdhsa_system_sgpr_workgroup_id_x 1
.end_amdhsa_kernel
"""

def build_multi(o):
    o.fused = False
    o.stamp_names = []
    ks = []
    o.kidx = 0; stamp_idx[0] = 0; o.code_bytes = 16384
    P = Prog(); setup(P, o, "L_end1")
    stamp(P, o, 'k1_start')
    P(f"s_cmp_ge_u32 s{S_SLOT}, 28")
    P("s_cbranch_scc1 L_prep")
    stage1(P, o, {})
    qkv_epilogue(P, o)
    stamp(P, o, 'qkv_epi')
    for F in range(4): P.add(gelu_tile(F))
    stamp(P, o, 'gelu')
    stamp_flush(P, o)
    P("s_endpgm")
    P.forget()
    P("L_prep:")
    prep(P, o)
    P("L_end1:")
    P("s_endpgm")
    ks.append(("s1_kernel", finalize(P, True)))
    o.kidx = 1; stamp_idx[0] = 0; o.code_bytes = 8192
    P = Prog(); setup(P, o, "L_end2")
    stamp(P, o, 'k2_start')
    att_scalars(P, o); att_addr(P, o); att_loads(P, o); attention(P, o, [])
    stamp(P, o, 'att_end')
    stamp_flush(P, o)
    P("L_end2:")
    P("s_endpgm")
    ks.append(("att_kernel", finalize(P, True)))
    o.kidx = 2; stamp_idx[0] = 0; o.code_bytes = 8192
    P = Prog(); setup(P, o, "L_end3")
    stamp(P, o, 'k3_start')
    P(f"s_cmp_ge_u32 s{S_SLOT}, 28")
    P("s_cbranch_scc1 L_end3")
    last_baddr(P, o)
    last_setup(P, o)
    for it in b_loads(o): P.add(it)
    last(P, o)
    stamp_flush(P, o)
    P("L_end3:")
    P("s_endpgm")
    ks.append(("last_kernel", finalize(P, True)))
    out = HEADER
    for n, _ in ks: out += f"; @launch kernel={n} grid=(256,1,1) block=(256,1,1) lds={LDS_BYTES}\n"
    out += '.amdgcn_target "amdgcn-amd-amdhsa--gfx950"\n.text\n'
    for n, L in ks: out += kernel_text(n, L)
    out += ".fill 6144, 4, 0xbf800000\n"
    out += '.section .rodata,"a"\n'
    for n, _ in ks: out += descriptor(n)
    return out

V_PP = 230
def prep_poll_addr(P):
    P(f"v_and_b32 v{V_PP}, 31, v{V_LANE}")
    P(f"v_lshlrev_b32 v{V_PP}, 7, v{V_PP}")
    P(f"v_add_u32 v{V_PP}, {FL_PREP}, v{V_PP}")

def build_fused(o):
    o.fused = True
    o.stamp_names = []; o.kidx = 0; stamp_idx[0] = 0
    name = NAME + "_kernel"
    P = Prog(); setup(P, o, "L_end")
    stamp(P, o, 'start')
    prep_poll_addr(P)
    P(f"s_cmp_ge_u32 s{S_SLOT}, 28")
    P("s_cbranch_scc1 L_prep")
    hooks = {24: [poll_issue(o, V_PP, 232)]}
    stage1(P, o, hooks)
    P("s_barrier")
    qkv_epilogue(P, o)
    P(f"s_lshl_b32 s{S_T0}, s{S_TB}, 4")
    P(f"s_add_u32 s{S_T0}, s{S_T0}, s{S_B}")
    P(f"s_lshl_b32 s{S_T0}, s{S_T0}, 7")
    P(f"s_add_u32 s{S_QST}, s{S_T0}, {FL_QKV}")
    P(f"s_add_u32 s{S_B}, s{S_T0}, {FL_H}")
    last_baddr(P, o)
    poll_check(P, o, V_PP, 232)
    stamp(P, o, 'qkv_epi')
    bl = b_loads(o)
    nb = o.nb_gelu
    for F in range(4):
        g = gelu_tile(F)
        take = bl[:nb[F]]; bl = bl[nb[F]:]
        P.add(interleave([[x] for x in g[:-2]], take) + g[-2:])
        if F == o.qflag_after:
            P.wait_vm('qst'); P.add(flag_store(o, S_QST))
    stamp(P, o, 'gelu')
    for it in bl: P.add(it)
    att_scalars(P, o); att_poll_addr(P, o); att_addr(P, o)
    P.wait_vm('hst'); P.add(flag_store(o, S_B))
    stamp(P, o, 'hflag')
    P("L_att:")
    poll(P, o, V_PA)
    stamp(P, o, 'qkv_seen')
    att_loads(P, o)
    attention(P, o, [])
    stamp(P, o, 'att_end')
    P(f"s_cmp_ge_u32 s{S_SLOT}, 28")
    P("s_cbranch_scc1 L_spare_end")
    last_setup(P, o)
    last(P, o)
    stamp_flush(P, o)
    P("s_endpgm")
    P.forget()
    P("L_prep:")
    prep(P, o)
    poll(P, o, V_PP)
    att_scalars(P, o); att_poll_addr(P, o); att_addr(P, o)
    P("s_branch L_att")
    P.forget()
    P("L_spare_end:")
    P("s_waitcnt vmcnt(0)")
    P(f"s_lshl_b32 s{S_T0}, s{S_TB}, 4")
    P(f"s_add_u32 s{S_T0}, s{S_T0}, s{S_J}")
    P(f"s_lshl_b32 s{S_T0}, s{S_T0}, 7")
    P(f"s_add_u32 s{S_T0}, s{S_T0}, {FL_O}")
    P.add(flag_store(o, S_T0))
    stamp_flush(P, o)
    P(f"s_cmp_eq_u32 s2, 224")
    P("s_cbranch_scc0 L_end")
    P(f"s_cmp_eq_u32 s{S_WAVE}, 0")
    P("s_cbranch_scc0 L_end")
    P(f"v_lshlrev_b32 v{V_PA}, 7, v{V_LANE}")
    P(f"s_mov_b32 s{S_CNT}, 4000")
    P("L_ep:")
    for i in range(16):
        P(f"s_mov_b32 s{S_T0}, {FL_O + i*8192}")
        P(f"buffer_load_dwordx2 {vr(16+2*i,2)}, v{V_PA}, {sr(SRD_WS,4)}, s{S_T0} offen sc1")
    P("s_waitcnt vmcnt(0)")
    P(f"s_mov_b64 {sr(S_T0)}, 0")
    for i in range(16):
        P(f"v_cmp_ne_u64 vcc, {sr(S_TAG)}, {vr(16+2*i,2)}")
        P(f"s_or_b64 {sr(S_T0)}, {sr(S_T0)}, vcc")
    P(f"s_sub_u32 s{S_CNT}, s{S_CNT}, 1")
    P("s_cbranch_scc1 L_end")
    P(f"s_cmp_eq_u64 {sr(S_T0)}, 0")
    P("s_cbranch_scc0 L_ep")
    P(f"buffer_store_dword v{V_TAG}, v{V_FLAGOFF}, {sr(SRD_WS,4)}, 0 offen sc1")
    P("L_end:")
    P("s_endpgm")
    for sp in slow_paths:
        P.forget(); P(sp)
    L = finalize(P, True)
    out = HEADER + f"; @launch grid=(256,1,1) block=(256,1,1) lds={LDS_BYTES}\n"
    out += '.amdgcn_target "amdgcn-amd-amdhsa--gfx950"\n.text\n'
    out += kernel_text(name, L)
    out += "s_endpgm\n.fill 2048, 4, 0xbf800000\n"
    out += '.section .rodata,"a"\n' + descriptor(name)
    return out

if __name__ == '__main__':
    o = Opt()
    mode = sys.argv[1]
    o.stamps = 'stamps' in sys.argv
    o.diag = None
    o.outsc = ''
    for a in sys.argv:
        if a.startswith('outsc='): o.outsc = a[6:].replace('+', ' ')
    for a in sys.argv:
        if a.startswith('diag='):
            i, j, K = a[5:].split(','); o.diag = (i, j, int(K)); o.stamps = True
    o.early_b = False
    o.nb_gelu = [6, 6, 6, 6]; o.qflag_after = 2; o.code_bytes = 24576
    if mode == 'multi': s = build_multi(o)
    if mode == 'fused': s = build_fused(o)
    open(sys.argv[2], 'w').write(s)
    if o.stamps: open(sys.argv[2] + '.names', 'w').write('\n'.join(o.stamp_names))
```

```python
import re

REG_RE = re.compile(r'^(-|\|)?(abs\()?([vas])(\d+|\[(\d+):(\d+)\])\)?\|?$')

def parse_reg(tok):
    tok = tok.strip()
    if tok in ('vcc',): return [('s', 'vcc_lo'), ('s', 'vcc_hi')]
    if tok in ('vcc_lo', 'vcc_hi', 'exec_lo', 'exec_hi', 'm0'): return [('s', tok)]
    if tok == 'exec': return [('s', 'exec_lo'), ('s', 'exec_hi')]
    m = REG_RE.match(tok)
    if not m: return []
    k = m.group(3)
    if m.group(5) is not None:
        return [(k, i) for i in range(int(m.group(5)), int(m.group(6)) + 1)]
    return [(k, int(m.group(4)))]

TRANS = ('v_exp_f32', 'v_log_f32', 'v_rcp_f32', 'v_rsq_f32', 'v_sqrt_f32', 'v_sin_f32', 'v_cos_f32', 'v_rcp_iflag_f32')

class I:
    def __init__(self, text, tag=None):
        self.text = text
        self.tag = tag
        self.kind = 'other'
        self.dst = []; self.src = []
        self.srcC = []; self.srcAB = []
        self.stdata = []
        self.op = ''
        self.parse()

    def parse(self):
        t = self.text.split(';')[0].strip()
        if not t: self.kind = 'comment'; return
        if t.endswith(':'): self.kind = 'label'; return
        if t.startswith('.'): self.kind = 'directive'; return
        parts = t.split(None, 1)
        op = parts[0]; self.op = op
        base = re.sub(r'_(e32|e64|sdwa|dpp)$', '', op)
        self.base = base
        rest = parts[1] if len(parts) > 1 else ''
        ops = [o.strip() for o in re.split(r',(?![^\[]*\])', rest)] if rest else []
        mods = ''
        if ops:
            last = ops[-1].split(None, 1)
            ops[-1] = last[0]
            if len(last) > 1: mods = last[1]
        self.mods = mods
        R = [parse_reg(o) for o in ops]
        flat = lambda L: [x for l in L for x in l]
        if op.startswith('v_mfma'):
            self.kind = 'mfma'; self.dst = R[0]; self.srcAB = R[1] + R[2]; self.srcC = R[3]; self.src = flat(R[1:])
            self.passes = 8 if '32x32' in op else 4
        elif op.startswith('v_'):
            self.kind = 'valu'
            self.trans = base in TRANS
            if base.startswith('v_cmp'):
                self.dst = R[0]; self.src = flat(R[1:])
                if base.startswith('v_cmpx'): self.dst = self.dst + parse_reg('exec')
            elif base.startswith('v_permlane') and 'swap' in base:
                self.dst = R[0] + R[1]; self.src = R[0] + R[1]
            elif base in ('v_add_co_u32', 'v_sub_co_u32', 'v_subrev_co_u32'):
                self.dst = R[0] + R[1]; self.src = flat(R[2:])
            elif base in ('v_addc_co_u32', 'v_subb_co_u32'):
                self.dst = R[0] + R[1]; self.src = flat(R[2:])
            elif base == 'v_nop':
                pass
            else:
                self.dst = R[0]; self.src = flat(R[1:])
                if base in ('v_fmac_f32', 'v_dot2c_f32_bf16', 'v_pk_fmac_f16', 'v_writelane_b32') or 'dpp' in op or 'row_' in mods or 'quad_perm' in mods:
                    self.src = self.src + R[0]
                if base == 'v_cndmask_b32' and len(ops) == 3: self.src = self.src + parse_reg('vcc')
            self.dpp = ('dpp' in op) or ('quad_perm' in mods) or ('row_' in mods)
        elif op.startswith('buffer_load') or op.startswith('global_load'):
            self.kind = 'vmem'
            if ' lds' in (' ' + mods) or 'load_lds' in op:
                self.lds_dma = True; self.src = flat(R) + [('s', 'm0')]
            else:
                self.lds_dma = False; self.dst = R[0]; self.src = flat(R[1:])
        elif op.startswith('buffer_store'):
            self.kind = 'vmem'; self.lds_dma = False; self.src = flat(R); self.stdata = R[0]
        elif op.startswith('global_store'):
            self.kind = 'vmem'; self.lds_dma = False; self.src = flat(R); self.stdata = R[1]
        elif op.startswith('ds_read'):
            self.kind = 'ds'; self.dst = R[0]; self.src = flat(R[1:])
        elif op.startswith('ds_write'):
            self.kind = 'ds'; self.src = flat(R)
        elif op.startswith('ds_bpermute') or op.startswith('ds_swizzle'):
            self.kind = 'ds'; self.dst = R[0]; self.src = flat(R[1:])
        elif op.startswith('s_load') or op in ('s_memtime', 's_memrealtime'):
            self.kind = 'smem'; self.dst = R[0]; self.src = flat(R[1:])
        elif op == 's_waitcnt':
            self.kind = 'wait'
            m = re.search(r'vmcnt\((\d+)\)', rest); self.vm = int(m.group(1)) if m else None
            m = re.search(r'lgkmcnt\((\d+)\)', rest); self.lg = int(m.group(1)) if m else None
        elif op == 's_nop':
            self.kind = 'nop'; self.n = int(rest, 0) + 1
        elif op in ('s_branch',) or op.startswith('s_cbranch'):
            self.kind = 'branch'
        elif op in ('s_barrier', 's_endpgm', 's_setprio', 's_sleep'):
            self.kind = 'salu'
        elif op.startswith('s_cmp') or op.startswith('s_bitcmp'):
            self.kind = 'salu'; self.src = flat(R)
        elif op.startswith('s_'):
            self.kind = 'salu'; self.dst = R[0]; self.src = flat(R[1:])
            if 'saveexec' in op: self.dst = self.dst + parse_reg('exec'); self.src = self.src + parse_reg('exec')
        else:
            raise ValueError('unknown instr: ' + t)

class Pseudo:
    def __init__(self, kind, tag=None, extra=0):
        self.kind = kind; self.tag = tag; self.extra = extra; self.text = ''
        self.dst = []; self.src = []

class Prog:
    def __init__(self):
        self.L = []
    def __call__(self, text, tag=None):
        for line in text.split('\n'):
            if line.strip() == '': continue
            self.L.append(I(line.strip(), tag))
    def add(self, items):
        for x in items:
            if isinstance(x, str): self(x)
            elif isinstance(x, tuple): self(x[0], x[1])
            else: self.L.append(x)
    def wait_vm(self, tag):
        self.L.append(Pseudo('wait_vm', tag))
    def wait_lg(self, tag):
        self.L.append(Pseudo('wait_lg', tag))
    def forget(self):
        self.L.append(Pseudo('forget'))

def WVM(tag): return Pseudo('wait_vm', tag)
def WLG(tag): return Pseudo('wait_lg', tag)

def insert_waits(L):
    out = []
    vm = []
    lg = []
    smem = []
    def emit_wait(vmn=None, lgn=None):
        nonlocal vm, lg, smem
        s = []
        if vmn is not None:
            vmn = min(vmn, 63); s.append(f'vmcnt({vmn})'); vm = vm[len(vm) - vmn:] if vmn < len(vm) else vm
            if vmn == 0: vm = []
        if lgn is not None:
            lgn = min(lgn, 15); s.append(f'lgkmcnt({lgn})')
            if lgn == 0: lg = []; smem = []
            elif lgn < len(lg): lg = lg[len(lg) - lgn:]
        if out and isinstance(out[-1], I) and out[-1].kind == 'wait' and getattr(out[-1], 'auto', False):
            p = out.pop()
            v = p.vm if vmn is None else (vmn if p.vm is None else min(p.vm, vmn))
            g = p.lg if lgn is None else (lgn if p.lg is None else min(p.lg, lgn))
            s = ([f'vmcnt({v})'] if v is not None else []) + ([f'lgkmcnt({g})'] if g is not None else [])
        w = I('s_waitcnt ' + ' '.join(s)); w.auto = True
        out.append(w)
    for x in L:
        if isinstance(x, Pseudo):
            if x.kind == 'wait_vm':
                idx = [i for i, y in enumerate(vm) if y.tag == x.tag]
                if idx: emit_wait(vmn=len(vm) - 1 - max(idx))
            elif x.kind == 'wait_lg':
                idx = [i for i, y in enumerate(lg) if y.tag == x.tag]
                if idx: emit_wait(lgn=0 if smem else len(lg) - 1 - max(idx))
            elif x.kind == 'unknown_vm':
                k = 0
                while k < len(vm) and not getattr(vm[len(vm)-1-k], 'tag', None): k += 1
                vm = vm[:len(vm)-k] + vm[len(vm)-k:][:x.extra]
            elif x.kind == 'forget':
                vm = []; lg = []; smem = []
            continue
        if x.kind in ('label', 'comment', 'directive'):
            out.append(x); continue
        if x.kind == 'wait':
            if x.vm is not None:
                vm = vm[len(vm) - x.vm:] if 0 < x.vm < len(vm) else ([] if x.vm == 0 else vm)
            if x.lg is not None:
                if x.lg == 0: lg = []; smem = []
                elif x.lg < len(lg): lg = lg[len(lg) - x.lg:]
            out.append(x); continue
        touched = set(x.src) | set(x.dst)
        need_vm = None; need_lg = None
        for i, y in enumerate(vm):
            if touched & set(y.dst):
                n = len(vm) - 1 - i
                need_vm = n if need_vm is None else min(need_vm, n)
        for i, y in enumerate(lg):
            if touched & set(y.dst):
                n = len(lg) - 1 - i
                need_lg = n if need_lg is None else min(need_lg, n)
        for y in smem:
            if touched & set(y.dst): need_lg = 0
        if need_lg is not None and smem: need_lg = 0
        if need_vm is not None or need_lg is not None:
            emit_wait(need_vm, need_lg)
        out.append(x)
        if x.kind == 'vmem':
            vm.append(x)
            if len(vm) > 63: vm = vm[-63:] if False else vm
        elif x.kind == 'ds': lg.append(x)
        elif x.kind == 'smem': smem.append(x)
    return out

def slots(x):
    if x.kind == 'nop': return x.n
    if x.kind in ('label', 'comment', 'directive'): return 0
    return 1

def need_distance(p, c):
    n = 0
    pd = set(p.dst); cs = set(c.src); cd = set(c.dst)
    isv = lambda S: {r for r in S if r[0] in 'va'}
    iss = lambda S: {r for r in S if r[0] == 's'}
    if p.kind == 'valu':
        pv = isv(pd); ps = iss(pd)
        if c.kind == 'mfma' and pv & cs: n = max(n, 2)
        if c.kind == 'mfma' and (('s', 'exec_lo') in ps): n = max(n, 4)
        if c.kind == 'valu':
            if p.trans and not c.trans and pv & cs: n = max(n, 1)
            if c.base.startswith('v_permlane') and pv & cs: n = max(n, 2)
            if c.base in ('v_readfirstlane_b32', 'v_readlane_b32') and pv & cs: n = max(n, 1)
            if c.dpp and pv & cs: n = max(n, 2)
            if ps & cs: n = max(n, 4 if c.base in ('v_readlane_b32', 'v_writelane_b32') else 2)
            if ('s', 'exec_lo') in ps and (c.dpp): n = max(n, 5)
            if ('s', 'exec_lo') in ps and (c.base.startswith('v_permlane') or c.base.startswith('v_read')): n = max(n, 4)
        if c.kind == 'vmem' and ps & cs: n = max(n, 5)
        if c.kind in ('salu',) and ps & cs: n = max(n, 1)
    if p.kind == 'mfma':
        P = p.passes
        t = {4: (6, 8, 3), 8: (10, 12, 7)}[P]
        if c.kind == 'mfma':
            if pd & set(c.srcAB): n = max(n, t[1])
            if pd & set(c.srcC):
                if not (p.dst == c.srcC and p.passes == c.passes): n = max(n, t[0])
            if pd & cd and not (p.dst == c.dst): n = max(n, t[1])
        elif c.kind in ('valu', 'vmem', 'ds'):
            if pd & (cs | cd): n = max(n, t[1])
            if c.kind == 'valu' and set(p.srcC) & cd: n = max(n, t[2])
            if c.kind in ('vmem', 'ds') and set(p.srcC) & cd: n = max(n, t[2])
    if p.kind == 'vmem' and p.stdata and len(p.stdata) >= 3:
        if set(p.stdata) & cd: n = max(n, 2 if c.kind in ('valu', 'mfma') else 1)
    if p.kind == 'salu' and ('s', 'm0') in pd and c.kind == 'vmem' and getattr(c, 'lds_dma', False): n = max(n, 1)
    return n

def insert_nops(L, window=24):
    out = []
    added = 0
    for x in L:
        if x.kind in ('label', 'comment', 'directive'):
            out.append(x); continue
        need = 0
        d = 0
        for p in reversed(out):
            if d >= 20: break
            if p.kind not in ('label', 'comment', 'directive', 'nop', 'wait', 'branch'):
                r = need_distance(p, x)
                if r > d: need = max(need, r - d)
            d += slots(p)
        if need:
            out.append(I(f's_nop {need - 1}')); added += need
        out.append(x)
    return out, added

def finalize(prog, verbose=False):
    L = insert_waits(prog.L)
    L, added = insert_nops(L)
    if verbose: print('nop states added:', added)
    return L

def text(L):
    return '\n'.join(('' if x.kind == 'label' else '    ') + x.text for x in L) + '\n'

def interleave(main, fill, start=0, every=None, per=None):
    out = []
    n = len(main); fi = 0
    for i, m in enumerate(main):
        out += m if isinstance(m, list) else [m]
        if per is not None:
            k = per(i) if callable(per) else per[i]
        else:
            k = ((i + 1) * len(fill)) // n - (i * len(fill)) // n
        for _ in range(k):
            if fi < len(fill):
                f = fill[fi]; fi += 1
                out += f if isinstance(f, list) else [f]
    while fi < len(fill):
        f = fill[fi]; fi += 1
        out += f if isinstance(f, list) else [f]
    return out
```

```python
import sys, math, struct
from asmlib import *

NAME = "gated_mix__sliding_block__dense_activation_gelu__prompt"
def f2u(x): return struct.unpack('<I', struct.pack('<f', x))[0]

WS_E      = 0
FL_PREP   = 0x1000
G_OFF     = 0x4000
FL_QKV    = 0x20000
FL_H      = 0x40000
FL_O      = 0x60000
QKV_OFF   = 0x100000
A_OFF     = 0x700000
BP_OFF    = 0x1000000
WS_SIZE   = 0x1200000
STAMP_OFF = 0x1400000
QKV_TB = 168 * 512
A_TB = 144 * 1024
BP_C = 144 * 2048

LX = 0; LX_SLOT = 16384
LF = 49152; LF_SLOT = 16384
LQ = 98304; LQ_SLOT = 12288
LBIAS = 135168
LKV = 0
LRED = 49152
LDS_BYTES = 160 * 1024

S_WO, S_B1, S_W2, S_B2, S_GW = 8, 12, 14, 16, 18
SRD_X, SRD_WQ, SRD_W1, SRD_WS, SRD_OUT, SRD_P = 28, 32, 36, 40, 44, 48
S_WAVE, S_XCD, S_SLOT = 3, 10, 11
S_TAG = 26
S_RB, S_B, S_TB, S_ROT = 52, 53, 54, 55
S_T0, S_T1, S_T2, S_T3 = 56, 57, 58, 59
S_CNT = 60
S_QST, S_HST = 61, 62
S_T4 = 63
S_TAB = 64
S_BT = [4, 5, 6, 7, 20, 21, 22]
S_BOFF, S_BOFF2 = 23, 24
S_OFL = 25
S_AT = [28, 29, 30, 31, 32, 33, 34, 35, 36]
S_RBL = 9
S_R, S_C = 98, 99
S_J, S_PAR = 100, 101

def sr(b, n=2): return f"s[{b}:{b+n-1}]"
def vr(b, n): return f"v[{b}:{b+n-1}]" if n > 1 else f"v{b}"
def ar(b, n): return f"a[{b}:{b+n-1}]"

V_LANE = 1
V_L16, V_L16H = 2, 3
V_FLAGOFF = 4
V_TAG = 6
V_POLL = 8
V_PA = 10
V_T = 11
V_BA = 216
V_AA = 220
L_G = 222
L_RW = 224
L_RR = 227
L_OA = 228
V_PO, V_PP, V_PH = 229, 230, 231
V_PD = 232
L_BA = 234
V_DUM = 235
V_ST = 255
SC = 'sc1'

class Opt: pass

def mfma(d, a, b, c, areg='v'):
    A = ar(a, 4) if areg == 'a' else vr(a, 4)
    C = '0' if c is None else vr(c, 16)
    return f"v_mfma_f32_32x32x16_bf16 {vr(d,16)}, {A}, {vr(b,4)}, {C}"

lab = [0]
def stamp(P, o, name):
    if not o.stamps: return
    if name not in o.stamp_names: o.stamp_names.append(name)
    i = o.stamp_names.index(name)
    P(f"{o.clk} s[96:97]")
    P("s_waitcnt lgkmcnt(0)")
    P(f"v_writelane_b32 v{V_ST}, s96, {i}")

def stamp_flush(P, o):
    if not o.stamps: return
    if o.diag is not None:
        i, j, K = o.diag
        lab[0] += 1
        o.fix.append((lab[0], i, j))
        P(f"v_readlane_b32 s{S_T0}, v{V_ST}, DIAG_I")
        P(f"v_readlane_b32 s{S_T1}, v{V_ST}, DIAG_J")
        P("s_nop 4")
        P(f"s_sub_u32 s{S_T0}, s{S_T1}, s{S_T0}")
        P(f"s_mul_i32 s{S_T0}, s{S_T0}, {K}")
        P(f"s_min_u32 s{S_T0}, s{S_T0}, 20000")
        P(f"s_cmp_ge_u32 s{S_SLOT}, 28")
        P(f"s_cselect_b32 s{S_T0}, 0, s{S_T0}")
        P("s_memrealtime s[96:97]")
        P("s_waitcnt lgkmcnt(0)")
        P(f"s_mov_b32 s{S_T1}, s96")
        P(f"L_dg{lab[0]}:")
        P("s_memrealtime s[96:97]")
        P("s_waitcnt lgkmcnt(0)")
        P(f"s_sub_u32 s{S_T2}, s96, s{S_T1}")
        P(f"s_cmp_lt_u32 s{S_T2}, s{S_T0}")
        P(f"s_cbranch_scc1 L_dg{lab[0]}")
        return
    P("s_waitcnt vmcnt(0)")
    P(f"s_lshl_b32 s{S_T0}, s2, 2")
    P(f"s_add_u32 s{S_T0}, s{S_T0}, s{S_WAVE}")
    P(f"s_lshl_b32 s{S_T0}, s{S_T0}, 8")
    P(f"s_add_u32 s{S_T0}, s{S_T0}, {STAMP_OFF}")
    P(f"s_mov_b32 s{SRD_WS+2}, {STAMP_OFF + 0x100000}")
    P(f"v_lshlrev_b32 v{V_T}, 2, v{V_LANE}")
    P(f"buffer_store_dword v{V_ST}, v{V_T}, {sr(SRD_WS,4)}, s{S_T0} offen")

def setup(P, o, end_label):
    if o.stamps: P(f"{o.clk} s[94:95]")
    P(f"s_load_dwordx2 {sr(SRD_X)}, s[0:1], 0")
    P(f"s_load_dwordx2 {sr(SRD_WQ)}, s[0:1], 8")
    P(f"s_load_dwordx2 {sr(SRD_W1)}, s[0:1], 32")
    P(f"s_load_dwordx4 s[12:15], s[0:1], 40")
    P(f"s_load_dwordx2 {sr(SRD_WS)}, s[0:1], 88")
    P(f"s_load_dwordx4 s[16:19], s[0:1], 56")
    P(f"s_load_dwordx2 {sr(SRD_OUT)}, s[0:1], 72")
    P(f"s_load_dwordx2 {sr(S_BT[0])}, s[0:1], 16")
    P("s_cmp_ge_u32 s2, 256")
    P(f"s_cbranch_scc1 {end_label}")
    P(f"s_getpc_b64 s[{S_T0}:{S_T1}]")
    P(f"v_lshlrev_b32 v{V_T}, 7, v0")
    P(f"v_min_u32 v{V_T}, {o.code_bytes - 128}, v{V_T}")
    if o.cpf: P(f"global_load_dword v{V_DUM}, v{V_T}, s[{S_T0}:{S_T1}]", tag='pf')
    if o.stamps: P(f"v_mov_b32 v{V_ST}, 0")
    P(f"v_lshrrev_b32 v5, 6, v0")
    P(f"v_and_b32 v{V_LANE}, 63, v0")
    P(f"v_readfirstlane_b32 s{S_WAVE}, v5")
    P(f"s_and_b32 s{S_XCD}, s2, 7")
    P(f"s_lshr_b32 s{S_SLOT}, s2, 3")
    P(f"s_mul_i32 s{S_RBL}, s{S_SLOT}, 37")
    P(f"s_lshr_b32 s{S_RBL}, s{S_RBL}, 8")
    P(f"s_mul_i32 s{S_T3}, s{S_RBL}, 7")
    P(f"s_sub_u32 s{S_C}, s{S_SLOT}, s{S_T3}")
    for d, size in ((SRD_X, 2048*896), (SRD_WQ, 448*2688), (SRD_W1, 448*3584), (SRD_WS, WS_SIZE), (SRD_OUT, 2048*896)):
        P(f"s_mov_b32 s{d+2}, {size}")
        P(f"s_mov_b32 s{d+3}, 0x20000")

def common2(P, o):
    P(f"v_lshlrev_b32 v{V_L16}, 4, v{V_LANE}")
    P(f"v_cmp_eq_u32 vcc, 0, v{V_LANE}")
    P(f"v_mov_b32 v5, 0x7fff0000")
    P(f"v_add_u32 v{V_L16H}, 0x1000, v{V_L16}")
    P(f"v_cndmask_b32_e64 v{V_FLAGOFF}, v5, 0, vcc")
    P(f"s_lshl_b32 s{S_R}, s{S_XCD}, 2")
    P(f"s_add_u32 s{S_R}, s{S_R}, s{S_RBL}")
    P(f"v_and_b32 v{V_PP}, 31, v{V_LANE}")
    P(f"v_lshlrev_b32 v{V_PP}, 7, v{V_PP}")
    P(f"v_add_u32 v{V_PP}, {FL_PREP}, v{V_PP}")

def rot_calc(P, dst, ka, kb, kc):
    P(f"s_mul_i32 s{S_T2}, s{S_RBL}, {kb}")
    P(f"s_mul_i32 s{dst}, s{S_C}, {ka}")
    P(f"s_add_u32 s{dst}, s{dst}, s{S_T2}")
    P(f"s_mul_i32 s{S_T2}, s{S_XCD}, {kc}")
    P(f"s_add_u32 s{dst}, s{dst}, s{S_T2}")
    P(f"s_mul_i32 s{S_T2}, s{dst}, 37")
    P(f"s_lshr_b32 s{S_T2}, s{S_T2}, 8")
    P(f"s_mul_i32 s{S_T2}, s{S_T2}, 7")
    P(f"s_sub_u32 s{dst}, s{dst}, s{S_T2}")

def make_tag(P, o):
    P("s_waitcnt lgkmcnt(0)")
    P(f"s_mul_i32 s{S_TAG}, s{S_TAG}, 0x9e3779b1")
    P(f"s_add_u32 s{S_TAG}, s{S_TAG}, 0x7f4a7c15")
    P(f"s_xor_b32 s{S_TAG+1}, s{S_TAG}, 0x5bd1e995")
    P(f"v_mov_b32 v{V_TAG}, s{S_TAG}")
    P(f"v_mov_b32 v{V_TAG+1}, s{S_TAG+1}")

def make_tag_v():
    return [f"v_readfirstlane_b32 s{S_TAG}, v{V_TAG}",
            f"s_mul_i32 s{S_TAG}, s{S_TAG}, 0x9e3779b1",
            f"s_add_u32 s{S_TAG}, s{S_TAG}, 0x7f4a7c15",
            f"s_xor_b32 s{S_TAG+1}, s{S_TAG}, 0x5bd1e995",
            f"v_mov_b32 v{V_TAG}, s{S_TAG}",
            f"v_mov_b32 v{V_TAG+1}, s{S_TAG+1}"]

def poll(P, o, addr_v, limit=4000):
    lab[0] += 1
    L = f"L_poll{lab[0]}"
    P(f"s_mov_b32 s{S_CNT}, {limit}")
    P(f"{L}:")
    P(f"buffer_load_dwordx2 {vr(V_POLL,2)}, v{addr_v}, {sr(SRD_WS,4)}, 0 offen sc1")
    P(f"s_sub_u32 s{S_CNT}, s{S_CNT}, 1")
    P("s_waitcnt vmcnt(0)")
    P(f"v_cmp_ne_u64 vcc, {sr(S_TAG)}, {vr(V_POLL,2)}")
    P(f"s_cbranch_scc1 {L}_x")
    P(f"s_cbranch_vccnz {L}")
    P(f"{L}_x:")

slow_paths = []
def poll_issue(addr_v, dst):
    return [f"buffer_load_dwordx2 {vr(dst,2)}, v{addr_v}, {sr(SRD_WS,4)}, 0 offen sc1"]
def poll_check(addr_v, dst, limit=4000):
    lab[0] += 1
    L = f"L_pc{lab[0]}"
    slow_paths.append(f"""{L}_slow:
s_mov_b32 s{S_CNT}, {limit}
{L}_loop:
buffer_load_dwordx2 {vr(dst,2)}, v{addr_v}, {sr(SRD_WS,4)}, 0 offen sc1
s_sub_u32 s{S_CNT}, s{S_CNT}, 1
s_waitcnt vmcnt(0)
v_cmp_ne_u64 vcc, {sr(S_TAG)}, {vr(dst,2)}
s_cbranch_scc1 {L}_back
s_cbranch_vccnz {L}_loop
s_branch {L}_back""")
    return [f"v_cmp_ne_u64 vcc, {sr(S_TAG)}, {vr(dst,2)}", f"s_cbranch_vccnz {L}_slow", f"{L}_back:"]

def flag_store(soff):
    return [f"buffer_store_dwordx2 {vr(V_TAG,2)}, v{V_FLAGOFF}, {sr(SRD_WS,4)}, s{soff} offen sc1"]

ACC_Q, ACC_F = 16, 64
FR = 128
V_XD, V_QD, V_FD = 192, 196, 199
V_XR, V_QR, V_FRD = 203, 207, 208
V_CA, V_CB = 212, 214
GT = 128

def s1_dma(c_slot, ci):
    L = []
    tagn = f'dma{ci}'
    L.append([f"s_mov_b32 m0, s{S_TAB+21+c_slot}"])
    for i in range(4):
        L.append([(f"buffer_load_dwordx4 v{V_XD+i}, {sr(SRD_X,4)}, s{S_TAB+ci} offen offset:{i*1024} lds", tagn)])
    L.append([f"s_mov_b32 m0, s{S_TAB+24+c_slot}"])
    for i in range(3):
        L.append([(f"buffer_load_dwordx4 v{V_QD+i}, {sr(SRD_WQ,4)}, s{S_TAB+7+ci} offen offset:{i*1024} lds", tagn)])
    L.append([f"s_mov_b32 m0, s{S_TAB+27+c_slot}"])
    for i in range(4):
        L.append([(f"buffer_load_dwordx4 v{V_FD+i}, {sr(SRD_W1,4)}, s{S_TAB+14+ci} offen offset:{i*1024} lds", tagn)])
    return L

def s1_reads(slot, s, fset):
    base = FR + 32 * fset
    L = [f"ds_read_b128 {vr(base,4)}, v{V_XR+s} offset:{LX + slot*LX_SLOT}"]
    for t in range(7):
        for rho in range(2):
            d = base + 4 + 4 * t + 2 * rho
            if t < 3:
                L.append(f"ds_read_b64_tr_b16 {vr(d,2)}, v{V_QR} offset:{slot*LQ_SLOT + (16*s+4*rho)*192 + t*64}")
            else:
                L.append(f"ds_read_b64_tr_b16 {vr(d,2)}, v{V_FRD+t-3} offset:{slot*LF_SLOT + (16*s+4*rho)*256}")
    return L

def s1_tab(P, o, i):
    if o.rot == (0, 0, 0):
        P(f"s_mov_b32 s{S_TAB+i}, {i*128}")
        P(f"s_mov_b32 s{S_TAB+7+i}, {i*64*2688}")
        P(f"s_mov_b32 s{S_TAB+14+i}, {i*64*3584}")
        return
    if i > 0:
        P(f"s_add_u32 s{S_T4}, s{S_T4}, 1")
        P(f"s_cmp_eq_u32 s{S_T4}, 7")
        P(f"s_cselect_b32 s{S_T4}, 0, s{S_T4}")
    P(f"s_lshl_b32 s{S_TAB+i}, s{S_T4}, 7")
    P(f"s_mul_i32 s{S_TAB+7+i}, s{S_T4}, {64*2688}")
    P(f"s_mul_i32 s{S_TAB+14+i}, s{S_T4}, {64*3584}")

def s1_m0tab(P, k):
    P(f"s_add_u32 s{S_TAB+21+k}, s{S_T0}, {LX + k*LX_SLOT}")
    P(f"s_add_u32 s{S_TAB+24+k}, s{S_T1}, {LQ + k*LQ_SLOT}")
    P(f"s_add_u32 s{S_TAB+27+k}, s{S_T0}, {LF + k*LF_SLOT}")

def stage1_setup(P, o):
    T = V_T
    P(f"s_and_b32 s{S_RB}, s{S_XCD}, 3")
    P(f"s_lshl_b32 s{S_RB}, s{S_RB}, 2")
    P(f"s_add_u32 s{S_RB}, s{S_RB}, s{S_RBL}")
    P(f"s_lshr_b32 s{S_B}, s{S_XCD}, 2")
    P(f"s_mul_i32 s{S_B}, s{S_B}, 7")
    P(f"s_add_u32 s{S_B}, s{S_B}, s{S_C}")
    P(f"s_lshl_b32 s{S_TB}, s{S_RB}, 2")
    P(f"s_add_u32 s{S_TB}, s{S_TB}, s{S_WAVE}")
    if o.rot != (0, 0, 0): rot_calc(P, S_T4, *o.rot)
    s1_tab(P, o, 0)
    P(f"v_lshrrev_b32 v{T}, 3, v{V_LANE}")
    P(f"v_and_b32 v{T+1}, 7, v{V_LANE}")
    P(f"v_lshrrev_b32 v{T+2}, 4, v{V_LANE}")
    P(f"s_lshl_b32 s{S_T2}, s{S_TB}, 5")
    P(f"v_add_u32 v{T}, s{S_T2}, v{T}")
    P(f"v_mul_u32_u24 v{T}, 896, v{T}")
    P(f"v_xor_b32 v{T+1}, v{T+2}, v{T+1}")
    P(f"v_lshl_add_u32 v{V_XD}, v{T+1}, 4, v{T}")
    P(f"v_xor_b32 v{T+1}, 4, v{T+1}")
    P(f"v_lshl_add_u32 v{V_XD+1}, v{T+1}, 4, v{T}")
    P(f"v_add_u32 v{V_XD+2}, {2*(8*896-1024)}, v{V_XD}")
    P(f"v_add_u32 v{V_XD+3}, {3*(8*896-1024)}, v{V_XD+1}")
    P(f"v_add_u32 v{V_XD+1}, {1*(8*896-1024)}, v{V_XD+1}")
    P(f"v_lshlrev_b32 v{T+1}, 2, v{T+2}")
    P(f"v_xor_b32 v{T+1}, v{T+1}, v{V_LANE}")
    P(f"v_and_b32 v{T+1}, 15, v{T+1}")
    P(f"s_lshl_b32 s{S_T2}, s{S_WAVE}, 4")
    P(f"v_add_u32 v{T}, s{S_T2}, v{T+2}")
    P(f"v_mul_u32_u24 v{T}, 3584, v{T}")
    P(f"s_lshl_b32 s{S_T3}, s{S_B}, 8")
    P(f"v_lshl_add_u32 v{T}, v{T+1}, 4, v{T}")
    P(f"v_add_u32 v{V_FD}, s{S_T3}, v{T}")
    for i in range(1, 4):
        P(f"v_add_u32 v{V_FD+i}, {i*(4*3584-1024)}, v{V_FD}")
    P(f"v_lshl_add_u32 v5, v{V_LANE}, 2, s{S_T3}")
    P(f"s_mul_i32 s{S_T2}, s{S_WAVE}, 192")
    P(f"s_mul_i32 s{S_T3}, s{S_B}, 192")
    P(f"v_add_u32 v{T}, s{S_T2}, v{V_LANE}")
    P(f"v_lshl_add_u32 v{T+2}, v{T}, 4, s{S_T3}")
    P(f"v_mul_u32_u24 v{T}, 0xaaab, v{T}")
    P(f"s_movk_i32 s{S_T3}, 2496")
    for i in range(3):
        if i: P(f"v_add_u32 v{T}, {64*0xaaab}, v{T}")
        P(f"v_lshrrev_b32 v{T+1}, 19, v{T}")
        P(f"v_mad_u32_u24 v{V_QD+i}, v{T+1}, s{S_T3}, v{T+2}")
    P(f"s_lshl_b32 s{S_T0}, s{S_WAVE}, 12")
    P(f"s_mul_i32 s{S_T1}, s{S_WAVE}, 3072")
    s1_m0tab(P, 0)

def l2_prefetch(P, o):
    T = V_T
    P(f"s_cmp_eq_u32 s{S_WAVE}, 2")
    P("s_cbranch_scc1 L_pf_x")
    P(f"v_lshrrev_b32 v{T}, 5, v{V_LANE}")
    P(f"v_bfe_u32 v{T+1}, v{V_LANE}, 1, 4")
    P(f"v_lshl_add_u32 v{T}, v{T}, 6, v{T+1}")
    P(f"s_lshl_b32 s{S_T2}, s{S_RBL}, 4")
    P(f"v_add_u32 v{T}, s{S_T2}, v{T}")
    P(f"v_and_b32 v{T+1}, 1, v{V_LANE}")
    P(f"v_lshlrev_b32 v{T+1}, 7, v{T+1}")
    P(f"s_mul_i32 s{S_T2}, s{S_B}, 192")
    P(f"s_and_b32 s{S_T2}, s{S_T2}, 0xffffff80")
    P(f"v_mul_u32_u24 v{T+2}, 2688, v{T}")
    P(f"v_add3_u32 v{T+2}, v{T+2}, v{T+1}, s{S_T2}")
    P(f"s_lshl_b32 s{S_T2}, s{S_B}, 8")
    P(f"v_mul_u32_u24 v{T}, 3584, v{T}")
    P(f"v_add3_u32 v{T}, v{T}, v{T+1}, s{S_T2}")
    P(f"s_cmp_eq_u32 s{S_WAVE}, 1")
    P("s_cbranch_scc1 L_pf_1")
    P(f"s_cmp_eq_u32 s{S_WAVE}, 0")
    P(f"s_cselect_b32 s{S_T2}, 1, 3")
    P(f"s_mul_i32 s{S_T2}, s{S_T2}, {64*2688}")
    P(f"buffer_load_dword v{V_DUM+1}, v{T+2}, {sr(SRD_WQ,4)}, s{S_T2} offen")
    P("s_cbranch_scc0 L_pf_3")
    P(f"s_mov_b32 s{S_T2}, {5*64*2688}")
    P(f"buffer_load_dword v{V_DUM+2}, v{T+2}, {sr(SRD_WQ,4)}, s{S_T2} offen")
    P("s_branch L_pf_done")
    P("L_pf_3:")
    P(f"s_mov_b32 s{S_T2}, {3*64*3584}")
    P(f"buffer_load_dword v{V_DUM+7}, v{T}, {sr(SRD_W1,4)}, s{S_T2} offen")
    P("s_branch L_pf_done")
    P("L_pf_1:")
    P(f"s_mov_b32 s{S_T2}, {64*3584}")
    P(f"s_mov_b32 s{S_T3}, {5*64*3584}")
    P(f"buffer_load_dword v{V_DUM+3}, v{T}, {sr(SRD_W1,4)}, s{S_T2} offen")
    P(f"buffer_load_dword v{V_DUM+4}, v{T}, {sr(SRD_W1,4)}, s{S_T3} offen")
    P("s_branch L_pf_done")
    P("L_pf_x:")
    P(f"v_mul_u32_u24 v{T}, 27, v{V_LANE}")
    P(f"v_lshrrev_b32 v{T}, 9, v{T}")
    P(f"v_mul_u32_u24 v{T+1}, 19, v{T}")
    P(f"v_sub_u32 v{T+1}, v{V_LANE}, v{T+1}")
    P(f"s_mul_i32 s{S_T2}, s{S_C}, 19")
    P(f"v_add_u32 v{T+1}, s{S_T2}, v{T+1}")
    P(f"v_min_u32 v{T+1}, 127, v{T+1}")
    P(f"s_lshl_b32 s{S_T2}, s{S_RB}, 7")
    P(f"v_add_u32 v{T+1}, s{S_T2}, v{T+1}")
    P(f"v_mul_u32_u24 v{T+1}, 896, v{T+1}")
    P(f"v_min_u32 v{T}, 2, v{T}")
    P(f"v_lshl_add_u32 v{T}, v{T}, 7, v{T+1}")
    P(f"buffer_load_dword v{V_DUM+5}, v{T}, {sr(SRD_X,4)}, 0 offen offset:128")
    P(f"buffer_load_dword v{V_DUM+6}, v{T}, {sr(SRD_X,4)}, 0 offen offset:512")
    P("L_pf_done:")

def stage1_setup2(P, o):
    T = V_T
    P(f"s_lshl_b32 s{S_T0}, s{S_WAVE}, 12")
    P(f"s_mul_i32 s{S_T1}, s{S_WAVE}, 3072")
    s1_m0tab(P, 1); s1_m0tab(P, 2)
    for i in range(1, 7): s1_tab(P, o, i)
    P(f"v_and_b32 v{T}, 31, v{V_LANE}")
    P(f"v_lshrrev_b32 v{T+1}, 5, v{V_LANE}")
    P(f"v_bfe_u32 v{T+2}, v{V_LANE}, 1, 3")
    P(f"v_xor_b32 v{T+2}, v{T+2}, v{T+1}")
    P(f"v_lshl_add_u32 v{T}, v{T}, 7, s{S_T0}")
    for s in range(4):
        P(f"v_xor_b32 v{T+3}, {2*s}, v{T+2}")
        P(f"v_lshl_add_u32 v{V_XR+s}, v{T+3}, 4, v{T}")
    P(f"v_bfe_u32 v{T}, v{V_LANE}, 2, 2")
    P(f"v_lshl_add_u32 v{T+1}, v{T+1}, 3, v{T}")
    P(f"v_bfe_u32 v{T+2}, v{V_LANE}, 4, 1")
    P(f"v_lshlrev_b32 v{T+2}, 5, v{T+2}")
    P(f"v_and_b32 v{T+3}, 3, v{V_LANE}")
    P(f"v_lshl_add_u32 v{T+2}, v{T+3}, 3, v{T+2}")
    P(f"v_mul_u32_u24 v{T+3}, 192, v{T+1}")
    P(f"v_add_u32 v{T+3}, {LQ}, v{T+3}")
    P(f"v_add_u32 v{V_QR}, v{T+3}, v{T+2}")
    P(f"v_lshl_add_u32 v{T+2}, v{T+1}, 8, v{T+2}")
    P(f"v_add_u32 v{T+2}, {LF}, v{T+2}")
    for c in range(4):
        P(f"v_xor_b32 v{T+3}, {c}, v{T}")
        P(f"v_lshl_add_u32 v{V_FRD+c}, v{T+3}, 6, v{T+2}")
    A = -2.0 * math.sqrt(2.0 / math.pi) * 0.044715 * math.log2(math.e)
    B = -2.0 * math.sqrt(2.0 / math.pi) * math.log2(math.e)
    P(f"v_mov_b32 v{V_CA}, {hex(f2u(A))}")
    P(f"v_mov_b32 v{V_CB}, {hex(f2u(B))}")
    P(f"s_mul_i32 s{S_QST}, s{S_TB}, {QKV_TB}")
    P(f"s_mul_i32 s{S_T0}, s{S_B}, {3*2048}")
    P(f"s_add_u32 s{S_QST}, s{S_QST}, s{S_T0}")
    P(f"s_add_u32 s{S_QST}, s{S_QST}, {QKV_OFF}")
    P(f"s_mul_i32 s{S_HST}, s{S_TB}, {A_TB}")
    P(f"s_lshl_b32 s{S_T0}, s{S_B}, 13")
    P(f"s_add_u32 s{S_HST}, s{S_HST}, s{S_T0}")
    P(f"s_add_u32 s{S_HST}, s{S_HST}, {A_OFF}")

def bias_expand(P, src_v, tmp, addr):
    P(f"v_lshlrev_b32 v{tmp}, 16, v{src_v}")
    P(f"v_and_b32 v{tmp+1}, 0xffff0000, v{src_v}")
    P(f"s_lshl_b32 s{S_T0}, s{S_WAVE}, 9")
    P(f"s_add_u32 s{S_T0}, s{S_T0}, {LBIAS}")
    P(f"v_lshl_add_u32 v{tmp+2}, v{V_LANE}, 3, s{S_T0}")
    P(f"ds_write_b64 v{tmp+2}, {vr(tmp,2)}")
    P(f"v_lshrrev_b32 v{addr}, 5, v{V_LANE}")
    P(f"v_lshl_add_u32 v{addr}, v{addr}, 4, s{S_T0}")

def b_loads():
    L = []
    for g in range(7):
        for k in range(4):
            for ct in range(2):
                idx = (g * 4 + k) * 2 + ct
                L.append([(f"buffer_load_dwordx4 {ar(4*idx,4)}, v{V_BA+ct*2+(k>>1)}, {sr(SRD_WS,4)}, s{S_BT[g]} offen offset:{(k&1)*2048} {SC}", 'bld')])
    for k in range(4):
        for ct in range(2):
            idx = 56 + k * 2 + ct
            L.append([(f"buffer_load_dwordx4 {ar(4*idx,4)}, v{V_BA+ct*2+(k>>1)}, {sr(SRD_WS,4)}, s{S_BOFF} offen offset:{(k&1)*2048} {SC}", 'bld')])
    return L

def stage1(P, o, hooks):
    stage1_setup(P, o)
    if o.stamps: P(f"{o.clk} s[76:77]")
    P("s_waitcnt lgkmcnt(0)")
    if o.stamps:
        o.stamp_names += ['entry', 'pre_karg', 'karg', 'dma1st', 'dma5th']; P(f"v_writelane_b32 v{V_ST}, s94, 0")
        P(f"{o.clk} s[74:75]")
    d0 = s1_dma(0, 0)
    for i, it in enumerate(d0):
        P.add(it)
        if o.stamps and i == 1: P(f"{o.clk} s[72:73]")
        if o.stamps and i == 6: P(f"{o.clk} s[68:69]")
    P(f"global_load_dword v15, v5, {sr(S_B1)}", tag='dma0')
    stamp(P, o, 'd0_issued')
    if o.stamps:
        for i, r in enumerate([76, 74, 72, 68]): P(f"v_writelane_b32 v{V_ST}, s{r}, {i+1}")
    if o.pf:
        l2_prefetch(P, o)
        P.L.append(Pseudo('unknown_vm', extra=2))
    common2(P, o)
    stage1_setup2(P, o)
    last_baddr(P, o)
    late = [it for c in range(1, 3) for it in s1_dma(c, c)]
    late.append([f"buffer_load_dword v{V_TAG}, v{V_FLAGOFF}, {sr(SRD_WS,4)}, 0 offen"])
    hooks[12] = hooks.get(12, []) + [[x] for x in make_tag_v()]
    for it in late[:o.pre]: P.add(it)
    late = late[o.pre:]
    stamp(P, o, 's1_issued')
    bias_expand(P, 15, 12, 11)
    for F in range(4):
        for q in range(4):
            P(f"ds_read_b128 {vr(ACC_F+16*F+4*q,4)}, v11 offset:{(32*F+8*q)*4}")
    P.wait_vm('dma0')
    P("s_waitcnt lgkmcnt(0)")
    P("s_barrier")
    stamp(P, o, 's1_first')
    P.add(s1_reads(0, 0, 0))
    for c in range(7):
        for s in range(4):
            g = 4 * c + s
            fs = g & 1
            base = FR + 32 * fs
            P("s_waitcnt lgkmcnt(0)")
            if s == 3 and c < 6:
                P.wait_vm(f'dma{c+1}')
                P("s_barrier")
                if o.trunc == 's1': stamp(P, o, f'c{c}')
            M = []
            for t in range(7):
                acc = ACC_Q + 16 * t
                Cin = None if (g == 0 and t < 3) else acc
                M.append([mfma(acc, base + 4 + 4 * t, base, Cin)])
            rd = []
            if g < 27:
                nc, ns = (c, s + 1) if s < 3 else (c + 1, 0)
                rd = s1_reads(nc % 3, ns, fs ^ 1)
            ex = []
            cc, ph = (c, 0) if s == 3 else (c - 1, s + 1)
            if 0 <= cc and cc + 3 < 7:
                d = s1_dma(cc % 3, cc + 3)
                cut = [0, 4, 7, 11, 14]
                ex = d[cut[ph]:cut[ph + 1]]
            first = []
            if g < 3 and late:
                k = -(-len(late) // (3 - g)); first = late[:k]; late = late[k:]
            ex = first + ex + hooks.get(g, [])
            seq = []
            per = [3, 3, 3, 3, 3, 0, 0]
            ri = 0
            nslot = 7 if len(ex) > 4 else 4
            for t in range(7):
                seq += M[t]
                seq += rd[ri:ri + per[t]]; ri += per[t]
                j = t - (7 - nslot)
                if j >= 0:
                    for e in ex[(j * len(ex)) // nslot:((j + 1) * len(ex)) // nslot]: seq += e
            P.add(seq)
    stamp(P, o, 's1_loop')

def qkv_epilogue(P, o):
    c = (28.0 ** -0.5) * math.log2(math.e)
    P(f"s_mul_i32 s{S_T0}, s{S_B}, 3")
    P("s_nop 1")
    for t in range(3):
        acc = ACC_Q + 16 * t
        P(f"s_add_u32 s{S_T1}, s{S_T0}, {t}")
        P(f"s_cmp_lt_u32 s{S_T1}, 14")
        P(f"s_cbranch_scc0 L_nosc{t}")
        P(f"s_mov_b32 s{S_T2}, {hex(f2u(c))}")
        for i in range(8):
            P(f"v_pk_mul_f32 {vr(acc+2*i,2)}, {vr(acc+2*i,2)}, s[{S_T2}:{S_T3}] op_sel_hi:[1,0]")
        P(f"L_nosc{t}:")
        p = GT + 8 * t
        for i in range(8):
            P(f"v_cvt_pk_bf16_f32 v{p+i}, v{acc+2*i}, v{acc+2*i+1}")
        for h in range(2):
            P(f"v_permlane32_swap_b32 v{p+4*h}, v{p+4*h+2}")
            P(f"v_permlane32_swap_b32 v{p+4*h+1}, v{p+4*h+3}")
        for h in range(2):
            off = t * 2048 + h * 1024
            P(f"buffer_store_dwordx4 {vr(p+4*h,4)}, v{V_L16H if off >= 4096 else V_L16}, {sr(SRD_WS,4)}, s{S_QST} offen offset:{off & 4095} {SC}", tag='qst')

def gelu_tile(F):
    u = ACC_F + 16 * F
    t = GT + 32 + 16 * (F & 1)
    L = []
    pr = lambda b, i: vr(b + 2 * i, 2)
    for i in range(8): L.append(f"v_pk_mul_f32 {pr(t,i)}, {pr(u,i)}, {pr(u,i)}")
    for i in range(8): L.append(f"v_pk_fma_f32 {pr(t,i)}, {pr(t,i)}, {vr(V_CA,2)}, {vr(V_CB,2)} op_sel_hi:[1,0,0]")
    for i in range(8): L.append(f"v_pk_mul_f32 {pr(t,i)}, {pr(t,i)}, {pr(u,i)}")
    for i in range(16): L.append(f"v_exp_f32 v{t+i}, v{t+i}")
    for i in range(8): L.append(f"v_pk_add_f32 {pr(t,i)}, {pr(t,i)}, 1.0 op_sel_hi:[1,0]")
    for i in range(16): L.append(f"v_rcp_f32 v{t+i}, v{t+i}")
    for i in range(8): L.append(f"v_pk_mul_f32 {pr(t,i)}, {pr(t,i)}, {pr(u,i)}")
    for i in range(8): L.append(f"v_cvt_pk_bf16_f32 v{u+i}, v{t+2*i}, v{t+2*i+1}")
    for h in range(2):
        off = (2 * F + h) * 1024
        L.append((f"buffer_store_dwordx4 {vr(u+4*h,4)}, v{V_L16H if off >= 4096 else V_L16}, {sr(SRD_WS,4)}, s{S_HST} offen offset:{off & 4095} {SC}", 'hst'))
    return L

def prep(P, o):
    T = V_T
    S_SP = S_RB
    P(f"s_sub_u32 s{S_SP}, s2, 224")
    P(f"s_lshl_b32 s{S_T4}, s{S_SP}, 2")
    P(f"s_add_u32 s{S_T4}, s{S_T4}, s{S_WAVE}")
    P(f"v_lshrrev_b32 v21, 3, v{V_LANE}")
    P(f"v_and_b32 v22, 7, v{V_LANE}")
    P(f"v_bfe_u32 v23, v{V_LANE}, 4, 1")
    P(f"v_lshlrev_b32 v23, 2, v23")
    P(f"v_xor_b32 v22, v22, v23")
    P(f"v_lshlrev_b32 v22, 4, v22")
    P(f"s_lshl_b32 s{S_TAB+20}, s{S_WAVE}, 14")
    P(f"s_mov_b32 s{SRD_P+2}, {1792*896}")
    P(f"s_mov_b32 s{SRD_P+3}, 0x20000")
    P(f"s_mov_b32 s{SRD_WQ+2}, {448*896}")
    P("s_waitcnt lgkmcnt(0)")
    if o.stamps: P(f"v_writelane_b32 v{V_ST}, s94, 0")
    P(f"s_load_dword s{S_TAG}, {sr(SRD_WS)}, {WS_E}")
    P(f"s_mov_b64 {sr(SRD_P)}, {sr(S_W2)}")
    P(f"s_mov_b64 {sr(SRD_WQ)}, {sr(S_BT[0])}")
    for i in range(8):
        it, ks, cc = S_TAB + 21, S_TAB + i, S_TAB + 8 + i
        P(f"s_lshl_b32 s{it}, s{S_T4}, 3")
        P(f"s_add_u32 s{it}, s{it}, {i}")
        P(f"s_min_u32 s{it}, s{it}, 1007")
        P(f"s_mul_i32 s{ks}, s{it}, 9363")
        P(f"s_lshr_b32 s{ks}, s{ks}, 16")
        P(f"s_mul_i32 s{cc}, s{ks}, 7")
        P(f"s_sub_u32 s{cc}, s{it}, s{cc}")
        P(f"s_add_u32 m0, s{S_TAB+20}, {i*2048}")
        P(f"s_cmp_lt_u32 s{ks}, 112")
        P(f"s_cbranch_scc0 L_prep_o{i}")
        P(f"s_lshl_b32 s{S_T0}, s{ks}, 4")
        P(f"v_add_u32 v24, s{S_T0}, v21")
        P(f"v_mul_u32_u24 v24, 896, v24")
        P(f"v_add_u32 v24, v24, v22")
        P(f"v_add_u32 v25, {8*896-1024}, v24")
        P(f"s_lshl_b32 s{S_T0}, s{cc}, 7")
        P(f"buffer_load_dwordx4 v24, {sr(SRD_P,4)}, s{S_T0} offen lds")
        P(f"buffer_load_dwordx4 v25, {sr(SRD_P,4)}, s{S_T0} offen offset:1024 lds")
        P(f"s_branch L_prep_n{i}")
        P(f"L_prep_o{i}:")
        P(f"s_sub_u32 s{S_T0}, s{ks}, 112")
        P(f"s_lshr_b32 s{S_T1}, s{S_T0}, 1")
        P(f"s_and_b32 s{S_T0}, s{S_T0}, 1")
        P(f"s_lshl_b32 s{S_T0}, s{S_T0}, 4")
        P(f"s_mul_i32 s{S_T2}, s{S_T1}, 7")
        P(f"s_lshr_b32 s{S_T2}, s{S_T2}, 1")
        P(f"s_lshl_b32 s{S_T2}, s{S_T2}, 3")
        P(f"s_add_u32 s{S_T2}, s{S_T2}, s{S_T0}")
        P(f"s_mul_i32 s{S_T1}, s{S_T1}, 28")
        for hh in range(2):
            P(f"v_add_u32 v26, s{S_T2}, v21")
            if hh: P(f"v_add_u32 v26, 8, v26")
            P(f"v_subrev_u32 v27, s{S_T1}, v26")
            P(f"v_cmp_gt_u32 vcc, 28, v27")
            P(f"v_mul_u32_u24 v26, 896, v26")
            P(f"v_add_u32 v26, v26, v22")
            if hh: P(f"v_subrev_u32 v26, 1024, v26")
            P(f"v_mov_b32 v27, 0x7fff0000")
            P(f"v_cndmask_b32 v{24+hh}, v27, v26, vcc")
        P(f"s_lshl_b32 s{S_T0}, s{cc}, 7")
        P(f"buffer_load_dwordx4 v24, {sr(SRD_WQ,4)}, s{S_T0} offen lds")
        P(f"buffer_load_dwordx4 v25, {sr(SRD_WQ,4)}, s{S_T0} offen offset:1024 lds")
        P(f"L_prep_n{i}:")
    common2(P, o)
    P(f"v_bfe_u32 v21, v{V_LANE}, 2, 2")
    P(f"v_lshrrev_b32 v22, 5, v{V_LANE}")
    P(f"v_lshl_add_u32 v22, v22, 2, v21")
    P(f"v_lshlrev_b32 v22, 7, v22")
    P(f"v_bfe_u32 v23, v{V_LANE}, 4, 1")
    P(f"v_lshl_add_u32 v22, v23, 5, v22")
    P(f"v_and_b32 v23, 3, v{V_LANE}")
    P(f"v_lshl_add_u32 v22, v23, 3, v22")
    P(f"v_add_u32 v22, s{S_TAB+20}, v22")
    P(f"v_lshrrev_b32 v21, 1, v21")
    P(f"v_lshl_add_u32 v23, v21, 6, v22")
    P(f"v_xor_b32 v21, 1, v21")
    P(f"v_lshl_add_u32 v22, v21, 6, v22")
    P(f"v_lshrrev_b32 v{T}, 2, v{V_LANE}")
    P(f"s_lshl_b32 s{S_T0}, s{S_T4}, 4")
    P(f"v_add_u32 v20, s{S_T0}, v{T}")
    P(f"v_mul_u32_u24 v{T}, 896, v20")
    P(f"v_and_b32 v{T+1}, 3, v{V_LANE}")
    P(f"v_lshlrev_b32 v{T+1}, 4, v{T+1}")
    P(f"v_add_u32 v{T}, v{T}, v{T+1}")
    for i in range(8):
        ks, cc = S_TAB + i, S_TAB + 8 + i
        P(f"s_mul_i32 s{S_T0}, s{cc}, {BP_C}")
        P(f"s_lshl_b32 s{S_T1}, s{ks}, 11")
        P(f"s_add_u32 s{S_T0}, s{S_T0}, s{S_T1}")
        P(f"s_add_u32 s{ks}, s{S_T0}, {BP_OFF}")
    make_tag(P, o)
    P("s_waitcnt vmcnt(0)")
    stamp(P, o, 'p_land')
    for i in range(8):
        d = 160 + 8 * i
        for ct in range(2):
            for rho in range(2):
                P(f"ds_read_b64_tr_b16 {vr(d+4*ct+2*rho,2)}, v{23-ct} offset:{i*2048 + rho*1024}")
        if i >= 1:
            for ct in range(2):
                P(f"buffer_store_dwordx4 {vr(d-8+4*ct,4)}, v{V_L16}, {sr(SRD_WS,4)}, s{S_TAB+i-1} offen offset:{ct*1024} {SC}")
    for ct in range(2):
        P(f"buffer_store_dwordx4 {vr(160+56+4*ct,4)}, v{V_L16}, {sr(SRD_WS,4)}, s{S_TAB+7} offen offset:{ct*1024} {SC}")
    for i in range(14):
        P(f"buffer_load_dwordx4 {vr(32+4*i,4)}, v{T}, {sr(SRD_X,4)}, 0 offen offset:{64*i}")
        P(f"global_load_dwordx4 {vr(96+4*i,4)}, v{T+1}, {sr(S_GW)} offset:{64*i}")
    P("v_mov_b32 v24, 0")
    P("v_mov_b32 v25, 0")
    for i in range(56):
        P(f"v_dot2_f32_bf16 v{24+(i&1)}, v{32+i}, v{96+i}, v{24+(i&1)}")
    P("s_nop 2")
    P("v_add_f32 v24, v24, v25")
    P("v_add_f32_dpp v24, v24, v24 quad_perm:[1,0,3,2] row_mask:0xf bank_mask:0xf")
    P("v_add_f32_dpp v24, v24, v24 quad_perm:[2,3,0,1] row_mask:0xf bank_mask:0xf")
    P(f"v_mul_f32 v24, {hex(f2u(-math.log2(math.e)))}, v24")
    P("v_exp_f32 v24, v24")
    P("v_add_f32 v24, 1.0, v24")
    P("v_rcp_f32 v24, v24")
    P(f"v_lshlrev_b32 v20, 2, v20")
    P(f"v_and_b32 v25, 3, v{V_LANE}")
    P(f"v_cmp_eq_u32 vcc, 0, v25")
    P(f"v_mov_b32 v27, 0x7fff0000")
    P(f"v_cndmask_b32 v20, v27, v20, vcc")
    P(f"s_mov_b32 s{S_T0}, {G_OFF}")
    P(f"buffer_store_dword v24, v20, {sr(SRD_WS,4)}, s{S_T0} offen {SC}")
    P("s_waitcnt vmcnt(0) lgkmcnt(0)")
    P("s_barrier")
    P(f"s_lshl_b32 s{S_T0}, s{S_SP}, 7")
    P(f"s_add_u32 s{S_T0}, s{S_T0}, {FL_PREP}")
    P(f"s_cmp_eq_u32 s{S_WAVE}, 0")
    P("s_cbranch_scc0 L_prep_nf")
    P.add(flag_store(S_T0))
    P("L_prep_nf:")
    stamp(P, o, 'p_flag')

AQ = 16
AK = 24
AV = 40
AS = 56
AN = 104
AO = 120
AP = 136
AM = 160
A_KR, A_VR = 168, 169
A_KD, A_VD = 171, 172
A_PA, A_PV = 174, 175
A_G = 178
A_MX = 179

def att_scalars(P, o):
    P(f"s_and_b32 s{S_RB}, s{S_SLOT}, 15")
    P(f"s_lshr_b32 s{S_J}, s{S_SLOT}, 4")
    P(f"s_lshl_b32 s{S_T0}, s{S_XCD}, 1")
    P(f"s_add_u32 s{S_J}, s{S_J}, s{S_T0}")
    P(f"s_lshl_b32 s{S_TB}, s{S_RB}, 2")
    P(f"s_add_u32 s{S_TB}, s{S_TB}, s{S_WAVE}")
    P(f"s_and_b32 s{S_PAR}, s{S_J}, 1")
    P(f"s_lshl_b32 s{S_T0}, s{S_TB}, 4")
    P(f"s_add_u32 s{S_T0}, s{S_T0}, s{S_J}")
    P(f"s_lshl_b32 s{S_T0}, s{S_T0}, 7")
    P(f"s_add_u32 s{S_OFL}, s{S_T0}, {FL_O}")

def att_poll_addr(P, o):
    T = V_T
    P(f"v_min_u32 v{T}, 13, v{V_LANE}")
    P(f"v_lshrrev_b32 v{T+1}, 1, v{T}")
    P(f"v_and_b32 v{T}, 1, v{T}")
    P(f"s_mul_i32 s{S_T0}, s{S_J}, 7")
    P(f"s_lshr_b32 s{S_T0}, s{S_T0}, 1")
    P(f"s_lshl_b32 s{S_T0}, s{S_T0}, 3")
    P(f"v_mad_u32_u24 v{T}, v{T}, 31, s{S_T0}")
    P(f"v_cmp_gt_u32 vcc, 3, v{T+1}")
    P(f"v_mov_b32 v{T+2}, 896")
    P(f"v_mov_b32 v{T+3}, 448")
    P(f"v_cndmask_b32 v{T+2}, v{T+2}, v{T+3}, vcc")
    P(f"v_subrev_u32 v{T+3}, 3, v{T+1}")
    P(f"v_cndmask_b32 v{T+3}, v{T+3}, v{T+1}, vcc")
    P(f"v_cmp_eq_u32 vcc, 6, v{T+1}")
    P(f"s_mul_i32 s{S_T1}, s{S_WAVE}, 3")
    P(f"s_lshl_b32 s{S_T2}, s{S_RB}, 2")
    P(f"s_add_u32 s{S_T1}, s{S_T1}, s{S_T2}")
    P(f"s_sub_u32 s{S_T1}, s{S_T1}, 8")
    P(f"v_cndmask_b32_e64 v{T+2}, v{T+2}, 0, vcc")
    P(f"v_add_u32 v{T}, v{T}, v{T+2}")
    P(f"v_mul_u32_u24 v{T}, 683, v{T}")
    P(f"v_lshrrev_b32 v{T}, 16, v{T}")
    P(f"v_add_u32 v{T+3}, s{S_T1}, v{T+3}")
    P(f"v_max_i32 v{T+3}, 0, v{T+3}")
    P(f"v_mov_b32 v{T+2}, s{S_TB}")
    P(f"v_cndmask_b32 v{T+3}, v{T+3}, v{T+2}, vcc")
    P(f"v_lshl_add_u32 v{T}, v{T+3}, 4, v{T}")
    P(f"v_lshlrev_b32 v{T}, 7, v{T}")
    P(f"v_add_u32 v{V_PA}, {FL_QKV}, v{T}")

def att_addr(P, o):
    T = V_T
    P(f"s_mul_i32 s{S_T0}, s{S_J}, 7")
    P(f"s_lshr_b32 s{S_T0}, s{S_T0}, 1")
    P(f"s_lshl_b32 s{S_T4}, s{S_T0}, 9")
    P(f"s_add_u32 s{S_T1}, s{S_T4}, {56*512}")
    P(f"v_add_u32 v{A_KD}, s{S_T1}, v{V_L16}")
    P(f"v_lshrrev_b32 v{T}, 5, v{V_LANE}")
    P(f"v_and_b32 v{T+1}, 31, v{V_LANE}")
    P(f"s_add_u32 s{S_T1}, s{S_T4}, {112*512 - 2048}")
    for t in range(2):
        P(f"v_lshlrev_b32 v{T+2}, 2, v{T}")
        P(f"v_xor_b32 v{T+2}, v{T+2}, v{T+1}")
        if t: P(f"v_xor_b32 v{T+2}, 8, v{T+2}")
        P(f"v_lshlrev_b32 v{T+2}, 4, v{T+2}")
        P(f"v_lshl_add_u32 v{T+2}, v{T}, 9, v{T+2}")
        P(f"v_add_u32 v{A_VD+t}, s{S_T1}, v{T+2}")
    P(f"s_lshl_b32 s{S_T1}, s{S_WAVE}, 12")
    P(f"v_add_u32 v{A_KR}, s{S_T1}, v{V_L16}")
    P(f"v_bfe_u32 v{T+1}, v{V_LANE}, 4, 1")
    P(f"v_bfe_u32 v{T+2}, v{V_LANE}, 1, 1")
    P(f"v_lshl_add_u32 v{T+3}, v{T+1}, 1, v{T+2}")
    P(f"v_lshlrev_b32 v{T+4}, 9, v{T+3}")
    P(f"v_xor_b32 v{T+3}, v{T+3}, v{T}")
    P(f"v_lshl_add_u32 v{T+4}, v{T+3}, 6, v{T+4}")
    P(f"v_bfe_u32 v{T+3}, v{V_LANE}, 2, 2")
    P(f"v_lshl_add_u32 v{T+4}, v{T+3}, 4, v{T+4}")
    P(f"v_and_b32 v{T+3}, 1, v{V_LANE}")
    P(f"v_lshl_add_u32 v{T+4}, v{T+3}, 3, v{T+4}")
    P(f"s_add_u32 s{S_T1}, s{S_T1}, 2048")
    P(f"v_add_u32 v{A_VR}, s{S_T1}, v{T+4}")
    P(f"v_xor_b32 v{A_VR+1}, 128, v{A_VR}")
    P(f"v_and_b32 v{T+1}, 31, v{V_LANE}")
    P(f"v_mul_u32_u24 v{T+2}, 12, v{T}")
    P(f"s_cmp_eq_u32 s{S_PAR}, 0")
    P(f"s_cselect_b32 s{S_T1}, -1, 0")
    P(f"s_cselect_b32 s{S_T2}, 1544, 0")
    P(f"v_and_b32 v{T+2}, s{S_T1}, v{T+2}")
    P(f"v_xor_b32 v{T+1}, v{T+1}, v{T+2}")
    P(f"v_lshlrev_b32 v{T+1}, 4, v{T+1}")
    P(f"v_lshl_add_u32 v{T+1}, v{T}, 11, v{T+1}")
    P(f"s_mul_i32 s{S_T3}, s{S_WAVE}, {3*4096}")
    P(f"s_add_u32 s{S_T2}, s{S_T2}, s{S_T3}")
    P(f"v_add_u32 v{A_PA}, s{S_T2}, v{T+1}")
    P(f"v_cmp_gt_u32 vcc, 32, v{V_LANE}")
    P(f"s_mul_i32 s{S_T1}, s{S_WAVE}, 3")
    P(f"s_lshl_b32 s{S_T2}, s{S_RB}, 2")
    P(f"s_add_u32 s{S_T1}, s{S_T1}, s{S_T2}")
    P(f"v_mov_b32 v{T+1}, 0x3f80")
    for k in range(3):
        P(f"s_add_u32 s{S_T2}, s{S_T1}, {k}")
        P(f"s_cmp_lt_u32 s{S_T2}, 8")
        P(f"s_cselect_b32 s{S_T2}, 0xf14a, 0")
        P(f"v_mov_b32 v{T+2}, s{S_T2}")
        P(f"v_cndmask_b32 v{A_PV+k}, v{T+1}, v{T+2}, vcc")
    for r in range(16):
        k0 = (r & 3) + 8 * (r >> 2)
        lo = (0xffffffff << k0) & 0xffffffff
        hi = (0xffffffff << (k0 + 4)) & 0xffffffff
        P(f"s_mov_b32 s{S_TAB+2*r}, {hex(lo)}")
        P(f"s_mov_b32 s{S_TAB+2*r+1}, {hex(hi)}")
    P(f"v_mov_b32 v{T+1}, 0xffff")
    P(f"v_mov_b32 v{T+2}, 0xffff0000")
    for i in range(8):
        P(f"v_cndmask_b32_e64 v{T+3}, 0, v{T+1}, {sr(S_TAB+4*i)}")
        P(f"v_cndmask_b32_e64 v{T+4}, 0, v{T+2}, {sr(S_TAB+4*i+2)}")
        P(f"v_or_b32 v{AM+i}, v{T+3}, v{T+4}")
    P(f"s_mul_i32 s{S_T1}, s{S_WAVE}, 3")
    P(f"s_lshl_b32 s{S_T2}, s{S_RB}, 2")
    P(f"s_add_u32 s{S_T1}, s{S_T1}, s{S_T2}")
    for k in range(3):
        P(f"s_add_i32 s{S_T2}, s{S_T1}, {k-8}")
        P(f"s_max_i32 s{S_T2}, s{S_T2}, 0")
        P(f"s_mul_i32 s{S_T2}, s{S_T2}, {QKV_TB}")
        P(f"s_add_u32 s{48+k}, s{S_T2}, {QKV_OFF}")
    P(f"s_mul_i32 s{S_T2}, s{S_TB}, {QKV_TB}")
    P(f"s_add_u32 s{S_T2}, s{S_T2}, s{S_T4}")
    P(f"s_add_u32 s51, s{S_T2}, {QKV_OFF}")
    P(f"s_mul_i32 s{S_T2}, s{S_TB}, {A_TB}")
    P(f"s_lshl_b32 s{S_T3}, s{S_J}, 11")
    P(f"s_add_u32 s{S_T2}, s{S_T2}, s{S_T3}")
    P(f"s_add_u32 s{S_T4}, s{S_T2}, {A_OFF + 112*1024}")
    P(f"v_and_b32 v{T}, 31, v{V_LANE}")
    P(f"v_lshlrev_b32 v{T}, 2, v{T}")
    P(f"s_lshl_b32 s{S_T2}, s{S_TB}, 7")
    P(f"s_add_u32 s{S_T2}, s{S_T2}, {G_OFF}")
    P(f"buffer_load_dword v{A_G}, v{T}, {sr(SRD_WS,4)}, s{S_T2} offen {SC}")

def att_loads(P, o):
    P(f"s_mul_i32 s{S_T3}, s{S_WAVE}, {3*4096}")
    for k in range(3):
        P(f"s_add_u32 m0, s{S_T3}, {LKV + k*4096}")
        for t in range(2):
            P(f"buffer_load_dwordx4 v{A_KD}, {sr(SRD_WS,4)}, s{48+k} offen offset:{t*1024} {SC} lds", tag='kv')
        for t in range(2):
            P(f"buffer_load_dwordx4 v{A_VD+t}, {sr(SRD_WS,4)}, s{48+k} offen offset:{2048+t*1024} {SC} lds", tag='kv')
    for t in range(2):
        P(f"buffer_load_dwordx4 {vr(AQ+4*t,4)}, v{V_L16}, {sr(SRD_WS,4)}, s51 offen offset:{t*1024} {SC}")

def kread(i, buf):
    return [f"ds_read_b128 {vr(AK+8*buf+4*t,4)}, v{A_KR} offset:{LKV + i*4096 + t*1024}" for t in range(2)]
def vread(i, buf):
    return [f"ds_read_b64_tr_b16 {vr(AV+8*buf+4*t+2*rho,2)}, v{A_VR+rho} offset:{LKV + i*4096 + t*256}" for t in range(2) for rho in range(2)]
def qk(i, sbuf, kbuf, c):
    s = AS + 16 * sbuf
    return [mfma(s, AK + 8 * kbuf, AQ, c), mfma(s, AK + 8 * kbuf + 4, AQ + 4, s)]

def attention(P, o, hooks):
    T = V_T
    P(f"s_cmp_eq_u32 s{S_PAR}, 0")
    P(f"s_cselect_b32 s{S_T0}, 0, -1")
    P(f"s_mov_b32 s{S_T1}, 0")
    P(f"s_mov_b32 s{S_T2}, 0")
    P(f"s_cselect_b32 s{S_T3}, -1, 0")
    P(f"v_mov_b32 v{T}, 0x3f80")
    P.wait_vm('kv')
    for k in range(3):
        P(f"ds_write_b16 v{A_PA}, v{A_PV+k} offset:{LKV + k*4096}")
    P(f"v_cndmask_b32_e64 v{AQ}, v{AQ}, v{T}, {sr(S_T0)}")
    P(f"v_cndmask_b32_e64 v{AQ+1}, v{AQ+1}, 0, {sr(S_T0)}")
    P(f"v_cndmask_b32_e64 v{AQ+6}, v{AQ+6}, v{T}, {sr(S_T2)}")
    P(f"v_cndmask_b32_e64 v{AQ+7}, v{AQ+7}, 0, {sr(S_T2)}")
    P("s_waitcnt lgkmcnt(0)")
    P("s_barrier")
    stamp(P, o, 'att_go')
    order = [0, 8, 1, 2, 3, 4, 5, 6, 7]
    sb = lambda n: n % 4
    P.add(kread(order[0], 0)); P.add(kread(order[1], 1))
    def maxops(s, first):
        L = []
        for i in range(8):
            if first and i == 0: L.append(f"v_max_f32 v{A_MX}, v{s}, v{s+1}")
            else: L.append(f"v_max3_f32 v{A_MX}, v{s+2*i}, v{s+2*i+1}, v{A_MX}")
        return L
    merge = [f"v_cndmask_b32_e64 v{AS+16+r}, v{AS+r}, v{AS+16+r}, {sr(S_TAB+2*r)}" for r in range(16)]
    for n in range(9):
        m = qk(order[n], sb(n), n & 1, None)
        post = []
        if n == 3: post = merge
        if n == 4: post = maxops(AS + 16, True) + maxops(AS + 16 * sb(2), False)
        if n >= 5: post = maxops(AS + 16 * sb(n - 2), False)
        nxt = kread(order[n + 2], n & 1) if n + 2 < 9 else kread(order[n + 2 - 9], n & 1)
        h = len(post) // 2
        P.add([m[0]] + post[:h] + [m[1]] + nxt + post[h:])
    P.add(vread(0, 0)); P.add(vread(8, 1))
    P.add(maxops(AS + 16 * sb(7), False))
    P.add(maxops(AS + 16 * sb(8), False))
    P(f"v_mov_b32 v{T}, v{A_MX}")
    P(f"v_permlane32_swap_b32 v{A_MX}, v{T}")
    P(f"v_max_f32 v{A_MX}, v{A_MX}, v{T}")
    P(f"v_sub_f32 v{AN}, 0, v{A_MX}")
    P(f"v_sub_f32 v{AN+1}, 0, v{A_MX}")
    for i in range(1, 8): P(f"v_mov_b64 {vr(AN+2*i,2)}, {vr(AN,2)}")
    stamp(P, o, 'att_p1')
    kb = lambda n: (n + 1) & 1
    def expcvt(s, p):
        L = []
        for i in range(8):
            L += [f"v_exp_f32 v{s+2*i}, v{s+2*i}", f"v_exp_f32 v{s+2*i+1}, v{s+2*i+1}"]
            if i >= 1: L.append(f"v_cvt_pk_bf16_f32 v{p+i-1}, v{s+2*i-2}, v{s+2*i-1}")
        L.append(f"v_cvt_pk_bf16_f32 v{p+7}, v{s+14}, v{s+15}")
        return L
    def pv(p, vbuf, first=False):
        return [mfma(AO, AV + 8 * vbuf, p, None if first else AO), mfma(AO, AV + 8 * vbuf + 4, p + 4, AO)]
    m0 = qk(0, 0, kb(0), AN); m1 = qk(8, 1, kb(1), AN)
    P.add(m0 + kread(order[2], kb(2)) + m1 + kread(order[3], kb(3)))
    m2 = qk(order[2], 2, kb(2), AN)
    P.add([m2[0], m2[1]] + merge)
    ec = expcvt(AS + 16, AP)
    sp = []
    for i in range(8):
        sp += [f"v_and_b32 v{AP+8+i}, v{AP+i}, v{AM+i}", f"v_xor_b32 v{AP+16+i}, v{AP+i}, v{AP+8+i}"]
    m3 = qk(order[3], 0, kb(3), AN)
    P.add(kread(order[4], kb(4)) + ec[:8] + [m3[0]] + ec[8:16] + [m3[1]] + kread(order[5], kb(5)) + ec[16:] + sp)
    pend = pv(AP + 16, 0, True) + pv(AP + 8, 1)
    pend_rd = vread(order[2], 0) + vread(order[3], 1)
    for n in range(2, 9):
        p = AP + 16 if n == 3 else (AP if (n & 1) == 0 else AP + 8)
        ec = expcvt(AS + 16 * (n % 3), p)
        hk = hooks.get(n, [])
        if hk: ec = interleave([[x] for x in ec], hk)
        mq = qk(order[n + 2], (n + 2) % 3, kb(n + 2), AN) if n + 2 < 9 else []
        kr = kread(order[n + 4], kb(n + 4)) if n + 4 < 9 else []
        ms = pend + mq
        seq = []
        k = len(ms)
        step = max(1, len(ec) // max(k, 1))
        ei = 0
        for j, mm in enumerate(ms):
            seq.append(mm)
            if j == len(pend) - 1: seq += pend_rd
            if j == k - 1 and mq: seq += kr
            take = ec[ei:ei + step] if j < k - 1 else ec[ei:]
            seq += take; ei += len(take)
        P.add(seq)
        vb = n & 1
        pend = pv(p, vb)
        pend_rd = vread(order[n + 2], vb) if n + 2 < 9 else []
    P.add(pend)
    P(f"s_cmp_eq_u32 s{S_PAR}, 0")
    P(f"s_cselect_b64 {sr(S_T0)}, -1, 0")
    for it in hooks.get(9, []): P.add(it)
    stamp(P, o, 'att_p2')
    P(f"v_cndmask_b32_e64 v{T}, v{AO}, v{AO+12}, {sr(S_T0)}")
    P(f"v_mov_b32 v{T+1}, v{T}")
    P(f"v_permlane32_swap_b32 v{T}, v{T+1}")
    P(f"v_cndmask_b32_e64 v{T}, v{T}, v{T+1}, {sr(S_T0)}")
    P(f"v_rcp_f32 v{T}, v{T}")
    P(f"v_mul_f32 v{T+1}, v{T}, v{A_G}")
    for i in range(8):
        P(f"v_pk_mul_f32 {vr(AO+2*i,2)}, {vr(AO+2*i,2)}, {vr(T+1,2)} op_sel_hi:[1,0]")
    for i in range(8):
        P(f"v_cvt_pk_bf16_f32 v{AP+i}, v{AO+2*i}, v{AO+2*i+1}")
    for t in range(2):
        P(f"buffer_store_dwordx4 {vr(AP+4*t,4)}, v{V_L16}, {sr(SRD_WS,4)}, s{S_T4} offen offset:{t*1024} {SC}", tag='ost')

LACC = 16
EARLY = list(range(180, 216, 4)) + list(range(236, 252, 4))
LATE = list(range(80, 136, 4)) + list(range(144, 180, 4)) + [136, 140]

def last_baddr(P, o):
    rot_calc(P, S_ROT, *o.rot2)
    P(f"s_mul_i32 s{S_T0}, s{S_C}, {BP_C}")
    P(f"s_add_u32 s{S_T0}, s{S_T0}, {BP_OFF}")
    P(f"s_lshl_b32 s{S_T1}, s{S_WAVE}, 14")
    P(f"s_add_u32 s{S_BOFF}, s{S_T0}, {112*2048}")
    P(f"s_add_u32 s{S_BOFF}, s{S_BOFF}, s{S_T1}")
    P(f"s_add_u32 s{S_BOFF2}, s{S_BOFF}, 8192")
    P(f"s_mul_i32 s{S_T1}, s{S_WAVE}, {28*2048}")
    P(f"s_add_u32 s{S_T0}, s{S_T0}, s{S_T1}")
    P(f"s_mov_b32 s{S_T1}, s{S_ROT}")
    for g in range(7):
        P(f"s_lshl_b32 s{S_T2}, s{S_T1}, 13")
        P(f"s_add_u32 s{S_BT[g]}, s{S_T0}, s{S_T2}")
        if g < 6:
            P(f"s_add_u32 s{S_T1}, s{S_T1}, 1")
            P(f"s_cmp_eq_u32 s{S_T1}, 7")
            P(f"s_cselect_b32 s{S_T1}, 0, s{S_T1}")
    P(f"s_lshr_b32 s{S_T0}, s{S_WAVE}, 1")
    P(f"s_lshl_b32 s{S_T0}, s{S_T0}, 10")
    P(f"s_xor_b32 s{S_T1}, s{S_T0}, 1024")
    P(f"v_add_u32 v{V_BA}, s{S_T1}, v{V_L16}")
    P(f"v_add_u32 v{V_BA+1}, s{S_T1}, v{V_L16H}")
    P(f"v_add_u32 v{V_BA+2}, s{S_T0}, v{V_L16}")
    P(f"v_add_u32 v{V_BA+3}, s{S_T0}, v{V_L16H}")

def last_setup(P, o):
    T = V_T
    P(f"s_lshl_b32 s{S_T0}, s{S_C}, 7")
    P(f"v_and_b32 v{T}, 31, v{V_LANE}")
    P(f"v_lshl_add_u32 v{T+1}, v{T}, 2, s{S_T0}")
    P(f"global_load_dword v5, v{T+1}, {sr(S_B2)}")
    P(f"s_and_b32 s{S_T1}, s{S_WAVE}, 1")
    P(f"s_lshl_b32 s{S_T0}, s{S_R}, 8")
    P(f"s_add_u32 s{S_T0}, s{S_T0}, {G_OFF}")
    P(f"s_lshl_b32 s{S_T2}, s{S_T1}, 7")
    P(f"s_xor_b32 s{S_T3}, s{S_T2}, 128")
    P(f"s_add_u32 s{S_T2}, s{S_T2}, s{S_T0}")
    P(f"s_add_u32 s{S_T3}, s{S_T3}, s{S_T0}")
    P(f"v_lshlrev_b32 v{T+1}, 2, v{T}")
    P(f"buffer_load_dword v{L_G}, v{T+1}, {sr(SRD_WS,4)}, s{S_T3} offen {SC}")
    P(f"buffer_load_dword v{L_G+1}, v{T+1}, {sr(SRD_WS,4)}, s{S_T2} offen {SC}")
    P(f"s_mul_i32 s{S_T2}, s{S_T1}, {A_TB}")
    P(f"s_sub_u32 s{S_T3}, {A_TB}, s{S_T2}")
    P(f"v_add_u32 v{V_AA}, s{S_T3}, v{V_L16}")
    P(f"v_add_u32 v{V_AA+1}, s{S_T2}, v{V_L16}")
    P(f"s_mul_i32 s{S_T0}, s{S_R}, {2*A_TB}")
    P(f"s_add_u32 s{S_T0}, s{S_T0}, {A_OFF}")
    P(f"s_lshl_b32 s{S_T2}, s{S_WAVE}, 13")
    P(f"s_add_u32 s{S_AT[7]}, s{S_T0}, s{S_T2}")
    P(f"s_add_u32 s{S_AT[7]}, s{S_AT[7]}, {112*1024}")
    P(f"s_add_u32 s{S_AT[8]}, s{S_AT[7]}, 4096")
    P(f"s_mul_i32 s{S_T2}, s{S_WAVE}, {28*1024}")
    P(f"s_add_u32 s{S_T0}, s{S_T0}, s{S_T2}")
    P(f"s_mov_b32 s{S_T2}, s{S_ROT}")
    for g in range(7):
        P(f"s_lshl_b32 s{S_T3}, s{S_T2}, 12")
        P(f"s_add_u32 s{S_AT[g]}, s{S_T0}, s{S_T3}")
        if g < 6:
            P(f"s_add_u32 s{S_T2}, s{S_T2}, 1")
            P(f"s_cmp_eq_u32 s{S_T2}, 7")
            P(f"s_cselect_b32 s{S_T2}, 0, s{S_T2}")
    P(f"v_and_b32 v{T+1}, 1, v{V_LANE}")
    P(f"s_lshl_b32 s{S_T0}, s{S_R}, 1")
    P(f"v_add_u32 v{T+1}, s{S_T0}, v{T+1}")
    P(f"v_lshlrev_b32 v{T+1}, 4, v{T+1}")
    P(f"v_bfe_u32 v{T+2}, v{V_LANE}, 1, 2")
    P(f"v_add_u32 v{T+1}, v{T+1}, v{T+2}")
    P(f"v_lshlrev_b32 v{T+1}, 7, v{T+1}")
    P(f"s_mul_i32 s{S_T0}, s{S_WAVE}, 7")
    P(f"s_lshr_b32 s{S_T0}, s{S_T0}, 1")
    P(f"s_lshl_b32 s{S_T0}, s{S_T0}, 7")
    P(f"s_add_u32 s{S_T0}, s{S_T0}, {FL_H}")
    P(f"v_add_u32 v{V_PH}, s{S_T0}, v{T+1}")
    P(f"s_lshl_b32 s{S_T0}, s{S_WAVE}, 9")
    P(f"s_add_u32 s{S_T0}, s{S_T0}, {FL_O}")
    P(f"v_add_u32 v{V_PO}, s{S_T0}, v{T+1}")
    for d in range(1, 4):
        P(f"s_xor_b32 s{S_T0}, s{S_WAVE}, {d}")
        P(f"s_mul_i32 s{S_T0}, s{S_T0}, 12288")
        P(f"s_add_u32 s{S_T0}, s{S_T0}, {LRED + (d-1)*4096}")
        P(f"v_add_u32 v{L_RW+d-1}, s{S_T0}, v{V_L16}")
    P(f"s_mul_i32 s{S_T0}, s{S_WAVE}, 12288")
    P(f"s_add_u32 s{S_T0}, s{S_T0}, {LRED}")
    P(f"v_add_u32 v{L_RR}, s{S_T0}, v{V_L16}")
    P(f"s_lshl_b32 s{S_T0}, s{S_R}, 6")
    P(f"s_lshl_b32 s{S_T2}, s{S_T1}, 5")
    P(f"s_add_u32 s{S_T0}, s{S_T0}, s{S_T2}")
    P(f"v_add_u32 v{T+1}, s{S_T0}, v{T}")
    P(f"v_mul_u32_u24 v{T+1}, 896, v{T+1}")
    P(f"v_lshrrev_b32 v{T+2}, 5, v{V_LANE}")
    P(f"v_lshl_add_u32 v{T+1}, v{T+2}, 4, v{T+1}")
    P(f"s_lshl_b32 s{S_T0}, s{S_C}, 7")
    P(f"s_lshr_b32 s{S_T2}, s{S_WAVE}, 1")
    P(f"s_lshl_b32 s{S_T2}, s{S_T2}, 6")
    P(f"s_add_u32 s{S_T0}, s{S_T0}, s{S_T2}")
    P(f"v_add_u32 v{L_OA}, s{S_T0}, v{T+1}")

def last_setup_b(P, o):
    bias_expand(P, 5, 12, L_BA)
    P(f"s_lshr_b32 s{S_T2}, s{S_WAVE}, 1")
    P(f"s_lshl_b32 s{S_T2}, s{S_T2}, 7")
    P(f"v_add_u32 v{L_BA}, s{S_T2}, v{L_BA}")
    P(f"v_sub_f32 v{L_G}, 1.0, v{L_G}")
    P(f"v_sub_f32 v{L_G+1}, 1.0, v{L_G+1}")

def a_slots(o):
    ne = o.nearly * 2
    sl = EARLY[:ne] + LATE + EARLY[ne:]
    ring = len(sl) // 2 * 2
    return [sl[i % ring] for i in range(72)], ring // 2

def a_load(o, n):
    sl, _ = a_slots(o)
    L = []
    for ttl in range(2):
        d = sl[2 * n + ttl]
        so, k = (S_AT[n >> 2], n & 3) if n < 28 else (S_AT[7 + ((n - 28) >> 2)], (n - 28) & 3)
        L.append((f"buffer_load_dwordx4 {vr(d,4)}, v{V_AA+ttl}, {sr(SRD_WS,4)}, s{so} offen offset:{k*1024} {SC}", 'ald'))
    return L

def breg(n, ctl):
    return 4 * (2 * (n if n < 32 else n - 32) + ctl)

def last(P, o):
    q = lambda ttl, ctl: LACC + 32 * ttl + 16 * ctl
    sl, depth = a_slots(o)
    mm = lambda n, ttl, ctl: mfma(q(ttl, ctl), breg(n, ctl), sl[2 * n + ttl], None if n == 0 else q(ttl, ctl), 'a')
    if o.nearly == 0:
        poll(P, o, V_PH)
        P.add(flag_store(S_OFL))
    stamp(P, o, 'last_go')
    nxt = o.nearly
    lim = lambda n: min(n + depth, 28)
    while nxt < min(o.burst, lim(0)): P.add(a_load(o, nxt)); nxt += 1
    opolled = False
    for n in range(28):
        M = [mm(n, ttl, ctl) for ttl in range(2) for ctl in range(2)]
        ex = []
        cnt = 0
        top = (36 if opolled else 28)
        while nxt < min(n + depth, top) and cnt < 2:
            ex += a_load(o, nxt); nxt += 1; cnt += 1
        if 4 <= n < 8:
            ex += [(f"buffer_load_dwordx4 {ar(breg(28+n, ct),4)}, v{V_BA+ct*2+((n-4)>>1)}, {sr(SRD_WS,4)}, s{S_BOFF2} offen offset:{((n-4)&1)*2048} {SC}", 'bld2') for ct in range(2)]
        if n == o.oflag_at and o.nearly > 0:
            ex = [WVM('ost')] + flag_store(S_OFL) + ex
        if n == o.opoll_at: ex += poll_issue(V_PO, V_PD)
        if n == o.ocheck_at:
            ex = poll_check(V_PO, V_PD) + ex; opolled = True
        P.add(interleave([[m] for m in M], [[e] for e in ex], per=lambda i, L=len(ex): ((i+1)*L)//4 - (i*L)//4) if n != o.ocheck_at and n != o.oflag_at else M + ex)
    stamp(P, o, 'last_h')
    while nxt < 36: P.add(a_load(o, nxt)); nxt += 1
    used = set(sl[56:72])
    free = [r for r in sorted(set(sl)) if r not in used]
    B2 = None
    for r in free:
        if all((r + 4 * k) in free for k in range(4)): B2 = r; break
    for k in range(4): P(f"ds_read_b128 {vr(B2+4*k,4)}, v{L_BA} offset:{32*k}")
    sc = lambda ttl, ctl: [f"v_mul_f32 v{q(ttl,ctl)+i}, v{L_G+ttl}, v{q(ttl,ctl)+i}" for i in range(16)]
    P.add(sc(0, 0) + sc(0, 1))
    rest = sc(1, 0) + [f"v_add_f32 v{q(1,1)+i}, v{q(1,1)+i}, v{B2+i}" for i in range(16)] + sc(1, 1)
    M = []
    for n in range(28, 36): M += [[mm(n, 0, 0)], [mm(n, 0, 1)]]
    P.add(interleave(M, rest))
    wr = lambda ttl, ctl: [f"ds_write_b128 v{L_RW + ((1-ttl) | ((1-ctl) << 1)) - 1}, {vr(q(ttl,ctl)+4*i,4)} offset:{i*1024}" for i in range(4)]
    w = wr(0, 0) + wr(0, 1)
    seq = []
    for i, n in enumerate(range(28, 36)):
        seq.append(mm(n, 1, 0))
        if i >= 2: seq += w[:2]; w = w[2:]
    seq += w
    w = wr(1, 0)
    for i, n in enumerate(range(28, 36)):
        seq.append(mm(n, 1, 1))
        if i >= 3 and w: seq.append(w.pop(0))
    P.add(seq + w)
    P("s_waitcnt lgkmcnt(0)")
    P("s_barrier")
    stamp(P, o, 'last_o')
    R = 80
    for d in range(3):
        for i in range(4):
            P(f"ds_read_b128 {vr(R+16*d+4*i,4)}, v{L_RR} offset:{d*4096 + i*1024}")
    o_ = q(1, 1)
    for d in range(3):
        for i in range(8):
            P(f"v_pk_add_f32 {vr(o_+2*i,2)}, {vr(o_+2*i,2)}, {vr(R+16*d+2*i,2)}")
    p = R + 48
    for i in range(8): P(f"v_cvt_pk_bf16_f32 v{p+i}, v{o_+2*i}, v{o_+2*i+1}")
    for h in range(2):
        P(f"v_permlane32_swap_b32 v{p+4*h}, v{p+4*h+2}")
        P(f"v_permlane32_swap_b32 v{p+4*h+1}, v{p+4*h+3}")
    for h in range(2):
        P(f"buffer_store_dwordx4 {vr(p+4*h,4)}, v{L_OA}, {sr(SRD_OUT,4)}, 0 offen offset:{32*h}")
    stamp(P, o, 'end')

HEADER = open('cdna_kernels/' + NAME + '.s.ref').read().split('; Override launch')[0]

def finish(P, o, name):
    for sp in slow_paths:
        P.forget(); P(sp)
    L = finalize(P, True)
    out = HEADER + f"; @launch grid=(256,1,1) block=(256,1,1) lds={LDS_BYTES}\n"
    out += '.amdgcn_target "amdgcn-amd-amdhsa--gfx950"\n.text\n'
    out += f".globl {name}\n.p2align 8\n.type {name},@function\n{name}:\n" + text(L)
    out += "s_endpgm\n.fill 2048, 4, 0xbf800000\n"
    out += f""".section .rodata,"a"
.p2align 6
.amdhsa_kernel {name}
  .amdhsa_next_free_vgpr 512
  .amdhsa_next_free_sgpr 102
  .amdhsa_accum_offset 256
  .amdhsa_group_segment_fixed_size 0
  .amdhsa_kernarg_size 96
  .amdhsa_user_sgpr_count 2
  .amdhsa_user_sgpr_kernarg_segment_ptr 1
  .amdhsa_system_sgpr_workgroup_id_x 1
.end_amdhsa_kernel
"""
    if o.diag is not None:
        out = out.replace('DIAG_I', str(o.stamp_names.index(o.diag[0]))).replace('DIAG_J', str(o.stamp_names.index(o.diag[1])))
    return out

def build(o):
    name = NAME + "_kernel"
    P = Prog(); setup(P, o, "L_end")
    P(f"s_cmp_ge_u32 s{S_SLOT}, 28")
    P("s_cbranch_scc1 L_prep")
    bl = b_loads()
    hooks = {}
    g0 = o.pcheck
    if o.noprep: g0 = 99
    else: hooks[o.ppoll] = [poll_issue(V_PP, V_PD)]
    if g0 < 28:
        hooks[g0] = [poll_check(V_PP, V_PD)]
        n = o.nb_loop; steps = list(range(g0 + 1, 28))
        for i, g in enumerate(steps):
            k = ((i + 1) * n) // len(steps) - (i * n) // len(steps)
            hooks[g] = hooks.get(g, []) + bl[:k]; bl = bl[k:]
    stage1(P, o, hooks)
    if o.trunc == 's1':
        stamp_flush(P, o); P("s_endpgm"); P.forget(); P("L_prep:")
        if not o.noprep: prep(P, o); stamp_flush(P, o)
        P("L_end:"); P("s_endpgm")
        return finish(P, o, name)
    P("s_barrier")
    qkv_epilogue(P, o)
    P(f"s_lshl_b32 s{S_T0}, s{S_TB}, 4")
    P(f"s_add_u32 s{S_T0}, s{S_T0}, s{S_B}")
    P(f"s_lshl_b32 s{S_T0}, s{S_T0}, 7")
    P(f"s_add_u32 s{S_QST}, s{S_T0}, {FL_QKV}")
    P(f"s_add_u32 s{S_B}, s{S_T0}, {FL_H}")
    if g0 >= 28: P.add(poll_check(V_PP, V_PD))
    stamp(P, o, 'qkv_epi')
    for F in range(4):
        g = gelu_tile(F)
        take = bl[:o.nb_gelu[F]]; bl = bl[o.nb_gelu[F]:]
        P.add(interleave([[x] for x in g[:-2]], take))
        if F == o.qflag_after: P.wait_vm('qst'); P.add(flag_store(S_QST))
        P.add(g[-2:])
    stamp(P, o, 'gelu')
    if o.qflag_after >= 4: P.wait_vm('qst'); P.add(flag_store(S_QST))
    last_setup(P, o)
    att_scalars(P, o); att_poll_addr(P, o); att_addr(P, o)
    nb_att = o.nb_att
    for it in bl[:len(bl) - nb_att]: P.add(it)
    bl = bl[len(bl) - nb_att:]
    last_setup_b(P, o)
    P.wait_vm('hst'); P.add(flag_store(S_B))
    stamp(P, o, 'hflag')
    P("L_att:")
    poll(P, o, V_PA)
    stamp(P, o, 'qkv_seen')
    att_loads(P, o)
    ah = {}
    for i, it in enumerate(bl): ah.setdefault(2 + (i * 3) // max(len(bl), 1), []).append(it)
    if o.nearly > 0:
        ah.setdefault(o.hpoll, []).append(poll_issue(V_PH, V_PD))
        ah.setdefault(o.hcheck, []).insert(0, poll_check(V_PH, V_PD))
        al = [[x] for n in range(o.nearly) for x in a_load(o, n)]
        ns = list(range(o.hcheck, 10))
        for i, it in enumerate(al): ah.setdefault(ns[(i * len(ns)) // len(al)], []).append(it)
    attention(P, o, ah)
    stamp(P, o, 'att_end')
    P(f"s_cmp_ge_u32 s{S_SLOT}, 28")
    P("s_cbranch_scc1 L_spare_end")
    last(P, o)
    stamp_flush(P, o)
    P("s_endpgm")
    P.forget()
    P("L_prep:")
    prep(P, o)
    poll(P, o, V_PP)
    P(f"s_sub_u32 s{S_R}, s{S_R}, 1")
    last_baddr(P, o); last_setup(P, o)
    att_scalars(P, o); att_poll_addr(P, o); att_addr(P, o)
    P("s_branch L_att")
    P.forget()
    P("L_spare_end:")
    P("s_waitcnt vmcnt(0)")
    P.add(flag_store(S_OFL))
    stamp_flush(P, o)
    P(f"s_cmp_eq_u32 s2, 224")
    P("s_cbranch_scc0 L_end")
    P(f"s_cmp_eq_u32 s{S_WAVE}, 0")
    P("s_cbranch_scc0 L_end")
    P(f"v_lshlrev_b32 v{V_PA}, 7, v{V_LANE}")
    P(f"s_mov_b32 s{S_CNT}, 4000")
    P("L_ep:")
    for i in range(16):
        P(f"s_mov_b32 s{S_T0}, {FL_O + i*8192}")
        P(f"buffer_load_dwordx2 {vr(16+2*i,2)}, v{V_PA}, {sr(SRD_WS,4)}, s{S_T0} offen sc1")
    P("s_waitcnt vmcnt(0)")
    P(f"s_mov_b64 {sr(S_T0)}, 0")
    for i in range(16):
        P(f"v_cmp_ne_u64 vcc, {sr(S_TAG)}, {vr(16+2*i,2)}")
        P(f"s_or_b64 {sr(S_T0)}, {sr(S_T0)}, vcc")
    P(f"s_sub_u32 s{S_CNT}, s{S_CNT}, 1")
    P("s_cbranch_scc1 L_end")
    P(f"s_cmp_eq_u64 {sr(S_T0)}, 0")
    P("s_cbranch_scc0 L_ep")
    P(f"buffer_store_dword v{V_TAG}, v{V_FLAGOFF}, {sr(SRD_WS,4)}, 0 offen sc1")
    P("L_end:")
    P("s_endpgm")
    return finish(P, o, name)

DEFAULTS = dict(cpf=1, noprep=0, rot=(0, 0, 0), rot2=(1, 2, 1), trunc=None, pre=14, pf=1, ppoll=16, pcheck=19, nb_loop=20, nb_gelu=(4, 4, 4, 4), nb_att=0,
                qflag_after=2, nearly=6, hpoll=4, hcheck=6, burst=14, oflag_at=3, opoll_at=16, ocheck_at=20, code_bytes=28672)

if __name__ == '__main__':
    o = Opt()
    for k, v in DEFAULTS.items(): setattr(o, k, v)
    o.stamps = 'stamps' in sys.argv; o.diag = None; o.fix = []; o.stamp_names = []
    o.clk = 's_memtime' if 'cyc' in sys.argv else 's_memrealtime'
    for a in sys.argv[2:]:
        if '=' not in a: continue
        k, v = a.split('=')
        if k == 'diag':
            i, j, K = v.split(','); o.diag = (i, j, int(K)); o.stamps = True
        elif k == 'trunc': o.trunc = v
        elif ',' in v: setattr(o, k, tuple(int(x) for x in v.split(',')))
        else: setattr(o, k, int(v))
    s = build(o)
    open(sys.argv[1], 'w').write(s)
    if o.stamps: open(sys.argv[1] + '.names', 'w').write('\n'.join(o.stamp_names))
```

```python
import sys, math, struct
from asmlib import *

NAME = "gated_mix__sliding_block__dense_activation_gelu__prompt"
def f2u(x): return struct.unpack('<I', struct.pack('<f', x))[0]

WS_E      = 0
FL_G      = 0x1000
FL_PREP   = 0x80000
G_OFF     = 0x4000
FL_QKV    = 0x20000
FL_H      = 0x40000
FL_O      = 0x60000
QKV_OFF   = 0x100000
A_OFF     = 0x700000
BP_OFF    = 0x1000000
WS_SIZE   = 0x1200000
STAMP_OFF = 0x1400000
QKV_TB = 168 * 512
A_TB = 144 * 1024
BP_C = 144 * 2048

LX = 0; LX_SLOT = 16384
LF = 49152; LF_SLOT = 16384
LQ = 98304; LQ_SLOT = 12288
LBIAS = 135168
LITEM = 137216
LKV = 0
LRED = 49152
LDS_BYTES = 160 * 1024

S_B1, S_W2, S_B2, S_GW = 12, 14, 16, 18
SRD_X, SRD_WQ, SRD_W1, SRD_WS, SRD_OUT, SRD_P = 28, 32, 36, 40, 44, 48
S_WAVE, S_XCD, S_SLOT = 3, 10, 11
S_TAG = 26
S_RB, S_B, S_TB, S_ROT = 52, 53, 54, 55
S_T0, S_T1, S_T2, S_T3 = 56, 57, 58, 59
S_CNT = 60
S_QST, S_HST = 61, 62
S_T4 = 63
S_TAB = 64
S_BT = [4, 5, 6, 7, 20, 21, 22]
S_BOFF, S_BOFF2 = 23, 24
S_OFL = 25
S_AT = [28, 29, 30, 31, 32, 33, 34, 35, 36]
S_RBL = 8
S_PFS, S_PFB = 9, 94
S_PST, S_PFL = 12, 13
S_R, S_C = 98, 99
S_J, S_PAR = 100, 101

def sr(b, n=2): return f"s[{b}:{b+n-1}]"
def vr(b, n): return f"v[{b}:{b+n-1}]" if n > 1 else f"v{b}"
def ar(b, n): return f"a[{b}:{b+n-1}]"

V_LANE = 1
V_L16, V_L16H = 2, 3
V_FLAGOFF = 4
V_TAG = 6
V_POLL = 8
V_PA = 10
V_T = 11
V_BA = 216
V_AA = 220
L_G = 222
L_RW = 224
L_RR = 227
L_OA = 228
V_PO, V_PP, V_PH = 229, 230, 231
V_PD = 232
L_BA = 234
V_DUM = 235
V_PFO = 243
V_IT = 236
V_ST = 255
SC = 'sc1'

class Opt: pass

def mfma(d, a, b, c, areg='v'):
    A = ar(a, 4) if areg == 'a' else vr(a, 4)
    C = '0' if c is None else vr(c, 16)
    return f"v_mfma_f32_32x32x16_bf16 {vr(d,16)}, {A}, {vr(b,4)}, {C}"

lab = [0]
def stamp(P, o, name):
    if not o.stamps: return
    if name not in o.stamp_names: o.stamp_names.append(name)
    i = o.stamp_names.index(name)
    P(f"{o.clk} s[96:97]")
    P("s_waitcnt lgkmcnt(0)")
    P(f"v_writelane_b32 v{V_ST}, s96, {i}")

def stamp_flush(P, o):
    if not o.stamps: return
    if o.diag is not None:
        i, j, K = o.diag
        lab[0] += 1
        o.fix.append((lab[0], i, j))
        P(f"v_readlane_b32 s{S_T0}, v{V_ST}, DIAG_I")
        P(f"v_readlane_b32 s{S_T1}, v{V_ST}, DIAG_J")
        P("s_nop 4")
        P(f"s_sub_u32 s{S_T0}, s{S_T1}, s{S_T0}")
        P(f"s_mul_i32 s{S_T0}, s{S_T0}, {K}")
        P(f"s_min_u32 s{S_T0}, s{S_T0}, 20000")
        P(f"s_cmp_eq_u32 s{S_C}, 7")
        P(f"s_cselect_b32 s{S_T0}, 0, s{S_T0}")
        P("s_memrealtime s[96:97]")
        P("s_waitcnt lgkmcnt(0)")
        P(f"s_mov_b32 s{S_T1}, s96")
        P(f"L_dg{lab[0]}:")
        P("s_memrealtime s[96:97]")
        P("s_waitcnt lgkmcnt(0)")
        P(f"s_sub_u32 s{S_T2}, s96, s{S_T1}")
        P(f"s_cmp_lt_u32 s{S_T2}, s{S_T0}")
        P(f"s_cbranch_scc1 L_dg{lab[0]}")
        return
    P("s_waitcnt vmcnt(0)")
    P(f"s_lshl_b32 s{S_T0}, s2, 2")
    P(f"s_add_u32 s{S_T0}, s{S_T0}, s{S_WAVE}")
    P(f"s_lshl_b32 s{S_T0}, s{S_T0}, 8")
    P(f"s_add_u32 s{S_T0}, s{S_T0}, {STAMP_OFF}")
    P(f"s_mov_b32 s{SRD_WS+2}, {STAMP_OFF + 0x100000}")
    P(f"v_lshlrev_b32 v{V_T}, 2, v{V_LANE}")
    P(f"buffer_store_dword v{V_ST}, v{V_T}, {sr(SRD_WS,4)}, s{S_T0} offen")

def setup(P, o, end_label):
    if o.stamps: P(f"{o.clk} s[92:93]")
    P(f"s_load_dwordx2 {sr(SRD_X)}, s[0:1], 0")
    P(f"s_load_dwordx2 {sr(SRD_WQ)}, s[0:1], 8")
    P(f"s_load_dwordx2 {sr(SRD_W1)}, s[0:1], 32")
    P(f"s_load_dwordx8 s[12:19], s[0:1], 40")
    P(f"s_load_dwordx2 {sr(SRD_WS)}, s[0:1], 88")
    P(f"s_load_dwordx2 {sr(SRD_OUT)}, s[0:1], 72")
    P(f"s_load_dwordx2 {sr(S_BT[0])}, s[0:1], 16")
    P(f"v_lshrrev_b32 v5, 6, v0")
    P(f"v_and_b32 v{V_LANE}, 63, v0")
    P(f"v_readfirstlane_b32 s{S_WAVE}, v5")
    P("s_cmpk_ge_u32 s2, 256")
    P(f"s_cbranch_scc1 {end_label}")
    P(f"s_and_b32 s{S_XCD}, s2, 7")
    P(f"s_lshr_b32 s{S_SLOT}, s2, 3")
    P(f"s_lshr_b32 s{S_RBL}, s2, 6")
    P(f"s_and_b32 s{S_C}, s{S_SLOT}, 7")
    P(f"s_mov_b32 s{SRD_X+3}, 0x20000")
    P(f"s_mov_b32 s{SRD_X+2}, {2048*896}")

def code_prefetch(P, o):
    P(f"s_getpc_b64 s[{S_T0}:{S_T1}]")
    P(f"v_lshlrev_b32 v{V_T}, 7, v0")
    P(f"v_min_u32 v{V_T}, {o.code_bytes - 128}, v{V_T}")
    P(f"global_load_dword v{V_DUM}, v{V_T}, s[{S_T0}:{S_T1}]", tag='pf')

def srd_rest(P, regs):
    for d, size in regs:
        P(f"s_mov_b32 s{d+2}, {size}")
        P(f"s_mov_b32 s{d+3}, s{SRD_X+3}")

def tlb_touch(P, o, late):
    if not o.touch: return
    if not late:
        for p, d in ((SRD_W1, 100), (SRD_WQ, 101), (S_B1, 26), (SRD_WS, 27)): P(f"s_load_dword s{d}, {sr(p)}, 0")
        return
    for p, d in ((S_W2, 6), (S_BT[0], 7), (SRD_OUT, 20), (S_B2, 21)): P(f"s_load_dword s{d}, {sr(p)}, 0")
    P(f"s_and_b32 s{S_T2}, s{S_SLOT}, 7")
    P(f"s_add_u32 s{S_T2}, s{S_T2}, 1")
    P(f"s_lshl_b32 s{S_T2}, s{S_T2}, 21")
    P(f"s_load_dword s{S_CNT}, {sr(SRD_WS)}, s{S_T2}")

def common2(P, o):
    P(f"v_lshlrev_b32 v{V_L16}, 4, v{V_LANE}")
    P(f"v_cmp_eq_u32 vcc, 0, v{V_LANE}")
    P(f"v_mov_b32 v5, 0x7fff0000")
    P(f"v_add_u32 v{V_L16H}, 0x1000, v{V_L16}")
    P(f"v_cndmask_b32_e64 v{V_FLAGOFF}, v5, 0, vcc")
    P(f"s_lshl_b32 s{S_R}, s{S_XCD}, 2")
    P(f"s_add_u32 s{S_R}, s{S_R}, s{S_RBL}")
    P(f"v_min_u32 v{V_T}, 35, v{V_LANE}")
    P(f"s_mul_i32 s{S_T0}, s{S_WAVE}, 28")
    P(f"s_lshl_b32 s{S_T1}, s{S_WAVE}, 3")
    P(f"s_add_u32 s{S_T1}, s{S_T1}, 84")
    P(f"v_mov_b32 v{V_T+1}, s{S_T0}")
    P(f"v_mov_b32 v{V_T+2}, s{S_T1}")
    P(f"v_cmp_gt_u32 vcc, 28, v{V_T}")
    P(f"s_min_u32 s{S_T0}, s{S_C}, 6")
    P(f"s_lshl_b32 s{S_T0}, s{S_T0}, 7")
    P(f"v_cndmask_b32 v{V_T+1}, v{V_T+2}, v{V_T+1}, vcc")
    P(f"v_add_u32 v{V_T}, v{V_T}, v{V_T+1}")
    P(f"v_mul_u32_u24 v{V_T}, {7*128}, v{V_T}")
    P(f"s_add_u32 s{S_T0}, s{S_T0}, {FL_PREP}")
    P(f"v_add_u32 v{V_PP}, s{S_T0}, v{V_T}")

def rot_calc(P, dst, ka, kb, kc):
    P(f"s_mul_i32 s{S_T2}, s{S_RBL}, {kb}")
    P(f"s_mul_i32 s{dst}, s{S_C}, {ka}")
    P(f"s_add_u32 s{dst}, s{dst}, s{S_T2}")
    P(f"s_mul_i32 s{S_T2}, s{S_XCD}, {kc}")
    P(f"s_add_u32 s{dst}, s{dst}, s{S_T2}")
    P(f"s_mul_i32 s{S_T2}, s{dst}, 37")
    P(f"s_lshr_b32 s{S_T2}, s{S_T2}, 8")
    P(f"s_mul_i32 s{S_T2}, s{S_T2}, 7")
    P(f"s_sub_u32 s{dst}, s{dst}, s{S_T2}")

def make_tag(P, o):
    P("s_waitcnt lgkmcnt(0)")
    P(f"s_mul_i32 s{S_TAG}, s{S_TAG}, 0x9e3779b1")
    P(f"s_add_u32 s{S_TAG}, s{S_TAG}, 0x7f4a7c15")
    P(f"s_xor_b32 s{S_TAG+1}, s{S_TAG}, 0x5bd1e995")
    P(f"v_mov_b32 v{V_TAG}, s{S_TAG}")
    P(f"v_mov_b32 v{V_TAG+1}, s{S_TAG+1}")

def make_tag_v():
    return [f"v_readfirstlane_b32 s{S_TAG}, v{V_TAG}",
            f"s_mul_i32 s{S_TAG}, s{S_TAG}, 0x9e3779b1",
            f"s_add_u32 s{S_TAG}, s{S_TAG}, 0x7f4a7c15",
            f"s_xor_b32 s{S_TAG+1}, s{S_TAG}, 0x5bd1e995",
            f"v_mov_b32 v{V_TAG}, s{S_TAG}",
            f"v_mov_b32 v{V_TAG+1}, s{S_TAG+1}"]

def poll(P, o, addr_v, limit=4000):
    lab[0] += 1
    L = f"L_poll{lab[0]}"
    P(f"s_mov_b32 s{S_CNT}, {limit}")
    P(f"{L}:")
    P(f"buffer_load_dwordx2 {vr(V_POLL,2)}, v{addr_v}, {sr(SRD_WS,4)}, 0 offen sc1")
    P(f"s_sub_u32 s{S_CNT}, s{S_CNT}, 1")
    P("s_waitcnt vmcnt(0)")
    P(f"v_cmp_ne_u64 vcc, {sr(S_TAG)}, {vr(V_POLL,2)}")
    P(f"s_cbranch_scc1 {L}_x")
    P(f"s_cbranch_vccnz {L}")
    P(f"{L}_x:")

slow_paths = []
def poll_issue(addr_v, dst):
    return [f"buffer_load_dwordx2 {vr(dst,2)}, v{addr_v}, {sr(SRD_WS,4)}, 0 offen sc1"]
def poll_check(addr_v, dst, limit=4000):
    lab[0] += 1
    L = f"L_pc{lab[0]}"
    slow_paths.append(f"""{L}_slow:
s_mov_b32 s{S_CNT}, {limit}
{L}_loop:
buffer_load_dwordx2 {vr(dst,2)}, v{addr_v}, {sr(SRD_WS,4)}, 0 offen sc1
s_sub_u32 s{S_CNT}, s{S_CNT}, 1
s_waitcnt vmcnt(0)
v_cmp_ne_u64 vcc, {sr(S_TAG)}, {vr(dst,2)}
s_cbranch_scc1 {L}_back
s_cbranch_vccnz {L}_loop
s_branch {L}_back""")
    return [f"v_cmp_ne_u64 vcc, {sr(S_TAG)}, {vr(dst,2)}", f"s_cbranch_vccnz {L}_slow", f"{L}_back:"]

def flag_store(soff):
    return [f"buffer_store_dwordx2 {vr(V_TAG,2)}, v{V_FLAGOFF}, {sr(SRD_WS,4)}, s{soff} offen sc1"]

ACC_Q, ACC_F = 16, 64
FR = 128
V_XD, V_QD, V_FD = 192, 196, 199
V_XR, V_QR, V_FRD = 203, 207, 208
V_CA, V_CB = 212, 214
GT = 128

def s1_dma(c_slot, ci):
    L = []
    tagn = f'dma{ci}'
    L.append([f"s_mov_b32 m0, s{S_TAB+21+c_slot}"])
    for i in range(4):
        L.append([(f"buffer_load_dwordx4 v{V_XD+i}, {sr(SRD_X,4)}, s{S_TAB+ci} offen offset:{i*1024} lds", tagn)])
    L.append([f"s_mov_b32 m0, s{S_TAB+24+c_slot}"])
    for i in range(3):
        L.append([(f"buffer_load_dwordx4 v{V_QD+i}, {sr(SRD_WQ,4)}, s{S_TAB+7+ci} offen offset:{i*1024} lds", tagn)])
    L.append([f"s_mov_b32 m0, s{S_TAB+27+c_slot}"])
    for i in range(4):
        L.append([(f"buffer_load_dwordx4 v{V_FD+i}, {sr(SRD_W1,4)}, s{S_TAB+14+ci} offen offset:{i*1024} lds", tagn)])
    return L

def s1_reads(slot, s, fset):
    base = FR + 32 * fset
    L = [f"ds_read_b128 {vr(base,4)}, v{V_XR+s} offset:{LX + slot*LX_SLOT}"]
    for t in range(7):
        for rho in range(2):
            d = base + 4 + 4 * t + 2 * rho
            if t < 3:
                L.append(f"ds_read_b64_tr_b16 {vr(d,2)}, v{V_QR} offset:{slot*LQ_SLOT + (16*s+4*rho)*192 + t*64}")
            else:
                L.append(f"ds_read_b64_tr_b16 {vr(d,2)}, v{V_FRD+t-3} offset:{slot*LF_SLOT + (16*s+4*rho)*256}")
    return L

def s1_tab(P, o, i):
    if o.ncls == 1:
        P(f"s_mov_b32 s{S_TAB+i}, {i*128}")
        P(f"s_mov_b32 s{S_TAB+7+i}, {i*64*2688}")
        P(f"s_mov_b32 s{S_TAB+14+i}, {i*64*3584}")
        return
    if i > 0:
        P(f"s_add_u32 s{S_T4}, s{S_T4}, 1")
        P(f"s_cmp_eq_u32 s{S_T4}, 7")
        P(f"s_cselect_b32 s{S_T4}, 0, s{S_T4}")
    P(f"s_lshl_b32 s{S_TAB+i}, s{S_T4}, 7")
    P(f"s_mul_i32 s{S_TAB+7+i}, s{S_T4}, {64*2688}")
    P(f"s_mul_i32 s{S_TAB+14+i}, s{S_T4}, {64*3584}")

def s1_m0tab(P, k):
    P(f"s_add_u32 s{S_TAB+21+k}, s{S_T0}, {LX + k*LX_SLOT}")
    P(f"s_add_u32 s{S_TAB+24+k}, s{S_T1}, {LQ + k*LQ_SLOT}")
    P(f"s_add_u32 s{S_TAB+27+k}, s{S_T0}, {LF + k*LF_SLOT}")

def s1_x_addr(P, o):
    T = V_T
    P(f"s_and_b32 s{S_RB}, s{S_XCD}, 3")
    P(f"s_lshl2_add_u32 s{S_RB}, s{S_RB}, s{S_RBL}")
    P(f"s_lshl2_add_u32 s{S_TB}, s{S_RB}, s{S_WAVE}")
    P(f"v_lshrrev_b32 v{T}, 3, v{V_LANE}")
    P(f"v_and_b32 v{T+1}, 7, v{V_LANE}")
    P(f"v_lshrrev_b32 v{T+2}, 4, v{V_LANE}")
    P(f"s_lshl_b32 s{S_T2}, s{S_TB}, 5")
    P(f"v_add_u32 v{T}, s{S_T2}, v{T}")
    P(f"v_mul_u32_u24 v{T}, 896, v{T}")
    P(f"v_xor_b32 v{T+1}, v{T+2}, v{T+1}")
    P(f"v_lshl_add_u32 v{V_XD}, v{T+1}, 4, v{T}")
    P(f"v_xor_b32 v{V_XD+1}, 64, v{V_XD}")
    P(f"s_lshl_b32 s{S_TAB+21}, s{S_WAVE}, 12")
    P(f"v_add_u32 v{V_XD+2}, {2*(8*896-1024)}, v{V_XD}")
    P(f"v_add_u32 v{V_XD+3}, {3*(8*896-1024)}, v{V_XD+1}")
    P(f"v_add_u32 v{V_XD+1}, {1*(8*896-1024)}, v{V_XD+1}")

def s1_w1_addr(P, o):
    T = V_T
    P(f"s_lshr_b32 s{S_B}, s{S_XCD}, 2")
    P(f"s_mul_i32 s{S_B}, s{S_B}, 7")
    P(f"s_add_u32 s{S_B}, s{S_B}, s{S_C}")
    P(f"v_lshlrev_b32 v{T+1}, 2, v{T+2}")
    P(f"v_xor_b32 v{T+1}, v{T+1}, v{V_LANE}")
    P(f"v_and_b32 v{T+1}, 15, v{T+1}")
    P(f"s_lshl_b32 s{S_T2}, s{S_WAVE}, 4")
    P(f"v_add_u32 v{T}, s{S_T2}, v{T+2}")
    P(f"v_mul_u32_u24 v{T}, 3584, v{T}")
    P(f"s_lshl_b32 s{S_T3}, s{S_B}, 8")
    P(f"v_lshl_add_u32 v{T}, v{T+1}, 4, v{T}")
    P(f"v_add_u32 v{V_FD}, s{S_T3}, v{T}")
    for i in range(1, 4):
        P(f"v_add_u32 v{V_FD+i}, {i*(4*3584-1024)}, v{V_FD}")
    P(f"v_lshl_add_u32 v5, v{V_LANE}, 2, s{S_T3}")
    P(f"s_add_u32 s{S_TAB+27}, s{S_TAB+21}, {LF}")
    srd_rest(P, [(SRD_W1, 448*3584)])

def s1_wq_addr(P, o):
    T = V_T
    P(f"s_mul_i32 s{S_T2}, s{S_WAVE}, 192")
    P(f"s_mul_i32 s{S_T3}, s{S_B}, 192")
    P(f"v_add_u32 v{T}, s{S_T2}, v{V_LANE}")
    P(f"v_lshl_add_u32 v{T+2}, v{T}, 4, s{S_T3}")
    P(f"v_mul_u32_u24 v{T}, 0xaaab, v{T}")
    P(f"s_movk_i32 s{S_T3}, 2496")
    for i in range(3):
        if i: P(f"v_add_u32 v{T}, {64*0xaaab}, v{T}")
        P(f"v_lshrrev_b32 v{T+1}, 19, v{T}")
        P(f"v_mad_u32_u24 v{V_QD+i}, v{T+1}, s{S_T3}, v{T+2}")
    P(f"s_lshl_b32 s{S_T2}, s{S_T2}, 4")
    P(f"s_add_u32 s{S_TAB+24}, s{S_T2}, {LQ}")
    srd_rest(P, [(SRD_WQ, 448*2688)])

def l2pf_setup(P, o):
    T = V_T
    P(f"s_cmp_ge_u32 s{S_WAVE}, 2")
    P("s_cbranch_scc1 L_pf_x")
    P(f"s_cmp_eq_u32 s{S_WAVE}, 0")
    P(f"s_cselect_b64 {sr(S_PFB)}, {sr(SRD_WQ)}, {sr(SRD_W1)}")
    P(f"s_movk_i32 s{S_T2}, 3584")
    P(f"s_cselect_b32 s{S_T2}, 2688, s{S_T2}")
    P(f"s_cselect_b32 s{S_T3}, 3, 4")
    P(f"s_mul_i32 s{S_T3}, s{S_T3}, s{S_B}")
    P(f"s_lshl_b32 s{S_T3}, s{S_T3}, 6")
    P(f"s_and_b32 s{S_T3}, s{S_T3}, 0xffffff80")
    P(f"s_lshl_b32 s{S_PFS}, s{S_T2}, 6")
    P(f"v_bfe_u32 v{T}, v{V_LANE}, 1, 4")
    P(f"s_lshl_b32 s{S_T1}, s{S_RBL}, 4")
    P(f"v_add_u32 v{T}, s{S_T1}, v{T}")
    P(f"v_mul_u32_u24 v{T}, s{S_T2}, v{T}")
    P(f"v_and_b32 v{T+1}, 1, v{V_LANE}")
    P(f"v_lshl_add_u32 v{T}, v{T+1}, 7, v{T}")
    P(f"v_add_u32 v{V_PFO}, s{S_T3}, v{T}")
    P("s_branch L_pf_j")
    P("L_pf_x:")
    P(f"s_mov_b64 {sr(S_PFB)}, {sr(SRD_X)}")
    P(f"s_movk_i32 s{S_PFS}, 128")
    P(f"v_min_u32 v{T}, 18, v{V_LANE}")
    P(f"s_mul_i32 s{S_T2}, s{S_C}, 19")
    P(f"v_add_u32 v{T}, s{S_T2}, v{T}")
    P(f"v_min_u32 v{T}, 127, v{T}")
    P(f"s_lshl_b32 s{S_T2}, s{S_RB}, 7")
    P(f"v_add_u32 v{T}, s{S_T2}, v{T}")
    P(f"v_mul_u32_u24 v{V_PFO}, 896, v{T}")
    P("L_pf_j:")

def l2pf(k):
    return [[f"s_add_u32 s{S_PFB}, s{S_PFB}, s{S_PFS}", f"s_addc_u32 s{S_PFB+1}, s{S_PFB+1}, 0"],
            [f"global_load_dword v{243+k}, v{V_PFO}, {sr(S_PFB)}"]]

def item_load(P, o, sfx):
    T = V_T
    P(f"s_lshl2_add_u32 s{S_T0}, s2, s{S_WAVE}")
    P(f"s_lshl_b32 s{S_PFL}, s{S_T0}, 7")
    P(f"s_add_u32 s{S_PFL}, s{S_PFL}, {FL_PREP}")
    P(f"s_min_u32 s{S_T0}, s{S_T0}, 1007")
    P(f"s_mul_i32 s{S_T1}, s{S_T0}, 9363")
    P(f"s_lshr_b32 s{S_T1}, s{S_T1}, 16")
    P(f"s_mul_i32 s{S_T2}, s{S_T1}, 7")
    P(f"s_sub_u32 s{S_T2}, s{S_T0}, s{S_T2}")
    P(f"s_mul_i32 s{S_PST}, s{S_T2}, {BP_C}")
    P(f"s_lshl_b32 s{S_T0}, s{S_T1}, 11")
    P(f"s_add_u32 s{S_PST}, s{S_PST}, s{S_T0}")
    P(f"s_add_u32 s{S_PST}, s{S_PST}, {BP_OFF}")
    P(f"s_lshl_b32 s{S_T2}, s{S_T2}, 7")
    P(f"s_sub_u32 s{S_T0}, s{S_T1}, 112")
    P(f"s_lshr_b32 s{S_T3}, s{S_T0}, 1")
    P(f"s_and_b32 s{S_T0}, s{S_T0}, 1")
    P(f"s_lshl_b32 s{S_T0}, s{S_T0}, 4")
    P(f"s_mul_i32 s{S_T4}, s{S_T3}, 7")
    P(f"s_lshr_b32 s{S_T4}, s{S_T4}, 1")
    P(f"s_lshl3_add_u32 s{S_T0}, s{S_T4}, s{S_T0}")
    P(f"s_mul_i32 s{S_T3}, s{S_T3}, 28")
    P(f"s_lshl_b32 s{S_T4}, s{S_T1}, 4")
    P(f"s_cmp_lt_u32 s{S_T1}, 112")
    P(f"s_cselect_b64 {sr(SRD_P)}, {sr(S_W2)}, {sr(S_BT[0])}")
    P(f"s_cselect_b32 s{S_T0}, s{S_T4}, s{S_T0}")
    P(f"s_cselect_b32 s{S_T3}, s{S_T4}, s{S_T3}")
    P(f"s_mov_b32 s{SRD_P+2}, {448*896}")
    P(f"s_cselect_b32 s{SRD_P+2}, {1792*896}, s{SRD_P+2}")
    P(f"s_mov_b32 s{SRD_P+3}, 0x20000")
    P(f"v_lshrrev_b32 v{T}, 3, v{V_LANE}")
    P(f"v_bfe_u32 v{T+1}, v{V_LANE}, 4, 1")
    P(f"v_lshlrev_b32 v{T+1}, 2, v{T+1}")
    P(f"v_xor_b32 v{T+1}, v{T+1}, v{V_LANE}")
    P(f"v_and_b32 v{T+1}, 7, v{T+1}")
    P(f"v_add_u32 v{T}, s{S_T0}, v{T}")
    P(f"v_mov_b32 v{T+4}, 0x7fff0000")
    P(f"s_lshl_b32 s{S_T0}, s{S_WAVE}, 11")
    P(f"s_add_u32 m0, s{S_T0}, {LITEM}")
    for hh in range(2):
        if hh: P(f"v_add_u32 v{T}, 8, v{T}")
        P(f"v_subrev_u32 v{T+2}, s{S_T3}, v{T}")
        P(f"v_cmp_gt_u32 vcc, 28, v{T+2}")
        P(f"v_mul_u32_u24 v{T+2}, 896, v{T}")
        P(f"v_lshl_add_u32 v{T+2}, v{T+1}, 4, v{T+2}")
        if hh: P(f"v_subrev_u32 v{T+2}, 1024, v{T+2}")
        P(f"v_cndmask_b32 v{T+2}, v{T+4}, v{T+2}, vcc")
        P(f"buffer_load_dwordx4 v{T+2}, {sr(SRD_P,4)}, s{S_T2} offen offset:{hh*1024} lds", tag='item')
    P(f"v_bfe_u32 v{T}, v{V_LANE}, 2, 2")
    P(f"v_lshrrev_b32 v{T+1}, 5, v{V_LANE}")
    P(f"v_lshl_add_u32 v{T+1}, v{T+1}, 2, v{T}")
    P(f"v_lshlrev_b32 v{T+1}, 7, v{T+1}")
    P(f"v_bfe_u32 v{T+2}, v{V_LANE}, 4, 1")
    P(f"v_lshl_add_u32 v{T+1}, v{T+2}, 5, v{T+1}")
    P(f"v_and_b32 v{T+2}, 3, v{V_LANE}")
    P(f"v_lshl_add_u32 v{T+1}, v{T+2}, 3, v{T+1}")
    P(f"s_add_u32 s{S_T0}, s{S_T0}, {LITEM}")
    P(f"v_lshrrev_b32 v{T}, 1, v{T}")
    P(f"v_lshl_add_u32 v{T}, v{T}, 6, v{T+1}")
    P(f"v_add_u32 v251, s{S_T0}, v{T}")
    P(f"v_xor_b32 v252, 64, v251")
ITF = 222
def item_reads():
    return [[WVM('item')]] + [[f"ds_read_b64_tr_b16 {vr(ITF+4*ct+2*rho,2)}, v{251+ct} offset:{rho*1024}"] for ct in range(2) for rho in range(2)]
def item_stores():
    return [[(f"buffer_store_dwordx4 {vr(ITF+4*ct,4)}, v{V_L16}, {sr(SRD_WS,4)}, s{S_PST} offen offset:{ct*1024} {SC}", 'itst')] for ct in range(2)]
def item_flag():
    return [[WVM('itst')] + flag_store(S_PFL)]

def stage1_setup2(P, o):
    T = V_T
    P(f"s_lshl_b32 s{S_T0}, s{S_WAVE}, 12")
    P(f"s_mul_i32 s{S_T1}, s{S_WAVE}, 3072")
    s1_m0tab(P, 1); s1_m0tab(P, 2)
    for i in range(1, 7): s1_tab(P, o, i)
    srd_rest(P, [(SRD_WS, WS_SIZE), (SRD_OUT, 2048*896)])
    P(f"v_and_b32 v{T}, 31, v{V_LANE}")
    P(f"v_lshrrev_b32 v{T+1}, 5, v{V_LANE}")
    P(f"v_bfe_u32 v{T+2}, v{V_LANE}, 1, 3")
    P(f"v_xor_b32 v{T+2}, v{T+2}, v{T+1}")
    P(f"v_lshl_add_u32 v{T}, v{T}, 7, s{S_T0}")
    for s in range(4):
        P(f"v_xor_b32 v{T+3}, {2*s}, v{T+2}")
        P(f"v_lshl_add_u32 v{V_XR+s}, v{T+3}, 4, v{T}")
    P(f"v_bfe_u32 v{T}, v{V_LANE}, 2, 2")
    P(f"v_lshl_add_u32 v{T+1}, v{T+1}, 3, v{T}")
    P(f"v_bfe_u32 v{T+2}, v{V_LANE}, 4, 1")
    P(f"v_lshlrev_b32 v{T+2}, 5, v{T+2}")
    P(f"v_and_b32 v{T+3}, 3, v{V_LANE}")
    P(f"v_lshl_add_u32 v{T+2}, v{T+3}, 3, v{T+2}")
    P(f"v_mul_u32_u24 v{T+3}, 192, v{T+1}")
    P(f"v_add_u32 v{T+3}, {LQ}, v{T+3}")
    P(f"v_add_u32 v{V_QR}, v{T+3}, v{T+2}")
    P(f"v_lshl_add_u32 v{T+2}, v{T+1}, 8, v{T+2}")
    P(f"v_add_u32 v{T+2}, {LF}, v{T+2}")
    for c in range(4):
        P(f"v_xor_b32 v{T+3}, {c}, v{T}")
        P(f"v_lshl_add_u32 v{V_FRD+c}, v{T+3}, 6, v{T+2}")
    A = -2.0 * math.sqrt(2.0 / math.pi) * 0.044715 * math.log2(math.e)
    B = -2.0 * math.sqrt(2.0 / math.pi) * math.log2(math.e)
    P(f"v_mov_b32 v{V_CA}, {hex(f2u(A))}")
    P(f"v_mov_b32 v{V_CB}, {hex(f2u(B))}")
    P(f"s_mul_i32 s{S_QST}, s{S_TB}, {QKV_TB}")
    P(f"s_mul_i32 s{S_T0}, s{S_B}, {3*2048}")
    P(f"s_add_u32 s{S_QST}, s{S_QST}, s{S_T0}")
    P(f"s_add_u32 s{S_QST}, s{S_QST}, {QKV_OFF}")
    P(f"s_mul_i32 s{S_HST}, s{S_TB}, {A_TB}")
    P(f"s_lshl_b32 s{S_T0}, s{S_B}, 13")
    P(f"s_add_u32 s{S_HST}, s{S_HST}, s{S_T0}")
    P(f"s_add_u32 s{S_HST}, s{S_HST}, {A_OFF}")

def bias_expand(P, src_v, tmp, addr):
    P(f"v_lshlrev_b32 v{tmp}, 16, v{src_v}")
    P(f"v_and_b32 v{tmp+1}, 0xffff0000, v{src_v}")
    P(f"s_lshl_b32 s{S_T0}, s{S_WAVE}, 9")
    P(f"s_add_u32 s{S_T0}, s{S_T0}, {LBIAS}")
    P(f"v_lshl_add_u32 v{tmp+2}, v{V_LANE}, 3, s{S_T0}")
    P(f"ds_write_b64 v{tmp+2}, {vr(tmp,2)}")
    P(f"v_lshrrev_b32 v{addr}, 5, v{V_LANE}")
    P(f"v_lshl_add_u32 v{addr}, v{addr}, 4, s{S_T0}")

def b_loads():
    L = []
    for g in range(7):
        for k in range(4):
            for ct in range(2):
                idx = (g * 4 + k) * 2 + ct
                L.append([(f"buffer_load_dwordx4 {ar(4*idx,4)}, v{V_BA+ct*2+(k>>1)}, {sr(SRD_WS,4)}, s{S_BT[g]} offen offset:{(k&1)*2048} {SC}", 'bld')])
    for k in range(4):
        for ct in range(2):
            idx = 56 + k * 2 + ct
            L.append([(f"buffer_load_dwordx4 {ar(4*idx,4)}, v{V_BA+ct*2+(k>>1)}, {sr(SRD_WS,4)}, s{S_BOFF} offen offset:{(k&1)*2048} {SC}", 'bld')])
    return L

def stage1(P, o, hooks):
    if o.ncls in (2, 4):
        P(f"s_add_u32 s{S_T4}, s{S_C}, s{S_RBL}")
        P(f"s_and_b32 s{S_T4}, s{S_T4}, {o.ncls - 1}")
        P(f"s_mul_i32 s{S_T4}, s{S_T4}, {o.cstep}")
    elif o.ncls == 3:
        P(f"s_add_u32 s{S_T4}, s{S_C}, s{S_RBL}")
        P(f"s_lshl_b32 s{S_T4}, s{S_T4}, 1")
        P(f"s_lshr_b32 s{S_T4}, 0x24924, s{S_T4}")
        P(f"s_and_b32 s{S_T4}, s{S_T4}, 3")
        P(f"s_mul_i32 s{S_T4}, s{S_T4}, {o.cstep}")
    elif o.ncls == 7: rot_calc(P, S_T4, 1, 2, 1)
    if o.ncls > 1: s1_tab(P, o, 0)
    s1_x_addr(P, o)
    if o.stamps: P(f"{o.clk} s[76:77]")
    P(f"s_mov_b32 m0, s{S_TAB+21}")
    P("s_waitcnt lgkmcnt(0)")
    if o.stamps:
        o.stamp_names += ['entry', 'pre_karg', 'karg', 'dma1st', 'dma5th']
        P(f"{o.clk} s[74:75]")
    tlb_touch(P, o, False)
    d0 = [[(x[0].replace(f"s{S_TAB}", "0").replace(f"s{S_TAB+7}", "0").replace(f"s{S_TAB+14}", "0"), x[1]) if isinstance(x, tuple) else x for x in it] for it in s1_dma(0, 0)]
    if o.ncls > 1: d0 = s1_dma(0, 0)
    for it in d0[1:5]: P.add(it)
    if o.stamps: P(f"{o.clk} s[72:73]")
    s1_w1_addr(P, o)
    for it in d0[9:14]: P.add(it)
    if o.stamps: P(f"{o.clk} s[68:69]")
    s1_wq_addr(P, o)
    for it in d0[5:9]: P.add(it)
    P(f"global_load_dword v9, v5, {sr(S_B1)}", tag='dma0')
    code_prefetch(P, o)
    if o.stamps: P(f"v_mov_b32 v{V_ST}, 0")
    stamp(P, o, 'd0_issued')
    if o.stamps:
        for i, r in enumerate([92, 76, 74, 72, 68]): P(f"v_writelane_b32 v{V_ST}, s{r}, {i}")
    tlb_touch(P, o, True)
    if o.pf:
        l2pf_setup(P, o)
        for it in l2pf(1): P.add(it)
    common2(P, o)
    stage1_setup2(P, o)
    late = [it for c in range(1, 3) for it in s1_dma(c, c)]
    late.append([f"buffer_load_dword v{V_TAG}, v{V_FLAGOFF}, {sr(SRD_WS,4)}, 0 offen"])
    if o.pf:
        late = l2pf(2) + late[:14] + l2pf(3) + late[14:]
        for k in range(4, 7): hooks[4 * k - 13] = l2pf(k) + hooks.get(4 * k - 13, [])
    Q = Prog(); item_load(Q, o, 'a')
    il = [x for x in Q.L if getattr(x, 'tag', None) == 'item']
    if o.item_ld < 0: P.L += Q.L
    else:
        for x in Q.L:
            if getattr(x, 'tag', None) == 'item': P(f"v_mov_b32 v{253 + il.index(x)}, v{V_T+2}")
            elif x.text.startswith('s_add_u32 m0'): P(x.text.replace('m0', f's{S_OFL}'))
            else: P.L.append(x)
        P(f"s_mov_b32 s{S_CNT}, s{S_T2}")
        hooks[o.item_ld] = hooks.get(o.item_ld, []) + [[f"s_mov_b32 m0, s{S_OFL}", "s_nop 0"] + [(x.text.replace(f"v{V_T+2},", f"v{253+i},").replace(f"s{S_T2} ", f"s{S_CNT} "), 'item') for i, x in enumerate(il)]]
    last_baddr(P, o)
    for it in late[:o.pre]: P.add(it)
    late = late[o.pre:]
    hooks[o.tag_at] = hooks.get(o.tag_at, []) + [[x] for x in make_tag_v()]
    hooks[o.item_at] = hooks.get(o.item_at, []) + item_reads()
    hooks[o.item_at + 1] = hooks.get(o.item_at + 1, []) + item_stores()
    hooks[o.itflag_at] = hooks.get(o.itflag_at, []) + item_flag()
    stamp(P, o, 's1_issued')
    bias_expand(P, 9, 12, 11)
    for F in range(4):
        for q in range(4):
            P(f"ds_read_b128 {vr(ACC_F+16*F+4*q,4)}, v11 offset:{(32*F+8*q)*4}")
    P.wait_vm('dma0')
    P("s_waitcnt lgkmcnt(0)")
    P("s_barrier")
    stamp(P, o, 's1_first')
    P.add(s1_reads(0, 0, 0))
    for c in range(7):
        for s in range(4):
            g = 4 * c + s
            fs = g & 1
            base = FR + 32 * fs
            P("s_waitcnt lgkmcnt(0)")
            if s == 3 and c < 6:
                P.wait_vm(f'dma{c+1}')
                P("s_barrier")
                if o.trunc == 's1': stamp(P, o, f'c{c}')
            M = []
            for t in range(7):
                acc = ACC_Q + 16 * t
                Cin = None if (g == 0 and t < 3) else acc
                M.append([mfma(acc, base + 4 + 4 * t, base, Cin)])
            rd = []
            if g < 27:
                nc, ns = (c, s + 1) if s < 3 else (c + 1, 0)
                rd = s1_reads(nc % 3, ns, fs ^ 1)
            ex = []
            cc, ph = (c, 0) if s == 3 else (c - 1, s + 1)
            if 0 <= cc and cc + 3 < 7:
                d = s1_dma(cc % 3, cc + 3)
                cut = [0, 4, 7, 11, 14]
                ex = d[cut[ph]:cut[ph + 1]]
            first = []
            if g < 3 and late:
                k = -(-len(late) // (3 - g)); first = late[:k]; late = late[k:]
            ex = first + ex + hooks.get(g, [])
            seq = []
            per = [3, 3, 3, 3, 3, 0, 0]
            ri = 0
            nslot = 7 if len(ex) > 4 else 4
            for t in range(7):
                seq += M[t]
                seq += rd[ri:ri + per[t]]; ri += per[t]
                j = t - (7 - nslot)
                if j >= 0:
                    for e in ex[(j * len(ex)) // nslot:((j + 1) * len(ex)) // nslot]: seq += e
            P.add(seq)
    stamp(P, o, 's1_loop')

def qkv_epilogue(P, o):
    c = (28.0 ** -0.5) * math.log2(math.e)
    P(f"s_mul_i32 s{S_T0}, s{S_B}, 3")
    P("s_nop 1")
    for t in range(3):
        acc = ACC_Q + 16 * t
        P(f"s_add_u32 s{S_T1}, s{S_T0}, {t}")
        P(f"s_cmp_lt_u32 s{S_T1}, 14")
        P(f"s_cbranch_scc0 L_nosc{t}")
        P(f"s_mov_b32 s{S_T2}, {hex(f2u(c))}")
        for i in range(8):
            P(f"v_pk_mul_f32 {vr(acc+2*i,2)}, {vr(acc+2*i,2)}, s[{S_T2}:{S_T3}] op_sel_hi:[1,0]")
        P(f"L_nosc{t}:")
        p = GT + 8 * t
        for i in range(8):
            P(f"v_cvt_pk_bf16_f32 v{p+i}, v{acc+2*i}, v{acc+2*i+1}")
        for h in range(2):
            P(f"v_permlane32_swap_b32 v{p+4*h}, v{p+4*h+2}")
            P(f"v_permlane32_swap_b32 v{p+4*h+1}, v{p+4*h+3}")
        for h in range(2):
            off = t * 2048 + h * 1024
            P(f"buffer_store_dwordx4 {vr(p+4*h,4)}, v{V_L16H if off >= 4096 else V_L16}, {sr(SRD_WS,4)}, s{S_QST} offen offset:{off & 4095} {SC}", tag='qst')

def gelu_tile(F):
    u = ACC_F + 16 * F
    t = GT + 32 + 16 * (F & 1)
    L = []
    pr = lambda b, i: vr(b + 2 * i, 2)
    for i in range(8): L.append(f"v_pk_mul_f32 {pr(t,i)}, {pr(u,i)}, {pr(u,i)}")
    for i in range(8): L.append(f"v_pk_fma_f32 {pr(t,i)}, {pr(t,i)}, {vr(V_CA,2)}, {vr(V_CB,2)} op_sel_hi:[1,0,0]")
    for i in range(8): L.append(f"v_pk_mul_f32 {pr(t,i)}, {pr(t,i)}, {pr(u,i)}")
    for i in range(16): L.append(f"v_exp_f32 v{t+i}, v{t+i}")
    for i in range(8): L.append(f"v_pk_add_f32 {pr(t,i)}, {pr(t,i)}, 1.0 op_sel_hi:[1,0]")
    for i in range(16): L.append(f"v_rcp_f32 v{t+i}, v{t+i}")
    for i in range(8): L.append(f"v_pk_mul_f32 {pr(t,i)}, {pr(t,i)}, {pr(u,i)}")
    for i in range(8): L.append(f"v_cvt_pk_bf16_f32 v{u+i}, v{t+2*i}, v{t+2*i+1}")
    for h in range(2):
        off = (2 * F + h) * 1024
        L.append((f"buffer_store_dwordx4 {vr(u+4*h,4)}, v{V_L16H if off >= 4096 else V_L16}, {sr(SRD_WS,4)}, s{S_HST} offen offset:{off & 4095} {SC}", 'hst'))
    return L

def prep(P, o):
    T = V_T
    S_SP = S_R
    srd_rest(P, [(SRD_WS, WS_SIZE), (SRD_OUT, 2048*896)])
    if o.stamps: P(f"v_mov_b32 v{V_ST}, 0")
    common2(P, o)
    P("s_waitcnt lgkmcnt(0)")
    if o.stamps: P(f"v_writelane_b32 v{V_ST}, s92, 0")
    P(f"s_load_dword s{S_TAG}, {sr(SRD_WS)}, {WS_E}")
    item_load(P, o, 'b')
    P(f"v_lshrrev_b32 v{T}, 2, v{V_LANE}")
    P(f"s_lshl2_add_u32 s{S_T0}, s{S_SP}, s{S_WAVE}")
    P(f"s_lshl_b32 s{S_T0}, s{S_T0}, 4")
    P(f"v_add_u32 v20, s{S_T0}, v{T}")
    P(f"v_mul_u32_u24 v{T}, 896, v20")
    P(f"v_and_b32 v{T+1}, 3, v{V_LANE}")
    P(f"v_lshlrev_b32 v{T+1}, 4, v{T+1}")
    P(f"v_add_u32 v{T}, v{T}, v{T+1}")
    for i in range(14):
        P(f"buffer_load_dwordx4 {vr(32+4*i,4)}, v{T}, {sr(SRD_X,4)}, 0 offen offset:{64*i}")
        P(f"global_load_dwordx4 {vr(96+4*i,4)}, v{T+1}, {sr(S_GW)} offset:{64*i}")
    make_tag(P, o)
    for it in item_reads() + item_stores(): P.add(it)
    P("v_mov_b32 v24, 0")
    P("v_mov_b32 v25, 0")
    for i in range(56):
        P(f"v_dot2_f32_bf16 v{24+(i&1)}, v{32+i}, v{96+i}, v{24+(i&1)}")
    P("s_nop 2")
    P("v_add_f32 v24, v24, v25")
    P("v_add_f32_dpp v24, v24, v24 quad_perm:[1,0,3,2] row_mask:0xf bank_mask:0xf")
    P("v_add_f32_dpp v24, v24, v24 quad_perm:[2,3,0,1] row_mask:0xf bank_mask:0xf")
    P(f"v_mul_f32 v24, {hex(f2u(-math.log2(math.e)))}, v24")
    P("v_exp_f32 v24, v24")
    P("v_add_f32 v24, 1.0, v24")
    P("v_rcp_f32 v24, v24")
    P(f"v_lshlrev_b32 v20, 2, v20")
    P(f"v_and_b32 v25, 3, v{V_LANE}")
    P(f"v_cmp_eq_u32 vcc, 0, v25")
    P(f"v_mov_b32 v27, 0x7fff0000")
    P(f"v_cndmask_b32 v20, v27, v20, vcc")
    P(f"s_mov_b32 s{S_T0}, {G_OFF}")
    P(f"buffer_store_dword v24, v20, {sr(SRD_WS,4)}, s{S_T0} offen {SC}")
    P("s_waitcnt vmcnt(0) lgkmcnt(0)")
    P.add(flag_store(S_PFL))
    P("s_barrier")
    P(f"s_lshl_b32 s{S_T0}, s{S_SP}, 7")
    P(f"s_add_u32 s{S_T0}, s{S_T0}, {FL_G}")
    P(f"s_cmp_eq_u32 s{S_WAVE}, 0")
    P("s_cbranch_scc0 L_prep_nf")
    P.add(flag_store(S_T0))
    P("L_prep_nf:")
    stamp(P, o, 'p_flag')

AQ = 16
AK = 24
AV = 40
AS = 56
AN = 104
AO = 120
AP = 136
AM = 160
A_KR, A_VR = 168, 169
A_KD, A_VD = 171, 172
A_PA, A_PV = 174, 175
A_G = 178
A_MX = 179

def att_scalars(P, o):
    P(f"s_and_b32 s{S_RB}, s{S_SLOT}, 15")
    P(f"s_lshr_b32 s{S_J}, s{S_SLOT}, 4")
    P(f"s_lshl_b32 s{S_T0}, s{S_XCD}, 1")
    P(f"s_add_u32 s{S_J}, s{S_J}, s{S_T0}")
    P(f"s_lshl_b32 s{S_TB}, s{S_RB}, 2")
    P(f"s_add_u32 s{S_TB}, s{S_TB}, s{S_WAVE}")
    P(f"s_and_b32 s{S_PAR}, s{S_J}, 1")
    P(f"s_lshl_b32 s{S_T0}, s{S_TB}, 4")
    P(f"s_add_u32 s{S_T0}, s{S_T0}, s{S_J}")
    P(f"s_lshl_b32 s{S_T0}, s{S_T0}, 7")
    P(f"s_add_u32 s{S_OFL}, s{S_T0}, {FL_O}")

def att_poll_addr(P, o):
    T = V_T
    P(f"v_min_u32 v{T}, 13, v{V_LANE}")
    P(f"v_lshrrev_b32 v{T+1}, 1, v{T}")
    P(f"v_and_b32 v{T}, 1, v{T}")
    P(f"s_mul_i32 s{S_T0}, s{S_J}, 7")
    P(f"s_lshr_b32 s{S_T0}, s{S_T0}, 1")
    P(f"s_lshl_b32 s{S_T0}, s{S_T0}, 3")
    P(f"v_mad_u32_u24 v{T}, v{T}, 31, s{S_T0}")
    P(f"v_cmp_gt_u32 vcc, 3, v{T+1}")
    P(f"v_mov_b32 v{T+2}, 896")
    P(f"v_mov_b32 v{T+3}, 448")
    P(f"v_cndmask_b32 v{T+2}, v{T+2}, v{T+3}, vcc")
    P(f"v_subrev_u32 v{T+3}, 3, v{T+1}")
    P(f"v_cndmask_b32 v{T+3}, v{T+3}, v{T+1}, vcc")
    P(f"v_cmp_eq_u32 vcc, 6, v{T+1}")
    P(f"s_mul_i32 s{S_T1}, s{S_WAVE}, 3")
    P(f"s_lshl_b32 s{S_T2}, s{S_RB}, 2")
    P(f"s_add_u32 s{S_T1}, s{S_T1}, s{S_T2}")
    P(f"s_sub_u32 s{S_T1}, s{S_T1}, 8")
    P(f"v_cndmask_b32_e64 v{T+2}, v{T+2}, 0, vcc")
    P(f"v_add_u32 v{T}, v{T}, v{T+2}")
    P(f"v_mul_u32_u24 v{T}, 683, v{T}")
    P(f"v_lshrrev_b32 v{T}, 16, v{T}")
    P(f"v_add_u32 v{T+3}, s{S_T1}, v{T+3}")
    P(f"v_max_i32 v{T+3}, 0, v{T+3}")
    P(f"v_mov_b32 v{T+2}, s{S_TB}")
    P(f"v_cndmask_b32 v{T+3}, v{T+3}, v{T+2}, vcc")
    P(f"v_lshl_add_u32 v{T}, v{T+3}, 4, v{T}")
    P(f"v_lshlrev_b32 v{T}, 7, v{T}")
    P(f"v_add_u32 v{V_PA}, {FL_QKV}, v{T}")
    P(f"s_lshr_b32 s{S_T0}, s{S_TB}, 1")
    P(f"s_lshl_b32 s{S_T0}, s{S_T0}, 7")
    P(f"s_add_u32 s{S_T0}, s{S_T0}, {FL_G}")
    P(f"s_lshl_b32 s{S_T1}, s{S_R}, 7")
    P(f"s_add_u32 s{S_T1}, s{S_T1}, {FL_G}")
    P(f"v_writelane_b32 v{V_PA}, s{S_T0}, 14")
    P(f"v_writelane_b32 v{V_PA}, s{S_T1}, 15")

def att_addr(P, o):
    T = V_T
    P(f"s_mul_i32 s{S_T0}, s{S_J}, 7")
    P(f"s_lshr_b32 s{S_T0}, s{S_T0}, 1")
    P(f"s_lshl_b32 s{S_T4}, s{S_T0}, 9")
    P(f"s_add_u32 s{S_T1}, s{S_T4}, {56*512}")
    P(f"v_add_u32 v{A_KD}, s{S_T1}, v{V_L16}")
    P(f"v_lshrrev_b32 v{T}, 5, v{V_LANE}")
    P(f"v_and_b32 v{T+1}, 31, v{V_LANE}")
    P(f"s_add_u32 s{S_T1}, s{S_T4}, {112*512 - 2048}")
    for t in range(2):
        P(f"v_lshlrev_b32 v{T+2}, 2, v{T}")
        P(f"v_xor_b32 v{T+2}, v{T+2}, v{T+1}")
        if t: P(f"v_xor_b32 v{T+2}, 8, v{T+2}")
        P(f"v_lshlrev_b32 v{T+2}, 4, v{T+2}")
        P(f"v_lshl_add_u32 v{T+2}, v{T}, 9, v{T+2}")
        P(f"v_add_u32 v{A_VD+t}, s{S_T1}, v{T+2}")
    P(f"s_lshl_b32 s{S_T1}, s{S_WAVE}, 12")
    P(f"v_add_u32 v{A_KR}, s{S_T1}, v{V_L16}")
    P(f"v_bfe_u32 v{T+1}, v{V_LANE}, 4, 1")
    P(f"v_bfe_u32 v{T+2}, v{V_LANE}, 1, 1")
    P(f"v_lshl_add_u32 v{T+3}, v{T+1}, 1, v{T+2}")
    P(f"v_lshlrev_b32 v{T+4}, 9, v{T+3}")
    P(f"v_xor_b32 v{T+3}, v{T+3}, v{T}")
    P(f"v_lshl_add_u32 v{T+4}, v{T+3}, 6, v{T+4}")
    P(f"v_bfe_u32 v{T+3}, v{V_LANE}, 2, 2")
    P(f"v_lshl_add_u32 v{T+4}, v{T+3}, 4, v{T+4}")
    P(f"v_and_b32 v{T+3}, 1, v{V_LANE}")
    P(f"v_lshl_add_u32 v{T+4}, v{T+3}, 3, v{T+4}")
    P(f"s_add_u32 s{S_T1}, s{S_T1}, 2048")
    P(f"v_add_u32 v{A_VR}, s{S_T1}, v{T+4}")
    P(f"v_xor_b32 v{A_VR+1}, 128, v{A_VR}")
    P(f"v_and_b32 v{T+1}, 31, v{V_LANE}")
    P(f"v_mul_u32_u24 v{T+2}, 12, v{T}")
    P(f"s_cmp_eq_u32 s{S_PAR}, 0")
    P(f"s_cselect_b32 s{S_T1}, -1, 0")
    P(f"s_cselect_b32 s{S_T2}, 1544, 0")
    P(f"v_and_b32 v{T+2}, s{S_T1}, v{T+2}")
    P(f"v_xor_b32 v{T+1}, v{T+1}, v{T+2}")
    P(f"v_lshlrev_b32 v{T+1}, 4, v{T+1}")
    P(f"v_lshl_add_u32 v{T+1}, v{T}, 11, v{T+1}")
    P(f"s_mul_i32 s{S_T3}, s{S_WAVE}, {3*4096}")
    P(f"s_add_u32 s{S_T2}, s{S_T2}, s{S_T3}")
    P(f"v_add_u32 v{A_PA}, s{S_T2}, v{T+1}")
    P(f"v_cmp_gt_u32 vcc, 32, v{V_LANE}")
    P(f"s_mul_i32 s{S_T1}, s{S_WAVE}, 3")
    P(f"s_lshl_b32 s{S_T2}, s{S_RB}, 2")
    P(f"s_add_u32 s{S_T1}, s{S_T1}, s{S_T2}")
    P(f"v_mov_b32 v{T+1}, 0x3f80")
    for k in range(3):
        P(f"s_add_u32 s{S_T2}, s{S_T1}, {k}")
        P(f"s_cmp_lt_u32 s{S_T2}, 8")
        P(f"s_cselect_b32 s{S_T2}, 0xf14a, 0")
        P(f"v_mov_b32 v{T+2}, s{S_T2}")
        P(f"v_cndmask_b32 v{A_PV+k}, v{T+1}, v{T+2}, vcc")
    for r in range(16):
        k0 = (r & 3) + 8 * (r >> 2)
        lo = (0xffffffff << k0) & 0xffffffff
        hi = (0xffffffff << (k0 + 4)) & 0xffffffff
        P(f"s_mov_b32 s{S_TAB+2*r}, {hex(lo)}")
        P(f"s_mov_b32 s{S_TAB+2*r+1}, {hex(hi)}")
    P(f"v_mov_b32 v{T+1}, 0xffff")
    P(f"v_mov_b32 v{T+2}, 0xffff0000")
    for i in range(8):
        P(f"v_cndmask_b32_e64 v{T+3}, 0, v{T+1}, {sr(S_TAB+4*i)}")
        P(f"v_cndmask_b32_e64 v{T+4}, 0, v{T+2}, {sr(S_TAB+4*i+2)}")
        P(f"v_or_b32 v{AM+i}, v{T+3}, v{T+4}")
    P(f"s_mul_i32 s{S_T1}, s{S_WAVE}, 3")
    P(f"s_lshl_b32 s{S_T2}, s{S_RB}, 2")
    P(f"s_add_u32 s{S_T1}, s{S_T1}, s{S_T2}")
    for k in range(3):
        P(f"s_add_i32 s{S_T2}, s{S_T1}, {k-8}")
        P(f"s_max_i32 s{S_T2}, s{S_T2}, 0")
        P(f"s_mul_i32 s{S_T2}, s{S_T2}, {QKV_TB}")
        P(f"s_add_u32 s{48+k}, s{S_T2}, {QKV_OFF}")
    P(f"s_mul_i32 s{S_T2}, s{S_TB}, {QKV_TB}")
    P(f"s_add_u32 s{S_T2}, s{S_T2}, s{S_T4}")
    P(f"s_add_u32 s51, s{S_T2}, {QKV_OFF}")
    P(f"s_mul_i32 s{S_T2}, s{S_TB}, {A_TB}")
    P(f"s_lshl_b32 s{S_T3}, s{S_J}, 11")
    P(f"s_add_u32 s{S_T2}, s{S_T2}, s{S_T3}")
    P(f"s_add_u32 s{S_T4}, s{S_T2}, {A_OFF + 112*1024}")

def att_loads(P, o):
    P(f"s_mul_i32 s{S_T3}, s{S_WAVE}, {3*4096}")
    for k in range(3):
        P(f"s_add_u32 m0, s{S_T3}, {LKV + k*4096}")
        for t in range(2):
            P(f"buffer_load_dwordx4 v{A_KD}, {sr(SRD_WS,4)}, s{48+k} offen offset:{t*1024} {SC} lds", tag='kv')
        for t in range(2):
            P(f"buffer_load_dwordx4 v{A_VD+t}, {sr(SRD_WS,4)}, s{48+k} offen offset:{2048+t*1024} {SC} lds", tag='kv')
    for t in range(2):
        P(f"buffer_load_dwordx4 {vr(AQ+4*t,4)}, v{V_L16}, {sr(SRD_WS,4)}, s51 offen offset:{t*1024} {SC}")
    T = V_T
    P(f"v_and_b32 v{T+1}, 31, v{V_LANE}")
    P(f"v_lshlrev_b32 v{T+1}, 2, v{T+1}")
    P(f"s_lshl_b32 s{S_T2}, s{S_TB}, 7")
    P(f"s_add_u32 s{S_T2}, s{S_T2}, {G_OFF}")
    P(f"buffer_load_dword v{A_G}, v{T+1}, {sr(SRD_WS,4)}, s{S_T2} offen {SC}")
    P(f"s_and_b32 s{S_T1}, s{S_WAVE}, 1")
    P(f"s_lshl_b32 s{S_T0}, s{S_R}, 8")
    P(f"s_add_u32 s{S_T0}, s{S_T0}, {G_OFF}")
    P(f"s_lshl_b32 s{S_T2}, s{S_T1}, 7")
    P(f"s_xor_b32 s{S_T3}, s{S_T2}, 128")
    P(f"s_add_u32 s{S_T2}, s{S_T2}, s{S_T0}")
    P(f"s_add_u32 s{S_T3}, s{S_T3}, s{S_T0}")
    P(f"buffer_load_dword v{L_G}, v{T+1}, {sr(SRD_WS,4)}, s{S_T3} offen {SC}")
    P(f"buffer_load_dword v{L_G+1}, v{T+1}, {sr(SRD_WS,4)}, s{S_T2} offen {SC}")

def kread(i, buf):
    return [f"ds_read_b128 {vr(AK+8*buf+4*t,4)}, v{A_KR} offset:{LKV + i*4096 + t*1024}" for t in range(2)]
def vread(i, buf):
    return [f"ds_read_b64_tr_b16 {vr(AV+8*buf+4*t+2*rho,2)}, v{A_VR+rho} offset:{LKV + i*4096 + t*256}" for t in range(2) for rho in range(2)]
def qk(i, sbuf, kbuf, c):
    s = AS + 16 * sbuf
    return [mfma(s, AK + 8 * kbuf, AQ, c), mfma(s, AK + 8 * kbuf + 4, AQ + 4, s)]

def attention(P, o, hooks):
    T = V_T
    P(f"s_cmp_eq_u32 s{S_PAR}, 0")
    P(f"s_cselect_b32 s{S_T0}, 0, -1")
    P(f"s_mov_b32 s{S_T1}, 0")
    P(f"s_mov_b32 s{S_T2}, 0")
    P(f"s_cselect_b32 s{S_T3}, -1, 0")
    P(f"v_mov_b32 v{T}, 0x3f80")
    P.wait_vm('kv')
    for k in range(3):
        P(f"ds_write_b16 v{A_PA}, v{A_PV+k} offset:{LKV + k*4096}")
    P(f"v_cndmask_b32_e64 v{AQ}, v{AQ}, v{T}, {sr(S_T0)}")
    P(f"v_cndmask_b32_e64 v{AQ+1}, v{AQ+1}, 0, {sr(S_T0)}")
    P(f"v_cndmask_b32_e64 v{AQ+6}, v{AQ+6}, v{T}, {sr(S_T2)}")
    P(f"v_cndmask_b32_e64 v{AQ+7}, v{AQ+7}, 0, {sr(S_T2)}")
    P("s_waitcnt lgkmcnt(0)")
    P("s_barrier")
    stamp(P, o, 'att_go')
    order = [0, 8, 1, 2, 3, 4, 5, 6, 7]
    sb = lambda n: n % 4
    P.add(kread(order[0], 0)); P.add(kread(order[1], 1))
    def maxops(s, first):
        L = []
        for i in range(8):
            if first and i == 0: L.append(f"v_max_f32 v{A_MX}, v{s}, v{s+1}")
            else: L.append(f"v_max3_f32 v{A_MX}, v{s+2*i}, v{s+2*i+1}, v{A_MX}")
        return L
    merge = [f"v_cndmask_b32_e64 v{AS+16+r}, v{AS+r}, v{AS+16+r}, {sr(S_TAB+2*r)}" for r in range(16)]
    for n in range(9):
        m = qk(order[n], sb(n), n & 1, None)
        post = []
        if n == 3: post = merge
        if n == 4: post = maxops(AS + 16, True) + maxops(AS + 16 * sb(2), False)
        if n >= 5: post = maxops(AS + 16 * sb(n - 2), False)
        nxt = kread(order[n + 2], n & 1) if n + 2 < 9 else kread(order[n + 2 - 9], n & 1)
        h = len(post) // 2
        P.add([m[0]] + post[:h] + [m[1]] + nxt + post[h:])
    P.add(vread(0, 0)); P.add(vread(8, 1))
    P.add(maxops(AS + 16 * sb(7), False))
    P.add(maxops(AS + 16 * sb(8), False))
    P(f"v_mov_b32 v{T}, v{A_MX}")
    P(f"v_permlane32_swap_b32 v{A_MX}, v{T}")
    P(f"v_max_f32 v{A_MX}, v{A_MX}, v{T}")
    P(f"v_sub_f32 v{AN}, 0, v{A_MX}")
    P(f"v_sub_f32 v{AN+1}, 0, v{A_MX}")
    for i in range(1, 8): P(f"v_mov_b64 {vr(AN+2*i,2)}, {vr(AN,2)}")
    stamp(P, o, 'att_p1')
    kb = lambda n: (n + 1) & 1
    def expcvt(s, p):
        L = []
        for i in range(8):
            L += [f"v_exp_f32 v{s+2*i}, v{s+2*i}", f"v_exp_f32 v{s+2*i+1}, v{s+2*i+1}"]
            if i >= 1: L.append(f"v_cvt_pk_bf16_f32 v{p+i-1}, v{s+2*i-2}, v{s+2*i-1}")
        L.append(f"v_cvt_pk_bf16_f32 v{p+7}, v{s+14}, v{s+15}")
        return L
    def pv(p, vbuf, first=False):
        return [mfma(AO, AV + 8 * vbuf, p, None if first else AO), mfma(AO, AV + 8 * vbuf + 4, p + 4, AO)]
    m0 = qk(0, 0, kb(0), AN); m1 = qk(8, 1, kb(1), AN)
    P.add(m0 + kread(order[2], kb(2)) + m1 + kread(order[3], kb(3)))
    m2 = qk(order[2], 2, kb(2), AN)
    P.add([m2[0], m2[1]] + merge)
    ec = expcvt(AS + 16, AP)
    sp = []
    for i in range(8):
        sp += [f"v_and_b32 v{AP+8+i}, v{AP+i}, v{AM+i}", f"v_xor_b32 v{AP+16+i}, v{AP+i}, v{AP+8+i}"]
    m3 = qk(order[3], 0, kb(3), AN)
    P.add(kread(order[4], kb(4)) + ec[:8] + [m3[0]] + ec[8:16] + [m3[1]] + kread(order[5], kb(5)) + ec[16:] + sp)
    pend = pv(AP + 16, 0, True) + pv(AP + 8, 1)
    pend_rd = vread(order[2], 0) + vread(order[3], 1)
    for n in range(2, 9):
        p = AP + 16 if n == 3 else (AP if (n & 1) == 0 else AP + 8)
        ec = expcvt(AS + 16 * (n % 3), p)
        hk = hooks.get(n, [])
        if hk: ec = interleave([[x] for x in ec], hk)
        mq = qk(order[n + 2], (n + 2) % 3, kb(n + 2), AN) if n + 2 < 9 else []
        kr = kread(order[n + 4], kb(n + 4)) if n + 4 < 9 else []
        ms = pend + mq
        seq = []
        k = len(ms)
        step = max(1, len(ec) // max(k, 1))
        ei = 0
        for j, mm in enumerate(ms):
            seq.append(mm)
            if j == len(pend) - 1: seq += pend_rd
            if j == k - 1 and mq: seq += kr
            take = ec[ei:ei + step] if j < k - 1 else ec[ei:]
            seq += take; ei += len(take)
        P.add(seq)
        vb = n & 1
        pend = pv(p, vb)
        pend_rd = vread(order[n + 2], vb) if n + 2 < 9 else []
    P.add(pend)
    P(f"s_cmp_eq_u32 s{S_PAR}, 0")
    P(f"s_cselect_b64 {sr(S_T0)}, -1, 0")
    for it in hooks.get(9, []): P.add(it)
    stamp(P, o, 'att_p2')
    P(f"v_cndmask_b32_e64 v{T}, v{AO}, v{AO+12}, {sr(S_T0)}")
    P(f"v_mov_b32 v{T+1}, v{T}")
    P(f"v_permlane32_swap_b32 v{T}, v{T+1}")
    P(f"v_cndmask_b32_e64 v{T}, v{T}, v{T+1}, {sr(S_T0)}")
    P(f"v_rcp_f32 v{T}, v{T}")
    P(f"v_mul_f32 v{T+1}, v{T}, v{A_G}")
    for i in range(8):
        P(f"v_pk_mul_f32 {vr(AO+2*i,2)}, {vr(AO+2*i,2)}, {vr(T+1,2)} op_sel_hi:[1,0]")
    for i in range(8):
        P(f"v_cvt_pk_bf16_f32 v{AP+i}, v{AO+2*i}, v{AO+2*i+1}")
    for t in range(2):
        P(f"buffer_store_dwordx4 {vr(AP+4*t,4)}, v{V_L16}, {sr(SRD_WS,4)}, s{S_T4} offen offset:{t*1024} {SC}", tag='ost')

LACC = 16
EARLY = list(range(180, 216, 4)) + list(range(236, 252, 4))
LATE = list(range(80, 136, 4)) + list(range(144, 180, 4)) + [136, 140]

def last_baddr(P, o):
    rot_calc(P, S_ROT, *o.rot2)
    P(f"s_mul_i32 s{S_T0}, s{S_C}, {BP_C}")
    P(f"s_add_u32 s{S_T0}, s{S_T0}, {BP_OFF}")
    P(f"s_lshl_b32 s{S_T1}, s{S_WAVE}, 14")
    P(f"s_add_u32 s{S_BOFF}, s{S_T0}, {112*2048}")
    P(f"s_add_u32 s{S_BOFF}, s{S_BOFF}, s{S_T1}")
    P(f"s_add_u32 s{S_BOFF2}, s{S_BOFF}, 8192")
    P(f"s_mul_i32 s{S_T1}, s{S_WAVE}, {28*2048}")
    P(f"s_add_u32 s{S_T0}, s{S_T0}, s{S_T1}")
    P(f"s_mov_b32 s{S_T1}, s{S_ROT}")
    for g in range(7):
        P(f"s_lshl_b32 s{S_T2}, s{S_T1}, 13")
        P(f"s_add_u32 s{S_BT[g]}, s{S_T0}, s{S_T2}")
        if g < 6:
            P(f"s_add_u32 s{S_T1}, s{S_T1}, 1")
            P(f"s_cmp_eq_u32 s{S_T1}, 7")
            P(f"s_cselect_b32 s{S_T1}, 0, s{S_T1}")
    P(f"s_lshr_b32 s{S_T0}, s{S_WAVE}, 1")
    P(f"s_lshl_b32 s{S_T0}, s{S_T0}, 10")
    P(f"s_xor_b32 s{S_T1}, s{S_T0}, 1024")
    P(f"v_add_u32 v{V_BA}, s{S_T1}, v{V_L16}")
    P(f"v_add_u32 v{V_BA+1}, s{S_T1}, v{V_L16H}")
    P(f"v_add_u32 v{V_BA+2}, s{S_T0}, v{V_L16}")
    P(f"v_add_u32 v{V_BA+3}, s{S_T0}, v{V_L16H}")

def last_setup(P, o):
    T = V_T
    P(f"s_lshl_b32 s{S_T0}, s{S_C}, 7")
    P(f"v_and_b32 v{T}, 31, v{V_LANE}")
    P(f"v_lshl_add_u32 v{T+1}, v{T}, 2, s{S_T0}")
    P(f"global_load_dword v5, v{T+1}, {sr(S_B2)}")
    P(f"s_and_b32 s{S_T1}, s{S_WAVE}, 1")
    P(f"s_mul_i32 s{S_T2}, s{S_T1}, {A_TB}")
    P(f"s_sub_u32 s{S_T3}, {A_TB}, s{S_T2}")
    P(f"v_add_u32 v{V_AA}, s{S_T3}, v{V_L16}")
    P(f"v_add_u32 v{V_AA+1}, s{S_T2}, v{V_L16}")
    P(f"s_mul_i32 s{S_T0}, s{S_R}, {2*A_TB}")
    P(f"s_add_u32 s{S_T0}, s{S_T0}, {A_OFF}")
    P(f"s_lshl_b32 s{S_T2}, s{S_WAVE}, 13")
    P(f"s_add_u32 s{S_AT[7]}, s{S_T0}, s{S_T2}")
    P(f"s_add_u32 s{S_AT[7]}, s{S_AT[7]}, {112*1024}")
    P(f"s_add_u32 s{S_AT[8]}, s{S_AT[7]}, 4096")
    P(f"s_mul_i32 s{S_T2}, s{S_WAVE}, {28*1024}")
    P(f"s_add_u32 s{S_T0}, s{S_T0}, s{S_T2}")
    P(f"s_mov_b32 s{S_T2}, s{S_ROT}")
    for g in range(7):
        P(f"s_lshl_b32 s{S_T3}, s{S_T2}, 12")
        P(f"s_add_u32 s{S_AT[g]}, s{S_T0}, s{S_T3}")
        if g < 6:
            P(f"s_add_u32 s{S_T2}, s{S_T2}, 1")
            P(f"s_cmp_eq_u32 s{S_T2}, 7")
            P(f"s_cselect_b32 s{S_T2}, 0, s{S_T2}")
    P(f"v_and_b32 v{T+1}, 1, v{V_LANE}")
    P(f"s_lshl_b32 s{S_T0}, s{S_R}, 1")
    P(f"v_add_u32 v{T+1}, s{S_T0}, v{T+1}")
    P(f"v_lshlrev_b32 v{T+1}, 4, v{T+1}")
    P(f"v_bfe_u32 v{T+2}, v{V_LANE}, 1, 2")
    P(f"v_add_u32 v{T+1}, v{T+1}, v{T+2}")
    P(f"v_lshlrev_b32 v{T+1}, 7, v{T+1}")
    P(f"s_mul_i32 s{S_T0}, s{S_WAVE}, 7")
    P(f"s_lshr_b32 s{S_T0}, s{S_T0}, 1")
    P(f"s_lshl_b32 s{S_T0}, s{S_T0}, 7")
    P(f"s_add_u32 s{S_T0}, s{S_T0}, {FL_H}")
    P(f"v_add_u32 v{V_PH}, s{S_T0}, v{T+1}")
    P(f"s_lshl_b32 s{S_T0}, s{S_WAVE}, 9")
    P(f"s_add_u32 s{S_T0}, s{S_T0}, {FL_O}")
    P(f"v_add_u32 v{V_PO}, s{S_T0}, v{T+1}")
    for d in range(1, 4):
        P(f"s_xor_b32 s{S_T0}, s{S_WAVE}, {d}")
        P(f"s_mul_i32 s{S_T0}, s{S_T0}, 12288")
        P(f"s_add_u32 s{S_T0}, s{S_T0}, {LRED + (d-1)*4096}")
        P(f"v_add_u32 v{L_RW+d-1}, s{S_T0}, v{V_L16}")
    P(f"s_mul_i32 s{S_T0}, s{S_WAVE}, 12288")
    P(f"s_add_u32 s{S_T0}, s{S_T0}, {LRED}")
    P(f"v_add_u32 v{L_RR}, s{S_T0}, v{V_L16}")
    P(f"s_lshl_b32 s{S_T0}, s{S_R}, 6")
    P(f"s_lshl_b32 s{S_T2}, s{S_T1}, 5")
    P(f"s_add_u32 s{S_T0}, s{S_T0}, s{S_T2}")
    P(f"v_add_u32 v{T+1}, s{S_T0}, v{T}")
    P(f"v_mul_u32_u24 v{T+1}, 896, v{T+1}")
    P(f"v_lshrrev_b32 v{T+2}, 5, v{V_LANE}")
    P(f"v_lshl_add_u32 v{T+1}, v{T+2}, 4, v{T+1}")
    P(f"s_lshl_b32 s{S_T0}, s{S_C}, 7")
    P(f"s_lshr_b32 s{S_T2}, s{S_WAVE}, 1")
    P(f"s_lshl_b32 s{S_T2}, s{S_T2}, 6")
    P(f"s_add_u32 s{S_T0}, s{S_T0}, s{S_T2}")
    P(f"v_add_u32 v{L_OA}, s{S_T0}, v{T+1}")

def last_setup_b(P, o):
    bias_expand(P, 5, 12, L_BA)
    P(f"s_lshr_b32 s{S_T2}, s{S_WAVE}, 1")
    P(f"s_lshl_b32 s{S_T2}, s{S_T2}, 7")
    P(f"v_add_u32 v{L_BA}, s{S_T2}, v{L_BA}")

def a_slots(o):
    ne = o.nearly * 2
    sl = EARLY[:ne] + LATE + EARLY[ne:]
    ring = len(sl) // 2 * 2
    return [sl[i % ring] for i in range(72)], ring // 2

def a_load(o, n):
    sl, _ = a_slots(o)
    L = []
    for ttl in range(2):
        d = sl[2 * n + ttl]
        so, k = (S_AT[n >> 2], n & 3) if n < 28 else (S_AT[7 + ((n - 28) >> 2)], (n - 28) & 3)
        L.append((f"buffer_load_dwordx4 {vr(d,4)}, v{V_AA+ttl}, {sr(SRD_WS,4)}, s{so} offen offset:{k*1024} {o.asc}", 'ald'))
    return L

def breg(n, ctl):
    return 4 * (2 * (n if n < 32 else n - 32) + ctl)

def last(P, o):
    q = lambda ttl, ctl: LACC + 32 * ttl + 16 * ctl
    sl, depth = a_slots(o)
    mm = lambda n, ttl, ctl: mfma(q(ttl, ctl), breg(n, ctl), sl[2 * n + ttl], None if n == 0 else q(ttl, ctl), 'a')
    if o.nearly == 0:
        poll(P, o, V_PH)
        P.add(flag_store(S_OFL))
    stamp(P, o, 'last_go')
    nxt = o.nearly
    lim = lambda n: min(n + depth, 28)
    while nxt < min(o.burst, lim(0)): P.add(a_load(o, nxt)); nxt += 1
    opolled = False
    for n in range(28):
        M = [mm(n, ttl, ctl) for ttl in range(2) for ctl in range(2)]
        ex = []
        cnt = 0
        top = (36 if opolled else 28)
        while nxt < min(n + depth, top) and cnt < (2 if opolled else 1):
            ex += a_load(o, nxt); nxt += 1; cnt += 1
        if 4 <= n < 8:
            ex += [(f"buffer_load_dwordx4 {ar(breg(28+n, ct),4)}, v{V_BA+ct*2+((n-4)>>1)}, {sr(SRD_WS,4)}, s{S_BOFF2} offen offset:{((n-4)&1)*2048} {SC}", 'bld2') for ct in range(2)]
        if n == o.oflag_at and o.nearly > 0:
            ex = [WVM('ost')] + flag_store(S_OFL) + ex
        if n == o.opoll_at: ex += poll_issue(V_PO, V_PD)
        if n == o.ocheck_at:
            ex = poll_check(V_PO, V_PD) + ex; opolled = True
        if o.hst and n % 4 == 0 and n: stamp(P, o, f'h{n}')
        P.add(interleave([[m] for m in M], [[e] for e in ex], per=lambda i, L=len(ex): ((i+1)*L)//4 - (i*L)//4) if n != o.ocheck_at and n != o.oflag_at else M + ex)
    stamp(P, o, 'last_h')
    while nxt < 36: P.add(a_load(o, nxt)); nxt += 1
    used = set(sl[56:72])
    free = [r for r in sorted(set(sl)) if r not in used]
    B2 = None
    for r in free:
        if all((r + 4 * k) in free for k in range(4)): B2 = r; break
    for k in range(4): P(f"ds_read_b128 {vr(B2+4*k,4)}, v{L_BA} offset:{32*k}")
    sc = lambda ttl, ctl: [f"v_mul_f32 v{q(ttl,ctl)+i}, v{L_G+ttl}, v{q(ttl,ctl)+i}" for i in range(16)]
    P(f"v_sub_f32 v{L_G}, 1.0, v{L_G}")
    P(f"v_sub_f32 v{L_G+1}, 1.0, v{L_G+1}")
    P.add(sc(0, 0) + sc(0, 1))
    rest = sc(1, 0) + [f"v_add_f32 v{q(1,1)+i}, v{q(1,1)+i}, v{B2+i}" for i in range(16)] + sc(1, 1)
    M = []
    for n in range(28, 36): M += [[mm(n, 0, 0)], [mm(n, 0, 1)]]
    P.add(interleave(M, rest))
    wr = lambda ttl, ctl: [f"ds_write_b128 v{L_RW + ((1-ttl) | ((1-ctl) << 1)) - 1}, {vr(q(ttl,ctl)+4*i,4)} offset:{i*1024}" for i in range(4)]
    w = wr(0, 0) + wr(0, 1)
    seq = []
    for i, n in enumerate(range(28, 36)):
        seq.append(mm(n, 1, 0))
        if i >= 2: seq += w[:2]; w = w[2:]
    seq += w
    w = wr(1, 0)
    for i, n in enumerate(range(28, 36)):
        seq.append(mm(n, 1, 1))
        if i >= 3 and w: seq.append(w.pop(0))
    P.add(seq + w)
    P("s_waitcnt lgkmcnt(0)")
    P("s_barrier")
    stamp(P, o, 'last_o')
    R = 80
    for d in range(3):
        for i in range(4):
            P(f"ds_read_b128 {vr(R+16*d+4*i,4)}, v{L_RR} offset:{d*4096 + i*1024}")
    o_ = q(1, 1)
    for d in range(3):
        for i in range(8):
            P(f"v_pk_add_f32 {vr(o_+2*i,2)}, {vr(o_+2*i,2)}, {vr(R+16*d+2*i,2)}")
    p = R + 48
    for i in range(8): P(f"v_cvt_pk_bf16_f32 v{p+i}, v{o_+2*i}, v{o_+2*i+1}")
    for h in range(2):
        P(f"v_permlane32_swap_b32 v{p+4*h}, v{p+4*h+2}")
        P(f"v_permlane32_swap_b32 v{p+4*h+1}, v{p+4*h+3}")
    for h in range(2):
        P(f"buffer_store_dwordx4 {vr(p+4*h,4)}, v{L_OA}, {sr(SRD_OUT,4)}, 0 offen offset:{32*h}")
    stamp(P, o, 'end')

HEADER = open('cdna_kernels/' + NAME + '.s.ref').read().split('; Override launch')[0]

def finish(P, o, name):
    for sp in slow_paths:
        P.forget(); P(sp)
    L = finalize(P, True)
    out = HEADER + f"; @launch grid=(256,1,1) block=(256,1,1) lds={LDS_BYTES}\n"
    out += '.amdgcn_target "amdgcn-amd-amdhsa--gfx950"\n.text\n'
    out += f".globl {name}\n.p2align 8\n.type {name},@function\n{name}:\n" + text(L)
    out += "s_endpgm\n.fill 2048, 4, 0xbf800000\n"
    out += f""".section .rodata,"a"
.p2align 6
.amdhsa_kernel {name}
  .amdhsa_next_free_vgpr 512
  .amdhsa_next_free_sgpr 102
  .amdhsa_accum_offset 256
  .amdhsa_group_segment_fixed_size 0
  .amdhsa_kernarg_size 96
  .amdhsa_user_sgpr_count 2
  .amdhsa_user_sgpr_kernarg_segment_ptr 1
  .amdhsa_system_sgpr_workgroup_id_x 1
.end_amdhsa_kernel
"""
    if o.diag is not None:
        out = out.replace('DIAG_I', str(o.stamp_names.index(o.diag[0]))).replace('DIAG_J', str(o.stamp_names.index(o.diag[1])))
    return out

def build(o):
    name = NAME + "_kernel"
    P = Prog(); setup(P, o, "L_end")
    P(f"s_cmp_eq_u32 s{S_C}, 7")
    P("s_cbranch_scc1 L_prep")
    bl = b_loads()
    hooks = {}
    g0 = o.pcheck
    if o.noprep: g0 = 99
    else: hooks[o.ppoll] = [poll_issue(V_PP, V_PD)]
    if g0 < 28:
        hooks[g0] = [poll_check(V_PP, V_PD)]
        n = o.nb_loop; steps = list(range(g0 + 1, 28))
        for i, g in enumerate(steps):
            k = ((i + 1) * n) // len(steps) - (i * n) // len(steps)
            hooks[g] = hooks.get(g, []) + bl[:k]; bl = bl[k:]
    stage1(P, o, hooks)
    if o.trunc == 's1':
        stamp_flush(P, o); P("s_endpgm"); P.forget(); P("L_prep:")
        if not o.noprep: prep(P, o); stamp_flush(P, o)
        P("L_end:"); P("s_endpgm")
        return finish(P, o, name)
    P("s_barrier")
    qkv_epilogue(P, o)
    P(f"s_lshl_b32 s{S_T0}, s{S_TB}, 4")
    P(f"s_add_u32 s{S_T0}, s{S_T0}, s{S_B}")
    P(f"s_lshl_b32 s{S_T0}, s{S_T0}, 7")
    P(f"s_add_u32 s{S_QST}, s{S_T0}, {FL_QKV}")
    P(f"s_add_u32 s{S_B}, s{S_T0}, {FL_H}")
    if g0 >= 28: P.add(poll_check(V_PP, V_PD))
    stamp(P, o, 'qkv_epi')
    for F in range(4):
        g = gelu_tile(F)
        take = bl[:o.nb_gelu[F]]; bl = bl[o.nb_gelu[F]:]
        P.add(interleave([[x] for x in g[:-2]], take))
        if F == o.qflag_after: P.wait_vm('qst'); P.add(flag_store(S_QST))
        P.add(g[-2:])
    stamp(P, o, 'gelu')
    if o.qflag_after >= 4: P.wait_vm('qst'); P.add(flag_store(S_QST))
    last_setup(P, o)
    att_scalars(P, o); att_poll_addr(P, o); att_addr(P, o)
    nb_att = o.nb_att
    for it in bl[:len(bl) - nb_att]: P.add(it)
    bl = bl[len(bl) - nb_att:]
    last_setup_b(P, o)
    P.wait_vm('hst'); P.add(flag_store(S_B))
    stamp(P, o, 'hflag')
    P("L_att:")
    poll(P, o, V_PA)
    stamp(P, o, 'qkv_seen')
    att_loads(P, o)
    ah = {}
    for i, it in enumerate(bl): ah.setdefault(2 + (i * 3) // max(len(bl), 1), []).append(it)
    if o.nearly > 0:
        ah.setdefault(o.hpoll, []).append(poll_issue(V_PH, V_PD))
        ah.setdefault(o.hcheck, []).insert(0, poll_check(V_PH, V_PD))
        al = [[x] for n in range(o.nearly) for x in a_load(o, n)]
        ns = list(range(o.hcheck, 10))
        for i, it in enumerate(al): ah.setdefault(ns[(i * len(ns)) // len(al)], []).append(it)
    attention(P, o, ah)
    stamp(P, o, 'att_end')
    P(f"s_cmp_eq_u32 s{S_C}, 7")
    P("s_cbranch_scc1 L_spare_end")
    last(P, o)
    stamp_flush(P, o)
    P("s_endpgm")
    P.forget()
    P("L_prep:")
    prep(P, o)
    P(f"s_mov_b32 s{S_C}, 6")
    last_baddr(P, o); last_setup(P, o)
    P(f"s_mov_b32 s{S_C}, 7")
    att_scalars(P, o); att_poll_addr(P, o); att_addr(P, o)
    P("s_branch L_att")
    P.forget()
    P("L_spare_end:")
    P("s_waitcnt vmcnt(0)")
    P.add(flag_store(S_OFL))
    stamp_flush(P, o)
    P(f"s_cmp_eq_u32 s2, 56")
    P("s_cbranch_scc0 L_end")
    P(f"s_cmp_eq_u32 s{S_WAVE}, 0")
    P("s_cbranch_scc0 L_end")
    P(f"v_lshlrev_b32 v{V_PA}, 7, v{V_LANE}")
    P(f"s_mov_b32 s{S_CNT}, 4000")
    P("L_ep:")
    for i in range(16):
        P(f"s_mov_b32 s{S_T0}, {FL_O + i*8192}")
        P(f"buffer_load_dwordx2 {vr(16+2*i,2)}, v{V_PA}, {sr(SRD_WS,4)}, s{S_T0} offen sc1")
    P("s_waitcnt vmcnt(0)")
    P(f"s_mov_b64 {sr(S_T0)}, 0")
    for i in range(16):
        P(f"v_cmp_ne_u64 vcc, {sr(S_TAG)}, {vr(16+2*i,2)}")
        P(f"s_or_b64 {sr(S_T0)}, {sr(S_T0)}, vcc")
    P(f"s_sub_u32 s{S_CNT}, s{S_CNT}, 1")
    P("s_cbranch_scc1 L_end")
    P(f"s_cmp_eq_u64 {sr(S_T0)}, 0")
    P("s_cbranch_scc0 L_ep")
    P(f"buffer_store_dword v{V_TAG}, v{V_FLAGOFF}, {sr(SRD_WS,4)}, 0 offen sc1")
    P("L_end:")
    P("s_endpgm")
    return finish(P, o, name)

DEFAULTS = dict(ncls=1, cstep=3, item_ld=-1, touch=1, tag_at=8, item_at=4, itflag_at=11, asc='sc1', hst=0, cpf=1, noprep=0, rot=(0, 0, 0), rot2=(1, 2, 1), trunc=None, pre=16, pf=1, ppoll=16, pcheck=19, nb_loop=20, nb_gelu=(4, 4, 4, 4), nb_att=0,
                qflag_after=2, nearly=6, hpoll=4, hcheck=6, burst=11, oflag_at=3, opoll_at=16, ocheck_at=20, code_bytes=28672)

if __name__ == '__main__':
    o = Opt()
    for k, v in DEFAULTS.items(): setattr(o, k, v)
    o.stamps = 'stamps' in sys.argv; o.diag = None; o.fix = []; o.stamp_names = []
    o.clk = 's_memtime' if 'cyc' in sys.argv else 's_memrealtime'
    for a in sys.argv[2:]:
        if '=' not in a: continue
        k, v = a.split('=')
        if k == 'diag':
            i, j, K = v.split(','); o.diag = (i, j, int(K)); o.stamps = True
        elif k == 'trunc': o.trunc = v
        elif k == 'asc': o.asc = v.replace('+', ' ').replace('none', '')
        elif ',' in v: setattr(o, k, tuple(int(x) for x in v.split(',')))
        else: setattr(o, k, int(v))
    s = build(o)
    open(sys.argv[1], 'w').write(s)
    if o.stamps: open(sys.argv[1] + '.names', 'w').write('\n'.join(o.stamp_names))
```

```python
import re

REG_RE = re.compile(r'^(-|\|)?(abs\()?([vas])(\d+|\[(\d+):(\d+)\])\)?\|?$')

def parse_reg(tok):
    tok = tok.strip()
    if tok in ('vcc',): return [('s', 'vcc_lo'), ('s', 'vcc_hi')]
    if tok in ('vcc_lo', 'vcc_hi', 'exec_lo', 'exec_hi', 'm0'): return [('s', tok)]
    if tok == 'exec': return [('s', 'exec_lo'), ('s', 'exec_hi')]
    m = REG_RE.match(tok)
    if not m: return []
    k = m.group(3)
    if m.group(5) is not None:
        return [(k, i) for i in range(int(m.group(5)), int(m.group(6)) + 1)]
    return [(k, int(m.group(4)))]

TRANS = ('v_exp_f32', 'v_log_f32', 'v_rcp_f32', 'v_rsq_f32', 'v_sqrt_f32', 'v_sin_f32', 'v_cos_f32', 'v_rcp_iflag_f32')

class I:
    def __init__(self, text, tag=None):
        self.text = text
        self.tag = tag
        self.kind = 'other'
        self.dst = []; self.src = []
        self.srcC = []; self.srcAB = []
        self.stdata = []
        self.op = ''
        self.parse()

    def parse(self):
        t = self.text.split(';')[0].strip()
        if not t: self.kind = 'comment'; return
        if t.endswith(':'): self.kind = 'label'; return
        if t.startswith('.'): self.kind = 'directive'; return
        parts = t.split(None, 1)
        op = parts[0]; self.op = op
        base = re.sub(r'_(e32|e64|sdwa|dpp)$', '', op)
        self.base = base
        rest = parts[1] if len(parts) > 1 else ''
        ops = [o.strip() for o in re.split(r',(?![^\[]*\])', rest)] if rest else []
        mods = ''
        if ops:
            last = ops[-1].split(None, 1)
            ops[-1] = last[0]
            if len(last) > 1: mods = last[1]
        self.mods = mods
        R = [parse_reg(o) for o in ops]
        flat = lambda L: [x for l in L for x in l]
        if op.startswith('v_mfma'):
            self.kind = 'mfma'; self.dst = R[0]; self.srcAB = R[1] + R[2]; self.srcC = R[3]; self.src = flat(R[1:])
            self.passes = 8 if '32x32' in op else 4
        elif op.startswith('v_'):
            self.kind = 'valu'
            self.trans = base in TRANS
            if base.startswith('v_cmp'):
                self.dst = R[0]; self.src = flat(R[1:])
                if base.startswith('v_cmpx'): self.dst = self.dst + parse_reg('exec')
            elif base.startswith('v_permlane') and 'swap' in base:
                self.dst = R[0] + R[1]; self.src = R[0] + R[1]
            elif base in ('v_add_co_u32', 'v_sub_co_u32', 'v_subrev_co_u32'):
                self.dst = R[0] + R[1]; self.src = flat(R[2:])
            elif base in ('v_addc_co_u32', 'v_subb_co_u32'):
                self.dst = R[0] + R[1]; self.src = flat(R[2:])
            elif base == 'v_nop':
                pass
            else:
                self.dst = R[0]; self.src = flat(R[1:])
                if base in ('v_fmac_f32', 'v_dot2c_f32_bf16', 'v_pk_fmac_f16', 'v_writelane_b32') or 'dpp' in op or 'row_' in mods or 'quad_perm' in mods:
                    self.src = self.src + R[0]
                if base == 'v_cndmask_b32' and len(ops) == 3: self.src = self.src + parse_reg('vcc')
            self.dpp = ('dpp' in op) or ('quad_perm' in mods) or ('row_' in mods)
        elif op.startswith('buffer_load') or op.startswith('global_load'):
            self.kind = 'vmem'
            if ' lds' in (' ' + mods) or 'load_lds' in op:
                self.lds_dma = True; self.src = flat(R) + [('s', 'm0')]
            else:
                self.lds_dma = False; self.dst = R[0]; self.src = flat(R[1:])
        elif op.startswith('buffer_store'):
            self.kind = 'vmem'; self.lds_dma = False; self.src = flat(R); self.stdata = R[0]
        elif op.startswith('global_store'):
            self.kind = 'vmem'; self.lds_dma = False; self.src = flat(R); self.stdata = R[1]
        elif op.startswith('ds_read'):
            self.kind = 'ds'; self.dst = R[0]; self.src = flat(R[1:])
        elif op.startswith('ds_write'):
            self.kind = 'ds'; self.src = flat(R)
        elif op.startswith('ds_bpermute') or op.startswith('ds_swizzle'):
            self.kind = 'ds'; self.dst = R[0]; self.src = flat(R[1:])
        elif op.startswith('s_load') or op in ('s_memtime', 's_memrealtime'):
            self.kind = 'smem'; self.dst = R[0]; self.src = flat(R[1:])
        elif op == 's_waitcnt':
            self.kind = 'wait'
            m = re.search(r'vmcnt\((\d+)\)', rest); self.vm = int(m.group(1)) if m else None
            m = re.search(r'lgkmcnt\((\d+)\)', rest); self.lg = int(m.group(1)) if m else None
        elif op == 's_nop':
            self.kind = 'nop'; self.n = int(rest, 0) + 1
        elif op in ('s_branch',) or op.startswith('s_cbranch'):
            self.kind = 'branch'
        elif op in ('s_barrier', 's_endpgm', 's_setprio', 's_sleep'):
            self.kind = 'salu'
        elif op.startswith('s_cmp') or op.startswith('s_bitcmp'):
            self.kind = 'salu'; self.src = flat(R)
        elif op.startswith('s_'):
            self.kind = 'salu'; self.dst = R[0]; self.src = flat(R[1:])
            if 'saveexec' in op: self.dst = self.dst + parse_reg('exec'); self.src = self.src + parse_reg('exec')
        else:
            raise ValueError('unknown instr: ' + t)

class Pseudo:
    def __init__(self, kind, tag=None, extra=0):
        self.kind = kind; self.tag = tag; self.extra = extra; self.text = ''
        self.dst = []; self.src = []

class Prog:
    def __init__(self):
        self.L = []
    def __call__(self, text, tag=None):
        for line in text.split('\n'):
            if line.strip() == '': continue
            self.L.append(I(line.strip(), tag))
    def add(self, items):
        for x in items:
            if isinstance(x, str): self(x)
            elif isinstance(x, tuple): self(x[0], x[1])
            else: self.L.append(x)
    def wait_vm(self, tag):
        self.L.append(Pseudo('wait_vm', tag))
    def wait_lg(self, tag):
        self.L.append(Pseudo('wait_lg', tag))
    def forget(self):
        self.L.append(Pseudo('forget'))

def WVM(tag): return Pseudo('wait_vm', tag)
def WLG(tag): return Pseudo('wait_lg', tag)

def insert_waits(L):
    out = []
    vm = []
    lg = []
    smem = []
    def emit_wait(vmn=None, lgn=None):
        nonlocal vm, lg, smem
        s = []
        if vmn is not None:
            vmn = min(vmn, 63); s.append(f'vmcnt({vmn})'); vm = vm[len(vm) - vmn:] if vmn < len(vm) else vm
            if vmn == 0: vm = []
        if lgn is not None:
            lgn = min(lgn, 15); s.append(f'lgkmcnt({lgn})')
            if lgn == 0: lg = []; smem = []
            elif lgn < len(lg): lg = lg[len(lg) - lgn:]
        if out and isinstance(out[-1], I) and out[-1].kind == 'wait' and getattr(out[-1], 'auto', False):
            p = out.pop()
            v = p.vm if vmn is None else (vmn if p.vm is None else min(p.vm, vmn))
            g = p.lg if lgn is None else (lgn if p.lg is None else min(p.lg, lgn))
            s = ([f'vmcnt({v})'] if v is not None else []) + ([f'lgkmcnt({g})'] if g is not None else [])
        w = I('s_waitcnt ' + ' '.join(s)); w.auto = True
        out.append(w)
    for x in L:
        if isinstance(x, Pseudo):
            if x.kind == 'wait_vm':
                idx = [i for i, y in enumerate(vm) if y.tag == x.tag]
                if idx: emit_wait(vmn=len(vm) - 1 - max(idx))
            elif x.kind == 'wait_lg':
                idx = [i for i, y in enumerate(lg) if y.tag == x.tag]
                if idx: emit_wait(lgn=0 if smem else len(lg) - 1 - max(idx))
            elif x.kind == 'unknown_vm':
                k = 0
                while k < len(vm) and not getattr(vm[len(vm)-1-k], 'tag', None): k += 1
                vm = vm[:len(vm)-k] + vm[len(vm)-k:][:x.extra]
            elif x.kind == 'drop_vm':
                vm = vm[:-1]
            elif x.kind == 'forget':
                vm = []; lg = []; smem = []
            continue
        if x.kind in ('label', 'comment', 'directive'):
            out.append(x); continue
        if x.kind == 'wait':
            if x.vm is not None:
                vm = vm[len(vm) - x.vm:] if 0 < x.vm < len(vm) else ([] if x.vm == 0 else vm)
            if x.lg is not None:
                if x.lg == 0: lg = []; smem = []
                elif x.lg < len(lg): lg = lg[len(lg) - x.lg:]
            out.append(x); continue
        touched = set(x.src) | set(x.dst)
        need_vm = None; need_lg = None
        for i, y in enumerate(vm):
            if touched & set(y.dst):
                n = len(vm) - 1 - i
                need_vm = n if need_vm is None else min(need_vm, n)
        for i, y in enumerate(lg):
            if touched & set(y.dst):
                n = len(lg) - 1 - i
                need_lg = n if need_lg is None else min(need_lg, n)
        for y in smem:
            if touched & set(y.dst): need_lg = 0
        if need_lg is not None and smem: need_lg = 0
        if need_vm is not None or need_lg is not None:
            emit_wait(need_vm, need_lg)
        out.append(x)
        if x.kind == 'vmem':
            vm.append(x)
            if len(vm) > 63: vm = vm[-63:] if False else vm
        elif x.kind == 'ds': lg.append(x)
        elif x.kind == 'smem': smem.append(x)
    return out

def slots(x):
    if x.kind == 'nop': return x.n
    if x.kind in ('label', 'comment', 'directive'): return 0
    return 1

def need_distance(p, c):
    n = 0
    pd = set(p.dst); cs = set(c.src); cd = set(c.dst)
    isv = lambda S: {r for r in S if r[0] in 'va'}
    iss = lambda S: {r for r in S if r[0] == 's'}
    if p.kind == 'valu':
        pv = isv(pd); ps = iss(pd)
        if c.kind == 'mfma' and pv & cs: n = max(n, 2)
        if c.kind == 'mfma' and (('s', 'exec_lo') in ps): n = max(n, 4)
        if c.kind == 'valu':
            if p.trans and not c.trans and pv & cs: n = max(n, 1)
            if c.base.startswith('v_permlane') and pv & cs: n = max(n, 2)
            if c.base in ('v_readfirstlane_b32', 'v_readlane_b32') and pv & cs: n = max(n, 1)
            if c.dpp and pv & cs: n = max(n, 2)
            if ps & cs: n = max(n, 4 if c.base in ('v_readlane_b32', 'v_writelane_b32') else 2)
            if ('s', 'exec_lo') in ps and (c.dpp): n = max(n, 5)
            if ('s', 'exec_lo') in ps and (c.base.startswith('v_permlane') or c.base.startswith('v_read')): n = max(n, 4)
        if c.kind == 'vmem' and ps & cs: n = max(n, 5)
        if c.kind in ('salu',) and ps & cs: n = max(n, 1)
    if p.kind == 'mfma':
        P = p.passes
        t = {4: (6, 8, 3), 8: (10, 12, 7)}[P]
        if c.kind == 'mfma':
            if pd & set(c.srcAB): n = max(n, t[1])
            if pd & set(c.srcC):
                if not (p.dst == c.srcC and p.passes == c.passes): n = max(n, t[0])
            if pd & cd and not (p.dst == c.dst): n = max(n, t[1])
        elif c.kind in ('valu', 'vmem', 'ds'):
            if pd & (cs | cd): n = max(n, t[1])
            if c.kind == 'valu' and set(p.srcC) & cd: n = max(n, t[2])
            if c.kind in ('vmem', 'ds') and set(p.srcC) & cd: n = max(n, t[2])
    if p.kind == 'vmem' and p.stdata and len(p.stdata) >= 3:
        if set(p.stdata) & cd: n = max(n, 2 if c.kind in ('valu', 'mfma') else 1)
    if p.kind == 'salu' and ('s', 'm0') in pd and c.kind == 'vmem' and getattr(c, 'lds_dma', False): n = max(n, 1)
    return n

def insert_nops(L, window=24):
    out = []
    added = 0
    for x in L:
        if x.kind in ('label', 'comment', 'directive'):
            out.append(x); continue
        need = 0
        d = 0
        for p in reversed(out):
            if d >= 20: break
            if p.kind not in ('label', 'comment', 'directive', 'nop', 'wait', 'branch'):
                r = need_distance(p, x)
                if r > d: need = max(need, r - d)
            d += slots(p)
        if need:
            out.append(I(f's_nop {need - 1}')); added += need
        out.append(x)
    return out, added

def finalize(prog, verbose=False):
    L = insert_waits(prog.L)
    L, added = insert_nops(L)
    if verbose: print('nop states added:', added)
    return L

def text(L):
    return '\n'.join(('' if x.kind == 'label' else '    ') + x.text for x in L) + '\n'

def interleave(main, fill, start=0, every=None, per=None):
    out = []
    n = len(main); fi = 0
    for i, m in enumerate(main):
        out += m if isinstance(m, list) else [m]
        if per is not None:
            k = per(i) if callable(per) else per[i]
        else:
            k = ((i + 1) * len(fill)) // n - (i * len(fill)) // n
        for _ in range(k):
            if fi < len(fill):
                f = fill[fi]; fi += 1
                out += f if isinstance(f, list) else [f]
    while fi < len(fill):
        f = fill[fi]; fi += 1
        out += f if isinstance(f, list) else [f]
    return out

SCC_W = ('s_add_u32', 's_sub_u32', 's_add_i32', 's_sub_i32', 's_addc_u32', 's_lshl_b32', 's_lshr_b32', 's_and_b32', 's_or_b32', 's_xor_b32',
         's_min_u32', 's_max_i32', 's_min_i32', 's_max_u32', 's_lshl2_add_u32', 's_lshl3_add_u32', 's_lshl1_add_u32', 's_lshl4_add_u32', 's_ashr_i32', 's_or_b64', 's_and_b64')
def atomic_groups(L):
    n = len(L); live = [False] * (n + 1)
    scc = vcc = False
    for i in range(n - 1, -1, -1):
        x = L[i]
        op = getattr(x, 'op', '')
        if op.startswith('s_cmp') or op in SCC_W: scc = False
        if op.startswith('s_cselect') or op.startswith('s_cbranch_scc') or op == 's_addc_u32': scc = True
        if ('s', 'vcc_lo') in x.dst: vcc = False
        if ('s', 'vcc_lo') in x.src: vcc = True
        live[i] = scc or vcc
    G = []
    for i, x in enumerate(L):
        if i == 0 or not live[i]: G.append([])
        G[-1].append(x)
    return G
```

```python
import sys, math, struct
from asmlib import *

NAME = "gated_mix__sliding_block__dense_activation_gelu__prompt"
def f2u(x): return struct.unpack('<I', struct.pack('<f', x))[0]

WS_E      = 0
FL_G      = 0x1000
FL_PREP   = 0x80000
G_OFF     = 0x4000
FL_QKV    = 0x20000
FL_H      = 0x40000
FL_O      = 0x60000
QKV_OFF   = 0x100000
A_OFF     = 0x700000
BP_OFF    = 0x1000000
WS_SIZE   = 0x1200000
STAMP_OFF = 0x1400000
QKV_TB = 168 * 512
A_TB = 144 * 1024
BP_C = 144 * 2048

LX = 0; LF = 16384; LQ = 32768
LX_SLOT = LF_SLOT = LQ_SLOT = 45056
LBIAS = 151552
LITEM = 137216
LKV = 0
LRED = 0
LPIECE = [49152, 65536, 135168, 81920, 98304, 114688]
LDS_BYTES = 160 * 1024

S_B1, S_W2, S_B2, S_GW = 12, 14, 16, 18
SRD_X, SRD_WQ, SRD_W1, SRD_WS, SRD_OUT, SRD_P = 28, 32, 36, 40, 44, 48
S_WAVE, S_XCD, S_SLOT = 3, 10, 11
S_TAG = 26
S_RB, S_B, S_TB = 52, 53, 54
S_ROT2 = 15
S_KV = [28, 29, 30, 31]
S_T0, S_T1, S_T2, S_T3 = 56, 57, 58, 59
S_CNT = 60
S_QST, S_HST = 61, 62
S_T4 = 63
S_TAB = 64
S_WO = 20
S_BT = [4, 5, 6, 7, 22, 23, 24]
S_BO = [12, 13, 55, 63]
SRD_W2, SRD_WO = 48, 36
S_OFL = 25
S_AT = [28, 29, 30, 31, 32, 33, 34, 35, 53]
S_RBL = 8
S_SPARE = 9
S_BM = 14
S_PFS, S_PFB = 9, 94
S_QFL, S_HFL, S_OST, S_B3 = 61, 62, 18, 19
S_PST, S_PFL = 12, 13
S_R, S_C = 98, 99
S_J, S_PAR = 100, 101

def sr(b, n=2): return f"s[{b}:{b+n-1}]"
def vr(b, n): return f"v[{b}:{b+n-1}]" if n > 1 else f"v{b}"
def ar(b, n): return f"a[{b}:{b+n-1}]"

V_LANE = 1
V_L16, V_L16H = 2, 3
V_FLAGOFF = 4
V_TAG = 6
V_POLL = 8
V_PA = 10
V_T = 11
V_BA = 216
V_AA = 220
L_G = 222
L_RW = 224
L_RR = 227
L_OA = 228
V_PO, V_PH = 229, 231
V_BR = [[232, 233], [0, 230]]
V_PD = 8
L_BA = 234
V_DUM = 235
V_L128 = 230
V_PFO = 243
V_IT = 236
V_ST = 255
SC = 'sc1'

class Opt: pass

def mfma(d, a, b, c, areg='v'):
    A = ar(a, 4) if areg == 'a' else vr(a, 4)
    C = '0' if c is None else vr(c, 16)
    B = ar(b[1], 4) if isinstance(b, tuple) else vr(b, 4)
    return f"v_mfma_f32_32x32x16_bf16 {vr(d,16)}, {A}, {B}, {C}"

lab = [0]
def stamp(P, o, name):
    if not o.stamps: return
    if name not in o.stamp_names: o.stamp_names.append(name)
    i = o.stamp_names.index(name)
    P(f"{o.clk} s[96:97]")
    P("s_waitcnt lgkmcnt(0)")
    P(f"v_writelane_b32 v{V_ST}, s96, {i}")

def stamp_flush(P, o):
    if not o.stamps: return
    if o.diag is not None:
        i, j, K = o.diag
        lab[0] += 1
        o.fix.append((lab[0], i, j))
        P(f"v_readlane_b32 s{S_T0}, v{V_ST}, DIAG_I")
        P(f"v_readlane_b32 s{S_T1}, v{V_ST}, DIAG_J")
        P("s_nop 4")
        P(f"s_sub_u32 s{S_T0}, s{S_T1}, s{S_T0}")
        P(f"s_mul_i32 s{S_T0}, s{S_T0}, {K}")
        P(f"s_min_u32 s{S_T0}, s{S_T0}, 20000")
        P(f"s_cmp_eq_u32 s{S_SPARE}, 1")
        P(f"s_cselect_b32 s{S_T0}, 0, s{S_T0}")
        P("s_memrealtime s[96:97]")
        P("s_waitcnt lgkmcnt(0)")
        P(f"s_mov_b32 s{S_T1}, s96")
        P(f"L_dg{lab[0]}:")
        P("s_memrealtime s[96:97]")
        P("s_waitcnt lgkmcnt(0)")
        P(f"s_sub_u32 s{S_T2}, s96, s{S_T1}")
        P(f"s_cmp_lt_u32 s{S_T2}, s{S_T0}")
        P(f"s_cbranch_scc1 L_dg{lab[0]}")
        return
    P("s_waitcnt vmcnt(0)")
    P(f"s_lshl_b32 s{S_T0}, s2, 2")
    P(f"s_add_u32 s{S_T0}, s{S_T0}, s{S_WAVE}")
    P(f"s_lshl_b32 s{S_T0}, s{S_T0}, 8")
    P(f"s_add_u32 s{S_T0}, s{S_T0}, {STAMP_OFF}")
    P(f"s_mov_b32 s{SRD_WS+2}, {STAMP_OFF + 0x100000}")
    P(f"v_lshlrev_b32 v{V_T}, 2, v{V_LANE}")
    P(f"buffer_store_dword v{V_ST}, v{V_T}, {sr(SRD_WS,4)}, s{S_T0} offen")

def setup(P, o, end_label):
    if o.stamps: P(f"{o.clk} s[92:93]")
    P(f"s_load_dwordx2 {sr(SRD_X)}, s[0:1], 0")
    P(f"s_load_dwordx2 {sr(SRD_WQ)}, s[0:1], 8")
    P(f"s_load_dwordx2 {sr(SRD_W1)}, s[0:1], 32")
    P(f"s_load_dwordx8 s[12:19], s[0:1], 40")
    P(f"s_load_dwordx2 {sr(SRD_WS)}, s[0:1], 88")
    P(f"s_load_dwordx2 {sr(SRD_OUT)}, s[0:1], 72")
    P(f"s_load_dwordx2 {sr(S_WO)}, s[0:1], 16")
    P("s_cmpk_ge_u32 s2, 256")
    P(f"s_cbranch_scc1 {end_label}")
    if o.cpf == 1: code_prefetch(P, o)
    P(f"v_lshrrev_b32 v5, 6, v0")
    P(f"v_and_b32 v{V_LANE}, 63, v0")
    P(f"v_readfirstlane_b32 s{S_WAVE}, v5")
    P(f"s_and_b32 s{S_XCD}, s2, 7")
    P(f"s_lshr_b32 s{S_SLOT}, s2, 3")
    P(f"s_lshr_b32 s{S_RBL}, s2, 6")
    P(f"s_and_b32 s{S_C}, s{S_SLOT}, 7")
    P(f"s_mov_b32 s{SRD_X+3}, 0x20000")
    P(f"s_mov_b32 s{SRD_X+2}, {2048*896}")

def stream_pf(P, o, which):
    P(f"s_lshl2_add_u32 s{S_T0}, s2, s{S_WAVE}")
    P(f"s_lshl_b32 s{S_T0}, s{S_T0}, 10")
    P(f"s_add_u32 s{S_T1}, s{S_T0}, 0x100000")
    P(f"v_lshlrev_b32 v{V_L16}, 4, v{V_LANE}")
    for i, d in enumerate(which):
        P(f"buffer_load_dwordx4 {ar(8*i,4)}, v{V_L16}, {sr(d,4)}, s{S_T0} offen", tag='spf')
        P(f"buffer_load_dwordx4 {ar(8*i+4,4)}, v{V_L16}, {sr(d,4)}, s{S_T1} offen", tag='spf')

def warm_touch(P, blk, dst, tb):
    P(f"s_mul_i32 s{tb}, s{S_XCD}, 31")
    P(f"s_min_u32 s{blk}, s{blk}, 244")
    P(f"s_add_u32 s{blk}, s{blk}, s{tb}")
    P(f"s_sub_u32 s{tb}, s{blk}, 245")
    P(f"s_cselect_b32 s{blk}, s{blk}, s{tb}")
    P(f"s_sub_u32 s{tb}, s{blk}, 196")
    P(f"s_cselect_b32 s{blk}, s{blk}, s{tb}")
    P(f"s_cselect_b64 {sr(tb)}, {sr(S_W2)}, {sr(S_WO)}")
    P(f"s_lshl_b32 s{blk}, s{blk}, 13")
    P(f"s_add_u32 s{tb}, s{tb}, s{blk}")
    P(f"s_addc_u32 s{tb+1}, s{tb+1}, 0")
    P(f"global_load_dword v{dst}, v{V_L128}, {sr(tb)}", tag='warm')

def code_prefetch(P, o):
    P(f"s_getpc_b64 s[{S_T0}:{S_T1}]")
    P(f"v_lshlrev_b32 v{V_T}, 7, v0")
    P(f"v_min_u32 v{V_T}, {o.code_bytes - 128}, v{V_T}")
    P(f"global_load_dword v{V_DUM}, v{V_T}, s[{S_T0}:{S_T1}]", tag='pf')

def srd_rest(P, regs):
    for d, size in regs:
        P(f"s_mov_b32 s{d+2}, {size}")
        P(f"s_mov_b32 s{d+3}, s{SRD_X+3}")

def tlb_touch(P, o, late):
    if not o.touch: return
    if not late:
        for p, d in ((SRD_W1, 100), (SRD_WQ, 101), (S_B1, 26), (SRD_WS, 27)): P(f"s_load_dword s{d}, {sr(p)}, 0")
        return
    for p, d in ((S_W2, 6), (S_BT[0], 7), (SRD_OUT, 20), (S_B2, 21)): P(f"s_load_dword s{d}, {sr(p)}, 0")
    P(f"s_and_b32 s{S_T2}, s{S_SLOT}, 7")
    P(f"s_add_u32 s{S_T2}, s{S_T2}, 1")
    P(f"s_lshl_b32 s{S_T2}, s{S_T2}, 21")
    P(f"s_load_dword s{S_CNT}, {sr(SRD_WS)}, s{S_T2}")

def common2(P, o):
    P(f"v_lshlrev_b32 v{V_L16}, 4, v{V_LANE}")
    P(f"v_cmp_eq_u32 vcc, 0, v{V_LANE}")
    P(f"v_mov_b32 v5, 0x7fff0000")
    P(f"v_add_u32 v{V_L16H}, 0x1000, v{V_L16}")
    P(f"v_lshlrev_b32 v{V_L128}, 7, v{V_LANE}")
    P(f"v_cndmask_b32_e64 v{V_FLAGOFF}, v5, 0, vcc")
    P(f"s_lshl_b32 s{S_R}, s{S_XCD}, 2")
    P(f"s_add_u32 s{S_R}, s{S_R}, s{S_RBL}")

def rot_calc(P, dst, ka, kb, kc):
    P(f"s_mul_i32 s{S_T2}, s{S_RBL}, {kb}")
    P(f"s_mul_i32 s{dst}, s{S_C}, {ka}")
    P(f"s_add_u32 s{dst}, s{dst}, s{S_T2}")
    P(f"s_mul_i32 s{S_T2}, s{S_XCD}, {kc}")
    P(f"s_add_u32 s{dst}, s{dst}, s{S_T2}")
    P(f"s_mul_i32 s{S_T2}, s{dst}, 37")
    P(f"s_lshr_b32 s{S_T2}, s{S_T2}, 8")
    P(f"s_mul_i32 s{S_T2}, s{S_T2}, 7")
    P(f"s_sub_u32 s{dst}, s{dst}, s{S_T2}")

def make_tag(P, o):
    P("s_waitcnt lgkmcnt(0)")
    P(f"s_mul_i32 s{S_TAG}, s{S_TAG}, 0x9e3779b1")
    P(f"s_add_u32 s{S_TAG}, s{S_TAG}, 0x7f4a7c15")
    P(f"s_xor_b32 s{S_TAG+1}, s{S_TAG}, 0x5bd1e995")
    P(f"v_mov_b32 v{V_TAG}, s{S_TAG}")
    P(f"v_mov_b32 v{V_TAG+1}, s{S_TAG+1}")

def make_tag_v():
    return [f"v_readfirstlane_b32 s{S_TAG}, v{V_TAG}",
            f"s_mul_i32 s{S_TAG}, s{S_TAG}, 0x9e3779b1",
            f"s_add_u32 s{S_TAG}, s{S_TAG}, 0x7f4a7c15",
            f"s_xor_b32 s{S_TAG+1}, s{S_TAG}, 0x5bd1e995",
            f"v_mov_b32 v{V_TAG}, s{S_TAG}",
            f"v_mov_b32 v{V_TAG+1}, s{S_TAG+1}"]

def poll(P, o, addr_v, limit=4000):
    lab[0] += 1
    L = f"L_poll{lab[0]}"
    P(f"s_mov_b32 s{S_CNT}, {limit}")
    P(f"{L}:")
    P(f"buffer_load_dwordx2 {vr(V_POLL,2)}, v{addr_v}, {sr(SRD_WS,4)}, 0 offen sc1")
    P(f"s_sub_u32 s{S_CNT}, s{S_CNT}, 1")
    P("s_waitcnt vmcnt(0)")
    P(f"v_cmp_ne_u64 vcc, {sr(S_TAG)}, {vr(V_POLL,2)}")
    P(f"s_cbranch_scc1 {L}_x")
    P(f"s_cbranch_vccnz {L}")
    P(f"{L}_x:")

slow_paths = []
def poll_issue(addr_v, dst):
    return [f"buffer_load_dwordx2 {vr(dst,2)}, v{addr_v}, {sr(SRD_WS,4)}, 0 offen sc1"]
def poll_check(addr_v, dst, limit=4000):
    lab[0] += 1
    L = f"L_pc{lab[0]}"
    slow_paths.append(f"""{L}_slow:
s_mov_b32 s{S_CNT}, {limit}
{L}_loop:
buffer_load_dwordx2 {vr(dst,2)}, v{addr_v}, {sr(SRD_WS,4)}, 0 offen sc1
s_sub_u32 s{S_CNT}, s{S_CNT}, 1
s_waitcnt vmcnt(0)
v_cmp_ne_u64 vcc, {sr(S_TAG)}, {vr(dst,2)}
s_cbranch_scc1 {L}_back
s_cbranch_vccnz {L}_loop
s_branch {L}_back""")
    return [f"v_cmp_ne_u64 vcc, {sr(S_TAG)}, {vr(dst,2)}\ns_cbranch_vccnz {L}_slow\n{L}_back:"]

def flag_store(soff):
    return [f"buffer_store_dwordx2 {vr(V_TAG,2)}, v{V_FLAGOFF}, {sr(SRD_WS,4)}, s{soff} offen sc1"]

ACC_Q, ACC_F = 16, 64
FR = 128
V_XD, V_QD, V_FD = 192, 196, 199
V_XR, V_QR, V_FRD = 203, 207, 208
V_CA, V_CB = 212, 214
GT = 128

def s1_dma(c_slot, ci):
    L = []
    tagn = f'dma{ci}'
    L.append([f"s_mov_b32 m0, s{S_TAB+21+c_slot}"])
    for i in range(4):
        L.append([(f"buffer_load_dwordx4 v{V_XD+i}, {sr(SRD_X,4)}, s{S_TAB+ci} offen offset:{i*1024} lds", tagn)])
    L.append([f"s_mov_b32 m0, s{S_TAB+24+c_slot}"])
    for i in range(3):
        L.append([(f"buffer_load_dwordx4 v{V_QD+i}, {sr(SRD_WQ,4)}, s{S_TAB+7+ci} offen offset:{i*1024} lds", tagn)])
    L.append([f"s_mov_b32 m0, s{S_TAB+27+c_slot}"])
    for i in range(4):
        L.append([(f"buffer_load_dwordx4 v{V_FD+i}, {sr(SRD_W1,4)}, s{S_TAB+14+ci} offen offset:{i*1024} lds", tagn)])
    return L

def s1_reads(slot, s, fset):
    base = FR + 32 * fset
    hi, so = (33, 0) if slot == 2 else (0, slot * LX_SLOT)
    L = [f"ds_read_b128 {vr(base,4)}, v{V_XR+s+hi} offset:{so}"]
    for t in range(7):
        for rho in range(2):
            d = base + 4 + 4 * t + 2 * rho
            if t < 3:
                L.append(f"ds_read_b64_tr_b16 {vr(d,2)}, v{V_QR+hi} offset:{so + (16*s+4*rho)*192 + t*64}")
            else:
                L.append(f"ds_read_b64_tr_b16 {vr(d,2)}, v{V_FRD+t-3+hi} offset:{so + (16*s+4*rho)*256}")
    return L

def s1_tab(P, o, i):
    if o.ncls == 1:
        P(f"s_mov_b32 s{S_TAB+i}, {i*128}")
        P(f"s_mov_b32 s{S_TAB+7+i}, {i*64*2688}")
        P(f"s_mov_b32 s{S_TAB+14+i}, {i*64*3584}")
        return
    if i > 0:
        P(f"s_add_u32 s{S_T4}, s{S_T4}, 1")
        P(f"s_cmp_eq_u32 s{S_T4}, 7")
        P(f"s_cselect_b32 s{S_T4}, 0, s{S_T4}")
    P(f"s_lshl_b32 s{S_TAB+i}, s{S_T4}, 7")
    P(f"s_mul_i32 s{S_TAB+7+i}, s{S_T4}, {64*2688}")
    P(f"s_mul_i32 s{S_TAB+14+i}, s{S_T4}, {64*3584}")

def s1_m0tab(P, k):
    P(f"s_add_u32 s{S_TAB+21+k}, s{S_T0}, {LX + k*LX_SLOT}")
    P(f"s_add_u32 s{S_TAB+24+k}, s{S_T1}, {LQ + k*LQ_SLOT}")
    P(f"s_add_u32 s{S_TAB+27+k}, s{S_T0}, {LF + k*LF_SLOT}")

def s1_x_addr(P, o):
    T = V_T
    P(f"s_and_b32 s{S_RB}, s{S_XCD}, 3")
    P(f"s_lshl2_add_u32 s{S_RB}, s{S_RB}, s{S_RBL}")
    P(f"s_lshl2_add_u32 s{S_TB}, s{S_RB}, s{S_WAVE}")
    P(f"v_lshrrev_b32 v{T}, 3, v{V_LANE}")
    P(f"v_and_b32 v{T+1}, 7, v{V_LANE}")
    P(f"v_lshrrev_b32 v{T+2}, 4, v{V_LANE}")
    P(f"s_lshl_b32 s{S_T2}, s{S_TB}, 5")
    P(f"v_add_u32 v{T}, s{S_T2}, v{T}")
    P(f"v_mul_u32_u24 v{T}, 896, v{T}")
    P(f"v_xor_b32 v{T+1}, v{T+2}, v{T+1}")
    P(f"v_lshl_add_u32 v{V_XD}, v{T+1}, 4, v{T}")
    P(f"v_xor_b32 v{V_XD+1}, 64, v{V_XD}")
    P(f"s_lshl_b32 s{S_TAB+21}, s{S_WAVE}, 12")
    P(f"v_add_u32 v{V_XD+2}, {2*(8*896-1024)}, v{V_XD}")
    P(f"v_add_u32 v{V_XD+3}, {3*(8*896-1024)}, v{V_XD+1}")
    P(f"v_add_u32 v{V_XD+1}, {1*(8*896-1024)}, v{V_XD+1}")

def s1_w1_addr(P, o):
    T = V_T
    P(f"s_lshr_b32 s{S_B}, s{S_XCD}, 2")
    P(f"s_mul_i32 s{S_B}, s{S_B}, 7")
    P(f"s_add_u32 s{S_B}, s{S_B}, s{S_C}")
    P(f"v_lshlrev_b32 v{T+1}, 2, v{T+2}")
    P(f"v_xor_b32 v{T+1}, v{T+1}, v{V_LANE}")
    P(f"v_and_b32 v{T+1}, 15, v{T+1}")
    P(f"s_lshl_b32 s{S_T2}, s{S_WAVE}, 4")
    P(f"v_add_u32 v{T}, s{S_T2}, v{T+2}")
    P(f"v_mul_u32_u24 v{T}, 3584, v{T}")
    P(f"s_lshl_b32 s{S_T3}, s{S_B}, 8")
    P(f"v_lshl_add_u32 v{T}, v{T+1}, 4, v{T}")
    P(f"v_add_u32 v{V_FD}, s{S_T3}, v{T}")
    for i in range(1, 4):
        P(f"v_add_u32 v{V_FD+i}, {i*(4*3584-1024)}, v{V_FD}")
    P(f"v_lshl_add_u32 v5, v{V_LANE}, 2, s{S_T3}")
    P(f"s_add_u32 s{S_TAB+27}, s{S_TAB+21}, {LF}")
    srd_rest(P, [(SRD_W1, 448*3584)])

def s1_wq_addr(P, o):
    T = V_T
    P(f"s_mul_i32 s{S_T2}, s{S_WAVE}, 192")
    P(f"s_mul_i32 s{S_T3}, s{S_B}, 192")
    P(f"v_add_u32 v{T}, s{S_T2}, v{V_LANE}")
    P(f"v_lshl_add_u32 v{T+2}, v{T}, 4, s{S_T3}")
    P(f"v_mul_u32_u24 v{T}, 0xaaab, v{T}")
    P(f"s_movk_i32 s{S_T3}, 2496")
    for i in range(3):
        if i: P(f"v_add_u32 v{T}, {64*0xaaab}, v{T}")
        P(f"v_lshrrev_b32 v{T+1}, 19, v{T}")
        P(f"v_mad_u32_u24 v{V_QD+i}, v{T+1}, s{S_T3}, v{T+2}")
    P(f"s_lshl_b32 s{S_T2}, s{S_T2}, 4")
    P(f"s_add_u32 s{S_TAB+24}, s{S_T2}, {LQ}")
    srd_rest(P, [(SRD_WQ, 448*2688)])

def l2pf_setup(P, o):
    T = V_T
    P(f"s_cmp_ge_u32 s{S_WAVE}, 2")
    P("s_cbranch_scc1 L_pf_x")
    P(f"s_cmp_eq_u32 s{S_WAVE}, 0")
    P(f"s_cselect_b64 {sr(S_PFB)}, {sr(SRD_WQ)}, {sr(SRD_W1)}")
    P(f"s_movk_i32 s{S_T2}, 3584")
    P(f"s_cselect_b32 s{S_T2}, 2688, s{S_T2}")
    P(f"s_cselect_b32 s{S_T3}, 3, 4")
    P(f"s_mul_i32 s{S_T3}, s{S_T3}, s{S_B}")
    P(f"s_lshl_b32 s{S_T3}, s{S_T3}, 6")
    P(f"s_and_b32 s{S_T3}, s{S_T3}, 0xffffff80")
    P(f"s_lshl_b32 s{S_PFS}, s{S_T2}, 6")
    P(f"v_bfe_u32 v{T}, v{V_LANE}, 1, 4")
    P(f"s_lshl_b32 s{S_T1}, s{S_RBL}, 4")
    P(f"v_add_u32 v{T}, s{S_T1}, v{T}")
    P(f"v_mul_u32_u24 v{T}, s{S_T2}, v{T}")
    P(f"v_and_b32 v{T+1}, 1, v{V_LANE}")
    P(f"v_lshl_add_u32 v{T}, v{T+1}, 7, v{T}")
    P(f"v_add_u32 v{V_PFO}, s{S_T3}, v{T}")
    P("s_branch L_pf_j")
    P("L_pf_x:")
    P(f"s_mov_b64 {sr(S_PFB)}, {sr(SRD_X)}")
    P(f"s_movk_i32 s{S_PFS}, 128")
    P(f"v_min_u32 v{T}, 18, v{V_LANE}")
    P(f"s_mul_i32 s{S_T2}, s{S_C}, 19")
    P(f"v_add_u32 v{T}, s{S_T2}, v{T}")
    P(f"v_min_u32 v{T}, 127, v{T}")
    P(f"s_lshl_b32 s{S_T2}, s{S_RB}, 7")
    P(f"v_add_u32 v{T}, s{S_T2}, v{T}")
    P(f"v_mul_u32_u24 v{V_PFO}, 896, v{T}")
    P("L_pf_j:")

def l2pf(k):
    return [[f"s_add_u32 s{S_PFB}, s{S_PFB}, s{S_PFS}", f"s_addc_u32 s{S_PFB+1}, s{S_PFB+1}, 0"],
            [f"global_load_dword v{243+k}, v{V_PFO}, {sr(S_PFB)}"]]

def stage1_setup2(P, o):
    T = V_T
    P(f"s_lshl_b32 s{S_T0}, s{S_WAVE}, 12")
    P(f"s_mul_i32 s{S_T1}, s{S_WAVE}, 3072")
    s1_m0tab(P, 1); s1_m0tab(P, 2)
    for i in range(1, 3): s1_tab(P, o, i)
    P(f"v_and_b32 v{T}, 31, v{V_LANE}")
    P(f"v_lshrrev_b32 v{T+1}, 5, v{V_LANE}")
    P(f"v_bfe_u32 v{T+2}, v{V_LANE}, 1, 3")
    P(f"v_xor_b32 v{T+2}, v{T+2}, v{T+1}")
    P(f"v_lshl_add_u32 v{T}, v{T}, 7, s{S_T0}")
    for s in range(4):
        P(f"v_xor_b32 v{T+3}, {2*s}, v{T+2}")
        P(f"v_lshl_add_u32 v{V_XR+s}, v{T+3}, 4, v{T}")
    P(f"v_bfe_u32 v{T}, v{V_LANE}, 2, 2")
    P(f"v_lshl_add_u32 v{T+1}, v{T+1}, 3, v{T}")
    P(f"v_bfe_u32 v{T+2}, v{V_LANE}, 4, 1")
    P(f"v_lshlrev_b32 v{T+2}, 5, v{T+2}")
    P(f"v_and_b32 v{T+3}, 3, v{V_LANE}")
    P(f"v_lshl_add_u32 v{T+2}, v{T+3}, 3, v{T+2}")
    P(f"v_mul_u32_u24 v{T+3}, 192, v{T+1}")
    P(f"v_add_u32 v{T+3}, {LQ}, v{T+3}")
    P(f"v_add_u32 v{V_QR}, v{T+3}, v{T+2}")
    P(f"v_lshl_add_u32 v{T+2}, v{T+1}, 8, v{T+2}")
    P(f"v_add_u32 v{T+2}, {LF}, v{T+2}")
    for c in range(4):
        P(f"v_xor_b32 v{T+3}, {c}, v{T}")
        P(f"v_lshl_add_u32 v{V_FRD+c}, v{T+3}, 6, v{T+2}")

def stage1_setup3(P, o):
    for i in range(9): P(f"v_add_u32 v{V_XR+33+i}, {2*LX_SLOT}, v{V_XR+i}")
    for i in range(3, 7): s1_tab(P, o, i)
    srd_rest(P, [(SRD_WS, WS_SIZE), (SRD_OUT, 2048*896)])
    A = -2.0 * math.sqrt(2.0 / math.pi) * 0.044715 * math.log2(math.e)
    B = -2.0 * math.sqrt(2.0 / math.pi) * math.log2(math.e)
    P(f"v_mov_b32 v{V_CA}, {hex(f2u(A))}")
    P(f"v_mov_b32 v{V_CB}, {hex(f2u(B))}")
    P(f"s_mul_i32 s{S_QST}, s{S_TB}, {QKV_TB}")
    P(f"s_mul_i32 s{S_T0}, s{S_B}, {3*2048}")
    P(f"s_add_u32 s{S_QST}, s{S_QST}, s{S_T0}")
    P(f"s_add_u32 s{S_QST}, s{S_QST}, {QKV_OFF}")
    P(f"s_mul_i32 s{S_HST}, s{S_TB}, {A_TB}")
    P(f"s_lshl_b32 s{S_T0}, s{S_B}, 13")
    P(f"s_add_u32 s{S_HST}, s{S_HST}, s{S_T0}")
    P(f"s_add_u32 s{S_HST}, s{S_HST}, {A_OFF}")

def bias_expand(P, src_v, tmp, addr):
    P(f"v_lshlrev_b32 v{tmp}, 16, v{src_v}")
    P(f"v_and_b32 v{tmp+1}, 0xffff0000, v{src_v}")
    P(f"s_lshl_b32 s{S_T0}, s{S_WAVE}, 9")
    P(f"s_add_u32 s{S_T0}, s{S_T0}, {LBIAS}")
    P(f"v_lshl_add_u32 v{tmp+2}, v{V_LANE}, 3, s{S_T0}")
    P(f"ds_write_b64 v{tmp+2}, {vr(tmp,2)}")
    P(f"v_lshrrev_b32 v{addr}, 5, v{V_LANE}")
    P(f"v_lshl_add_u32 v{addr}, v{addr}, 4, s{S_T0}")

def b_dma(p):
    L = [[f"s_add_u32 m0, s{S_BM}, {LPIECE[p % 6]}"]]
    if p < 14:
        so, sd = S_BT[p >> 1], SRD_W2
        if p & 1:
            L[0].append(f"s_add_u32 s{so}, s{so}, {32*896}")
    else: so, sd = S_BO[p - 14], SRD_WO
    for i in range(4):
        L.append([(f"buffer_load_dwordx4 v{V_BA+i}, {sr(sd,4)}, s{so} offen offset:{i*1024} lds", f'b{p//6}')])
    return L

def breg(n, ctl):
    return 4 * (2 * (n if n < 24 else n - 24) + ctl)

def b_reads(n):
    pc = LPIECE[(n % 12) >> 1]
    hi, so = (1, pc - 114688) if pc >= 114688 else (0, pc - 49152)
    return [f"ds_read_b64_tr_b16 {ar(breg(n, ctl)+2*rho,2)}, v{V_BR[hi][ctl]} offset:{so + (n & 1)*2048 + rho*1024}" for ctl in range(2) for rho in range(2)]

def stage1(P, o, hooks):
    if o.ncls in (2, 4):
        P(f"s_add_u32 s{S_T4}, s{S_C}, s{S_RBL}")
        P(f"s_and_b32 s{S_T4}, s{S_T4}, {o.ncls - 1}")
        P(f"s_mul_i32 s{S_T4}, s{S_T4}, {o.cstep}")
    elif o.ncls == 3:
        P(f"s_add_u32 s{S_T4}, s{S_C}, s{S_RBL}")
        P(f"s_lshl_b32 s{S_T4}, s{S_T4}, 1")
        P(f"s_lshr_b32 s{S_T4}, 0x24924, s{S_T4}")
        P(f"s_and_b32 s{S_T4}, s{S_T4}, 3")
        P(f"s_mul_i32 s{S_T4}, s{S_T4}, {o.cstep}")
    elif o.ncls == 7: rot_calc(P, S_T4, 1, 2, 1)
    if o.ncls > 1: s1_tab(P, o, 0)
    s1_x_addr(P, o)
    if o.stamps: P(f"{o.clk} s[76:77]")
    P(f"s_mov_b32 m0, s{S_TAB+21}")
    P("s_waitcnt lgkmcnt(0)")
    if o.stamps:
        o.stamp_names += ['entry', 'pre_karg', 'karg', 'dma1st', 'dma5th']
        P(f"{o.clk} s[74:75]")
    tlb_touch(P, o, False)
    if o.spf == 1:
        srd_rest(P, [(SRD_W1, 448*3584), (SRD_WQ, 448*2688)])
        stream_pf(P, o, (SRD_X, SRD_W1, SRD_WQ))
    d0 = [[(x[0].replace(f"s{S_TAB}", "0").replace(f"s{S_TAB+7}", "0").replace(f"s{S_TAB+14}", "0"), x[1]) if isinstance(x, tuple) else x for x in it] for it in s1_dma(0, 0)]
    if o.ncls > 1: d0 = s1_dma(0, 0)
    for it in d0[1:5]: P.add(it)
    if o.stamps: P(f"{o.clk} s[72:73]")
    s1_w1_addr(P, o)
    P(f"global_load_dword v9, v5, {sr(S_B1)}")
    for it in d0[9:14]: P.add(it)
    if o.stamps: P(f"{o.clk} s[68:69]")
    s1_wq_addr(P, o)
    for it in d0[5:9]: P.add(it)
    if o.spf == 2: stream_pf(P, o, (SRD_X, SRD_W1, SRD_WQ))
    if o.cpf == 2: code_prefetch(P, o)
    if o.stamps: P(f"v_mov_b32 v{V_ST}, 0")
    stamp(P, o, 'd0_issued')
    if o.stamps:
        for i, r in enumerate([92, 76, 74, 72, 68]): P(f"v_writelane_b32 v{V_ST}, s{r}, {i}")
    tlb_touch(P, o, True)
    if o.pf:
        l2pf_setup(P, o)
        for it in l2pf(1): P.add(it)
    stage1_setup2(P, o)
    late = [it for c in range(1, 3) for it in s1_dma(c, c)]
    D = Prog(); stage1_setup3(D, o); common2(D, o)
    dl = [[x] for x in D.L]
    for g in range(3): hooks[g] = dl[(g * len(dl)) // 3:((g + 1) * len(dl)) // 3] + hooks.get(g, [])
    hooks[2] += [[f"buffer_load_dword v{V_TAG}, v{V_FLAGOFF}, {sr(SRD_WS,4)}, 0 offen"]]
    for it in late[:o.pre]: P.add(it)
    late = late[o.pre:]
    hooks[o.tag_at] = hooks.get(o.tag_at, []) + [[x] for x in make_tag_v()]
    stamp(P, o, 's1_issued')
    bias_expand(P, 9, 12, 11)
    for F in range(4):
        for q in range(4):
            P(f"ds_read_b128 {vr(ACC_F+16*F+4*q,4)}, v11 offset:{(32*F+8*q)*4}")
    P.wait_vm('dma0')
    P("s_waitcnt lgkmcnt(0)")
    P("s_barrier")
    stamp(P, o, 's1_first')
    P.add(s1_reads(0, 0, 0))
    for c in range(7):
        for s in range(4):
            g = 4 * c + s
            fs = g & 1
            base = FR + 32 * fs
            P("s_waitcnt lgkmcnt(0)")
            if s == 3 and c < 6:
                P.wait_vm(f'dma{c+1}')
                P("s_barrier")
                if o.trunc == 's1': stamp(P, o, f'c{c}')
            M = []
            for t in range(7):
                acc = ACC_Q + 16 * t
                Cin = None if (g == 0 and t < 3) else acc
                M.append([mfma(acc, base + 4 + 4 * t, base, Cin)])
            rd = []
            if g < 27:
                nc, ns = (c, s + 1) if s < 3 else (c + 1, 0)
                rd = s1_reads(nc % 3, ns, fs ^ 1)
            ex = []
            cc, ph = (c, 0) if s == 3 else (c - 1, s + 1)
            if 0 <= cc and cc + 3 < 7:
                d = s1_dma(cc % 3, cc + 3)
                cut = [0, 4, 7, 11, 14]
                ex = d[cut[ph]:cut[ph + 1]]
            first = []
            if g < 3 and late:
                k = -(-len(late) // (3 - g)); first = late[:k]; late = late[k:]
            ex = first + ex + hooks.get(g, [])
            seq = []
            per = [3, 3, 3, 3, 3, 0, 0]
            ri = 0
            flat = ex
            caps = [2, 2, 2, 2, 2, 5, 4] if rd else [5, 5, 5, 5, 5, 5, 4]
            if len(flat) <= 9 and rd: caps = [0, 0, 0, 1, 1, 4, 3] if len(flat) > 4 else [0, 0, 0, 1, 1, 1, 1]
            tot = sum(caps); acc = 0; done = 0
            for t in range(7):
                seq += M[t]
                seq += rd[ri:ri + per[t]]; ri += per[t]
                acc += caps[t]
                upto = (acc * len(flat) + tot // 2) // tot if t < 6 else len(flat)
                for e in flat[done:upto]: seq += e
                done = max(done, upto)
            P.add(seq)
    stamp(P, o, 's1_loop')

def qkv_epilogue(P, o):
    c = (28.0 ** -0.5) * math.log2(math.e)
    P("s_nop 3")
    for t in range(3):
        acc = ACC_Q + 16 * t
        P(f"s_cmp_lt_u32 s{S_B3}, {14 - t}")
        P(f"s_cbranch_scc0 L_nosc{t}")
        P(f"s_mov_b32 s{S_T2}, {hex(f2u(c))}")
        for i in range(8):
            P(f"v_pk_mul_f32 {vr(acc+2*i,2)}, {vr(acc+2*i,2)}, s[{S_T2}:{S_T3}] op_sel_hi:[1,0]")
        P(f"L_nosc{t}:")
        p = GT + 8 * t
        for i in range(8):
            P(f"v_cvt_pk_bf16_f32 v{p+i}, v{acc+2*i}, v{acc+2*i+1}")
        for h in range(2):
            P(f"v_permlane32_swap_b32 v{p+4*h}, v{p+4*h+2}")
            P(f"v_permlane32_swap_b32 v{p+4*h+1}, v{p+4*h+3}")
        for h in range(2):
            off = t * 2048 + h * 1024
            P(f"buffer_store_dwordx4 {vr(p+4*h,4)}, v{V_L16H if off >= 4096 else V_L16}, {sr(SRD_WS,4)}, s{S_QST} offen offset:{off & 4095} {SC}", tag='qst')

def gelu_tile(F):
    u = ACC_F + 16 * F
    t = GT + 32 + 16 * (F & 1)
    L = []
    pr = lambda b, i: vr(b + 2 * i, 2)
    for i in range(8): L.append(f"v_pk_mul_f32 {pr(t,i)}, {pr(u,i)}, {pr(u,i)}")
    for i in range(8): L.append(f"v_pk_fma_f32 {pr(t,i)}, {pr(t,i)}, {vr(V_CA,2)}, {vr(V_CB,2)} op_sel_hi:[1,0,0]")
    for i in range(8): L.append(f"v_pk_mul_f32 {pr(t,i)}, {pr(t,i)}, {pr(u,i)}")
    for i in range(16): L.append(f"v_exp_f32 v{t+i}, v{t+i}")
    for i in range(8): L.append(f"v_pk_add_f32 {pr(t,i)}, {pr(t,i)}, 1.0 op_sel_hi:[1,0]")
    for i in range(16): L.append(f"v_rcp_f32 v{t+i}, v{t+i}")
    for i in range(8): L.append(f"v_pk_mul_f32 {pr(t,i)}, {pr(t,i)}, {pr(u,i)}")
    for i in range(8): L.append(f"v_cvt_pk_bf16_f32 v{u+i}, v{t+2*i}, v{t+2*i+1}")
    for h in range(2):
        off = (2 * F + h) * 1024
        L.append((f"buffer_store_dwordx4 {vr(u+4*h,4)}, v{V_L16H if off >= 4096 else V_L16}, {sr(SRD_WS,4)}, s{S_HST} offen offset:{off & 4095} {SC}", 'hst'))
    return L

def prep(P, o):
    T = V_T
    S_SP = S_R
    srd_rest(P, [(SRD_WS, WS_SIZE), (SRD_OUT, 2048*896)])
    if o.stamps: P(f"v_mov_b32 v{V_ST}, 0")
    common2(P, o)
    P("s_waitcnt lgkmcnt(0)")
    if o.stamps: P(f"v_writelane_b32 v{V_ST}, s92, 0")
    P(f"s_load_dword s{S_TAG}, {sr(SRD_WS)}, {WS_E}")
    if o.spf:
        srd_rest(P, [(SRD_W1, 448*3584), (SRD_WQ, 448*2688)])
        stream_pf(P, o, (SRD_X, SRD_W1, SRD_WQ))
    def touches():
        for i in range(o.wsp):
            P(f"s_lshl2_add_u32 s{S_T4}, s{S_RBL}, s{S_WAVE}")
            P(f"s_add_u32 s{S_T4}, s{S_T4}, {16*i}")
            warm_touch(P, S_T4, 160 + i, S_T0)
    if o.wearly: touches()
    P(f"v_lshrrev_b32 v{T}, 2, v{V_LANE}")
    P(f"s_lshl2_add_u32 s{S_T0}, s{S_SP}, s{S_WAVE}")
    P(f"s_lshl_b32 s{S_T0}, s{S_T0}, 4")
    P(f"v_add_u32 v20, s{S_T0}, v{T}")
    P(f"v_mul_u32_u24 v{T}, 896, v20")
    P(f"v_and_b32 v{T+1}, 3, v{V_LANE}")
    P(f"v_lshlrev_b32 v{T+1}, 4, v{T+1}")
    P(f"v_add_u32 v{T}, v{T}, v{T+1}")
    for i in range(14):
        P(f"buffer_load_dwordx4 {vr(32+4*i,4)}, v{T}, {sr(SRD_X,4)}, 0 offen offset:{64*i}")
        P(f"global_load_dwordx4 {vr(96+4*i,4)}, v{T+1}, {sr(S_GW)} offset:{64*i}")
    make_tag(P, o)
    P("v_mov_b32 v24, 0")
    P("v_mov_b32 v25, 0")
    for i in range(56):
        P(f"v_dot2_f32_bf16 v{24+(i&1)}, v{32+i}, v{96+i}, v{24+(i&1)}")
    P("s_nop 2")
    P("v_add_f32 v24, v24, v25")
    P("v_add_f32_dpp v24, v24, v24 quad_perm:[1,0,3,2] row_mask:0xf bank_mask:0xf")
    P("v_add_f32_dpp v24, v24, v24 quad_perm:[2,3,0,1] row_mask:0xf bank_mask:0xf")
    P(f"v_mul_f32 v24, {hex(f2u(-math.log2(math.e)))}, v24")
    P("v_exp_f32 v24, v24")
    P("v_add_f32 v24, 1.0, v24")
    P("v_rcp_f32 v24, v24")
    P(f"v_lshlrev_b32 v20, 2, v20")
    P(f"v_and_b32 v25, 3, v{V_LANE}")
    P(f"v_cmp_eq_u32 vcc, 0, v25")
    P(f"v_mov_b32 v27, 0x7fff0000")
    P(f"v_cndmask_b32 v20, v27, v20, vcc")
    P(f"s_mov_b32 s{S_T0}, {G_OFF}")
    P(f"buffer_store_dword v24, v20, {sr(SRD_WS,4)}, s{S_T0} offen {SC}")
    P("s_waitcnt vmcnt(0) lgkmcnt(0)")
    P("s_barrier")
    P(f"s_lshl_b32 s{S_T0}, s{S_SP}, 7")
    P(f"s_add_u32 s{S_T0}, s{S_T0}, {FL_G}")
    P(f"s_cmp_eq_u32 s{S_WAVE}, 0")
    P("s_cbranch_scc0 L_prep_nf")
    P.add(flag_store(S_T0))
    P("L_prep_nf:")
    stamp(P, o, 'p_flag')
    if not o.wearly: touches()
    P("s_waitcnt vmcnt(0)")
    stamp(P, o, 'p_warm')

AQ = 16
AK = 24
AV = 40
AS = 56
AN = 104
AO = 120
AP = 136
AM = 236
A_KR, A_VR = 244, 245
A_KD, A_VD = 247, 248
A_PA, A_PV = 250, 251
A_G = 254
A_MX = 5

def att_scalars(P, o):
    P(f"s_and_b32 s{S_RB}, s{S_SLOT}, 15")
    P(f"s_lshr_b32 s{S_J}, s{S_SLOT}, 4")
    P(f"s_lshl_b32 s{S_T0}, s{S_XCD}, 1")
    P(f"s_add_u32 s{S_J}, s{S_J}, s{S_T0}")
    P(f"s_lshl_b32 s{S_TB}, s{S_RB}, 2")
    P(f"s_add_u32 s{S_TB}, s{S_TB}, s{S_WAVE}")
    P(f"s_and_b32 s{S_PAR}, s{S_J}, 1")
    P(f"s_lshl_b32 s{S_T0}, s{S_TB}, 4")
    P(f"s_add_u32 s{S_T0}, s{S_T0}, s{S_J}")
    P(f"s_lshl_b32 s{S_T0}, s{S_T0}, 7")
    P(f"s_add_u32 s{S_OFL}, s{S_T0}, {FL_O}")

def att_poll_addr(P, o):
    T = V_T
    P(f"v_min_u32 v{T}, 13, v{V_LANE}")
    P(f"v_lshrrev_b32 v{T+1}, 1, v{T}")
    P(f"v_and_b32 v{T}, 1, v{T}")
    P(f"s_mul_i32 s{S_T0}, s{S_J}, 7")
    P(f"s_lshr_b32 s{S_T0}, s{S_T0}, 1")
    P(f"s_lshl_b32 s{S_T0}, s{S_T0}, 3")
    P(f"v_mad_u32_u24 v{T}, v{T}, 31, s{S_T0}")
    P(f"v_cmp_gt_u32 vcc, 3, v{T+1}")
    P(f"v_mov_b32 v{T+2}, 896")
    P(f"v_mov_b32 v{T+3}, 448")
    P(f"v_cndmask_b32 v{T+2}, v{T+2}, v{T+3}, vcc")
    P(f"v_subrev_u32 v{T+3}, 3, v{T+1}")
    P(f"v_cndmask_b32 v{T+3}, v{T+3}, v{T+1}, vcc")
    P(f"v_cmp_eq_u32 vcc, 6, v{T+1}")
    P(f"s_mul_i32 s{S_T1}, s{S_WAVE}, 3")
    P(f"s_lshl_b32 s{S_T2}, s{S_RB}, 2")
    P(f"s_add_u32 s{S_T1}, s{S_T1}, s{S_T2}")
    P(f"s_sub_u32 s{S_T1}, s{S_T1}, 8")
    P(f"v_cndmask_b32_e64 v{T+2}, v{T+2}, 0, vcc")
    P(f"v_add_u32 v{T}, v{T}, v{T+2}")
    P(f"v_mul_u32_u24 v{T}, 683, v{T}")
    P(f"v_lshrrev_b32 v{T}, 16, v{T}")
    P(f"v_add_u32 v{T+3}, s{S_T1}, v{T+3}")
    P(f"v_max_i32 v{T+3}, 0, v{T+3}")
    P(f"v_mov_b32 v{T+2}, s{S_TB}")
    P(f"v_cndmask_b32 v{T+3}, v{T+3}, v{T+2}, vcc")
    P(f"v_lshl_add_u32 v{T}, v{T+3}, 4, v{T}")
    P(f"v_lshlrev_b32 v{T}, 7, v{T}")
    P(f"v_add_u32 v{V_PA}, {FL_QKV}, v{T}")
    P(f"s_lshr_b32 s{S_T0}, s{S_TB}, 1")
    P(f"s_lshl_b32 s{S_T0}, s{S_T0}, 7")
    P(f"s_add_u32 s{S_T0}, s{S_T0}, {FL_G}")
    P(f"s_lshl_b32 s{S_T1}, s{S_R}, 7")
    P(f"s_add_u32 s{S_T1}, s{S_T1}, {FL_G}")
    P(f"v_writelane_b32 v{V_PA}, s{S_T0}, 14")
    P(f"v_writelane_b32 v{V_PA}, s{S_T1}, 15")

def att_addr(P, o):
    T = V_T
    P(f"s_mul_i32 s{S_T0}, s{S_J}, 7")
    P(f"s_lshr_b32 s{S_T0}, s{S_T0}, 1")
    P(f"s_lshl_b32 s{S_T4}, s{S_T0}, 9")
    P(f"s_add_u32 s{S_T1}, s{S_T4}, {56*512}")
    P(f"v_add_u32 v{A_KD}, s{S_T1}, v{V_L16}")
    P(f"v_lshrrev_b32 v{T}, 5, v{V_LANE}")
    P(f"v_and_b32 v{T+1}, 31, v{V_LANE}")
    P(f"s_add_u32 s{S_T1}, s{S_T4}, {112*512 - 2048}")
    for t in range(2):
        P(f"v_lshlrev_b32 v{T+2}, 2, v{T}")
        P(f"v_xor_b32 v{T+2}, v{T+2}, v{T+1}")
        if t: P(f"v_xor_b32 v{T+2}, 8, v{T+2}")
        P(f"v_lshlrev_b32 v{T+2}, 4, v{T+2}")
        P(f"v_lshl_add_u32 v{T+2}, v{T}, 9, v{T+2}")
        P(f"v_add_u32 v{A_VD+t}, s{S_T1}, v{T+2}")
    P(f"s_mul_i32 s{S_T1}, s{S_WAVE}, 3")
    P(f"s_lshl_b32 s{S_T2}, s{S_RB}, 2")
    P(f"s_add_u32 s{S_T1}, s{S_T1}, s{S_T2}")
    for k in range(3):
        P(f"s_add_i32 s{S_T2}, s{S_T1}, {k-8}")
        P(f"s_max_i32 s{S_T2}, s{S_T2}, 0")
        P(f"s_mul_i32 s{S_T2}, s{S_T2}, {QKV_TB}")
        P(f"s_add_u32 s{S_KV[k]}, s{S_T2}, {QKV_OFF}")
    P(f"s_mul_i32 s{S_T2}, s{S_TB}, {QKV_TB}")
    P(f"s_add_u32 s{S_T2}, s{S_T2}, s{S_T4}")
    P(f"s_add_u32 s{S_KV[3]}, s{S_T2}, {QKV_OFF}")
    P(f"s_mul_i32 s{S_T2}, s{S_TB}, {A_TB}")
    P(f"s_lshl_b32 s{S_T3}, s{S_J}, 11")
    P(f"s_add_u32 s{S_T2}, s{S_T2}, s{S_T3}")
    P(f"s_add_u32 s{S_OST}, s{S_T2}, {A_OFF + 112*1024}")

def att_addr2(P, o):
    T = V_T
    P(f"v_lshrrev_b32 v{T}, 5, v{V_LANE}")
    P(f"s_lshl_b32 s{S_T1}, s{S_WAVE}, 12")
    P(f"v_add_u32 v{A_KR}, s{S_T1}, v{V_L16}")
    P(f"v_bfe_u32 v{T+1}, v{V_LANE}, 4, 1")
    P(f"v_bfe_u32 v{T+2}, v{V_LANE}, 1, 1")
    P(f"v_lshl_add_u32 v{T+3}, v{T+1}, 1, v{T+2}")
    P(f"v_lshlrev_b32 v{T+4}, 9, v{T+3}")
    P(f"v_xor_b32 v{T+3}, v{T+3}, v{T}")
    P(f"v_lshl_add_u32 v{T+4}, v{T+3}, 6, v{T+4}")
    P(f"v_bfe_u32 v{T+3}, v{V_LANE}, 2, 2")
    P(f"v_lshl_add_u32 v{T+4}, v{T+3}, 4, v{T+4}")
    P(f"v_and_b32 v{T+3}, 1, v{V_LANE}")
    P(f"v_lshl_add_u32 v{T+4}, v{T+3}, 3, v{T+4}")
    P(f"s_add_u32 s{S_T1}, s{S_T1}, 2048")
    P(f"v_add_u32 v{A_VR}, s{S_T1}, v{T+4}")
    P(f"v_xor_b32 v{A_VR+1}, 128, v{A_VR}")
    P(f"v_and_b32 v{T+1}, 31, v{V_LANE}")
    P(f"v_mul_u32_u24 v{T+2}, 12, v{T}")
    P(f"s_cmp_eq_u32 s{S_PAR}, 0")
    P(f"s_cselect_b32 s{S_T1}, -1, 0")
    P(f"s_cselect_b32 s{S_T2}, 1544, 0")
    P(f"v_and_b32 v{T+2}, s{S_T1}, v{T+2}")
    P(f"v_xor_b32 v{T+1}, v{T+1}, v{T+2}")
    P(f"v_lshlrev_b32 v{T+1}, 4, v{T+1}")
    P(f"v_lshl_add_u32 v{T+1}, v{T}, 11, v{T+1}")
    P(f"s_mul_i32 s{S_T3}, s{S_WAVE}, {3*4096}")
    P(f"s_add_u32 s{S_T2}, s{S_T2}, s{S_T3}")
    P(f"v_add_u32 v{A_PA}, s{S_T2}, v{T+1}")
    P(f"v_cmp_gt_u32 vcc, 32, v{V_LANE}")
    P(f"s_mul_i32 s{S_T1}, s{S_WAVE}, 3")
    P(f"s_lshl_b32 s{S_T2}, s{S_RB}, 2")
    P(f"s_add_u32 s{S_T1}, s{S_T1}, s{S_T2}")
    P(f"v_mov_b32 v{T+1}, 0x3f80")
    for k in range(3):
        P(f"s_add_u32 s{S_T2}, s{S_T1}, {k}")
        P(f"s_cmp_lt_u32 s{S_T2}, 8")
        P(f"s_cselect_b32 s{S_T2}, 0xf14a, 0")
        P(f"v_mov_b32 v{T+2}, s{S_T2}")
        P(f"v_cndmask_b32 v{A_PV+k}, v{T+1}, v{T+2}, vcc")

def att_masks(P, o):
    T = V_T
    for r in range(16):
        k0 = (r & 3) + 8 * (r >> 2)
        lo = (0xffffffff << k0) & 0xffffffff
        hi = (0xffffffff << (k0 + 4)) & 0xffffffff
        P(f"s_mov_b32 s{S_TAB+2*r}, {hex(lo)}")
        P(f"s_mov_b32 s{S_TAB+2*r+1}, {hex(hi)}")
    P(f"v_mov_b32 v{T+1}, 0xffff")
    P(f"v_mov_b32 v{T+2}, 0xffff0000")
    for i in range(8):
        P(f"v_cndmask_b32_e64 v{T+3}, 0, v{T+1}, {sr(S_TAB+4*i)}")
        P(f"v_cndmask_b32_e64 v{T+4}, 0, v{T+2}, {sr(S_TAB+4*i+2)}")
        P(f"v_or_b32 v{AM+i}, v{T+3}, v{T+4}")

def att_loads(P, o):
    P(f"s_mul_i32 s{S_T3}, s{S_WAVE}, {3*4096}")
    for k in range(3):
        P(f"s_add_u32 m0, s{S_T3}, {LKV + k*4096}")
        for t in range(2):
            P(f"buffer_load_dwordx4 v{A_KD}, {sr(SRD_WS,4)}, s{S_KV[k]} offen offset:{t*1024} {SC} lds", tag='kv')
        for t in range(2):
            P(f"buffer_load_dwordx4 v{A_VD+t}, {sr(SRD_WS,4)}, s{S_KV[k]} offen offset:{2048+t*1024} {SC} lds", tag='kv')
    for t in range(2):
        P(f"buffer_load_dwordx4 {vr(AQ+4*t,4)}, v{V_L16}, {sr(SRD_WS,4)}, s{S_KV[3]} offen offset:{t*1024} {SC}")
    T = V_T
    P(f"v_and_b32 v{T+1}, 31, v{V_LANE}")
    P(f"v_lshlrev_b32 v{T+1}, 2, v{T+1}")
    P(f"s_lshl_b32 s{S_T2}, s{S_TB}, 7")
    P(f"s_add_u32 s{S_T2}, s{S_T2}, {G_OFF}")
    P(f"buffer_load_dword v{A_G}, v{T+1}, {sr(SRD_WS,4)}, s{S_T2} offen {SC}")
    P(f"s_and_b32 s{S_T1}, s{S_WAVE}, 1")
    P(f"s_lshl_b32 s{S_T0}, s{S_R}, 8")
    P(f"s_add_u32 s{S_T0}, s{S_T0}, {G_OFF}")
    P(f"s_lshl_b32 s{S_T2}, s{S_T1}, 7")
    P(f"s_xor_b32 s{S_T3}, s{S_T2}, 128")
    P(f"s_add_u32 s{S_T2}, s{S_T2}, s{S_T0}")
    P(f"s_add_u32 s{S_T3}, s{S_T3}, s{S_T0}")
    P(f"buffer_load_dword v{L_G}, v{T+1}, {sr(SRD_WS,4)}, s{S_T3} offen {SC}")
    P(f"buffer_load_dword v{L_G+1}, v{T+1}, {sr(SRD_WS,4)}, s{S_T2} offen {SC}")

def kread(i, buf):
    return [f"ds_read_b128 {vr(AK+8*buf+4*t,4)}, v{A_KR} offset:{LKV + i*4096 + t*1024}" for t in range(2)]
def vread(i, buf):
    return [f"ds_read_b64_tr_b16 {vr(AV+8*buf+4*t+2*rho,2)}, v{A_VR+rho} offset:{LKV + i*4096 + t*256}" for t in range(2) for rho in range(2)]
def qk(i, sbuf, kbuf, c):
    s = AS + 16 * sbuf
    return [mfma(s, AK + 8 * kbuf, AQ, c), mfma(s, AK + 8 * kbuf + 4, AQ + 4, s)]

def attention(P, o, hooks):
    T = V_T
    P(f"s_cmp_eq_u32 s{S_PAR}, 0")
    P(f"s_cselect_b32 s{S_T0}, 0, -1")
    P(f"s_mov_b32 s{S_T1}, 0")
    P(f"s_mov_b32 s{S_T2}, 0")
    P(f"s_cselect_b32 s{S_T3}, -1, 0")
    P(f"v_mov_b32 v{T}, 0x3f80")
    P.wait_vm('kv')
    if o.fine: stamp(P, o, 'kv_land')
    for k in range(3):
        P(f"ds_write_b16 v{A_PA}, v{A_PV+k} offset:{LKV + k*4096}")
    P(f"v_cndmask_b32_e64 v{AQ}, v{AQ}, v{T}, {sr(S_T0)}")
    P(f"v_cndmask_b32_e64 v{AQ+1}, v{AQ+1}, 0, {sr(S_T0)}")
    P(f"v_cndmask_b32_e64 v{AQ+6}, v{AQ+6}, v{T}, {sr(S_T2)}")
    P(f"v_cndmask_b32_e64 v{AQ+7}, v{AQ+7}, 0, {sr(S_T2)}")
    P("s_waitcnt lgkmcnt(0)")
    P("s_barrier")
    stamp(P, o, 'att_go')
    order = [0, 8, 1, 2, 3, 4, 5, 6, 7]
    sb = lambda n: n % 4
    P.add(kread(order[0], 0)); P.add(kread(order[1], 1))
    def maxops(s, first):
        L = []
        for i in range(8):
            if first and i == 0: L.append(f"v_max_f32 v{A_MX}, v{s}, v{s+1}")
            else: L.append(f"v_max3_f32 v{A_MX}, v{s+2*i}, v{s+2*i+1}, v{A_MX}")
        return L
    merge = [f"v_cndmask_b32_e64 v{AS+16+r}, v{AS+r}, v{AS+16+r}, {sr(S_TAB+2*r)}" for r in range(16)]
    for n in range(9):
        m = qk(order[n], sb(n), n & 1, None)
        post = []
        if n == 3: post = merge
        if n == 4: post = maxops(AS + 16, True) + maxops(AS + 16 * sb(2), False)
        if n >= 5: post = maxops(AS + 16 * sb(n - 2), False)
        nxt = kread(order[n + 2], n & 1) if n + 2 < 9 else kread(order[n + 2 - 9], n & 1)
        h = len(post) // 2
        P.add([m[0]] + post[:h] + [m[1]] + nxt + post[h:])
        for it in hooks.get(100 + n, []): P.add(it)
    P.add(vread(0, 0)); P.add(vread(8, 1))
    P.add(maxops(AS + 16 * sb(7), False))
    P.add(maxops(AS + 16 * sb(8), False))
    P(f"v_mov_b32 v{T}, v{A_MX}")
    P(f"v_permlane32_swap_b32 v{A_MX}, v{T}")
    P(f"v_max_f32 v{A_MX}, v{A_MX}, v{T}")
    P(f"v_sub_f32 v{AN}, 0, v{A_MX}")
    P(f"v_sub_f32 v{AN+1}, 0, v{A_MX}")
    for i in range(1, 8): P(f"v_mov_b64 {vr(AN+2*i,2)}, {vr(AN,2)}")
    stamp(P, o, 'att_p1')
    kb = lambda n: (n + 1) & 1
    def expcvt(s, p):
        L = []
        for i in range(8):
            L += [f"v_exp_f32 v{s+2*i}, v{s+2*i}", f"v_exp_f32 v{s+2*i+1}, v{s+2*i+1}"]
            if i >= 1: L.append(f"v_cvt_pk_bf16_f32 v{p+i-1}, v{s+2*i-2}, v{s+2*i-1}")
        L.append(f"v_cvt_pk_bf16_f32 v{p+7}, v{s+14}, v{s+15}")
        return L
    def pv(p, vbuf, first=False):
        return [mfma(AO, AV + 8 * vbuf, p, None if first else AO), mfma(AO, AV + 8 * vbuf + 4, p + 4, AO)]
    m0 = qk(0, 0, kb(0), AN); m1 = qk(8, 1, kb(1), AN)
    P.add(m0 + kread(order[2], kb(2)) + m1 + kread(order[3], kb(3)))
    m2 = qk(order[2], 2, kb(2), AN)
    P.add([m2[0], m2[1]] + merge)
    ec = expcvt(AS + 16, AP)
    sp = []
    for i in range(8):
        sp += [f"v_and_b32 v{AP+8+i}, v{AP+i}, v{AM+i}", f"v_xor_b32 v{AP+16+i}, v{AP+i}, v{AP+8+i}"]
    m3 = qk(order[3], 0, kb(3), AN)
    P.add(kread(order[4], kb(4)) + ec[:8] + [m3[0]] + ec[8:16] + [m3[1]] + kread(order[5], kb(5)) + ec[16:] + sp)
    pend = pv(AP + 16, 0, True) + pv(AP + 8, 1)
    pend_rd = vread(order[2], 0) + vread(order[3], 1)
    for n in range(2, 9):
        p = AP + 16 if n == 3 else (AP if (n & 1) == 0 else AP + 8)
        ec = expcvt(AS + 16 * (n % 3), p)
        hk = hooks.get(n, [])
        if hk: ec = interleave([[x] for x in ec], hk)
        mq = qk(order[n + 2], (n + 2) % 3, kb(n + 2), AN) if n + 2 < 9 else []
        kr = kread(order[n + 4], kb(n + 4)) if n + 4 < 9 else []
        ms = pend + mq
        seq = []
        k = len(ms)
        step = max(1, len(ec) // max(k, 1))
        ei = 0
        for j, mm in enumerate(ms):
            seq.append(mm)
            if j == len(pend) - 1: seq += pend_rd
            if j == k - 1 and mq: seq += kr
            take = ec[ei:ei + step] if j < k - 1 else ec[ei:]
            seq += take; ei += len(take)
        P.add(seq)
        vb = n & 1
        pend = pv(p, vb)
        pend_rd = vread(order[n + 2], vb) if n + 2 < 9 else []
    P.add(pend)
    for it in hooks.get(9, []): P.add(it)
    P(f"s_cmp_eq_u32 s{S_PAR}, 0")
    P(f"s_cselect_b64 {sr(S_T0)}, -1, 0")
    stamp(P, o, 'att_p2')
    P(f"v_cndmask_b32_e64 v{T}, v{AO}, v{AO+12}, {sr(S_T0)}")
    P(f"v_mov_b32 v{T+1}, v{T}")
    P(f"v_permlane32_swap_b32 v{T}, v{T+1}")
    P(f"v_cndmask_b32_e64 v{T}, v{T}, v{T+1}, {sr(S_T0)}")
    if o.dbg:
        P(f"s_lshl_b32 s{S_CNT}, s{S_TB}, 4")
        P(f"s_add_u32 s{S_CNT}, s{S_CNT}, s{S_J}")
        P(f"s_lshl_b32 s{S_CNT}, s{S_CNT}, 10")
        P(f"s_add_u32 s{S_CNT}, s{S_CNT}, {BP_OFF}")
        P(f"v_mov_b32 v{AP}, v{A_G}")
        P(f"v_mov_b32 v{AP+1}, v{T}")
        P(f"v_mov_b32 v{AP+2}, v{AN}")
        P(f"v_mov_b32 v{AP+3}, v{AQ+2}")
        P(f"buffer_store_dwordx4 {vr(AP,4)}, v{V_L16}, {sr(SRD_WS,4)}, s{S_CNT} offen")
        P(f"s_cmp_eq_u32 s{S_PAR}, 0")
    P(f"v_rcp_f32 v{T}, v{T}")
    P(f"v_mul_f32 v{T+1}, v{T}, v{A_G}")
    for i in range(8):
        P(f"v_pk_mul_f32 {vr(AO+2*i,2)}, {vr(AO+2*i,2)}, {vr(T+1,2)} op_sel_hi:[1,0]")
    for i in range(8):
        P(f"v_cvt_pk_bf16_f32 v{AP+i}, v{AO+2*i}, v{AO+2*i+1}")
    P(f"s_cselect_b32 s{S_T0}, 0, -1")
    P(f"s_mov_b32 s{S_T1}, 0")
    P(f"s_mov_b32 s{S_T2}, 0")
    P(f"s_cselect_b32 s{S_T3}, -1, 0")
    for r, m in ((0, S_T0), (1, S_T0), (6, S_T2), (7, S_T2)):
        P(f"v_cndmask_b32_e64 v{AP+r}, v{AP+r}, 0, {sr(m)}")
    for t in range(2):
        P(f"buffer_store_dwordx4 {vr(AP+4*t,4)}, v{V_L16}, {sr(SRD_WS,4)}, s{S_OST} offen offset:{t*1024} {SC}", tag='ost')

LACC = 16
EARLY = [('a', r) for r in range(192, 256, 4)] + list(range(160, 216, 4))
LATE = list(range(80, 136, 4)) + list(range(144, 160, 4)) + list(range(236, 252, 4)) + [136, 140]

def last_baddr(P, o):
    T = V_T
    P(f"s_mov_b64 {sr(SRD_W2)}, {sr(S_W2)}")
    srd_rest(P, [(SRD_W2, 1792*896)])
    P(f"s_lshl_b32 s{S_BM}, s{S_WAVE}, 12")
    rot_calc(P, S_ROT2, *o.rot2)
    P(f"s_mul_i32 s{S_T0}, s{S_WAVE}, {448*896}")
    P(f"s_lshl_b32 s{S_T3}, s{S_C}, 7")
    P(f"s_add_u32 s{S_T0}, s{S_T0}, s{S_T3}")
    P(f"s_mov_b32 s{S_T1}, s{S_ROT2}")
    for g in range(7):
        P(f"s_mul_i32 s{S_T2}, s{S_T1}, {64*896}")
        P(f"s_add_u32 s{S_BT[g]}, s{S_T0}, s{S_T2}")
        if g < 6:
            P(f"s_add_u32 s{S_T1}, s{S_T1}, 1")
            P(f"s_cmp_eq_u32 s{S_T1}, 7")
            P(f"s_cselect_b32 s{S_T1}, 0, s{S_T1}")
    P(f"v_lshrrev_b32 v{T}, 3, v{V_LANE}")
    P(f"v_bfe_u32 v{T+1}, v{V_LANE}, 4, 1")
    P(f"v_lshlrev_b32 v{T+1}, 2, v{T+1}")
    P(f"v_xor_b32 v{T+1}, v{T+1}, v{V_LANE}")
    P(f"v_and_b32 v{T+1}, 7, v{T+1}")
    P(f"v_mul_u32_u24 v{T}, 896, v{T}")
    P(f"v_lshl_add_u32 v{V_BA}, v{T+1}, 4, v{T}")
    for i in range(1, 4): P(f"v_add_u32 v{V_BA+i}, {i*(8*896-1024)}, v{V_BA}")

def last_baddr_r(P, o):
    T = V_T
    P(f"v_bfe_u32 v{T}, v{V_LANE}, 2, 2")
    P(f"v_lshrrev_b32 v{T+1}, 5, v{V_LANE}")
    P(f"v_lshl_add_u32 v{T+1}, v{T+1}, 2, v{T}")
    P(f"v_lshlrev_b32 v{T+1}, 7, v{T+1}")
    P(f"v_bfe_u32 v{T+2}, v{V_LANE}, 4, 1")
    P(f"v_lshl_add_u32 v{T+1}, v{T+2}, 5, v{T+1}")
    P(f"v_and_b32 v{T+2}, 3, v{V_LANE}")
    P(f"v_lshl_add_u32 v{T+1}, v{T+2}, 3, v{T+1}")
    P(f"v_lshrrev_b32 v{T}, 1, v{T}")
    P(f"v_lshl_add_u32 v{T}, v{T}, 6, v{T+1}")
    P(f"s_add_u32 s{S_T0}, s{S_BM}, 49152")
    P(f"v_add_u32 v{T}, s{S_T0}, v{T}")
    P(f"s_lshr_b32 s{S_T0}, s{S_WAVE}, 1")
    P(f"s_lshl_b32 s{S_T0}, s{S_T0}, 6")
    P(f"v_xor_b32 v{V_BR[0][1]}, s{S_T0}, v{T}")
    P(f"v_xor_b32 v{V_BR[0][0]}, 64, v{V_BR[0][1]}")
    for k in range(2): P(f"v_add_u32 v{V_BR[1][k]}, 0x10000, v{V_BR[0][k]}")

def last_baddr_o(P, o):
    P(f"s_mov_b64 {sr(SRD_WO)}, {sr(S_WO)}")
    P(f"s_mov_b32 s{SRD_WO+2}, {448*896}")
    P(f"s_mov_b32 s{SRD_WO+3}, 0x20000")
    P(f"s_lshl_b32 s{S_T3}, s{S_C}, 7")
    for i in range(4):
        P(f"s_mul_i32 s{S_T0}, s{S_WAVE}, {112*896}")
        P(f"s_add_u32 s{S_T0}, s{S_T0}, s{S_T3}")
        P(f"s_add_u32 s{S_BO[i]}, s{S_T0}, {8*((7*i)>>1)*896}")

def last_setup(P, o):
    T = V_T
    P(f"s_lshl_b32 s{S_T0}, s{S_C}, 7")
    P(f"v_and_b32 v{T}, 31, v{V_LANE}")
    P(f"v_lshl_add_u32 v{T+1}, v{T}, 2, s{S_T0}")
    P(f"global_load_dword v{V_DUM}, v{T+1}, {sr(S_B2)}")
    P(f"s_and_b32 s{S_T1}, s{S_WAVE}, 1")
    P(f"s_mul_i32 s{S_T2}, s{S_T1}, {A_TB}")
    P(f"s_sub_u32 s{S_T3}, {A_TB}, s{S_T2}")
    P(f"v_add_u32 v{V_AA}, s{S_T3}, v{V_L16}")
    P(f"v_add_u32 v{V_AA+1}, s{S_T2}, v{V_L16}")
    P(f"v_and_b32 v{T+1}, 1, v{V_LANE}")
    P(f"s_lshl_b32 s{S_T0}, s{S_R}, 1")
    P(f"v_add_u32 v{T+1}, s{S_T0}, v{T+1}")
    P(f"v_lshlrev_b32 v{T+1}, 4, v{T+1}")
    P(f"v_bfe_u32 v{T+2}, v{V_LANE}, 1, 2")
    P(f"v_add_u32 v{T+1}, v{T+1}, v{T+2}")
    P(f"v_lshlrev_b32 v{T+1}, 7, v{T+1}")
    P(f"s_mul_i32 s{S_T0}, s{S_WAVE}, 7")
    P(f"s_lshr_b32 s{S_T0}, s{S_T0}, 1")
    P(f"s_lshl_b32 s{S_T0}, s{S_T0}, 7")
    P(f"s_add_u32 s{S_T0}, s{S_T0}, {FL_H}")
    P(f"v_add_u32 v{V_PH}, s{S_T0}, v{T+1}")
    P(f"s_lshl_b32 s{S_T0}, s{S_WAVE}, 9")
    P(f"s_add_u32 s{S_T0}, s{S_T0}, {FL_O}")
    P(f"v_add_u32 v{V_PO}, s{S_T0}, v{T+1}")
    for d in range(1, 4):
        P(f"s_xor_b32 s{S_T0}, s{S_WAVE}, {d}")
        P(f"s_mul_i32 s{S_T0}, s{S_T0}, 12288")
        P(f"s_add_u32 s{S_T0}, s{S_T0}, {LRED + (d-1)*4096}")
        P(f"v_add_u32 v{L_RW+d-1}, s{S_T0}, v{V_L16}")
    P(f"s_mul_i32 s{S_T0}, s{S_WAVE}, 12288")
    P(f"s_add_u32 s{S_T0}, s{S_T0}, {LRED}")
    P(f"v_add_u32 v{L_RR}, s{S_T0}, v{V_L16}")
    P(f"s_lshl_b32 s{S_T0}, s{S_R}, 6")
    P(f"s_lshl_b32 s{S_T2}, s{S_T1}, 5")
    P(f"s_add_u32 s{S_T0}, s{S_T0}, s{S_T2}")
    P(f"v_add_u32 v{T+1}, s{S_T0}, v{T}")
    P(f"v_mul_u32_u24 v{T+1}, 896, v{T+1}")
    P(f"v_lshrrev_b32 v{T+2}, 5, v{V_LANE}")
    P(f"v_lshl_add_u32 v{T+1}, v{T+2}, 4, v{T+1}")
    P(f"s_lshl_b32 s{S_T0}, s{S_C}, 7")
    P(f"s_lshr_b32 s{S_T2}, s{S_WAVE}, 1")
    P(f"s_lshl_b32 s{S_T2}, s{S_T2}, 6")
    P(f"s_add_u32 s{S_T0}, s{S_T0}, s{S_T2}")
    P(f"v_add_u32 v{L_OA}, s{S_T0}, v{T+1}")

def last_atab(P, o):
    P(f"s_mul_i32 s{S_T0}, s{S_R}, {2*A_TB}")
    P(f"s_add_u32 s{S_T0}, s{S_T0}, {A_OFF}")
    P(f"s_lshl_b32 s{S_T2}, s{S_WAVE}, 13")
    P(f"s_add_u32 s{S_AT[7]}, s{S_T0}, s{S_T2}")
    P(f"s_add_u32 s{S_AT[7]}, s{S_AT[7]}, {112*1024}")
    P(f"s_add_u32 s{S_AT[8]}, s{S_AT[7]}, 4096")
    P(f"s_mul_i32 s{S_T2}, s{S_WAVE}, {28*1024}")
    P(f"s_add_u32 s{S_T0}, s{S_T0}, s{S_T2}")
    P(f"s_mov_b32 s{S_T2}, s{S_ROT2}")
    for g in range(7):
        P(f"s_lshl_b32 s{S_T3}, s{S_T2}, 12")
        P(f"s_add_u32 s{S_AT[g]}, s{S_T0}, s{S_T3}")
        if g < 6:
            P(f"s_add_u32 s{S_T2}, s{S_T2}, 1")
            P(f"s_cmp_eq_u32 s{S_T2}, 7")
            P(f"s_cselect_b32 s{S_T2}, 0, s{S_T2}")

def last_setup_b(P, o):
    bias_expand(P, V_DUM, 12, L_BA)
    P(f"s_lshr_b32 s{S_T2}, s{S_WAVE}, 1")
    P(f"s_lshl_b32 s{S_T2}, s{S_T2}, 7")
    P(f"v_add_u32 v{L_BA}, s{S_T2}, v{L_BA}")

def a_slots(o):
    ne = o.nearly * 2
    sl = EARLY[:ne] + LATE + EARLY[ne:]
    ring = len(sl) // 2 * 2
    return [sl[i % ring] for i in range(72)], ring // 2

def xr(d): return ar(d[1], 4) if isinstance(d, tuple) else vr(d, 4)

def a_load(o, n):
    sl, _ = a_slots(o)
    L = []
    for ttl in range(2):
        d = sl[2 * n + ttl]
        so, k = (S_AT[n >> 2], n & 3) if n < 28 else (S_AT[7 + ((n - 28) >> 2)], (n - 28) & 3)
        L.append((f"buffer_load_dwordx4 {xr(d)}, v{V_AA+ttl}, {sr(SRD_WS,4)}, s{so} offen offset:{k*1024} {o.asc}", 'ald'))
    return L

def last(P, o):
    q = lambda ttl, ctl: LACC + 32 * ttl + 16 * ctl
    sl, depth = a_slots(o)
    mm = lambda n, ttl, ctl: mfma(q(ttl, ctl), breg(n, ctl), sl[2 * n + ttl], None if n == 0 else q(ttl, ctl), 'a')
    if o.nearly == 0:
        poll(P, o, V_PH)
        P.add(flag_store(S_OFL))
    last_setup_b(P, o)
    P("s_barrier")
    stamp(P, o, 'last_go')
    nxt = o.nearly
    lim = lambda n: min(n + depth, 28)
    while nxt < min(max(o.lead, o.nearly), lim(0)): P.add(a_load(o, nxt)); nxt += 1
    opolled = False
    for n in range(28):
        if n == 8: P.wait_vm('b2')
        M = [mm(n, ttl, ctl) for ttl in range(2) for ctl in range(2)]
        ex = []
        cnt = 0
        top = (36 if opolled else 28)
        while nxt < min(n + min(depth, o.lead + 1), top) and cnt < 2:
            ex += a_load(o, nxt); nxt += 1; cnt += 1
        if 8 <= n < 20: ex += b_reads(n + 16)
        if n == o.oflag_at and o.nearly > 0:
            ex = [WVM('ost')] + flag_store(S_OFL) + ex
        if n == o.opoll_at: ex += poll_issue(V_PO, V_PD)
        if n == o.ocheck_at:
            ex = poll_check(V_PO, V_PD) + ex; opolled = True
        if o.hst and n % 4 == 0 and n: stamp(P, o, f'h{n}')
        P.add(interleave([[m] for m in M], [[e] for e in ex], per=lambda i, L=len(ex): ((i+1)*L)//4 - (i*L)//4) if n != o.ocheck_at and n != o.oflag_at else M + ex)
    stamp(P, o, 'last_h')
    while nxt < 36: P.add(a_load(o, nxt)); nxt += 1
    used = set(sl[56:72])
    free = [r for r in sorted(x for x in set(sl) if not isinstance(x, tuple)) if r not in used]
    B2 = None
    for r in free:
        if all((r + 4 * k) in free for k in range(4)): B2 = r; break
    for k in range(4): P(f"ds_read_b128 {vr(B2+4*k,4)}, v{L_BA} offset:{32*k}")
    sc = lambda ttl, ctl: [f"v_mul_f32 v{q(ttl,ctl)+i}, v{L_G+ttl}, v{q(ttl,ctl)+i}" for i in range(16)]
    P(f"v_sub_f32 v{L_G}, 1.0, v{L_G}")
    P(f"v_sub_f32 v{L_G+1}, 1.0, v{L_G+1}")
    P.add(sc(0, 0) + sc(0, 1))
    rest = sc(1, 0) + [f"v_add_f32 v{q(1,1)+i}, v{q(1,1)+i}, v{B2+i}" for i in range(16)] + sc(1, 1)
    M = []
    for n in range(28, 36): M += [[mm(n, 0, 0)], [mm(n, 0, 1)]]
    P.add(interleave(M, rest))
    wr = lambda ttl, ctl: [f"ds_write_b128 v{L_RW + ((1-ttl) | ((1-ctl) << 1)) - 1}, {vr(q(ttl,ctl)+4*i,4)} offset:{i*1024}" for i in range(4)]
    w = wr(0, 0) + wr(0, 1)
    seq = []
    for i, n in enumerate(range(28, 36)):
        seq.append(mm(n, 1, 0))
        if i >= 2: seq += w[:2]; w = w[2:]
    seq += w
    w = wr(1, 0)
    for i, n in enumerate(range(28, 36)):
        seq.append(mm(n, 1, 1))
        if i >= 3 and w: seq.append(w.pop(0))
    P.add(seq + w)
    P("s_waitcnt lgkmcnt(0)")
    P("s_barrier")
    stamp(P, o, 'last_o')
    R = 80
    for d in range(3):
        for i in range(4):
            P(f"ds_read_b128 {vr(R+16*d+4*i,4)}, v{L_RR} offset:{d*4096 + i*1024}")
    o_ = q(1, 1)
    for d in range(3):
        for i in range(8):
            P(f"v_pk_add_f32 {vr(o_+2*i,2)}, {vr(o_+2*i,2)}, {vr(R+16*d+2*i,2)}")
    p = R + 48
    for i in range(8): P(f"v_cvt_pk_bf16_f32 v{p+i}, v{o_+2*i}, v{o_+2*i+1}")
    for h in range(2):
        P(f"v_permlane32_swap_b32 v{p+4*h}, v{p+4*h+2}")
        P(f"v_permlane32_swap_b32 v{p+4*h+1}, v{p+4*h+3}")
    for h in range(2):
        P(f"buffer_store_dwordx4 {vr(p+4*h,4)}, v{L_OA}, {sr(SRD_OUT,4)}, 0 offen offset:{32*h}")
    stamp(P, o, 'end')

HEADER = open('cdna_kernels/' + NAME + '.s.ref').read().split('; Override launch')[0]

def finish(P, o, name):
    for sp in slow_paths:
        P.forget(); P(sp)
    L = finalize(P, True)
    out = HEADER + f"; @launch grid=(256,1,1) block=(256,1,1) lds={LDS_BYTES}\n"
    out += '.amdgcn_target "amdgcn-amd-amdhsa--gfx950"\n.text\n'
    out += f".globl {name}\n.p2align 8\n.type {name},@function\n{name}:\n" + text(L)
    out += "s_endpgm\n.fill 2048, 4, 0xbf800000\n"
    out += f""".section .rodata,"a"
.p2align 6
.amdhsa_kernel {name}
  .amdhsa_next_free_vgpr 512
  .amdhsa_next_free_sgpr 102
  .amdhsa_accum_offset 256
  .amdhsa_group_segment_fixed_size 0
  .amdhsa_kernarg_size 96
  .amdhsa_user_sgpr_count 2
  .amdhsa_user_sgpr_kernarg_segment_ptr 1
  .amdhsa_system_sgpr_workgroup_id_x 1
.end_amdhsa_kernel
"""
    if o.diag is not None:
        out = out.replace('DIAG_I', str(o.stamp_names.index(o.diag[0]))).replace('DIAG_J', str(o.stamp_names.index(o.diag[1])))
    return out

def build(o):
    name = NAME + "_kernel"
    P = Prog(); setup(P, o, "L_end")
    P(f"s_cmp_eq_u32 s{S_C}, 7")
    P("s_cbranch_scc1 L_prep")
    hooks = {}
    def spread(D, g0, g1):
        G = atomic_groups(D.L); n = g1 - g0; tot = len(D.L); done = 0; g = g0
        for grp in G:
            g = g0 + min(n - 1, (done * n) // tot)
            hooks[g] = hooks.get(g, []) + [[x] for x in grp]; done += len(grp)
    for i, g in enumerate(o.wact):
        D = Prog()
        D(f"s_mul_i32 s{S_T4}, s{S_RBL}, 7")
        D(f"s_add_u32 s{S_T4}, s{S_T4}, s{S_C}")
        D(f"s_lshl2_add_u32 s{S_T4}, s{S_T4}, s{S_WAVE}")
        D(f"s_add_u32 s{S_T4}, s{S_T4}, {16*o.wsp + 112*i}")
        warm_touch(D, S_T4, 245 + i, S_T0)
        spread(D, g - 1, g + 1)
    D = Prog()
    D(f"s_mul_i32 s{S_B3}, s{S_B}, 3")
    D(f"s_mov_b32 s{S_SPARE}, 0")
    last_baddr(D, o)
    g0 = max(o.wact) + 1 if o.wact else 9
    ntail = o.ntail
    spread(D, g0, max(g0 + 4, 19) if ntail else 28)
    bl = [it for p in range(6) for it in b_dma(p)]
    if ntail:
        gs = max(g0 + 4, 19)
        a = bl[:min(ntail, 15)]; b = bl[15:ntail] if ntail > 15 else []
        for i, it in enumerate(a): hooks.setdefault(gs + (i * (23 - gs if gs < 23 else 1)) // len(a), []).append(it)
        for i, it in enumerate(b): hooks.setdefault(max(23, gs) + (i * (28 - max(23, gs))) // len(b), []).append(it)
        bl = bl[ntail:]
    stage1(P, o, hooks)
    if o.trunc == 's1':
        stamp_flush(P, o); P("s_endpgm"); P.forget(); P("L_prep:")
        if not o.noprep: prep(P, o); stamp_flush(P, o)
        P("L_end:"); P("s_endpgm")
        return finish(P, o, name)
    P("s_barrier")
    qkv_epilogue(P, o)
    P(f"s_lshl_b32 s{S_T0}, s{S_TB}, 4")
    P(f"s_add_u32 s{S_T0}, s{S_T0}, s{S_B}")
    P(f"s_lshl_b32 s{S_T0}, s{S_T0}, 7")
    P(f"s_add_u32 s{S_QFL}, s{S_T0}, {FL_QKV}")
    P(f"s_add_u32 s{S_B}, s{S_T0}, {FL_H}")
    stamp(P, o, 'qkv_epi')
    for F in range(4):
        g = gelu_tile(F)
        take = bl[:o.nb_gelu[F]]; bl = bl[o.nb_gelu[F]:]
        P.add(interleave([[x] for x in g[:-2]], take))
        if o.fine: stamp(P, o, f'g{F}')
        if F == o.qflag_after:
            P.wait_vm('qst'); P.add(flag_store(S_QFL))
            if o.fine: stamp(P, o, 'qflag')
        P.add(g[-2:])
    stamp(P, o, 'gelu')
    for it in bl: P.add(it)
    att_scalars(P, o); att_poll_addr(P, o); att_addr(P, o); last_baddr_r(P, o)
    P.wait_vm('hst'); P.add(flag_store(S_B))
    stamp(P, o, 'hflag')
    P.wait_vm('b0')
    P.add(poll_issue(V_PA, V_PD))
    for n in range(12): P.add(b_reads(n))
    P("s_waitcnt lgkmcnt(0)")
    P("L_att:")
    P.add(poll_check(V_PA, V_PD))
    stamp(P, o, 'qkv_seen')
    att_loads(P, o)
    D = Prog(); last_setup(D, o); att_addr2(D, o); att_masks(D, o); last_atab(D, o); last_baddr_o(D, o)
    P.add(interleave(atomic_groups(D.L), [sum(b_dma(p), []) for p in range(6, 6 + o.nkv)]))
    if o.fine: stamp(P, o, 'setup')
    ah = {}
    def put(items, slots):
        for i, it in enumerate(items): ah.setdefault(slots[(i * len(slots)) // len(items)], []).append(it)
    seq = [100 + n for n in range(9)] + list(range(2, 10))
    b1 = [it for p in range(6 + o.nkv, 12) for it in b_dma(p)]
    if b1 and not (o.drop & 1): put(b1, seq[:o.a1])
    if not (o.drop & 2): put([[WVM('b1')]] + [[x] for n in range(12, 24) for x in b_reads(n)], seq[o.a2:o.a3])
    if not (o.drop & 4): put([["s_waitcnt lgkmcnt(0)"]] + [it for p in range(12, 18) for it in b_dma(p)], seq[o.a3:o.a4])
    if o.nearly > 0:
        ah.setdefault(o.hpoll, []).append(poll_issue(V_PH, V_PD))
        ah.setdefault(o.hcheck, []).insert(0, poll_check(V_PH, V_PD))
        al = [[x] for n in range(o.nearly) for x in a_load(o, n)]
        ns = list(range(o.hcheck, 10))
        for i, it in enumerate(al): ah.setdefault(ns[(i * len(ns)) // len(al)], []).append(it)
    attention(P, o, ah)
    stamp(P, o, 'att_end')
    P(f"s_cmp_eq_u32 s{S_SPARE}, 1")
    P("s_cbranch_scc1 L_spare_end")
    last(P, o)
    stamp_flush(P, o)
    P("s_endpgm")
    P.forget()
    P("L_prep:")
    prep(P, o)
    P(f"s_mov_b32 s{S_C}, 6")
    P(f"s_mov_b32 s{S_SPARE}, 1")
    last_baddr(P, o); last_baddr_r(P, o)
    att_scalars(P, o); att_poll_addr(P, o); att_addr(P, o)
    P.add(poll_issue(V_PA, V_PD))
    P("s_waitcnt vmcnt(0)")
    P("s_branch L_att")
    P.forget()
    P("L_spare_end:")
    P("s_waitcnt vmcnt(0)")
    P.add(flag_store(S_OFL))
    stamp_flush(P, o)
    P(f"s_cmp_eq_u32 s2, 56")
    P("s_cbranch_scc0 L_end")
    P(f"s_cmp_eq_u32 s{S_WAVE}, 0")
    P("s_cbranch_scc0 L_end")
    P(f"v_lshlrev_b32 v{V_PA}, 7, v{V_LANE}")
    P(f"s_mov_b32 s{S_CNT}, 4000")
    P("L_ep:")
    for i in range(16):
        P(f"s_mov_b32 s{S_T0}, {FL_O + i*8192}")
        P(f"buffer_load_dwordx2 {vr(16+2*i,2)}, v{V_PA}, {sr(SRD_WS,4)}, s{S_T0} offen sc1")
    P("s_waitcnt vmcnt(0)")
    P(f"s_mov_b64 {sr(S_T0)}, 0")
    for i in range(16):
        P(f"v_cmp_ne_u64 vcc, {sr(S_TAG)}, {vr(16+2*i,2)}")
        P(f"s_or_b64 {sr(S_T0)}, {sr(S_T0)}, vcc")
    P(f"s_sub_u32 s{S_CNT}, s{S_CNT}, 1")
    P("s_cbranch_scc1 L_end")
    P(f"s_cmp_eq_u64 {sr(S_T0)}, 0")
    P("s_cbranch_scc0 L_ep")
    P(f"buffer_store_dword v{V_TAG}, v{V_FLAGOFF}, {sr(SRD_WS,4)}, 0 offen sc1")
    P("L_end:")
    P("s_endpgm")
    return finish(P, o, name)

DEFAULTS = dict(drop=0, ntail=30, nkv=1, a1=7, a2=8, a3=12, a4=15, wsp=2, wearly=0, wact=(10, 14), dbg=0, b1at=2, sp0=9, sp1=22, lead=6, b2at=12, fine=0, nb_post=0, nb_kv=4, nb_p1=14, nb_span=3, spf=0, ncls=3, cstep=2, item_ld=2, touch=0, tag_at=8, item_at=7, itflag_at=12, asc='sc1', hst=0, cpf=1, noprep=0, rot=(0, 0, 0), rot2=(0, 0, 0), trunc=None, pre=14, pf=0, ppoll=17, pcheck=20, nb_loop=12, nb_gelu=(5, 10, 10, 5), nb_att=0,
                qflag_after=1, nearly=4, hpoll=6, hcheck=8, burst=11, oflag_at=3, opoll_at=16, ocheck_at=20, code_bytes=28672)

if __name__ == '__main__':
    o = Opt()
    for k, v in DEFAULTS.items(): setattr(o, k, v)
    o.stamps = 'stamps' in sys.argv; o.diag = None; o.fix = []; o.stamp_names = []
    o.clk = 's_memtime' if 'cyc' in sys.argv else 's_memrealtime'
    for a in sys.argv[2:]:
        if '=' not in a: continue
        k, v = a.split('=')
        if k == 'diag':
            i, j, K = v.split(','); o.diag = (i, j, int(K)); o.stamps = True
        elif k == 'trunc': o.trunc = v
        elif k == 'asc': o.asc = v.replace('+', ' ').replace('none', '')
        elif ',' in v: setattr(o, k, tuple(int(x) for x in v.split(',') if x))
        else: setattr(o, k, int(v))
    s = build(o)
    open(sys.argv[1], 'w').write(s)
    if o.stamps: open(sys.argv[1] + '.names', 'w').write('\n'.join(o.stamp_names))
```

```python
import sys, math, struct
from asmlib import *

NAME = "gated_mix__sliding_block__dense_activation_gelu__prompt"
def f2u(x): return struct.unpack('<I', struct.pack('<f', x))[0]

WS_E      = 0
FL_G      = 0x1000
FL_PREP   = 0x80000
G_OFF     = 0x4000
FL_QKV    = 0x20000
FL_H      = 0x40000
FL_O      = 0x60000
QKV_OFF   = 0x100000
A_OFF     = 0x700000
BP_OFF    = 0x1000000
WS_SIZE   = 0x1200000
STAMP_OFF = 0x1400000
QKV_TB = 168 * 512
A_TB = 144 * 1024
BP_C = 144 * 2048

LX = 0; LF = 16384; LQ = 32768
LX_SLOT = LF_SLOT = LQ_SLOT = 45056
LBIAS = 151552
LITEM = 137216
LKV = 0
LRED = 0
LPIECE = [49152, 65536, 135168, 81920, 98304, 114688]
LDS_BYTES = 160 * 1024

S_B1, S_W2, S_B2, S_GW = 12, 14, 16, 18
SRD_X, SRD_WQ, SRD_W1, SRD_WS, SRD_OUT, SRD_P = 28, 32, 36, 40, 44, 48
S_WAVE, S_XCD, S_SLOT = 3, 10, 11
S_TAG = 26
S_RB, S_B, S_TB = 52, 53, 54
S_ROT2 = 15
S_KV = [28, 29, 30, 31]
S_T0, S_T1, S_T2, S_T3 = 56, 57, 58, 59
S_CNT = 60
S_QST, S_HST = 61, 62
S_T4 = 63
S_TAB = 64
S_WO = 20
S_BT = [4, 5, 6, 7, 22, 23, 24]
S_BO = [12, 13, 55, 63]
SRD_W2, SRD_WO = 48, 36
S_OFL = 25
S_AT = [28, 29, 30, 31, 32, 33, 34, 35, 53]
S_RBL = 8
S_SPARE = 9
S_BM = 14
S_PFS, S_PFB = 9, 94
S_QFL, S_HFL, S_OST, S_B3 = 61, 62, 18, 19
S_PST, S_PFL = 12, 13
S_R, S_C = 98, 99
S_J, S_PAR = 100, 101

def sr(b, n=2): return f"s[{b}:{b+n-1}]"
def vr(b, n): return f"v[{b}:{b+n-1}]" if n > 1 else f"v{b}"
def ar(b, n): return f"a[{b}:{b+n-1}]"

V_LANE = 1
V_L16, V_L16H = 2, 3
V_FLAGOFF = 4
V_TAG = 6
V_POLL = 8
V_PA = 10
V_T = 11
V_BA = 216
V_AA = 220
L_G = 222
L_RW = 224
L_RR = 227
L_OA = 228
V_PO, V_PH = 229, 231
V_BR = [[232, 233], [0, 230]]
V_PD = 8
L_BA = 234
V_DUM = 235
V_L128 = 230
V_PFO = 243
V_IT = 236
V_ST = 255
SC = 'sc1'

class Opt: pass

def mfma(d, a, b, c, areg='v'):
    A = ar(a, 4) if areg == 'a' else vr(a, 4)
    C = '0' if c is None else vr(c, 16)
    B = ar(b[1], 4) if isinstance(b, tuple) else vr(b, 4)
    return f"v_mfma_f32_32x32x16_bf16 {vr(d,16)}, {A}, {B}, {C}"

lab = [0]
def stamp(P, o, name):
    if not o.stamps: return
    if name not in o.stamp_names: o.stamp_names.append(name)
    i = o.stamp_names.index(name)
    P(f"{o.clk} s[96:97]")
    P("s_waitcnt lgkmcnt(0)")
    P(f"v_writelane_b32 v{V_ST}, s96, {i}")

def stamp_flush(P, o):
    if not o.stamps: return
    if o.diag is not None:
        i, j, K = o.diag
        lab[0] += 1
        o.fix.append((lab[0], i, j))
        P(f"v_readlane_b32 s{S_T0}, v{V_ST}, DIAG_I")
        P(f"v_readlane_b32 s{S_T1}, v{V_ST}, DIAG_J")
        P("s_nop 4")
        P(f"s_sub_u32 s{S_T0}, s{S_T1}, s{S_T0}")
        P(f"s_mul_i32 s{S_T0}, s{S_T0}, {K}")
        P(f"s_min_u32 s{S_T0}, s{S_T0}, 20000")
        P(f"s_cmp_eq_u32 s{S_SPARE}, 1")
        P(f"s_cselect_b32 s{S_T0}, 0, s{S_T0}")
        P("s_memrealtime s[96:97]")
        P("s_waitcnt lgkmcnt(0)")
        P(f"s_mov_b32 s{S_T1}, s96")
        P(f"L_dg{lab[0]}:")
        P("s_memrealtime s[96:97]")
        P("s_waitcnt lgkmcnt(0)")
        P(f"s_sub_u32 s{S_T2}, s96, s{S_T1}")
        P(f"s_cmp_lt_u32 s{S_T2}, s{S_T0}")
        P(f"s_cbranch_scc1 L_dg{lab[0]}")
        return
    P("s_waitcnt vmcnt(0)")
    P(f"s_lshl_b32 s{S_T0}, s2, 2")
    P(f"s_add_u32 s{S_T0}, s{S_T0}, s{S_WAVE}")
    P(f"s_lshl_b32 s{S_T0}, s{S_T0}, 8")
    P(f"s_add_u32 s{S_T0}, s{S_T0}, {STAMP_OFF}")
    P(f"s_mov_b32 s{SRD_WS+2}, {STAMP_OFF + 0x100000}")
    P(f"v_lshlrev_b32 v{V_T}, 2, v{V_LANE}")
    P(f"buffer_store_dword v{V_ST}, v{V_T}, {sr(SRD_WS,4)}, s{S_T0} offen")

def setup(P, o, end_label):
    if o.stamps: P(f"{o.clk} s[92:93]")
    P(f"s_load_dwordx2 {sr(SRD_X)}, s[0:1], 0")
    P(f"s_load_dwordx2 {sr(SRD_WQ)}, s[0:1], 8")
    P(f"s_load_dwordx2 {sr(SRD_W1)}, s[0:1], 32")
    P(f"s_load_dwordx8 s[12:19], s[0:1], 40")
    P(f"s_load_dwordx2 {sr(SRD_WS)}, s[0:1], 88")
    P(f"s_load_dwordx2 {sr(SRD_OUT)}, s[0:1], 72")
    P(f"s_load_dwordx2 {sr(S_WO)}, s[0:1], 16")
    P("s_cmpk_ge_u32 s2, 256")
    P(f"s_cbranch_scc1 {end_label}")
    if o.cpf == 1: code_prefetch(P, o)
    P(f"v_lshrrev_b32 v5, 6, v0")
    P(f"v_and_b32 v{V_LANE}, 63, v0")
    P(f"v_readfirstlane_b32 s{S_WAVE}, v5")
    P(f"s_and_b32 s{S_XCD}, s2, 7")
    P(f"s_lshr_b32 s{S_SLOT}, s2, 3")
    P(f"s_lshr_b32 s{S_RBL}, s2, 6")
    P(f"s_and_b32 s{S_C}, s{S_SLOT}, 7")
    P(f"s_mov_b32 s{SRD_X+3}, 0x20000")
    P(f"s_mov_b32 s{SRD_X+2}, {2048*896}")

def stream_pf(P, o, which):
    P(f"s_lshl2_add_u32 s{S_T0}, s2, s{S_WAVE}")
    P(f"s_lshl_b32 s{S_T0}, s{S_T0}, 10")
    P(f"s_add_u32 s{S_T1}, s{S_T0}, 0x100000")
    P(f"v_lshlrev_b32 v{V_L16}, 4, v{V_LANE}")
    for i, d in enumerate(which):
        P(f"buffer_load_dwordx4 {ar(8*i,4)}, v{V_L16}, {sr(d,4)}, s{S_T0} offen", tag='spf')
        P(f"buffer_load_dwordx4 {ar(8*i+4,4)}, v{V_L16}, {sr(d,4)}, s{S_T1} offen", tag='spf')

def warm_touch(P, blk, dst, tb):
    P(f"s_mul_i32 s{tb}, s{S_XCD}, 31")
    P(f"s_min_u32 s{blk}, s{blk}, 244")
    P(f"s_add_u32 s{blk}, s{blk}, s{tb}")
    P(f"s_sub_u32 s{tb}, s{blk}, 245")
    P(f"s_cselect_b32 s{blk}, s{blk}, s{tb}")
    P(f"s_sub_u32 s{tb}, s{blk}, 196")
    P(f"s_cselect_b32 s{blk}, s{blk}, s{tb}")
    P(f"s_cselect_b64 {sr(tb)}, {sr(S_W2)}, {sr(S_WO)}")
    P(f"s_lshl_b32 s{blk}, s{blk}, 13")
    P(f"s_add_u32 s{tb}, s{tb}, s{blk}")
    P(f"s_addc_u32 s{tb+1}, s{tb+1}, 0")
    P(f"global_load_dword v{dst}, v{V_L128}, {sr(tb)}", tag='warm')

def code_prefetch(P, o):
    P(f"s_getpc_b64 s[{S_T0}:{S_T1}]")
    P(f"v_lshlrev_b32 v{V_T}, 7, v0")
    P(f"v_min_u32 v{V_T}, {o.code_bytes - 128}, v{V_T}")
    P(f"global_load_dword v{V_DUM}, v{V_T}, s[{S_T0}:{S_T1}]", tag='pf')

WSB = [0]
def srd_rest(P, regs):
    for d, size in regs:
        if d == SRD_WS and WSB[0]:
            P(f"s_add_u32 s{d}, s{d}, {WSB[0]}")
            P(f"s_addc_u32 s{d+1}, s{d+1}, 0")
        P(f"s_mov_b32 s{d+2}, {size}")
        P(f"s_mov_b32 s{d+3}, s{SRD_X+3}")

def tlb_touch(P, o, late):
    if not o.touch: return
    if not late:
        for p, d in ((SRD_W1, 100), (SRD_WQ, 101), (S_B1, 26), (SRD_WS, 27)): P(f"s_load_dword s{d}, {sr(p)}, 0")
        return
    for p, d in ((S_W2, 6), (S_BT[0], 7), (SRD_OUT, 20), (S_B2, 21)): P(f"s_load_dword s{d}, {sr(p)}, 0")
    P(f"s_and_b32 s{S_T2}, s{S_SLOT}, 7")
    P(f"s_add_u32 s{S_T2}, s{S_T2}, 1")
    P(f"s_lshl_b32 s{S_T2}, s{S_T2}, 21")
    P(f"s_load_dword s{S_CNT}, {sr(SRD_WS)}, s{S_T2}")

def common2(P, o):
    P(f"v_lshlrev_b32 v{V_L16}, 4, v{V_LANE}")
    P(f"v_cmp_eq_u32 vcc, 0, v{V_LANE}")
    P(f"v_mov_b32 v5, 0x7fff0000")
    P(f"v_add_u32 v{V_L16H}, 0x1000, v{V_L16}")
    P(f"v_lshlrev_b32 v{V_L128}, 7, v{V_LANE}")
    P(f"v_cndmask_b32_e64 v{V_FLAGOFF}, v5, 0, vcc")
    P(f"s_lshl_b32 s{S_R}, s{S_XCD}, 2")
    P(f"s_add_u32 s{S_R}, s{S_R}, s{S_RBL}")

def rot_calc(P, dst, ka, kb, kc):
    P(f"s_mul_i32 s{S_T2}, s{S_RBL}, {kb}")
    P(f"s_mul_i32 s{dst}, s{S_C}, {ka}")
    P(f"s_add_u32 s{dst}, s{dst}, s{S_T2}")
    P(f"s_mul_i32 s{S_T2}, s{S_XCD}, {kc}")
    P(f"s_add_u32 s{dst}, s{dst}, s{S_T2}")
    P(f"s_mul_i32 s{S_T2}, s{dst}, 37")
    P(f"s_lshr_b32 s{S_T2}, s{S_T2}, 8")
    P(f"s_mul_i32 s{S_T2}, s{S_T2}, 7")
    P(f"s_sub_u32 s{dst}, s{dst}, s{S_T2}")

def make_tag(P, o):
    P("s_waitcnt lgkmcnt(0)")
    P(f"s_mul_i32 s{S_TAG}, s{S_TAG}, 0x9e3779b1")
    P(f"s_add_u32 s{S_TAG}, s{S_TAG}, 0x7f4a7c15")
    P(f"s_xor_b32 s{S_TAG+1}, s{S_TAG}, 0x5bd1e995")
    P(f"v_mov_b32 v{V_TAG}, s{S_TAG}")
    P(f"v_mov_b32 v{V_TAG+1}, s{S_TAG+1}")

def make_tag_v():
    return [f"v_readfirstlane_b32 s{S_TAG}, v{V_TAG}",
            f"s_mul_i32 s{S_TAG}, s{S_TAG}, 0x9e3779b1",
            f"s_add_u32 s{S_TAG}, s{S_TAG}, 0x7f4a7c15",
            f"s_xor_b32 s{S_TAG+1}, s{S_TAG}, 0x5bd1e995",
            f"v_mov_b32 v{V_TAG}, s{S_TAG}",
            f"v_mov_b32 v{V_TAG+1}, s{S_TAG+1}"]

def poll(P, o, addr_v, limit=4000):
    lab[0] += 1
    L = f"L_poll{lab[0]}"
    P(f"s_mov_b32 s{S_CNT}, {limit}")
    P(f"{L}:")
    P(f"buffer_load_dwordx2 {vr(V_POLL,2)}, v{addr_v}, {sr(SRD_WS,4)}, 0 offen sc1")
    P(f"s_sub_u32 s{S_CNT}, s{S_CNT}, 1")
    P("s_waitcnt vmcnt(0)")
    P(f"v_cmp_ne_u64 vcc, {sr(S_TAG)}, {vr(V_POLL,2)}")
    P(f"s_cbranch_scc1 {L}_x")
    P(f"s_cbranch_vccnz {L}")
    P(f"{L}_x:")

slow_paths = []
def poll_issue(addr_v, dst):
    return [f"buffer_load_dwordx2 {vr(dst,2)}, v{addr_v}, {sr(SRD_WS,4)}, 0 offen sc1"]
def poll_check(addr_v, dst, limit=4000):
    lab[0] += 1
    L = f"L_pc{lab[0]}"
    slow_paths.append(f"""{L}_slow:
s_mov_b32 s{S_CNT}, {limit}
{L}_loop:
buffer_load_dwordx2 {vr(dst,2)}, v{addr_v}, {sr(SRD_WS,4)}, 0 offen sc1
s_sub_u32 s{S_CNT}, s{S_CNT}, 1
s_waitcnt vmcnt(0)
v_cmp_ne_u64 vcc, {sr(S_TAG)}, {vr(dst,2)}
s_cbranch_scc1 {L}_back
s_cbranch_vccnz {L}_loop
s_branch {L}_back""")
    return [f"v_cmp_ne_u64 vcc, {sr(S_TAG)}, {vr(dst,2)}\ns_cbranch_vccnz {L}_slow\n{L}_back:"]

def flag_store(soff):
    return [f"buffer_store_dwordx2 {vr(V_TAG,2)}, v{V_FLAGOFF}, {sr(SRD_WS,4)}, s{soff} offen sc1"]

ACC_Q, ACC_F = 16, 64
FR = 128
V_XD, V_QD, V_FD = 192, 196, 199
V_XR, V_QR, V_FRD = 203, 207, 208
V_CA, V_CB = 212, 214
GT = 128

def s1_dma(c_slot, ci):
    L = []
    tagn = f'dma{ci}'
    L.append([f"s_mov_b32 m0, s{S_TAB+21+c_slot}"])
    for i in range(4):
        L.append([(f"buffer_load_dwordx4 v{V_XD+i}, {sr(SRD_X,4)}, s{S_TAB+ci} offen offset:{i*1024} lds", tagn)])
    L.append([f"s_mov_b32 m0, s{S_TAB+24+c_slot}"])
    for i in range(3):
        L.append([(f"buffer_load_dwordx4 v{V_QD+i}, {sr(SRD_WQ,4)}, s{S_TAB+7+ci} offen offset:{i*1024} lds", tagn)])
    L.append([f"s_mov_b32 m0, s{S_TAB+27+c_slot}"])
    for i in range(4):
        L.append([(f"buffer_load_dwordx4 v{V_FD+i}, {sr(SRD_W1,4)}, s{S_TAB+14+ci} offen offset:{i*1024} lds", tagn)])
    return L

def s1_reads(slot, s, fset):
    base = FR + 32 * fset
    hi, so = (33, 0) if slot == 2 else (0, slot * LX_SLOT)
    L = [f"ds_read_b128 {vr(base,4)}, v{V_XR+s+hi} offset:{so}"]
    for t in range(7):
        for rho in range(2):
            d = base + 4 + 4 * t + 2 * rho
            if t < 3:
                L.append(f"ds_read_b64_tr_b16 {vr(d,2)}, v{V_QR+hi} offset:{so + (16*s+4*rho)*192 + t*64}")
            else:
                L.append(f"ds_read_b64_tr_b16 {vr(d,2)}, v{V_FRD+t-3+hi} offset:{so + (16*s+4*rho)*256}")
    return L

def s1_tab(P, o, i):
    if o.ncls == 1:
        P(f"s_mov_b32 s{S_TAB+i}, {i*128}")
        P(f"s_mov_b32 s{S_TAB+7+i}, {i*64*2688}")
        P(f"s_mov_b32 s{S_TAB+14+i}, {i*64*3584}")
        return
    if i > 0:
        P(f"s_add_u32 s{S_T4}, s{S_T4}, 1")
        P(f"s_cmp_eq_u32 s{S_T4}, 7")
        P(f"s_cselect_b32 s{S_T4}, 0, s{S_T4}")
    P(f"s_lshl_b32 s{S_TAB+i}, s{S_T4}, 7")
    P(f"s_mul_i32 s{S_TAB+7+i}, s{S_T4}, {64*2688}")
    P(f"s_mul_i32 s{S_TAB+14+i}, s{S_T4}, {64*3584}")

def s1_m0tab(P, k):
    P(f"s_add_u32 s{S_TAB+21+k}, s{S_T0}, {LX + k*LX_SLOT}")
    P(f"s_add_u32 s{S_TAB+24+k}, s{S_T1}, {LQ + k*LQ_SLOT}")
    P(f"s_add_u32 s{S_TAB+27+k}, s{S_T0}, {LF + k*LF_SLOT}")

def s1_x_addr(P, o):
    T = V_T
    P(f"s_and_b32 s{S_RB}, s{S_XCD}, 3")
    P(f"s_lshl2_add_u32 s{S_RB}, s{S_RB}, s{S_RBL}")
    P(f"s_lshl2_add_u32 s{S_TB}, s{S_RB}, s{S_WAVE}")
    P(f"v_lshrrev_b32 v{T}, 3, v{V_LANE}")
    P(f"v_and_b32 v{T+1}, 7, v{V_LANE}")
    P(f"v_lshrrev_b32 v{T+2}, 4, v{V_LANE}")
    P(f"s_lshl_b32 s{S_T2}, s{S_TB}, 5")
    P(f"v_add_u32 v{T}, s{S_T2}, v{T}")
    P(f"v_mul_u32_u24 v{T}, 896, v{T}")
    P(f"v_xor_b32 v{T+1}, v{T+2}, v{T+1}")
    P(f"v_lshl_add_u32 v{V_XD}, v{T+1}, 4, v{T}")
    P(f"v_xor_b32 v{V_XD+1}, 64, v{V_XD}")
    P(f"s_lshl_b32 s{S_TAB+21}, s{S_WAVE}, 12")
    P(f"v_add_u32 v{V_XD+2}, {2*(8*896-1024)}, v{V_XD}")
    P(f"v_add_u32 v{V_XD+3}, {3*(8*896-1024)}, v{V_XD+1}")
    P(f"v_add_u32 v{V_XD+1}, {1*(8*896-1024)}, v{V_XD+1}")

def s1_w1_addr(P, o):
    T = V_T
    P(f"s_lshr_b32 s{S_B}, s{S_XCD}, 2")
    P(f"s_mul_i32 s{S_B}, s{S_B}, 7")
    P(f"s_add_u32 s{S_B}, s{S_B}, s{S_C}")
    P(f"v_lshlrev_b32 v{T+1}, 2, v{T+2}")
    P(f"v_xor_b32 v{T+1}, v{T+1}, v{V_LANE}")
    P(f"v_and_b32 v{T+1}, 15, v{T+1}")
    P(f"s_lshl_b32 s{S_T2}, s{S_WAVE}, 4")
    P(f"v_add_u32 v{T}, s{S_T2}, v{T+2}")
    P(f"v_mul_u32_u24 v{T}, 3584, v{T}")
    P(f"s_lshl_b32 s{S_T3}, s{S_B}, 8")
    P(f"v_lshl_add_u32 v{T}, v{T+1}, 4, v{T}")
    P(f"v_add_u32 v{V_FD}, s{S_T3}, v{T}")
    for i in range(1, 4):
        P(f"v_add_u32 v{V_FD+i}, {i*(4*3584-1024)}, v{V_FD}")
    P(f"v_lshl_add_u32 v5, v{V_LANE}, 2, s{S_T3}")
    P(f"s_add_u32 s{S_TAB+27}, s{S_TAB+21}, {LF}")
    srd_rest(P, [(SRD_W1, 448*3584)])

def s1_wq_addr(P, o):
    T = V_T
    P(f"s_mul_i32 s{S_T2}, s{S_WAVE}, 192")
    P(f"s_mul_i32 s{S_T3}, s{S_B}, 192")
    P(f"v_add_u32 v{T}, s{S_T2}, v{V_LANE}")
    P(f"v_lshl_add_u32 v{T+2}, v{T}, 4, s{S_T3}")
    P(f"v_mul_u32_u24 v{T}, 0xaaab, v{T}")
    P(f"s_movk_i32 s{S_T3}, 2496")
    for i in range(3):
        if i: P(f"v_add_u32 v{T}, {64*0xaaab}, v{T}")
        P(f"v_lshrrev_b32 v{T+1}, 19, v{T}")
        P(f"v_mad_u32_u24 v{V_QD+i}, v{T+1}, s{S_T3}, v{T+2}")
    P(f"s_lshl_b32 s{S_T2}, s{S_T2}, 4")
    P(f"s_add_u32 s{S_TAB+24}, s{S_T2}, {LQ}")
    srd_rest(P, [(SRD_WQ, 448*2688)])

def l2pf_setup(P, o):
    T = V_T
    P(f"s_cmp_ge_u32 s{S_WAVE}, 2")
    P("s_cbranch_scc1 L_pf_x")
    P(f"s_cmp_eq_u32 s{S_WAVE}, 0")
    P(f"s_cselect_b64 {sr(S_PFB)}, {sr(SRD_WQ)}, {sr(SRD_W1)}")
    P(f"s_movk_i32 s{S_T2}, 3584")
    P(f"s_cselect_b32 s{S_T2}, 2688, s{S_T2}")
    P(f"s_cselect_b32 s{S_T3}, 3, 4")
    P(f"s_mul_i32 s{S_T3}, s{S_T3}, s{S_B}")
    P(f"s_lshl_b32 s{S_T3}, s{S_T3}, 6")
    P(f"s_and_b32 s{S_T3}, s{S_T3}, 0xffffff80")
    P(f"s_lshl_b32 s{S_PFS}, s{S_T2}, 6")
    P(f"v_bfe_u32 v{T}, v{V_LANE}, 1, 4")
    P(f"s_lshl_b32 s{S_T1}, s{S_RBL}, 4")
    P(f"v_add_u32 v{T}, s{S_T1}, v{T}")
    P(f"v_mul_u32_u24 v{T}, s{S_T2}, v{T}")
    P(f"v_and_b32 v{T+1}, 1, v{V_LANE}")
    P(f"v_lshl_add_u32 v{T}, v{T+1}, 7, v{T}")
    P(f"v_add_u32 v{V_PFO}, s{S_T3}, v{T}")
    P("s_branch L_pf_j")
    P("L_pf_x:")
    P(f"s_mov_b64 {sr(S_PFB)}, {sr(SRD_X)}")
    P(f"s_movk_i32 s{S_PFS}, 128")
    P(f"v_min_u32 v{T}, 18, v{V_LANE}")
    P(f"s_mul_i32 s{S_T2}, s{S_C}, 19")
    P(f"v_add_u32 v{T}, s{S_T2}, v{T}")
    P(f"v_min_u32 v{T}, 127, v{T}")
    P(f"s_lshl_b32 s{S_T2}, s{S_RB}, 7")
    P(f"v_add_u32 v{T}, s{S_T2}, v{T}")
    P(f"v_mul_u32_u24 v{V_PFO}, 896, v{T}")
    P("L_pf_j:")

def l2pf(k):
    return [[f"s_add_u32 s{S_PFB}, s{S_PFB}, s{S_PFS}", f"s_addc_u32 s{S_PFB+1}, s{S_PFB+1}, 0"],
            [f"global_load_dword v{243+k}, v{V_PFO}, {sr(S_PFB)}"]]

def stage1_setup2(P, o):
    T = V_T
    P(f"s_lshl_b32 s{S_T0}, s{S_WAVE}, 12")
    P(f"s_mul_i32 s{S_T1}, s{S_WAVE}, 3072")
    s1_m0tab(P, 1); s1_m0tab(P, 2)
    for i in range(1, 3): s1_tab(P, o, i)
    P(f"v_and_b32 v{T}, 31, v{V_LANE}")
    P(f"v_lshrrev_b32 v{T+1}, 5, v{V_LANE}")
    P(f"v_bfe_u32 v{T+2}, v{V_LANE}, 1, 3")
    P(f"v_xor_b32 v{T+2}, v{T+2}, v{T+1}")
    P(f"v_lshl_add_u32 v{T}, v{T}, 7, s{S_T0}")
    for s in range(4):
        P(f"v_xor_b32 v{T+3}, {2*s}, v{T+2}")
        P(f"v_lshl_add_u32 v{V_XR+s}, v{T+3}, 4, v{T}")
    P(f"v_bfe_u32 v{T}, v{V_LANE}, 2, 2")
    P(f"v_lshl_add_u32 v{T+1}, v{T+1}, 3, v{T}")
    P(f"v_bfe_u32 v{T+2}, v{V_LANE}, 4, 1")
    P(f"v_lshlrev_b32 v{T+2}, 5, v{T+2}")
    P(f"v_and_b32 v{T+3}, 3, v{V_LANE}")
    P(f"v_lshl_add_u32 v{T+2}, v{T+3}, 3, v{T+2}")
    P(f"v_mul_u32_u24 v{T+3}, 192, v{T+1}")
    P(f"v_add_u32 v{T+3}, {LQ}, v{T+3}")
    P(f"v_add_u32 v{V_QR}, v{T+3}, v{T+2}")
    P(f"v_lshl_add_u32 v{T+2}, v{T+1}, 8, v{T+2}")
    P(f"v_add_u32 v{T+2}, {LF}, v{T+2}")
    for c in range(4):
        P(f"v_xor_b32 v{T+3}, {c}, v{T}")
        P(f"v_lshl_add_u32 v{V_FRD+c}, v{T+3}, 6, v{T+2}")

def stage1_setup3(P, o):
    for i in range(9): P(f"v_add_u32 v{V_XR+33+i}, {2*LX_SLOT}, v{V_XR+i}")
    for i in range(3, 7): s1_tab(P, o, i)
    srd_rest(P, [(SRD_WS, WS_SIZE), (SRD_OUT, 2048*896)])
    A = -2.0 * math.sqrt(2.0 / math.pi) * 0.044715 * math.log2(math.e)
    B = -2.0 * math.sqrt(2.0 / math.pi) * math.log2(math.e)
    P(f"v_mov_b32 v{V_CA}, {hex(f2u(A))}")
    P(f"v_mov_b32 v{V_CB}, {hex(f2u(B))}")
    P(f"s_mul_i32 s{S_QST}, s{S_TB}, {QKV_TB}")
    P(f"s_mul_i32 s{S_T0}, s{S_B}, {3*2048}")
    P(f"s_add_u32 s{S_QST}, s{S_QST}, s{S_T0}")
    P(f"s_add_u32 s{S_QST}, s{S_QST}, {QKV_OFF}")
    P(f"s_mul_i32 s{S_HST}, s{S_TB}, {A_TB}")
    P(f"s_lshl_b32 s{S_T0}, s{S_B}, 13")
    P(f"s_add_u32 s{S_HST}, s{S_HST}, s{S_T0}")
    P(f"s_add_u32 s{S_HST}, s{S_HST}, {A_OFF}")

def bias_expand(P, src_v, tmp, addr):
    P(f"v_lshlrev_b32 v{tmp}, 16, v{src_v}")
    P(f"v_and_b32 v{tmp+1}, 0xffff0000, v{src_v}")
    P(f"s_lshl_b32 s{S_T0}, s{S_WAVE}, 9")
    P(f"s_add_u32 s{S_T0}, s{S_T0}, {LBIAS}")
    P(f"v_lshl_add_u32 v{tmp+2}, v{V_LANE}, 3, s{S_T0}")
    P(f"ds_write_b64 v{tmp+2}, {vr(tmp,2)}")
    P(f"v_lshrrev_b32 v{addr}, 5, v{V_LANE}")
    P(f"v_lshl_add_u32 v{addr}, v{addr}, 4, s{S_T0}")

def b_dma(p):
    L = [[f"s_add_u32 m0, s{S_BM}, {LPIECE[p % 6]}"]]
    if p < 14:
        so, sd = S_BT[p >> 1], SRD_W2
        if p & 1:
            L[0].append(f"s_add_u32 s{so}, s{so}, {32*896}")
    else: so, sd = S_BO[p - 14], SRD_WO
    for i in range(4):
        L.append([(f"buffer_load_dwordx4 v{V_BA+i}, {sr(sd,4)}, s{so} offen offset:{i*1024} lds", f'b{p//6}')])
    return L

def breg(n, ctl):
    return 4 * (2 * (n if n < 24 else n - 24) + ctl)

def b_reads(n):
    pc = LPIECE[(n % 12) >> 1]
    hi, so = (1, pc - 114688) if pc >= 114688 else (0, pc - 49152)
    return [f"ds_read_b64_tr_b16 {ar(breg(n, ctl)+2*rho,2)}, v{V_BR[hi][ctl]} offset:{so + (n & 1)*2048 + rho*1024}" for ctl in range(2) for rho in range(2)]

def stage1(P, o, hooks):
    if o.ncls in (2, 4):
        P(f"s_add_u32 s{S_T4}, s{S_C}, s{S_RBL}")
        P(f"s_and_b32 s{S_T4}, s{S_T4}, {o.ncls - 1}")
        P(f"s_mul_i32 s{S_T4}, s{S_T4}, {o.cstep}")
    elif o.ncls == 3:
        P(f"s_add_u32 s{S_T4}, s{S_C}, s{S_RBL}")
        P(f"s_lshl_b32 s{S_T4}, s{S_T4}, 1")
        P(f"s_lshr_b32 s{S_T4}, 0x24924, s{S_T4}")
        P(f"s_and_b32 s{S_T4}, s{S_T4}, 3")
        P(f"s_mul_i32 s{S_T4}, s{S_T4}, {o.cstep}")
    elif o.ncls == 7: rot_calc(P, S_T4, 1, 2, 1)
    if o.ncls > 1: s1_tab(P, o, 0)
    s1_x_addr(P, o)
    if o.stamps: P(f"{o.clk} s[76:77]")
    P(f"s_mov_b32 m0, s{S_TAB+21}")
    P("s_waitcnt lgkmcnt(0)")
    if o.stamps:
        o.stamp_names += ['entry', 'pre_karg', 'karg', 'dma1st', 'dma5th']
        P(f"{o.clk} s[74:75]")
    tlb_touch(P, o, False)
    if o.spf == 1:
        srd_rest(P, [(SRD_W1, 448*3584), (SRD_WQ, 448*2688)])
        stream_pf(P, o, (SRD_X, SRD_W1, SRD_WQ))
    d0 = [[(x[0].replace(f"s{S_TAB}", "0").replace(f"s{S_TAB+7}", "0").replace(f"s{S_TAB+14}", "0"), x[1]) if isinstance(x, tuple) else x for x in it] for it in s1_dma(0, 0)]
    if o.ncls > 1: d0 = s1_dma(0, 0)
    for it in d0[1:5]: P.add(it)
    if o.stamps: P(f"{o.clk} s[72:73]")
    s1_w1_addr(P, o)
    P(f"global_load_dword v9, v5, {sr(S_B1)}")
    for it in d0[9:14]: P.add(it)
    if o.stamps: P(f"{o.clk} s[68:69]")
    s1_wq_addr(P, o)
    for it in d0[5:9]: P.add(it)
    if o.spf == 2: stream_pf(P, o, (SRD_X, SRD_W1, SRD_WQ))
    if o.cpf == 2: code_prefetch(P, o)
    if o.stamps: P(f"v_mov_b32 v{V_ST}, 0")
    stamp(P, o, 'd0_issued')
    if o.stamps:
        for i, r in enumerate([92, 76, 74, 72, 68]): P(f"v_writelane_b32 v{V_ST}, s{r}, {i}")
    tlb_touch(P, o, True)
    if o.pf:
        l2pf_setup(P, o)
        for it in l2pf(1): P.add(it)
    stage1_setup2(P, o)
    late = [it for c in range(1, 3) for it in s1_dma(c, c)]
    D = Prog(); stage1_setup3(D, o); common2(D, o)
    dl = [[x] for x in D.L]
    for g in range(3): hooks[g] = dl[(g * len(dl)) // 3:((g + 1) * len(dl)) // 3] + hooks.get(g, [])
    hooks[2] += [[f"buffer_load_dword v{V_TAG}, v{V_FLAGOFF}, {sr(SRD_WS,4)}, 0 offen"]]
    for it in late[:o.pre]: P.add(it)
    late = late[o.pre:]
    hooks[o.tag_at] = hooks.get(o.tag_at, []) + [[x] for x in make_tag_v()]
    stamp(P, o, 's1_issued')
    bias_expand(P, 9, 12, 11)
    for F in range(4):
        for q in range(4):
            P(f"ds_read_b128 {vr(ACC_F+16*F+4*q,4)}, v11 offset:{(32*F+8*q)*4}")
    P.wait_vm('dma0')
    P("s_waitcnt lgkmcnt(0)")
    P("s_barrier")
    stamp(P, o, 's1_first')
    P.add(s1_reads(0, 0, 0))
    for c in range(7):
        for s in range(4):
            g = 4 * c + s
            fs = g & 1
            base = FR + 32 * fs
            P("s_waitcnt lgkmcnt(0)")
            if s == 3 and c < 6:
                P.wait_vm(f'dma{c+1}')
                P("s_barrier")
                if o.trunc == 's1': stamp(P, o, f'c{c}')
            M = []
            for t in range(7):
                acc = ACC_Q + 16 * t
                Cin = None if (g == 0 and t < 3) else acc
                M.append([mfma(acc, base + 4 + 4 * t, base, Cin)])
            rd = []
            if g < 27:
                nc, ns = (c, s + 1) if s < 3 else (c + 1, 0)
                rd = s1_reads(nc % 3, ns, fs ^ 1)
            ex = []
            cc, ph = (c, 0) if s == 3 else (c - 1, s + 1)
            if 0 <= cc and cc + 3 < 7:
                d = s1_dma(cc % 3, cc + 3)
                cut = [0, 4, 7, 11, 14]
                ex = d[cut[ph]:cut[ph + 1]]
            first = []
            if g < 3 and late:
                k = -(-len(late) // (3 - g)); first = late[:k]; late = late[k:]
            ex = first + ex + hooks.get(g, [])
            seq = []
            per = [3, 3, 3, 3, 3, 0, 0]
            ri = 0
            flat = ex
            caps = [2, 2, 2, 2, 2, 5, 4] if rd else [5, 5, 5, 5, 5, 5, 4]
            if len(flat) <= 9 and rd: caps = [0, 0, 0, 1, 1, 4, 3] if len(flat) > 4 else [0, 0, 0, 1, 1, 1, 1]
            tot = sum(caps); acc = 0; done = 0
            for t in range(7):
                seq += M[t]
                seq += rd[ri:ri + per[t]]; ri += per[t]
                acc += caps[t]
                upto = (acc * len(flat) + tot // 2) // tot if t < 6 else len(flat)
                for e in flat[done:upto]: seq += e
                done = max(done, upto)
            P.add(seq)
    stamp(P, o, 's1_loop')

def qkv_epilogue(P, o):
    c = (28.0 ** -0.5) * math.log2(math.e)
    P("s_nop 3")
    for t in range(3):
        acc = ACC_Q + 16 * t
        P(f"s_cmp_lt_u32 s{S_B3}, {14 - t}")
        P(f"s_cbranch_scc0 L_nosc{t}")
        P(f"s_mov_b32 s{S_T2}, {hex(f2u(c))}")
        for i in range(8):
            P(f"v_pk_mul_f32 {vr(acc+2*i,2)}, {vr(acc+2*i,2)}, s[{S_T2}:{S_T3}] op_sel_hi:[1,0]")
        P(f"L_nosc{t}:")
        p = GT + 8 * t
        for i in range(8):
            P(f"v_cvt_pk_bf16_f32 v{p+i}, v{acc+2*i}, v{acc+2*i+1}")
        for h in range(2):
            P(f"v_permlane32_swap_b32 v{p+4*h}, v{p+4*h+2}")
            P(f"v_permlane32_swap_b32 v{p+4*h+1}, v{p+4*h+3}")
        for h in range(2):
            off = t * 2048 + h * 1024
            P(f"buffer_store_dwordx4 {vr(p+4*h,4)}, v{V_L16H if off >= 4096 else V_L16}, {sr(SRD_WS,4)}, s{S_QST} offen offset:{off & 4095} {SC}", tag='qst')

def gelu_tile(F):
    u = ACC_F + 16 * F
    t = GT + 32 + 16 * (F & 1)
    L = []
    pr = lambda b, i: vr(b + 2 * i, 2)
    for i in range(8): L.append(f"v_pk_mul_f32 {pr(t,i)}, {pr(u,i)}, {pr(u,i)}")
    for i in range(8): L.append(f"v_pk_fma_f32 {pr(t,i)}, {pr(t,i)}, {vr(V_CA,2)}, {vr(V_CB,2)} op_sel_hi:[1,0,0]")
    for i in range(8): L.append(f"v_pk_mul_f32 {pr(t,i)}, {pr(t,i)}, {pr(u,i)}")
    for i in range(16): L.append(f"v_exp_f32 v{t+i}, v{t+i}")
    for i in range(8): L.append(f"v_pk_add_f32 {pr(t,i)}, {pr(t,i)}, 1.0 op_sel_hi:[1,0]")
    for i in range(16): L.append(f"v_rcp_f32 v{t+i}, v{t+i}")
    for i in range(8): L.append(f"v_pk_mul_f32 {pr(t,i)}, {pr(t,i)}, {pr(u,i)}")
    for i in range(8): L.append(f"v_cvt_pk_bf16_f32 v{u+i}, v{t+2*i}, v{t+2*i+1}")
    for h in range(2):
        off = (2 * F + h) * 1024
        L.append((f"buffer_store_dwordx4 {vr(u+4*h,4)}, v{V_L16H if off >= 4096 else V_L16}, {sr(SRD_WS,4)}, s{S_HST} offen offset:{off & 4095} {SC}", 'hst'))
    return L

def prep(P, o):
    T = V_T
    S_SP = S_R
    if o.stamps: P(f"v_mov_b32 v{V_ST}, 0")
    common2(P, o)
    P("s_waitcnt lgkmcnt(0)")
    srd_rest(P, [(SRD_WS, WS_SIZE), (SRD_OUT, 2048*896)])
    if o.stamps: P(f"v_writelane_b32 v{V_ST}, s92, 0")
    P(f"s_load_dword s{S_TAG}, {sr(SRD_WS)}, {WS_E}")
    if o.spf:
        srd_rest(P, [(SRD_W1, 448*3584), (SRD_WQ, 448*2688)])
        stream_pf(P, o, (SRD_X, SRD_W1, SRD_WQ))
    def touches():
        for i in range(o.wsp):
            P(f"s_lshl2_add_u32 s{S_T4}, s{S_RBL}, s{S_WAVE}")
            P(f"s_add_u32 s{S_T4}, s{S_T4}, {16*i}")
            warm_touch(P, S_T4, 160 + i, S_T0)
    if o.wearly: touches()
    P(f"v_lshrrev_b32 v{T}, 2, v{V_LANE}")
    P(f"s_lshl2_add_u32 s{S_T0}, s{S_SP}, s{S_WAVE}")
    P(f"s_lshl_b32 s{S_T0}, s{S_T0}, 4")
    P(f"v_add_u32 v20, s{S_T0}, v{T}")
    P(f"v_mul_u32_u24 v{T}, 896, v20")
    P(f"v_and_b32 v{T+1}, 3, v{V_LANE}")
    P(f"v_lshlrev_b32 v{T+1}, 4, v{T+1}")
    P(f"v_add_u32 v{T}, v{T}, v{T+1}")
    for i in range(14):
        P(f"buffer_load_dwordx4 {vr(32+4*i,4)}, v{T}, {sr(SRD_X,4)}, 0 offen offset:{64*i}")
        P(f"global_load_dwordx4 {vr(96+4*i,4)}, v{T+1}, {sr(S_GW)} offset:{64*i}")
    make_tag(P, o)
    P("v_mov_b32 v24, 0")
    P("v_mov_b32 v25, 0")
    for i in range(56):
        P(f"v_dot2_f32_bf16 v{24+(i&1)}, v{32+i}, v{96+i}, v{24+(i&1)}")
    P("s_nop 2")
    P("v_add_f32 v24, v24, v25")
    P("v_add_f32_dpp v24, v24, v24 quad_perm:[1,0,3,2] row_mask:0xf bank_mask:0xf")
    P("v_add_f32_dpp v24, v24, v24 quad_perm:[2,3,0,1] row_mask:0xf bank_mask:0xf")
    P(f"v_mul_f32 v24, {hex(f2u(-math.log2(math.e)))}, v24")
    P("v_exp_f32 v24, v24")
    P("v_add_f32 v24, 1.0, v24")
    P("v_rcp_f32 v24, v24")
    P(f"v_lshlrev_b32 v20, 2, v20")
    P(f"v_and_b32 v25, 3, v{V_LANE}")
    P(f"v_cmp_eq_u32 vcc, 0, v25")
    P(f"v_mov_b32 v27, 0x7fff0000")
    P(f"v_cndmask_b32 v20, v27, v20, vcc")
    P(f"s_mov_b32 s{S_T0}, {G_OFF}")
    P(f"buffer_store_dword v24, v20, {sr(SRD_WS,4)}, s{S_T0} offen {SC}")
    P("s_waitcnt vmcnt(0) lgkmcnt(0)")
    P("s_barrier")
    P(f"s_lshl_b32 s{S_T0}, s{S_SP}, 7")
    P(f"s_add_u32 s{S_T0}, s{S_T0}, {FL_G}")
    P(f"s_cmp_eq_u32 s{S_WAVE}, 0")
    P("s_cbranch_scc0 L_prep_nf")
    P.add(flag_store(S_T0))
    P("L_prep_nf:")
    stamp(P, o, 'p_flag')
    if not o.wearly: touches()
    P("s_waitcnt vmcnt(0)")
    stamp(P, o, 'p_warm')

AQ = 16
AK = 24
AV = 40
AS = 56
AN = 104
AO = 120
AP = 136
AM = 236
A_KR, A_VR = 244, 245
A_KD, A_VD = 247, 248
A_PA, A_PV = 250, 251
A_G = 254
A_MX = 5

def att_scalars(P, o):
    P(f"s_and_b32 s{S_RB}, s{S_SLOT}, 15")
    P(f"s_lshr_b32 s{S_J}, s{S_SLOT}, 4")
    P(f"s_lshl_b32 s{S_T0}, s{S_XCD}, 1")
    P(f"s_add_u32 s{S_J}, s{S_J}, s{S_T0}")
    P(f"s_lshl_b32 s{S_TB}, s{S_RB}, 2")
    P(f"s_add_u32 s{S_TB}, s{S_TB}, s{S_WAVE}")
    P(f"s_and_b32 s{S_PAR}, s{S_J}, 1")
    P(f"s_lshl_b32 s{S_T0}, s{S_TB}, 4")
    P(f"s_add_u32 s{S_T0}, s{S_T0}, s{S_J}")
    P(f"s_lshl_b32 s{S_T0}, s{S_T0}, 7")
    P(f"s_add_u32 s{S_OFL}, s{S_T0}, {FL_O}")

def att_poll_addr(P, o):
    T = V_T
    P(f"v_min_u32 v{T}, 13, v{V_LANE}")
    P(f"v_lshrrev_b32 v{T+1}, 1, v{T}")
    P(f"v_and_b32 v{T}, 1, v{T}")
    P(f"s_mul_i32 s{S_T0}, s{S_J}, 7")
    P(f"s_lshr_b32 s{S_T0}, s{S_T0}, 1")
    P(f"s_lshl_b32 s{S_T0}, s{S_T0}, 3")
    P(f"v_mad_u32_u24 v{T}, v{T}, 31, s{S_T0}")
    P(f"v_cmp_gt_u32 vcc, 3, v{T+1}")
    P(f"v_mov_b32 v{T+2}, 896")
    P(f"v_mov_b32 v{T+3}, 448")
    P(f"v_cndmask_b32 v{T+2}, v{T+2}, v{T+3}, vcc")
    P(f"v_subrev_u32 v{T+3}, 3, v{T+1}")
    P(f"v_cndmask_b32 v{T+3}, v{T+3}, v{T+1}, vcc")
    P(f"v_cmp_eq_u32 vcc, 6, v{T+1}")
    P(f"s_mul_i32 s{S_T1}, s{S_WAVE}, 3")
    P(f"s_lshl_b32 s{S_T2}, s{S_RB}, 2")
    P(f"s_add_u32 s{S_T1}, s{S_T1}, s{S_T2}")
    P(f"s_sub_u32 s{S_T1}, s{S_T1}, 8")
    P(f"v_cndmask_b32_e64 v{T+2}, v{T+2}, 0, vcc")
    P(f"v_add_u32 v{T}, v{T}, v{T+2}")
    P(f"v_mul_u32_u24 v{T}, 683, v{T}")
    P(f"v_lshrrev_b32 v{T}, 16, v{T}")
    P(f"v_add_u32 v{T+3}, s{S_T1}, v{T+3}")
    P(f"v_max_i32 v{T+3}, 0, v{T+3}")
    P(f"v_mov_b32 v{T+2}, s{S_TB}")
    P(f"v_cndmask_b32 v{T+3}, v{T+3}, v{T+2}, vcc")
    P(f"v_lshl_add_u32 v{T}, v{T+3}, 4, v{T}")
    P(f"v_lshlrev_b32 v{T}, 7, v{T}")
    P(f"v_add_u32 v{V_PA}, {FL_QKV}, v{T}")
    P(f"s_lshr_b32 s{S_T0}, s{S_TB}, 1")
    P(f"s_lshl_b32 s{S_T0}, s{S_T0}, 7")
    P(f"s_add_u32 s{S_T0}, s{S_T0}, {FL_G}")
    P(f"s_lshl_b32 s{S_T1}, s{S_R}, 7")
    P(f"s_add_u32 s{S_T1}, s{S_T1}, {FL_G}")
    P(f"v_writelane_b32 v{V_PA}, s{S_T0}, 14")
    P(f"v_writelane_b32 v{V_PA}, s{S_T1}, 15")

def att_addr(P, o):
    T = V_T
    P(f"s_mul_i32 s{S_T0}, s{S_J}, 7")
    P(f"s_lshr_b32 s{S_T0}, s{S_T0}, 1")
    P(f"s_lshl_b32 s{S_T4}, s{S_T0}, 9")
    P(f"s_add_u32 s{S_T1}, s{S_T4}, {56*512}")
    P(f"v_add_u32 v{A_KD}, s{S_T1}, v{V_L16}")
    P(f"v_lshrrev_b32 v{T}, 5, v{V_LANE}")
    P(f"v_and_b32 v{T+1}, 31, v{V_LANE}")
    P(f"s_add_u32 s{S_T1}, s{S_T4}, {112*512 - 2048}")
    for t in range(2):
        P(f"v_lshlrev_b32 v{T+2}, 2, v{T}")
        P(f"v_xor_b32 v{T+2}, v{T+2}, v{T+1}")
        if t: P(f"v_xor_b32 v{T+2}, 8, v{T+2}")
        P(f"v_lshlrev_b32 v{T+2}, 4, v{T+2}")
        P(f"v_lshl_add_u32 v{T+2}, v{T}, 9, v{T+2}")
        P(f"v_add_u32 v{A_VD+t}, s{S_T1}, v{T+2}")
    P(f"s_mul_i32 s{S_T1}, s{S_WAVE}, 3")
    P(f"s_lshl_b32 s{S_T2}, s{S_RB}, 2")
    P(f"s_add_u32 s{S_T1}, s{S_T1}, s{S_T2}")
    for k in range(3):
        P(f"s_add_i32 s{S_T2}, s{S_T1}, {k-8}")
        P(f"s_max_i32 s{S_T2}, s{S_T2}, 0")
        P(f"s_mul_i32 s{S_T2}, s{S_T2}, {QKV_TB}")
        P(f"s_add_u32 s{S_KV[k]}, s{S_T2}, {QKV_OFF}")
    P(f"s_mul_i32 s{S_T2}, s{S_TB}, {QKV_TB}")
    P(f"s_add_u32 s{S_T2}, s{S_T2}, s{S_T4}")
    P(f"s_add_u32 s{S_KV[3]}, s{S_T2}, {QKV_OFF}")
    P(f"s_mul_i32 s{S_T2}, s{S_TB}, {A_TB}")
    P(f"s_lshl_b32 s{S_T3}, s{S_J}, 11")
    P(f"s_add_u32 s{S_T2}, s{S_T2}, s{S_T3}")
    P(f"s_add_u32 s{S_OST}, s{S_T2}, {A_OFF + 112*1024}")

def att_addr2(P, o):
    T = V_T
    P(f"v_lshrrev_b32 v{T}, 5, v{V_LANE}")
    P(f"s_lshl_b32 s{S_T1}, s{S_WAVE}, 12")
    P(f"v_add_u32 v{A_KR}, s{S_T1}, v{V_L16}")
    P(f"v_bfe_u32 v{T+1}, v{V_LANE}, 4, 1")
    P(f"v_bfe_u32 v{T+2}, v{V_LANE}, 1, 1")
    P(f"v_lshl_add_u32 v{T+3}, v{T+1}, 1, v{T+2}")
    P(f"v_lshlrev_b32 v{T+4}, 9, v{T+3}")
    P(f"v_xor_b32 v{T+3}, v{T+3}, v{T}")
    P(f"v_lshl_add_u32 v{T+4}, v{T+3}, 6, v{T+4}")
    P(f"v_bfe_u32 v{T+3}, v{V_LANE}, 2, 2")
    P(f"v_lshl_add_u32 v{T+4}, v{T+3}, 4, v{T+4}")
    P(f"v_and_b32 v{T+3}, 1, v{V_LANE}")
    P(f"v_lshl_add_u32 v{T+4}, v{T+3}, 3, v{T+4}")
    P(f"s_add_u32 s{S_T1}, s{S_T1}, 2048")
    P(f"v_add_u32 v{A_VR}, s{S_T1}, v{T+4}")
    P(f"v_xor_b32 v{A_VR+1}, 128, v{A_VR}")
    P(f"v_and_b32 v{T+1}, 31, v{V_LANE}")
    P(f"v_mul_u32_u24 v{T+2}, 12, v{T}")
    P(f"s_cmp_eq_u32 s{S_PAR}, 0")
    P(f"s_cselect_b32 s{S_T1}, -1, 0")
    P(f"s_cselect_b32 s{S_T2}, 1544, 0")
    P(f"v_and_b32 v{T+2}, s{S_T1}, v{T+2}")
    P(f"v_xor_b32 v{T+1}, v{T+1}, v{T+2}")
    P(f"v_lshlrev_b32 v{T+1}, 4, v{T+1}")
    P(f"v_lshl_add_u32 v{T+1}, v{T}, 11, v{T+1}")
    P(f"s_mul_i32 s{S_T3}, s{S_WAVE}, {3*4096}")
    P(f"s_add_u32 s{S_T2}, s{S_T2}, s{S_T3}")
    P(f"v_add_u32 v{A_PA}, s{S_T2}, v{T+1}")
    P(f"v_cmp_gt_u32 vcc, 32, v{V_LANE}")
    P(f"s_mul_i32 s{S_T1}, s{S_WAVE}, 3")
    P(f"s_lshl_b32 s{S_T2}, s{S_RB}, 2")
    P(f"s_add_u32 s{S_T1}, s{S_T1}, s{S_T2}")
    P(f"v_mov_b32 v{T+1}, 0x3f80")
    for k in range(3):
        P(f"s_add_u32 s{S_T2}, s{S_T1}, {k}")
        P(f"s_cmp_lt_u32 s{S_T2}, 8")
        P(f"s_cselect_b32 s{S_T2}, 0xf14a, 0")
        P(f"v_mov_b32 v{T+2}, s{S_T2}")
        P(f"v_cndmask_b32 v{A_PV+k}, v{T+1}, v{T+2}, vcc")

def att_masks(P, o):
    T = V_T
    for r in range(16):
        k0 = (r & 3) + 8 * (r >> 2)
        lo = (0xffffffff << k0) & 0xffffffff
        hi = (0xffffffff << (k0 + 4)) & 0xffffffff
        P(f"s_mov_b32 s{S_TAB+2*r}, {hex(lo)}")
        P(f"s_mov_b32 s{S_TAB+2*r+1}, {hex(hi)}")
    P(f"v_mov_b32 v{T+1}, 0xffff")
    P(f"v_mov_b32 v{T+2}, 0xffff0000")
    for i in range(8):
        P(f"v_cndmask_b32_e64 v{T+3}, 0, v{T+1}, {sr(S_TAB+4*i)}")
        P(f"v_cndmask_b32_e64 v{T+4}, 0, v{T+2}, {sr(S_TAB+4*i+2)}")
        P(f"v_or_b32 v{AM+i}, v{T+3}, v{T+4}")

def att_loads(P, o):
    P(f"s_mul_i32 s{S_T3}, s{S_WAVE}, {3*4096}")
    for k in range(3):
        P(f"s_add_u32 m0, s{S_T3}, {LKV + k*4096}")
        for t in range(2):
            P(f"buffer_load_dwordx4 v{A_KD}, {sr(SRD_WS,4)}, s{S_KV[k]} offen offset:{t*1024} {SC} lds", tag='kv')
        for t in range(2):
            P(f"buffer_load_dwordx4 v{A_VD+t}, {sr(SRD_WS,4)}, s{S_KV[k]} offen offset:{2048+t*1024} {SC} lds", tag='kv')
    for t in range(2):
        P(f"buffer_load_dwordx4 {vr(AQ+4*t,4)}, v{V_L16}, {sr(SRD_WS,4)}, s{S_KV[3]} offen offset:{t*1024} {SC}")
    T = V_T
    P(f"v_and_b32 v{T+1}, 31, v{V_LANE}")
    P(f"v_lshlrev_b32 v{T+1}, 2, v{T+1}")
    P(f"s_lshl_b32 s{S_T2}, s{S_TB}, 7")
    P(f"s_add_u32 s{S_T2}, s{S_T2}, {G_OFF}")
    P(f"buffer_load_dword v{A_G}, v{T+1}, {sr(SRD_WS,4)}, s{S_T2} offen {SC}")
    P(f"s_and_b32 s{S_T1}, s{S_WAVE}, 1")
    P(f"s_lshl_b32 s{S_T0}, s{S_R}, 8")
    P(f"s_add_u32 s{S_T0}, s{S_T0}, {G_OFF}")
    P(f"s_lshl_b32 s{S_T2}, s{S_T1}, 7")
    P(f"s_xor_b32 s{S_T3}, s{S_T2}, 128")
    P(f"s_add_u32 s{S_T2}, s{S_T2}, s{S_T0}")
    P(f"s_add_u32 s{S_T3}, s{S_T3}, s{S_T0}")
    P(f"buffer_load_dword v{L_G}, v{T+1}, {sr(SRD_WS,4)}, s{S_T3} offen {SC}")
    P(f"buffer_load_dword v{L_G+1}, v{T+1}, {sr(SRD_WS,4)}, s{S_T2} offen {SC}")

def kread(i, buf):
    return [f"ds_read_b128 {vr(AK+8*buf+4*t,4)}, v{A_KR} offset:{LKV + i*4096 + t*1024}" for t in range(2)]
def vread(i, buf):
    return [f"ds_read_b64_tr_b16 {vr(AV+8*buf+4*t+2*rho,2)}, v{A_VR+rho} offset:{LKV + i*4096 + t*256}" for t in range(2) for rho in range(2)]
def qk(i, sbuf, kbuf, c):
    s = AS + 16 * sbuf
    return [mfma(s, AK + 8 * kbuf, AQ, c), mfma(s, AK + 8 * kbuf + 4, AQ + 4, s)]

def attention(P, o, hooks):
    T = V_T
    P(f"s_cmp_eq_u32 s{S_PAR}, 0")
    P(f"s_cselect_b32 s{S_T0}, 0, -1")
    P(f"s_mov_b32 s{S_T1}, 0")
    P(f"s_mov_b32 s{S_T2}, 0")
    P(f"s_cselect_b32 s{S_T3}, -1, 0")
    P(f"v_mov_b32 v{T}, 0x3f80")
    P.wait_vm('kv')
    if o.fine: stamp(P, o, 'kv_land')
    for k in range(3):
        P(f"ds_write_b16 v{A_PA}, v{A_PV+k} offset:{LKV + k*4096}")
    P(f"v_cndmask_b32_e64 v{AQ}, v{AQ}, v{T}, {sr(S_T0)}")
    P(f"v_cndmask_b32_e64 v{AQ+1}, v{AQ+1}, 0, {sr(S_T0)}")
    P(f"v_cndmask_b32_e64 v{AQ+6}, v{AQ+6}, v{T}, {sr(S_T2)}")
    P(f"v_cndmask_b32_e64 v{AQ+7}, v{AQ+7}, 0, {sr(S_T2)}")
    P("s_waitcnt lgkmcnt(0)")
    P("s_barrier")
    stamp(P, o, 'att_go')
    order = [0, 8, 1, 2, 3, 4, 5, 6, 7]
    sb = lambda n: n % 4
    P.add(kread(order[0], 0)); P.add(kread(order[1], 1))
    def maxops(s, first):
        L = []
        for i in range(8):
            if first and i == 0: L.append(f"v_max_f32 v{A_MX}, v{s}, v{s+1}")
            else: L.append(f"v_max3_f32 v{A_MX}, v{s+2*i}, v{s+2*i+1}, v{A_MX}")
        return L
    merge = [f"v_cndmask_b32_e64 v{AS+16+r}, v{AS+r}, v{AS+16+r}, {sr(S_TAB+2*r)}" for r in range(16)]
    for n in range(9):
        m = qk(order[n], sb(n), n & 1, None)
        post = []
        if n == 3: post = merge
        if n == 4: post = maxops(AS + 16, True) + maxops(AS + 16 * sb(2), False)
        if n >= 5: post = maxops(AS + 16 * sb(n - 2), False)
        nxt = kread(order[n + 2], n & 1) if n + 2 < 9 else kread(order[n + 2 - 9], n & 1)
        h = len(post) // 2
        P.add([m[0]] + post[:h] + [m[1]] + nxt + post[h:])
        for it in hooks.get(100 + n, []): P.add(it)
    P.add(vread(0, 0)); P.add(vread(8, 1))
    P.add(maxops(AS + 16 * sb(7), False))
    P.add(maxops(AS + 16 * sb(8), False))
    P(f"v_mov_b32 v{T}, v{A_MX}")
    P(f"v_permlane32_swap_b32 v{A_MX}, v{T}")
    P(f"v_max_f32 v{A_MX}, v{A_MX}, v{T}")
    P(f"v_sub_f32 v{AN}, 0, v{A_MX}")
    P(f"v_sub_f32 v{AN+1}, 0, v{A_MX}")
    for i in range(1, 8): P(f"v_mov_b64 {vr(AN+2*i,2)}, {vr(AN,2)}")
    stamp(P, o, 'att_p1')
    kb = lambda n: (n + 1) & 1
    def expcvt(s, p):
        L = []
        for i in range(8):
            L += [f"v_exp_f32 v{s+2*i}, v{s+2*i}", f"v_exp_f32 v{s+2*i+1}, v{s+2*i+1}"]
            if i >= 1: L.append(f"v_cvt_pk_bf16_f32 v{p+i-1}, v{s+2*i-2}, v{s+2*i-1}")
        L.append(f"v_cvt_pk_bf16_f32 v{p+7}, v{s+14}, v{s+15}")
        return L
    def pv(p, vbuf, first=False):
        return [mfma(AO, AV + 8 * vbuf, p, None if first else AO), mfma(AO, AV + 8 * vbuf + 4, p + 4, AO)]
    m0 = qk(0, 0, kb(0), AN); m1 = qk(8, 1, kb(1), AN)
    P.add(m0 + kread(order[2], kb(2)) + m1 + kread(order[3], kb(3)))
    m2 = qk(order[2], 2, kb(2), AN)
    P.add([m2[0], m2[1]] + merge)
    ec = expcvt(AS + 16, AP)
    sp = []
    for i in range(8):
        sp += [f"v_and_b32 v{AP+8+i}, v{AP+i}, v{AM+i}", f"v_xor_b32 v{AP+16+i}, v{AP+i}, v{AP+8+i}"]
    m3 = qk(order[3], 0, kb(3), AN)
    P.add(kread(order[4], kb(4)) + ec[:8] + [m3[0]] + ec[8:16] + [m3[1]] + kread(order[5], kb(5)) + ec[16:] + sp)
    pend = pv(AP + 16, 0, True) + pv(AP + 8, 1)
    pend_rd = vread(order[2], 0) + vread(order[3], 1)
    for n in range(2, 9):
        p = AP + 16 if n == 3 else (AP if (n & 1) == 0 else AP + 8)
        ec = expcvt(AS + 16 * (n % 3), p)
        hk = hooks.get(n, [])
        if hk: ec = interleave([[x] for x in ec], hk)
        mq = qk(order[n + 2], (n + 2) % 3, kb(n + 2), AN) if n + 2 < 9 else []
        kr = kread(order[n + 4], kb(n + 4)) if n + 4 < 9 else []
        ms = pend + mq
        seq = []
        k = len(ms)
        step = max(1, len(ec) // max(k, 1))
        ei = 0
        for j, mm in enumerate(ms):
            seq.append(mm)
            if j == len(pend) - 1: seq += pend_rd
            if j == k - 1 and mq: seq += kr
            take = ec[ei:ei + step] if j < k - 1 else ec[ei:]
            seq += take; ei += len(take)
        P.add(seq)
        vb = n & 1
        pend = pv(p, vb)
        pend_rd = vread(order[n + 2], vb) if n + 2 < 9 else []
    P.add(pend)
    for it in hooks.get(9, []): P.add(it)
    P(f"s_cmp_eq_u32 s{S_PAR}, 0")
    P(f"s_cselect_b64 {sr(S_T0)}, -1, 0")
    stamp(P, o, 'att_p2')
    P(f"v_cndmask_b32_e64 v{T}, v{AO}, v{AO+12}, {sr(S_T0)}")
    P(f"v_mov_b32 v{T+1}, v{T}")
    P(f"v_permlane32_swap_b32 v{T}, v{T+1}")
    P(f"v_cndmask_b32_e64 v{T}, v{T}, v{T+1}, {sr(S_T0)}")
    if o.dbg:
        P(f"s_lshl_b32 s{S_CNT}, s{S_TB}, 4")
        P(f"s_add_u32 s{S_CNT}, s{S_CNT}, s{S_J}")
        P(f"s_lshl_b32 s{S_CNT}, s{S_CNT}, 10")
        P(f"s_add_u32 s{S_CNT}, s{S_CNT}, {BP_OFF}")
        P(f"v_mov_b32 v{AP}, v{A_G}")
        P(f"v_mov_b32 v{AP+1}, v{T}")
        P(f"v_mov_b32 v{AP+2}, v{AN}")
        P(f"v_mov_b32 v{AP+3}, v{AQ+2}")
        P(f"buffer_store_dwordx4 {vr(AP,4)}, v{V_L16}, {sr(SRD_WS,4)}, s{S_CNT} offen")
        P(f"s_cmp_eq_u32 s{S_PAR}, 0")
    P(f"v_rcp_f32 v{T}, v{T}")
    P(f"v_mul_f32 v{T+1}, v{T}, v{A_G}")
    for i in range(8):
        P(f"v_pk_mul_f32 {vr(AO+2*i,2)}, {vr(AO+2*i,2)}, {vr(T+1,2)} op_sel_hi:[1,0]")
    for i in range(8):
        P(f"v_cvt_pk_bf16_f32 v{AP+i}, v{AO+2*i}, v{AO+2*i+1}")
    P(f"s_cselect_b32 s{S_T0}, 0, -1")
    P(f"s_mov_b32 s{S_T1}, 0")
    P(f"s_mov_b32 s{S_T2}, 0")
    P(f"s_cselect_b32 s{S_T3}, -1, 0")
    for r, m in ((0, S_T0), (1, S_T0), (6, S_T2), (7, S_T2)):
        P(f"v_cndmask_b32_e64 v{AP+r}, v{AP+r}, 0, {sr(m)}")
    for t in range(2):
        P(f"buffer_store_dwordx4 {vr(AP+4*t,4)}, v{V_L16}, {sr(SRD_WS,4)}, s{S_OST} offen offset:{t*1024} {SC}", tag='ost')

LACC = 16
EARLY = [('a', r) for r in range(192, 256, 4)] + list(range(160, 216, 4))
LATE = list(range(80, 136, 4)) + list(range(144, 160, 4)) + list(range(236, 252, 4)) + [136, 140]

def last_baddr(P, o):
    T = V_T
    P(f"s_mov_b64 {sr(SRD_W2)}, {sr(S_W2)}")
    srd_rest(P, [(SRD_W2, 1792*896)])
    P(f"s_lshl_b32 s{S_BM}, s{S_WAVE}, 12")
    rot_calc(P, S_ROT2, *o.rot2)
    P(f"s_mul_i32 s{S_T0}, s{S_WAVE}, {448*896}")
    P(f"s_lshl_b32 s{S_T3}, s{S_C}, 7")
    P(f"s_add_u32 s{S_T0}, s{S_T0}, s{S_T3}")
    P(f"s_mov_b32 s{S_T1}, s{S_ROT2}")
    for g in range(7):
        P(f"s_mul_i32 s{S_T2}, s{S_T1}, {64*896}")
        P(f"s_add_u32 s{S_BT[g]}, s{S_T0}, s{S_T2}")
        if g < 6:
            P(f"s_add_u32 s{S_T1}, s{S_T1}, 1")
            P(f"s_cmp_eq_u32 s{S_T1}, 7")
            P(f"s_cselect_b32 s{S_T1}, 0, s{S_T1}")
    P(f"v_lshrrev_b32 v{T}, 3, v{V_LANE}")
    P(f"v_bfe_u32 v{T+1}, v{V_LANE}, 4, 1")
    P(f"v_lshlrev_b32 v{T+1}, 2, v{T+1}")
    P(f"v_xor_b32 v{T+1}, v{T+1}, v{V_LANE}")
    P(f"v_and_b32 v{T+1}, 7, v{T+1}")
    P(f"v_mul_u32_u24 v{T}, 896, v{T}")
    P(f"v_lshl_add_u32 v{V_BA}, v{T+1}, 4, v{T}")
    for i in range(1, 4): P(f"v_add_u32 v{V_BA+i}, {i*(8*896-1024)}, v{V_BA}")

def last_baddr_r(P, o):
    T = V_T
    P(f"v_bfe_u32 v{T}, v{V_LANE}, 2, 2")
    P(f"v_lshrrev_b32 v{T+1}, 5, v{V_LANE}")
    P(f"v_lshl_add_u32 v{T+1}, v{T+1}, 2, v{T}")
    P(f"v_lshlrev_b32 v{T+1}, 7, v{T+1}")
    P(f"v_bfe_u32 v{T+2}, v{V_LANE}, 4, 1")
    P(f"v_lshl_add_u32 v{T+1}, v{T+2}, 5, v{T+1}")
    P(f"v_and_b32 v{T+2}, 3, v{V_LANE}")
    P(f"v_lshl_add_u32 v{T+1}, v{T+2}, 3, v{T+1}")
    P(f"v_lshrrev_b32 v{T}, 1, v{T}")
    P(f"v_lshl_add_u32 v{T}, v{T}, 6, v{T+1}")
    P(f"s_add_u32 s{S_T0}, s{S_BM}, 49152")
    P(f"v_add_u32 v{T}, s{S_T0}, v{T}")
    P(f"s_lshr_b32 s{S_T0}, s{S_WAVE}, 1")
    P(f"s_lshl_b32 s{S_T0}, s{S_T0}, 6")
    P(f"v_xor_b32 v{V_BR[0][1]}, s{S_T0}, v{T}")
    P(f"v_xor_b32 v{V_BR[0][0]}, 64, v{V_BR[0][1]}")
    for k in range(2): P(f"v_add_u32 v{V_BR[1][k]}, 0x10000, v{V_BR[0][k]}")

def last_baddr_o(P, o):
    P(f"s_mov_b64 {sr(SRD_WO)}, {sr(S_WO)}")
    P(f"s_mov_b32 s{SRD_WO+2}, {448*896}")
    P(f"s_mov_b32 s{SRD_WO+3}, 0x20000")
    P(f"s_lshl_b32 s{S_T3}, s{S_C}, 7")
    for i in range(4):
        P(f"s_mul_i32 s{S_T0}, s{S_WAVE}, {112*896}")
        P(f"s_add_u32 s{S_T0}, s{S_T0}, s{S_T3}")
        P(f"s_add_u32 s{S_BO[i]}, s{S_T0}, {8*((7*i)>>1)*896}")

def last_setup(P, o):
    T = V_T
    P(f"s_lshl_b32 s{S_T0}, s{S_C}, 7")
    P(f"v_and_b32 v{T}, 31, v{V_LANE}")
    P(f"v_lshl_add_u32 v{T+1}, v{T}, 2, s{S_T0}")
    P(f"global_load_dword v{V_DUM}, v{T+1}, {sr(S_B2)}")
    P(f"s_and_b32 s{S_T1}, s{S_WAVE}, 1")
    P(f"s_mul_i32 s{S_T2}, s{S_T1}, {A_TB}")
    P(f"s_sub_u32 s{S_T3}, {A_TB}, s{S_T2}")
    P(f"v_add_u32 v{V_AA}, s{S_T3}, v{V_L16}")
    P(f"v_add_u32 v{V_AA+1}, s{S_T2}, v{V_L16}")
    P(f"v_and_b32 v{T+1}, 1, v{V_LANE}")
    P(f"s_lshl_b32 s{S_T0}, s{S_R}, 1")
    P(f"v_add_u32 v{T+1}, s{S_T0}, v{T+1}")
    P(f"v_lshlrev_b32 v{T+1}, 4, v{T+1}")
    P(f"v_bfe_u32 v{T+2}, v{V_LANE}, 1, 2")
    P(f"v_add_u32 v{T+1}, v{T+1}, v{T+2}")
    P(f"v_lshlrev_b32 v{T+1}, 7, v{T+1}")
    P(f"s_mul_i32 s{S_T0}, s{S_WAVE}, 7")
    P(f"s_lshr_b32 s{S_T0}, s{S_T0}, 1")
    P(f"s_lshl_b32 s{S_T0}, s{S_T0}, 7")
    P(f"s_add_u32 s{S_T0}, s{S_T0}, {FL_H}")
    P(f"v_add_u32 v{V_PH}, s{S_T0}, v{T+1}")
    P(f"s_lshl_b32 s{S_T0}, s{S_WAVE}, 9")
    P(f"s_add_u32 s{S_T0}, s{S_T0}, {FL_O}")
    P(f"v_add_u32 v{V_PO}, s{S_T0}, v{T+1}")
    for d in range(1, 4):
        P(f"s_xor_b32 s{S_T0}, s{S_WAVE}, {d}")
        P(f"s_mul_i32 s{S_T0}, s{S_T0}, 12288")
        P(f"s_add_u32 s{S_T0}, s{S_T0}, {LRED + (d-1)*4096}")
        P(f"v_add_u32 v{L_RW+d-1}, s{S_T0}, v{V_L16}")
    P(f"s_mul_i32 s{S_T0}, s{S_WAVE}, 12288")
    P(f"s_add_u32 s{S_T0}, s{S_T0}, {LRED}")
    P(f"v_add_u32 v{L_RR}, s{S_T0}, v{V_L16}")
    P(f"s_lshl_b32 s{S_T0}, s{S_R}, 6")
    P(f"s_lshl_b32 s{S_T2}, s{S_T1}, 5")
    P(f"s_add_u32 s{S_T0}, s{S_T0}, s{S_T2}")
    P(f"v_add_u32 v{T+1}, s{S_T0}, v{T}")
    P(f"v_mul_u32_u24 v{T+1}, 896, v{T+1}")
    P(f"v_lshrrev_b32 v{T+2}, 5, v{V_LANE}")
    P(f"v_lshl_add_u32 v{T+1}, v{T+2}, 4, v{T+1}")
    P(f"s_lshl_b32 s{S_T0}, s{S_C}, 7")
    P(f"s_lshr_b32 s{S_T2}, s{S_WAVE}, 1")
    P(f"s_lshl_b32 s{S_T2}, s{S_T2}, 6")
    P(f"s_add_u32 s{S_T0}, s{S_T0}, s{S_T2}")
    P(f"v_add_u32 v{L_OA}, s{S_T0}, v{T+1}")

def last_atab(P, o):
    P(f"s_mul_i32 s{S_T0}, s{S_R}, {2*A_TB}")
    P(f"s_add_u32 s{S_T0}, s{S_T0}, {A_OFF}")
    P(f"s_lshl_b32 s{S_T2}, s{S_WAVE}, 13")
    P(f"s_add_u32 s{S_AT[7]}, s{S_T0}, s{S_T2}")
    P(f"s_add_u32 s{S_AT[7]}, s{S_AT[7]}, {112*1024}")
    P(f"s_add_u32 s{S_AT[8]}, s{S_AT[7]}, 4096")
    P(f"s_mul_i32 s{S_T2}, s{S_WAVE}, {28*1024}")
    P(f"s_add_u32 s{S_T0}, s{S_T0}, s{S_T2}")
    P(f"s_mov_b32 s{S_T2}, s{S_ROT2}")
    for g in range(7):
        P(f"s_lshl_b32 s{S_T3}, s{S_T2}, 12")
        P(f"s_add_u32 s{S_AT[g]}, s{S_T0}, s{S_T3}")
        if g < 6:
            P(f"s_add_u32 s{S_T2}, s{S_T2}, 1")
            P(f"s_cmp_eq_u32 s{S_T2}, 7")
            P(f"s_cselect_b32 s{S_T2}, 0, s{S_T2}")

def last_setup_b(P, o):
    bias_expand(P, V_DUM, 12, L_BA)
    P(f"s_lshr_b32 s{S_T2}, s{S_WAVE}, 1")
    P(f"s_lshl_b32 s{S_T2}, s{S_T2}, 7")
    P(f"v_add_u32 v{L_BA}, s{S_T2}, v{L_BA}")

def a_slots(o):
    ne = o.nearly * 2
    sl = EARLY[:ne] + LATE + EARLY[ne:]
    ring = len(sl) // 2 * 2
    return [sl[i % ring] for i in range(72)], ring // 2

def xr(d): return ar(d[1], 4) if isinstance(d, tuple) else vr(d, 4)

def a_load(o, n):
    sl, _ = a_slots(o)
    L = []
    for ttl in range(2):
        d = sl[2 * n + ttl]
        so, k = (S_AT[n >> 2], n & 3) if n < 28 else (S_AT[7 + ((n - 28) >> 2)], (n - 28) & 3)
        L.append((f"buffer_load_dwordx4 {xr(d)}, v{V_AA+ttl}, {sr(SRD_WS,4)}, s{so} offen offset:{k*1024} {o.asc}", 'ald'))
    return L

def last(P, o):
    q = lambda ttl, ctl: LACC + 32 * ttl + 16 * ctl
    sl, depth = a_slots(o)
    mm = lambda n, ttl, ctl: mfma(q(ttl, ctl), breg(n, ctl), sl[2 * n + ttl], None if n == 0 else q(ttl, ctl), 'a')
    if o.nearly == 0:
        poll(P, o, V_PH)
        P.add(flag_store(S_OFL))
    last_setup_b(P, o)
    P("s_barrier")
    stamp(P, o, 'last_go')
    nxt = o.nearly
    lim = lambda n: min(n + depth, 28)
    while nxt < min(max(o.lead, o.nearly), lim(0)): P.add(a_load(o, nxt)); nxt += 1
    opolled = False
    for n in range(28):
        if n == 8: P.wait_vm('b2')
        M = [mm(n, ttl, ctl) for ttl in range(2) for ctl in range(2)]
        ex = []
        cnt = 0
        top = (36 if opolled else 28)
        while nxt < min(n + min(depth, o.lead + 1), top) and cnt < 2:
            ex += a_load(o, nxt); nxt += 1; cnt += 1
        if 8 <= n < 20: ex += b_reads(n + 16)
        if n == o.oflag_at and o.nearly > 0:
            ex = [WVM('ost')] + flag_store(S_OFL) + ex
        if n == o.opoll_at: ex += poll_issue(V_PO, V_PD)
        if n == o.ocheck_at:
            ex = poll_check(V_PO, V_PD) + ex; opolled = True
        if o.hst and n % 4 == 0 and n: stamp(P, o, f'h{n}')
        P.add(interleave([[m] for m in M], [[e] for e in ex], per=lambda i, L=len(ex): ((i+1)*L)//4 - (i*L)//4) if n != o.ocheck_at and n != o.oflag_at else M + ex)
    stamp(P, o, 'last_h')
    while nxt < 36: P.add(a_load(o, nxt)); nxt += 1
    used = set(sl[56:72])
    free = [r for r in sorted(x for x in set(sl) if not isinstance(x, tuple)) if r not in used]
    B2 = None
    for r in free:
        if all((r + 4 * k) in free for k in range(4)): B2 = r; break
    for k in range(4): P(f"ds_read_b128 {vr(B2+4*k,4)}, v{L_BA} offset:{32*k}")
    sc = lambda ttl, ctl: [f"v_mul_f32 v{q(ttl,ctl)+i}, v{L_G+ttl}, v{q(ttl,ctl)+i}" for i in range(16)]
    P(f"v_sub_f32 v{L_G}, 1.0, v{L_G}")
    P(f"v_sub_f32 v{L_G+1}, 1.0, v{L_G+1}")
    P.add(sc(0, 0) + sc(0, 1))
    rest = sc(1, 0) + [f"v_add_f32 v{q(1,1)+i}, v{q(1,1)+i}, v{B2+i}" for i in range(16)] + sc(1, 1)
    M = []
    for n in range(28, 36): M += [[mm(n, 0, 0)], [mm(n, 0, 1)]]
    P.add(interleave(M, rest))
    wr = lambda ttl, ctl: [f"ds_write_b128 v{L_RW + ((1-ttl) | ((1-ctl) << 1)) - 1}, {vr(q(ttl,ctl)+4*i,4)} offset:{i*1024}" for i in range(4)]
    w = wr(0, 0) + wr(0, 1)
    seq = []
    for i, n in enumerate(range(28, 36)):
        seq.append(mm(n, 1, 0))
        if i >= 2: seq += w[:2]; w = w[2:]
    seq += w
    w = wr(1, 0)
    for i, n in enumerate(range(28, 36)):
        seq.append(mm(n, 1, 1))
        if i >= 3 and w: seq.append(w.pop(0))
    P.add(seq + w)
    P("s_waitcnt lgkmcnt(0)")
    P("s_barrier")
    stamp(P, o, 'last_o')
    R = 80
    for d in range(3):
        for i in range(4):
            P(f"ds_read_b128 {vr(R+16*d+4*i,4)}, v{L_RR} offset:{d*4096 + i*1024}")
    o_ = q(1, 1)
    for d in range(3):
        for i in range(8):
            P(f"v_pk_add_f32 {vr(o_+2*i,2)}, {vr(o_+2*i,2)}, {vr(R+16*d+2*i,2)}")
    p = R + 48
    for i in range(8): P(f"v_cvt_pk_bf16_f32 v{p+i}, v{o_+2*i}, v{o_+2*i+1}")
    for h in range(2):
        P(f"v_permlane32_swap_b32 v{p+4*h}, v{p+4*h+2}")
        P(f"v_permlane32_swap_b32 v{p+4*h+1}, v{p+4*h+3}")
    for h in range(2):
        P(f"buffer_store_dwordx4 {vr(p+4*h,4)}, v{L_OA}, {sr(SRD_OUT,4)}, 0 offen offset:{32*h}")
    stamp(P, o, 'end')

HEADER = open('cdna_kernels/' + NAME + '.s.ref').read().split('; Override launch')[0]

def finish(P, o, name):
    for sp in slow_paths:
        P.forget(); P(sp)
    L = finalize(P, True)
    out = HEADER + f"; @launch grid=(256,1,1) block=(256,1,1) lds={LDS_BYTES}\n"
    out += '.amdgcn_target "amdgcn-amd-amdhsa--gfx950"\n.text\n'
    out += f".globl {name}\n.p2align 8\n.type {name},@function\n{name}:\n" + text(L)
    out += "s_endpgm\n.fill 2048, 4, 0xbf800000\n"
    out += f""".section .rodata,"a"
.p2align 6
.amdhsa_kernel {name}
  .amdhsa_next_free_vgpr 512
  .amdhsa_next_free_sgpr 102
  .amdhsa_accum_offset 256
  .amdhsa_group_segment_fixed_size 0
  .amdhsa_kernarg_size 96
  .amdhsa_user_sgpr_count 2
  .amdhsa_user_sgpr_kernarg_segment_ptr 1
  .amdhsa_system_sgpr_workgroup_id_x 1
.end_amdhsa_kernel
"""
    if o.diag is not None:
        out = out.replace('DIAG_I', str(o.stamp_names.index(o.diag[0]))).replace('DIAG_J', str(o.stamp_names.index(o.diag[1])))
    return out

def build(o):
    name = NAME + "_kernel"
    P = Prog(); setup(P, o, "L_end")
    P(f"s_cmp_eq_u32 s{S_C}, 7")
    P("s_cbranch_scc1 L_prep")
    hooks = {}
    def spread(D, g0, g1):
        G = atomic_groups(D.L); n = g1 - g0; tot = len(D.L); done = 0; g = g0
        for grp in G:
            g = g0 + min(n - 1, (done * n) // tot)
            hooks[g] = hooks.get(g, []) + [[x] for x in grp]; done += len(grp)
    for i, g in enumerate(o.wact):
        D = Prog()
        D(f"s_mul_i32 s{S_T4}, s{S_RBL}, 7")
        D(f"s_add_u32 s{S_T4}, s{S_T4}, s{S_C}")
        D(f"s_lshl2_add_u32 s{S_T4}, s{S_T4}, s{S_WAVE}")
        D(f"s_add_u32 s{S_T4}, s{S_T4}, {16*o.wsp + 112*i}")
        warm_touch(D, S_T4, 245 + i, S_T0)
        spread(D, g - 1, g + 1)
    D = Prog()
    D(f"s_mul_i32 s{S_B3}, s{S_B}, 3")
    D(f"s_mov_b32 s{S_SPARE}, 0")
    last_baddr(D, o)
    g0 = max(o.wact) + 1 if o.wact else 9
    ntail = o.ntail
    spread(D, g0, max(g0 + 4, 19) if ntail else 28)
    bl = [it for p in range(6) for it in b_dma(p)]
    if ntail:
        gs = max(g0 + 4, 19)
        a = bl[:min(ntail, 15)]; b = bl[15:ntail] if ntail > 15 else []
        for i, it in enumerate(a): hooks.setdefault(gs + (i * (23 - gs if gs < 23 else 1)) // len(a), []).append(it)
        for i, it in enumerate(b): hooks.setdefault(max(23, gs) + (i * (28 - max(23, gs))) // len(b), []).append(it)
        bl = bl[ntail:]
    stage1(P, o, hooks)
    if o.trunc == 's1':
        stamp_flush(P, o); P("s_endpgm"); P.forget(); P("L_prep:")
        if not o.noprep: prep(P, o); stamp_flush(P, o)
        P("L_end:"); P("s_endpgm")
        return finish(P, o, name)
    P("s_barrier")
    qkv_epilogue(P, o)
    P(f"s_lshl_b32 s{S_T0}, s{S_TB}, 4")
    P(f"s_add_u32 s{S_T0}, s{S_T0}, s{S_B}")
    P(f"s_lshl_b32 s{S_T0}, s{S_T0}, 7")
    P(f"s_add_u32 s{S_QFL}, s{S_T0}, {FL_QKV}")
    P(f"s_add_u32 s{S_B}, s{S_T0}, {FL_H}")
    stamp(P, o, 'qkv_epi')
    for F in range(4):
        g = gelu_tile(F)
        take = bl[:o.nb_gelu[F]]; bl = bl[o.nb_gelu[F]:]
        P.add(interleave([[x] for x in g[:-2]], take))
        if o.fine: stamp(P, o, f'g{F}')
        if F == o.qflag_after:
            P.wait_vm('qst'); P.add(flag_store(S_QFL))
            if o.fine: stamp(P, o, 'qflag')
        P.add(g[-2:])
    stamp(P, o, 'gelu')
    for it in bl: P.add(it)
    att_scalars(P, o); att_poll_addr(P, o); att_addr(P, o); last_baddr_r(P, o)
    P.wait_vm('hst'); P.add(flag_store(S_B))
    stamp(P, o, 'hflag')
    P.wait_vm('b0')
    P.add(poll_issue(V_PA, V_PD))
    for n in range(12): P.add(b_reads(n))
    P("s_waitcnt lgkmcnt(0)")
    P("L_att:")
    P.add(poll_check(V_PA, V_PD))
    stamp(P, o, 'qkv_seen')
    att_loads(P, o)
    D = Prog(); last_setup(D, o); att_addr2(D, o); att_masks(D, o); last_atab(D, o); last_baddr_o(D, o)
    P.add(interleave(atomic_groups(D.L), [sum(b_dma(p), []) for p in range(6, 6 + o.nkv)]))
    if o.fine: stamp(P, o, 'setup')
    ah = {}
    def put(items, slots):
        for i, it in enumerate(items): ah.setdefault(slots[(i * len(slots)) // len(items)], []).append(it)
    seq = [100 + n for n in range(9)] + list(range(2, 10))
    b1 = [it for p in range(6 + o.nkv, 12) for it in b_dma(p)]
    if b1 and not (o.drop & 1): put(b1, seq[:o.a1])
    if not (o.drop & 2): put([[WVM('b1')]] + [[x] for n in range(12, 24) for x in b_reads(n)], seq[o.a2:o.a3])
    if not (o.drop & 4): put([["s_waitcnt lgkmcnt(0)"]] + [it for p in range(12, 18) for it in b_dma(p)], seq[o.a3:o.a4])
    if o.nearly > 0:
        ah.setdefault(o.hpoll, []).append(poll_issue(V_PH, V_PD))
        ah.setdefault(o.hcheck, []).insert(0, poll_check(V_PH, V_PD))
        al = [[x] for n in range(o.nearly) for x in a_load(o, n)]
        ns = list(range(o.hcheck, 10))
        for i, it in enumerate(al): ah.setdefault(ns[(i * len(ns)) // len(al)], []).append(it)
    attention(P, o, ah)
    stamp(P, o, 'att_end')
    P(f"s_cmp_eq_u32 s{S_SPARE}, 1")
    P("s_cbranch_scc1 L_spare_end")
    last(P, o)
    stamp_flush(P, o)
    P("s_endpgm")
    P.forget()
    P("L_prep:")
    prep(P, o)
    P(f"s_mov_b32 s{S_C}, 6")
    P(f"s_mov_b32 s{S_SPARE}, 1")
    last_baddr(P, o); last_baddr_r(P, o)
    att_scalars(P, o); att_poll_addr(P, o); att_addr(P, o)
    P.add(poll_issue(V_PA, V_PD))
    P("s_waitcnt vmcnt(0)")
    P("s_branch L_att")
    P.forget()
    P("L_spare_end:")
    P("s_waitcnt vmcnt(0)")
    P.add(flag_store(S_OFL))
    stamp_flush(P, o)
    P(f"s_cmp_eq_u32 s2, 56")
    P("s_cbranch_scc0 L_end")
    P(f"s_cmp_eq_u32 s{S_WAVE}, 0")
    P("s_cbranch_scc0 L_end")
    P(f"v_lshlrev_b32 v{V_PA}, 7, v{V_LANE}")
    P(f"s_mov_b32 s{S_CNT}, 4000")
    P("L_ep:")
    for i in range(16):
        P(f"s_mov_b32 s{S_T0}, {FL_O + i*8192}")
        P(f"buffer_load_dwordx2 {vr(16+2*i,2)}, v{V_PA}, {sr(SRD_WS,4)}, s{S_T0} offen sc1")
    P("s_waitcnt vmcnt(0)")
    P(f"s_mov_b64 {sr(S_T0)}, 0")
    for i in range(16):
        P(f"v_cmp_ne_u64 vcc, {sr(S_TAG)}, {vr(16+2*i,2)}")
        P(f"s_or_b64 {sr(S_T0)}, {sr(S_T0)}, vcc")
    P(f"s_sub_u32 s{S_CNT}, s{S_CNT}, 1")
    P("s_cbranch_scc1 L_end")
    P(f"s_cmp_eq_u64 {sr(S_T0)}, 0")
    P("s_cbranch_scc0 L_ep")
    P(f"buffer_store_dword v{V_TAG}, v{V_FLAGOFF}, {sr(SRD_WS,4)}, 0 offen sc1")
    P("L_end:")
    P("s_endpgm")
    return finish(P, o, name)

DEFAULTS = dict(wsb=0, drop=0, ntail=30, nkv=1, a1=7, a2=8, a3=12, a4=15, wsp=2, wearly=0, wact=(10, 14), dbg=0, b1at=2, sp0=9, sp1=22, lead=6, b2at=12, fine=0, nb_post=0, nb_kv=4, nb_p1=14, nb_span=3, spf=0, ncls=3, cstep=2, item_ld=2, touch=0, tag_at=8, item_at=7, itflag_at=12, asc='sc1', hst=0, cpf=1, noprep=0, rot=(0, 0, 0), rot2=(0, 0, 0), trunc=None, pre=14, pf=0, ppoll=17, pcheck=20, nb_loop=12, nb_gelu=(5, 10, 10, 5), nb_att=0,
                qflag_after=1, nearly=4, hpoll=6, hcheck=8, burst=11, oflag_at=3, opoll_at=16, ocheck_at=20, code_bytes=28672)

if __name__ == '__main__':
    o = Opt()
    for k, v in DEFAULTS.items(): setattr(o, k, v)
    o.stamps = 'stamps' in sys.argv; o.diag = None; o.fix = []; o.stamp_names = []
    o.clk = 's_memtime' if 'cyc' in sys.argv else 's_memrealtime'
    for a in sys.argv[2:]:
        if '=' not in a: continue
        k, v = a.split('=')
        if k == 'diag':
            i, j, K = v.split(','); o.diag = (i, j, int(K)); o.stamps = True
        elif k == 'trunc': o.trunc = v
        elif k == 'asc': o.asc = v.replace('+', ' ').replace('none', '')
        elif ',' in v: setattr(o, k, tuple(int(x) for x in v.split(',') if x))
        else: setattr(o, k, int(v))
    WSB[0] = o.wsb << 20
    s = build(o)
    open(sys.argv[1], 'w').write(s)
    if o.stamps: open(sys.argv[1] + '.names', 'w').write('\n'.join(o.stamp_names))
```

```python
import sys, math, struct
from asmlib import *

NAME = "gated_mix__sliding_block__dense_activation_gelu__prompt"
def f2u(x): return struct.unpack('<I', struct.pack('<f', x))[0]

WS_E      = 0
FL_G      = 0x1000
G_OFF     = 0x4000
FL_QKV    = 0x20000
FL_H      = 0x40000
FL_O      = 0x60000
QKV_OFF   = 0x100000
A_OFF     = 0x700000
WS_SIZE   = 0x1000000
BP_OFF    = 0x1000000
STAMP_OFF = 0x1400000
QKV_TB = 168 * 512
A_TB = 144 * 1024

SA = 28672
LQ = 16384
LF = 98304; SF = 16384
LBIAS = 86016
LKV = 0
LRED = 0
LP = [49152 + 16384 * i for i in range(7)] + [0, 16384, 32768]
PIECE = []
def plan(n1):
    ra = list(range(11 - n1))
    rb = [p for p in range(7) if p not in ra] + ra
    PIECE[:] = [0, 1, 2, 3, 7, 8, 9][:n1] + ra + rb[:7]
LDS_BYTES = 160 * 1024

S_WAVE, S_RBL, S_SPARE, S_XCD, S_SLOT = 3, 8, 9, 10, 11
S_XO, S_QO, S_FO, S_CI, S_CJ = 4, 5, 6, 7, 22
S_M4, S_M3 = 23, 24
S_OFL = 25
S_B1, S_W2, S_B2, S_GW, S_WO = 12, 14, 16, 18, 20
S_TAG = 26
SRD_X, SRD_WQ, SRD_W1, SRD_WS, SRD_OUT, SRD_W2 = 28, 32, 36, 40, 44, 48
SRD_WO = 32
S_KV = [28, 29, 30, 31]
S_RB, S_B, S_TB = 52, 53, 54
S_BOF = 55
S_T0, S_T1, S_T2, S_T3 = 56, 57, 58, 59
S_CNT = 60
S_QST, S_HST = 61, 62
S_T4 = 63
S_MASK = 64
S_QFL, S_HFL = 12, 13
S_OST, S_B3 = 18, 19
S_AOF, S_AO2, S_BO = 4, 5, 7
S_ARB, S_ATB = 14, 15
S_R, S_C, S_J, S_PAR = 98, 99, 100, 101

def sr(b, n=2): return f"s[{b}:{b+n-1}]"
def vr(b, n): return f"v[{b}:{b+n-1}]" if n > 1 else f"v{b}"
def ar(b, n): return f"a[{b}:{b+n-1}]"
def xr(d): return ar(d[1], 4) if isinstance(d, tuple) else vr(d, 4)

V_LANE, V_L16, V_L16H, V_FLAGOFF = 1, 2, 3, 4
V_TAG = 6
V_PD = 8
V_PA = 10
V_T = 11
V_BA = 216
V_AA = 220
L_G = 222
L_RW = 224
L_RR, L_OA, V_PO, V_PH = 227, 228, 229, 231
V_BR = [[232, 233], [0, 230], [202, 234]]
L_BA = 10
V_DUM = 235
V_ST = 255
SC = 'sc1'

class Opt: pass

def mfma(d, a, b, c):
    C = '0' if c is None else vr(c, 16)
    return f"v_mfma_f32_32x32x16_bf16 {vr(d,16)}, {xr(a)}, {xr(b)}, {C}"

lab = [0]
def stamp(P, o, name):
    if not o.stamps: return
    if name not in o.stamp_names: o.stamp_names.append(name)
    P(f"{o.clk} s[96:97]")
    P("s_waitcnt lgkmcnt(0)")
    P(f"v_writelane_b32 v{V_ST}, s96, {o.stamp_names.index(name)}")

def stamp_flush(P, o):
    if not o.stamps: return
    if o.diag is not None:
        lab[0] += 1
        P(f"v_readlane_b32 s{S_T0}, v{V_ST}, DIAG_I")
        P(f"v_readlane_b32 s{S_T1}, v{V_ST}, DIAG_J")
        P("s_nop 4")
        P(f"s_sub_u32 s{S_T0}, s{S_T1}, s{S_T0}")
        P(f"s_mul_i32 s{S_T0}, s{S_T0}, {o.diag[2]}")
        P(f"s_min_u32 s{S_T0}, s{S_T0}, 20000")
        P(f"s_cmp_eq_u32 s{S_SPARE}, 1")
        P(f"s_cselect_b32 s{S_T0}, 0, s{S_T0}")
        P("s_memrealtime s[96:97]")
        P("s_waitcnt lgkmcnt(0)")
        P(f"s_mov_b32 s{S_T1}, s96")
        P(f"L_dg{lab[0]}:")
        P("s_memrealtime s[96:97]")
        P("s_waitcnt lgkmcnt(0)")
        P(f"s_sub_u32 s{S_T2}, s96, s{S_T1}")
        P(f"s_cmp_lt_u32 s{S_T2}, s{S_T0}")
        P(f"s_cbranch_scc1 L_dg{lab[0]}")
        return
    P("s_waitcnt vmcnt(0)")
    P(f"s_lshl2_add_u32 s{S_T0}, s2, s{S_WAVE}")
    P(f"s_lshl_b32 s{S_T0}, s{S_T0}, 8")
    P(f"s_add_u32 s{S_T0}, s{S_T0}, {STAMP_OFF}")
    P(f"s_mov_b32 s{SRD_WS+2}, {STAMP_OFF + 0x100000}")
    P(f"v_lshlrev_b32 v{V_T}, 2, v{V_LANE}")
    P(f"buffer_store_dword v{V_ST}, v{V_T}, {sr(SRD_WS,4)}, s{S_T0} offen")

def setup(P, o, end_label):
    if o.stamps: P(f"{o.clk} s[94:95]")
    P(f"s_load_dwordx2 {sr(SRD_X)}, s[0:1], 0")
    P(f"s_load_dwordx2 {sr(SRD_WQ)}, s[0:1], 8")
    P(f"s_load_dwordx2 {sr(SRD_W1)}, s[0:1], 32")
    P(f"s_load_dwordx8 s[12:19], s[0:1], 40")
    P(f"s_load_dwordx2 {sr(SRD_WS)}, s[0:1], 88")
    P(f"s_load_dwordx2 {sr(SRD_OUT)}, s[0:1], 72")
    P(f"s_load_dwordx2 {sr(S_WO)}, s[0:1], 16")
    P("s_cmpk_ge_u32 s2, 256")
    P(f"s_cbranch_scc1 {end_label}")
    P(f"s_getpc_b64 s[{S_T0}:{S_T1}]")
    P(f"v_lshlrev_b32 v{V_T}, 7, v0")
    P(f"v_min_u32 v{V_T}, {o.code_bytes - 128}, v{V_T}")
    P(f"global_load_dword v{V_DUM}, v{V_T}, s[{S_T0}:{S_T1}]", tag='pf')
    P(f"v_lshrrev_b32 v5, 6, v0")
    P(f"v_and_b32 v{V_LANE}, 63, v0")
    P(f"v_readfirstlane_b32 s{S_WAVE}, v5")
    P(f"s_and_b32 s{S_XCD}, s2, 7")
    P(f"s_lshr_b32 s{S_SLOT}, s2, 3")
    P(f"s_lshr_b32 s{S_RBL}, s2, 6")
    P(f"s_and_b32 s{S_C}, s{S_SLOT}, 7")
    P(f"s_mov_b32 s{SRD_X+3}, 0x20000")
    P(f"s_mov_b32 s{SRD_X+2}, {2048*896}")

def srd_rest(P, regs):
    for d, size in regs:
        P(f"s_mov_b32 s{d+2}, {size}")
        P(f"s_mov_b32 s{d+3}, 0x20000")

def common2(P, o):
    P(f"v_lshlrev_b32 v{V_L16}, 4, v{V_LANE}")
    P(f"v_cmp_eq_u32 vcc, 0, v{V_LANE}")
    P(f"v_mov_b32 v5, 0x7fff0000")
    P(f"v_add_u32 v{V_L16H}, 0x1000, v{V_L16}")
    P(f"v_cndmask_b32_e64 v{V_FLAGOFF}, v5, 0, vcc")
    P(f"s_lshl2_add_u32 s{S_R}, s{S_XCD}, s{S_RBL}")

TAGOPS = [f"s_mul_i32 s{S_TAG}, s{S_TAG}, 0x9e3779b1",
          f"s_add_u32 s{S_TAG}, s{S_TAG}, 0x7f4a7c15",
          f"s_xor_b32 s{S_TAG+1}, s{S_TAG}, 0x5bd1e995",
          f"v_mov_b32 v{V_TAG}, s{S_TAG}",
          f"v_mov_b32 v{V_TAG+1}, s{S_TAG+1}"]

def warm_touch(P, blk, dst, tb, l128):
    P(f"s_mul_i32 s{tb}, s{S_XCD}, 31")
    P(f"s_min_u32 s{blk}, s{blk}, 244")
    P(f"s_add_u32 s{blk}, s{blk}, s{tb}")
    P(f"s_sub_u32 s{tb}, s{blk}, 245")
    P(f"s_cselect_b32 s{blk}, s{blk}, s{tb}")
    P(f"s_sub_u32 s{tb}, s{blk}, 196")
    P(f"s_cselect_b32 s{blk}, s{blk}, s{tb}")
    P(f"s_cselect_b64 {sr(tb)}, {sr(SRD_W2)}, {sr(S_WO)}")
    P(f"s_lshl_b32 s{blk}, s{blk}, 13")
    P(f"s_add_u32 s{tb}, s{tb}, s{blk}")
    P(f"s_addc_u32 s{tb+1}, s{tb+1}, 0")
    P(f"global_load_dword v{dst}, v{l128}, {sr(tb)}", tag='warm')

def l2_touch(P, o, i):
    P(f"s_mul_i32 s{S_T4}, s{S_RBL}, 7")
    P(f"s_add_u32 s{S_T4}, s{S_T4}, s{S_C}")
    P(f"s_lshl2_add_u32 s{S_T4}, s{S_T4}, s{S_WAVE}")
    if i: P(f"s_add_u32 s{S_T4}, s{S_T4}, {112*i}")
    P(f"s_mul_i32 s{S_T0}, s{S_T4}, 1873")
    P(f"s_lshr_b32 s{S_T0}, s{S_T0}, 16")
    P(f"s_mul_i32 s{S_T0}, s{S_T0}, {128*896}")
    P(f"s_lshl_b32 s{S_T1}, s{S_T4}, 13")
    P(f"s_add_u32 s{S_T0}, s{S_T0}, s{S_T1}")
    P(f"s_add_u32 s{S_T0}, s{S_T0}, {128*896}")
    P(f"s_sub_u32 s{S_T1}, s{S_T1}, {140*8192}")
    P(f"s_cbranch_scc0 L_wo{i}")
    P(f"buffer_load_dword v{184+i}, v{V_L128}, {sr(SRD_W2,4)}, s{S_T0} offen")
    P(f"s_branch L_wj{i}")
    P(f"L_wo{i}:")
    P(f"buffer_load_dword v{186+i}, v{V_L128}, {sr(SRD_WO,4)}, s{S_T1} offen")
    P(f"L_wj{i}:")
    P.L.append(Pseudo('drop_vm'))

def poll(P, o, addr_v, limit=4000):
    lab[0] += 1
    L = f"L_poll{lab[0]}"
    P(f"s_mov_b32 s{S_CNT}, {limit}")
    P(f"{L}:")
    P(f"buffer_load_dwordx2 {vr(V_PD,2)}, v{addr_v}, {sr(SRD_WS,4)}, 0 offen sc1")
    P(f"s_sub_u32 s{S_CNT}, s{S_CNT}, 1")
    P("s_waitcnt vmcnt(0)")
    P(f"v_cmp_ne_u64 vcc, {sr(S_TAG)}, {vr(V_PD,2)}")
    P(f"s_cbranch_scc1 {L}_x")
    P(f"s_cbranch_vccnz {L}")
    P(f"{L}_x:")

slow_paths = []
def poll_issue(addr_v):
    return [f"buffer_load_dwordx2 {vr(V_PD,2)}, v{addr_v}, {sr(SRD_WS,4)}, 0 offen sc1"]
def poll_check(addr_v, limit=4000):
    lab[0] += 1
    L = f"L_pc{lab[0]}"
    slow_paths.append(f"""{L}_slow:
s_mov_b32 s{S_CNT}, {limit}
{L}_loop:
buffer_load_dwordx2 {vr(V_PD,2)}, v{addr_v}, {sr(SRD_WS,4)}, 0 offen sc1
s_sub_u32 s{S_CNT}, s{S_CNT}, 1
s_waitcnt vmcnt(0)
v_cmp_ne_u64 vcc, {sr(S_TAG)}, {vr(V_PD,2)}
s_cbranch_scc1 {L}_back
s_cbranch_vccnz {L}_loop
s_branch {L}_back""")
    return [f"v_cmp_ne_u64 vcc, {sr(S_TAG)}, {vr(V_PD,2)}\ns_cbranch_vccnz {L}_slow\n{L}_back:"]

def flag_store(soff):
    return [f"buffer_store_dwordx2 {vr(V_TAG,2)}, v{V_FLAGOFF}, {sr(SRD_WS,4)}, s{soff} offen sc1"]

ACC_Q, ACC_F = 16, 64
FR = 128
GT = 160
V_XD, V_QD, V_FD = 192, 196, 199
V_XR, V_QR, V_FRD = 203, 207, 208
V_CA, V_CB = 212, 214
V_QR2, V_L128 = 213, 215

def adv(ci):
    return f"s_add_u32 s{ci}, s{ci}, 1\ns_cmp_eq_u32 s{ci}, 7\ns_cselect_b32 s{ci}, 0, s{ci}"

def dma_a(n):
    sl = (n % 3) * SA
    L = []
    if n: L.append([adv(S_CI)])
    L.append([f"s_lshl_b32 s{S_XO}, s{S_CI}, 7", f"s_add_u32 m0, s{S_M4}, {sl}"])
    L.append([f"s_mul_i32 s{S_QO}, s{S_CI}, {64*2688}"])
    for i in range(4):
        L.append([(f"buffer_load_dwordx4 v{V_XD+i}, {sr(SRD_X,4)}, s{S_XO} offen offset:{i*1024} lds", f'da{n}')])
    L.append([f"s_add_u32 m0, s{S_M3}, {sl}"])
    for i in range(3):
        L.append([(f"buffer_load_dwordx4 v{V_QD+i}, {sr(SRD_WQ,4)}, s{S_QO} offen offset:{i*1024} lds", f'da{n}')])
    return L

def dma_b(n):
    L = []
    if n: L.append([adv(S_CJ)])
    L.append([f"s_add_u32 m0, s{S_M4}, {LF + ((n + 1) % 4) * SF}", f"s_mul_i32 s{S_FO}, s{S_CJ}, {64*3584}"])
    for i in range(4):
        L.append([(f"buffer_load_dwordx4 v{V_FD+i}, {sr(SRD_W1,4)}, s{S_FO} offen offset:{i*1024} lds", f'db{n}')])
    return L

def reads_a(g):
    c, s = g >> 2, g & 3
    sl = (c % 3) * SA
    base = FR + 16 * (g & 1)
    L = [f"ds_read_b128 {ar(4*g,4)}, v{V_XR+s} offset:{sl}"]
    q, so = (V_QR2, 0) if c % 3 == 2 else (V_QR, sl)
    for t in range(3):
        for rho in range(2):
            L.append(f"ds_read_b64_tr_b16 {vr(base+4*t+2*rho,2)}, v{q} offset:{so + (16*s+4*rho)*192 + t*64}")
    return L

def reads_b(g):
    c, s = g >> 2, g & 3
    base = FR + 16 * (g & 1)
    return [f"ds_read_b64_tr_b16 {vr(base+4*t+2*rho,2)}, v{V_FRD+t} offset:{((c + 1) % 4)*SF + (16*s+4*rho)*256}" for t in range(4) for rho in range(2)]

def s1_x_addr(P, o):
    T = V_T
    if o.ncls == 3:
        P(f"s_add_u32 s{S_CI}, s{S_C}, s{S_RBL}")
        P(f"s_lshl_b32 s{S_CI}, s{S_CI}, 1")
        P(f"s_lshr_b32 s{S_CI}, 0x24924, s{S_CI}")
        P(f"s_and_b32 s{S_CI}, s{S_CI}, 3")
        P(f"s_lshl_b32 s{S_CI}, s{S_CI}, 1")
    elif o.ncls == 2:
        P(f"s_add_u32 s{S_CI}, s{S_C}, s{S_RBL}")
        P(f"s_and_b32 s{S_CI}, s{S_CI}, 1")
        P(f"s_mul_i32 s{S_CI}, s{S_CI}, 3")
    else:
        P(f"s_mov_b32 s{S_CI}, 0")
    P(f"s_and_b32 s{S_RB}, s{S_XCD}, 3")
    P(f"s_lshl2_add_u32 s{S_RB}, s{S_RB}, s{S_RBL}")
    P(f"s_lshl2_add_u32 s{S_TB}, s{S_RB}, s{S_WAVE}")
    P(f"v_lshrrev_b32 v{T}, 3, v{V_LANE}")
    P(f"v_and_b32 v{T+1}, 7, v{V_LANE}")
    P(f"v_lshrrev_b32 v{T+2}, 4, v{V_LANE}")
    P(f"s_lshl_b32 s{S_T2}, s{S_TB}, 5")
    P(f"v_add_u32 v{T}, s{S_T2}, v{T}")
    P(f"v_mul_u32_u24 v{T}, 896, v{T}")
    P(f"v_xor_b32 v{T+1}, v{T+2}, v{T+1}")
    P(f"v_lshl_add_u32 v{V_XD}, v{T+1}, 4, v{T}")
    P(f"v_xor_b32 v{V_XD+1}, 64, v{V_XD}")
    P(f"s_lshl_b32 s{S_M4}, s{S_WAVE}, 12")
    P(f"v_add_u32 v{V_XD+2}, {2*(8*896-1024)}, v{V_XD}")
    P(f"v_add_u32 v{V_XD+3}, {3*(8*896-1024)}, v{V_XD+1}")
    P(f"v_add_u32 v{V_XD+1}, {1*(8*896-1024)}, v{V_XD+1}")

def s1_wq_addr(P, o):
    T = V_T
    P(f"s_lshr_b32 s{S_B}, s{S_XCD}, 2")
    P(f"s_mul_i32 s{S_B}, s{S_B}, 7")
    P(f"s_add_u32 s{S_B}, s{S_B}, s{S_C}")
    P(f"s_mul_i32 s{S_T2}, s{S_WAVE}, 192")
    P(f"s_mul_i32 s{S_T3}, s{S_B}, 192")
    P(f"v_add_u32 v{T}, s{S_T2}, v{V_LANE}")
    P(f"v_lshl_add_u32 v{T+2}, v{T}, 4, s{S_T3}")
    P(f"v_mul_u32_u24 v{T}, 0xaaab, v{T}")
    P(f"s_movk_i32 s{S_T3}, 2496")
    for i in range(3):
        if i: P(f"v_add_u32 v{T}, {64*0xaaab}, v{T}")
        P(f"v_lshrrev_b32 v{T+1}, 19, v{T}")
        P(f"v_mad_u32_u24 v{V_QD+i}, v{T+1}, s{S_T3}, v{T+2}")
    P(f"s_lshl_b32 s{S_T2}, s{S_T2}, 4")
    P(f"s_add_u32 s{S_M3}, s{S_T2}, {LQ}")
    srd_rest(P, [(SRD_WQ, 448*2688)])

def s1_read_addr(P, o):
    T = V_T
    P(f"v_and_b32 v{T}, 31, v{V_LANE}")
    P(f"v_lshrrev_b32 v{T+1}, 5, v{V_LANE}")
    P(f"v_bfe_u32 v{T+2}, v{V_LANE}, 1, 3")
    P(f"v_xor_b32 v{T+2}, v{T+2}, v{T+1}")
    P(f"v_lshl_add_u32 v{T}, v{T}, 7, s{S_M4}")
    for s in range(4):
        P(f"v_xor_b32 v{T+3}, {2*s}, v{T+2}")
        P(f"v_lshl_add_u32 v{V_XR+s}, v{T+3}, 4, v{T}")
    P(f"v_bfe_u32 v{T}, v{V_LANE}, 2, 2")
    P(f"v_lshl_add_u32 v{T+1}, v{T+1}, 3, v{T}")
    P(f"v_bfe_u32 v{T+2}, v{V_LANE}, 4, 1")
    P(f"v_lshlrev_b32 v{T+2}, 5, v{T+2}")
    P(f"v_and_b32 v{T+3}, 3, v{V_LANE}")
    P(f"v_lshl_add_u32 v{T+2}, v{T+3}, 3, v{T+2}")
    P(f"v_mul_u32_u24 v{T+3}, 192, v{T+1}")
    P(f"v_add_u32 v{T+3}, {LQ}, v{T+3}")
    P(f"v_add_u32 v{V_QR}, v{T+3}, v{T+2}")
    P(f"v_add_u32 v{V_QR2}, {2*SA}, v{V_QR}")
    P(f"v_lshl_add_u32 v{T+2}, v{T+1}, 8, v{T+2}")
    P(f"v_add_u32 v{T+2}, {LF}, v{T+2}")
    for c in range(4):
        P(f"v_xor_b32 v{T+3}, {c}, v{T}")
        P(f"v_lshl_add_u32 v{V_FRD+c}, v{T+3}, 6, v{T+2}")

def s1_w1_addr(P, o):
    T = V_T
    P(f"v_lshrrev_b32 v{T+2}, 4, v{V_LANE}")
    P(f"v_lshlrev_b32 v{T+1}, 2, v{T+2}")
    P(f"v_xor_b32 v{T+1}, v{T+1}, v{V_LANE}")
    P(f"v_and_b32 v{T+1}, 15, v{T+1}")
    P(f"s_lshl_b32 s{S_T2}, s{S_WAVE}, 4")
    P(f"v_add_u32 v{T}, s{S_T2}, v{T+2}")
    P(f"v_mul_u32_u24 v{T}, 3584, v{T}")
    P(f"s_lshl_b32 s{S_T3}, s{S_B}, 8")
    P(f"v_lshl_add_u32 v{T}, v{T+1}, 4, v{T}")
    P(f"v_add_u32 v{V_FD}, s{S_T3}, v{T}")
    for i in range(1, 4):
        P(f"v_add_u32 v{V_FD+i}, {i*(4*3584-1024)}, v{V_FD}")
    srd_rest(P, [(SRD_W1, 448*3584)])
    P(f"v_lshl_add_u32 v{T}, v{V_LANE}, 2, s{S_T3}")
    P(f"global_load_dword v9, v{T}, {sr(S_B1)}")

def w1_touch(P, o):
    T = V_T
    P(f"v_lshrrev_b32 v{T}, 1, v{V_LANE}")
    P(f"v_min_u32 v{T}, 27, v{T}")
    P(f"s_lshl2_add_u32 s{S_T0}, s{S_RBL}, s{S_WAVE}")
    P(f"s_mul_i32 s{S_T0}, s{S_T0}, 28")
    P(f"v_add_u32 v{T}, s{S_T0}, v{T}")
    P(f"v_mul_u32_u24 v{T}, 3584, v{T}")
    P(f"v_and_b32 v{T+1}, 1, v{V_LANE}")
    P(f"v_lshl_add_u32 v{T}, v{T+1}, 7, v{T}")
    P(f"s_lshl_b32 s{S_T0}, s{S_B}, 8")
    P(f"buffer_load_dword v160, v{T}, {sr(SRD_W1,4)}, s{S_T0} offen", tag='warm')

def s1_misc(P, o):
    srd_rest(P, [(SRD_WS, WS_SIZE), (SRD_OUT, 2048*896)])
    A = -2.0 * math.sqrt(2.0 / math.pi) * 0.044715 * math.log2(math.e)
    B = -2.0 * math.sqrt(2.0 / math.pi) * math.log2(math.e)
    P(f"v_mov_b32 v{V_CA}, {hex(f2u(A))}")
    P(f"v_mov_b32 v{V_CB}, {hex(f2u(B))}")
    P(f"v_lshlrev_b32 v{V_L128}, 7, v{V_LANE}")
    P(f"s_mul_i32 s{S_QST}, s{S_TB}, {QKV_TB}")
    P(f"s_mul_i32 s{S_T0}, s{S_B}, {3*2048}")
    P(f"s_add_u32 s{S_QST}, s{S_QST}, s{S_T0}")
    P(f"s_add_u32 s{S_QST}, s{S_QST}, {QKV_OFF}")
    P(f"s_mul_i32 s{S_HST}, s{S_TB}, {A_TB}")
    P(f"s_lshl_b32 s{S_T0}, s{S_B}, 13")
    P(f"s_add_u32 s{S_HST}, s{S_HST}, s{S_T0}")
    P(f"s_add_u32 s{S_HST}, s{S_HST}, {A_OFF}")
    P(f"s_lshl4_add_u32 s{S_T0}, s{S_TB}, s{S_B}")
    P(f"s_lshl_b32 s{S_T0}, s{S_T0}, 7")
    P(f"s_add_u32 s{S_QFL}, s{S_T0}, {FL_QKV}")
    P(f"s_add_u32 s{S_HFL}, s{S_T0}, {FL_H}")
    P(f"s_mul_i32 s{S_B3}, s{S_B}, 3")
    P(f"s_mov_b32 s{S_SPARE}, 0")

def bias_expand(P, src_v, tmp, addr, base):
    P(f"v_lshlrev_b32 v{tmp}, 16, v{src_v}")
    P(f"v_and_b32 v{tmp+1}, 0xffff0000, v{src_v}")
    P(f"v_lshl_add_u32 v{tmp+2}, v{V_LANE}, 3, s{base}")
    P(f"ds_write_b64 v{tmp+2}, {vr(tmp,2)}")
    P(f"v_lshrrev_b32 v{addr}, 5, v{V_LANE}")
    P(f"v_lshl_add_u32 v{addr}, v{addr}, 4, s{base}")

def bias1(P, o):
    P(f"s_lshl_b32 s{S_T0}, s{S_WAVE}, 9")
    P(f"s_add_u32 s{S_T0}, s{S_T0}, {LBIAS}")
    bias_expand(P, 9, 12, 8, S_T0)

def bias1_reads():
    return [[f"ds_read_b128 {vr(ACC_F+16*F+4*q,4)}, v8 offset:{(32*F+8*q)*4}"] for F in range(4) for q in range(4)]

def b_dma(p):
    L = [[f"s_add_u32 m0, s{S_M4}, {LP[PIECE[p]]}"]]
    if p < 14:
        so, sd = S_BOF, SRD_W2
        if p: L[0].append(f"s_add_u32 s{so}, s{so}, {32*896}")
    else:
        so, sd = S_BO, SRD_WO
        i = p - 14
        if i: L[0].append(f"s_add_u32 s{so}, s{so}, {8*(((7*i)>>1) - ((7*(i-1))>>1))*896}")
    for i in range(4):
        L.append([(f"buffer_load_dwordx4 v{V_BA+i}, {sr(sd,4)}, s{so} offen offset:{i*1024} lds", f'bp{p}')])
    return L

def breg(n, ctl):
    if n >= 22: n -= 22
    return ('a', (112 + 8 * n if n < 18 else 8 * (n - 18)) + 4 * ctl)

def b_reads(n):
    pc = LP[PIECE[n >> 1]]
    hi, so = divmod(pc, 65536)
    return [f"ds_read_b64_tr_b16 {ar(breg(n, ctl)[1]+2*rho,2)}, v{V_BR[hi][ctl]} offset:{so + (n & 1)*2048 + rho*1024}" for ctl in range(2) for rho in range(2)]

class Gaps:
    def __init__(self): self.m = {}; self.v = {}
    def put(self, kind, items, g0, g1):
        d = self.m if kind == 'm' else self.v
        spread(d, items, list(range(g0, g1)), kind == 'm')
    def emit(self, G): return sum(self.m.get(G, []), []) + sum(self.v.get(G, []), [])

def spread(hooks, items, slots, unit=True):
    w = (lambda g: 1) if unit else len
    tot = sum(w(g) for g in items); done = 0
    for g in items:
        s = slots[min(len(slots) - 1, (done * len(slots)) // tot)]
        hooks.setdefault(s, []).append(g); done += w(g)

def merge_salu(items):
    out = []; pend = []
    for it in items:
        pend += it
        if any(isinstance(x, tuple) or (isinstance(x, str) and x.startswith(('buffer', 'global', 'ds_'))) for x in it):
            out.append(pend); pend = []
    if pend: out.append(pend)
    return out

def pass_a(P, o, H):
    s1_x_addr(P, o)
    d0 = dma_a(0)
    P.add(d0[0])
    P("s_waitcnt lgkmcnt(0)")
    if o.stamps:
        o.stamp_names.append('entry'); P(f"v_mov_b32 v{V_ST}, 0"); P(f"v_writelane_b32 v{V_ST}, s94, 0")
    for it in d0[2:6]: P.add(it)
    P.add(d0[1]); P(f"s_mov_b32 s{S_CJ}, s{S_CI}")
    s1_wq_addr(P, o)
    for it in d0[6:]: P.add(it)
    stamp(P, o, 'd0_issued')
    for it in dma_a(1): P.add(it)
    s1_read_addr(P, o)
    for it in dma_a(2): P.add(it)
    P.wait_vm('da0')
    P("s_barrier")
    stamp(P, o, 's1_first')
    P.add(reads_a(0))
    for c in range(4): H.put('m', merge_salu(dma_a(c + 3)), 12 * c + 9, 12 * c + 21)
    H.put('m', merge_salu([it for n in range(4) for it in dma_b(n)]), 57, o.bq_end)
    for g in range(28):
        c, s = g >> 2, g & 3
        base = FR + 16 * (g & 1)
        if s == 3 and c < 6:
            P("s_waitcnt lgkmcnt(0)")
            P.wait_vm(f'da{c+1}')
            P("s_barrier")
            if o.trunc: stamp(P, o, f'a{c}')
        rd = reads_a(g + 1) if g < 27 else []
        per = [4, 3, 0] if s == 2 else [3, 2, 2]
        for t in range(3):
            P(mfma(ACC_Q + 16 * t, base + 4 * t, ('a', 4 * g), None if g == 0 else ACC_Q + 16 * t))
            P.add(rd[:per[t]]); rd = rd[per[t]:]
            P.add(H.emit(3 * g + t))
    P("s_waitcnt lgkmcnt(0)")
    P.wait_vm('db0')
    P("s_barrier")
    stamp(P, o, 'pass_a')
    P.add(reads_b(0))

def pass_b(P, o, H):
    for g in range(28):
        c, s = g >> 2, g & 3
        base = FR + 16 * (g & 1)
        if s == 3 and c < 6:
            P("s_waitcnt lgkmcnt(0)")
            P.wait_vm(f'db{c+1}')
            P("s_barrier")
            if o.trunc: stamp(P, o, f'b{c}')
        rd = reads_b(g + 1) if g < 27 else []
        per = [3, 3, 2, 0] if s == 2 else [2, 2, 2, 2]
        for t in range(4):
            P(mfma(ACC_F + 16 * t, base + 4 * t, ('a', 4 * g), ACC_F + 16 * t))
            P.add(rd[:per[t]]); rd = rd[per[t]:]
            P.add(H.emit(4 * g + t))

def qkv_epilogue(P, o):
    c = (28.0 ** -0.5) * math.log2(math.e)
    P(f"s_mov_b32 s{S_T2}, {hex(f2u(c))}")
    for t in range(3):
        acc = ACC_Q + 16 * t
        P(f"s_cmp_lt_u32 s{S_B3}, {14 - t}")
        P(f"s_cbranch_scc0 L_nosc{t}")
        for i in range(8):
            P(f"v_pk_mul_f32 {vr(acc+2*i,2)}, {vr(acc+2*i,2)}, s[{S_T2}:{S_T3}] op_sel_hi:[1,0]")
        P(f"L_nosc{t}:")
        p = GT + 8 * t
        for i in range(8):
            P(f"v_cvt_pk_bf16_f32 v{p+i}, v{acc+2*i}, v{acc+2*i+1}")
        for h in range(2):
            P(f"v_permlane32_swap_b32 v{p+4*h}, v{p+4*h+2}")
            P(f"v_permlane32_swap_b32 v{p+4*h+1}, v{p+4*h+3}")
        for h in range(2):
            off = t * 2048 + h * 1024
            P(f"buffer_store_dwordx4 {vr(p+4*h,4)}, v{V_L16H if off >= 4096 else V_L16}, {sr(SRD_WS,4)}, s{S_QST} offen offset:{off & 4095} {SC}", tag='qst')

def gelu_tile(F):
    u = ACC_F + 16 * F
    t = GT + 16 * (F & 1)
    L = []
    pr = lambda b, i: vr(b + 2 * i, 2)
    for i in range(8): L.append(f"v_pk_mul_f32 {pr(t,i)}, {pr(u,i)}, {pr(u,i)}")
    for i in range(8): L.append(f"v_pk_fma_f32 {pr(t,i)}, {pr(t,i)}, {vr(V_CA,2)}, {vr(V_CB,2)} op_sel_hi:[1,0,0]")
    for i in range(8): L.append(f"v_pk_mul_f32 {pr(t,i)}, {pr(t,i)}, {pr(u,i)}")
    for i in range(16): L.append(f"v_exp_f32 v{t+i}, v{t+i}")
    for i in range(8): L.append(f"v_pk_add_f32 {pr(t,i)}, {pr(t,i)}, 1.0 op_sel_hi:[1,0]")
    for i in range(16): L.append(f"v_rcp_f32 v{t+i}, v{t+i}")
    for i in range(8): L.append(f"v_pk_mul_f32 {pr(t,i)}, {pr(t,i)}, {pr(u,i)}")
    for i in range(8): L.append(f"v_cvt_pk_bf16_f32 v{t+i}, v{t+2*i}, v{t+2*i+1}")
    for h in range(2):
        off = (2 * F + h) * 1024
        L.append((f"buffer_store_dwordx4 {vr(t+4*h,4)}, v{V_L16H if off >= 4096 else V_L16}, {sr(SRD_WS,4)}, s{S_HST} offen offset:{off & 4095} {SC}", 'hst'))
    return L

def prep(P, o):
    T = V_T
    if o.stamps: P(f"v_mov_b32 v{V_ST}, 0")
    common2(P, o)
    srd_rest(P, [(SRD_WS, WS_SIZE)])
    P(f"v_lshlrev_b32 v{V_L128}, 7, v{V_LANE}")
    P(f"s_mov_b32 s{S_SPARE}, 1")
    P(f"s_lshl_b32 s{S_M4}, s{S_WAVE}, 12")
    P(f"v_lshrrev_b32 v{T}, 2, v{V_LANE}")
    P(f"s_lshl2_add_u32 s{S_T0}, s{S_R}, s{S_WAVE}")
    P(f"s_lshl_b32 s{S_T0}, s{S_T0}, 4")
    P(f"v_add_u32 v20, s{S_T0}, v{T}")
    P(f"v_mul_u32_u24 v{T}, 896, v20")
    P(f"v_and_b32 v{T+1}, 3, v{V_LANE}")
    P(f"v_lshlrev_b32 v{T+1}, 4, v{T+1}")
    P(f"v_add_u32 v{T}, v{T}, v{T+1}")
    P("s_waitcnt lgkmcnt(0)")
    if o.stamps: P(f"v_writelane_b32 v{V_ST}, s94, 0")
    P(f"s_load_dword s{S_TAG}, {sr(SRD_WS)}, {WS_E}")
    P(f"s_mov_b64 {sr(SRD_W2)}, {sr(S_W2)}")
    if o.pw:
        P(f"v_min_u32 v{T+2}, 27, v{V_LANE}")
        P(f"v_lshlrev_b32 v{T+2}, 7, v{T+2}")
        P(f"global_load_dword v176, v{T+2}, {sr(S_B1)}")
        P(f"v_lshlrev_b32 v{T+3}, 20, v{V_LANE}")
        P(f"buffer_load_dword v177, v{T+3}, {sr(SRD_WS,4)}, 0 offen")
        P(f"v_min_u32 v{T+2}, {6*128}, v{T+2}")
        P(f"global_load_dword v178, v{T+2}, {sr(S_B2)}")
        srd_rest(P, [(SRD_OUT, 2048*896)])
        P(f"buffer_load_dword v179, v{T+3}, {sr(SRD_OUT,4)}, 0 offen")
    if o.mw:
        srd_rest(P, [(SRD_W1, 448*3584), (SRD_W2, 1792*896), (SRD_WQ, 448*896)])
        P(f"s_mov_b64 {sr(SRD_WQ)}, {sr(S_WO)}")
        P(f"s_lshl2_add_u32 s{S_T0}, s{S_R}, s{S_WAVE}")
        P(f"s_lshl_b32 s{S_T0}, s{S_T0}, 13")
        P(f"s_add_u32 s{S_T1}, s{S_T0}, 0x100000")
        for i, (d, so) in enumerate(((SRD_W1, S_T0), (SRD_W1, S_T1), (SRD_W2, S_T0), (SRD_W2, S_T1), (SRD_WQ, S_T0))):
            P(f"buffer_load_dword v{180+i}, v{V_L128}, {sr(d,4)}, s{so} offen")
    for i in range(14):
        P(f"buffer_load_dwordx4 {vr(32+4*i,4)}, v{T}, {sr(SRD_X,4)}, 0 offen offset:{64*i}")
        P(f"global_load_dwordx4 {vr(96+4*i,4)}, v{T+1}, {sr(S_GW)} offset:{64*i}")
    P.add(TAGOPS)
    P("v_mov_b32 v24, 0")
    P("v_mov_b32 v25, 0")
    for i in range(56):
        P(f"v_dot2_f32_bf16 v{24+(i&1)}, v{32+i}, v{96+i}, v{24+(i&1)}")
    P("s_nop 2")
    P("v_add_f32 v24, v24, v25")
    P("v_add_f32_dpp v24, v24, v24 quad_perm:[1,0,3,2] row_mask:0xf bank_mask:0xf")
    P("v_add_f32_dpp v24, v24, v24 quad_perm:[2,3,0,1] row_mask:0xf bank_mask:0xf")
    P(f"v_mul_f32 v24, {hex(f2u(-math.log2(math.e)))}, v24")
    P("v_exp_f32 v24, v24")
    P("v_add_f32 v24, 1.0, v24")
    P("v_rcp_f32 v24, v24")
    P(f"v_lshlrev_b32 v20, 2, v20")
    P(f"v_and_b32 v25, 3, v{V_LANE}")
    P(f"v_cmp_eq_u32 vcc, 0, v25")
    P(f"v_mov_b32 v27, 0x7fff0000")
    P(f"v_cndmask_b32 v20, v27, v20, vcc")
    P(f"s_mov_b32 s{S_T0}, {G_OFF}")
    P(f"buffer_store_dword v24, v20, {sr(SRD_WS,4)}, s{S_T0} offen {SC}")
    P("s_waitcnt vmcnt(0) lgkmcnt(0)")
    P("s_barrier")
    P(f"s_lshl_b32 s{S_T0}, s{S_R}, 7")
    P(f"s_add_u32 s{S_T0}, s{S_T0}, {FL_G}")
    P(f"s_cmp_eq_u32 s{S_WAVE}, 0")
    P("s_cbranch_scc0 L_prep_nf")
    P.add(flag_store(S_T0))
    P("L_prep_nf:")
    stamp(P, o, 'p_flag')
    for i in range(o.wsp):
        P(f"s_lshl2_add_u32 s{S_T4}, s{S_RBL}, s{S_WAVE}")
        P(f"s_add_u32 s{S_T4}, s{S_T4}, {16*i}")
        warm_touch(P, S_T4, 160 + i, S_T0, V_L128)

AQ = 16
AK = 24
AV = 40
AS = 56
AN = 104
AO = 120
AP = 136
AM = 236
A_KR, A_VR = 244, 245
A_KD, A_VD = 247, 248
A_PA, A_PV = 250, 251
A_G = 254
A_MX = 5

def att_scalars(P, o):
    P(f"s_and_b32 s{S_ARB}, s{S_SLOT}, 15")
    P(f"s_lshr_b32 s{S_J}, s{S_SLOT}, 4")
    P(f"s_lshl1_add_u32 s{S_J}, s{S_XCD}, s{S_J}")
    P(f"s_lshl2_add_u32 s{S_ATB}, s{S_ARB}, s{S_WAVE}")
    P(f"s_and_b32 s{S_PAR}, s{S_J}, 1")
    P(f"s_lshl4_add_u32 s{S_T0}, s{S_ATB}, s{S_J}")
    P(f"s_lshl_b32 s{S_T0}, s{S_T0}, 7")
    P(f"s_add_u32 s{S_OFL}, s{S_T0}, {FL_O}")
    P(f"s_mul_i32 s{S_T2}, s{S_ATB}, {A_TB}")
    P(f"s_lshl_b32 s{S_T3}, s{S_J}, 11")
    P(f"s_add_u32 s{S_T2}, s{S_T2}, s{S_T3}")
    P(f"s_add_u32 s{S_OST}, s{S_T2}, {A_OFF + 112*1024}")

def att_poll_addr(P, o):
    T = V_T
    P(f"v_min_u32 v{T}, 13, v{V_LANE}")
    P(f"v_lshrrev_b32 v{T+1}, 1, v{T}")
    P(f"v_and_b32 v{T}, 1, v{T}")
    P(f"s_mul_i32 s{S_T0}, s{S_J}, 7")
    P(f"s_lshr_b32 s{S_T0}, s{S_T0}, 1")
    P(f"s_lshl_b32 s{S_T0}, s{S_T0}, 3")
    P(f"v_mad_u32_u24 v{T}, v{T}, 31, s{S_T0}")
    P(f"v_mov_b32 v{T+2}, 896")
    P(f"v_mov_b32 v{T+3}, 448")
    P(f"v_subrev_u32 v{T+4}, 3, v{T+1}")
    P(f"v_cmp_gt_u32 vcc, 3, v{T+1}")
    P(f"v_cndmask_b32 v{T+2}, v{T+2}, v{T+3}, vcc")
    P(f"v_cndmask_b32 v{T+3}, v{T+4}, v{T+1}, vcc")
    P(f"s_mul_i32 s{S_T1}, s{S_WAVE}, 3")
    P(f"s_lshl2_add_u32 s{S_T1}, s{S_ARB}, s{S_T1}")
    P(f"s_sub_u32 s{S_T1}, s{S_T1}, 8")
    P(f"v_add_u32 v{T+3}, s{S_T1}, v{T+3}")
    P(f"v_max_i32 v{T+3}, 0, v{T+3}")
    P(f"v_mov_b32 v{T+4}, s{S_ATB}")
    P(f"v_cmp_eq_u32 vcc, 6, v{T+1}")
    P(f"v_cndmask_b32_e64 v{T+2}, v{T+2}, 0, vcc")
    P(f"v_cndmask_b32 v{T+3}, v{T+3}, v{T+4}, vcc")
    P(f"v_add_u32 v{T}, v{T}, v{T+2}")
    P(f"v_mul_u32_u24 v{T}, 683, v{T}")
    P(f"v_lshrrev_b32 v{T}, 16, v{T}")
    P(f"v_lshl_add_u32 v{T}, v{T+3}, 4, v{T}")
    P(f"v_lshlrev_b32 v{T}, 7, v{T}")
    P(f"v_add_u32 v{V_PA}, {FL_QKV}, v{T}")
    P(f"s_lshr_b32 s{S_T0}, s{S_ATB}, 1")
    P(f"s_lshl_b32 s{S_T0}, s{S_T0}, 7")
    P(f"s_add_u32 s{S_T0}, s{S_T0}, {FL_G}")
    P(f"s_lshl_b32 s{S_T1}, s{S_R}, 7")
    P(f"s_add_u32 s{S_T1}, s{S_T1}, {FL_G}")
    P(f"v_writelane_b32 v{V_PA}, s{S_T0}, 14")
    P(f"v_writelane_b32 v{V_PA}, s{S_T1}, 15")

def att_addr(P, o):
    T = V_T
    P(f"s_mul_i32 s{S_T0}, s{S_J}, 7")
    P(f"s_lshr_b32 s{S_T0}, s{S_T0}, 1")
    P(f"s_lshl_b32 s{S_T4}, s{S_T0}, 9")
    P(f"s_add_u32 s{S_T1}, s{S_T4}, {56*512}")
    P(f"v_add_u32 v{A_KD}, s{S_T1}, v{V_L16}")
    P(f"v_lshrrev_b32 v{T}, 5, v{V_LANE}")
    P(f"v_and_b32 v{T+1}, 31, v{V_LANE}")
    P(f"s_add_u32 s{S_T1}, s{S_T4}, {112*512 - 2048}")
    P(f"v_lshlrev_b32 v{T+2}, 2, v{T}")
    P(f"v_xor_b32 v{T+2}, v{T+2}, v{T+1}")
    P(f"v_lshlrev_b32 v{T+2}, 4, v{T+2}")
    P(f"v_lshl_add_u32 v{T+2}, v{T}, 9, v{T+2}")
    P(f"v_add_u32 v{A_VD}, s{S_T1}, v{T+2}")
    P(f"v_xor_b32 v{A_VD+1}, 128, v{A_VD}")
    P(f"v_add_u32 v{A_KR}, s{S_M4}, v{V_L16}")
    P(f"v_bfe_u32 v{T+1}, v{V_LANE}, 4, 1")
    P(f"v_bfe_u32 v{T+2}, v{V_LANE}, 1, 1")
    P(f"v_lshl_add_u32 v{T+3}, v{T+1}, 1, v{T+2}")
    P(f"v_lshlrev_b32 v{T+4}, 9, v{T+3}")
    P(f"v_xor_b32 v{T+3}, v{T+3}, v{T}")
    P(f"v_lshl_add_u32 v{T+4}, v{T+3}, 6, v{T+4}")
    P(f"v_bfe_u32 v{T+3}, v{V_LANE}, 2, 2")
    P(f"v_lshl_add_u32 v{T+4}, v{T+3}, 4, v{T+4}")
    P(f"v_and_b32 v{T+3}, 1, v{V_LANE}")
    P(f"v_lshl_add_u32 v{T+4}, v{T+3}, 3, v{T+4}")
    P(f"s_add_u32 s{S_T1}, s{S_M4}, 2048")
    P(f"v_add_u32 v{A_VR}, s{S_T1}, v{T+4}")
    P(f"v_xor_b32 v{A_VR+1}, 128, v{A_VR}")
    P(f"v_and_b32 v{T+1}, 31, v{V_LANE}")
    P(f"v_mul_u32_u24 v{T+2}, 12, v{T}")
    P(f"s_cmp_eq_u32 s{S_PAR}, 0")
    P(f"s_cselect_b32 s{S_T1}, -1, 0")
    P(f"s_cselect_b32 s{S_T2}, 1544, 0")
    P(f"v_and_b32 v{T+2}, s{S_T1}, v{T+2}")
    P(f"v_xor_b32 v{T+1}, v{T+1}, v{T+2}")
    P(f"v_lshlrev_b32 v{T+1}, 4, v{T+1}")
    P(f"v_lshl_add_u32 v{T+1}, v{T}, 11, v{T+1}")
    P(f"s_mul_i32 s{S_T3}, s{S_WAVE}, {3*4096}")
    P(f"s_add_u32 s{S_T2}, s{S_T2}, s{S_T3}")
    P(f"v_add_u32 v{A_PA}, s{S_T2}, v{T+1}")
    P(f"s_mul_i32 s{S_T1}, s{S_WAVE}, 3")
    P(f"s_lshl2_add_u32 s{S_T1}, s{S_ARB}, s{S_T1}")
    P(f"v_mov_b32 v{T+1}, 0x3f80")
    for k in range(3):
        P(f"s_add_u32 s{S_T2}, s{S_T1}, {k}")
        P(f"s_cmp_lt_u32 s{S_T2}, 8")
        P(f"s_cselect_b32 s{S_T2}, 0xf14a, 0")
        P(f"v_mov_b32 v{A_PV+k}, s{S_T2}")
    P(f"v_cmp_gt_u32 vcc, 32, v{V_LANE}")
    for k in range(3): P(f"v_cndmask_b32 v{A_PV+k}, v{T+1}, v{A_PV+k}, vcc")

def att_masks(P, o):
    T = V_T
    P(f"v_lshrrev_b32 v{T+1}, 5, v{V_LANE}")
    P(f"v_mul_u32_u24 v{T+1}, 36, v{T+1}")
    P(f"v_sub_u32 v{T+1}, v{V_LANE}, v{T+1}")
    for r in range(16):
        P(f"v_cmp_le_i32_e64 {sr(S_MASK+2*r)}, {(r & 3) + 8 * (r >> 2)}, v{T+1}")
    P(f"v_mov_b32 v{T+1}, 0xffff")
    P(f"v_mov_b32 v{T+2}, 0xffff0000")
    for i in range(8):
        P(f"v_cndmask_b32_e64 v{T+3}, 0, v{T+1}, {sr(S_MASK+4*i)}")
        P(f"v_cndmask_b32_e64 v{T+4}, 0, v{T+2}, {sr(S_MASK+4*i+2)}")
        P(f"v_or_b32 v{AM+i}, v{T+3}, v{T+4}")

def att_kvoff(P, o):
    P(f"s_mul_i32 s{S_T1}, s{S_WAVE}, 3")
    P(f"s_lshl2_add_u32 s{S_T1}, s{S_ARB}, s{S_T1}")
    for k in range(3):
        P(f"s_add_i32 s{S_T2}, s{S_T1}, {k-8}")
        P(f"s_max_i32 s{S_T2}, s{S_T2}, 0")
        P(f"s_mul_i32 s{S_T2}, s{S_T2}, {QKV_TB}")
        P(f"s_add_u32 s{S_KV[k]}, s{S_T2}, {QKV_OFF}")
    P(f"s_mul_i32 s{S_T0}, s{S_J}, 7")
    P(f"s_lshr_b32 s{S_T0}, s{S_T0}, 1")
    P(f"s_lshl_b32 s{S_T0}, s{S_T0}, 9")
    P(f"s_mul_i32 s{S_T2}, s{S_ATB}, {QKV_TB}")
    P(f"s_add_u32 s{S_T2}, s{S_T2}, s{S_T0}")
    P(f"s_add_u32 s{S_KV[3]}, s{S_T2}, {QKV_OFF}")

def att_loads(o, last_g=True):
    T = V_T
    L = [[f"s_mul_i32 s{S_T3}, s{S_WAVE}, {3*4096}"]]
    for k in range(3):
        g = [f"s_add_u32 m0, s{S_T3}, {LKV + k*4096}"]
        for t in range(2):
            g.append((f"buffer_load_dwordx4 v{A_KD}, {sr(SRD_WS,4)}, s{S_KV[k]} offen offset:{t*1024} {SC} lds", 'kv'))
        for t in range(2):
            g.append((f"buffer_load_dwordx4 v{A_VD+t}, {sr(SRD_WS,4)}, s{S_KV[k]} offen offset:{2048+t*1024} {SC} lds", 'kv'))
        L += [[x] for x in g]
    for t in range(2):
        L.append([f"buffer_load_dwordx4 {vr(AQ+4*t,4)}, v{V_L16}, {sr(SRD_WS,4)}, s{S_KV[3]} offen offset:{t*1024} {SC}"])
    G = [f"v_and_b32 v{T+1}, 31, v{V_LANE}", f"v_lshlrev_b32 v{T+1}, 2, v{T+1}",
         f"s_lshl_b32 s{S_T2}, s{S_ATB}, 7", f"s_add_u32 s{S_T2}, s{S_T2}, {G_OFF}",
         f"buffer_load_dword v{A_G}, v{T+1}, {sr(SRD_WS,4)}, s{S_T2} offen {SC}"]
    if last_g:
        G += [f"s_and_b32 s{S_T1}, s{S_WAVE}, 1", f"s_lshl_b32 s{S_T0}, s{S_R}, 8", f"s_add_u32 s{S_T0}, s{S_T0}, {G_OFF}",
              f"s_lshl_b32 s{S_T2}, s{S_T1}, 7", f"s_xor_b32 s{S_T3}, s{S_T2}, 128", f"s_add_u32 s{S_T2}, s{S_T2}, s{S_T0}",
              f"s_add_u32 s{S_T3}, s{S_T3}, s{S_T0}",
              f"buffer_load_dword v{L_G}, v{T+1}, {sr(SRD_WS,4)}, s{S_T3} offen {SC}",
              f"buffer_load_dword v{L_G+1}, v{T+1}, {sr(SRD_WS,4)}, s{S_T2} offen {SC}"]
    return L + [[x] for x in G]

def att_patch():
    T = V_T
    L = [[WVM('kv')]]
    L += [[f"ds_write_b16 v{A_PA}, v{A_PV+k} offset:{LKV + k*4096}"] for k in range(3)]
    L += [[f"s_cmp_eq_u32 s{S_PAR}, 0\ns_cselect_b32 s{S_T0}, 0, -1\ns_cselect_b32 s{S_T3}, -1, 0"],
          [f"s_mov_b32 s{S_T1}, 0"], [f"s_mov_b32 s{S_T2}, 0"], [f"v_mov_b32 v{T}, 0x3f80"],
          [f"v_cndmask_b32_e64 v{AQ}, v{AQ}, v{T}, {sr(S_T0)}"], [f"v_cndmask_b32_e64 v{AQ+1}, v{AQ+1}, 0, {sr(S_T0)}"],
          [f"v_cndmask_b32_e64 v{AQ+6}, v{AQ+6}, v{T}, {sr(S_T2)}"], [f"v_cndmask_b32_e64 v{AQ+7}, v{AQ+7}, 0, {sr(S_T2)}"]]
    return L

ORDER = [0, 8, 1, 2, 3, 4, 5, 6, 7]
def kread(i, buf):
    return [f"ds_read_b128 {vr(AK+8*buf+4*t,4)}, v{A_KR} offset:{LKV + i*4096 + t*1024}" for t in range(2)]
def vread(i, buf):
    return [f"ds_read_b64_tr_b16 {vr(AV+8*buf+4*t+2*rho,2)}, v{A_VR+rho} offset:{LKV + i*4096 + t*256}" for t in range(2) for rho in range(2)]
def qk(i, sbuf, kbuf, c):
    s = AS + 16 * sbuf
    return [mfma(s, AK + 8 * kbuf, AQ, c), mfma(s, AK + 8 * kbuf + 4, AQ + 4, s)]

def attention(P, o, hooks, kpre=False):
    T = V_T
    order = ORDER
    stamp(P, o, 'att_go')
    sb = lambda n: n % 4
    gi = [0]
    def hk():
        gi[0] += 1
        return sum(hooks.get(gi[0] - 1, []), [])
    if not kpre: P.add(kread(order[0], 0)); P.add(kread(order[1], 1))
    def maxops(s, first):
        L = []
        for i in range(8):
            if first and i == 0: L.append(f"v_max_f32 v{A_MX}, v{s}, v{s+1}")
            else: L.append(f"v_max3_f32 v{A_MX}, v{s+2*i}, v{s+2*i+1}, v{A_MX}")
        return L
    merge = [f"v_cndmask_b32_e64 v{AS+16+r}, v{AS+r}, v{AS+16+r}, {sr(S_MASK+2*r)}" for r in range(16)]
    for n in range(9):
        m = qk(order[n], sb(n), n & 1, None)
        post = []
        if n == 3: post = merge
        if n == 4: post = maxops(AS + 16, True) + maxops(AS + 16 * sb(2), False)
        if n >= 5: post = maxops(AS + 16 * sb(n - 2), False)
        nxt = kread(order[n + 2], n & 1) if n + 2 < 9 else kread(order[n + 2 - 9], n & 1)
        h = len(post) // 2
        P.add([m[0]] + hk() + post[:h] + [m[1]] + nxt + hk() + post[h:])
    P.add(vread(0, 0)); P.add(vread(8, 1))
    P.add(maxops(AS + 16 * sb(7), False))
    P.add(maxops(AS + 16 * sb(8), False))
    P(f"v_mov_b32 v{T}, v{A_MX}")
    P(f"v_permlane32_swap_b32 v{A_MX}, v{T}")
    P(f"v_max_f32 v{A_MX}, v{A_MX}, v{T}")
    P(f"v_sub_f32 v{AN}, 0, v{A_MX}")
    P(f"v_sub_f32 v{AN+1}, 0, v{A_MX}")
    for i in range(1, 8): P(f"v_mov_b64 {vr(AN+2*i,2)}, {vr(AN,2)}")
    stamp(P, o, 'att_p1')
    kb = lambda n: (n + 1) & 1
    def expcvt(s, p):
        L = []
        for i in range(8):
            L += [f"v_exp_f32 v{s+2*i}, v{s+2*i}", f"v_exp_f32 v{s+2*i+1}, v{s+2*i+1}"]
            if i >= 1: L.append(f"v_cvt_pk_bf16_f32 v{p+i-1}, v{s+2*i-2}, v{s+2*i-1}")
        L.append(f"v_cvt_pk_bf16_f32 v{p+7}, v{s+14}, v{s+15}")
        return L
    def pv(p, vbuf, first=False):
        return [mfma(AO, AV + 8 * vbuf, p, None if first else AO), mfma(AO, AV + 8 * vbuf + 4, p + 4, AO)]
    m0 = qk(0, 0, kb(0), AN); m1 = qk(8, 1, kb(1), AN)
    P.add([m0[0]] + hk() + [m0[1]] + kread(order[2], kb(2)) + hk() + [m1[0]] + hk() + [m1[1]] + kread(order[3], kb(3)) + hk())
    m2 = qk(order[2], 2, kb(2), AN)
    P.add([m2[0]] + hk() + [m2[1]] + kread(order[4], kb(4)) + hk() + merge)
    ec = expcvt(AS + 16, AP)
    sp = []
    for i in range(8):
        sp += [f"v_and_b32 v{AP+8+i}, v{AP+i}, v{AM+i}", f"v_xor_b32 v{AP+16+i}, v{AP+i}, v{AP+8+i}"]
    m3 = qk(order[3], 0, kb(3), AN)
    P.add(ec[:8] + [m3[0]] + hk() + ec[8:16] + [m3[1]] + kread(order[5], kb(5)) + hk() + ec[16:] + sp)
    pend = pv(AP + 16, 0, True) + pv(AP + 8, 1)
    pend_rd = vread(order[2], 0) + vread(order[3], 1)
    for n in range(2, 9):
        p = AP + 16 if n == 3 else (AP if (n & 1) == 0 else AP + 8)
        ec = expcvt(AS + 16 * (n % 3), p)
        mq = qk(order[n + 2], (n + 2) % 3, kb(n + 2), AN) if n + 2 < 9 else []
        kr = kread(order[n + 4], kb(n + 4)) if n + 4 < 9 else []
        ms = pend + mq
        seq = []
        k = len(ms)
        step = max(1, len(ec) // max(k, 1))
        ei = 0
        for j, mm in enumerate(ms):
            seq.append(mm)
            if j == len(pend) - 1: seq += pend_rd
            if j == k - 1 and mq: seq += kr
            seq += hk()
            take = ec[ei:ei + step] if j < k - 1 else ec[ei:]
            seq += take; ei += len(take)
        P.add(seq)
        vb = n & 1
        pend = pv(p, vb)
        pend_rd = vread(order[n + 2], vb) if n + 2 < 9 else []
    P.add([pend[0]] + hk() + [pend[1]] + hk())
    assert all(k < gi[0] for k in hooks), (gi[0], sorted(hooks))
    P(f"s_cmp_eq_u32 s{S_PAR}, 0")
    P(f"s_cselect_b64 {sr(S_T0)}, -1, 0")
    stamp(P, o, 'att_p2')
    P(f"v_cndmask_b32_e64 v{T}, v{AO}, v{AO+12}, {sr(S_T0)}")
    P(f"v_mov_b32 v{T+1}, v{T}")
    P(f"v_permlane32_swap_b32 v{T}, v{T+1}")
    P(f"v_cndmask_b32_e64 v{T}, v{T}, v{T+1}, {sr(S_T0)}")
    P(f"v_rcp_f32 v{T}, v{T}")
    P(f"s_cselect_b32 s{S_T0}, 0, -1")
    P(f"v_mul_f32 v{T+1}, v{T}, v{A_G}")
    P(f"s_mov_b32 s{S_T1}, 0")
    P(f"s_mov_b32 s{S_T2}, 0")
    P(f"s_cselect_b32 s{S_T3}, -1, 0")
    for i in range(8):
        P(f"v_pk_mul_f32 {vr(AO+2*i,2)}, {vr(AO+2*i,2)}, {vr(T+1,2)} op_sel_hi:[1,0]")
    for i in range(8):
        P(f"v_cvt_pk_bf16_f32 v{AP+i}, v{AO+2*i}, v{AO+2*i+1}")
    for r, m in ((0, S_T0), (1, S_T0), (6, S_T2), (7, S_T2)):
        P(f"v_cndmask_b32_e64 v{AP+r}, v{AP+r}, 0, {sr(m)}")
    for t in range(2):
        P(f"buffer_store_dwordx4 {vr(AP+4*t,4)}, v{V_L16}, {sr(SRD_WS,4)}, s{S_OST} offen offset:{t*1024} {SC}", tag='ost')
    stamp(P, o, 'att_end')

LACC = 16
EARLY = [('a', r) for r in range(32, 112, 4)] + list(range(160, 200, 4)) + list(range(204, 216, 4))
LATE = list(range(80, 136, 4)) + list(range(144, 160, 4)) + list(range(236, 252, 4)) + [136, 140]

def last_baddr(P, o):
    T = V_T
    P(f"s_mov_b64 {sr(SRD_W2)}, {sr(S_W2)}")
    srd_rest(P, [(SRD_W2, 1792*896)])
    P(f"s_mul_i32 s{S_BOF}, s{S_WAVE}, {448*896}")
    P(f"s_lshl_b32 s{S_T3}, s{S_C}, 7")
    P(f"s_add_u32 s{S_BOF}, s{S_BOF}, s{S_T3}")
    P(f"v_lshrrev_b32 v{T}, 3, v{V_LANE}")
    P(f"v_bfe_u32 v{T+1}, v{V_LANE}, 4, 1")
    P(f"v_lshlrev_b32 v{T+1}, 2, v{T+1}")
    P(f"v_xor_b32 v{T+1}, v{T+1}, v{V_LANE}")
    P(f"v_and_b32 v{T+1}, 7, v{T+1}")
    P(f"v_mul_u32_u24 v{T}, 896, v{T}")
    P(f"v_lshl_add_u32 v{V_BA}, v{T+1}, 4, v{T}")
    for i in range(1, 4): P(f"v_add_u32 v{V_BA+i}, {i*(8*896-1024)}, v{V_BA}")
    P(f"v_bfe_u32 v{T}, v{V_LANE}, 2, 2")
    P(f"v_lshrrev_b32 v{T+1}, 5, v{V_LANE}")
    P(f"v_lshl_add_u32 v{T+1}, v{T+1}, 2, v{T}")
    P(f"v_lshlrev_b32 v{T+1}, 7, v{T+1}")
    P(f"v_bfe_u32 v{T+2}, v{V_LANE}, 4, 1")
    P(f"v_lshl_add_u32 v{T+1}, v{T+2}, 5, v{T+1}")
    P(f"v_and_b32 v{T+2}, 3, v{V_LANE}")
    P(f"v_lshl_add_u32 v{T+1}, v{T+2}, 3, v{T+1}")
    P(f"v_lshrrev_b32 v{T}, 1, v{T}")
    P(f"v_lshl_add_u32 v{T}, v{T}, 6, v{T+1}")
    P(f"v_add_u32 v{T}, s{S_M4}, v{T}")
    P(f"s_lshr_b32 s{S_T0}, s{S_WAVE}, 1")
    P(f"s_lshl_b32 s{S_T0}, s{S_T0}, 6")
    P(f"v_xor_b32 v{V_BR[0][1]}, s{S_T0}, v{T}")
    P(f"v_xor_b32 v{V_BR[0][0]}, 64, v{V_BR[0][1]}")
    for k in range(2): P(f"v_add_u32 v{V_BR[1][k]}, 0x10000, v{V_BR[0][k]}")

def last_baddr2(P, o):
    for k in range(2): P(f"v_add_u32 v{V_BR[2][k]}, 0x20000, v{V_BR[0][k]}")

def last_setup(P, o):
    T = V_T
    P(f"s_lshl_b32 s{S_T0}, s{S_C}, 7")
    P(f"v_and_b32 v{T}, 31, v{V_LANE}")
    P(f"v_lshl_add_u32 v{T+1}, v{T}, 2, s{S_T0}")
    P(f"global_load_dword v{V_DUM}, v{T+1}, {sr(S_B2)}")
    P(f"s_and_b32 s{S_T1}, s{S_WAVE}, 1")
    P(f"s_mul_i32 s{S_T2}, s{S_T1}, {A_TB}")
    P(f"s_sub_u32 s{S_T3}, {A_TB}, s{S_T2}")
    P(f"v_add_u32 v{V_AA}, s{S_T3}, v{V_L16}")
    P(f"v_add_u32 v{V_AA+1}, s{S_T2}, v{V_L16}")
    P(f"v_and_b32 v{T+1}, 1, v{V_LANE}")
    P(f"s_lshl_b32 s{S_T0}, s{S_R}, 1")
    P(f"v_add_u32 v{T+1}, s{S_T0}, v{T+1}")
    P(f"v_lshlrev_b32 v{T+1}, 4, v{T+1}")
    P(f"v_bfe_u32 v{T+2}, v{V_LANE}, 1, 2")
    P(f"v_add_u32 v{T+1}, v{T+1}, v{T+2}")
    P(f"v_lshlrev_b32 v{T+1}, 7, v{T+1}")
    P(f"s_mul_i32 s{S_T0}, s{S_WAVE}, 7")
    P(f"s_lshr_b32 s{S_T0}, s{S_T0}, 1")
    P(f"s_lshl_b32 s{S_T0}, s{S_T0}, 7")
    P(f"s_add_u32 s{S_T0}, s{S_T0}, {FL_H}")
    P(f"v_add_u32 v{V_PH}, s{S_T0}, v{T+1}")
    P(f"s_lshl_b32 s{S_T0}, s{S_WAVE}, 9")
    P(f"s_add_u32 s{S_T0}, s{S_T0}, {FL_O}")
    P(f"v_add_u32 v{V_PO}, s{S_T0}, v{T+1}")
    for d in range(1, 4):
        P(f"s_xor_b32 s{S_T0}, s{S_WAVE}, {d}")
        P(f"s_mul_i32 s{S_T0}, s{S_T0}, 12288")
        P(f"s_add_u32 s{S_T0}, s{S_T0}, {LRED + (d-1)*4096}")
        P(f"v_add_u32 v{L_RW+d-1}, s{S_T0}, v{V_L16}")
    P(f"s_mul_i32 s{S_T0}, s{S_WAVE}, 12288")
    P(f"v_add_u32 v{L_RR}, s{S_T0}, v{V_L16}")
    P(f"s_lshl_b32 s{S_T0}, s{S_R}, 6")
    P(f"s_lshl_b32 s{S_T2}, s{S_T1}, 5")
    P(f"s_add_u32 s{S_T0}, s{S_T0}, s{S_T2}")
    P(f"v_add_u32 v{T+1}, s{S_T0}, v{T}")
    P(f"v_mul_u32_u24 v{T+1}, 896, v{T+1}")
    P(f"v_lshrrev_b32 v{T+2}, 5, v{V_LANE}")
    P(f"v_lshl_add_u32 v{T+1}, v{T+2}, 4, v{T+1}")
    P(f"s_lshl_b32 s{S_T0}, s{S_C}, 7")
    P(f"s_lshr_b32 s{S_T2}, s{S_WAVE}, 1")
    P(f"s_lshl_b32 s{S_T2}, s{S_T2}, 6")
    P(f"s_add_u32 s{S_T0}, s{S_T0}, s{S_T2}")
    P(f"v_add_u32 v{L_OA}, s{S_T0}, v{T+1}")

def last_soff(P, o):
    P(f"s_mul_i32 s{S_T0}, s{S_R}, {2*A_TB}")
    P(f"s_add_u32 s{S_T0}, s{S_T0}, {A_OFF}")
    P(f"s_lshl_b32 s{S_T2}, s{S_WAVE}, 13")
    P(f"s_add_u32 s{S_AO2}, s{S_T0}, s{S_T2}")
    P(f"s_add_u32 s{S_AO2}, s{S_AO2}, {112*1024}")
    P(f"s_mul_i32 s{S_T2}, s{S_WAVE}, {28*1024}")
    P(f"s_add_u32 s{S_AOF}, s{S_T0}, s{S_T2}")
    P(f"s_mov_b64 {sr(SRD_WO)}, {sr(S_WO)}")
    P(f"s_mov_b32 s{SRD_WO+2}, {448*896}")
    P(f"s_mul_i32 s{S_BO}, s{S_WAVE}, {112*896}")
    P(f"s_lshl_b32 s{S_T3}, s{S_C}, 7")
    P(f"s_add_u32 s{S_BO}, s{S_BO}, s{S_T3}")

def bias2(P, o):
    P(f"s_add_u32 s{S_T0}, s{S_M4}, {LP[PIECE[11]]}")
    bias_expand(P, V_DUM, 12, L_BA, S_T0)
    P(f"s_lshr_b32 s{S_T2}, s{S_WAVE}, 1")
    P(f"s_lshl_b32 s{S_T2}, s{S_T2}, 7")
    P(f"v_add_u32 v{L_BA}, s{S_T2}, v{L_BA}")
    P(f"v_sub_f32 v{L_G}, 1.0, v{L_G}")
    P(f"v_sub_f32 v{L_G+1}, 1.0, v{L_G+1}")

def a_slots(o):
    ne = o.nearly * 2
    sl = EARLY[:ne] + LATE + EARLY[ne:]
    ring = len(sl) // 2 * 2
    return [sl[i % ring] for i in range(72)], ring // 2

def a_load(o, n):
    sl, _ = a_slots(o)
    so, m = (S_AOF, n) if n < 28 else (S_AO2, n - 28)
    L = [f"s_add_u32 s{so}, s{so}, 4096"] if (m and m % 4 == 0) else []
    for ttl in range(2):
        L.append((f"buffer_load_dwordx4 {xr(sl[2*n+ttl])}, v{V_AA+ttl}, {sr(SRD_WS,4)}, s{so} offen offset:{(m&3)*1024} {SC}", 'ald'))
    return L

def last(P, o):
    q = lambda ttl, ctl: LACC + 32 * ttl + 16 * ctl
    sl, depth = a_slots(o)
    mm = lambda n, ttl, ctl: mfma(q(ttl, ctl), breg(n, ctl), sl[2 * n + ttl], None if n == 0 else q(ttl, ctl))
    if o.nearly == 0:
        poll(P, o, V_PH)
        P.add(flag_store(S_OFL))
    nxt = o.nearly
    while nxt < max(o.lead, o.nearly): P.add(a_load(o, nxt)); nxt += 1
    P("s_barrier")
    stamp(P, o, 'last_go')
    opolled = False
    D = Prog(); bias2(D, o); b2l = [[x] for x in D.L]
    for n in range(28):
        M = [mm(n, ttl, ctl) for ttl in range(2) for ctl in range(2)]
        ex = []; cnt = 0
        top = (36 if opolled else 28)
        if o.left and n < o.left_steps:
            k = -(-len(o.left) // (o.left_steps - n)); ex += o.left[:k]; o.left = o.left[k:]
        while nxt < min(n + min(depth, o.lead + 1), top) and cnt < 2:
            ex += merge_salu([[e] for e in a_load(o, nxt)]); nxt += 1; cnt += 1
        if o.jit0 <= n < o.jit0 + 14 and not o.drop & 32:
            k = n - o.jit0 + 22
            ex += [[WVM(f'bp{k >> 1}')] + b_reads(k)[:2], b_reads(k)[2:]]
        if o.jit0 + 3 <= n < o.jit0 + 6: ex += b2l[((n - o.jit0 - 3) * len(b2l)) // 3:((n - o.jit0 - 2) * len(b2l)) // 3]
        if n == o.oflag_at and o.nearly > 0: ex = ex + [[WVM('ost')] + flag_store(S_OFL)]
        if n == o.opoll_at: ex += [poll_issue(V_PO)]
        if n == o.ocheck_at: ex = [poll_check(V_PO)] + ex; opolled = True
        if o.hst and n % 4 == 0 and n: stamp(P, o, f'h{n}')
        hh = {}
        if ex: spread(hh, ex, [0, 1, 2, 3])
        for t in range(4): P.add([M[t]] + sum(hh.get(t, []), []))
    stamp(P, o, 'last_h')
    while nxt < 36: P.add(a_load(o, nxt)); nxt += 1
    used = set(sl[56:72])
    free = [r for r in sorted(x for x in set(sl) if not isinstance(x, tuple)) if r not in used]
    B2 = [r for r in free if all((r + 4 * k) in free for k in range(4))][0]
    for k in range(4): P(f"ds_read_b128 {vr(B2+4*k,4)}, v{L_BA} offset:{32*k}")
    sc = lambda ttl, ctl: [f"v_mul_f32 v{q(ttl,ctl)+i}, v{L_G+ttl}, v{q(ttl,ctl)+i}" for i in range(16)]
    P.add(sc(0, 0) + sc(0, 1))
    rest = sc(1, 0) + [f"v_add_f32 v{q(1,1)+i}, v{q(1,1)+i}, v{B2+i}" for i in range(16)] + sc(1, 1)
    M = []
    for n in range(28, 36): M += [[mm(n, 0, 0)], [mm(n, 0, 1)]]
    P.add(interleave(M, rest))
    wr = lambda ttl, ctl: [f"ds_write_b128 v{L_RW + ((1-ttl) | ((1-ctl) << 1)) - 1}, {vr(q(ttl,ctl)+4*i,4)} offset:{i*1024}" for i in range(4)]
    w = wr(0, 0) + wr(0, 1)
    seq = []
    for i, n in enumerate(range(28, 36)):
        seq.append(mm(n, 1, 0))
        if i >= 2: seq += w[:2]; w = w[2:]
    seq += w
    w = wr(1, 0)
    for i, n in enumerate(range(28, 36)):
        seq.append(mm(n, 1, 1))
        if i >= 3 and w: seq.append(w.pop(0))
    P.add(seq + w)
    P("s_waitcnt lgkmcnt(0)")
    P("s_barrier")
    stamp(P, o, 'last_o')
    R = 80
    for d in range(3):
        for i in range(4):
            P(f"ds_read_b128 {vr(R+16*d+4*i,4)}, v{L_RR} offset:{d*4096 + i*1024}")
    o_ = q(1, 1)
    for d in range(3):
        for i in range(8):
            P(f"v_pk_add_f32 {vr(o_+2*i,2)}, {vr(o_+2*i,2)}, {vr(R+16*d+2*i,2)}")
    p = R + 48
    for i in range(8): P(f"v_cvt_pk_bf16_f32 v{p+i}, v{o_+2*i}, v{o_+2*i+1}")
    for h in range(2):
        P(f"v_permlane32_swap_b32 v{p+4*h}, v{p+4*h+2}")
        P(f"v_permlane32_swap_b32 v{p+4*h+1}, v{p+4*h+3}")
    for h in range(2):
        P(f"buffer_store_dwordx4 {vr(p+4*h,4)}, v{L_OA}, {sr(SRD_OUT,4)}, 0 offen offset:{32*h}")
    stamp(P, o, 'end')

HEADER = open('cdna_kernels/' + NAME + '.s.ref').read().split('; Override launch')[0]

def finish(P, o, name):
    for sp in slow_paths:
        P.forget(); P(sp)
    L = finalize(P, True)
    out = HEADER + f"; @launch grid=(256,1,1) block=(256,1,1) lds={LDS_BYTES}\n"
    out += '.amdgcn_target "amdgcn-amd-amdhsa--gfx950"\n.text\n'
    out += f".globl {name}\n.p2align 8\n.type {name},@function\n{name}:\n" + text(L)
    out += "s_endpgm\n.fill 2048, 4, 0xbf800000\n"
    out += f""".section .rodata,"a"
.p2align 6
.amdhsa_kernel {name}
  .amdhsa_next_free_vgpr 512
  .amdhsa_next_free_sgpr 102
  .amdhsa_accum_offset 256
  .amdhsa_group_segment_fixed_size 0
  .amdhsa_kernarg_size 96
  .amdhsa_user_sgpr_count 2
  .amdhsa_user_sgpr_kernarg_segment_ptr 1
  .amdhsa_system_sgpr_workgroup_id_x 1
.end_amdhsa_kernel
"""
    if o.diag is not None:
        out = out.replace('DIAG_I', str(o.stamp_names.index(o.diag[0]))).replace('DIAG_J', str(o.stamp_names.index(o.diag[1])))
    return out

def groups(fn, o):
    D = Prog(); fn(D, o); return atomic_groups(D.L)

def build(o):
    name = NAME + "_kernel"
    R = lambda a, b: list(range(a, b))
    P = Prog(); setup(P, o, "L_end")
    P(f"s_cmp_eq_u32 s{S_C}, 7")
    P("s_cbranch_scc1 L_prep")
    H = Gaps()
    def first(D, o):
        s1_w1_addr(D, o)
        if o.w1t: w1_touch(D, o)
        common2(D, o); s1_misc(D, o)
        D(f"buffer_load_dword v{V_TAG}, v{V_FLAGOFF}, {sr(SRD_WS,4)}, 0 offen")
        last_baddr(D, o)
        att_scalars(D, o)
        if not o.b1late: bias1(D, o)
        att_poll_addr(D, o); att_addr(D, o)
        if o.b1late: bias1(D, o)
        if o.mka: att_masks(D, o)
        D(f"v_readfirstlane_b32 s{S_TAG}, v{V_TAG}"); D.add(TAGOPS)
        for i in range(o.wact):
            D(f"s_mul_i32 s{S_T4}, s{S_RBL}, 7")
            D(f"s_add_u32 s{S_T4}, s{S_T4}, s{S_C}")
            D(f"s_lshl2_add_u32 s{S_T4}, s{S_T4}, s{S_WAVE}")
            D(f"s_add_u32 s{S_T4}, s{S_T4}, {16*o.wsp + 112*i}")
            warm_touch(D, S_T4, 161 + i, S_T0, V_L128)
    H.put('v', groups(first, o), 0, o.su_end)
    H.put('m', bias1_reads(), o.b1r, 84)
    def first2(D, o): att_kvoff(D, o); last_soff(D, o)
    H.put('v', groups(first2, o), o.su_end, 84)
    pass_a(P, o, H)
    qkv_epilogue(P, o)
    stamp(P, o, 'qkv_epi')
    H = Gaps()
    def second(D, o):
        last_setup(D, o)
        if not o.mka: att_masks(D, o)
    H.put('v', groups(second, o), 0, 50)
    for i, g in enumerate(o.l2t):
        D = Prog(); l2_touch(D, o, i); H.put('v', [D.L], g, g + 1)
    dm = lambda a, b: merge_salu([it for p in range(a, b) for it in b_dma(p)])
    rd = lambda a, b: [[WVM(f'bp{n >> 1}')] + b_reads(n)[:2] if k == 0 else b_reads(n)[2:] for n in range(2 * a, 2 * b) for k in range(2)]
    b = o.pb
    kv = merge_salu(att_loads(o))
    def put_m0(items, g0, g1):
        own = lambda g: 12 <= g < 52 and (g - 12) % 16 < 8
        free = [g for g in range(g0, g1) if not own(g)]
        runs = []; cur = []
        for it in items:
            if any(isinstance(x, str) and ' m0,' in x for x in it) and cur: runs.append(cur); cur = []
            cur.append(it)
        runs.append(cur)
        n = len(runs)
        for i, r in enumerate(runs):
            sl = free[(i * len(free)) // n:((i + 1) * len(free)) // n]
            keep = [sl[0]]
            for g in sl[1:]:
                if g != keep[-1] + 1: break
                keep.append(g)
            spread(H.m, r, keep)
    for c in range(3): H.put('m', merge_salu(dma_b(c + 4)), 16 * c + 12, 16 * c + 20)
    if not o.drop & 1: put_m0(dm(0, o.n1), b[0], b[1])
    H.put('m', [[WVM('qst')] + flag_store(S_QFL)], o.qflag, o.qflag + 1)
    H.put('m', [poll_issue(V_PA)], o.kpoll, o.kpoll + 1)
    kvl = kv[o.nkv:]
    if not o.drop & 4: put_m0([['s_waitcnt lgkmcnt(0)', 's_barrier'] * (o.n1 > 4) + poll_check(V_PA) + kv[0]] + kv[1:o.nkv], o.kcheck, o.kend)
    if not o.drop & 2: H.put('m', rd(0, o.n1), b[2], b[3])
    pt = att_patch()
    if o.patch < 112:
        H.put('m', pt[:4], o.patch, o.patch + 2)
        H.put('v', pt[4:], o.patch + 2, 112)
    pass_b(P, o, H)
    P("s_waitcnt lgkmcnt(0)")
    P("s_barrier")
    stamp(P, o, 'pass_b')
    if o.trunc:
        stamp_flush(P, o); P("s_endpgm"); P.forget(); P("L_prep:"); prep(P, o); stamp_flush(P, o); P("L_end:"); P("s_endpgm")
        return finish(P, o, name)
    if o.patch < 112: P.add(kread(ORDER[0], 0)); P.add(kread(ORDER[1], 1))
    last_baddr2(P, o)
    na = 11 + (o.n1 - 4)
    bl = dm(o.n1, na); held = []
    if o.drop & 8: bl = []
    for F in range(4):
        g = gelu_tile(F)
        take = bl[:o.nb_gelu[F]]; bl = bl[o.nb_gelu[F]:]
        if F < o.kvt:
            k = -(-len(kvl) // (o.kvt - F)); take = kvl[:k] + take; kvl = kvl[k:]
        P.add(interleave([[x] for x in g[:-2]], take))
        held += g[-2:]
        if F >= o.kvt - 1: P.add(held); held = []
        if F == o.patch_t and o.patch >= 112:
            for it in pt: P.add(it)
    if o.patch >= 112:
        P("s_waitcnt lgkmcnt(0)"); P("s_barrier")
    stamp(P, o, 'gelu')
    ah = {}
    a = o.pa
    if bl: spread(ah, bl, R(a[0], a[1]))
    if not o.drop & 16: spread(ah, rd(o.n1, 11), R(a[2], a[3]))
    rb = dm(na, 18)
    if o.drop & 8: rb = [[]]
    spread(ah, [["s_waitcnt lgkmcnt(0)"] + rb[0]] + rb[1:o.nrb], R(a[3], a[4]))
    o.left = rb[o.nrb:]
    ah.setdefault(o.hflag, []).insert(0, [WVM('hst')] * (not o.drop & 64) + flag_store(S_HFL))
    if o.nearly > 0:
        ah.setdefault(o.hpoll, []).append(poll_issue(V_PH))
        al = [poll_check(V_PH)] + merge_salu([[x] for n in range(o.nearly) for x in a_load(o, n)])
        spread(ah, al, R(o.hcheck, 54))
    attention(P, o, ah, kpre=o.patch < 112)
    last(P, o)
    stamp_flush(P, o)
    P("s_endpgm")
    P.forget()
    P("L_prep:")
    prep(P, o)
    att_scalars(P, o); att_poll_addr(P, o); att_addr(P, o); att_masks(P, o); att_kvoff(P, o)
    poll(P, o, V_PA)
    for it in att_loads(o, False) + att_patch(): P.add(it)
    P("s_waitcnt lgkmcnt(0)")
    P("s_barrier")
    st, o.stamps = o.stamps, False
    attention(P, o, {})
    o.stamps = st
    P("s_waitcnt vmcnt(0)")
    P.add(flag_store(S_OFL))
    stamp(P, o, 'p_att')
    stamp_flush(P, o)
    P(f"s_cmp_eq_u32 s2, 56")
    P("s_cbranch_scc0 L_end")
    P(f"s_cmp_eq_u32 s{S_WAVE}, 0")
    P("s_cbranch_scc0 L_end")
    P(f"v_lshlrev_b32 v{V_PA}, 7, v{V_LANE}")
    P(f"s_mov_b32 s{S_CNT}, 4000")
    P("L_ep:")
    for i in range(16):
        P(f"s_mov_b32 s{S_T0}, {FL_O + i*8192}")
        P(f"buffer_load_dwordx2 {vr(16+2*i,2)}, v{V_PA}, {sr(SRD_WS,4)}, s{S_T0} offen sc1")
    P("s_waitcnt vmcnt(0)")
    P(f"s_mov_b64 {sr(S_T0)}, 0")
    for i in range(16):
        P(f"v_cmp_ne_u64 vcc, {sr(S_TAG)}, {vr(16+2*i,2)}")
        P(f"s_or_b64 {sr(S_T0)}, {sr(S_T0)}, vcc")
    P(f"s_sub_u32 s{S_CNT}, s{S_CNT}, 1")
    P("s_cbranch_scc1 L_end")
    P(f"s_cmp_eq_u64 {sr(S_T0)}, 0")
    P("s_cbranch_scc0 L_ep")
    P(f"buffer_store_dword v{V_TAG}, v{V_FLAGOFF}, {sr(SRD_WS,4)}, 0 offen sc1")
    P("L_end:")
    P("s_endpgm")
    return finish(P, o, name)

DEFAULTS = dict(l2t=(), kvt=2, patch_t=3, pw=0, b1late=1, w1t=0, mw=1, drop=0, trunc=0, ncls=3, wsp=0, wact=0, su_end=72, bq_end=84, mka=1, n1=4,
                b1r=60, pb=(52, 84, 88, 104), qflag=52, kpoll=98, kcheck=106, kend=112, nkv=3, patch=112,
                nb_gelu=(0, 0, 3, 3), pa=(0, 22, 20, 32, 50), nrb=20, left_steps=4, hflag=18, nearly=3, hpoll=44, hcheck=50,
                lead=6, jit0=8, oflag_at=4, opoll_at=16, ocheck_at=20, hst=0, code_bytes=32768)

if __name__ == '__main__':
    o = Opt()
    for k, v in DEFAULTS.items(): setattr(o, k, v)
    o.stamps = 'stamps' in sys.argv; o.diag = None; o.stamp_names = []
    o.clk = 's_memtime' if 'cyc' in sys.argv else 's_memrealtime'
    for a in sys.argv[2:]:
        if '=' not in a: continue
        k, v = a.split('=')
        if k == 'diag':
            i, j, K = v.split(','); o.diag = (i, j, int(K)); o.stamps = True
        elif ',' in v: setattr(o, k, tuple(int(x) for x in v.split(',') if x))
        else: setattr(o, k, int(v))
    plan(o.n1)
    s = build(o)
    open(sys.argv[1], 'w').write(s)
    if o.stamps: open(sys.argv[1] + '.names', 'w').write('\n'.join(o.stamp_names))
```

```python
import re

REG_RE = re.compile(r'^(-|\|)?(abs\()?([vas])(\d+|\[(\d+):(\d+)\])\)?\|?$')

def parse_reg(tok):
    tok = tok.strip()
    if tok in ('vcc',): return [('s', 'vcc_lo'), ('s', 'vcc_hi')]
    if tok in ('vcc_lo', 'vcc_hi', 'exec_lo', 'exec_hi', 'm0'): return [('s', tok)]
    if tok == 'exec': return [('s', 'exec_lo'), ('s', 'exec_hi')]
    m = REG_RE.match(tok)
    if not m: return []
    k = m.group(3)
    if m.group(5) is not None:
        return [(k, i) for i in range(int(m.group(5)), int(m.group(6)) + 1)]
    return [(k, int(m.group(4)))]

TRANS = ('v_exp_f32', 'v_log_f32', 'v_rcp_f32', 'v_rsq_f32', 'v_sqrt_f32', 'v_sin_f32', 'v_cos_f32', 'v_rcp_iflag_f32')

class I:
    def __init__(self, text, tag=None):
        self.text = text
        self.tag = tag
        self.kind = 'other'
        self.dst = []; self.src = []
        self.srcC = []; self.srcAB = []
        self.stdata = []
        self.op = ''
        self.parse()

    def parse(self):
        t = self.text.split(';')[0].strip()
        if not t: self.kind = 'comment'; return
        if t.endswith(':'): self.kind = 'label'; return
        if t.startswith('.'): self.kind = 'directive'; return
        parts = t.split(None, 1)
        op = parts[0]; self.op = op
        base = re.sub(r'_(e32|e64|sdwa|dpp)$', '', op)
        self.base = base
        rest = parts[1] if len(parts) > 1 else ''
        ops = [o.strip() for o in re.split(r',(?![^\[]*\])', rest)] if rest else []
        mods = ''
        if ops:
            last = ops[-1].split(None, 1)
            ops[-1] = last[0]
            if len(last) > 1: mods = last[1]
        self.mods = mods
        R = [parse_reg(o) for o in ops]
        flat = lambda L: [x for l in L for x in l]
        if op.startswith('v_mfma'):
            self.kind = 'mfma'; self.dst = R[0]; self.srcAB = R[1] + R[2]; self.srcC = R[3]; self.src = flat(R[1:])
            self.passes = 8 if '32x32' in op else 4
        elif op.startswith('v_'):
            self.kind = 'valu'
            self.trans = base in TRANS
            if base.startswith('v_cmp'):
                self.dst = R[0]; self.src = flat(R[1:])
                if base.startswith('v_cmpx'): self.dst = self.dst + parse_reg('exec')
            elif base.startswith('v_permlane') and 'swap' in base:
                self.dst = R[0] + R[1]; self.src = R[0] + R[1]
            elif base in ('v_add_co_u32', 'v_sub_co_u32', 'v_subrev_co_u32'):
                self.dst = R[0] + R[1]; self.src = flat(R[2:])
            elif base in ('v_addc_co_u32', 'v_subb_co_u32'):
                self.dst = R[0] + R[1]; self.src = flat(R[2:])
            elif base == 'v_nop':
                pass
            else:
                self.dst = R[0]; self.src = flat(R[1:])
                if base in ('v_fmac_f32', 'v_dot2c_f32_bf16', 'v_pk_fmac_f16', 'v_writelane_b32') or 'dpp' in op or 'row_' in mods or 'quad_perm' in mods:
                    self.src = self.src + R[0]
                if base == 'v_cndmask_b32' and len(ops) == 3: self.src = self.src + parse_reg('vcc')
            self.dpp = ('dpp' in op) or ('quad_perm' in mods) or ('row_' in mods)
        elif op.startswith('buffer_load') or op.startswith('global_load'):
            self.kind = 'vmem'
            if ' lds' in (' ' + mods) or 'load_lds' in op:
                self.lds_dma = True; self.src = flat(R) + [('s', 'm0')]
            else:
                self.lds_dma = False; self.dst = R[0]; self.src = flat(R[1:])
        elif op.startswith('buffer_store'):
            self.kind = 'vmem'; self.lds_dma = False; self.src = flat(R); self.stdata = R[0]
        elif op.startswith('global_store'):
            self.kind = 'vmem'; self.lds_dma = False; self.src = flat(R); self.stdata = R[1]
        elif op.startswith('ds_read'):
            self.kind = 'ds'; self.dst = R[0]; self.src = flat(R[1:])
        elif op.startswith('ds_write'):
            self.kind = 'ds'; self.src = flat(R)
        elif op.startswith('ds_bpermute') or op.startswith('ds_swizzle'):
            self.kind = 'ds'; self.dst = R[0]; self.src = flat(R[1:])
        elif op.startswith('s_load') or op in ('s_memtime', 's_memrealtime'):
            self.kind = 'smem'; self.dst = R[0]; self.src = flat(R[1:])
        elif op == 's_waitcnt':
            self.kind = 'wait'
            m = re.search(r'vmcnt\((\d+)\)', rest); self.vm = int(m.group(1)) if m else None
            m = re.search(r'lgkmcnt\((\d+)\)', rest); self.lg = int(m.group(1)) if m else None
        elif op == 's_nop':
            self.kind = 'nop'; self.n = int(rest, 0) + 1
        elif op in ('s_branch',) or op.startswith('s_cbranch'):
            self.kind = 'branch'
        elif op in ('s_barrier', 's_endpgm', 's_setprio', 's_sleep'):
            self.kind = 'salu'
        elif op.startswith('s_cmp') or op.startswith('s_bitcmp'):
            self.kind = 'salu'; self.src = flat(R)
        elif op.startswith('s_'):
            self.kind = 'salu'; self.dst = R[0]; self.src = flat(R[1:])
            if 'saveexec' in op: self.dst = self.dst + parse_reg('exec'); self.src = self.src + parse_reg('exec')
        else:
            raise ValueError('unknown instr: ' + t)

class Pseudo:
    def __init__(self, kind, tag=None, extra=0):
        self.kind = kind; self.tag = tag; self.extra = extra; self.text = ''
        self.dst = []; self.src = []

class Prog:
    def __init__(self):
        self.L = []
    def __call__(self, text, tag=None):
        for line in text.split('\n'):
            if line.strip() == '': continue
            self.L.append(I(line.strip(), tag))
    def add(self, items):
        for x in items:
            if isinstance(x, str): self(x)
            elif isinstance(x, tuple): self(x[0], x[1])
            else: self.L.append(x)
    def wait_vm(self, tag):
        self.L.append(Pseudo('wait_vm', tag))
    def wait_lg(self, tag):
        self.L.append(Pseudo('wait_lg', tag))
    def forget(self):
        self.L.append(Pseudo('forget'))

def WVM(tag): return Pseudo('wait_vm', tag)
def WLG(tag): return Pseudo('wait_lg', tag)

def insert_waits(L):
    out = []
    vm = []
    lg = []
    smem = []
    def emit_wait(vmn=None, lgn=None):
        nonlocal vm, lg, smem
        s = []
        if vmn is not None:
            vmn = min(vmn, 63); s.append(f'vmcnt({vmn})'); vm = vm[len(vm) - vmn:] if vmn < len(vm) else vm
            if vmn == 0: vm = []
        if lgn is not None:
            lgn = min(lgn, 15); s.append(f'lgkmcnt({lgn})')
            if lgn == 0: lg = []; smem = []
            elif lgn < len(lg): lg = lg[len(lg) - lgn:]
        if out and isinstance(out[-1], I) and out[-1].kind == 'wait' and getattr(out[-1], 'auto', False):
            p = out.pop()
            v = p.vm if vmn is None else (vmn if p.vm is None else min(p.vm, vmn))
            g = p.lg if lgn is None else (lgn if p.lg is None else min(p.lg, lgn))
            s = ([f'vmcnt({v})'] if v is not None else []) + ([f'lgkmcnt({g})'] if g is not None else [])
        w = I('s_waitcnt ' + ' '.join(s)); w.auto = True
        out.append(w)
    for x in L:
        if isinstance(x, Pseudo):
            if x.kind == 'wait_vm':
                idx = [i for i, y in enumerate(vm) if y.tag == x.tag]
                if idx: emit_wait(vmn=len(vm) - 1 - max(idx))
            elif x.kind == 'wait_lg':
                idx = [i for i, y in enumerate(lg) if y.tag == x.tag]
                if idx: emit_wait(lgn=0 if smem else len(lg) - 1 - max(idx))
            elif x.kind == 'unknown_vm':
                k = 0
                while k < len(vm) and not getattr(vm[len(vm)-1-k], 'tag', None): k += 1
                vm = vm[:len(vm)-k] + vm[len(vm)-k:][:x.extra]
            elif x.kind == 'drop_vm':
                vm = vm[:-1]
            elif x.kind == 'forget':
                vm = []; lg = []; smem = []
            continue
        if x.kind in ('label', 'comment', 'directive'):
            out.append(x); continue
        if x.kind == 'wait':
            if x.vm is not None:
                vm = vm[len(vm) - x.vm:] if 0 < x.vm < len(vm) else ([] if x.vm == 0 else vm)
            if x.lg is not None:
                if x.lg == 0: lg = []; smem = []
                elif x.lg < len(lg): lg = lg[len(lg) - x.lg:]
            out.append(x); continue
        touched = set(x.src) | set(x.dst)
        need_vm = None; need_lg = None
        for i, y in enumerate(vm):
            if touched & set(y.dst):
                n = len(vm) - 1 - i
                need_vm = n if need_vm is None else min(need_vm, n)
        for i, y in enumerate(lg):
            if touched & set(y.dst):
                n = len(lg) - 1 - i
                need_lg = n if need_lg is None else min(need_lg, n)
        for y in smem:
            if touched & set(y.dst): need_lg = 0
        if need_lg is not None and smem: need_lg = 0
        if need_vm is not None or need_lg is not None:
            emit_wait(need_vm, need_lg)
        out.append(x)
        if x.kind == 'vmem':
            vm.append(x)
            if len(vm) > 63: vm = vm[-63:] if False else vm
        elif x.kind == 'ds': lg.append(x)
        elif x.kind == 'smem': smem.append(x)
    return out

def slots(x):
    if x.kind == 'nop': return x.n
    if x.kind in ('label', 'comment', 'directive'): return 0
    return 1

def need_distance(p, c):
    n = 0
    pd = set(p.dst); cs = set(c.src); cd = set(c.dst)
    isv = lambda S: {r for r in S if r[0] in 'va'}
    iss = lambda S: {r for r in S if r[0] == 's'}
    if p.kind == 'valu':
        pv = isv(pd); ps = iss(pd)
        if c.kind == 'mfma' and pv & cs: n = max(n, 2)
        if c.kind == 'mfma' and (('s', 'exec_lo') in ps): n = max(n, 4)
        if c.kind == 'valu':
            if p.trans and not c.trans and pv & cs: n = max(n, 1)
            if c.base.startswith('v_permlane') and pv & cs: n = max(n, 2)
            if c.base in ('v_readfirstlane_b32', 'v_readlane_b32') and pv & cs: n = max(n, 1)
            if c.dpp and pv & cs: n = max(n, 2)
            if ps & cs: n = max(n, 4 if c.base in ('v_readlane_b32', 'v_writelane_b32') else 2)
            if ('s', 'exec_lo') in ps and (c.dpp): n = max(n, 5)
            if ('s', 'exec_lo') in ps and (c.base.startswith('v_permlane') or c.base.startswith('v_read')): n = max(n, 4)
        if c.kind == 'vmem' and ps & cs: n = max(n, 5)
        if c.kind in ('salu',) and ps & cs: n = max(n, 1)
    if p.kind == 'mfma':
        P = p.passes
        t = {4: (6, 8, 3), 8: (10, 12, 7)}[P]
        if c.kind == 'mfma':
            if pd & set(c.srcAB): n = max(n, t[1])
            if pd & set(c.srcC):
                if not (p.dst == c.srcC and p.passes == c.passes): n = max(n, t[0])
            if pd & cd and not (p.dst == c.dst): n = max(n, t[1])
        elif c.kind in ('valu', 'vmem', 'ds'):
            if pd & (cs | cd): n = max(n, t[1])
            if c.kind == 'valu' and set(p.srcC) & cd: n = max(n, t[2])
            if c.kind in ('vmem', 'ds') and set(p.srcC) & cd: n = max(n, t[2])
    if p.kind == 'vmem' and p.stdata and len(p.stdata) >= 3:
        if set(p.stdata) & cd: n = max(n, 2 if c.kind in ('valu', 'mfma') else 1)
    if p.kind == 'salu' and ('s', 'm0') in pd and c.kind == 'vmem' and getattr(c, 'lds_dma', False): n = max(n, 1)
    return n

def insert_nops(L, window=24):
    out = []
    added = 0
    for x in L:
        if x.kind in ('label', 'comment', 'directive'):
            out.append(x); continue
        need = 0
        d = 0
        for p in reversed(out):
            if d >= 20: break
            if p.kind not in ('label', 'comment', 'directive', 'nop', 'wait', 'branch'):
                r = need_distance(p, x)
                if r > d: need = max(need, r - d)
            d += slots(p)
        if need:
            out.append(I(f's_nop {need - 1}')); added += need
        out.append(x)
    return out, added

def finalize(prog, verbose=False):
    L = insert_waits(prog.L)
    L, added = insert_nops(L)
    if verbose: print('nop states added:', added)
    return L

def text(L):
    return '\n'.join(('' if x.kind == 'label' else '    ') + x.text for x in L) + '\n'

def interleave(main, fill, start=0, every=None, per=None):
    out = []
    n = len(main); fi = 0
    for i, m in enumerate(main):
        out += m if isinstance(m, list) else [m]
        if per is not None:
            k = per(i) if callable(per) else per[i]
        else:
            k = ((i + 1) * len(fill)) // n - (i * len(fill)) // n
        for _ in range(k):
            if fi < len(fill):
                f = fill[fi]; fi += 1
                out += f if isinstance(f, list) else [f]
    while fi < len(fill):
        f = fill[fi]; fi += 1
        out += f if isinstance(f, list) else [f]
    return out

SCC_W = ('s_add_u32', 's_sub_u32', 's_add_i32', 's_sub_i32', 's_addc_u32', 's_lshl_b32', 's_lshr_b32', 's_and_b32', 's_or_b32', 's_xor_b32',
         's_min_u32', 's_max_i32', 's_min_i32', 's_max_u32', 's_lshl2_add_u32', 's_lshl3_add_u32', 's_lshl1_add_u32', 's_lshl4_add_u32', 's_ashr_i32', 's_or_b64', 's_and_b64')
def atomic_groups(L):
    n = len(L); live = [False] * (n + 1)
    scc = vcc = False
    for i in range(n - 1, -1, -1):
        x = L[i]
        op = getattr(x, 'op', '')
        if op.startswith('s_cmp') or op in SCC_W: scc = False
        if op.startswith('s_cselect') or op.startswith('s_cbranch_scc') or op == 's_addc_u32': scc = True
        if ('s', 'vcc_lo') in x.dst: vcc = False
        if ('s', 'vcc_lo') in x.src: vcc = True
        live[i] = scc or vcc
    G = []
    for i, x in enumerate(L):
        if i == 0 or not live[i]: G.append([])
        G[-1].append(x)
    return G

class Slot:
    kind = 'slot'; text = ''; dst = []; src = []; tag = None
    def __init__(self, name=None): self.name = name

def as_instrs(item):
    out = []
    for x in item:
        if isinstance(x, str): out += [I(l.strip()) for l in x.split('\n') if l.strip()]
        elif isinstance(x, tuple): out.append(I(x[0], x[1]))
        else: out.append(x)
    return out

def place(L, streams, gap=70, t0_vm=-1000, burst=1):
    out = []; t = 0; pipe = 0; ready = {}; last_vm = t0_vm; prev_valu = -100
    st = dict(t=0, done={}, seen=set())
    def cost(x):
        nonlocal t, pipe, prev_valu
        k = x.kind
        if k in ('label', 'comment', 'directive', 'slot') or isinstance(x, Pseudo): return
        if k == 'mfma':
            need = max([ready.get(r, 0) for r in x.srcAB] + [0])
            t = max(t, pipe, need); pipe = t + 32
            for r in x.dst: ready[r] = t + 52
            t += 8; return
        t = max([t] + [ready.get(r, 0) for r in list(x.src) + list(x.dst)])
        if k in ('ds', 'vmem'): t = max(t, prev_valu + 12)
        if k == 'valu': prev_valu = t
        t += 8 if (k == 'valu' and (x.trans or 'swap' in x.op)) else (4 * x.n if k == 'nop' else 4)
    for x in L:
        if not isinstance(x, Slot):
            out.append(x); cost(x); continue
        if x.name: st['seen'].add(x.name)
        nds = 0
        progress = True
        while progress:
            progress = False
            for name, q in streams.items():
                if not q: continue
                item, cond, key = q[0]
                ins = as_instrs(item)
                isvm = any(y.kind == 'vmem' for y in ins)
                st['t'] = t
                if cond and not cond(st): continue
                if isvm and t < last_vm: continue
                if not isvm:
                    if nds >= 2: continue
                    nds += 1
                q.pop(0)
                for y in ins: out.append(y); cost(y)
                if isvm:
                    wide = any(y.kind == 'vmem' and 'x4' in y.op for y in ins)
                    last_vm = max(last_vm, t - burst * gap) + (gap if wide else gap // 4)
                st['done'][key] = t
                progress = True
    return out, t
```

```python
import sys, math, struct
from asmlib import *

NAME = "gated_mix__sliding_block__dense_activation_gelu__prompt"
def f2u(x): return struct.unpack('<I', struct.pack('<f', x))[0]

WS_E      = 0
FL_G      = 0x1000
G_OFF     = 0x4000
FL_QKV    = 0x20000
FL_H      = 0x40000
FL_O      = 0x60000
QKV_OFF   = 0x100000
A_OFF     = 0x700000
WS_SIZE   = 0x1000000
BP_OFF    = 0x1000000
STAMP_OFF = 0x1400000
QKV_TB = 168 * 512
A_TB = 144 * 1024

SA = 28672
LQ = 16384
LF = 98304; SF = 16384
LBIAS = 86016
LKV = 0
LRED = 0
LP = [49152 + 16384 * i for i in range(7)] + [0, 16384, 32768]
PIECE = []
def plan(n1):
    ra = list(range(11 - n1))
    rb = [p for p in range(7) if p not in ra] + ra
    PIECE[:] = [0, 1, 2, 3, 7, 8, 9][:n1] + ra + rb[:7]
LDS_BYTES = 160 * 1024

S_WAVE, S_RBL, S_SPARE, S_XCD, S_SLOT = 3, 8, 9, 10, 11
S_XO, S_QO, S_FO, S_CI, S_CJ = 4, 5, 6, 7, 22
S_M4, S_M3 = 23, 24
S_OFL = 25
S_B1, S_W2, S_B2, S_GW, S_WO = 12, 14, 16, 18, 20
S_TAG = 26
SRD_X, SRD_WQ, SRD_W1, SRD_WS, SRD_OUT, SRD_W2 = 28, 32, 36, 40, 44, 48
SRD_WO = 32
S_KV = [28, 29, 30, 31]
S_RB, S_B, S_TB = 52, 53, 54
S_BOF = 55
S_T0, S_T1, S_T2, S_T3 = 56, 57, 58, 59
S_CNT = 60
S_QST, S_HST = 61, 62
S_T4 = 63
S_MASK = 64
S_QFL, S_HFL = 12, 13
S_OST, S_B3 = 18, 19
S_AOF, S_AO2, S_BO = 4, 5, 7
S_ARB, S_ATB = 14, 15
S_R, S_C, S_J, S_PAR = 98, 99, 100, 101

def sr(b, n=2): return f"s[{b}:{b+n-1}]"
def vr(b, n): return f"v[{b}:{b+n-1}]" if n > 1 else f"v{b}"
def ar(b, n): return f"a[{b}:{b+n-1}]"
def xr(d): return ar(d[1], 4) if isinstance(d, tuple) else vr(d, 4)

V_LANE, V_L16, V_L16H, V_FLAGOFF = 1, 2, 3, 4
V_TAG = 6
V_PD = 8
V_PA = 10
V_T = 11
V_BA = 216
V_AA = 220
L_G = 222
L_RW = 224
L_RR, L_OA, V_PO, V_PH = 227, 228, 229, 231
V_BR = [[232, 233], [0, 230], [202, 234]]
L_BA = 10
V_DUM = 235
V_ST = 255
SC = 'sc1'

class Opt: pass

def mfma(d, a, b, c):
    C = '0' if c is None else vr(c, 16)
    return f"v_mfma_f32_32x32x16_bf16 {vr(d,16)}, {xr(a)}, {xr(b)}, {C}"

lab = [0]
def stamp(P, o, name):
    if not o.stamps: return
    if name not in o.stamp_names: o.stamp_names.append(name)
    P(f"{o.clk} s[96:97]")
    P("s_waitcnt lgkmcnt(0)")
    P(f"v_writelane_b32 v{V_ST}, s96, {o.stamp_names.index(name)}")

def stamp_flush(P, o):
    if not o.stamps: return
    if o.diag is not None:
        lab[0] += 1
        P(f"v_readlane_b32 s{S_T0}, v{V_ST}, DIAG_I")
        P(f"v_readlane_b32 s{S_T1}, v{V_ST}, DIAG_J")
        P("s_nop 4")
        P(f"s_sub_u32 s{S_T0}, s{S_T1}, s{S_T0}")
        P(f"s_mul_i32 s{S_T0}, s{S_T0}, {o.diag[2]}")
        P(f"s_min_u32 s{S_T0}, s{S_T0}, 20000")
        P(f"s_cmp_eq_u32 s{S_SPARE}, 1")
        P(f"s_cselect_b32 s{S_T0}, 0, s{S_T0}")
        P("s_memrealtime s[96:97]")
        P("s_waitcnt lgkmcnt(0)")
        P(f"s_mov_b32 s{S_T1}, s96")
        P(f"L_dg{lab[0]}:")
        P("s_memrealtime s[96:97]")
        P("s_waitcnt lgkmcnt(0)")
        P(f"s_sub_u32 s{S_T2}, s96, s{S_T1}")
        P(f"s_cmp_lt_u32 s{S_T2}, s{S_T0}")
        P(f"s_cbranch_scc1 L_dg{lab[0]}")
        return
    P("s_waitcnt vmcnt(0)")
    P(f"s_lshl2_add_u32 s{S_T0}, s2, s{S_WAVE}")
    P(f"s_lshl_b32 s{S_T0}, s{S_T0}, 8")
    P(f"s_add_u32 s{S_T0}, s{S_T0}, {STAMP_OFF}")
    P(f"s_mov_b32 s{SRD_WS+2}, {STAMP_OFF + 0x100000}")
    P(f"v_lshlrev_b32 v{V_T}, 2, v{V_LANE}")
    P(f"buffer_store_dword v{V_ST}, v{V_T}, {sr(SRD_WS,4)}, s{S_T0} offen")

def setup(P, o, end_label):
    if o.stamps: P(f"{o.clk} s[94:95]")
    P(f"s_load_dwordx2 {sr(SRD_X)}, s[0:1], 0")
    P(f"s_load_dwordx2 {sr(SRD_WQ)}, s[0:1], 8")
    P(f"s_load_dwordx2 {sr(SRD_W1)}, s[0:1], 32")
    P(f"s_load_dwordx8 s[12:19], s[0:1], 40")
    P(f"s_load_dwordx2 {sr(SRD_WS)}, s[0:1], 88")
    P(f"s_load_dwordx2 {sr(SRD_OUT)}, s[0:1], 72")
    P(f"s_load_dwordx2 {sr(S_WO)}, s[0:1], 16")
    P("s_cmpk_ge_u32 s2, 256")
    P(f"s_cbranch_scc1 {end_label}")
    P(f"s_getpc_b64 s[{S_T0}:{S_T1}]")
    P(f"v_lshlrev_b32 v{V_T}, 7, v0")
    P(f"v_min_u32 v{V_T}, {o.code_bytes - 128}, v{V_T}")
    P(f"global_load_dword v{V_DUM}, v{V_T}, s[{S_T0}:{S_T1}]", tag='pf')
    P(f"v_lshrrev_b32 v5, 6, v0")
    P(f"v_and_b32 v{V_LANE}, 63, v0")
    P(f"v_readfirstlane_b32 s{S_WAVE}, v5")
    P(f"s_and_b32 s{S_XCD}, s2, 7")
    P(f"s_lshr_b32 s{S_SLOT}, s2, 3")
    P(f"s_lshr_b32 s{S_RBL}, s2, 6")
    P(f"s_and_b32 s{S_C}, s{S_SLOT}, 7")
    P(f"s_mov_b32 s{SRD_X+3}, 0x20000")
    P(f"s_mov_b32 s{SRD_X+2}, {2048*896}")

def srd_rest(P, regs):
    for d, size in regs:
        P(f"s_mov_b32 s{d+2}, {size}")
        P(f"s_mov_b32 s{d+3}, 0x20000")

def common2(P, o):
    P(f"v_lshlrev_b32 v{V_L16}, 4, v{V_LANE}")
    P(f"v_cmp_eq_u32 vcc, 0, v{V_LANE}")
    P(f"v_mov_b32 v5, 0x7fff0000")
    P(f"v_add_u32 v{V_L16H}, 0x1000, v{V_L16}")
    P(f"v_cndmask_b32_e64 v{V_FLAGOFF}, v5, 0, vcc")
    P(f"s_lshl2_add_u32 s{S_R}, s{S_XCD}, s{S_RBL}")

TAGOPS = [f"s_mul_i32 s{S_TAG}, s{S_TAG}, 0x9e3779b1",
          f"s_add_u32 s{S_TAG}, s{S_TAG}, 0x7f4a7c15",
          f"s_xor_b32 s{S_TAG+1}, s{S_TAG}, 0x5bd1e995",
          f"v_mov_b32 v{V_TAG}, s{S_TAG}",
          f"v_mov_b32 v{V_TAG+1}, s{S_TAG+1}"]

def warm_touch(P, blk, dst, tb, l128):
    P(f"s_mul_i32 s{tb}, s{S_XCD}, 31")
    P(f"s_min_u32 s{blk}, s{blk}, 244")
    P(f"s_add_u32 s{blk}, s{blk}, s{tb}")
    P(f"s_sub_u32 s{tb}, s{blk}, 245")
    P(f"s_cselect_b32 s{blk}, s{blk}, s{tb}")
    P(f"s_sub_u32 s{tb}, s{blk}, 196")
    P(f"s_cselect_b32 s{blk}, s{blk}, s{tb}")
    P(f"s_cselect_b64 {sr(tb)}, {sr(SRD_W2)}, {sr(S_WO)}")
    P(f"s_lshl_b32 s{blk}, s{blk}, 13")
    P(f"s_add_u32 s{tb}, s{tb}, s{blk}")
    P(f"s_addc_u32 s{tb+1}, s{tb+1}, 0")
    P(f"global_load_dword v{dst}, v{l128}, {sr(tb)}", tag='warm')

def l2_touch(P, o, i):
    P(f"s_mul_i32 s{S_T4}, s{S_RBL}, 7")
    P(f"s_add_u32 s{S_T4}, s{S_T4}, s{S_C}")
    P(f"s_lshl2_add_u32 s{S_T4}, s{S_T4}, s{S_WAVE}")
    if i: P(f"s_add_u32 s{S_T4}, s{S_T4}, {112*i}")
    P(f"s_mul_i32 s{S_T0}, s{S_T4}, 1873")
    P(f"s_lshr_b32 s{S_T0}, s{S_T0}, 16")
    P(f"s_mul_i32 s{S_T0}, s{S_T0}, {128*896}")
    P(f"s_lshl_b32 s{S_T1}, s{S_T4}, 13")
    P(f"s_add_u32 s{S_T0}, s{S_T0}, s{S_T1}")
    P(f"s_add_u32 s{S_T0}, s{S_T0}, {128*896}")
    P(f"s_sub_u32 s{S_T1}, s{S_T1}, {140*8192}")
    P(f"s_cbranch_scc0 L_wo{i}")
    P(f"buffer_load_dword v{184+i}, v{V_L128}, {sr(SRD_W2,4)}, s{S_T0} offen")
    P(f"s_branch L_wj{i}")
    P(f"L_wo{i}:")
    P(f"buffer_load_dword v{186+i}, v{V_L128}, {sr(SRD_WO,4)}, s{S_T1} offen")
    P(f"L_wj{i}:")
    P.L.append(Pseudo('drop_vm'))

def poll(P, o, addr_v, limit=4000):
    lab[0] += 1
    L = f"L_poll{lab[0]}"
    P(f"s_mov_b32 s{S_CNT}, {limit}")
    P(f"{L}:")
    P(f"buffer_load_dwordx2 {vr(V_PD,2)}, v{addr_v}, {sr(SRD_WS,4)}, 0 offen sc1")
    P(f"s_sub_u32 s{S_CNT}, s{S_CNT}, 1")
    P("s_waitcnt vmcnt(0)")
    P(f"v_cmp_ne_u64 vcc, {sr(S_TAG)}, {vr(V_PD,2)}")
    P(f"s_cbranch_scc1 {L}_x")
    P(f"s_cbranch_vccnz {L}")
    P(f"{L}_x:")

slow_paths = []
def poll_issue(addr_v):
    return [f"buffer_load_dwordx2 {vr(V_PD,2)}, v{addr_v}, {sr(SRD_WS,4)}, 0 offen sc1"]
def poll_check(addr_v, limit=4000):
    lab[0] += 1
    L = f"L_pc{lab[0]}"
    slow_paths.append(f"""{L}_slow:
s_mov_b32 s{S_CNT}, {limit}
{L}_loop:
buffer_load_dwordx2 {vr(V_PD,2)}, v{addr_v}, {sr(SRD_WS,4)}, 0 offen sc1
s_sub_u32 s{S_CNT}, s{S_CNT}, 1
s_waitcnt vmcnt(0)
v_cmp_ne_u64 vcc, {sr(S_TAG)}, {vr(V_PD,2)}
s_cbranch_scc1 {L}_back
s_cbranch_vccnz {L}_loop
s_branch {L}_back""")
    return [f"v_cmp_ne_u64 vcc, {sr(S_TAG)}, {vr(V_PD,2)}\ns_cbranch_vccnz {L}_slow\n{L}_back:"]

def flag_store(soff):
    return [f"buffer_store_dwordx2 {vr(V_TAG,2)}, v{V_FLAGOFF}, {sr(SRD_WS,4)}, s{soff} offen sc1"]

ACC_Q, ACC_F = 16, 64
FR = 128
GT = 160
V_XD, V_QD, V_FD = 192, 196, 199
V_XR, V_QR, V_FRD = 203, 207, 208
V_CA, V_CB = 212, 214
V_QR2, V_L128 = 213, 215

def adv(ci):
    return f"s_add_u32 s{ci}, s{ci}, 1\ns_cmp_eq_u32 s{ci}, 7\ns_cselect_b32 s{ci}, 0, s{ci}"

def dma_a(n):
    sl = (n % 3) * SA
    L = []
    if n: L.append([adv(S_CI)])
    L.append([f"s_lshl_b32 s{S_XO}, s{S_CI}, 7", f"s_add_u32 m0, s{S_M4}, {sl}"])
    L.append([f"s_mul_i32 s{S_QO}, s{S_CI}, {64*2688}"])
    for i in range(4):
        L.append([(f"buffer_load_dwordx4 v{V_XD+i}, {sr(SRD_X,4)}, s{S_XO} offen offset:{i*1024} lds", f'da{n}')])
    L.append([f"s_add_u32 m0, s{S_M3}, {sl}"])
    for i in range(3):
        L.append([(f"buffer_load_dwordx4 v{V_QD+i}, {sr(SRD_WQ,4)}, s{S_QO} offen offset:{i*1024} lds", f'da{n}')])
    return L

def dma_b(n):
    L = []
    if n: L.append([adv(S_CJ)])
    L.append([f"s_add_u32 m0, s{S_M4}, {LF + ((n + 1) % 4) * SF}", f"s_mul_i32 s{S_FO}, s{S_CJ}, {64*3584}"])
    for i in range(4):
        L.append([(f"buffer_load_dwordx4 v{V_FD+i}, {sr(SRD_W1,4)}, s{S_FO} offen offset:{i*1024} lds", f'db{n}')])
    return L

def reads_a(g):
    c, s = g >> 2, g & 3
    sl = (c % 3) * SA
    base = FR + 16 * (g & 1)
    L = [f"ds_read_b128 {ar(4*g,4)}, v{V_XR+s} offset:{sl}"]
    q, so = (V_QR2, 0) if c % 3 == 2 else (V_QR, sl)
    for t in range(3):
        for rho in range(2):
            L.append(f"ds_read_b64_tr_b16 {vr(base+4*t+2*rho,2)}, v{q} offset:{so + (16*s+4*rho)*192 + t*64}")
    return L

def reads_b(g):
    c, s = g >> 2, g & 3
    base = FR + 16 * (g & 1)
    return [f"ds_read_b64_tr_b16 {vr(base+4*t+2*rho,2)}, v{V_FRD+t} offset:{((c + 1) % 4)*SF + (16*s+4*rho)*256}" for t in range(4) for rho in range(2)]

def s1_x_addr(P, o):
    T = V_T
    if o.ncls == 3:
        P(f"s_add_u32 s{S_CI}, s{S_C}, s{S_RBL}")
        P(f"s_lshl_b32 s{S_CI}, s{S_CI}, 1")
        P(f"s_lshr_b32 s{S_CI}, 0x24924, s{S_CI}")
        P(f"s_and_b32 s{S_CI}, s{S_CI}, 3")
        P(f"s_lshl_b32 s{S_CI}, s{S_CI}, 1")
    elif o.ncls == 2:
        P(f"s_add_u32 s{S_CI}, s{S_C}, s{S_RBL}")
        P(f"s_and_b32 s{S_CI}, s{S_CI}, 1")
        P(f"s_mul_i32 s{S_CI}, s{S_CI}, 3")
    else:
        P(f"s_mov_b32 s{S_CI}, 0")
    P(f"s_and_b32 s{S_RB}, s{S_XCD}, 3")
    P(f"s_lshl2_add_u32 s{S_RB}, s{S_RB}, s{S_RBL}")
    P(f"s_lshl2_add_u32 s{S_TB}, s{S_RB}, s{S_WAVE}")
    P(f"v_lshrrev_b32 v{T}, 3, v{V_LANE}")
    P(f"v_and_b32 v{T+1}, 7, v{V_LANE}")
    P(f"v_lshrrev_b32 v{T+2}, 4, v{V_LANE}")
    P(f"s_lshl_b32 s{S_T2}, s{S_TB}, 5")
    P(f"v_add_u32 v{T}, s{S_T2}, v{T}")
    P(f"v_mul_u32_u24 v{T}, 896, v{T}")
    P(f"v_xor_b32 v{T+1}, v{T+2}, v{T+1}")
    P(f"v_lshl_add_u32 v{V_XD}, v{T+1}, 4, v{T}")
    P(f"v_xor_b32 v{V_XD+1}, 64, v{V_XD}")
    P(f"s_lshl_b32 s{S_M4}, s{S_WAVE}, 12")
    P(f"v_add_u32 v{V_XD+2}, {2*(8*896-1024)}, v{V_XD}")
    P(f"v_add_u32 v{V_XD+3}, {3*(8*896-1024)}, v{V_XD+1}")
    P(f"v_add_u32 v{V_XD+1}, {1*(8*896-1024)}, v{V_XD+1}")

def s1_wq_addr(P, o):
    T = V_T
    P(f"s_lshr_b32 s{S_B}, s{S_XCD}, 2")
    P(f"s_mul_i32 s{S_B}, s{S_B}, 7")
    P(f"s_add_u32 s{S_B}, s{S_B}, s{S_C}")
    P(f"s_mul_i32 s{S_T2}, s{S_WAVE}, 192")
    P(f"s_mul_i32 s{S_T3}, s{S_B}, 192")
    P(f"v_add_u32 v{T}, s{S_T2}, v{V_LANE}")
    P(f"v_lshl_add_u32 v{T+2}, v{T}, 4, s{S_T3}")
    P(f"v_mul_u32_u24 v{T}, 0xaaab, v{T}")
    P(f"s_movk_i32 s{S_T3}, 2496")
    for i in range(3):
        if i: P(f"v_add_u32 v{T}, {64*0xaaab}, v{T}")
        P(f"v_lshrrev_b32 v{T+1}, 19, v{T}")
        P(f"v_mad_u32_u24 v{V_QD+i}, v{T+1}, s{S_T3}, v{T+2}")
    P(f"s_lshl_b32 s{S_T2}, s{S_T2}, 4")
    P(f"s_add_u32 s{S_M3}, s{S_T2}, {LQ}")
    srd_rest(P, [(SRD_WQ, 448*2688)])

def s1_read_addr(P, o):
    T = V_T
    P(f"v_and_b32 v{T}, 31, v{V_LANE}")
    P(f"v_lshrrev_b32 v{T+1}, 5, v{V_LANE}")
    P(f"v_bfe_u32 v{T+2}, v{V_LANE}, 1, 3")
    P(f"v_xor_b32 v{T+2}, v{T+2}, v{T+1}")
    P(f"v_lshl_add_u32 v{T}, v{T}, 7, s{S_M4}")
    for s in range(4):
        P(f"v_xor_b32 v{T+3}, {2*s}, v{T+2}")
        P(f"v_lshl_add_u32 v{V_XR+s}, v{T+3}, 4, v{T}")
    P(f"v_bfe_u32 v{T}, v{V_LANE}, 2, 2")
    P(f"v_lshl_add_u32 v{T+1}, v{T+1}, 3, v{T}")
    P(f"v_bfe_u32 v{T+2}, v{V_LANE}, 4, 1")
    P(f"v_lshlrev_b32 v{T+2}, 5, v{T+2}")
    P(f"v_and_b32 v{T+3}, 3, v{V_LANE}")
    P(f"v_lshl_add_u32 v{T+2}, v{T+3}, 3, v{T+2}")
    P(f"v_mul_u32_u24 v{T+3}, 192, v{T+1}")
    P(f"v_add_u32 v{T+3}, {LQ}, v{T+3}")
    P(f"v_add_u32 v{V_QR}, v{T+3}, v{T+2}")
    P(f"v_add_u32 v{V_QR2}, {2*SA}, v{V_QR}")
    P(f"v_lshl_add_u32 v{T+2}, v{T+1}, 8, v{T+2}")
    P(f"v_add_u32 v{T+2}, {LF}, v{T+2}")
    for c in range(4):
        P(f"v_xor_b32 v{T+3}, {c}, v{T}")
        P(f"v_lshl_add_u32 v{V_FRD+c}, v{T+3}, 6, v{T+2}")

def s1_w1_addr(P, o):
    T = V_T
    P(f"v_lshrrev_b32 v{T+2}, 4, v{V_LANE}")
    P(f"v_lshlrev_b32 v{T+1}, 2, v{T+2}")
    P(f"v_xor_b32 v{T+1}, v{T+1}, v{V_LANE}")
    P(f"v_and_b32 v{T+1}, 15, v{T+1}")
    P(f"s_lshl_b32 s{S_T2}, s{S_WAVE}, 4")
    P(f"v_add_u32 v{T}, s{S_T2}, v{T+2}")
    P(f"v_mul_u32_u24 v{T}, 3584, v{T}")
    P(f"s_lshl_b32 s{S_T3}, s{S_B}, 8")
    P(f"v_lshl_add_u32 v{T}, v{T+1}, 4, v{T}")
    P(f"v_add_u32 v{V_FD}, s{S_T3}, v{T}")
    for i in range(1, 4):
        P(f"v_add_u32 v{V_FD+i}, {i*(4*3584-1024)}, v{V_FD}")
    srd_rest(P, [(SRD_W1, 448*3584)])
    P(f"v_lshl_add_u32 v{T}, v{V_LANE}, 2, s{S_T3}")
    P(f"global_load_dword v9, v{T}, {sr(S_B1)}")

def w1_touch(P, o):
    T = V_T
    P(f"v_lshrrev_b32 v{T}, 1, v{V_LANE}")
    P(f"v_min_u32 v{T}, 27, v{T}")
    P(f"s_lshl2_add_u32 s{S_T0}, s{S_RBL}, s{S_WAVE}")
    P(f"s_mul_i32 s{S_T0}, s{S_T0}, 28")
    P(f"v_add_u32 v{T}, s{S_T0}, v{T}")
    P(f"v_mul_u32_u24 v{T}, 3584, v{T}")
    P(f"v_and_b32 v{T+1}, 1, v{V_LANE}")
    P(f"v_lshl_add_u32 v{T}, v{T+1}, 7, v{T}")
    P(f"s_lshl_b32 s{S_T0}, s{S_B}, 8")
    P(f"buffer_load_dword v160, v{T}, {sr(SRD_W1,4)}, s{S_T0} offen", tag='warm')

def s1_misc(P, o):
    srd_rest(P, [(SRD_WS, WS_SIZE), (SRD_OUT, 2048*896)])
    A = -2.0 * math.sqrt(2.0 / math.pi) * 0.044715 * math.log2(math.e)
    B = -2.0 * math.sqrt(2.0 / math.pi) * math.log2(math.e)
    P(f"v_mov_b32 v{V_CA}, {hex(f2u(A))}")
    P(f"v_mov_b32 v{V_CB}, {hex(f2u(B))}")
    P(f"v_lshlrev_b32 v{V_L128}, 7, v{V_LANE}")
    P(f"s_mul_i32 s{S_QST}, s{S_TB}, {QKV_TB}")
    P(f"s_mul_i32 s{S_T0}, s{S_B}, {3*2048}")
    P(f"s_add_u32 s{S_QST}, s{S_QST}, s{S_T0}")
    P(f"s_add_u32 s{S_QST}, s{S_QST}, {QKV_OFF}")
    P(f"s_mul_i32 s{S_HST}, s{S_TB}, {A_TB}")
    P(f"s_lshl_b32 s{S_T0}, s{S_B}, 13")
    P(f"s_add_u32 s{S_HST}, s{S_HST}, s{S_T0}")
    P(f"s_add_u32 s{S_HST}, s{S_HST}, {A_OFF}")
    P(f"s_lshl4_add_u32 s{S_T0}, s{S_TB}, s{S_B}")
    P(f"s_lshl_b32 s{S_T0}, s{S_T0}, 7")
    P(f"s_add_u32 s{S_QFL}, s{S_T0}, {FL_QKV}")
    P(f"s_add_u32 s{S_HFL}, s{S_T0}, {FL_H}")
    P(f"s_mul_i32 s{S_B3}, s{S_B}, 3")
    P(f"s_mov_b32 s{S_SPARE}, 0")

def bias_expand(P, src_v, tmp, addr, base):
    P(f"v_lshlrev_b32 v{tmp}, 16, v{src_v}")
    P(f"v_and_b32 v{tmp+1}, 0xffff0000, v{src_v}")
    P(f"v_lshl_add_u32 v{tmp+2}, v{V_LANE}, 3, s{base}")
    P(f"ds_write_b64 v{tmp+2}, {vr(tmp,2)}")
    P(f"v_lshrrev_b32 v{addr}, 5, v{V_LANE}")
    P(f"v_lshl_add_u32 v{addr}, v{addr}, 4, s{base}")

def bias1(P, o):
    P(f"s_lshl_b32 s{S_T0}, s{S_WAVE}, 9")
    P(f"s_add_u32 s{S_T0}, s{S_T0}, {LBIAS}")
    bias_expand(P, 9, 12, 8, S_T0)

def bias1_reads():
    return [[f"ds_read_b128 {vr(ACC_F+16*F+4*q,4)}, v8 offset:{(32*F+8*q)*4}"] for F in range(4) for q in range(4)]

def b_dma(p):
    L = [[f"s_add_u32 m0, s{S_M4}, {LP[PIECE[p]]}"]]
    if p < 14:
        so, sd = S_BOF, SRD_W2
        if p: L[0].append(f"s_add_u32 s{so}, s{so}, {32*896}")
    else:
        so, sd = S_BO, SRD_WO
        i = p - 14
        if i: L[0].append(f"s_add_u32 s{so}, s{so}, {8*(((7*i)>>1) - ((7*(i-1))>>1))*896}")
    for i in range(4):
        L.append([(f"buffer_load_dwordx4 v{V_BA+i}, {sr(sd,4)}, s{so} offen offset:{i*1024} lds", f'bp{p}')])
    return L

def breg(n, ctl):
    if n >= 22: n -= 22
    return ('a', (112 + 8 * n if n < 18 else 8 * (n - 18)) + 4 * ctl)

def b_reads(n):
    pc = LP[PIECE[n >> 1]]
    hi, so = divmod(pc, 65536)
    return [f"ds_read_b64_tr_b16 {ar(breg(n, ctl)[1]+2*rho,2)}, v{V_BR[hi][ctl]} offset:{so + (n & 1)*2048 + rho*1024}" for ctl in range(2) for rho in range(2)]

class Gaps:
    def __init__(self): self.m = {}; self.v = {}
    def put(self, kind, items, g0, g1):
        d = self.m if kind == 'm' else self.v
        spread(d, items, list(range(g0, g1)), kind == 'm')
    def emit(self, G): return sum(self.m.get(G, []), []) + sum(self.v.get(G, []), [])

def spread(hooks, items, slots, unit=True):
    w = (lambda g: 1) if unit else len
    tot = sum(w(g) for g in items); done = 0
    for g in items:
        s = slots[min(len(slots) - 1, (done * len(slots)) // tot)]
        hooks.setdefault(s, []).append(g); done += w(g)

def merge_salu(items):
    out = []; pend = []
    for it in items:
        pend += it
        if any(isinstance(x, tuple) or (isinstance(x, str) and x.startswith(('buffer', 'global', 'ds_'))) for x in it):
            out.append(pend); pend = []
    if pend: out.append(pend)
    return out

def pass_a(P, o, H):
    s1_x_addr(P, o)
    d0 = dma_a(0)
    P.add(d0[0])
    P("s_waitcnt lgkmcnt(0)")
    if o.stamps:
        o.stamp_names.append('entry'); P(f"v_mov_b32 v{V_ST}, 0"); P(f"v_writelane_b32 v{V_ST}, s94, 0")
    for it in d0[2:6]: P.add(it)
    P.add(d0[1]); P(f"s_mov_b32 s{S_CJ}, s{S_CI}")
    s1_wq_addr(P, o)
    for it in d0[6:]: P.add(it)
    stamp(P, o, 'd0_issued')
    for it in dma_a(1): P.add(it)
    s1_read_addr(P, o)
    for it in dma_a(2): P.add(it)
    P.wait_vm('da0')
    P("s_barrier")
    stamp(P, o, 's1_first')
    P.add(reads_a(0))
    for c in range(4): H.put('m', merge_salu(dma_a(c + 3)), 12 * c + 9, 12 * c + 21)
    H.put('m', merge_salu([it for n in range(4) for it in dma_b(n)]), 57, o.bq_end)
    for g in range(28):
        c, s = g >> 2, g & 3
        base = FR + 16 * (g & 1)
        if s == 3 and c < 6:
            P("s_waitcnt lgkmcnt(0)")
            P.wait_vm(f'da{c+1}')
            P("s_barrier")
            if o.trunc: stamp(P, o, f'a{c}')
        rd = reads_a(g + 1) if g < 27 else []
        per = [4, 3, 0] if s == 2 else [3, 2, 2]
        for t in range(3):
            P(mfma(ACC_Q + 16 * t, base + 4 * t, ('a', 4 * g), None if g == 0 else ACC_Q + 16 * t))
            P.add(rd[:per[t]]); rd = rd[per[t]:]
            P.add(H.emit(3 * g + t))
    P("s_waitcnt lgkmcnt(0)")
    P.wait_vm('db0')
    P("s_barrier")
    stamp(P, o, 'pass_a')
    P.add(reads_b(0))

def pass_b(P, o, H):
    for g in range(28):
        c, s = g >> 2, g & 3
        base = FR + 16 * (g & 1)
        if s == 3 and c < 6:
            P("s_waitcnt lgkmcnt(0)")
            P.wait_vm(f'db{c+1}')
            P("s_barrier")
            if o.trunc: stamp(P, o, f'b{c}')
        rd = reads_b(g + 1) if g < 27 else []
        per = [3, 3, 2, 0] if s == 2 else [2, 2, 2, 2]
        for t in range(4):
            P(mfma(ACC_F + 16 * t, base + 4 * t, ('a', 4 * g), ACC_F + 16 * t))
            P.add(rd[:per[t]]); rd = rd[per[t]:]
            P.add(H.emit(4 * g + t))

def qkv_epilogue(P, o):
    c = (28.0 ** -0.5) * math.log2(math.e)
    P(f"s_mov_b32 s{S_T2}, {hex(f2u(c))}")
    for t in range(3):
        acc = ACC_Q + 16 * t
        P(f"s_cmp_lt_u32 s{S_B3}, {14 - t}")
        P(f"s_cbranch_scc0 L_nosc{t}")
        for i in range(8):
            P(f"v_pk_mul_f32 {vr(acc+2*i,2)}, {vr(acc+2*i,2)}, s[{S_T2}:{S_T3}] op_sel_hi:[1,0]")
        P(f"L_nosc{t}:")
        p = GT + 8 * t
        for i in range(8):
            P(f"v_cvt_pk_bf16_f32 v{p+i}, v{acc+2*i}, v{acc+2*i+1}")
        for h in range(2):
            P(f"v_permlane32_swap_b32 v{p+4*h}, v{p+4*h+2}")
            P(f"v_permlane32_swap_b32 v{p+4*h+1}, v{p+4*h+3}")
        for h in range(2):
            off = t * 2048 + h * 1024
            P(f"buffer_store_dwordx4 {vr(p+4*h,4)}, v{V_L16H if off >= 4096 else V_L16}, {sr(SRD_WS,4)}, s{S_QST} offen offset:{off & 4095} {SC}", tag='qst')

def gelu_tile(F):
    u = ACC_F + 16 * F
    t = GT + 16 * (F & 1)
    L = []
    pr = lambda b, i: vr(b + 2 * i, 2)
    for i in range(8): L.append(f"v_pk_mul_f32 {pr(t,i)}, {pr(u,i)}, {pr(u,i)}")
    for i in range(8): L.append(f"v_pk_fma_f32 {pr(t,i)}, {pr(t,i)}, {vr(V_CA,2)}, {vr(V_CB,2)} op_sel_hi:[1,0,0]")
    for i in range(8): L.append(f"v_pk_mul_f32 {pr(t,i)}, {pr(t,i)}, {pr(u,i)}")
    for i in range(16): L.append(f"v_exp_f32 v{t+i}, v{t+i}")
    for i in range(8): L.append(f"v_pk_add_f32 {pr(t,i)}, {pr(t,i)}, 1.0 op_sel_hi:[1,0]")
    for i in range(16): L.append(f"v_rcp_f32 v{t+i}, v{t+i}")
    for i in range(8): L.append(f"v_pk_mul_f32 {pr(t,i)}, {pr(t,i)}, {pr(u,i)}")
    for i in range(8): L.append(f"v_cvt_pk_bf16_f32 v{t+i}, v{t+2*i}, v{t+2*i+1}")
    for h in range(2):
        off = (2 * F + h) * 1024
        L.append((f"buffer_store_dwordx4 {vr(t+4*h,4)}, v{V_L16H if off >= 4096 else V_L16}, {sr(SRD_WS,4)}, s{S_HST} offen offset:{off & 4095} {SC}", 'hst'))
    return L

def prep(P, o):
    T = V_T
    if o.stamps: P(f"v_mov_b32 v{V_ST}, 0")
    common2(P, o)
    srd_rest(P, [(SRD_WS, WS_SIZE)])
    P(f"v_lshlrev_b32 v{V_L128}, 7, v{V_LANE}")
    P(f"s_mov_b32 s{S_SPARE}, 1")
    P(f"s_lshl_b32 s{S_M4}, s{S_WAVE}, 12")
    P(f"v_lshrrev_b32 v{T}, 2, v{V_LANE}")
    P(f"s_lshl2_add_u32 s{S_T0}, s{S_R}, s{S_WAVE}")
    P(f"s_lshl_b32 s{S_T0}, s{S_T0}, 4")
    P(f"v_add_u32 v20, s{S_T0}, v{T}")
    P(f"v_mul_u32_u24 v{T}, 896, v20")
    P(f"v_and_b32 v{T+1}, 3, v{V_LANE}")
    P(f"v_lshlrev_b32 v{T+1}, 4, v{T+1}")
    P(f"v_add_u32 v{T}, v{T}, v{T+1}")
    P("s_waitcnt lgkmcnt(0)")
    if o.stamps: P(f"v_writelane_b32 v{V_ST}, s94, 0")
    P(f"s_load_dword s{S_TAG}, {sr(SRD_WS)}, {WS_E}")
    P(f"s_mov_b64 {sr(SRD_W2)}, {sr(S_W2)}")
    if o.pw:
        P(f"v_min_u32 v{T+2}, 27, v{V_LANE}")
        P(f"v_lshlrev_b32 v{T+2}, 7, v{T+2}")
        P(f"global_load_dword v176, v{T+2}, {sr(S_B1)}")
        P(f"v_lshlrev_b32 v{T+3}, 20, v{V_LANE}")
        P(f"buffer_load_dword v177, v{T+3}, {sr(SRD_WS,4)}, 0 offen")
        P(f"v_min_u32 v{T+2}, {6*128}, v{T+2}")
        P(f"global_load_dword v178, v{T+2}, {sr(S_B2)}")
        srd_rest(P, [(SRD_OUT, 2048*896)])
        P(f"buffer_load_dword v179, v{T+3}, {sr(SRD_OUT,4)}, 0 offen")
    if o.mw:
        srd_rest(P, [(SRD_W1, 448*3584), (SRD_W2, 1792*896), (SRD_WQ, 448*896)])
        P(f"s_mov_b64 {sr(SRD_WQ)}, {sr(S_WO)}")
        P(f"s_lshl2_add_u32 s{S_T0}, s{S_R}, s{S_WAVE}")
        P(f"s_lshl_b32 s{S_T0}, s{S_T0}, 13")
        P(f"s_add_u32 s{S_T1}, s{S_T0}, 0x100000")
        for i, (d, so) in enumerate(((SRD_W1, S_T0), (SRD_W1, S_T1), (SRD_W2, S_T0), (SRD_W2, S_T1), (SRD_WQ, S_T0))):
            P(f"buffer_load_dword v{180+i}, v{V_L128}, {sr(d,4)}, s{so} offen")
    for i in range(14):
        P(f"buffer_load_dwordx4 {vr(32+4*i,4)}, v{T}, {sr(SRD_X,4)}, 0 offen offset:{64*i}")
        P(f"global_load_dwordx4 {vr(96+4*i,4)}, v{T+1}, {sr(S_GW)} offset:{64*i}")
    P.add(TAGOPS)
    P("v_mov_b32 v24, 0")
    P("v_mov_b32 v25, 0")
    for i in range(56):
        P(f"v_dot2_f32_bf16 v{24+(i&1)}, v{32+i}, v{96+i}, v{24+(i&1)}")
    P("s_nop 2")
    P("v_add_f32 v24, v24, v25")
    P("v_add_f32_dpp v24, v24, v24 quad_perm:[1,0,3,2] row_mask:0xf bank_mask:0xf")
    P("v_add_f32_dpp v24, v24, v24 quad_perm:[2,3,0,1] row_mask:0xf bank_mask:0xf")
    P(f"v_mul_f32 v24, {hex(f2u(-math.log2(math.e)))}, v24")
    P("v_exp_f32 v24, v24")
    P("v_add_f32 v24, 1.0, v24")
    P("v_rcp_f32 v24, v24")
    P(f"v_lshlrev_b32 v20, 2, v20")
    P(f"v_and_b32 v25, 3, v{V_LANE}")
    P(f"v_cmp_eq_u32 vcc, 0, v25")
    P(f"v_mov_b32 v27, 0x7fff0000")
    P(f"v_cndmask_b32 v20, v27, v20, vcc")
    P(f"s_mov_b32 s{S_T0}, {G_OFF}")
    P(f"buffer_store_dword v24, v20, {sr(SRD_WS,4)}, s{S_T0} offen {SC}")
    P("s_waitcnt vmcnt(0) lgkmcnt(0)")
    P("s_barrier")
    P(f"s_lshl_b32 s{S_T0}, s{S_R}, 7")
    P(f"s_add_u32 s{S_T0}, s{S_T0}, {FL_G}")
    P(f"s_cmp_eq_u32 s{S_WAVE}, 0")
    P("s_cbranch_scc0 L_prep_nf")
    P.add(flag_store(S_T0))
    P("L_prep_nf:")
    stamp(P, o, 'p_flag')
    for i in range(o.wsp):
        P(f"s_lshl2_add_u32 s{S_T4}, s{S_RBL}, s{S_WAVE}")
        P(f"s_add_u32 s{S_T4}, s{S_T4}, {16*i}")
        warm_touch(P, S_T4, 160 + i, S_T0, V_L128)

AQ = 16
AK = 24
AV = 40
AS = 56
AN = 104
AO = 120
AP = 136
AM = 236
A_KR, A_VR = 244, 245
A_KD, A_VD = 247, 248
A_PA, A_PV = 250, 251
A_G = 254
A_MX = 5

def att_scalars(P, o):
    P(f"s_and_b32 s{S_ARB}, s{S_SLOT}, 15")
    P(f"s_lshr_b32 s{S_J}, s{S_SLOT}, 4")
    P(f"s_lshl1_add_u32 s{S_J}, s{S_XCD}, s{S_J}")
    P(f"s_lshl2_add_u32 s{S_ATB}, s{S_ARB}, s{S_WAVE}")
    P(f"s_and_b32 s{S_PAR}, s{S_J}, 1")
    P(f"s_lshl4_add_u32 s{S_T0}, s{S_ATB}, s{S_J}")
    P(f"s_lshl_b32 s{S_T0}, s{S_T0}, 7")
    P(f"s_add_u32 s{S_OFL}, s{S_T0}, {FL_O}")
    P(f"s_mul_i32 s{S_T2}, s{S_ATB}, {A_TB}")
    P(f"s_lshl_b32 s{S_T3}, s{S_J}, 11")
    P(f"s_add_u32 s{S_T2}, s{S_T2}, s{S_T3}")
    P(f"s_add_u32 s{S_OST}, s{S_T2}, {A_OFF + 112*1024}")

def att_poll_addr(P, o):
    T = V_T
    P(f"v_min_u32 v{T}, 13, v{V_LANE}")
    P(f"v_lshrrev_b32 v{T+1}, 1, v{T}")
    P(f"v_and_b32 v{T}, 1, v{T}")
    P(f"s_mul_i32 s{S_T0}, s{S_J}, 7")
    P(f"s_lshr_b32 s{S_T0}, s{S_T0}, 1")
    P(f"s_lshl_b32 s{S_T0}, s{S_T0}, 3")
    P(f"v_mad_u32_u24 v{T}, v{T}, 31, s{S_T0}")
    P(f"v_mov_b32 v{T+2}, 896")
    P(f"v_mov_b32 v{T+3}, 448")
    P(f"v_subrev_u32 v{T+4}, 3, v{T+1}")
    P(f"v_cmp_gt_u32 vcc, 3, v{T+1}")
    P(f"v_cndmask_b32 v{T+2}, v{T+2}, v{T+3}, vcc")
    P(f"v_cndmask_b32 v{T+3}, v{T+4}, v{T+1}, vcc")
    P(f"s_mul_i32 s{S_T1}, s{S_WAVE}, 3")
    P(f"s_lshl2_add_u32 s{S_T1}, s{S_ARB}, s{S_T1}")
    P(f"s_sub_u32 s{S_T1}, s{S_T1}, 8")
    P(f"v_add_u32 v{T+3}, s{S_T1}, v{T+3}")
    P(f"v_max_i32 v{T+3}, 0, v{T+3}")
    P(f"v_mov_b32 v{T+4}, s{S_ATB}")
    P(f"v_cmp_eq_u32 vcc, 6, v{T+1}")
    P(f"v_cndmask_b32_e64 v{T+2}, v{T+2}, 0, vcc")
    P(f"v_cndmask_b32 v{T+3}, v{T+3}, v{T+4}, vcc")
    P(f"v_add_u32 v{T}, v{T}, v{T+2}")
    P(f"v_mul_u32_u24 v{T}, 683, v{T}")
    P(f"v_lshrrev_b32 v{T}, 16, v{T}")
    P(f"v_lshl_add_u32 v{T}, v{T+3}, 4, v{T}")
    P(f"v_lshlrev_b32 v{T}, 7, v{T}")
    P(f"v_add_u32 v{V_PA}, {FL_QKV}, v{T}")
    P(f"s_lshr_b32 s{S_T0}, s{S_ATB}, 1")
    P(f"s_lshl_b32 s{S_T0}, s{S_T0}, 7")
    P(f"s_add_u32 s{S_T0}, s{S_T0}, {FL_G}")
    P(f"s_lshl_b32 s{S_T1}, s{S_R}, 7")
    P(f"s_add_u32 s{S_T1}, s{S_T1}, {FL_G}")
    P(f"v_writelane_b32 v{V_PA}, s{S_T0}, 14")
    P(f"v_writelane_b32 v{V_PA}, s{S_T1}, 15")

def att_addr(P, o):
    T = V_T
    P(f"s_mul_i32 s{S_T0}, s{S_J}, 7")
    P(f"s_lshr_b32 s{S_T0}, s{S_T0}, 1")
    P(f"s_lshl_b32 s{S_T4}, s{S_T0}, 9")
    P(f"s_add_u32 s{S_T1}, s{S_T4}, {56*512}")
    P(f"v_add_u32 v{A_KD}, s{S_T1}, v{V_L16}")
    P(f"v_lshrrev_b32 v{T}, 5, v{V_LANE}")
    P(f"v_and_b32 v{T+1}, 31, v{V_LANE}")
    P(f"s_add_u32 s{S_T1}, s{S_T4}, {112*512 - 2048}")
    P(f"v_lshlrev_b32 v{T+2}, 2, v{T}")
    P(f"v_xor_b32 v{T+2}, v{T+2}, v{T+1}")
    P(f"v_lshlrev_b32 v{T+2}, 4, v{T+2}")
    P(f"v_lshl_add_u32 v{T+2}, v{T}, 9, v{T+2}")
    P(f"v_add_u32 v{A_VD}, s{S_T1}, v{T+2}")
    P(f"v_xor_b32 v{A_VD+1}, 128, v{A_VD}")
    P(f"v_add_u32 v{A_KR}, s{S_M4}, v{V_L16}")
    P(f"v_bfe_u32 v{T+1}, v{V_LANE}, 4, 1")
    P(f"v_bfe_u32 v{T+2}, v{V_LANE}, 1, 1")
    P(f"v_lshl_add_u32 v{T+3}, v{T+1}, 1, v{T+2}")
    P(f"v_lshlrev_b32 v{T+4}, 9, v{T+3}")
    P(f"v_xor_b32 v{T+3}, v{T+3}, v{T}")
    P(f"v_lshl_add_u32 v{T+4}, v{T+3}, 6, v{T+4}")
    P(f"v_bfe_u32 v{T+3}, v{V_LANE}, 2, 2")
    P(f"v_lshl_add_u32 v{T+4}, v{T+3}, 4, v{T+4}")
    P(f"v_and_b32 v{T+3}, 1, v{V_LANE}")
    P(f"v_lshl_add_u32 v{T+4}, v{T+3}, 3, v{T+4}")
    P(f"s_add_u32 s{S_T1}, s{S_M4}, 2048")
    P(f"v_add_u32 v{A_VR}, s{S_T1}, v{T+4}")
    P(f"v_xor_b32 v{A_VR+1}, 128, v{A_VR}")
    P(f"v_and_b32 v{T+1}, 31, v{V_LANE}")
    P(f"v_mul_u32_u24 v{T+2}, 12, v{T}")
    P(f"s_cmp_eq_u32 s{S_PAR}, 0")
    P(f"s_cselect_b32 s{S_T1}, -1, 0")
    P(f"s_cselect_b32 s{S_T2}, 1544, 0")
    P(f"v_and_b32 v{T+2}, s{S_T1}, v{T+2}")
    P(f"v_xor_b32 v{T+1}, v{T+1}, v{T+2}")
    P(f"v_lshlrev_b32 v{T+1}, 4, v{T+1}")
    P(f"v_lshl_add_u32 v{T+1}, v{T}, 11, v{T+1}")
    P(f"s_mul_i32 s{S_T3}, s{S_WAVE}, {3*4096}")
    P(f"s_add_u32 s{S_T2}, s{S_T2}, s{S_T3}")
    P(f"v_add_u32 v{A_PA}, s{S_T2}, v{T+1}")
    P(f"s_mul_i32 s{S_T1}, s{S_WAVE}, 3")
    P(f"s_lshl2_add_u32 s{S_T1}, s{S_ARB}, s{S_T1}")
    P(f"v_mov_b32 v{T+1}, 0x3f80")
    for k in range(3):
        P(f"s_add_u32 s{S_T2}, s{S_T1}, {k}")
        P(f"s_cmp_lt_u32 s{S_T2}, 8")
        P(f"s_cselect_b32 s{S_T2}, 0xf14a, 0")
        P(f"v_mov_b32 v{A_PV+k}, s{S_T2}")
    P(f"v_cmp_gt_u32 vcc, 32, v{V_LANE}")
    for k in range(3): P(f"v_cndmask_b32 v{A_PV+k}, v{T+1}, v{A_PV+k}, vcc")

def att_masks(P, o):
    T = V_T
    P(f"v_lshrrev_b32 v{T+1}, 5, v{V_LANE}")
    P(f"v_mul_u32_u24 v{T+1}, 36, v{T+1}")
    P(f"v_sub_u32 v{T+1}, v{V_LANE}, v{T+1}")
    for r in range(16):
        P(f"v_cmp_le_i32_e64 {sr(S_MASK+2*r)}, {(r & 3) + 8 * (r >> 2)}, v{T+1}")
    P(f"v_mov_b32 v{T+1}, 0xffff")
    P(f"v_mov_b32 v{T+2}, 0xffff0000")
    for i in range(8):
        P(f"v_cndmask_b32_e64 v{T+3}, 0, v{T+1}, {sr(S_MASK+4*i)}")
        P(f"v_cndmask_b32_e64 v{T+4}, 0, v{T+2}, {sr(S_MASK+4*i+2)}")
        P(f"v_or_b32 v{AM+i}, v{T+3}, v{T+4}")

def att_kvoff(P, o):
    P(f"s_mul_i32 s{S_T1}, s{S_WAVE}, 3")
    P(f"s_lshl2_add_u32 s{S_T1}, s{S_ARB}, s{S_T1}")
    for k in range(3):
        P(f"s_add_i32 s{S_T2}, s{S_T1}, {k-8}")
        P(f"s_max_i32 s{S_T2}, s{S_T2}, 0")
        P(f"s_mul_i32 s{S_T2}, s{S_T2}, {QKV_TB}")
        P(f"s_add_u32 s{S_KV[k]}, s{S_T2}, {QKV_OFF}")
    P(f"s_mul_i32 s{S_T0}, s{S_J}, 7")
    P(f"s_lshr_b32 s{S_T0}, s{S_T0}, 1")
    P(f"s_lshl_b32 s{S_T0}, s{S_T0}, 9")
    P(f"s_mul_i32 s{S_T2}, s{S_ATB}, {QKV_TB}")
    P(f"s_add_u32 s{S_T2}, s{S_T2}, s{S_T0}")
    P(f"s_add_u32 s{S_KV[3]}, s{S_T2}, {QKV_OFF}")

def att_loads(o, last_g=True):
    T = V_T
    L = [[f"s_mul_i32 s{S_T3}, s{S_WAVE}, {3*4096}"]]
    for k in range(3):
        g = [f"s_add_u32 m0, s{S_T3}, {LKV + k*4096}"]
        for t in range(2):
            g.append((f"buffer_load_dwordx4 v{A_KD}, {sr(SRD_WS,4)}, s{S_KV[k]} offen offset:{t*1024} {SC} lds", 'kv'))
        for t in range(2):
            g.append((f"buffer_load_dwordx4 v{A_VD+t}, {sr(SRD_WS,4)}, s{S_KV[k]} offen offset:{2048+t*1024} {SC} lds", 'kv'))
        L += [[x] for x in g]
    for t in range(2):
        L.append([f"buffer_load_dwordx4 {vr(AQ+4*t,4)}, v{V_L16}, {sr(SRD_WS,4)}, s{S_KV[3]} offen offset:{t*1024} {SC}"])
    G = [f"v_and_b32 v{T+1}, 31, v{V_LANE}", f"v_lshlrev_b32 v{T+1}, 2, v{T+1}",
         f"s_lshl_b32 s{S_T2}, s{S_ATB}, 7", f"s_add_u32 s{S_T2}, s{S_T2}, {G_OFF}",
         f"buffer_load_dword v{A_G}, v{T+1}, {sr(SRD_WS,4)}, s{S_T2} offen {SC}"]
    if last_g:
        G += [f"s_and_b32 s{S_T1}, s{S_WAVE}, 1", f"s_lshl_b32 s{S_T0}, s{S_R}, 8", f"s_add_u32 s{S_T0}, s{S_T0}, {G_OFF}",
              f"s_lshl_b32 s{S_T2}, s{S_T1}, 7", f"s_xor_b32 s{S_T3}, s{S_T2}, 128", f"s_add_u32 s{S_T2}, s{S_T2}, s{S_T0}",
              f"s_add_u32 s{S_T3}, s{S_T3}, s{S_T0}",
              f"buffer_load_dword v{L_G}, v{T+1}, {sr(SRD_WS,4)}, s{S_T3} offen {SC}",
              f"buffer_load_dword v{L_G+1}, v{T+1}, {sr(SRD_WS,4)}, s{S_T2} offen {SC}"]
    return L + [[x] for x in G]

def att_patch():
    T = V_T
    L = [[WVM('kv')]]
    L += [[f"ds_write_b16 v{A_PA}, v{A_PV+k} offset:{LKV + k*4096}"] for k in range(3)]
    L += [[f"s_cmp_eq_u32 s{S_PAR}, 0\ns_cselect_b32 s{S_T0}, 0, -1\ns_cselect_b32 s{S_T3}, -1, 0"],
          [f"s_mov_b32 s{S_T1}, 0"], [f"s_mov_b32 s{S_T2}, 0"], [f"v_mov_b32 v{T}, 0x3f80"],
          [f"v_cndmask_b32_e64 v{AQ}, v{AQ}, v{T}, {sr(S_T0)}"], [f"v_cndmask_b32_e64 v{AQ+1}, v{AQ+1}, 0, {sr(S_T0)}"],
          [f"v_cndmask_b32_e64 v{AQ+6}, v{AQ+6}, v{T}, {sr(S_T2)}"], [f"v_cndmask_b32_e64 v{AQ+7}, v{AQ+7}, 0, {sr(S_T2)}"]]
    return L

ORDER = [0, 8, 1, 2, 3, 4, 5, 6, 7]
def kread(i, buf):
    return [f"ds_read_b128 {vr(AK+8*buf+4*t,4)}, v{A_KR} offset:{LKV + i*4096 + t*1024}" for t in range(2)]
def vread(i, buf):
    return [f"ds_read_b64_tr_b16 {vr(AV+8*buf+4*t+2*rho,2)}, v{A_VR+rho} offset:{LKV + i*4096 + t*256}" for t in range(2) for rho in range(2)]
def qk(i, sbuf, kbuf, c):
    s = AS + 16 * sbuf
    return [mfma(s, AK + 8 * kbuf, AQ, c), mfma(s, AK + 8 * kbuf + 4, AQ + 4, s)]

def attention(P, o, hooks, kpre=False):
    T = V_T
    order = ORDER
    stamp(P, o, 'att_go')
    sb = lambda n: n % 4
    gi = [0]
    def hk():
        gi[0] += 1
        return [Slot(f'a{gi[0] - 1}')] if hooks is None else sum(hooks.get(gi[0] - 1, []), [])
    if not kpre: P.add(kread(order[0], 0)); P.add(kread(order[1], 1))
    def maxops(s, first):
        L = []
        for i in range(8):
            if first and i == 0: L.append(f"v_max_f32 v{A_MX}, v{s}, v{s+1}")
            else: L.append(f"v_max3_f32 v{A_MX}, v{s+2*i}, v{s+2*i+1}, v{A_MX}")
        return L
    merge = [f"v_cndmask_b32_e64 v{AS+16+r}, v{AS+r}, v{AS+16+r}, {sr(S_MASK+2*r)}" for r in range(16)]
    for n in range(9):
        m = qk(order[n], sb(n), n & 1, None)
        post = []
        if n == 3: post = merge
        if n == 4: post = maxops(AS + 16, True) + maxops(AS + 16 * sb(2), False)
        if n >= 5: post = maxops(AS + 16 * sb(n - 2), False)
        nxt = kread(order[n + 2], n & 1) if n + 2 < 9 else kread(order[n + 2 - 9], n & 1)
        h = len(post) // 2
        P.add([m[0]] + hk() + post[:h] + [m[1]] + nxt + hk() + post[h:])
    P.add(vread(0, 0)); P.add(vread(8, 1))
    P.add(maxops(AS + 16 * sb(7), False))
    P.add(maxops(AS + 16 * sb(8), False))
    P(f"v_mov_b32 v{T}, v{A_MX}")
    P(f"v_permlane32_swap_b32 v{A_MX}, v{T}")
    P(f"v_max_f32 v{A_MX}, v{A_MX}, v{T}")
    P(f"v_sub_f32 v{AN}, 0, v{A_MX}")
    P(f"v_sub_f32 v{AN+1}, 0, v{A_MX}")
    for i in range(1, 8): P(f"v_mov_b64 {vr(AN+2*i,2)}, {vr(AN,2)}")
    stamp(P, o, 'att_p1')
    kb = lambda n: (n + 1) & 1
    def expcvt(s, p):
        L = []
        for i in range(8):
            L += [f"v_exp_f32 v{s+2*i}, v{s+2*i}", f"v_exp_f32 v{s+2*i+1}, v{s+2*i+1}"]
            if i >= 1: L.append(f"v_cvt_pk_bf16_f32 v{p+i-1}, v{s+2*i-2}, v{s+2*i-1}")
        L.append(f"v_cvt_pk_bf16_f32 v{p+7}, v{s+14}, v{s+15}")
        return L
    def pv(p, vbuf, first=False):
        return [mfma(AO, AV + 8 * vbuf, p, None if first else AO), mfma(AO, AV + 8 * vbuf + 4, p + 4, AO)]
    m0 = qk(0, 0, kb(0), AN); m1 = qk(8, 1, kb(1), AN)
    P.add([m0[0]] + hk() + [m0[1]] + kread(order[2], kb(2)) + hk() + [m1[0]] + hk() + [m1[1]] + kread(order[3], kb(3)) + hk())
    m2 = qk(order[2], 2, kb(2), AN)
    P.add([m2[0]] + hk() + [m2[1]] + kread(order[4], kb(4)) + hk() + merge)
    ec = expcvt(AS + 16, AP)
    sp = []
    for i in range(8):
        sp += [f"v_and_b32 v{AP+8+i}, v{AP+i}, v{AM+i}", f"v_xor_b32 v{AP+16+i}, v{AP+i}, v{AP+8+i}"]
    m3 = qk(order[3], 0, kb(3), AN)
    P.add(ec[:8] + [m3[0]] + hk() + ec[8:16] + [m3[1]] + kread(order[5], kb(5)) + hk() + ec[16:] + sp)
    pend = pv(AP + 16, 0, True) + pv(AP + 8, 1)
    pend_rd = vread(order[2], 0) + vread(order[3], 1)
    for n in range(2, 9):
        p = AP + 16 if n == 3 else (AP if (n & 1) == 0 else AP + 8)
        ec = expcvt(AS + 16 * (n % 3), p)
        mq = qk(order[n + 2], (n + 2) % 3, kb(n + 2), AN) if n + 2 < 9 else []
        kr = kread(order[n + 4], kb(n + 4)) if n + 4 < 9 else []
        ms = pend + mq
        seq = []
        k = len(ms)
        step = max(1, len(ec) // max(k, 1))
        ei = 0
        for j, mm in enumerate(ms):
            seq.append(mm)
            if j == len(pend) - 1: seq += pend_rd
            if j == k - 1 and mq: seq += kr
            seq += hk()
            take = ec[ei:ei + step] if j < k - 1 else ec[ei:]
            seq += take; ei += len(take)
        P.add(seq)
        vb = n & 1
        pend = pv(p, vb)
        pend_rd = vread(order[n + 2], vb) if n + 2 < 9 else []
    P.add([pend[0]] + hk() + [pend[1]] + hk())
    P(f"s_cmp_eq_u32 s{S_PAR}, 0")
    P(f"s_cselect_b64 {sr(S_T0)}, -1, 0")
    stamp(P, o, 'att_p2')
    P(f"v_cndmask_b32_e64 v{T}, v{AO}, v{AO+12}, {sr(S_T0)}")
    P(f"v_mov_b32 v{T+1}, v{T}")
    P(f"v_permlane32_swap_b32 v{T}, v{T+1}")
    P(f"v_cndmask_b32_e64 v{T}, v{T}, v{T+1}, {sr(S_T0)}")
    P(f"v_rcp_f32 v{T}, v{T}")
    P(f"s_cselect_b32 s{S_T0}, 0, -1")
    P(f"v_mul_f32 v{T+1}, v{T}, v{A_G}")
    P(f"s_mov_b32 s{S_T1}, 0")
    P(f"s_mov_b32 s{S_T2}, 0")
    P(f"s_cselect_b32 s{S_T3}, -1, 0")
    for i in range(8):
        P(f"v_pk_mul_f32 {vr(AO+2*i,2)}, {vr(AO+2*i,2)}, {vr(T+1,2)} op_sel_hi:[1,0]")
    for i in range(8):
        P(f"v_cvt_pk_bf16_f32 v{AP+i}, v{AO+2*i}, v{AO+2*i+1}")
    for r, m in ((0, S_T0), (1, S_T0), (6, S_T2), (7, S_T2)):
        P(f"v_cndmask_b32_e64 v{AP+r}, v{AP+r}, 0, {sr(m)}")
    for t in range(2):
        P(f"buffer_store_dwordx4 {vr(AP+4*t,4)}, v{V_L16}, {sr(SRD_WS,4)}, s{S_OST} offen offset:{t*1024} {SC}", tag='ost')
    stamp(P, o, 'att_end')

LACC = 16
EARLY = [('a', r) for r in range(32, 112, 4)] + list(range(160, 200, 4)) + list(range(204, 216, 4))
LATE = list(range(80, 136, 4)) + list(range(144, 160, 4)) + list(range(236, 252, 4)) + [136, 140]

def last_baddr(P, o):
    T = V_T
    P(f"s_mov_b64 {sr(SRD_W2)}, {sr(S_W2)}")
    srd_rest(P, [(SRD_W2, 1792*896)])
    P(f"s_mul_i32 s{S_BOF}, s{S_WAVE}, {448*896}")
    P(f"s_lshl_b32 s{S_T3}, s{S_C}, 7")
    P(f"s_add_u32 s{S_BOF}, s{S_BOF}, s{S_T3}")
    P(f"v_lshrrev_b32 v{T}, 3, v{V_LANE}")
    P(f"v_bfe_u32 v{T+1}, v{V_LANE}, 4, 1")
    P(f"v_lshlrev_b32 v{T+1}, 2, v{T+1}")
    P(f"v_xor_b32 v{T+1}, v{T+1}, v{V_LANE}")
    P(f"v_and_b32 v{T+1}, 7, v{T+1}")
    P(f"v_mul_u32_u24 v{T}, 896, v{T}")
    P(f"v_lshl_add_u32 v{V_BA}, v{T+1}, 4, v{T}")
    for i in range(1, 4): P(f"v_add_u32 v{V_BA+i}, {i*(8*896-1024)}, v{V_BA}")
    P(f"v_bfe_u32 v{T}, v{V_LANE}, 2, 2")
    P(f"v_lshrrev_b32 v{T+1}, 5, v{V_LANE}")
    P(f"v_lshl_add_u32 v{T+1}, v{T+1}, 2, v{T}")
    P(f"v_lshlrev_b32 v{T+1}, 7, v{T+1}")
    P(f"v_bfe_u32 v{T+2}, v{V_LANE}, 4, 1")
    P(f"v_lshl_add_u32 v{T+1}, v{T+2}, 5, v{T+1}")
    P(f"v_and_b32 v{T+2}, 3, v{V_LANE}")
    P(f"v_lshl_add_u32 v{T+1}, v{T+2}, 3, v{T+1}")
    P(f"v_lshrrev_b32 v{T}, 1, v{T}")
    P(f"v_lshl_add_u32 v{T}, v{T}, 6, v{T+1}")
    P(f"v_add_u32 v{T}, s{S_M4}, v{T}")
    P(f"s_lshr_b32 s{S_T0}, s{S_WAVE}, 1")
    P(f"s_lshl_b32 s{S_T0}, s{S_T0}, 6")
    P(f"v_xor_b32 v{V_BR[0][1]}, s{S_T0}, v{T}")
    P(f"v_xor_b32 v{V_BR[0][0]}, 64, v{V_BR[0][1]}")
    for k in range(2): P(f"v_add_u32 v{V_BR[1][k]}, 0x10000, v{V_BR[0][k]}")

V_AT = 201
def last_baddr2(P, o):
    P(f"v_lshrrev_b32 v{V_T}, 5, v{V_LANE}")
    P(f"v_mul_u32_u24 v{V_T}, {A_TB - 4096}, v{V_T}")
    P(f"v_lshl_add_u32 v{V_T}, v{V_LANE}, 7, v{V_T}")
    P(f"s_lshl_b32 s{S_T0}, s{S_C}, 12")
    P(f"v_add_u32 v{V_AT}, s{S_T0}, v{V_T}")
    for k in range(2): P(f"v_add_u32 v{V_BR[2][k]}, 0x20000, v{V_BR[0][k]}")

def last_setup(P, o):
    T = V_T
    P(f"s_lshl_b32 s{S_T0}, s{S_C}, 7")
    P(f"v_and_b32 v{T}, 31, v{V_LANE}")
    P(f"v_lshl_add_u32 v{T+1}, v{T}, 2, s{S_T0}")
    P(f"global_load_dword v{V_DUM}, v{T+1}, {sr(S_B2)}")
    P(f"s_and_b32 s{S_T1}, s{S_WAVE}, 1")
    P(f"s_mul_i32 s{S_T2}, s{S_T1}, {A_TB}")
    P(f"s_sub_u32 s{S_T3}, {A_TB}, s{S_T2}")
    P(f"v_add_u32 v{V_AA}, s{S_T3}, v{V_L16}")
    P(f"v_add_u32 v{V_AA+1}, s{S_T2}, v{V_L16}")
    P(f"v_and_b32 v{T+1}, 1, v{V_LANE}")
    P(f"s_lshl_b32 s{S_T0}, s{S_R}, 1")
    P(f"v_add_u32 v{T+1}, s{S_T0}, v{T+1}")
    P(f"v_lshlrev_b32 v{T+1}, 4, v{T+1}")
    P(f"v_bfe_u32 v{T+2}, v{V_LANE}, 1, 2")
    P(f"v_add_u32 v{T+1}, v{T+1}, v{T+2}")
    P(f"v_lshlrev_b32 v{T+1}, 7, v{T+1}")
    P(f"s_mul_i32 s{S_T0}, s{S_WAVE}, 7")
    P(f"s_lshr_b32 s{S_T0}, s{S_T0}, 1")
    P(f"s_lshl_b32 s{S_T0}, s{S_T0}, 7")
    P(f"s_add_u32 s{S_T0}, s{S_T0}, {FL_H}")
    P(f"v_add_u32 v{V_PH}, s{S_T0}, v{T+1}")
    P(f"s_lshl_b32 s{S_T0}, s{S_WAVE}, 9")
    P(f"s_add_u32 s{S_T0}, s{S_T0}, {FL_O}")
    P(f"v_add_u32 v{V_PO}, s{S_T0}, v{T+1}")
    for d in range(1, 4):
        P(f"s_xor_b32 s{S_T0}, s{S_WAVE}, {d}")
        P(f"s_mul_i32 s{S_T0}, s{S_T0}, 12288")
        P(f"s_add_u32 s{S_T0}, s{S_T0}, {LRED + (d-1)*4096}")
        P(f"v_add_u32 v{L_RW+d-1}, s{S_T0}, v{V_L16}")
    P(f"s_mul_i32 s{S_T0}, s{S_WAVE}, 12288")
    P(f"v_add_u32 v{L_RR}, s{S_T0}, v{V_L16}")
    P(f"s_lshl_b32 s{S_T0}, s{S_R}, 6")
    P(f"s_lshl_b32 s{S_T2}, s{S_T1}, 5")
    P(f"s_add_u32 s{S_T0}, s{S_T0}, s{S_T2}")
    P(f"v_add_u32 v{T+1}, s{S_T0}, v{T}")
    P(f"v_mul_u32_u24 v{T+1}, 896, v{T+1}")
    P(f"v_lshrrev_b32 v{T+2}, 5, v{V_LANE}")
    P(f"v_lshl_add_u32 v{T+1}, v{T+2}, 4, v{T+1}")
    P(f"s_lshl_b32 s{S_T0}, s{S_C}, 7")
    P(f"s_lshr_b32 s{S_T2}, s{S_WAVE}, 1")
    P(f"s_lshl_b32 s{S_T2}, s{S_T2}, 6")
    P(f"s_add_u32 s{S_T0}, s{S_T0}, s{S_T2}")
    P(f"v_add_u32 v{L_OA}, s{S_T0}, v{T+1}")

def last_soff(P, o):
    P(f"s_mul_i32 s{S_T0}, s{S_R}, {2*A_TB}")
    P(f"s_add_u32 s{S_T0}, s{S_T0}, {A_OFF}")
    P(f"s_lshl_b32 s{S_T2}, s{S_WAVE}, 13")
    P(f"s_add_u32 s{S_AO2}, s{S_T0}, s{S_T2}")
    P(f"s_add_u32 s{S_AO2}, s{S_AO2}, {112*1024}")
    P(f"s_mul_i32 s{S_T2}, s{S_WAVE}, {28*1024}")
    P(f"s_add_u32 s{S_AOF}, s{S_T0}, s{S_T2}")
    P(f"s_mov_b64 {sr(SRD_WO)}, {sr(S_WO)}")
    P(f"s_mov_b32 s{SRD_WO+2}, {448*896}")
    P(f"s_mul_i32 s{S_BO}, s{S_WAVE}, {112*896}")
    P(f"s_lshl_b32 s{S_T3}, s{S_C}, 7")
    P(f"s_add_u32 s{S_BO}, s{S_BO}, s{S_T3}")

def bias2(P, o):
    P(f"s_add_u32 s{S_T0}, s{S_M4}, {LP[PIECE[11]]}")
    bias_expand(P, V_DUM, 12, L_BA, S_T0)
    P(f"s_lshr_b32 s{S_T2}, s{S_WAVE}, 1")
    P(f"s_lshl_b32 s{S_T2}, s{S_T2}, 7")
    P(f"v_add_u32 v{L_BA}, s{S_T2}, v{L_BA}")
    P(f"v_sub_f32 v{L_G}, 1.0, v{L_G}")
    P(f"v_sub_f32 v{L_G+1}, 1.0, v{L_G+1}")

def a_slots(o):
    ne = o.nearly * 2
    sl = EARLY[:ne] + LATE + EARLY[ne:]
    ring = len(sl) // 2 * 2
    return [sl[i % ring] for i in range(72)], ring // 2

def a_load(o, n):
    sl, _ = a_slots(o)
    so, m = (S_AOF, n) if n < 28 else (S_AO2, n - 28)
    L = [f"s_add_u32 s{so}, s{so}, 4096"] if (m and m % 4 == 0) else []
    for ttl in range(2):
        L.append((f"buffer_load_dwordx4 {xr(sl[2*n+ttl])}, v{V_AA+ttl}, {sr(SRD_WS,4)}, s{so} offen offset:{(m&3)*1024} {SC}", 'ald'))
    return L

def last(P, o):
    q = lambda ttl, ctl: LACC + 32 * ttl + 16 * ctl
    sl, depth = a_slots(o)
    mm = lambda n, ttl, ctl: mfma(q(ttl, ctl), breg(n, ctl), sl[2 * n + ttl], None if n == 0 else q(ttl, ctl))
    if o.nearly == 0:
        poll(P, o, V_PH)
        P.add(flag_store(S_OFL))
    nxt = o.nearly
    while nxt < max(o.lead, o.nearly): P.add(a_load(o, nxt)); nxt += 1
    P("s_barrier")
    stamp(P, o, 'last_go')
    opolled = False
    D = Prog(); bias2(D, o); b2l = [[x] for x in D.L]
    for n in range(28):
        M = [mm(n, ttl, ctl) for ttl in range(2) for ctl in range(2)]
        ex = []; cnt = 0
        top = (36 if opolled else 28)
        if o.left and n < o.left_steps:
            k = -(-len(o.left) // (o.left_steps - n)); ex += o.left[:k]; o.left = o.left[k:]
        while nxt < min(n + min(depth, (o.olead if nxt >= 28 else o.lead) + 1), top) and cnt < 2:
            ex += merge_salu([[e] for e in a_load(o, nxt)]); nxt += 1; cnt += 1
        if o.jit0 <= n < o.jit0 + 14 and not o.drop & 32:
            k = n - o.jit0 + 22
            ex += [[WVM(f'bp{k >> 1}')] + b_reads(k)[:2], b_reads(k)[2:]]
        if o.jit0 + 3 <= n < o.jit0 + 6: ex += b2l[((n - o.jit0 - 3) * len(b2l)) // 3:((n - o.jit0 - 2) * len(b2l)) // 3]
        if n == o.oflag_at and o.nearly > 0:
            D0 = Prog(); D1 = Prog()
            if o.fine: stamp(D0, o, 'of0'); stamp(D1, o, 'of1')
            ex = ex + [D0.L + [WVM('ost')] + D1.L + flag_store(S_OFL)]
        if n == o.opoll_at: ex += [poll_issue(V_PO)]
        if n == o.ocheck_at:
            D0 = Prog(); D1 = Prog()
            if o.fine: stamp(D0, o, 'oc0'); stamp(D1, o, 'oc1')
            ex = [D0.L + poll_check(V_PO) + D1.L] + ex; opolled = True
        if o.hst and n % 4 == 0 and n: stamp(P, o, f'h{n}')
        hh = {}
        if ex: spread(hh, ex, [0, 1, 2, 3])
        for t in range(4): P.add([M[t]] + sum(hh.get(t, []), []))
    stamp(P, o, 'last_h')
    while nxt < 36: P.add(a_load(o, nxt)); nxt += 1
    used = set(sl[56:72])
    free = [r for r in sorted(x for x in set(sl) if not isinstance(x, tuple)) if r not in used]
    B2 = [r for r in free if all((r + 4 * k) in free for k in range(4))][0]
    for k in range(4): P(f"ds_read_b128 {vr(B2+4*k,4)}, v{L_BA} offset:{32*k}")
    sc = lambda ttl, ctl: [f"v_mul_f32 v{q(ttl,ctl)+i}, v{L_G+ttl}, v{q(ttl,ctl)+i}" for i in range(16)]
    P.add(sc(0, 0) + sc(0, 1))
    rest = sc(1, 0) + [f"v_add_f32 v{q(1,1)+i}, v{q(1,1)+i}, v{B2+i}" for i in range(16)] + sc(1, 1)
    M = []
    for n in range(28, 36): M += [[mm(n, 0, 0)], [mm(n, 0, 1)]]
    P.add(interleave(M, rest))
    wr = lambda ttl, ctl: [f"ds_write_b128 v{L_RW + ((1-ttl) | ((1-ctl) << 1)) - 1}, {vr(q(ttl,ctl)+4*i,4)} offset:{i*1024}" for i in range(4)]
    w = wr(0, 0) + wr(0, 1)
    seq = []
    for i, n in enumerate(range(28, 36)):
        seq.append(mm(n, 1, 0))
        if i >= 2: seq += w[:2]; w = w[2:]
    seq += w
    w = wr(1, 0)
    for i, n in enumerate(range(28, 36)):
        seq.append(mm(n, 1, 1))
        if i >= 3 and w: seq.append(w.pop(0))
    P.add(seq + w)
    P("s_waitcnt lgkmcnt(0)")
    P("s_barrier")
    stamp(P, o, 'last_o')
    R = 80
    for d in range(3):
        for i in range(4):
            P(f"ds_read_b128 {vr(R+16*d+4*i,4)}, v{L_RR} offset:{d*4096 + i*1024}")
    o_ = q(1, 1)
    for d in range(3):
        for i in range(8):
            P(f"v_pk_add_f32 {vr(o_+2*i,2)}, {vr(o_+2*i,2)}, {vr(R+16*d+2*i,2)}")
    p = R + 48
    for i in range(8): P(f"v_cvt_pk_bf16_f32 v{p+i}, v{o_+2*i}, v{o_+2*i+1}")
    for h in range(2):
        P(f"v_permlane32_swap_b32 v{p+4*h}, v{p+4*h+2}")
        P(f"v_permlane32_swap_b32 v{p+4*h+1}, v{p+4*h+3}")
    for h in range(2):
        P(f"buffer_store_dwordx4 {vr(p+4*h,4)}, v{L_OA}, {sr(SRD_OUT,4)}, 0 offen offset:{32*h}")
    stamp(P, o, 'end')

HEADER = open('cdna_kernels/' + NAME + '.s.ref').read().split('; Override launch')[0]

def finish(P, o, name):
    for sp in slow_paths:
        P.forget(); P(sp)
    L = finalize(P, True)
    out = HEADER + f"; @launch grid=(256,1,1) block=(256,1,1) lds={LDS_BYTES}\n"
    out += '.amdgcn_target "amdgcn-amd-amdhsa--gfx950"\n.text\n'
    out += f".globl {name}\n.p2align 8\n.type {name},@function\n{name}:\n" + text(L)
    out += "s_endpgm\n.fill 2048, 4, 0xbf800000\n"
    out += f""".section .rodata,"a"
.p2align 6
.amdhsa_kernel {name}
  .amdhsa_next_free_vgpr 512
  .amdhsa_next_free_sgpr 102
  .amdhsa_accum_offset 256
  .amdhsa_group_segment_fixed_size 0
  .amdhsa_kernarg_size 96
  .amdhsa_user_sgpr_count 2
  .amdhsa_user_sgpr_kernarg_segment_ptr 1
  .amdhsa_system_sgpr_workgroup_id_x 1
.end_amdhsa_kernel
"""
    if o.diag is not None:
        out = out.replace('DIAG_I', str(o.stamp_names.index(o.diag[0]))).replace('DIAG_J', str(o.stamp_names.index(o.diag[1])))
    return out

def groups(fn, o):
    D = Prog(); fn(D, o); return atomic_groups(D.L)

def build(o):
    name = NAME + "_kernel"
    R = lambda a, b: list(range(a, b))
    P = Prog(); setup(P, o, "L_end")
    P(f"s_cmp_eq_u32 s{S_C}, 7")
    P("s_cbranch_scc1 L_prep")
    H = Gaps()
    def first(D, o):
        s1_w1_addr(D, o)
        if o.w1t: w1_touch(D, o)
        common2(D, o); s1_misc(D, o)
        D(f"buffer_load_dword v{V_TAG}, v{V_FLAGOFF}, {sr(SRD_WS,4)}, 0 offen")
        last_baddr(D, o)
        att_scalars(D, o)
        if not o.b1late: bias1(D, o)
        att_poll_addr(D, o); att_addr(D, o)
        if o.b1late: bias1(D, o)
        if o.mka: att_masks(D, o)
        D(f"v_readfirstlane_b32 s{S_TAG}, v{V_TAG}"); D.add(TAGOPS)
        for i in range(o.wact):
            D(f"s_mul_i32 s{S_T4}, s{S_RBL}, 7")
            D(f"s_add_u32 s{S_T4}, s{S_T4}, s{S_C}")
            D(f"s_lshl2_add_u32 s{S_T4}, s{S_T4}, s{S_WAVE}")
            D(f"s_add_u32 s{S_T4}, s{S_T4}, {16*o.wsp + 112*i}")
            warm_touch(D, S_T4, 161 + i, S_T0, V_L128)
    H.put('v', groups(first, o), 0, o.su_end)
    H.put('m', bias1_reads(), o.b1r, 84)
    def first2(D, o): att_kvoff(D, o); last_soff(D, o)
    H.put('v', groups(first2, o), o.su_end, 84)
    pass_a(P, o, H)
    qkv_epilogue(P, o)
    stamp(P, o, 'qkv_epi')
    H = Gaps()
    def second(D, o):
        last_setup(D, o)
        if not o.mka: att_masks(D, o)
    H.put('v', groups(second, o), 0, 50)
    for i, g in enumerate(o.l2t):
        D = Prog(); l2_touch(D, o, i); H.put('v', [D.L], g, g + 1)
    dm = lambda a, b: merge_salu([it for p in range(a, b) for it in b_dma(p)])
    rd = lambda a, b: [[WVM(f'bp{n >> 1}')] + b_reads(n)[:2] if k == 0 else b_reads(n)[2:] for n in range(2 * a, 2 * b) for k in range(2)]
    b = o.pb
    kv = merge_salu(att_loads(o))
    def put_m0(items, g0, g1):
        own = lambda g: 12 <= g < 52 and (g - 12) % 16 < 8
        free = [g for g in range(g0, g1) if not own(g)]
        runs = []; cur = []
        for it in items:
            if any(isinstance(x, str) and ' m0,' in x for x in it) and cur: runs.append(cur); cur = []
            cur.append(it)
        runs.append(cur)
        n = len(runs)
        for i, r in enumerate(runs):
            sl = free[(i * len(free)) // n:((i + 1) * len(free)) // n]
            keep = [sl[0]]
            for g in sl[1:]:
                if g != keep[-1] + 1: break
                keep.append(g)
            spread(H.m, r, keep)
    for c in range(3): H.put('m', merge_salu(dma_b(c + 4)), 16 * c + 12, 16 * c + 20)
    if not o.drop & 1: put_m0(dm(0, o.n1), b[0], b[1])
    H.put('m', [[WVM('qst')] + flag_store(S_QFL)], o.qflag, o.qflag + 1)
    H.put('m', [poll_issue(V_PA)], o.kpoll, o.kpoll + 1)
    kvl = kv[o.nkv:]
    if not o.drop & 4: put_m0([['s_waitcnt lgkmcnt(0)', 's_barrier'] * (o.n1 > 4) + poll_check(V_PA) + kv[0]] + kv[1:o.nkv], o.kcheck, o.kend)
    if not o.drop & 2: H.put('m', rd(0, o.n1), b[2], b[3])
    pt = att_patch()
    if o.patch < 112:
        H.put('m', pt[:4], o.patch, o.patch + 2)
        H.put('v', pt[4:], o.patch + 2, 112)
    pass_b(P, o, H)
    P("s_waitcnt lgkmcnt(0)")
    P("s_barrier")
    stamp(P, o, 'pass_b')
    if o.trunc:
        stamp_flush(P, o); P("s_endpgm"); P.forget(); P("L_prep:"); prep(P, o); stamp_flush(P, o); P("L_end:"); P("s_endpgm")
        return finish(P, o, name)
    last_baddr2(P, o)
    na = 11 + (o.n1 - 4)
    Q = Prog(); held = []
    for F in range(4):
        g = gelu_tile(F)
        for i, x in enumerate(g[:-2]):
            if i % 4 == 0: Q.L.append(Slot(f'g{F}_{i}'))
            Q.add([x])
        held += g[-2:]
        if F >= o.kvt - 1:
            Q.L.append(Slot(f'gs{F}')); Q.add(held); held = []
        if F == o.patch_t:
            if o.fine: stamp(Q, o, 'pt0')
            Q.add(pt[0])
            if o.fine: stamp(Q, o, 'pt1')
            for it in pt[1:]: Q.add(it)
    Q("s_waitcnt lgkmcnt(0)"); Q("s_barrier")
    stamp(Q, o, 'gelu')
    attention(Q, o, None)
    seen = lambda n: (lambda st: n in st['seen'])
    after = lambda key, dt: (lambda st: key in st['done'] and st['t'] >= st['done'][key] + dt)
    both = lambda a, b: (lambda st: a(st) and b(st))
    dstream = [(it, None, f'kv{i}') for i, it in enumerate(kvl)]
    for p in range(o.n1, 18):
        its = merge_salu(b_dma(p))
        for i, it in enumerate(its):
            cond = None
            if p == o.n1 and i == 0: cond = seen(o.ra0)
            if p >= na and i == 0:
                prev = [q for q in range(o.n1, p) if PIECE[q] == PIECE[p]][-1]
                cond = after(f'rd{prev}', 60); it = [WLG(f'rd{prev}')] + it
            if o.pause:
                c0 = cond
                cond = (lambda c0: lambda st: (c0 is None or c0(st)) and (o.pause_at not in st['seen'] or f'a{o.resume}' in st['seen']))(c0)
            dstream.append((it, cond, f'dm{p}' if i == len(its) - 1 else 'x'))
    rstream = []
    for p in range(o.n1, 11):
        r = b_reads(2 * p) + b_reads(2 * p + 1)
        for k in range(4):
            it = [(x, f'rd{p}') for x in r[2 * k:2 * k + 2]]
            rstream.append(([WVM(f'bp{p}')] * (k == 0) + it, both(after(f'dm{p}', o.lat), seen('a0')) if k == 0 else None, f'rd{p}' if k == 3 else 'x'))
    def st_(n):
        D = Prog()
        if o.fine: stamp(D, o, n)
        return D.L
    names0 = list(o.stamp_names)
    fstream = [(st_('hf0') + [WVM('hst')] + st_('hf1') + flag_store(S_HFL), seen(f'a{o.hflag}'), 'hf')]
    if o.nearly > 0:
        fstream.append((poll_issue(V_PH), seen(f'a{o.hpoll}'), 'hp'))
        al = merge_salu([[x] for n in range(o.nearly) for x in a_load(o, n)])
        if o.atouch:
            tch = [f"buffer_load_dword v{V_AT}, v{V_AT}, {sr(SRD_WS,4)}, s{S_AOF} offen {SC}"]
            fstream.append((st_('hc0') + poll_check(V_PH) + st_('hc1') + tch, seen(f'a{o.hcheck}'), 'hc'))
            fstream += [(it, seen(f'a{o.ea0}'), 'ea') for it in al]
        else:
            fstream.append((st_('hc0') + poll_check(V_PH) + st_('hc1') + al[0], seen(f'a{o.hcheck}'), 'hc'))
            fstream += [(it, None, 'ea') for it in al[1:]]
    L, t = place(Q.L, {'f': fstream, 'r': rstream, 'd': dstream}, gap=o.gap, burst=o.burst)
    kvpos = max([i for i, x in enumerate(L) if isinstance(x, I) and x.tag == 'kv'] + [-1]); hpos = min(i for i, x in enumerate(L) if isinstance(x, I) and x.tag == 'hst')
    print('estimated gelu+attention cycles', t, 'left', len(dstream), len(rstream), len(fstream), 'kv before h stores', kvpos < hpos)
    assert not rstream
    P.L += L
    for it, _, _ in fstream: P.add(it)
    o.left = [it for it, _, _ in dstream]
    last(P, o)
    stamp_flush(P, o)
    P("s_endpgm")
    P.forget()
    P("L_prep:")
    prep(P, o)
    att_scalars(P, o); att_poll_addr(P, o); att_addr(P, o); att_masks(P, o); att_kvoff(P, o)
    poll(P, o, V_PA)
    for it in att_loads(o, False) + att_patch(): P.add(it)
    P("s_waitcnt lgkmcnt(0)")
    P("s_barrier")
    st, o.stamps = o.stamps, False
    attention(P, o, {})
    o.stamps = st
    P("s_waitcnt vmcnt(0)")
    P.add(flag_store(S_OFL))
    stamp(P, o, 'p_att')
    stamp_flush(P, o)
    P(f"s_cmp_eq_u32 s2, 56")
    P("s_cbranch_scc0 L_end")
    P(f"s_cmp_eq_u32 s{S_WAVE}, 0")
    P("s_cbranch_scc0 L_end")
    P(f"v_lshlrev_b32 v{V_PA}, 7, v{V_LANE}")
    P(f"s_mov_b32 s{S_CNT}, 4000")
    P("L_ep:")
    for i in range(16):
        P(f"s_mov_b32 s{S_T0}, {FL_O + i*8192}")
        P(f"buffer_load_dwordx2 {vr(16+2*i,2)}, v{V_PA}, {sr(SRD_WS,4)}, s{S_T0} offen sc1")
    P("s_waitcnt vmcnt(0)")
    P(f"s_mov_b64 {sr(S_T0)}, 0")
    for i in range(16):
        P(f"v_cmp_ne_u64 vcc, {sr(S_TAG)}, {vr(16+2*i,2)}")
        P(f"s_or_b64 {sr(S_T0)}, {sr(S_T0)}, vcc")
    P(f"s_sub_u32 s{S_CNT}, s{S_CNT}, 1")
    P("s_cbranch_scc1 L_end")
    P(f"s_cmp_eq_u64 {sr(S_T0)}, 0")
    P("s_cbranch_scc0 L_ep")
    P(f"buffer_store_dword v{V_TAG}, v{V_FLAGOFF}, {sr(SRD_WS,4)}, 0 offen sc1")
    P("L_end:")
    P("s_endpgm")
    return finish(P, o, name)

DEFAULTS = dict(olead=6, atouch=0, ea0=46, fine=0, pause=1, pause_at='gs1', resume=0, burst=2, gap=64, lat=700, ra0='g0_0', l2t=(), kvt=2, patch_t=1, pw=0, b1late=1, w1t=0, mw=1, drop=0, trunc=0, ncls=3, wsp=0, wact=0, su_end=72, bq_end=84, mka=1, n1=4,
                b1r=60, pb=(52, 84, 88, 104), qflag=40, kpoll=74, kcheck=86, kend=112, nkv=14, patch=112,
                nb_gelu=(0, 0, 3, 3), pa=(0, 22, 20, 32, 50), nrb=20, left_steps=4, hflag=6, nearly=3, hpoll=36, hcheck=50,
                lead=6, jit0=8, oflag_at=4, opoll_at=13, ocheck_at=20, hst=0, code_bytes=32768)

if __name__ == '__main__':
    o = Opt()
    for k, v in DEFAULTS.items(): setattr(o, k, v)
    o.stamps = 'stamps' in sys.argv; o.diag = None; o.stamp_names = []
    o.clk = 's_memtime' if 'cyc' in sys.argv else 's_memrealtime'
    for a in sys.argv[2:]:
        if '=' not in a: continue
        k, v = a.split('=')
        if k == 'diag':
            i, j, K = v.split(','); o.diag = (i, j, int(K)); o.stamps = True
        elif k in ('ra0', 'pause_at'): setattr(o, k, v)
        elif ',' in v: setattr(o, k, tuple(int(x) for x in v.split(',') if x))
        else: setattr(o, k, int(v))
    plan(o.n1)
    s = build(o)
    open(sys.argv[1], 'w').write(s)
    if o.stamps: open(sys.argv[1] + '.names', 'w').write('\n'.join(o.stamp_names))
```

```python
import re

REG_RE = re.compile(r'^(-|\|)?(abs\()?([vas])(\d+|\[(\d+):(\d+)\])\)?\|?$')

def parse_reg(tok):
    tok = tok.strip()
    if tok in ('vcc',): return [('s', 'vcc_lo'), ('s', 'vcc_hi')]
    if tok in ('vcc_lo', 'vcc_hi', 'exec_lo', 'exec_hi', 'm0'): return [('s', tok)]
    if tok == 'exec': return [('s', 'exec_lo'), ('s', 'exec_hi')]
    m = REG_RE.match(tok)
    if not m: return []
    k = m.group(3)
    if m.group(5) is not None:
        return [(k, i) for i in range(int(m.group(5)), int(m.group(6)) + 1)]
    return [(k, int(m.group(4)))]

TRANS = ('v_exp_f32', 'v_log_f32', 'v_rcp_f32', 'v_rsq_f32', 'v_sqrt_f32', 'v_sin_f32', 'v_cos_f32', 'v_rcp_iflag_f32')

class I:
    def __init__(self, text, tag=None):
        self.text = text
        self.tag = tag
        self.kind = 'other'
        self.dst = []; self.src = []
        self.srcC = []; self.srcAB = []
        self.stdata = []
        self.op = ''
        self.parse()

    def parse(self):
        t = self.text.split(';')[0].strip()
        if not t: self.kind = 'comment'; return
        if t.endswith(':'): self.kind = 'label'; return
        if t.startswith('.'): self.kind = 'directive'; return
        parts = t.split(None, 1)
        op = parts[0]; self.op = op
        base = re.sub(r'_(e32|e64|sdwa|dpp)$', '', op)
        self.base = base
        rest = parts[1] if len(parts) > 1 else ''
        ops = [o.strip() for o in re.split(r',(?![^\[]*\])', rest)] if rest else []
        mods = ''
        if ops:
            last = ops[-1].split(None, 1)
            ops[-1] = last[0]
            if len(last) > 1: mods = last[1]
        self.mods = mods
        R = [parse_reg(o) for o in ops]
        flat = lambda L: [x for l in L for x in l]
        if op.startswith('v_mfma'):
            self.kind = 'mfma'; self.dst = R[0]; self.srcAB = R[1] + R[2]; self.srcC = R[3]; self.src = flat(R[1:])
            self.passes = 8 if '32x32' in op else 4
        elif op.startswith('v_'):
            self.kind = 'valu'
            self.trans = base in TRANS
            if base.startswith('v_cmp'):
                self.dst = R[0]; self.src = flat(R[1:])
                if base.startswith('v_cmpx'): self.dst = self.dst + parse_reg('exec')
            elif base.startswith('v_permlane') and 'swap' in base:
                self.dst = R[0] + R[1]; self.src = R[0] + R[1]
            elif base in ('v_add_co_u32', 'v_sub_co_u32', 'v_subrev_co_u32'):
                self.dst = R[0] + R[1]; self.src = flat(R[2:])
            elif base in ('v_addc_co_u32', 'v_subb_co_u32'):
                self.dst = R[0] + R[1]; self.src = flat(R[2:])
            elif base == 'v_nop':
                pass
            else:
                self.dst = R[0]; self.src = flat(R[1:])
                if base in ('v_fmac_f32', 'v_dot2c_f32_bf16', 'v_pk_fmac_f16', 'v_writelane_b32') or 'dpp' in op or 'row_' in mods or 'quad_perm' in mods:
                    self.src = self.src + R[0]
                if base == 'v_cndmask_b32' and len(ops) == 3: self.src = self.src + parse_reg('vcc')
            self.dpp = ('dpp' in op) or ('quad_perm' in mods) or ('row_' in mods)
        elif op.startswith('buffer_load') or op.startswith('global_load'):
            self.kind = 'vmem'
            if ' lds' in (' ' + mods) or 'load_lds' in op:
                self.lds_dma = True; self.src = flat(R) + [('s', 'm0')]
            else:
                self.lds_dma = False; self.dst = R[0]; self.src = flat(R[1:])
        elif op.startswith('buffer_store'):
            self.kind = 'vmem'; self.lds_dma = False; self.src = flat(R); self.stdata = R[0]
        elif op.startswith('global_store'):
            self.kind = 'vmem'; self.lds_dma = False; self.src = flat(R); self.stdata = R[1]
        elif op.startswith('ds_read'):
            self.kind = 'ds'; self.dst = R[0]; self.src = flat(R[1:])
        elif op.startswith('ds_write'):
            self.kind = 'ds'; self.src = flat(R)
        elif op.startswith('ds_bpermute') or op.startswith('ds_swizzle'):
            self.kind = 'ds'; self.dst = R[0]; self.src = flat(R[1:])
        elif op.startswith('s_load') or op in ('s_memtime', 's_memrealtime'):
            self.kind = 'smem'; self.dst = R[0]; self.src = flat(R[1:])
        elif op == 's_waitcnt':
            self.kind = 'wait'
            m = re.search(r'vmcnt\((\d+)\)', rest); self.vm = int(m.group(1)) if m else None
            m = re.search(r'lgkmcnt\((\d+)\)', rest); self.lg = int(m.group(1)) if m else None
        elif op == 's_nop':
            self.kind = 'nop'; self.n = int(rest, 0) + 1
        elif op in ('s_branch',) or op.startswith('s_cbranch'):
            self.kind = 'branch'
        elif op in ('s_barrier', 's_endpgm', 's_setprio', 's_sleep'):
            self.kind = 'salu'
        elif op.startswith('s_cmp') or op.startswith('s_bitcmp'):
            self.kind = 'salu'; self.src = flat(R)
        elif op.startswith('s_'):
            self.kind = 'salu'; self.dst = R[0]; self.src = flat(R[1:])
            if 'saveexec' in op: self.dst = self.dst + parse_reg('exec'); self.src = self.src + parse_reg('exec')
        else:
            raise ValueError('unknown instr: ' + t)

class Pseudo:
    def __init__(self, kind, tag=None, extra=0):
        self.kind = kind; self.tag = tag; self.extra = extra; self.text = ''
        self.dst = []; self.src = []

class Prog:
    def __init__(self):
        self.L = []
    def __call__(self, text, tag=None):
        for line in text.split('\n'):
            if line.strip() == '': continue
            self.L.append(I(line.strip(), tag))
    def add(self, items):
        for x in items:
            if isinstance(x, str): self(x)
            elif isinstance(x, tuple): self(x[0], x[1])
            else: self.L.append(x)
    def wait_vm(self, tag):
        self.L.append(Pseudo('wait_vm', tag))
    def wait_lg(self, tag):
        self.L.append(Pseudo('wait_lg', tag))
    def forget(self):
        self.L.append(Pseudo('forget'))

def WVM(tag): return Pseudo('wait_vm', tag)
def WLG(tag): return Pseudo('wait_lg', tag)

def insert_waits(L):
    out = []
    vm = []
    lg = []
    smem = []
    def emit_wait(vmn=None, lgn=None):
        nonlocal vm, lg, smem
        s = []
        if vmn is not None:
            vmn = min(vmn, 63); s.append(f'vmcnt({vmn})'); vm = vm[len(vm) - vmn:] if vmn < len(vm) else vm
            if vmn == 0: vm = []
        if lgn is not None:
            lgn = min(lgn, 15); s.append(f'lgkmcnt({lgn})')
            if lgn == 0: lg = []; smem = []
            elif lgn < len(lg): lg = lg[len(lg) - lgn:]
        if out and isinstance(out[-1], I) and out[-1].kind == 'wait' and getattr(out[-1], 'auto', False):
            p = out.pop()
            v = p.vm if vmn is None else (vmn if p.vm is None else min(p.vm, vmn))
            g = p.lg if lgn is None else (lgn if p.lg is None else min(p.lg, lgn))
            s = ([f'vmcnt({v})'] if v is not None else []) + ([f'lgkmcnt({g})'] if g is not None else [])
        w = I('s_waitcnt ' + ' '.join(s)); w.auto = True
        out.append(w)
    for x in L:
        if isinstance(x, Pseudo):
            if x.kind == 'wait_vm':
                idx = [i for i, y in enumerate(vm) if y.tag == x.tag]
                if idx: emit_wait(vmn=len(vm) - 1 - max(idx))
            elif x.kind == 'wait_lg':
                idx = [i for i, y in enumerate(lg) if y.tag == x.tag]
                if idx: emit_wait(lgn=0 if smem else len(lg) - 1 - max(idx))
            elif x.kind == 'unknown_vm':
                k = 0
                while k < len(vm) and not getattr(vm[len(vm)-1-k], 'tag', None): k += 1
                vm = vm[:len(vm)-k] + vm[len(vm)-k:][:x.extra]
            elif x.kind == 'drop_vm':
                vm = vm[:-1]
            elif x.kind == 'forget':
                vm = []; lg = []; smem = []
            continue
        if x.kind in ('label', 'comment', 'directive'):
            out.append(x); continue
        if x.kind == 'wait':
            if x.vm is not None:
                vm = vm[len(vm) - x.vm:] if 0 < x.vm < len(vm) else ([] if x.vm == 0 else vm)
            if x.lg is not None:
                if x.lg == 0: lg = []; smem = []
                elif x.lg < len(lg): lg = lg[len(lg) - x.lg:]
            out.append(x); continue
        touched = set(x.src) | set(x.dst)
        need_vm = None; need_lg = None
        for i, y in enumerate(vm):
            if touched & set(y.dst):
                n = len(vm) - 1 - i
                need_vm = n if need_vm is None else min(need_vm, n)
        for i, y in enumerate(lg):
            if touched & set(y.dst):
                n = len(lg) - 1 - i
                need_lg = n if need_lg is None else min(need_lg, n)
        for y in smem:
            if touched & set(y.dst): need_lg = 0
        if need_lg is not None and smem: need_lg = 0
        if need_vm is not None or need_lg is not None:
            emit_wait(need_vm, need_lg)
        out.append(x)
        if x.kind == 'vmem':
            vm.append(x)
            if len(vm) > 63: vm = vm[-63:] if False else vm
        elif x.kind == 'ds': lg.append(x)
        elif x.kind == 'smem': smem.append(x)
    return out

def slots(x):
    if x.kind == 'nop': return x.n
    if x.kind in ('label', 'comment', 'directive'): return 0
    return 1

def need_distance(p, c):
    n = 0
    pd = set(p.dst); cs = set(c.src); cd = set(c.dst)
    isv = lambda S: {r for r in S if r[0] in 'va'}
    iss = lambda S: {r for r in S if r[0] == 's'}
    if p.kind == 'valu':
        pv = isv(pd); ps = iss(pd)
        if c.kind == 'mfma' and pv & cs: n = max(n, 2)
        if c.kind == 'mfma' and (('s', 'exec_lo') in ps): n = max(n, 4)
        if c.kind == 'valu':
            if p.trans and not c.trans and pv & cs: n = max(n, 1)
            if c.base.startswith('v_permlane') and pv & cs: n = max(n, 2)
            if c.base in ('v_readfirstlane_b32', 'v_readlane_b32') and pv & cs: n = max(n, 1)
            if c.dpp and pv & cs: n = max(n, 2)
            if ps & cs: n = max(n, 4 if c.base in ('v_readlane_b32', 'v_writelane_b32') else 2)
            if ('s', 'exec_lo') in ps and (c.dpp): n = max(n, 5)
            if ('s', 'exec_lo') in ps and (c.base.startswith('v_permlane') or c.base.startswith('v_read')): n = max(n, 4)
        if c.kind == 'vmem' and ps & cs: n = max(n, 5)
        if c.kind in ('salu',) and ps & cs: n = max(n, 1)
    if p.kind == 'mfma':
        P = p.passes
        t = {4: (6, 8, 3), 8: (10, 12, 7)}[P]
        if c.kind == 'mfma':
            if pd & set(c.srcAB): n = max(n, t[1])
            if pd & set(c.srcC):
                if not (p.dst == c.srcC and p.passes == c.passes): n = max(n, t[0])
            if pd & cd and not (p.dst == c.dst): n = max(n, t[1])
        elif c.kind in ('valu', 'vmem', 'ds'):
            if pd & (cs | cd): n = max(n, t[1])
            if c.kind == 'valu' and set(p.srcC) & cd: n = max(n, t[2])
            if c.kind in ('vmem', 'ds') and set(p.srcC) & cd: n = max(n, t[2])
    if p.kind == 'vmem' and p.stdata and len(p.stdata) >= 3:
        if set(p.stdata) & cd: n = max(n, 2 if c.kind in ('valu', 'mfma') else 1)
    if p.kind == 'salu' and ('s', 'm0') in pd and c.kind == 'vmem' and getattr(c, 'lds_dma', False): n = max(n, 1)
    return n

def insert_nops(L, window=24):
    out = []
    added = 0
    for x in L:
        if x.kind in ('label', 'comment', 'directive'):
            out.append(x); continue
        need = 0
        d = 0
        for p in reversed(out):
            if d >= 20: break
            if p.kind not in ('label', 'comment', 'directive', 'nop', 'wait', 'branch'):
                r = need_distance(p, x)
                if r > d: need = max(need, r - d)
            d += slots(p)
        if need:
            out.append(I(f's_nop {need - 1}')); added += need
        out.append(x)
    return out, added

def finalize(prog, verbose=False):
    L = insert_waits(prog.L)
    L, added = insert_nops(L)
    if verbose: print('nop states added:', added)
    return L

def text(L):
    return '\n'.join(('' if x.kind == 'label' else '    ') + x.text for x in L) + '\n'

def interleave(main, fill, start=0, every=None, per=None):
    out = []
    n = len(main); fi = 0
    for i, m in enumerate(main):
        out += m if isinstance(m, list) else [m]
        if per is not None:
            k = per(i) if callable(per) else per[i]
        else:
            k = ((i + 1) * len(fill)) // n - (i * len(fill)) // n
        for _ in range(k):
            if fi < len(fill):
                f = fill[fi]; fi += 1
                out += f if isinstance(f, list) else [f]
    while fi < len(fill):
        f = fill[fi]; fi += 1
        out += f if isinstance(f, list) else [f]
    return out

SCC_W = ('s_add_u32', 's_sub_u32', 's_add_i32', 's_sub_i32', 's_addc_u32', 's_lshl_b32', 's_lshr_b32', 's_and_b32', 's_or_b32', 's_xor_b32',
         's_min_u32', 's_max_i32', 's_min_i32', 's_max_u32', 's_lshl2_add_u32', 's_lshl3_add_u32', 's_lshl1_add_u32', 's_lshl4_add_u32', 's_ashr_i32', 's_or_b64', 's_and_b64')
def atomic_groups(L):
    n = len(L); live = [False] * (n + 1)
    scc = vcc = False
    for i in range(n - 1, -1, -1):
        x = L[i]
        op = getattr(x, 'op', '')
        if op.startswith('s_cmp') or op in SCC_W: scc = False
        if op.startswith('s_cselect') or op.startswith('s_cbranch_scc') or op == 's_addc_u32': scc = True
        if ('s', 'vcc_lo') in x.dst: vcc = False
        if ('s', 'vcc_lo') in x.src: vcc = True
        live[i] = scc or vcc
    G = []
    for i, x in enumerate(L):
        if i == 0 or not live[i]: G.append([])
        G[-1].append(x)
    return G

class Slot:
    kind = 'slot'; text = ''; dst = []; src = []; tag = None
    def __init__(self, name=None): self.name = name

def as_instrs(item):
    out = []
    for x in item:
        if isinstance(x, str): out += [I(l.strip()) for l in x.split('\n') if l.strip()]
        elif isinstance(x, tuple): out.append(I(x[0], x[1]))
        else: out.append(x)
    return out

def place(L, streams, gap=70, t0_vm=-1000, burst=1):
    out = []; t = 0; pipe = 0; ready = {}; last_vm = t0_vm; prev_valu = -100
    st = dict(t=0, done={}, seen=set())
    def cost(x):
        nonlocal t, pipe, prev_valu
        k = x.kind
        if k in ('label', 'comment', 'directive', 'slot') or isinstance(x, Pseudo): return
        if k == 'mfma':
            need = max([ready.get(r, 0) for r in x.srcAB] + [0])
            t = max(t, pipe, need); pipe = t + 32
            for r in x.dst: ready[r] = t + 52
            t += 8; return
        t = max([t] + [ready.get(r, 0) for r in list(x.src) + list(x.dst)])
        if k in ('ds', 'vmem'): t = max(t, prev_valu + 12)
        if k == 'valu': prev_valu = t
        t += 8 if (k == 'valu' and (x.trans or 'swap' in x.op)) else (4 * x.n if k == 'nop' else 4)
    for x in L:
        if not isinstance(x, Slot):
            out.append(x); cost(x); continue
        if x.name: st['seen'].add(x.name)
        nds = 0
        progress = True
        while progress:
            progress = False
            for name, q in streams.items():
                if not q: continue
                item, cond, key = q[0]
                ins = as_instrs(item)
                isvm = any(y.kind == 'vmem' for y in ins)
                st['t'] = t
                if cond and not cond(st): continue
                if isvm and t < last_vm: continue
                if not isvm:
                    if nds >= 2 or x.name is None: continue
                    nds += 1
                q.pop(0)
                for y in ins: out.append(y); cost(y)
                if isvm:
                    wide = any(y.kind == 'vmem' and 'x4' in y.op for y in ins)
                    last_vm = max(last_vm, t - burst * gap) + (gap if wide else gap // 4)
                st['done'][key] = t
                progress = True
    return out, t

def align_runs(L, minrun=6):
    import subprocess, tempfile, os, re as _re
    ins = [x for x in L if x.kind not in ('label', 'comment', 'directive')]
    src = '.amdgcn_target "amdgcn-amd-amdhsa--gfx950"\n.text\n' + text(L).replace('DIAG_I', '0').replace('DIAG_J', '0')
    d = tempfile.mkdtemp(); open(d + '/a.s', 'w').write(src)
    subprocess.run(['clang', '-x', 'assembler', '-target', 'amdgcn-amd-amdhsa', '-mcpu=gfx950', '-c', d + '/a.s', '-o', d + '/a.o'], check=True)
    dis = subprocess.run(['llvm-objdump', '-d', '--mcpu=gfx950', d + '/a.o'], capture_output=True, text=True).stdout
    sizes = [4 * len(m.group(1).split()) for m in _re.finditer(r'// [0-9A-F]{12}: ([0-9A-F ]+)', dis)]
    assert len(sizes) == len(ins), (len(sizes), len(ins))
    for x, z in zip(ins, sizes): x.size = z
    out = []; addr = 0; cand = None; fixed = 0
    for i, x in enumerate(L):
        if x.kind in ('label', 'comment', 'directive'): out.append(x); continue
        if x.size == 8 and addr % 8 == 4:
            n = 0
            for y in L[i:]:
                if y.kind in ('label', 'comment', 'directive'): continue
                if y.size != 8 or y.kind == 'mfma': break
                n += 1
            if n >= minrun:
                fixed += 1
                if cand is not None:
                    c = out[cand]; t = c.text.split(None, 1)
                    y = I(t[0] + '_e64 ' + t[1], c.tag); y.size = 8; out[cand] = y
                else:
                    y = I('s_nop 0'); y.size = 4; out.append(y)
                addr += 4; cand = None
        out.append(x); addr += x.size
        if x.size == 4 and x.kind == 'valu' and x.op in ('v_exp_f32', 'v_rcp_f32', 'v_mul_f32', 'v_sub_f32', 'v_add_f32', 'v_max_f32', 'v_and_b32', 'v_xor_b32', 'v_mov_b32', 'v_add_u32', 'v_lshlrev_b32', 'v_lshrrev_b32'):
            cand = len(out) - 1
        elif x.size == 8 and cand is not None and len(out) - 1 - cand > 3: cand = None
    return out, fixed
```

```python
import sys, math, struct
from asmlib import *

NAME = "gated_mix__sliding_block__dense_activation_gelu__prompt"
def f2u(x): return struct.unpack('<I', struct.pack('<f', x))[0]

WS_E      = 0
FL_G      = 0x1000
G_OFF     = 0x4000
FL_QKV    = 0x20000
FL_H      = 0x40000
FL_O      = 0x60000
QKV_OFF   = 0x100000
A_OFF     = 0x700000
WS_SIZE   = 0x1000000
BP_OFF    = 0x1000000
STAMP_OFF = 0x1400000
QKV_TB = 168 * 512
A_TB = 144 * 1024

SA = 28672
LQ = 16384
LF = 98304; SF = 16384
LBIAS = 86016
LKV = 0
LRED = 0
LP = [49152 + 16384 * i for i in range(7)] + [0, 16384, 32768]
PIECE = []
def plan(n1, late=0):
    ra = list(range(11 - n1))
    rb = [p for p in range(7) if p not in ra] + ra
    PIECE[:] = [0, 1, 2, 3, 7, 8, 9][:n1] + ra + rb[:7]
    if late: PIECE[:] = [0, 1, 2, 3] + [4, 5, 6, 0, 1, 2, 3] * 2
LDS_BYTES = 160 * 1024

S_WAVE, S_RBL, S_SPARE, S_XCD, S_SLOT = 3, 8, 9, 10, 11
S_XO, S_QO, S_FO, S_CI, S_CJ = 4, 5, 6, 7, 22
S_M4, S_M3 = 23, 24
S_OFL = 25
S_B1, S_W2, S_B2, S_GW, S_WO = 12, 14, 16, 18, 20
S_TAG = 26
SRD_X, SRD_WQ, SRD_W1, SRD_WS, SRD_OUT, SRD_W2 = 28, 32, 36, 40, 44, 48
SRD_WO = 32
S_KV = [28, 29, 30, 31]
S_RB, S_B, S_TB = 52, 53, 54
S_BOF = 55
S_T0, S_T1, S_T2, S_T3 = 56, 57, 58, 59
S_CNT = 60
S_QST, S_HST = 61, 62
S_T4 = 63
S_MASK = 64
S_QFL, S_HFL = 12, 13
S_OST, S_B3 = 18, 19
S_AOF, S_AO2, S_BO = 4, 5, 7
S_ARB, S_ATB = 14, 15
S_R, S_C, S_J, S_PAR = 98, 99, 100, 101
S_AG, S_BG = 52, 54

def sr(b, n=2): return f"s[{b}:{b+n-1}]"
def vr(b, n): return f"v[{b}:{b+n-1}]" if n > 1 else f"v{b}"
def ar(b, n): return f"a[{b}:{b+n-1}]"
def xr(d): return ar(d[1], 4) if isinstance(d, tuple) else vr(d, 4)

V_LANE, V_L16, V_L16H, V_FLAGOFF = 1, 2, 3, 4
V_TAG = 6
V_PD = 8
V_PA = 10
V_T = 11
V_BA = 216
V_AA = 220
L_G = 222
L_RW = 224
L_RR, L_OA, V_PO, V_PH = 227, 228, 229, 231
V_BR = [[232, 233], [0, 230], [202, 234]]
L_BA = 10
V_DUM = 235
V_ST = 255
SC = 'sc1'

class Opt: pass

def mfma(d, a, b, c):
    C = '0' if c is None else vr(c, 16)
    return f"v_mfma_f32_32x32x16_bf16 {vr(d,16)}, {xr(a)}, {xr(b)}, {C}"

lab = [0]
def stamp(P, o, name):
    if not o.stamps: return
    if name not in o.stamp_names: o.stamp_names.append(name)
    P(f"{o.clk} s[96:97]")
    P("s_waitcnt lgkmcnt(0)")
    P(f"v_writelane_b32 v{V_ST}, s96, {o.stamp_names.index(name)}")

def stamp_flush(P, o):
    if not o.stamps: return
    if o.diag is not None:
        lab[0] += 1
        P(f"v_readlane_b32 s{S_T0}, v{V_ST}, DIAG_I")
        P(f"v_readlane_b32 s{S_T1}, v{V_ST}, DIAG_J")
        P("s_nop 4")
        P(f"s_sub_u32 s{S_T0}, s{S_T1}, s{S_T0}")
        P(f"s_mul_i32 s{S_T0}, s{S_T0}, {o.diag[2]}")
        P(f"s_min_u32 s{S_T0}, s{S_T0}, 20000")
        P(f"s_cmp_eq_u32 s{S_SPARE}, 1")
        P(f"s_cselect_b32 s{S_T0}, 0, s{S_T0}")
        P("s_memrealtime s[96:97]")
        P("s_waitcnt lgkmcnt(0)")
        P(f"s_mov_b32 s{S_T1}, s96")
        P(f"L_dg{lab[0]}:")
        P("s_memrealtime s[96:97]")
        P("s_waitcnt lgkmcnt(0)")
        P(f"s_sub_u32 s{S_T2}, s96, s{S_T1}")
        P(f"s_cmp_lt_u32 s{S_T2}, s{S_T0}")
        P(f"s_cbranch_scc1 L_dg{lab[0]}")
        return
    P("s_waitcnt vmcnt(0)")
    P(f"s_lshl2_add_u32 s{S_T0}, s2, s{S_WAVE}")
    P(f"s_lshl_b32 s{S_T0}, s{S_T0}, 8")
    P(f"s_add_u32 s{S_T0}, s{S_T0}, {STAMP_OFF}")
    P(f"s_mov_b32 s{SRD_WS+2}, {STAMP_OFF + 0x100000}")
    P(f"v_lshlrev_b32 v{V_T}, 2, v{V_LANE}")
    P(f"buffer_store_dword v{V_ST}, v{V_T}, {sr(SRD_WS,4)}, s{S_T0} offen")

def setup(P, o, end_label):
    if o.stamps: P(f"{o.clk} s[94:95]")
    P(f"s_load_dwordx2 {sr(SRD_X)}, s[0:1], 0")
    P(f"s_load_dwordx2 {sr(SRD_WQ)}, s[0:1], 8")
    P(f"s_load_dwordx2 {sr(SRD_W1)}, s[0:1], 32")
    P(f"s_load_dwordx8 s[12:19], s[0:1], 40")
    P(f"s_load_dwordx2 {sr(SRD_WS)}, s[0:1], 88")
    P(f"s_load_dwordx2 {sr(SRD_OUT)}, s[0:1], 72")
    P(f"s_load_dwordx2 {sr(S_WO)}, s[0:1], 16")
    P("s_cmpk_ge_u32 s2, 256")
    P(f"s_cbranch_scc1 {end_label}")
    P(f"s_getpc_b64 s[{S_T0}:{S_T1}]")
    P(f"v_lshlrev_b32 v{V_T}, 7, v0")
    P(f"v_min_u32 v{V_T}, {o.code_bytes - 128}, v{V_T}")
    P(f"global_load_dword v{V_DUM}, v{V_T}, s[{S_T0}:{S_T1}]", tag='pf')
    P(f"v_lshrrev_b32 v5, 6, v0")
    P(f"v_and_b32 v{V_LANE}, 63, v0")
    P(f"v_readfirstlane_b32 s{S_WAVE}, v5")
    P(f"s_and_b32 s{S_XCD}, s2, 7")
    P(f"s_lshr_b32 s{S_SLOT}, s2, 3")
    P(f"s_lshr_b32 s{S_RBL}, s2, 6")
    P(f"s_and_b32 s{S_C}, s{S_SLOT}, 7")
    P(f"s_mov_b32 s{SRD_X+3}, 0x20000")
    P(f"s_mov_b32 s{SRD_X+2}, {2048*896}")

def srd_rest(P, regs):
    for d, size in regs:
        P(f"s_mov_b32 s{d+2}, {size}")
        P(f"s_mov_b32 s{d+3}, 0x20000")

def common2(P, o):
    P(f"v_lshlrev_b32 v{V_L16}, 4, v{V_LANE}")
    P(f"v_cmp_eq_u32 vcc, 0, v{V_LANE}")
    P(f"v_mov_b32 v5, 0x7fff0000")
    P(f"v_add_u32 v{V_L16H}, 0x1000, v{V_L16}")
    P(f"v_cndmask_b32_e64 v{V_FLAGOFF}, v5, 0, vcc")
    P(f"s_lshl2_add_u32 s{S_R}, s{S_XCD}, s{S_RBL}")

TAGOPS = [f"s_mul_i32 s{S_TAG}, s{S_TAG}, 0x9e3779b1",
          f"s_add_u32 s{S_TAG}, s{S_TAG}, 0x7f4a7c15",
          f"s_xor_b32 s{S_TAG+1}, s{S_TAG}, 0x5bd1e995",
          f"v_mov_b32 v{V_TAG}, s{S_TAG}",
          f"v_mov_b32 v{V_TAG+1}, s{S_TAG+1}"]

def warm_touch(P, blk, dst, tb, l128):
    P(f"s_mul_i32 s{tb}, s{S_XCD}, 31")
    P(f"s_min_u32 s{blk}, s{blk}, 244")
    P(f"s_add_u32 s{blk}, s{blk}, s{tb}")
    P(f"s_sub_u32 s{tb}, s{blk}, 245")
    P(f"s_cselect_b32 s{blk}, s{blk}, s{tb}")
    P(f"s_sub_u32 s{tb}, s{blk}, 196")
    P(f"s_cselect_b32 s{blk}, s{blk}, s{tb}")
    P(f"s_cselect_b64 {sr(tb)}, {sr(SRD_W2)}, {sr(S_WO)}")
    P(f"s_lshl_b32 s{blk}, s{blk}, 13")
    P(f"s_add_u32 s{tb}, s{tb}, s{blk}")
    P(f"s_addc_u32 s{tb+1}, s{tb+1}, 0")
    P(f"global_load_dword v{dst}, v{l128}, {sr(tb)}", tag='warm')

def l2_touch(P, o, i):
    P(f"s_mul_i32 s{S_T4}, s{S_RBL}, 7")
    P(f"s_add_u32 s{S_T4}, s{S_T4}, s{S_C}")
    P(f"s_lshl2_add_u32 s{S_T4}, s{S_T4}, s{S_WAVE}")
    if i: P(f"s_add_u32 s{S_T4}, s{S_T4}, {112*i}")
    P(f"s_mul_i32 s{S_T0}, s{S_T4}, 1873")
    P(f"s_lshr_b32 s{S_T0}, s{S_T0}, 16")
    P(f"s_mul_i32 s{S_T0}, s{S_T0}, {128*896}")
    P(f"s_lshl_b32 s{S_T1}, s{S_T4}, 13")
    P(f"s_add_u32 s{S_T0}, s{S_T0}, s{S_T1}")
    P(f"s_add_u32 s{S_T0}, s{S_T0}, {128*896}")
    P(f"s_sub_u32 s{S_T1}, s{S_T1}, {140*8192}")
    P(f"s_cbranch_scc0 L_wo{i}")
    P(f"buffer_load_dword v{184+i}, v{V_L128}, {sr(SRD_W2,4)}, s{S_T0} offen")
    P(f"s_branch L_wj{i}")
    P(f"L_wo{i}:")
    P(f"buffer_load_dword v{186+i}, v{V_L128}, {sr(SRD_WO,4)}, s{S_T1} offen")
    P(f"L_wj{i}:")
    P.L.append(Pseudo('drop_vm'))

def poll(P, o, addr_v, limit=4000):
    lab[0] += 1
    L = f"L_poll{lab[0]}"
    P(f"s_mov_b32 s{S_CNT}, {limit}")
    P(f"{L}:")
    P(f"buffer_load_dwordx2 {vr(V_PD,2)}, v{addr_v}, {sr(SRD_WS,4)}, 0 offen sc1")
    P(f"s_sub_u32 s{S_CNT}, s{S_CNT}, 1")
    P("s_waitcnt vmcnt(0)")
    P(f"v_cmp_ne_u64 vcc, {sr(S_TAG)}, {vr(V_PD,2)}")
    P(f"s_cbranch_scc1 {L}_x")
    P(f"s_cbranch_vccnz {L}")
    P(f"{L}_x:")

slow_paths = []
def poll_issue(addr_v):
    return [f"buffer_load_dwordx2 {vr(V_PD,2)}, v{addr_v}, {sr(SRD_WS,4)}, 0 offen sc1"]
def poll_check(addr_v, limit=4000):
    lab[0] += 1
    L = f"L_pc{lab[0]}"
    slow_paths.append(f"""{L}_slow:
s_mov_b32 s{S_CNT}, {limit}
{L}_loop:
buffer_load_dwordx2 {vr(V_PD,2)}, v{addr_v}, {sr(SRD_WS,4)}, 0 offen sc1
s_sub_u32 s{S_CNT}, s{S_CNT}, 1
s_waitcnt vmcnt(0)
v_cmp_ne_u64 vcc, {sr(S_TAG)}, {vr(V_PD,2)}
s_cbranch_scc1 {L}_back
s_cbranch_vccnz {L}_loop
s_branch {L}_back""")
    return [f"v_cmp_ne_u64 vcc, {sr(S_TAG)}, {vr(V_PD,2)}\ns_cbranch_vccnz {L}_slow\n{L}_back:"]

def flag_store(soff):
    return [f"buffer_store_dwordx2 {vr(V_TAG,2)}, v{V_FLAGOFF}, {sr(SRD_WS,4)}, s{soff} offen sc1"]

ACC_Q, ACC_F = 16, 64
FR = 128
GT = 160
V_XD, V_QD, V_FD = 192, 196, 199
V_XR, V_QR, V_FRD = 203, 207, 208
V_CA, V_CB = 212, 214
V_QR2, V_L128 = 213, 215

def adv(ci):
    return f"s_add_u32 s{ci}, s{ci}, 1\ns_cmp_eq_u32 s{ci}, 7\ns_cselect_b32 s{ci}, 0, s{ci}"

def dma_a(n):
    sl = (n % 3) * SA
    L = []
    if n: L.append([adv(S_CI)])
    L.append([f"s_lshl_b32 s{S_XO}, s{S_CI}, 7", f"s_add_u32 m0, s{S_M4}, {sl}"])
    L.append([f"s_mul_i32 s{S_QO}, s{S_CI}, {64*2688}"])
    for i in range(4):
        L.append([(f"buffer_load_dwordx4 v{V_XD+i}, {sr(SRD_X,4)}, s{S_XO} offen offset:{i*1024} lds", f'da{n}')])
    L.append([f"s_add_u32 m0, s{S_M3}, {sl}"])
    for i in range(3):
        L.append([(f"buffer_load_dwordx4 v{V_QD+i}, {sr(SRD_WQ,4)}, s{S_QO} offen offset:{i*1024} lds", f'da{n}')])
    return L

def dma_b(n):
    L = []
    if n: L.append([adv(S_CJ)])
    L.append([f"s_add_u32 m0, s{S_M4}, {LF + ((n + 1) % 4) * SF}", f"s_mul_i32 s{S_FO}, s{S_CJ}, {64*3584}"])
    for i in range(4):
        L.append([(f"buffer_load_dwordx4 v{V_FD+i}, {sr(SRD_W1,4)}, s{S_FO} offen offset:{i*1024} lds", f'db{n}')])
    return L

def reads_a(g):
    c, s = g >> 2, g & 3
    sl = (c % 3) * SA
    base = FR + 16 * (g & 1)
    L = [f"ds_read_b128 {ar(4*g,4)}, v{V_XR+s} offset:{sl}"]
    q, so = (V_QR2, 0) if c % 3 == 2 else (V_QR, sl)
    for t in range(3):
        for rho in range(2):
            L.append(f"ds_read_b64_tr_b16 {vr(base+4*t+2*rho,2)}, v{q} offset:{so + (16*s+4*rho)*192 + t*64}")
    return L

def reads_b(g):
    c, s = g >> 2, g & 3
    base = FR + 16 * (g & 1)
    return [f"ds_read_b64_tr_b16 {vr(base+4*t+2*rho,2)}, v{V_FRD+t} offset:{((c + 1) % 4)*SF + (16*s+4*rho)*256}" for t in range(4) for rho in range(2)]

def s1_x_addr(P, o):
    T = V_T
    if o.ncls == 3:
        P(f"s_add_u32 s{S_CI}, s{S_C}, s{S_RBL}")
        P(f"s_lshl_b32 s{S_CI}, s{S_CI}, 1")
        P(f"s_lshr_b32 s{S_CI}, 0x24924, s{S_CI}")
        P(f"s_and_b32 s{S_CI}, s{S_CI}, 3")
        P(f"s_lshl_b32 s{S_CI}, s{S_CI}, 1")
    elif o.ncls == 2:
        P(f"s_add_u32 s{S_CI}, s{S_C}, s{S_RBL}")
        P(f"s_and_b32 s{S_CI}, s{S_CI}, 1")
        P(f"s_mul_i32 s{S_CI}, s{S_CI}, 3")
    else:
        P(f"s_mov_b32 s{S_CI}, 0")
    P(f"s_and_b32 s{S_RB}, s{S_XCD}, 3")
    P(f"s_lshl2_add_u32 s{S_RB}, s{S_RB}, s{S_RBL}")
    P(f"s_lshl2_add_u32 s{S_TB}, s{S_RB}, s{S_WAVE}")
    P(f"v_lshrrev_b32 v{T}, 3, v{V_LANE}")
    P(f"v_and_b32 v{T+1}, 7, v{V_LANE}")
    P(f"v_lshrrev_b32 v{T+2}, 4, v{V_LANE}")
    P(f"s_lshl_b32 s{S_T2}, s{S_TB}, 5")
    P(f"v_add_u32 v{T}, s{S_T2}, v{T}")
    P(f"v_mul_u32_u24 v{T}, 896, v{T}")
    P(f"v_xor_b32 v{T+1}, v{T+2}, v{T+1}")
    P(f"v_lshl_add_u32 v{V_XD}, v{T+1}, 4, v{T}")
    P(f"v_xor_b32 v{V_XD+1}, 64, v{V_XD}")
    P(f"s_lshl_b32 s{S_M4}, s{S_WAVE}, 12")
    P(f"v_add_u32 v{V_XD+2}, {2*(8*896-1024)}, v{V_XD}")
    P(f"v_add_u32 v{V_XD+3}, {3*(8*896-1024)}, v{V_XD+1}")
    P(f"v_add_u32 v{V_XD+1}, {1*(8*896-1024)}, v{V_XD+1}")

def s1_wq_addr(P, o):
    T = V_T
    P(f"s_lshr_b32 s{S_B}, s{S_XCD}, 2")
    P(f"s_mul_i32 s{S_B}, s{S_B}, 7")
    P(f"s_add_u32 s{S_B}, s{S_B}, s{S_C}")
    P(f"s_mul_i32 s{S_T2}, s{S_WAVE}, 192")
    P(f"s_mul_i32 s{S_T3}, s{S_B}, 192")
    P(f"v_add_u32 v{T}, s{S_T2}, v{V_LANE}")
    P(f"v_lshl_add_u32 v{T+2}, v{T}, 4, s{S_T3}")
    P(f"v_mul_u32_u24 v{T}, 0xaaab, v{T}")
    P(f"s_movk_i32 s{S_T3}, 2496")
    for i in range(3):
        if i: P(f"v_add_u32 v{T}, {64*0xaaab}, v{T}")
        P(f"v_lshrrev_b32 v{T+1}, 19, v{T}")
        P(f"v_mad_u32_u24 v{V_QD+i}, v{T+1}, s{S_T3}, v{T+2}")
    P(f"s_lshl_b32 s{S_T2}, s{S_T2}, 4")
    P(f"s_add_u32 s{S_M3}, s{S_T2}, {LQ}")
    srd_rest(P, [(SRD_WQ, 448*2688)])

def s1_read_addr(P, o):
    T = V_T
    P(f"v_and_b32 v{T}, 31, v{V_LANE}")
    P(f"v_lshrrev_b32 v{T+1}, 5, v{V_LANE}")
    P(f"v_bfe_u32 v{T+2}, v{V_LANE}, 1, 3")
    P(f"v_xor_b32 v{T+2}, v{T+2}, v{T+1}")
    P(f"v_lshl_add_u32 v{T}, v{T}, 7, s{S_M4}")
    for s in range(4):
        P(f"v_xor_b32 v{T+3}, {2*s}, v{T+2}")
        P(f"v_lshl_add_u32 v{V_XR+s}, v{T+3}, 4, v{T}")
    P(f"v_bfe_u32 v{T}, v{V_LANE}, 2, 2")
    P(f"v_lshl_add_u32 v{T+1}, v{T+1}, 3, v{T}")
    P(f"v_bfe_u32 v{T+2}, v{V_LANE}, 4, 1")
    P(f"v_lshlrev_b32 v{T+2}, 5, v{T+2}")
    P(f"v_and_b32 v{T+3}, 3, v{V_LANE}")
    P(f"v_lshl_add_u32 v{T+2}, v{T+3}, 3, v{T+2}")
    P(f"v_mul_u32_u24 v{T+3}, 192, v{T+1}")
    P(f"v_add_u32 v{T+3}, {LQ}, v{T+3}")
    P(f"v_add_u32 v{V_QR}, v{T+3}, v{T+2}")
    P(f"v_add_u32 v{V_QR2}, {2*SA}, v{V_QR}")
    P(f"v_lshl_add_u32 v{T+2}, v{T+1}, 8, v{T+2}")
    P(f"v_add_u32 v{T+2}, {LF}, v{T+2}")
    for c in range(4):
        P(f"v_xor_b32 v{T+3}, {c}, v{T}")
        P(f"v_lshl_add_u32 v{V_FRD+c}, v{T+3}, 6, v{T+2}")

def s1_w1_addr(P, o):
    T = V_T
    P(f"v_lshrrev_b32 v{T+2}, 4, v{V_LANE}")
    P(f"v_lshlrev_b32 v{T+1}, 2, v{T+2}")
    P(f"v_xor_b32 v{T+1}, v{T+1}, v{V_LANE}")
    P(f"v_and_b32 v{T+1}, 15, v{T+1}")
    P(f"s_lshl_b32 s{S_T2}, s{S_WAVE}, 4")
    P(f"v_add_u32 v{T}, s{S_T2}, v{T+2}")
    P(f"v_mul_u32_u24 v{T}, 3584, v{T}")
    P(f"s_lshl_b32 s{S_T3}, s{S_B}, 8")
    P(f"v_lshl_add_u32 v{T}, v{T+1}, 4, v{T}")
    P(f"v_add_u32 v{V_FD}, s{S_T3}, v{T}")
    for i in range(1, 4):
        P(f"v_add_u32 v{V_FD+i}, {i*(4*3584-1024)}, v{V_FD}")
    srd_rest(P, [(SRD_W1, 448*3584)])
    P(f"v_lshl_add_u32 v{T}, v{V_LANE}, 2, s{S_T3}")
    P(f"global_load_dword v9, v{T}, {sr(S_B1)}")

def w1_touch(P, o):
    T = V_T
    P(f"v_lshrrev_b32 v{T}, 1, v{V_LANE}")
    P(f"v_min_u32 v{T}, 27, v{T}")
    P(f"s_lshl2_add_u32 s{S_T0}, s{S_RBL}, s{S_WAVE}")
    P(f"s_mul_i32 s{S_T0}, s{S_T0}, 28")
    P(f"v_add_u32 v{T}, s{S_T0}, v{T}")
    P(f"v_mul_u32_u24 v{T}, 3584, v{T}")
    P(f"v_and_b32 v{T+1}, 1, v{V_LANE}")
    P(f"v_lshl_add_u32 v{T}, v{T+1}, 7, v{T}")
    P(f"s_lshl_b32 s{S_T0}, s{S_B}, 8")
    P(f"buffer_load_dword v160, v{T}, {sr(SRD_W1,4)}, s{S_T0} offen", tag='warm')

def s1_misc(P, o):
    srd_rest(P, [(SRD_WS, WS_SIZE), (SRD_OUT, 2048*896)])
    A = -2.0 * math.sqrt(2.0 / math.pi) * 0.044715 * math.log2(math.e)
    B = -2.0 * math.sqrt(2.0 / math.pi) * math.log2(math.e)
    P(f"v_mov_b32 v{V_CA}, {hex(f2u(A))}")
    P(f"v_mov_b32 v{V_CB}, {hex(f2u(B))}")
    P(f"v_lshlrev_b32 v{V_L128}, 7, v{V_LANE}")
    P(f"s_mul_i32 s{S_QST}, s{S_TB}, {QKV_TB}")
    P(f"s_mul_i32 s{S_T0}, s{S_B}, {3*2048}")
    P(f"s_add_u32 s{S_QST}, s{S_QST}, s{S_T0}")
    P(f"s_add_u32 s{S_QST}, s{S_QST}, {QKV_OFF}")
    P(f"s_mul_i32 s{S_HST}, s{S_TB}, {A_TB}")
    P(f"s_lshl_b32 s{S_T0}, s{S_B}, 13")
    P(f"s_add_u32 s{S_HST}, s{S_HST}, s{S_T0}")
    P(f"s_add_u32 s{S_HST}, s{S_HST}, {A_OFF}")
    P(f"s_lshl4_add_u32 s{S_T0}, s{S_TB}, s{S_B}")
    P(f"s_lshl_b32 s{S_T0}, s{S_T0}, 7")
    P(f"s_add_u32 s{S_QFL}, s{S_T0}, {FL_QKV}")
    P(f"s_add_u32 s{S_HFL}, s{S_T0}, {FL_H}")
    P(f"s_mul_i32 s{S_B3}, s{S_B}, 3")
    P(f"s_mov_b32 s{S_SPARE}, 0")

def bias_expand(P, src_v, tmp, addr, base):
    P(f"v_lshlrev_b32 v{tmp}, 16, v{src_v}")
    P(f"v_and_b32 v{tmp+1}, 0xffff0000, v{src_v}")
    P(f"v_lshl_add_u32 v{tmp+2}, v{V_LANE}, 3, s{base}")
    P(f"ds_write_b64 v{tmp+2}, {vr(tmp,2)}")
    P(f"v_lshrrev_b32 v{addr}, 5, v{V_LANE}")
    P(f"v_lshl_add_u32 v{addr}, v{addr}, 4, s{base}")

def bias1(P, o):
    P(f"s_lshl_b32 s{S_T0}, s{S_WAVE}, 9")
    P(f"s_add_u32 s{S_T0}, s{S_T0}, {LBIAS}")
    bias_expand(P, 9, 12, 8, S_T0)

def bias1_reads():
    return [[f"ds_read_b128 {vr(ACC_F+16*F+4*q,4)}, v8 offset:{(32*F+8*q)*4}"] for F in range(4) for q in range(4)]

def rot_step(off, cnt, stride, n):
    return (f"s_add_u32 s{off}, s{off}, {stride}\ns_add_u32 s{cnt}, s{cnt}, 1\ns_cmp_eq_u32 s{cnt}, {n}\n"
            f"s_cselect_b32 s{S_CNT}, {n*stride}, 0\ns_sub_u32 s{off}, s{off}, s{S_CNT}")
ROT = [0]

def b_dma(p):
    L = [[f"s_add_u32 m0, s{S_M4}, {LP[PIECE[p]]}"]]
    if p < 14:
        so, sd = S_BOF, SRD_W2
        if p: L[0].append(rot_step(so, S_BG, 32*896, 14) if ROT[0] else f"s_add_u32 s{so}, s{so}, {32*896}")
    else:
        so, sd = S_BO, SRD_WO
        i = p - 14
        if i: L[0].append(f"s_add_u32 s{so}, s{so}, {8*(((7*i)>>1) - ((7*(i-1))>>1))*896}")
    for i in range(4):
        L.append([(f"buffer_load_dwordx4 v{V_BA+i}, {sr(sd,4)}, s{so} offen offset:{i*1024} lds", f'bp{p}')])
    return L

def breg(n, ctl):
    if n >= 22: n -= 22
    return ('a', (112 + 8 * n if n < 18 else 8 * (n - 18)) + 4 * ctl)

def b_reads(n):
    pc = LP[PIECE[n >> 1]]
    hi, so = divmod(pc, 65536)
    return [f"ds_read_b64_tr_b16 {ar(breg(n, ctl)[1]+2*rho,2)}, v{V_BR[hi][ctl]} offset:{so + (n & 1)*2048 + rho*1024}" for ctl in range(2) for rho in range(2)]

class Gaps:
    def __init__(self): self.m = {}; self.v = {}
    def put(self, kind, items, g0, g1):
        d = self.m if kind == 'm' else self.v
        spread(d, items, list(range(g0, g1)), kind == 'm')
    def emit(self, G): return sum(self.m.get(G, []), []) + sum(self.v.get(G, []), [])

def spread(hooks, items, slots, unit=True):
    w = (lambda g: 1) if unit else len
    tot = sum(w(g) for g in items); done = 0
    for g in items:
        s = slots[min(len(slots) - 1, (done * len(slots)) // tot)]
        hooks.setdefault(s, []).append(g); done += w(g)

def merge_salu(items):
    out = []; pend = []
    for it in items:
        pend += it
        if any(isinstance(x, tuple) or (isinstance(x, str) and x.startswith(('buffer', 'global', 'ds_'))) for x in it):
            out.append(pend); pend = []
    if pend: out.append(pend)
    return out

def pass_a(P, o, H):
    s1_x_addr(P, o)
    d0 = dma_a(0)
    P.add(d0[0])
    P("s_waitcnt lgkmcnt(0)")
    if o.stamps:
        o.stamp_names.append('entry'); P(f"v_mov_b32 v{V_ST}, 0"); P(f"v_writelane_b32 v{V_ST}, s94, 0")
    for it in d0[2:6]: P.add(it)
    P.add(d0[1]); P(f"s_mov_b32 s{S_CJ}, s{S_CI}")
    s1_wq_addr(P, o)
    for it in d0[6:]: P.add(it)
    stamp(P, o, 'd0_issued')
    for it in dma_a(1): P.add(it)
    s1_read_addr(P, o)
    for it in dma_a(2): P.add(it)
    P.wait_vm('da0')
    P("s_barrier")
    stamp(P, o, 's1_first')
    P.add(reads_a(0))
    for c in range(4): H.put('m', merge_salu(dma_a(c + 3)), 12 * c + 9, 12 * c + 21)
    H.put('m', merge_salu([it for n in range(o.nba) for it in dma_b(n)]), 57, o.bq_end)
    for g in range(28):
        c, s = g >> 2, g & 3
        base = FR + 16 * (g & 1)
        if s == 3 and c < 6:
            P("s_waitcnt lgkmcnt(0)")
            P.wait_vm(f'da{c+1}')
            P("s_barrier")
            if o.trunc: stamp(P, o, f'a{c}')
        rd = reads_a(g + 1) if g < 27 else []
        per = [4, 3, 0] if s == 2 else [3, 2, 2]
        for t in range(3):
            P(mfma(ACC_Q + 16 * t, base + 4 * t, ('a', 4 * g), None if g == 0 else ACC_Q + 16 * t))
            P.add(rd[:per[t]]); rd = rd[per[t]:]
            P.add(H.emit(3 * g + t))
    P("s_waitcnt lgkmcnt(0)")
    P.wait_vm('db0')
    P("s_barrier")
    stamp(P, o, 'pass_a')
    P.add(reads_b(0))

def pass_b(P, o, H):
    for g in range(28):
        c, s = g >> 2, g & 3
        base = FR + 16 * (g & 1)
        if s == 3 and c < 6:
            P("s_waitcnt lgkmcnt(0)")
            P.wait_vm(f'db{c+1}')
            P("s_barrier")
            if o.trunc: stamp(P, o, f'b{c}')
        rd = reads_b(g + 1) if g < 27 else []
        per = [3, 3, 2, 0] if s == 2 else [2, 2, 2, 2]
        for t in range(4):
            P(mfma(ACC_F + 16 * t, base + 4 * t, ('a', 4 * g), ACC_F + 16 * t))
            P.add(rd[:per[t]]); rd = rd[per[t]:]
            P.add(H.emit(4 * g + t))

def qkv_epilogue(P, o, extra):
    c = (28.0 ** -0.5) * math.log2(math.e)
    P(f"s_mov_b32 s{S_T2}, {hex(f2u(c))}")
    for t in range(3):
        acc = ACC_Q + 16 * t
        P(f"s_cmp_lt_u32 s{S_B3}, {14 - t}")
        P(f"s_cbranch_scc0 L_nosc{t}")
        for i in range(8):
            P(f"v_pk_mul_f32 {vr(acc+2*i,2)}, {vr(acc+2*i,2)}, s[{S_T2}:{S_T3}] op_sel_hi:[1,0]")
        P(f"L_nosc{t}:")
        p = GT + 8 * t
        for i in range(8):
            if t == 0 and extra and i % 2 == 0: P.add(extra.pop(0))
            P(f"v_cvt_pk_bf16_f32 v{p+i}, v{acc+2*i}, v{acc+2*i+1}")
        while t == 0 and extra: P.add(extra.pop(0))
        for h in range(2):
            P(f"v_permlane32_swap_b32 v{p+4*h}, v{p+4*h+2}")
            P(f"v_permlane32_swap_b32 v{p+4*h+1}, v{p+4*h+3}")
        for h in range(2):
            off = t * 2048 + h * 1024
            P(f"buffer_store_dwordx4 {vr(p+4*h,4)}, v{V_L16H if off >= 4096 else V_L16}, {sr(SRD_WS,4)}, s{S_QST} offen offset:{off & 4095} {SC}", tag='qst')

def gelu_tile(F):
    u = ACC_F + 16 * F
    t = GT + 16 * (F & 1)
    L = []
    pr = lambda b, i: vr(b + 2 * i, 2)
    for i in range(8): L.append(f"v_pk_mul_f32 {pr(t,i)}, {pr(u,i)}, {pr(u,i)}")
    for i in range(8): L.append(f"v_pk_fma_f32 {pr(t,i)}, {pr(t,i)}, {vr(V_CA,2)}, {vr(V_CB,2)} op_sel_hi:[1,0,0]")
    for i in range(8): L.append(f"v_pk_mul_f32 {pr(t,i)}, {pr(t,i)}, {pr(u,i)}")
    for i in range(16): L.append(f"v_exp_f32 v{t+i}, v{t+i}")
    for i in range(8): L.append(f"v_pk_add_f32 {pr(t,i)}, {pr(t,i)}, 1.0 op_sel_hi:[1,0]")
    for i in range(16): L.append(f"v_rcp_f32 v{t+i}, v{t+i}")
    for i in range(8): L.append(f"v_pk_mul_f32 {pr(t,i)}, {pr(t,i)}, {pr(u,i)}")
    for i in range(8): L.append(f"v_cvt_pk_bf16_f32 v{t+i}, v{t+2*i}, v{t+2*i+1}")
    for h in range(2):
        off = (2 * F + h) * 1024
        L.append((f"buffer_store_dwordx4 {vr(t+4*h,4)}, v{V_L16H if off >= 4096 else V_L16}, {sr(SRD_WS,4)}, s{S_HST} offen offset:{off & 4095} {SC}", 'hst'))
    return L

def prep(P, o):
    T = V_T
    if o.stamps: P(f"v_mov_b32 v{V_ST}, 0")
    common2(P, o)
    srd_rest(P, [(SRD_WS, WS_SIZE)])
    P(f"v_lshlrev_b32 v{V_L128}, 7, v{V_LANE}")
    P(f"s_mov_b32 s{S_SPARE}, 1")
    P(f"s_lshl_b32 s{S_M4}, s{S_WAVE}, 12")
    P(f"v_lshrrev_b32 v{T}, 2, v{V_LANE}")
    P(f"s_lshl2_add_u32 s{S_T0}, s{S_R}, s{S_WAVE}")
    P(f"s_lshl_b32 s{S_T0}, s{S_T0}, 4")
    P(f"v_add_u32 v20, s{S_T0}, v{T}")
    P(f"v_mul_u32_u24 v{T}, 896, v20")
    P(f"v_and_b32 v{T+1}, 3, v{V_LANE}")
    P(f"v_lshlrev_b32 v{T+1}, 4, v{T+1}")
    P(f"v_add_u32 v{T}, v{T}, v{T+1}")
    P("s_waitcnt lgkmcnt(0)")
    if o.stamps: P(f"v_writelane_b32 v{V_ST}, s94, 0")
    P(f"s_load_dword s{S_TAG}, {sr(SRD_WS)}, {WS_E}")
    P(f"s_mov_b64 {sr(SRD_W2)}, {sr(S_W2)}")
    if o.pw:
        P(f"v_min_u32 v{T+2}, 27, v{V_LANE}")
        P(f"v_lshlrev_b32 v{T+2}, 7, v{T+2}")
        P(f"global_load_dword v176, v{T+2}, {sr(S_B1)}")
        P(f"v_lshlrev_b32 v{T+3}, 20, v{V_LANE}")
        P(f"buffer_load_dword v177, v{T+3}, {sr(SRD_WS,4)}, 0 offen")
        P(f"v_min_u32 v{T+2}, {6*128}, v{T+2}")
        P(f"global_load_dword v178, v{T+2}, {sr(S_B2)}")
        srd_rest(P, [(SRD_OUT, 2048*896)])
        P(f"buffer_load_dword v179, v{T+3}, {sr(SRD_OUT,4)}, 0 offen")
    if o.mw:
        srd_rest(P, [(SRD_W1, 448*3584), (SRD_W2, 1792*896), (SRD_WQ, 448*896)])
        P(f"s_mov_b64 {sr(SRD_WQ)}, {sr(S_WO)}")
        P(f"s_lshl2_add_u32 s{S_T0}, s{S_R}, s{S_WAVE}")
        P(f"s_lshl_b32 s{S_T0}, s{S_T0}, 13")
        P(f"s_add_u32 s{S_T1}, s{S_T0}, 0x100000")
        for i, (d, so) in enumerate(((SRD_W1, S_T0), (SRD_W1, S_T1), (SRD_W2, S_T0), (SRD_W2, S_T1), (SRD_WQ, S_T0))):
            P(f"buffer_load_dword v{180+i}, v{V_L128}, {sr(d,4)}, s{so} offen")
    def touches():
        for i in range(o.wsp):
            P(f"s_lshl2_add_u32 s{S_T4}, s{S_RBL}, s{S_WAVE}")
            P(f"s_add_u32 s{S_T4}, s{S_T4}, {16*i}")
            P(f"s_lshr_b32 s{S_T0}, s{S_T4}, 2")
            P(f"s_lshl_b32 s{S_T0}, s{S_T0}, 13")
            P(f"s_mul_i32 s{S_T1}, s{S_WAVE}, {448*896}")
            P(f"s_add_u32 s{S_T0}, s{S_T0}, s{S_T1}")
            P(f"s_add_u32 s{S_T0}, s{S_T0}, {128*896}")
            if 16 * i + 15 < 140:
                P(f"buffer_load_dword v{160+i}, v{V_L128}, {sr(SRD_W2,4)}, s{S_T0} offen")
            else:
                P(f"s_sub_u32 s{S_T1}, s{S_T4}, 140")
                P(f"s_cbranch_scc0 L_tw{i}")
                P(f"buffer_load_dword v{160+i}, v{V_L128}, {sr(SRD_W2,4)}, s{S_T0} offen")
                P(f"s_branch L_tj{i}")
                P(f"L_tw{i}:")
                P(f"s_lshl_b32 s{S_T1}, s{S_T1}, 13")
                P(f"buffer_load_dword v{190+i}, v{V_L128}, {sr(SRD_WQ,4)}, s{S_T1} offen")
                P(f"L_tj{i}:")
                P.L.append(Pseudo('drop_vm'))
        if o.fine:
            P("s_waitcnt vmcnt(0)"); stamp(P, o, 'p_warm')
    if o.wfirst: touches()
    for i in range(14):
        P(f"buffer_load_dwordx4 {vr(32+4*i,4)}, v{T}, {sr(SRD_X,4)}, 0 offen offset:{64*i}")
        P(f"global_load_dwordx4 {vr(96+4*i,4)}, v{T+1}, {sr(S_GW)} offset:{64*i}")
    P.add(TAGOPS)
    P("v_mov_b32 v24, 0")
    P("v_mov_b32 v25, 0")
    for i in range(56):
        P(f"v_dot2_f32_bf16 v{24+(i&1)}, v{32+i}, v{96+i}, v{24+(i&1)}")
    P("s_nop 2")
    P("v_add_f32 v24, v24, v25")
    P("v_add_f32_dpp v24, v24, v24 quad_perm:[1,0,3,2] row_mask:0xf bank_mask:0xf")
    P("v_add_f32_dpp v24, v24, v24 quad_perm:[2,3,0,1] row_mask:0xf bank_mask:0xf")
    P(f"v_mul_f32 v24, {hex(f2u(-math.log2(math.e)))}, v24")
    P("v_exp_f32 v24, v24")
    P("v_add_f32 v24, 1.0, v24")
    P("v_rcp_f32 v24, v24")
    P(f"v_lshlrev_b32 v20, 2, v20")
    P(f"v_and_b32 v25, 3, v{V_LANE}")
    P(f"v_cmp_eq_u32 vcc, 0, v25")
    P(f"v_mov_b32 v27, 0x7fff0000")
    P(f"v_cndmask_b32 v20, v27, v20, vcc")
    P(f"s_mov_b32 s{S_T0}, {G_OFF}")
    P(f"buffer_store_dword v24, v20, {sr(SRD_WS,4)}, s{S_T0} offen {SC}")
    P("s_waitcnt vmcnt(0) lgkmcnt(0)")
    P("s_barrier")
    P(f"s_lshl_b32 s{S_T0}, s{S_R}, 7")
    P(f"s_add_u32 s{S_T0}, s{S_T0}, {FL_G}")
    P(f"s_cmp_eq_u32 s{S_WAVE}, 0")
    P("s_cbranch_scc0 L_prep_nf")
    P.add(flag_store(S_T0))
    P("L_prep_nf:")
    stamp(P, o, 'p_flag')
    if not o.wfirst: touches()

AQ = 16
AK = 24
AV = 40
AS = 56
AN = 104
AO = 120
AP = 136
AM = 236
A_KR, A_VR = 244, 245
A_KD, A_VD = 247, 248
A_PA, A_PV = 250, 251
A_G = 254
A_MX = 5

def att_scalars(P, o):
    P(f"s_and_b32 s{S_ARB}, s{S_SLOT}, 15")
    P(f"s_lshr_b32 s{S_J}, s{S_SLOT}, 4")
    P(f"s_lshl1_add_u32 s{S_J}, s{S_XCD}, s{S_J}")
    P(f"s_lshl2_add_u32 s{S_ATB}, s{S_ARB}, s{S_WAVE}")
    P(f"s_and_b32 s{S_PAR}, s{S_J}, 1")
    P(f"s_lshl4_add_u32 s{S_T0}, s{S_ATB}, s{S_J}")
    P(f"s_lshl_b32 s{S_T0}, s{S_T0}, 7")
    P(f"s_add_u32 s{S_OFL}, s{S_T0}, {FL_O}")
    P(f"s_mul_i32 s{S_T2}, s{S_ATB}, {A_TB}")
    P(f"s_lshl_b32 s{S_T3}, s{S_J}, 11")
    P(f"s_add_u32 s{S_T2}, s{S_T2}, s{S_T3}")
    P(f"s_add_u32 s{S_OST}, s{S_T2}, {A_OFF + 112*1024}")

def att_poll_addr(P, o):
    T = V_T
    P(f"v_min_u32 v{T}, 13, v{V_LANE}")
    P(f"v_lshrrev_b32 v{T+1}, 1, v{T}")
    P(f"v_and_b32 v{T}, 1, v{T}")
    P(f"s_mul_i32 s{S_T0}, s{S_J}, 7")
    P(f"s_lshr_b32 s{S_T0}, s{S_T0}, 1")
    P(f"s_lshl_b32 s{S_T0}, s{S_T0}, 3")
    P(f"v_mad_u32_u24 v{T}, v{T}, 31, s{S_T0}")
    P(f"v_mov_b32 v{T+2}, 896")
    P(f"v_mov_b32 v{T+3}, 448")
    P(f"v_subrev_u32 v{T+4}, 3, v{T+1}")
    P(f"v_cmp_gt_u32 vcc, 3, v{T+1}")
    P(f"v_cndmask_b32 v{T+2}, v{T+2}, v{T+3}, vcc")
    P(f"v_cndmask_b32 v{T+3}, v{T+4}, v{T+1}, vcc")
    P(f"s_mul_i32 s{S_T1}, s{S_WAVE}, 3")
    P(f"s_lshl2_add_u32 s{S_T1}, s{S_ARB}, s{S_T1}")
    P(f"s_sub_u32 s{S_T1}, s{S_T1}, 8")
    P(f"v_add_u32 v{T+3}, s{S_T1}, v{T+3}")
    P(f"v_max_i32 v{T+3}, 0, v{T+3}")
    P(f"v_mov_b32 v{T+4}, s{S_ATB}")
    P(f"v_cmp_eq_u32 vcc, 6, v{T+1}")
    P(f"v_cndmask_b32_e64 v{T+2}, v{T+2}, 0, vcc")
    P(f"v_cndmask_b32 v{T+3}, v{T+3}, v{T+4}, vcc")
    P(f"v_add_u32 v{T}, v{T}, v{T+2}")
    P(f"v_mul_u32_u24 v{T}, 683, v{T}")
    P(f"v_lshrrev_b32 v{T}, 16, v{T}")
    P(f"v_lshl_add_u32 v{T}, v{T+3}, 4, v{T}")
    P(f"v_lshlrev_b32 v{T}, 7, v{T}")
    P(f"v_add_u32 v{V_PA}, {FL_QKV}, v{T}")

def gate_flags(P, o, reg):
    P(f"s_lshr_b32 s{S_T0}, s{S_ATB}, 1")
    P(f"s_lshl_b32 s{S_T0}, s{S_T0}, 7")
    P(f"s_add_u32 s{S_T0}, s{S_T0}, {FL_G}")
    P(f"s_lshl_b32 s{S_T1}, s{S_R}, 7")
    P(f"s_add_u32 s{S_T1}, s{S_T1}, {FL_G}")
    P(f"v_writelane_b32 v{reg}, s{S_T0}, 14")
    P(f"v_writelane_b32 v{reg}, s{S_T1}, 15")

def att_addr(P, o):
    T = V_T
    P(f"s_mul_i32 s{S_T0}, s{S_J}, 7")
    P(f"s_lshr_b32 s{S_T0}, s{S_T0}, 1")
    P(f"s_lshl_b32 s{S_T4}, s{S_T0}, 9")
    P(f"s_add_u32 s{S_T1}, s{S_T4}, {56*512}")
    P(f"v_add_u32 v{A_KD}, s{S_T1}, v{V_L16}")
    P(f"v_lshrrev_b32 v{T}, 5, v{V_LANE}")
    P(f"v_and_b32 v{T+1}, 31, v{V_LANE}")
    P(f"s_add_u32 s{S_T1}, s{S_T4}, {112*512 - 2048}")
    P(f"v_lshlrev_b32 v{T+2}, 2, v{T}")
    P(f"v_xor_b32 v{T+2}, v{T+2}, v{T+1}")
    P(f"v_lshlrev_b32 v{T+2}, 4, v{T+2}")
    P(f"v_lshl_add_u32 v{T+2}, v{T}, 9, v{T+2}")
    P(f"v_add_u32 v{A_VD}, s{S_T1}, v{T+2}")
    P(f"v_xor_b32 v{A_VD+1}, 128, v{A_VD}")
    P(f"v_add_u32 v{A_KR}, s{S_M4}, v{V_L16}")
    P(f"v_bfe_u32 v{T+1}, v{V_LANE}, 4, 1")
    P(f"v_bfe_u32 v{T+2}, v{V_LANE}, 1, 1")
    P(f"v_lshl_add_u32 v{T+3}, v{T+1}, 1, v{T+2}")
    P(f"v_lshlrev_b32 v{T+4}, 9, v{T+3}")
    P(f"v_xor_b32 v{T+3}, v{T+3}, v{T}")
    P(f"v_lshl_add_u32 v{T+4}, v{T+3}, 6, v{T+4}")
    P(f"v_bfe_u32 v{T+3}, v{V_LANE}, 2, 2")
    P(f"v_lshl_add_u32 v{T+4}, v{T+3}, 4, v{T+4}")
    P(f"v_and_b32 v{T+3}, 1, v{V_LANE}")
    P(f"v_lshl_add_u32 v{T+4}, v{T+3}, 3, v{T+4}")
    P(f"s_add_u32 s{S_T1}, s{S_M4}, 2048")
    P(f"v_add_u32 v{A_VR}, s{S_T1}, v{T+4}")
    P(f"v_xor_b32 v{A_VR+1}, 128, v{A_VR}")
    P(f"v_and_b32 v{T+1}, 31, v{V_LANE}")
    P(f"v_mul_u32_u24 v{T+2}, 12, v{T}")
    P(f"s_cmp_eq_u32 s{S_PAR}, 0")
    P(f"s_cselect_b32 s{S_T1}, -1, 0")
    P(f"s_cselect_b32 s{S_T2}, 1544, 0")
    P(f"v_and_b32 v{T+2}, s{S_T1}, v{T+2}")
    P(f"v_xor_b32 v{T+1}, v{T+1}, v{T+2}")
    P(f"v_lshlrev_b32 v{T+1}, 4, v{T+1}")
    P(f"v_lshl_add_u32 v{T+1}, v{T}, 11, v{T+1}")
    P(f"s_mul_i32 s{S_T3}, s{S_WAVE}, {3*4096}")
    P(f"s_add_u32 s{S_T2}, s{S_T2}, s{S_T3}")
    P(f"v_add_u32 v{A_PA}, s{S_T2}, v{T+1}")
    P(f"s_mul_i32 s{S_T1}, s{S_WAVE}, 3")
    P(f"s_lshl2_add_u32 s{S_T1}, s{S_ARB}, s{S_T1}")
    P(f"v_mov_b32 v{T+1}, 0x3f80")
    for k in range(3):
        P(f"s_add_u32 s{S_T2}, s{S_T1}, {k}")
        P(f"s_cmp_lt_u32 s{S_T2}, 8")
        P(f"s_cselect_b32 s{S_T2}, 0xf14a, 0")
        P(f"v_mov_b32 v{A_PV+k}, s{S_T2}")
    P(f"v_cmp_gt_u32 vcc, 32, v{V_LANE}")
    for k in range(3): P(f"v_cndmask_b32 v{A_PV+k}, v{T+1}, v{A_PV+k}, vcc")

def att_masks(P, o):
    T = V_T
    P(f"v_lshrrev_b32 v{T+1}, 5, v{V_LANE}")
    P(f"v_mul_u32_u24 v{T+1}, 36, v{T+1}")
    P(f"v_sub_u32 v{T+1}, v{V_LANE}, v{T+1}")
    for r in range(16):
        P(f"v_cmp_le_i32_e64 {sr(S_MASK+2*r)}, {(r & 3) + 8 * (r >> 2)}, v{T+1}")
    P(f"v_mov_b32 v{T+1}, 0xffff")
    P(f"v_mov_b32 v{T+2}, 0xffff0000")
    for i in range(8):
        P(f"v_cndmask_b32_e64 v{T+3}, 0, v{T+1}, {sr(S_MASK+4*i)}")
        P(f"v_cndmask_b32_e64 v{T+4}, 0, v{T+2}, {sr(S_MASK+4*i+2)}")
        P(f"v_or_b32 v{AM+i}, v{T+3}, v{T+4}")

def att_kvoff(P, o):
    P(f"s_mul_i32 s{S_T1}, s{S_WAVE}, 3")
    P(f"s_lshl2_add_u32 s{S_T1}, s{S_ARB}, s{S_T1}")
    for k in range(3):
        P(f"s_add_i32 s{S_T2}, s{S_T1}, {k-8}")
        P(f"s_max_i32 s{S_T2}, s{S_T2}, 0")
        P(f"s_mul_i32 s{S_T2}, s{S_T2}, {QKV_TB}")
        P(f"s_add_u32 s{S_KV[k]}, s{S_T2}, {QKV_OFF}")
    P(f"s_mul_i32 s{S_T0}, s{S_J}, 7")
    P(f"s_lshr_b32 s{S_T0}, s{S_T0}, 1")
    P(f"s_lshl_b32 s{S_T0}, s{S_T0}, 9")
    P(f"s_mul_i32 s{S_T2}, s{S_ATB}, {QKV_TB}")
    P(f"s_add_u32 s{S_T2}, s{S_T2}, s{S_T0}")
    P(f"s_add_u32 s{S_KV[3]}, s{S_T2}, {QKV_OFF}")

def att_loads(o, last_g=True):
    T = V_T
    L = [[f"s_mul_i32 s{S_T3}, s{S_WAVE}, {3*4096}"]]
    for k in range(3):
        g = [f"s_add_u32 m0, s{S_T3}, {LKV + k*4096}"]
        for t in range(2):
            g.append((f"buffer_load_dwordx4 v{A_KD}, {sr(SRD_WS,4)}, s{S_KV[k]} offen offset:{t*1024} {SC} lds", 'kv'))
        for t in range(2):
            g.append((f"buffer_load_dwordx4 v{A_VD+t}, {sr(SRD_WS,4)}, s{S_KV[k]} offen offset:{2048+t*1024} {SC} lds", 'kv'))
        L += [[x] for x in g]
    for t in range(2):
        L.append([f"buffer_load_dwordx4 {vr(AQ+4*t,4)}, v{V_L16}, {sr(SRD_WS,4)}, s{S_KV[3]} offen offset:{t*1024} {SC}"])
    G = [f"v_and_b32 v{T+1}, 31, v{V_LANE}", f"v_lshlrev_b32 v{T+1}, 2, v{T+1}",
         f"s_lshl_b32 s{S_T2}, s{S_ATB}, 7", f"s_add_u32 s{S_T2}, s{S_T2}, {G_OFF}",
         f"buffer_load_dword v{A_G}, v{T+1}, {sr(SRD_WS,4)}, s{S_T2} offen {SC}"]
    if last_g:
        G += [f"s_and_b32 s{S_T1}, s{S_WAVE}, 1", f"s_lshl_b32 s{S_T0}, s{S_R}, 8", f"s_add_u32 s{S_T0}, s{S_T0}, {G_OFF}",
              f"s_lshl_b32 s{S_T2}, s{S_T1}, 7", f"s_xor_b32 s{S_T3}, s{S_T2}, 128", f"s_add_u32 s{S_T2}, s{S_T2}, s{S_T0}",
              f"s_add_u32 s{S_T3}, s{S_T3}, s{S_T0}",
              f"buffer_load_dword v{L_G}, v{T+1}, {sr(SRD_WS,4)}, s{S_T3} offen {SC}",
              f"buffer_load_dword v{L_G+1}, v{T+1}, {sr(SRD_WS,4)}, s{S_T2} offen {SC}"]
    return L + [[x] for x in G]

def att_patch():
    T = V_T
    L = [[WVM('kv')]]
    L += [[f"ds_write_b16 v{A_PA}, v{A_PV+k} offset:{LKV + k*4096}"] for k in range(3)]
    L += [[f"s_cmp_eq_u32 s{S_PAR}, 0\ns_cselect_b32 s{S_T0}, 0, -1\ns_cselect_b32 s{S_T3}, -1, 0"],
          [f"s_mov_b32 s{S_T1}, 0"], [f"s_mov_b32 s{S_T2}, 0"], [f"v_mov_b32 v{T}, 0x3f80"],
          [f"v_cndmask_b32_e64 v{AQ}, v{AQ}, v{T}, {sr(S_T0)}"], [f"v_cndmask_b32_e64 v{AQ+1}, v{AQ+1}, 0, {sr(S_T0)}"],
          [f"v_cndmask_b32_e64 v{AQ+6}, v{AQ+6}, v{T}, {sr(S_T2)}"], [f"v_cndmask_b32_e64 v{AQ+7}, v{AQ+7}, 0, {sr(S_T2)}"]]
    return L

ORDER = [0, 8, 1, 2, 3, 4, 5, 6, 7]
def kread(i, buf):
    return [f"ds_read_b128 {vr(AK+8*buf+4*t,4)}, v{A_KR} offset:{LKV + i*4096 + t*1024}" for t in range(2)]
def vread(i, buf):
    return [f"ds_read_b64_tr_b16 {vr(AV+8*buf+4*t+2*rho,2)}, v{A_VR+rho} offset:{LKV + i*4096 + t*256}" for t in range(2) for rho in range(2)]

def attention(P, o, hooks, kpre=False):
    T = V_T
    order = ORDER
    stamp(P, o, 'att_go')
    gi = [0]
    def hk():
        gi[0] += 1
        return [Slot(f'a{gi[0] - 1}')] if hooks is None else []
    if not kpre: P.add(kread(order[0], 0)); P.add(kread(order[1], 1))
    SM = AS + 16
    buf1 = [AS, SM, AS + 32, AO, AS, AS + 32, AO, AS, AS + 32]
    def qkx(s, kbuf, c): return [mfma(s, AK + 8 * kbuf, AQ, c), mfma(s, AK + 8 * kbuf + 4, AQ + 4, s)]
    def maxops(s, first=False):
        return [f"v_max_f32 v{A_MX}, v{s}, v{s+1}" if (first and i == 0) else f"v_max3_f32 v{A_MX}, v{s+2*i}, v{s+2*i+1}, v{A_MX}" for i in range(8)]
    merge = [f"v_cndmask_b32_e64 v{SM+r}, v{AS+r}, v{SM+r}, {sr(S_MASK+2*r)}" for r in range(16)]
    for n in range(9):
        m = qkx(buf1[n], n & 1, None)
        post = []
        if n == 3: post = merge
        if n == 4: post = maxops(SM, True) + maxops(buf1[2])
        if n >= 5: post = maxops(buf1[n - 2])
        nxt = kread(order[n + 2 if n + 2 < 9 else n - 5], n & 1)
        h = len(post) // 2
        P.add([m[0]] + hk() + post[:h] + [m[1]] + nxt + (vread(0, 0) + vread(8, 1) if n == 8 else []) + hk() + post[h:])
    P.add(maxops(buf1[7]))
    P.add(maxops(buf1[8]))
    P(f"v_mov_b32 v{T}, v{A_MX}")
    P(f"v_permlane32_swap_b32 v{A_MX}, v{T}")
    P(f"v_max_f32 v{A_MX}, v{A_MX}, v{T}")
    P(f"v_sub_f32 v{AN}, 0, v{A_MX}")
    P(f"v_sub_f32 v{AN+1}, 0, v{A_MX}")
    for i in range(1, 8): P(f"v_mov_b64 {vr(AN+2*i,2)}, {vr(AN,2)}")
    stamp(P, o, 'att_p1')
    kb = lambda n: (n + 1) & 1
    buf2 = lambda n: AS + 16 * [0, 2, 1][(n - 2) % 3]
    def expcvt(s, p):
        L = []
        for i in range(8):
            L += [f"v_exp_f32 v{s+2*i}, v{s+2*i}", f"v_exp_f32 v{s+2*i+1}, v{s+2*i+1}"]
            if i >= 1: L.append(f"v_cvt_pk_bf16_f32 v{p+i-1}, v{s+2*i-2}, v{s+2*i-1}")
        L.append(f"v_cvt_pk_bf16_f32 v{p+7}, v{s+14}, v{s+15}")
        return L
    def pv(p, vbuf, first=False):
        return [mfma(AO, AV + 8 * vbuf, p, None if first else AO), mfma(AO, AV + 8 * vbuf + 4, p + 4, AO)]
    m2 = qkx(buf2(2), kb(2), AN); m3 = qkx(buf2(3), kb(3), AN)
    sub = [f"v_sub_f32 v{SM+r}, v{SM+r}, v{A_MX}" for r in range(16)]
    ec = expcvt(SM, AP)
    sp = []
    for i in range(8):
        sp += [f"v_and_b32 v{AP+8+i}, v{AP+i}, v{AM+i}", f"v_xor_b32 v{AP+16+i}, v{AP+i}, v{AP+8+i}"]
    P.add([m2[0]] + hk() + sub[:8] + [m2[1]] + kread(order[4], kb(4)) + hk() + sub[8:] + [m3[0]] + hk() + ec[:5] +
          [m3[1]] + kread(order[5], kb(5)) + hk() + ec[5:] + sp)
    pend = pv(AP + 16, 0, True) + pv(AP + 8, 1)
    pend_rd = vread(order[2], 0) + vread(order[3], 1)
    for n in range(2, 9):
        p = AP + 16 if n == 3 else (AP if (n & 1) == 0 else AP + 8)
        ec = expcvt(buf2(n), p)
        mq = qkx(buf2(n + 2), kb(n + 2), AN) if n + 2 < 9 else []
        kr = kread(order[n + 4], kb(n + 4)) if n + 4 < 9 else []
        ms = pend + mq
        seq = []
        k = len(ms)
        step = max(1, len(ec) // max(k, 1))
        ei = 0
        for j, mm in enumerate(ms):
            seq.append(mm)
            if j == len(pend) - 1: seq += pend_rd
            if j == k - 1 and mq: seq += kr
            seq += hk()
            take = ec[ei:ei + step] if j < k - 1 else ec[ei:]
            seq += take; ei += len(take)
        P.add(seq)
        vb = n & 1
        pend = pv(p, vb)
        pend_rd = vread(order[n + 2], vb) if n + 2 < 9 else []
    P.add([pend[0]] + hk() + [pend[1]] + hk())
    stamp(P, o, 'att_p2')

def att_epilogue(P, o):
    T = V_T
    P(f"s_cmp_eq_u32 s{S_PAR}, 0")
    P(f"s_cselect_b64 {sr(S_T0)}, -1, 0")
    P(f"s_cselect_b32 s{S_MASK}, 0, -1")
    P(f"s_cselect_b32 s{S_MASK+3}, -1, 0")
    P(f"s_mov_b32 s{S_MASK+1}, 0")
    P(f"s_mov_b32 s{S_MASK+2}, 0")
    P(f"v_cndmask_b32_e64 v{T}, v{AO}, v{AO+12}, {sr(S_T0)}")
    P(f"v_mov_b32 v{T+1}, v{T}")
    P(f"v_permlane32_swap_b32 v{T}, v{T+1}")
    P(f"v_cndmask_b32_e64 v{T}, v{T}, v{T+1}, {sr(S_T0)}")
    P(f"v_rcp_f32 v{T}, v{T}")
    P(f"v_mul_f32 v{T+1}, v{T}, v{A_G}")
    for t in range(2):
        for i in range(8 * t, 8 * t + 8): P(f"v_mul_f32 v{AO+i}, v{T+1}, v{AO+i}")
        for i in range(4 * t, 4 * t + 4): P(f"v_cvt_pk_bf16_f32 v{AP+i}, v{AO+2*i}, v{AO+2*i+1}")
        for r in ((0, 1), (6, 7))[t]: P(f"v_cndmask_b32_e64 v{AP+r}, v{AP+r}, 0, {sr(S_MASK + 2*t)}")
        P(f"buffer_store_dwordx4 {vr(AP+4*t,4)}, v{V_L16}, {sr(SRD_WS,4)}, s{S_OST} offen offset:{t*1024} {SC}", tag='ost')

LACC = 16
EARLY = [('a', r) for r in range(32, 112, 4)] + list(range(160, 200, 4)) + list(range(204, 216, 4))
LATE = list(range(80, 120, 4)) + list(range(144, 160, 4)) + list(range(236, 252, 4)) + list(range(120, 144, 4))

def last_baddr(P, o):
    T = V_T
    P(f"s_mov_b64 {sr(SRD_W2)}, {sr(S_W2)}")
    srd_rest(P, [(SRD_W2, 1792*896)])
    P(f"s_mul_i32 s{S_BOF}, s{S_WAVE}, {448*896}")
    P(f"s_lshl_b32 s{S_T3}, s{S_C}, 7")
    P(f"s_add_u32 s{S_BOF}, s{S_BOF}, s{S_T3}")
    if ROT[0]:
        P(f"s_add_u32 s{S_AG}, s{S_C}, s{S_RBL}")
        if o.rcls == 2: P(f"s_and_b32 s{S_AG}, s{S_AG}, 1")
        else:
            P(f"s_lshl_b32 s{S_AG}, s{S_AG}, 1")
            P(f"s_lshr_b32 s{S_AG}, 0x24924, s{S_AG}")
            P(f"s_and_b32 s{S_AG}, s{S_AG}, 3")
        P(f"s_mul_i32 s{S_AG}, s{S_AG}, {ROT[0]}")
        P(f"s_lshl_b32 s{S_BG}, s{S_AG}, 1")
        P(f"s_mul_i32 s{S_T3}, s{S_AG}, {64*896}")
        P(f"s_add_u32 s{S_BOF}, s{S_BOF}, s{S_T3}")
    P(f"v_lshrrev_b32 v{T}, 3, v{V_LANE}")
    P(f"v_bfe_u32 v{T+1}, v{V_LANE}, 4, 1")
    P(f"v_lshlrev_b32 v{T+1}, 2, v{T+1}")
    P(f"v_xor_b32 v{T+1}, v{T+1}, v{V_LANE}")
    P(f"v_and_b32 v{T+1}, 7, v{T+1}")
    P(f"v_mul_u32_u24 v{T}, 896, v{T}")
    P(f"v_lshl_add_u32 v{V_BA}, v{T+1}, 4, v{T}")
    for i in range(1, 4): P(f"v_add_u32 v{V_BA+i}, {i*(8*896-1024)}, v{V_BA}")
    P(f"v_bfe_u32 v{T}, v{V_LANE}, 2, 2")
    P(f"v_lshrrev_b32 v{T+1}, 5, v{V_LANE}")
    P(f"v_lshl_add_u32 v{T+1}, v{T+1}, 2, v{T}")
    P(f"v_lshlrev_b32 v{T+1}, 7, v{T+1}")
    P(f"v_bfe_u32 v{T+2}, v{V_LANE}, 4, 1")
    P(f"v_lshl_add_u32 v{T+1}, v{T+2}, 5, v{T+1}")
    P(f"v_and_b32 v{T+2}, 3, v{V_LANE}")
    P(f"v_lshl_add_u32 v{T+1}, v{T+2}, 3, v{T+1}")
    P(f"v_lshrrev_b32 v{T}, 1, v{T}")
    P(f"v_lshl_add_u32 v{T}, v{T}, 6, v{T+1}")
    P(f"v_add_u32 v{T}, s{S_M4}, v{T}")
    P(f"s_lshr_b32 s{S_T0}, s{S_WAVE}, 1")
    P(f"s_lshl_b32 s{S_T0}, s{S_T0}, 6")
    P(f"v_xor_b32 v{V_BR[0][1]}, s{S_T0}, v{T}")
    P(f"v_xor_b32 v{V_BR[0][0]}, 64, v{V_BR[0][1]}")
    for k in range(2): P(f"v_add_u32 v{V_BR[1][k]}, 0x10000, v{V_BR[0][k]}")

V_AT = 201
def last_baddr2(P, o):
    P(f"v_lshrrev_b32 v{V_T}, 5, v{V_LANE}")
    P(f"v_mul_u32_u24 v{V_T}, {A_TB - 4096}, v{V_T}")
    P(f"v_lshl_add_u32 v{V_T}, v{V_LANE}, 7, v{V_T}")
    P(f"s_lshl_b32 s{S_T0}, s{S_C}, 12")
    P(f"v_add_u32 v{V_AT}, s{S_T0}, v{V_T}")
    for k in range(2): P(f"v_add_u32 v{V_BR[2][k]}, 0x20000, v{V_BR[0][k]}")

def last_setup(P, o):
    T = V_T
    P(f"s_lshl_b32 s{S_T0}, s{S_C}, 7")
    P(f"v_and_b32 v{T}, 31, v{V_LANE}")
    P(f"v_lshl_add_u32 v{T+1}, v{T}, 2, s{S_T0}")
    P(f"global_load_dword v{V_DUM}, v{T+1}, {sr(S_B2)}")
    P(f"s_and_b32 s{S_T1}, s{S_WAVE}, 1")
    P(f"s_mul_i32 s{S_T2}, s{S_T1}, {A_TB}")
    P(f"s_sub_u32 s{S_T3}, {A_TB}, s{S_T2}")
    P(f"v_add_u32 v{V_AA}, s{S_T3}, v{V_L16}")
    P(f"v_add_u32 v{V_AA+1}, s{S_T2}, v{V_L16}")
    P(f"v_and_b32 v{T+1}, 1, v{V_LANE}")
    P(f"s_lshl_b32 s{S_T0}, s{S_R}, 1")
    P(f"v_add_u32 v{T+1}, s{S_T0}, v{T+1}")
    P(f"v_lshlrev_b32 v{T+1}, 4, v{T+1}")
    P(f"v_bfe_u32 v{T+2}, v{V_LANE}, 1, 2")
    P(f"v_add_u32 v{T+1}, v{T+1}, v{T+2}")
    P(f"v_lshlrev_b32 v{T+1}, 7, v{T+1}")
    P(f"s_mul_i32 s{S_T0}, s{S_WAVE}, 7")
    P(f"s_lshr_b32 s{S_T0}, s{S_T0}, 1")
    P(f"s_lshl_b32 s{S_T0}, s{S_T0}, 7")
    P(f"s_add_u32 s{S_T0}, s{S_T0}, {FL_H}")
    P(f"v_add_u32 v{V_PH}, s{S_T0}, v{T+1}")
    P(f"s_lshl_b32 s{S_T0}, s{S_WAVE}, 9")
    P(f"s_add_u32 s{S_T0}, s{S_T0}, {FL_O}")
    P(f"v_add_u32 v{V_PO}, s{S_T0}, v{T+1}")
    for d in range(1, 4):
        P(f"s_xor_b32 s{S_T0}, s{S_WAVE}, {d}")
        P(f"s_lshl_b32 s{S_T0}, s{S_T0}, 12")
        P(f"s_add_u32 s{S_T0}, s{S_T0}, {LP[d]}")
        P(f"v_add_u32 v{L_RW+d-1}, s{S_T0}, v{V_L16}")
    P(f"s_add_u32 s{S_T0}, s{S_M4}, {LP[1]}")
    P(f"v_add_u32 v{L_RR}, s{S_T0}, v{V_L16}")
    P(f"s_lshl_b32 s{S_T0}, s{S_R}, 6")
    P(f"s_lshl_b32 s{S_T2}, s{S_T1}, 5")
    P(f"s_add_u32 s{S_T0}, s{S_T0}, s{S_T2}")
    P(f"v_add_u32 v{T+1}, s{S_T0}, v{T}")
    P(f"v_mul_u32_u24 v{T+1}, 896, v{T+1}")
    P(f"v_lshrrev_b32 v{T+2}, 5, v{V_LANE}")
    P(f"v_lshl_add_u32 v{T+1}, v{T+2}, 4, v{T+1}")
    P(f"s_lshl_b32 s{S_T0}, s{S_C}, 7")
    P(f"s_lshr_b32 s{S_T2}, s{S_WAVE}, 1")
    P(f"s_lshl_b32 s{S_T2}, s{S_T2}, 6")
    P(f"s_add_u32 s{S_T0}, s{S_T0}, s{S_T2}")
    P(f"v_add_u32 v{L_OA}, s{S_T0}, v{T+1}")

def last_soff(P, o):
    P(f"s_mul_i32 s{S_T0}, s{S_R}, {2*A_TB}")
    P(f"s_add_u32 s{S_T0}, s{S_T0}, {A_OFF}")
    P(f"s_lshl_b32 s{S_T2}, s{S_WAVE}, 13")
    P(f"s_add_u32 s{S_AO2}, s{S_T0}, s{S_T2}")
    P(f"s_add_u32 s{S_AO2}, s{S_AO2}, {112*1024}")
    P(f"s_mul_i32 s{S_T2}, s{S_WAVE}, {28*1024}")
    P(f"s_add_u32 s{S_AOF}, s{S_T0}, s{S_T2}")
    if ROT[0]:
        P(f"s_lshl_b32 s{S_T2}, s{S_AG}, 12")
        P(f"s_add_u32 s{S_AOF}, s{S_AOF}, s{S_T2}")
    P(f"s_mov_b64 {sr(SRD_WO)}, {sr(S_WO)}")
    P(f"s_mov_b32 s{SRD_WO+2}, {448*896}")
    P(f"s_mul_i32 s{S_BO}, s{S_WAVE}, {112*896}")
    P(f"s_lshl_b32 s{S_T3}, s{S_C}, 7")
    P(f"s_add_u32 s{S_BO}, s{S_BO}, s{S_T3}")

def bias2(P, o):
    P(f"s_add_u32 s{S_T0}, s{S_M4}, {LP[PIECE[11]]}")
    bias_expand(P, V_DUM, 12, L_BA, S_T0)
    P(f"s_lshr_b32 s{S_T2}, s{S_WAVE}, 1")
    P(f"s_lshl_b32 s{S_T2}, s{S_T2}, 7")
    P(f"v_add_u32 v{L_BA}, s{S_T2}, v{L_BA}")
    P(f"v_sub_f32 v{L_G}, 1.0, v{L_G}")
    P(f"v_sub_f32 v{L_G+1}, 1.0, v{L_G+1}")

def a_slots(o):
    ne = o.nearly * 2
    sl = EARLY[:ne] + LATE + EARLY[ne:]
    ring = len(sl) // 2 * 2
    return [sl[i % ring] for i in range(72)], ring // 2

def a_load(o, n):
    sl, _ = a_slots(o)
    so, m = (S_AOF, n) if n < 28 else (S_AO2, n - 28)
    L = [rot_step(so, S_AG, 4096, 7) if (ROT[0] and n < 28) else f"s_add_u32 s{so}, s{so}, 4096"] if (m and m % 4 == 0) else []
    for ttl in range(2):
        L.append((f"buffer_load_dwordx4 {xr(sl[2*n+ttl])}, v{V_AA+ttl}, {sr(SRD_WS,4)}, s{so} offen offset:{(m&3)*1024} {SC}", 'ald'))
    return L

def last(P, o):
    q = lambda ttl, ctl: LACC + 32 * ttl + 16 * ctl
    sl, depth = a_slots(o)
    mm = lambda n, ttl, ctl: mfma(q(ttl, ctl), breg(n, ctl), sl[2 * n + ttl], None if n == 0 else q(ttl, ctl))
    assert o.nearly > 0 and PIECE[11] not in (1, 2, 3)
    nxt = o.nearly
    D = Prog(); att_epilogue(D, o); epi = atomic_groups(D.L)
    if not o.epin:
        for g in epi: P.add(g)
        epi = []
        while nxt < max(o.lead, o.nearly): P.add(a_load(o, nxt)); nxt += 1
    EP = {}
    if epi: spread(EP, epi, list(range(o.epin)), False)
    stamp(P, o, 'last_go')
    opolled = False
    ol = lambda m, ttl: [(f"buffer_load_dwordx4 {xr(sl[2*(28+m)+ttl])}, v{V_AA+ttl}, {sr(SRD_WS,4)}, s{S_AO2 if m < 4 else S_BO} offen offset:{(m&3)*1024} {SC}", 'ald')]
    oq = [ol(m, ttl) for ttl in range(2) for m in range(8)]
    oq[0] = [f"s_add_u32 s{S_BO}, s{S_AO2}, 4096"] + oq[0]
    assert depth >= 36 - o.ocheck_at and not o.left
    sc = lambda ttl, ctl: [f"v_mul_f32 v{q(ttl,ctl)+i}, v{L_G+ttl}, v{q(ttl,ctl)+i}" for i in range(16)]
    D = Prog(); bias2(D, o); b2l = [[x] for x in D.L]
    for n in range(28):
        M = [mm(n, ttl, ctl) for ttl in range(2) for ctl in range(2)]
        ex = []; cnt = 0
        top = (36 if opolled else 28)
        if o.left and n < o.left_steps:
            k = -(-len(o.left) // (o.left_steps - n)); ex += o.left[:k]; o.left = o.left[k:]
        while nxt < min(n + min(depth, o.lead + 1), 28) and cnt < 2:
            ex += merge_salu([[e] for e in a_load(o, nxt)]); nxt += 1; cnt += 1
        if opolled and oq:
            k = -(-len(oq) // max(1, o.oend - n)); ex += oq[:k]; oq = oq[k:]
        if o.jit0 <= n < o.jit0 + 14 and not o.drop & 32:
            k = n - o.jit0 + 22
            ex += [[WVM(f'bp{k >> 1}')] + b_reads(k)[:2], b_reads(k)[2:]]
        if o.jit0 + 3 <= n < o.jit0 + 6: ex += b2l[((n - o.jit0 - 3) * len(b2l)) // 3:((n - o.jit0 - 2) * len(b2l)) // 3]
        if n == o.oflag_at and o.nearly > 0:
            D0 = Prog(); D1 = Prog()
            if o.fine: stamp(D0, o, 'of0'); stamp(D1, o, 'of1')
            ex = ex + [D0.L + [WVM('ost')] + D1.L + flag_store(S_OFL)]
        if n == o.opoll_at: ex += [poll_issue(V_PO)]
        if n == o.ocheck_at:
            D0 = Prog(); D1 = Prog()
            if o.fine: stamp(D0, o, 'oc0'); stamp(D1, o, 'oc1')
            ex = [D0.L + poll_check(V_PO) + D1.L] + ex; opolled = True
        if o.hst and n % 4 == 0 and n: stamp(P, o, f'h{n}')
        hh = {}
        isv = lambda it: any((isinstance(x, tuple) and x[0].startswith('buffer')) or (isinstance(x, str) and x.startswith('buffer')) for x in it)
        vm_ = [it for it in ex if isv(it) or any(isinstance(x, str) and 'cbranch' in x for x in it)]
        ot_ = [it for it in ex if it not in vm_]
        if vm_: spread(hh, vm_, list(o.apos) if len(vm_) <= 2 else [0, 1, 2, 3])
        if ot_: spread(hh, ot_, list(o.dpos))
        if n == o.bar_at: P("s_waitcnt lgkmcnt(0)"); P("s_barrier")
        if n == 26: M = [mm(26, 0, 0), mm(26, 0, 1), mm(27, 0, 0), mm(27, 0, 1)]
        if n == 27: M = [mm(26, 1, 0), mm(26, 1, 1), mm(27, 1, 0), mm(27, 1, 1)]
        for t in range(4):
            P.add([M[t]] + sum(hh.get(t, []), []) + sum(EP.get(4 * n + t, []), []))
            if n == 27 and t >= 1: P.add((sc(0, 0) + sc(0, 1))[[0, 0, 10, 21][t]:[0, 10, 21, 32][t]])
    stamp(P, o, 'last_h')
    for it in oq: P.add(it)
    used = set(sl[56:72])
    free = [r for r in sorted(x for x in set(sl) if not isinstance(x, tuple)) if r not in used]
    B2 = [r for r in free if all((r + 4 * k) in free for k in range(4))][0]
    for k in range(4): P(f"ds_read_b128 {vr(B2+4*k,4)}, v{L_BA} offset:{32*k}")
    rest = sc(1, 0) + [f"v_add_f32 v{q(1,1)+i}, v{q(1,1)+i}, v{B2+i}" for i in range(16)] + sc(1, 1)
    M = []
    for n in range(28, 36): M += [[mm(n, 0, 0)], [mm(n, 0, 1)]]
    P.add(interleave(M, rest))
    wr = lambda ttl, ctl: [f"ds_write_b128 v{L_RR}, {vr(q(ttl,ctl)+4*i,4)} offset:{(((1-ttl) | ((1-ctl) << 1)) - 1)*16384 + i*1024}" for i in range(4)]
    w = wr(0, 0) + wr(0, 1)
    seq = []
    for i, n in enumerate(range(28, 36)):
        seq.append(mm(n, 1, 0))
        if i >= 2: seq += w[:2]; w = w[2:]
    seq += w
    w = wr(1, 0)
    for i, n in enumerate(range(28, 36)):
        seq.append(mm(n, 1, 1))
        if i >= 3 and w: seq.append(w.pop(0))
    P.add(seq + w)
    P("s_waitcnt lgkmcnt(0)")
    P("s_barrier")
    stamp(P, o, 'last_o')
    R = 80
    for d in range(3):
        for i in range(4):
            P(f"ds_read_b128 {vr(R+16*d+4*i,4)}, v{L_RW+d} offset:{i*1024}")
    o_ = q(1, 1)
    for d in range(3):
        for i in range(8):
            P(f"v_pk_add_f32 {vr(o_+2*i,2)}, {vr(o_+2*i,2)}, {vr(R+16*d+2*i,2)}")
    p = R + 48
    for i in range(8): P(f"v_cvt_pk_bf16_f32 v{p+i}, v{o_+2*i}, v{o_+2*i+1}")
    for h in range(2):
        P(f"v_permlane32_swap_b32 v{p+4*h}, v{p+4*h+2}")
        P(f"v_permlane32_swap_b32 v{p+4*h+1}, v{p+4*h+3}")
    for h in range(2):
        P(f"buffer_store_dwordx4 {vr(p+4*h,4)}, v{L_OA}, {sr(SRD_OUT,4)}, 0 offen offset:{32*h}")
    stamp(P, o, 'end')

HEADER = open('cdna_kernels/' + NAME + '.s.ref').read().split('; Override launch')[0]

def finish(P, o, name):
    for sp in slow_paths:
        P.forget(); P(sp)
    L = finalize(P, True)
    if o.align:
        L, nf = align_runs(L); print('aligned runs:', nf)
    out = HEADER + f"; @launch grid=(256,1,1) block=(256,1,1) lds={LDS_BYTES}\n"
    out += '.amdgcn_target "amdgcn-amd-amdhsa--gfx950"\n.text\n'
    out += f".globl {name}\n.p2align 8\n.type {name},@function\n{name}:\n" + text(L)
    out += "s_endpgm\n.fill 2048, 4, 0xbf800000\n"
    out += f""".section .rodata,"a"
.p2align 6
.amdhsa_kernel {name}
  .amdhsa_next_free_vgpr 512
  .amdhsa_next_free_sgpr 102
  .amdhsa_accum_offset 256
  .amdhsa_group_segment_fixed_size 0
  .amdhsa_kernarg_size 96
  .amdhsa_user_sgpr_count 2
  .amdhsa_user_sgpr_kernarg_segment_ptr 1
  .amdhsa_system_sgpr_workgroup_id_x 1
.end_amdhsa_kernel
"""
    if o.diag is not None:
        out = out.replace('DIAG_I', str(o.stamp_names.index(o.diag[0]))).replace('DIAG_J', str(o.stamp_names.index(o.diag[1])))
    return out

def stf(o, n):
    D = Prog()
    if o.fine: stamp(D, o, n)
    return D.L

def groups(fn, o):
    D = Prog(); fn(D, o); return atomic_groups(D.L)

def build(o):
    name = NAME + "_kernel"
    R = lambda a, b: list(range(a, b))
    P = Prog(); setup(P, o, "L_end")
    P(f"s_cmp_eq_u32 s{S_C}, 7")
    P("s_cbranch_scc1 L_prep")
    H = Gaps()
    def first(D, o):
        s1_w1_addr(D, o)
        if o.w1t: w1_touch(D, o)
        common2(D, o); s1_misc(D, o)
        D(f"buffer_load_dword v{V_TAG}, v{V_FLAGOFF}, {sr(SRD_WS,4)}, 0 offen")
        last_baddr(D, o)
        att_scalars(D, o)
        if not o.b1late: bias1(D, o)
        att_poll_addr(D, o)
        if not o.glate: gate_flags(D, o, V_PA)
        att_addr(D, o)
        if o.b1late: bias1(D, o)
        if o.mka: att_masks(D, o)
        D(f"v_readfirstlane_b32 s{S_TAG}, v{V_TAG}"); D.add(TAGOPS)
        for i in range(o.wact):
            D(f"s_mul_i32 s{S_T4}, s{S_RBL}, 7")
            D(f"s_add_u32 s{S_T4}, s{S_T4}, s{S_C}")
            D(f"s_lshl2_add_u32 s{S_T4}, s{S_T4}, s{S_WAVE}")
            D(f"s_add_u32 s{S_T4}, s{S_T4}, {16*o.wsp + 112*i}")
            warm_touch(D, S_T4, 161 + i, S_T0, V_L128)
    H.put('v', groups(first, o), 0, o.su_end)
    H.put('m', bias1_reads(), o.b1r, 84)
    def first2(D, o): att_kvoff(D, o); last_soff(D, o)
    H.put('v', groups(first2, o), o.su_end, 84)
    pass_a(P, o, H)
    qkv_epilogue(P, o, merge_salu([it for n in range(o.nba, o.nbe) for it in dma_b(n)]))
    stamp(P, o, 'qkv_epi')
    H = Gaps()
    def second(D, o):
        last_setup(D, o)
        if o.glate: gate_flags(D, o, V_PH)
        if not o.mka: att_masks(D, o)
    H.put('v', groups(second, o), 0, 50)
    for i, g in enumerate(o.l2t):
        D = Prog(); l2_touch(D, o, i); H.put('v', [D.L], g, g + 1)
    dm = lambda a, b: merge_salu([it for p in range(a, b) for it in b_dma(p)])
    rd = lambda a, b: [[WVM(f'bp{n >> 1}')] + b_reads(n)[:2] if k == 0 else b_reads(n)[2:] for n in range(2 * a, 2 * b) for k in range(2)]
    b = o.pb
    kv = merge_salu(att_loads(o))
    gl = []
    if o.glate: kv, gl = kv[:14], kv[14:]
    def put_m0(items, g0, g1):
        own = lambda g: 12 <= g < 52 and (g - 12) % 16 < 8
        free = [g for g in range(g0, g1) if not own(g)]
        runs = []; cur = []
        for it in items:
            if any(isinstance(x, str) and ' m0,' in x for x in it) and cur: runs.append(cur); cur = []
            cur.append(it)
        runs.append(cur)
        n = len(runs)
        for i, r in enumerate(runs):
            sl = free[(i * len(free)) // n:((i + 1) * len(free)) // n]
            keep = [sl[0]]
            for g in sl[1:]:
                if g != keep[-1] + 1: break
                keep.append(g)
            spread(H.m, r, keep)
    if o.nbe < 4: H.put('m', merge_salu([it for n in range(o.nbe, 4) for it in dma_b(n)]), 0, 12)
    for c in range(3): H.put('m', merge_salu(dma_b(c + 4)), 16 * c + 12, 16 * c + 20)
    if not o.drop & 1: put_m0(dm(0, o.n1), b[0], b[1])
    H.put('m', [stf(o, 'qf0') + [WVM('qst')] + stf(o, 'qf1') + flag_store(S_QFL)], o.qflag, o.qflag + 1)
    H.put('m', [poll_issue(V_PA)], o.kpoll, o.kpoll + 1)
    kvl = kv[o.nkv:]
    if not o.drop & 4: put_m0([['s_waitcnt lgkmcnt(0)', 's_barrier'] * (o.n1 > 4) + stf(o, 'kc0') + poll_check(V_PA) + stf(o, 'kc1') + kv[0]] + kv[1:o.nkv], o.kcheck, o.kend)
    if not o.r1late: H.put('m', rd(0, o.n1), b[2], b[3])
    pt = att_patch()
    if o.patch < 112:
        H.put('m', pt[:4], o.patch, o.patch + 2)
        H.put('v', pt[4:], o.patch + 2, 112)
    pass_b(P, o, H)
    P("s_waitcnt lgkmcnt(0)")
    P("s_barrier")
    stamp(P, o, 'pass_b')
    if o.trunc:
        stamp_flush(P, o); P("s_endpgm"); P.forget(); P("L_prep:"); prep(P, o); stamp_flush(P, o); P("L_end:"); P("s_endpgm")
        return finish(P, o, name)
    if o.patch < 112: P.add(kread(ORDER[0], 0) + kread(ORDER[1], 1))
    last_baddr2(P, o)
    na = 11 + (o.n1 - 4)
    Q = Prog(); held = []
    for F in range(4):
        g = gelu_tile(F)
        for i, x in enumerate(g[:-2]):
            if i % 4 == 0: Q.L.append(Slot(f'g{F}_{i}'))
            Q.add([x])
        held += g[-2:]
        if F >= o.kvt - 1:
            Q.L.append(Slot(f'gs{F}')); Q.add(held); held = []
        if F == o.patch_t:
            if o.fine: stamp(Q, o, 'pt0')
            Q.add(pt[0])
            if o.fine: stamp(Q, o, 'pt1')
            for it in pt[1:]: Q.add(it)
        if F == o.bar_t:
            Q("s_waitcnt lgkmcnt(0)"); Q("s_barrier")
            Q.add(kread(ORDER[0], 0) + kread(ORDER[1], 1))
    stamp(Q, o, 'gelu')
    attention(Q, o, None, kpre=True)
    seen = lambda n: (lambda st: n in st['seen'])
    after = lambda key, dt: (lambda st: key in st['done'] and st['t'] >= st['done'][key] + dt)
    both = lambda a, b: (lambda st: a(st) and b(st))
    dstream = [(it, None, f'kv{i}') for i, it in enumerate(kvl)]
    for p in range(o.n1, 18):
        its = merge_salu(b_dma(p))
        for i, it in enumerate(its):
            cond = None
            if p == o.n1 and i == 0: cond = seen(o.ra0)
            lo = 0 if o.r1late else o.n1
            if i == 0 and [q for q in range(lo, p) if PIECE[q] == PIECE[p]]:
                prev = [q for q in range(lo, p) if PIECE[q] == PIECE[p]][-1]
                cond = after(f'rd{prev}', 60); it = [WLG(f'rd{prev}')] + it
            if o.pause:
                c0 = cond
                cond = (lambda c0: lambda st: (c0 is None or c0(st)) and (o.pause_at not in st['seen'] or f'a{o.resume}' in st['seen']))(c0)
            dstream.append((it, cond, f'dm{p}' if i == len(its) - 1 else 'x'))
    rstream = []
    for p in range(0 if o.r1late else o.n1, 11):
        r = b_reads(2 * p) + b_reads(2 * p + 1)
        for k in range(4):
            it = [(x, f'rd{p}') for x in r[2 * k:2 * k + 2]]
            rstream.append(([WVM(f'bp{p}')] * (k == 0) + it, (seen(o.r1at) if p < o.n1 else both(after(f'dm{p}', o.lat), seen('a0'))) if k == 0 else None, f'rd{p}' if k == 3 else 'x'))
    def st_(n):
        D = Prog()
        if o.fine: stamp(D, o, n)
        return D.L
    names0 = list(o.stamp_names)
    fstream = [(st_('hf0') + [WVM('hst')] + st_('hf1') + flag_store(S_HFL), seen(f'a{o.hflag}'), 'hf')]
    if o.nearly > 0:
        fstream.append((poll_issue(V_PH), seen(f'a{o.hpoll}'), 'hp'))
        al = merge_salu([[x] for n in range(o.nearly) for x in a_load(o, n)])
        al = al[:2] + gl + al[2:]
        if o.atouch:
            tch = [f"buffer_load_dword v{V_AT}, v{V_AT}, {sr(SRD_WS,4)}, s{S_AOF} offen {SC}"]
            fstream.append((st_('hc0') + poll_check(V_PH) + st_('hc1') + tch, seen(f'a{o.hcheck}'), 'hc'))
            fstream += [(it, seen(f'a{o.ea0}'), 'ea') for it in al]
        else:
            fstream.append((st_('hc0') + poll_check(V_PH) + st_('hc1') + al[0], seen(f'a{o.hcheck}'), 'hc'))
            fstream += [(it, None, 'ea') for it in al[1:]]
    L, t = place(Q.L, {'f': fstream, 'r': rstream, 'd': dstream}, gap=o.gap, burst=o.burst)
    kvpos = max([i for i, x in enumerate(L) if isinstance(x, I) and x.tag == 'kv'] + [-1]); hpos = min(i for i, x in enumerate(L) if isinstance(x, I) and x.tag == 'hst')
    print('estimated gelu+attention cycles', t, 'left', len(dstream), len(rstream), len(fstream), 'kv before h stores', kvpos < hpos)
    assert not rstream
    P.L += L
    for it, _, _ in fstream: P.add(it)
    o.left = [it for it, _, _ in dstream]
    last(P, o)
    stamp_flush(P, o)
    P("s_endpgm")
    P.forget()
    P("L_prep:")
    prep(P, o)
    att_scalars(P, o); att_poll_addr(P, o); gate_flags(P, o, V_PA); att_addr(P, o); att_masks(P, o); att_kvoff(P, o)
    poll(P, o, V_PA)
    for it in att_loads(o, False) + att_patch(): P.add(it)
    P("s_waitcnt lgkmcnt(0)")
    P("s_barrier")
    st, o.stamps = o.stamps, False
    attention(P, o, {})
    att_epilogue(P, o)
    o.stamps = st
    P("s_waitcnt vmcnt(0)")
    P.add(flag_store(S_OFL))
    stamp(P, o, 'p_att')
    stamp_flush(P, o)
    P(f"s_cmp_eq_u32 s2, 56")
    P("s_cbranch_scc0 L_end")
    P(f"s_cmp_eq_u32 s{S_WAVE}, 0")
    P("s_cbranch_scc0 L_end")
    P(f"v_lshlrev_b32 v{V_PA}, 7, v{V_LANE}")
    P(f"s_mov_b32 s{S_CNT}, 4000")
    P("L_ep:")
    for i in range(16):
        P(f"s_mov_b32 s{S_T0}, {FL_O + i*8192}")
        P(f"buffer_load_dwordx2 {vr(16+2*i,2)}, v{V_PA}, {sr(SRD_WS,4)}, s{S_T0} offen sc1")
    P("s_waitcnt vmcnt(0)")
    P(f"s_mov_b64 {sr(S_T0)}, 0")
    for i in range(16):
        P(f"v_cmp_ne_u64 vcc, {sr(S_TAG)}, {vr(16+2*i,2)}")
        P(f"s_or_b64 {sr(S_T0)}, {sr(S_T0)}, vcc")
    P(f"s_sub_u32 s{S_CNT}, s{S_CNT}, 1")
    P("s_cbranch_scc1 L_end")
    P(f"s_cmp_eq_u64 {sr(S_T0)}, 0")
    P("s_cbranch_scc0 L_ep")
    P(f"buffer_store_dword v{V_TAG}, v{V_FLAGOFF}, {sr(SRD_WS,4)}, 0 offen sc1")
    P("L_end:")
    P("s_endpgm")
    return finish(P, o, name)

DEFAULTS = dict(nba=4, nbe=4, oend=28, r1late=0, r1at='g1_0', apos=(0, 2), dpos=(1, 3), align=1, rot=0, rcls=2, wfirst=0, glate=0, bar_t=3, epin=6, bar_at=3, olead=12, atouch=0, ea0=46, fine=0, pause=1, pause_at='gs1', resume=0, burst=2, gap=64, lat=700, ra0='g0_0', l2t=(), kvt=2, patch_t=1, pw=0, b1late=1, w1t=0, mw=1, drop=0, trunc=0, ncls=3, wsp=0, wact=0, su_end=72, bq_end=84, mka=1, n1=4,
                b1r=60, pb=(52, 84, 88, 104), qflag=24, kpoll=74, kcheck=86, kend=112, nkv=14, patch=112,
                nb_gelu=(0, 0, 3, 3), pa=(0, 22, 20, 32, 50), nrb=20, left_steps=4, hflag=6, nearly=4, hpoll=32, hcheck=44,
                lead=6, jit0=8, oflag_at=5, opoll_at=15, ocheck_at=22, hst=0, code_bytes=32768)

if __name__ == '__main__':
    o = Opt()
    for k, v in DEFAULTS.items(): setattr(o, k, v)
    o.stamps = 'stamps' in sys.argv; o.diag = None; o.stamp_names = []
    o.clk = 's_memtime' if 'cyc' in sys.argv else 's_memrealtime'
    for a in sys.argv[2:]:
        if '=' not in a: continue
        k, v = a.split('=')
        if k == 'diag':
            i, j, K = v.split(','); o.diag = (i, j, int(K)); o.stamps = True
        elif k in ('ra0', 'pause_at', 'r1at'): setattr(o, k, v)
        elif ',' in v: setattr(o, k, tuple(int(x) for x in v.split(',') if x))
        else: setattr(o, k, int(v))
    plan(o.n1, o.r1late); ROT[0] = o.rot
    s = build(o)
    open(sys.argv[1], 'w').write(s)
    if o.stamps: open(sys.argv[1] + '.names', 'w').write('\n'.join(o.stamp_names))
```

```python
import sys, math, struct
from asmlib import *

NAME = "gated_mix__sliding_block__dense_activation_gelu__prompt"
def f2u(x): return struct.unpack('<I', struct.pack('<f', x))[0]

WS_E      = 0
FL_G      = 0x1000
G_OFF     = 0x4000
FL_QKV    = 0x20000
FL_H      = 0x40000
FL_O      = 0x60000
QKV_OFF   = 0x100000
A_OFF     = 0x700000
WS_SIZE   = 0x1000000
BP_OFF    = 0x1000000
STAMP_OFF = 0x1400000
QKV_TB = 168 * 512
A_TB = 144 * 1024

SA = 28672
LQ = 16384
LF = 98304; SF = 16384
LBIAS = 86016
LKV = 0
LRED = 0
LP = [49152 + 16384 * i for i in range(7)] + [0, 16384, 32768]
PIECE = []
def plan(n1, late=0):
    ra = list(range(11 - n1))
    rb = [p for p in range(7) if p not in ra] + ra
    PIECE[:] = [0, 1, 2, 3, 7, 8, 9][:n1] + ra + rb[:7]
    if late: PIECE[:] = [0, 1, 2, 3] + [4, 5, 6, 0, 1, 2, 3] * 2
LDS_BYTES = 160 * 1024

S_WAVE, S_RBL, S_SPARE, S_XCD, S_SLOT = 3, 8, 9, 10, 11
S_XO, S_QO, S_FO, S_CI, S_CJ = 4, 5, 6, 7, 22
S_M4, S_M3 = 23, 24
S_OFL = 25
S_B1, S_W2, S_B2, S_GW, S_WO = 12, 14, 16, 18, 20
S_TAG = 26
SRD_X, SRD_WQ, SRD_W1, SRD_WS, SRD_OUT, SRD_W2 = 28, 32, 36, 40, 44, 48
SRD_WO = 32
S_KV = [28, 29, 30, 31]
S_RB, S_B, S_TB = 52, 53, 54
S_BOF = 55
S_T0, S_T1, S_T2, S_T3 = 56, 57, 58, 59
S_CNT = 60
S_QST, S_HST = 61, 62
S_T4 = 63
S_MASK = 64
S_QFL, S_HFL = 12, 13
S_OST, S_B3 = 18, 19
S_AOF, S_AO2, S_BO = 4, 5, 7
S_ARB, S_ATB = 14, 15
S_R, S_C, S_J, S_PAR = 98, 99, 100, 101
S_AG, S_BG = 52, 54

def sr(b, n=2): return f"s[{b}:{b+n-1}]"
def vr(b, n): return f"v[{b}:{b+n-1}]" if n > 1 else f"v{b}"
def ar(b, n): return f"a[{b}:{b+n-1}]"
def xr(d): return ar(d[1], 4) if isinstance(d, tuple) else vr(d, 4)

V_LANE, V_L16, V_L16H, V_FLAGOFF = 1, 2, 3, 4
V_TAG = 6
V_PD = 8
V_PA = 10
V_T = 11
V_BA = 216
V_AA = 220
L_G = 222
L_RW = 224
L_RR, L_OA, V_PO, V_PH = 227, 228, 229, 231
V_BR = [[232, 233], [0, 230], [202, 234]]
L_BA = 10
V_DUM = 235
V_ST = 255
SC = 'sc1'

class Opt: pass

def mfma(d, a, b, c):
    C = '0' if c is None else vr(c, 16)
    return f"v_mfma_f32_32x32x16_bf16 {vr(d,16)}, {xr(a)}, {xr(b)}, {C}"

lab = [0]
def stamp(P, o, name):
    if not o.stamps: return
    if name not in o.stamp_names: o.stamp_names.append(name)
    P(f"{o.clk} s[96:97]")
    P("s_waitcnt lgkmcnt(0)")
    P(f"v_writelane_b32 v{V_ST}, s96, {o.stamp_names.index(name)}")

def stamp_flush(P, o):
    if not o.stamps: return
    if o.diag is not None:
        lab[0] += 1
        P(f"v_readlane_b32 s{S_T0}, v{V_ST}, DIAG_I")
        P(f"v_readlane_b32 s{S_T1}, v{V_ST}, DIAG_J")
        P("s_nop 4")
        P(f"s_sub_u32 s{S_T0}, s{S_T1}, s{S_T0}")
        P(f"s_mul_i32 s{S_T0}, s{S_T0}, {o.diag[2]}")
        P(f"s_min_u32 s{S_T0}, s{S_T0}, 20000")
        P(f"s_cmp_eq_u32 s{S_SPARE}, 1")
        P(f"s_cselect_b32 s{S_T0}, 0, s{S_T0}")
        P("s_memrealtime s[96:97]")
        P("s_waitcnt lgkmcnt(0)")
        P(f"s_mov_b32 s{S_T1}, s96")
        P(f"L_dg{lab[0]}:")
        P("s_memrealtime s[96:97]")
        P("s_waitcnt lgkmcnt(0)")
        P(f"s_sub_u32 s{S_T2}, s96, s{S_T1}")
        P(f"s_cmp_lt_u32 s{S_T2}, s{S_T0}")
        P(f"s_cbranch_scc1 L_dg{lab[0]}")
        return
    P("s_waitcnt vmcnt(0)")
    P(f"s_lshl2_add_u32 s{S_T0}, s2, s{S_WAVE}")
    P(f"s_lshl_b32 s{S_T0}, s{S_T0}, 8")
    P(f"s_add_u32 s{S_T0}, s{S_T0}, {STAMP_OFF}")
    P(f"s_mov_b32 s{SRD_WS+2}, {STAMP_OFF + 0x100000}")
    P(f"v_lshlrev_b32 v{V_T}, 2, v{V_LANE}")
    P(f"buffer_store_dword v{V_ST}, v{V_T}, {sr(SRD_WS,4)}, s{S_T0} offen")

def setup(P, o, end_label):
    if o.stamps: P(f"{o.clk} s[94:95]")
    P(f"s_load_dwordx2 {sr(SRD_X)}, s[0:1], 0")
    P(f"s_load_dwordx2 {sr(SRD_WQ)}, s[0:1], 8")
    P(f"s_load_dwordx2 {sr(SRD_W1)}, s[0:1], 32")
    P(f"s_load_dwordx8 s[12:19], s[0:1], 40")
    P(f"s_load_dwordx2 {sr(SRD_WS)}, s[0:1], 88")
    P(f"s_load_dwordx2 {sr(SRD_OUT)}, s[0:1], 72")
    P(f"s_load_dwordx2 {sr(S_WO)}, s[0:1], 16")
    P("s_cmpk_ge_u32 s2, 256")
    P(f"s_cbranch_scc1 {end_label}")
    P(f"s_getpc_b64 s[{S_T0}:{S_T1}]")
    P(f"v_lshlrev_b32 v{V_T}, 7, v0")
    P(f"v_min_u32 v{V_T}, {o.code_bytes - 128}, v{V_T}")
    P(f"global_load_dword v{V_DUM}, v{V_T}, s[{S_T0}:{S_T1}]", tag='pf')
    P(f"v_lshrrev_b32 v5, 6, v0")
    P(f"v_and_b32 v{V_LANE}, 63, v0")
    P(f"v_readfirstlane_b32 s{S_WAVE}, v5")
    P(f"s_and_b32 s{S_XCD}, s2, 7")
    P(f"s_lshr_b32 s{S_SLOT}, s2, 3")
    P(f"s_lshr_b32 s{S_RBL}, s2, 6")
    P(f"s_and_b32 s{S_C}, s{S_SLOT}, 7")
    P(f"s_mov_b32 s{SRD_X+3}, 0x20000")
    P(f"s_mov_b32 s{SRD_X+2}, {2048*896}")

def srd_rest(P, regs):
    for d, size in regs:
        P(f"s_mov_b32 s{d+2}, {size}")
        P(f"s_mov_b32 s{d+3}, 0x20000")

def common2(P, o):
    P(f"v_lshlrev_b32 v{V_L16}, 4, v{V_LANE}")
    P(f"v_cmp_eq_u32 vcc, 0, v{V_LANE}")
    P(f"v_mov_b32 v5, 0x7fff0000")
    P(f"v_add_u32 v{V_L16H}, 0x1000, v{V_L16}")
    P(f"v_cndmask_b32_e64 v{V_FLAGOFF}, v5, 0, vcc")
    P(f"s_lshl2_add_u32 s{S_R}, s{S_XCD}, s{S_RBL}")

TAGOPS = [f"s_mul_i32 s{S_TAG}, s{S_TAG}, 0x9e3779b1",
          f"s_add_u32 s{S_TAG}, s{S_TAG}, 0x7f4a7c15",
          f"s_xor_b32 s{S_TAG+1}, s{S_TAG}, 0x5bd1e995",
          f"v_mov_b32 v{V_TAG}, s{S_TAG}",
          f"v_mov_b32 v{V_TAG+1}, s{S_TAG+1}"]

def warm_touch(P, blk, dst, tb, l128):
    P(f"s_mul_i32 s{tb}, s{S_XCD}, 31")
    P(f"s_min_u32 s{blk}, s{blk}, 244")
    P(f"s_add_u32 s{blk}, s{blk}, s{tb}")
    P(f"s_sub_u32 s{tb}, s{blk}, 245")
    P(f"s_cselect_b32 s{blk}, s{blk}, s{tb}")
    P(f"s_sub_u32 s{tb}, s{blk}, 196")
    P(f"s_cselect_b32 s{blk}, s{blk}, s{tb}")
    P(f"s_cselect_b64 {sr(tb)}, {sr(SRD_W2)}, {sr(S_WO)}")
    P(f"s_lshl_b32 s{blk}, s{blk}, 13")
    P(f"s_add_u32 s{tb}, s{tb}, s{blk}")
    P(f"s_addc_u32 s{tb+1}, s{tb+1}, 0")
    P(f"global_load_dword v{dst}, v{l128}, {sr(tb)}", tag='warm')

def l2_touch(P, o, i):
    P(f"s_mul_i32 s{S_T4}, s{S_RBL}, 7")
    P(f"s_add_u32 s{S_T4}, s{S_T4}, s{S_C}")
    P(f"s_lshl2_add_u32 s{S_T4}, s{S_T4}, s{S_WAVE}")
    if i: P(f"s_add_u32 s{S_T4}, s{S_T4}, {112*i}")
    P(f"s_mul_i32 s{S_T0}, s{S_T4}, 1873")
    P(f"s_lshr_b32 s{S_T0}, s{S_T0}, 16")
    P(f"s_mul_i32 s{S_T0}, s{S_T0}, {128*896}")
    P(f"s_lshl_b32 s{S_T1}, s{S_T4}, 13")
    P(f"s_add_u32 s{S_T0}, s{S_T0}, s{S_T1}")
    P(f"s_add_u32 s{S_T0}, s{S_T0}, {128*896}")
    P(f"s_sub_u32 s{S_T1}, s{S_T1}, {140*8192}")
    P(f"s_cbranch_scc0 L_wo{i}")
    P(f"buffer_load_dword v{184+i}, v{V_L128}, {sr(SRD_W2,4)}, s{S_T0} offen")
    P(f"s_branch L_wj{i}")
    P(f"L_wo{i}:")
    P(f"buffer_load_dword v{186+i}, v{V_L128}, {sr(SRD_WO,4)}, s{S_T1} offen")
    P(f"L_wj{i}:")
    P.L.append(Pseudo('drop_vm'))

def poll(P, o, addr_v, limit=4000):
    lab[0] += 1
    L = f"L_poll{lab[0]}"
    P(f"s_mov_b32 s{S_CNT}, {limit}")
    P(f"{L}:")
    P(f"buffer_load_dwordx2 {vr(V_PD,2)}, v{addr_v}, {sr(SRD_WS,4)}, 0 offen sc1")
    P(f"s_sub_u32 s{S_CNT}, s{S_CNT}, 1")
    P("s_waitcnt vmcnt(0)")
    P(f"v_cmp_ne_u64 vcc, {sr(S_TAG)}, {vr(V_PD,2)}")
    P(f"s_cbranch_scc1 {L}_x")
    P(f"s_cbranch_vccnz {L}")
    P(f"{L}_x:")

slow_paths = []
def poll_issue(addr_v):
    return [f"buffer_load_dwordx2 {vr(V_PD,2)}, v{addr_v}, {sr(SRD_WS,4)}, 0 offen sc1"]
def poll_check(addr_v, limit=4000):
    lab[0] += 1
    L = f"L_pc{lab[0]}"
    slow_paths.append(f"""{L}_slow:
s_mov_b32 s{S_CNT}, {limit}
{L}_loop:
buffer_load_dwordx2 {vr(V_PD,2)}, v{addr_v}, {sr(SRD_WS,4)}, 0 offen sc1
s_sub_u32 s{S_CNT}, s{S_CNT}, 1
s_waitcnt vmcnt(0)
v_cmp_ne_u64 vcc, {sr(S_TAG)}, {vr(V_PD,2)}
s_cbranch_scc1 {L}_back
s_cbranch_vccnz {L}_loop
s_branch {L}_back""")
    return [f"v_cmp_ne_u64 vcc, {sr(S_TAG)}, {vr(V_PD,2)}\ns_cbranch_vccnz {L}_slow\n{L}_back:"]

def flag_store(soff):
    return [f"buffer_store_dwordx2 {vr(V_TAG,2)}, v{V_FLAGOFF}, {sr(SRD_WS,4)}, s{soff} offen sc1"]

ACC_Q, ACC_F = 16, 64
FR = 128
GT = 160
V_XD, V_QD, V_FD = 192, 196, 199
V_XR, V_QR, V_FRD = 203, 207, 208
V_CA, V_CB = 212, 214
V_QR2, V_L128 = 213, 215

def adv(ci):
    return f"s_add_u32 s{ci}, s{ci}, 1\ns_cmp_eq_u32 s{ci}, 7\ns_cselect_b32 s{ci}, 0, s{ci}"

def dma_a(n):
    sl = (n % 3) * SA
    L = []
    if n: L.append([adv(S_CI)])
    L.append([f"s_lshl_b32 s{S_XO}, s{S_CI}, 7", f"s_add_u32 m0, s{S_M4}, {sl}"])
    L.append([f"s_mul_i32 s{S_QO}, s{S_CI}, {64*2688}"])
    for i in range(4):
        L.append([(f"buffer_load_dwordx4 v{V_XD+i}, {sr(SRD_X,4)}, s{S_XO} offen offset:{i*1024} lds", f'da{n}')])
    L.append([f"s_add_u32 m0, s{S_M3}, {sl}"])
    for i in range(3):
        L.append([(f"buffer_load_dwordx4 v{V_QD+i}, {sr(SRD_WQ,4)}, s{S_QO} offen offset:{i*1024} lds", f'da{n}')])
    return L

def dma_b(n):
    L = []
    if n: L.append([adv(S_CJ)])
    L.append([f"s_add_u32 m0, s{S_M4}, {LF + ((n + 1) % 4) * SF}", f"s_mul_i32 s{S_FO}, s{S_CJ}, {64*3584}"])
    for i in range(4):
        L.append([(f"buffer_load_dwordx4 v{V_FD+i}, {sr(SRD_W1,4)}, s{S_FO} offen offset:{i*1024} lds", f'db{n}')])
    return L

def reads_a(g):
    c, s = g >> 2, g & 3
    sl = (c % 3) * SA
    base = FR + 16 * (g & 1)
    L = [f"ds_read_b128 {ar(4*g,4)}, v{V_XR+s} offset:{sl}"]
    q, so = (V_QR2, 0) if c % 3 == 2 else (V_QR, sl)
    for t in range(3):
        for rho in range(2):
            L.append(f"ds_read_b64_tr_b16 {vr(base+4*t+2*rho,2)}, v{q} offset:{so + (16*s+4*rho)*192 + t*64}")
    return L

def reads_b(g):
    c, s = g >> 2, g & 3
    base = FR + 16 * (g & 1)
    return [f"ds_read_b64_tr_b16 {vr(base+4*t+2*rho,2)}, v{V_FRD+t} offset:{((c + 1) % 4)*SF + (16*s+4*rho)*256}" for t in range(4) for rho in range(2)]

def s1_x_addr(P, o):
    T = V_T
    if o.ncls == 3:
        P(f"s_add_u32 s{S_CI}, s{S_C}, s{S_RBL}")
        P(f"s_lshl_b32 s{S_CI}, s{S_CI}, 1")
        P(f"s_lshr_b32 s{S_CI}, 0x24924, s{S_CI}")
        P(f"s_and_b32 s{S_CI}, s{S_CI}, 3")
        P(f"s_lshl_b32 s{S_CI}, s{S_CI}, 1")
    elif o.ncls == 2:
        P(f"s_add_u32 s{S_CI}, s{S_C}, s{S_RBL}")
        P(f"s_and_b32 s{S_CI}, s{S_CI}, 1")
        P(f"s_mul_i32 s{S_CI}, s{S_CI}, 3")
    else:
        P(f"s_mov_b32 s{S_CI}, 0")
    P(f"s_and_b32 s{S_RB}, s{S_XCD}, 3")
    P(f"s_lshl2_add_u32 s{S_RB}, s{S_RB}, s{S_RBL}")
    P(f"s_lshl2_add_u32 s{S_TB}, s{S_RB}, s{S_WAVE}")
    P(f"v_lshrrev_b32 v{T}, 3, v{V_LANE}")
    P(f"v_and_b32 v{T+1}, 7, v{V_LANE}")
    P(f"v_lshrrev_b32 v{T+2}, 4, v{V_LANE}")
    P(f"s_lshl_b32 s{S_T2}, s{S_TB}, 5")
    P(f"v_add_u32 v{T}, s{S_T2}, v{T}")
    P(f"v_mul_u32_u24 v{T}, 896, v{T}")
    P(f"v_xor_b32 v{T+1}, v{T+2}, v{T+1}")
    P(f"v_lshl_add_u32 v{V_XD}, v{T+1}, 4, v{T}")
    P(f"v_xor_b32 v{V_XD+1}, 64, v{V_XD}")
    P(f"s_lshl_b32 s{S_M4}, s{S_WAVE}, 12")
    P(f"v_add_u32 v{V_XD+2}, {2*(8*896-1024)}, v{V_XD}")
    P(f"v_add_u32 v{V_XD+3}, {3*(8*896-1024)}, v{V_XD+1}")
    P(f"v_add_u32 v{V_XD+1}, {1*(8*896-1024)}, v{V_XD+1}")

def s1_wq_addr(P, o):
    T = V_T
    P(f"s_lshr_b32 s{S_B}, s{S_XCD}, 2")
    P(f"s_mul_i32 s{S_B}, s{S_B}, 7")
    P(f"s_add_u32 s{S_B}, s{S_B}, s{S_C}")
    P(f"s_mul_i32 s{S_T2}, s{S_WAVE}, 192")
    P(f"s_mul_i32 s{S_T3}, s{S_B}, 192")
    P(f"v_add_u32 v{T}, s{S_T2}, v{V_LANE}")
    P(f"v_lshl_add_u32 v{T+2}, v{T}, 4, s{S_T3}")
    P(f"v_mul_u32_u24 v{T}, 0xaaab, v{T}")
    P(f"s_movk_i32 s{S_T3}, 2496")
    for i in range(3):
        if i: P(f"v_add_u32 v{T}, {64*0xaaab}, v{T}")
        P(f"v_lshrrev_b32 v{T+1}, 19, v{T}")
        P(f"v_mad_u32_u24 v{V_QD+i}, v{T+1}, s{S_T3}, v{T+2}")
    P(f"s_lshl_b32 s{S_T2}, s{S_T2}, 4")
    P(f"s_add_u32 s{S_M3}, s{S_T2}, {LQ}")
    srd_rest(P, [(SRD_WQ, 448*2688)])

def s1_read_addr(P, o):
    T = V_T
    P(f"v_and_b32 v{T}, 31, v{V_LANE}")
    P(f"v_lshrrev_b32 v{T+1}, 5, v{V_LANE}")
    P(f"v_bfe_u32 v{T+2}, v{V_LANE}, 1, 3")
    P(f"v_xor_b32 v{T+2}, v{T+2}, v{T+1}")
    P(f"v_lshl_add_u32 v{T}, v{T}, 7, s{S_M4}")
    for s in range(4):
        P(f"v_xor_b32 v{T+3}, {2*s}, v{T+2}")
        P(f"v_lshl_add_u32 v{V_XR+s}, v{T+3}, 4, v{T}")
    P(f"v_bfe_u32 v{T}, v{V_LANE}, 2, 2")
    P(f"v_lshl_add_u32 v{T+1}, v{T+1}, 3, v{T}")
    P(f"v_bfe_u32 v{T+2}, v{V_LANE}, 4, 1")
    P(f"v_lshlrev_b32 v{T+2}, 5, v{T+2}")
    P(f"v_and_b32 v{T+3}, 3, v{V_LANE}")
    P(f"v_lshl_add_u32 v{T+2}, v{T+3}, 3, v{T+2}")
    P(f"v_mul_u32_u24 v{T+3}, 192, v{T+1}")
    P(f"v_add_u32 v{T+3}, {LQ}, v{T+3}")
    P(f"v_add_u32 v{V_QR}, v{T+3}, v{T+2}")
    P(f"v_add_u32 v{V_QR2}, {2*SA}, v{V_QR}")
    P(f"v_lshl_add_u32 v{T+2}, v{T+1}, 8, v{T+2}")
    P(f"v_add_u32 v{T+2}, {LF}, v{T+2}")
    for c in range(4):
        P(f"v_xor_b32 v{T+3}, {c}, v{T}")
        P(f"v_lshl_add_u32 v{V_FRD+c}, v{T+3}, 6, v{T+2}")

def s1_w1_addr(P, o):
    T = V_T
    P(f"v_lshrrev_b32 v{T+2}, 4, v{V_LANE}")
    P(f"v_lshlrev_b32 v{T+1}, 2, v{T+2}")
    P(f"v_xor_b32 v{T+1}, v{T+1}, v{V_LANE}")
    P(f"v_and_b32 v{T+1}, 15, v{T+1}")
    P(f"s_lshl_b32 s{S_T2}, s{S_WAVE}, 4")
    P(f"v_add_u32 v{T}, s{S_T2}, v{T+2}")
    P(f"v_mul_u32_u24 v{T}, 3584, v{T}")
    P(f"s_lshl_b32 s{S_T3}, s{S_B}, 8")
    P(f"v_lshl_add_u32 v{T}, v{T+1}, 4, v{T}")
    P(f"v_add_u32 v{V_FD}, s{S_T3}, v{T}")
    for i in range(1, 4):
        P(f"v_add_u32 v{V_FD+i}, {i*(4*3584-1024)}, v{V_FD}")
    srd_rest(P, [(SRD_W1, 448*3584)])
    P(f"v_lshl_add_u32 v{T}, v{V_LANE}, 2, s{S_T3}")
    P(f"global_load_dword v9, v{T}, {sr(S_B1)}")

def w1_touch(P, o):
    T = V_T
    P(f"v_lshrrev_b32 v{T}, 1, v{V_LANE}")
    P(f"v_min_u32 v{T}, 27, v{T}")
    P(f"s_lshl2_add_u32 s{S_T0}, s{S_RBL}, s{S_WAVE}")
    P(f"s_mul_i32 s{S_T0}, s{S_T0}, 28")
    P(f"v_add_u32 v{T}, s{S_T0}, v{T}")
    P(f"v_mul_u32_u24 v{T}, 3584, v{T}")
    P(f"v_and_b32 v{T+1}, 1, v{V_LANE}")
    P(f"v_lshl_add_u32 v{T}, v{T+1}, 7, v{T}")
    P(f"s_lshl_b32 s{S_T0}, s{S_B}, 8")
    P(f"buffer_load_dword v160, v{T}, {sr(SRD_W1,4)}, s{S_T0} offen", tag='warm')

def s1_misc(P, o):
    srd_rest(P, [(SRD_WS, WS_SIZE), (SRD_OUT, 2048*896)])
    A = -2.0 * math.sqrt(2.0 / math.pi) * 0.044715 * math.log2(math.e)
    B = -2.0 * math.sqrt(2.0 / math.pi) * math.log2(math.e)
    P(f"v_mov_b32 v{V_CA}, {hex(f2u(A))}")
    P(f"v_mov_b32 v{V_CB}, {hex(f2u(B))}")
    P(f"v_lshlrev_b32 v{V_L128}, 7, v{V_LANE}")
    P(f"s_mul_i32 s{S_QST}, s{S_TB}, {QKV_TB}")
    P(f"s_mul_i32 s{S_T0}, s{S_B}, {3*2048}")
    P(f"s_add_u32 s{S_QST}, s{S_QST}, s{S_T0}")
    P(f"s_add_u32 s{S_QST}, s{S_QST}, {QKV_OFF}")
    P(f"s_mul_i32 s{S_HST}, s{S_TB}, {A_TB}")
    P(f"s_lshl_b32 s{S_T0}, s{S_B}, 13")
    P(f"s_add_u32 s{S_HST}, s{S_HST}, s{S_T0}")
    P(f"s_add_u32 s{S_HST}, s{S_HST}, {A_OFF}")
    P(f"s_lshl4_add_u32 s{S_T0}, s{S_TB}, s{S_B}")
    P(f"s_lshl_b32 s{S_T0}, s{S_T0}, 7")
    P(f"s_add_u32 s{S_QFL}, s{S_T0}, {FL_QKV}")
    P(f"s_add_u32 s{S_HFL}, s{S_T0}, {FL_H}")
    P(f"s_mul_i32 s{S_B3}, s{S_B}, 3")
    P(f"s_mov_b32 s{S_SPARE}, 0")

def bias_expand(P, src_v, tmp, addr, base):
    P(f"v_lshlrev_b32 v{tmp}, 16, v{src_v}")
    P(f"v_and_b32 v{tmp+1}, 0xffff0000, v{src_v}")
    P(f"v_lshl_add_u32 v{tmp+2}, v{V_LANE}, 3, s{base}")
    P(f"ds_write_b64 v{tmp+2}, {vr(tmp,2)}")
    P(f"v_lshrrev_b32 v{addr}, 5, v{V_LANE}")
    P(f"v_lshl_add_u32 v{addr}, v{addr}, 4, s{base}")

def bias1(P, o):
    P(f"s_lshl_b32 s{S_T0}, s{S_WAVE}, 9")
    P(f"s_add_u32 s{S_T0}, s{S_T0}, {LBIAS}")
    bias_expand(P, 9, 12, 8, S_T0)

def bias1_reads():
    return [[f"ds_read_b128 {vr(ACC_F+16*F+4*q,4)}, v8 offset:{(32*F+8*q)*4}"] for F in range(4) for q in range(4)]

def rot_step(off, cnt, stride, n):
    return (f"s_add_u32 s{off}, s{off}, {stride}\ns_add_u32 s{cnt}, s{cnt}, 1\ns_cmp_eq_u32 s{cnt}, {n}\n"
            f"s_cselect_b32 s{S_CNT}, {n*stride}, 0\ns_sub_u32 s{off}, s{off}, s{S_CNT}")
ROT = [0]

def b_dma(p):
    L = [[f"s_add_u32 m0, s{S_M4}, {LP[PIECE[p]]}"]]
    if p < 14:
        so, sd = S_BOF, SRD_W2
        if p: L[0].append(rot_step(so, S_BG, 32*896, 14) if ROT[0] else f"s_add_u32 s{so}, s{so}, {32*896}")
    else:
        so, sd = S_BO, SRD_WO
        i = p - 14
        if i: L[0].append(f"s_add_u32 s{so}, s{so}, {8*(((7*i)>>1) - ((7*(i-1))>>1))*896}")
    for i in range(4):
        L.append([(f"buffer_load_dwordx4 v{V_BA+i}, {sr(sd,4)}, s{so} offen offset:{i*1024} lds", f'bp{p}')])
    return L

def breg(n, ctl):
    if n >= 22: n -= 22
    return ('a', (112 + 8 * n if n < 18 else 8 * (n - 18)) + 4 * ctl)

def b_reads(n):
    pc = LP[PIECE[n >> 1]]
    hi, so = divmod(pc, 65536)
    return [f"ds_read_b64_tr_b16 {ar(breg(n, ctl)[1]+2*rho,2)}, v{V_BR[hi][ctl]} offset:{so + (n & 1)*2048 + rho*1024}" for ctl in range(2) for rho in range(2)]

class Gaps:
    def __init__(self): self.m = {}; self.v = {}
    def put(self, kind, items, g0, g1):
        d = self.m if kind == 'm' else self.v
        spread(d, items, list(range(g0, g1)), kind == 'm')
    def emit(self, G): return sum(self.m.get(G, []), []) + sum(self.v.get(G, []), [])

def spread(hooks, items, slots, unit=True):
    w = (lambda g: 1) if unit else len
    tot = sum(w(g) for g in items); done = 0
    for g in items:
        s = slots[min(len(slots) - 1, (done * len(slots)) // tot)]
        hooks.setdefault(s, []).append(g); done += w(g)

def merge_salu(items):
    out = []; pend = []
    for it in items:
        pend += it
        if any(isinstance(x, tuple) or (isinstance(x, str) and x.startswith(('buffer', 'global', 'ds_'))) for x in it):
            out.append(pend); pend = []
    if pend: out.append(pend)
    return out

def pass_a(P, o, H):
    s1_x_addr(P, o)
    d0 = dma_a(0)
    P.add(d0[0])
    P("s_waitcnt lgkmcnt(0)")
    if o.stamps:
        o.stamp_names.append('entry'); P(f"v_mov_b32 v{V_ST}, 0"); P(f"v_writelane_b32 v{V_ST}, s94, 0")
    for it in d0[2:6]: P.add(it)
    P.add(d0[1]); P(f"s_mov_b32 s{S_CJ}, s{S_CI}")
    s1_wq_addr(P, o)
    for it in d0[6:]: P.add(it)
    stamp(P, o, 'd0_issued')
    for it in dma_a(1): P.add(it)
    s1_read_addr(P, o)
    for it in dma_a(2): P.add(it)
    P.wait_vm('da0')
    P("s_barrier")
    stamp(P, o, 's1_first')
    P.add(reads_a(0))
    for c in range(4): H.put('m', merge_salu(dma_a(c + 3)), 12 * c + 9, 12 * c + 21)
    H.put('m', merge_salu([it for n in range(o.nba) for it in dma_b(n)]), 57, o.bq_end)
    for g in range(28):
        c, s = g >> 2, g & 3
        base = FR + 16 * (g & 1)
        if s == 3 and c < 6:
            P("s_waitcnt lgkmcnt(0)")
            P.wait_vm(f'da{c+1}')
            P("s_barrier")
            if o.trunc: stamp(P, o, f'a{c}')
        rd = reads_a(g + 1) if g < 27 else []
        per = [4, 3, 0] if s == 2 else [3, 2, 2]
        for t in range(3):
            P(mfma(ACC_Q + 16 * t, base + 4 * t, ('a', 4 * g), None if g == 0 else ACC_Q + 16 * t))
            P.add(rd[:per[t]]); rd = rd[per[t]:]
            P.add(H.emit(3 * g + t))
    P("s_waitcnt lgkmcnt(0)")
    P.wait_vm('db0')
    P("s_barrier")
    stamp(P, o, 'pass_a')
    P.add(reads_b(0))

def pass_b(P, o, H):
    for g in range(28):
        c, s = g >> 2, g & 3
        base = FR + 16 * (g & 1)
        if s == 3 and c < 6:
            P("s_waitcnt lgkmcnt(0)")
            P.wait_vm(f'db{c+1}')
            P("s_barrier")
            if o.trunc: stamp(P, o, f'b{c}')
        rd = reads_b(g + 1) if g < 27 else []
        per = [3, 3, 2, 0] if s == 2 else [2, 2, 2, 2]
        for t in range(4):
            P(mfma(ACC_F + 16 * t, base + 4 * t, ('a', 4 * g), ACC_F + 16 * t))
            P.add(rd[:per[t]]); rd = rd[per[t]:]
            P.add(H.emit(4 * g + t))

def qkv_epilogue(P, o, extra):
    c = (28.0 ** -0.5) * math.log2(math.e)
    P(f"s_mov_b32 s{S_T2}, {hex(f2u(c))}")
    for t in range(3):
        acc = ACC_Q + 16 * t
        P(f"s_cmp_lt_u32 s{S_B3}, {14 - t}")
        P(f"s_cbranch_scc0 L_nosc{t}")
        for i in range(8):
            P(f"v_pk_mul_f32 {vr(acc+2*i,2)}, {vr(acc+2*i,2)}, s[{S_T2}:{S_T3}] op_sel_hi:[1,0]")
        P(f"L_nosc{t}:")
        p = GT + 8 * t
        for i in range(8):
            if t == 0 and extra and i % 2 == 0: P.add(extra.pop(0))
            P(f"v_cvt_pk_bf16_f32 v{p+i}, v{acc+2*i}, v{acc+2*i+1}")
        while t == 0 and extra: P.add(extra.pop(0))
        for h in range(2):
            P(f"v_permlane32_swap_b32 v{p+4*h}, v{p+4*h+2}")
            P(f"v_permlane32_swap_b32 v{p+4*h+1}, v{p+4*h+3}")
        for h in range(2):
            off = t * 2048 + h * 1024
            P(f"buffer_store_dwordx4 {vr(p+4*h,4)}, v{V_L16H if off >= 4096 else V_L16}, {sr(SRD_WS,4)}, s{S_QST} offen offset:{off & 4095} {SC}", tag='qst')

def gelu_tile(F):
    u = ACC_F + 16 * F
    t = GT + 16 * (F & 1)
    L = []
    pr = lambda b, i: vr(b + 2 * i, 2)
    for i in range(8): L.append(f"v_pk_mul_f32 {pr(t,i)}, {pr(u,i)}, {pr(u,i)}")
    for i in range(8): L.append(f"v_pk_fma_f32 {pr(t,i)}, {pr(t,i)}, {vr(V_CA,2)}, {vr(V_CB,2)} op_sel_hi:[1,0,0]")
    for i in range(8): L.append(f"v_pk_mul_f32 {pr(t,i)}, {pr(t,i)}, {pr(u,i)}")
    for i in range(16): L.append(f"v_exp_f32 v{t+i}, v{t+i}")
    for i in range(8): L.append(f"v_pk_add_f32 {pr(t,i)}, {pr(t,i)}, 1.0 op_sel_hi:[1,0]")
    for i in range(16): L.append(f"v_rcp_f32 v{t+i}, v{t+i}")
    for i in range(8): L.append(f"v_pk_mul_f32 {pr(t,i)}, {pr(t,i)}, {pr(u,i)}")
    for i in range(8): L.append(f"v_cvt_pk_bf16_f32 v{t+i}, v{t+2*i}, v{t+2*i+1}")
    for h in range(2):
        off = (2 * F + h) * 1024
        L.append((f"buffer_store_dwordx4 {vr(t+4*h,4)}, v{V_L16H if off >= 4096 else V_L16}, {sr(SRD_WS,4)}, s{S_HST} offen offset:{off & 4095} {SC}", 'hst'))
    return L

def prep(P, o):
    T = V_T
    if o.stamps: P(f"v_mov_b32 v{V_ST}, 0")
    common2(P, o)
    srd_rest(P, [(SRD_WS, WS_SIZE)])
    P(f"v_lshlrev_b32 v{V_L128}, 7, v{V_LANE}")
    P(f"s_mov_b32 s{S_SPARE}, 1")
    P(f"s_lshl_b32 s{S_M4}, s{S_WAVE}, 12")
    P(f"v_lshrrev_b32 v{T}, 2, v{V_LANE}")
    P(f"s_lshl2_add_u32 s{S_T0}, s{S_R}, s{S_WAVE}")
    P(f"s_lshl_b32 s{S_T0}, s{S_T0}, 4")
    P(f"v_add_u32 v20, s{S_T0}, v{T}")
    P(f"v_mul_u32_u24 v{T}, 896, v20")
    P(f"v_and_b32 v{T+1}, 3, v{V_LANE}")
    P(f"v_lshlrev_b32 v{T+1}, 4, v{T+1}")
    P(f"v_add_u32 v{T}, v{T}, v{T+1}")
    P("s_waitcnt lgkmcnt(0)")
    if o.stamps: P(f"v_writelane_b32 v{V_ST}, s94, 0")
    P(f"s_load_dword s{S_TAG}, {sr(SRD_WS)}, {WS_E}")
    P(f"s_mov_b64 {sr(SRD_W2)}, {sr(S_W2)}")
    if o.mw:
        srd_rest(P, [(SRD_W1, 448*3584), (SRD_W2, 1792*896), (SRD_WQ, 448*896)])
        P(f"s_mov_b64 {sr(SRD_WQ)}, {sr(S_WO)}")
        P(f"s_lshl2_add_u32 s{S_T0}, s{S_R}, s{S_WAVE}")
        P(f"s_lshl_b32 s{S_T0}, s{S_T0}, 13")
        P(f"s_add_u32 s{S_T1}, s{S_T0}, 0x100000")
        for i, (d, so) in enumerate(((SRD_W1, S_T0), (SRD_W1, S_T1), (SRD_W2, S_T0), (SRD_W2, S_T1), (SRD_WQ, S_T0))):
            P(f"buffer_load_dword v{180+i}, v{V_L128}, {sr(d,4)}, s{so} offen")
    if o.pw & 1:
        P(f"v_lshlrev_b32 v{T+3}, 20, v{V_LANE}")
        P(f"buffer_load_dword v177, v{T+3}, {sr(SRD_WS,4)}, 0 offen")
    def touches():
        for i in range(o.wsp):
            P(f"s_lshl2_add_u32 s{S_T4}, s{S_RBL}, s{S_WAVE}")
            P(f"s_add_u32 s{S_T4}, s{S_T4}, {16*i}")
            P(f"s_lshr_b32 s{S_T0}, s{S_T4}, 2")
            P(f"s_lshl_b32 s{S_T0}, s{S_T0}, 13")
            P(f"s_mul_i32 s{S_T1}, s{S_WAVE}, {448*896}")
            P(f"s_add_u32 s{S_T0}, s{S_T0}, s{S_T1}")
            P(f"s_add_u32 s{S_T0}, s{S_T0}, {128*896}")
            if 16 * i + 15 < 140:
                P(f"buffer_load_dword v{160+i}, v{V_L128}, {sr(SRD_W2,4)}, s{S_T0} offen")
            else:
                P(f"s_sub_u32 s{S_T1}, s{S_T4}, 140")
                P(f"s_cbranch_scc0 L_tw{i}")
                P(f"buffer_load_dword v{160+i}, v{V_L128}, {sr(SRD_W2,4)}, s{S_T0} offen")
                P(f"s_branch L_tj{i}")
                P(f"L_tw{i}:")
                P(f"s_lshl_b32 s{S_T1}, s{S_T1}, 13")
                P(f"buffer_load_dword v{190+i}, v{V_L128}, {sr(SRD_WQ,4)}, s{S_T1} offen")
                P(f"L_tj{i}:")
                P.L.append(Pseudo('drop_vm'))
        if o.fine:
            P("s_waitcnt vmcnt(0)"); stamp(P, o, 'p_warm')
    if o.wfirst: touches()
    for i in range(14):
        P(f"buffer_load_dwordx4 {vr(32+4*i,4)}, v{T}, {sr(SRD_X,4)}, 0 offen offset:{64*i}")
        P(f"global_load_dwordx4 {vr(96+4*i,4)}, v{T+1}, {sr(S_GW)} offset:{64*i}")
    P.add(TAGOPS)
    P("v_mov_b32 v24, 0")
    P("v_mov_b32 v25, 0")
    for i in range(56):
        P(f"v_dot2_f32_bf16 v{24+(i&1)}, v{32+i}, v{96+i}, v{24+(i&1)}")
    P("s_nop 2")
    P("v_add_f32 v24, v24, v25")
    P("v_add_f32_dpp v24, v24, v24 quad_perm:[1,0,3,2] row_mask:0xf bank_mask:0xf")
    P("v_add_f32_dpp v24, v24, v24 quad_perm:[2,3,0,1] row_mask:0xf bank_mask:0xf")
    P(f"v_mul_f32 v24, {hex(f2u(-math.log2(math.e)))}, v24")
    P("v_exp_f32 v24, v24")
    P("v_add_f32 v24, 1.0, v24")
    P("v_rcp_f32 v24, v24")
    P(f"v_lshlrev_b32 v20, 2, v20")
    P(f"v_and_b32 v25, 3, v{V_LANE}")
    P(f"v_cmp_eq_u32 vcc, 0, v25")
    P(f"v_mov_b32 v27, 0x7fff0000")
    P(f"v_cndmask_b32 v20, v27, v20, vcc")
    P(f"s_mov_b32 s{S_T0}, {G_OFF}")
    P(f"buffer_store_dword v24, v20, {sr(SRD_WS,4)}, s{S_T0} offen {SC}")
    P("s_waitcnt vmcnt(0) lgkmcnt(0)")
    P("s_barrier")
    P(f"s_lshl_b32 s{S_T0}, s{S_R}, 7")
    P(f"s_add_u32 s{S_T0}, s{S_T0}, {FL_G}")
    P(f"s_cmp_eq_u32 s{S_WAVE}, 0")
    P("s_cbranch_scc0 L_prep_nf")
    P.add(flag_store(S_T0))
    P("L_prep_nf:")
    stamp(P, o, 'p_flag')
    if not o.wfirst: touches()

AQ = 16
AK = 24
AV = 40
AS = 56
AN = 104
AO = 120
AP = 136
AM = 236
A_KR, A_VR = 244, 245
A_KD, A_VD = 247, 248
A_PA, A_PV = 250, 251
A_G = 254
A_MX = 5

def att_scalars(P, o):
    P(f"s_and_b32 s{S_ARB}, s{S_SLOT}, 15")
    P(f"s_lshr_b32 s{S_J}, s{S_SLOT}, 4")
    P(f"s_lshl1_add_u32 s{S_J}, s{S_XCD}, s{S_J}")
    P(f"s_lshl2_add_u32 s{S_ATB}, s{S_ARB}, s{S_WAVE}")
    P(f"s_and_b32 s{S_PAR}, s{S_J}, 1")
    P(f"s_lshl4_add_u32 s{S_T0}, s{S_ATB}, s{S_J}")
    P(f"s_lshl_b32 s{S_T0}, s{S_T0}, 7")
    P(f"s_add_u32 s{S_OFL}, s{S_T0}, {FL_O}")
    P(f"s_mul_i32 s{S_T2}, s{S_ATB}, {A_TB}")
    P(f"s_lshl_b32 s{S_T3}, s{S_J}, 11")
    P(f"s_add_u32 s{S_T2}, s{S_T2}, s{S_T3}")
    P(f"s_add_u32 s{S_OST}, s{S_T2}, {A_OFF + 112*1024}")

def att_poll_addr(P, o):
    T = V_T
    P(f"v_min_u32 v{T}, 13, v{V_LANE}")
    P(f"v_lshrrev_b32 v{T+1}, 1, v{T}")
    P(f"v_and_b32 v{T}, 1, v{T}")
    P(f"s_mul_i32 s{S_T0}, s{S_J}, 7")
    P(f"s_lshr_b32 s{S_T0}, s{S_T0}, 1")
    P(f"s_lshl_b32 s{S_T0}, s{S_T0}, 3")
    P(f"v_mad_u32_u24 v{T}, v{T}, 31, s{S_T0}")
    P(f"v_mov_b32 v{T+2}, 896")
    P(f"v_mov_b32 v{T+3}, 448")
    P(f"v_subrev_u32 v{T+4}, 3, v{T+1}")
    P(f"v_cmp_gt_u32 vcc, 3, v{T+1}")
    P(f"v_cndmask_b32 v{T+2}, v{T+2}, v{T+3}, vcc")
    P(f"v_cndmask_b32 v{T+3}, v{T+4}, v{T+1}, vcc")
    P(f"s_mul_i32 s{S_T1}, s{S_WAVE}, 3")
    P(f"s_lshl2_add_u32 s{S_T1}, s{S_ARB}, s{S_T1}")
    P(f"s_sub_u32 s{S_T1}, s{S_T1}, 8")
    P(f"v_add_u32 v{T+3}, s{S_T1}, v{T+3}")
    P(f"v_max_i32 v{T+3}, 0, v{T+3}")
    P(f"v_mov_b32 v{T+4}, s{S_ATB}")
    P(f"v_cmp_eq_u32 vcc, 6, v{T+1}")
    P(f"v_cndmask_b32_e64 v{T+2}, v{T+2}, 0, vcc")
    P(f"v_cndmask_b32 v{T+3}, v{T+3}, v{T+4}, vcc")
    P(f"v_add_u32 v{T}, v{T}, v{T+2}")
    P(f"v_mul_u32_u24 v{T}, 683, v{T}")
    P(f"v_lshrrev_b32 v{T}, 16, v{T}")
    P(f"v_lshl_add_u32 v{T}, v{T+3}, 4, v{T}")
    P(f"v_lshlrev_b32 v{T}, 7, v{T}")
    P(f"v_add_u32 v{V_PA}, {FL_QKV}, v{T}")

def gate_flags(P, o, reg):
    P(f"s_lshr_b32 s{S_T0}, s{S_ATB}, 1")
    P(f"s_lshl_b32 s{S_T0}, s{S_T0}, 7")
    P(f"s_add_u32 s{S_T0}, s{S_T0}, {FL_G}")
    P(f"s_lshl_b32 s{S_T1}, s{S_R}, 7")
    P(f"s_add_u32 s{S_T1}, s{S_T1}, {FL_G}")
    P(f"v_writelane_b32 v{reg}, s{S_T0}, 14")
    P(f"v_writelane_b32 v{reg}, s{S_T1}, 15")

def att_addr(P, o):
    T = V_T
    P(f"s_mul_i32 s{S_T0}, s{S_J}, 7")
    P(f"s_lshr_b32 s{S_T0}, s{S_T0}, 1")
    P(f"s_lshl_b32 s{S_T4}, s{S_T0}, 9")
    P(f"s_add_u32 s{S_T1}, s{S_T4}, {56*512}")
    P(f"v_add_u32 v{A_KD}, s{S_T1}, v{V_L16}")
    P(f"v_lshrrev_b32 v{T}, 5, v{V_LANE}")
    P(f"v_and_b32 v{T+1}, 31, v{V_LANE}")
    P(f"s_add_u32 s{S_T1}, s{S_T4}, {112*512 - 2048}")
    P(f"v_lshlrev_b32 v{T+2}, 2, v{T}")
    P(f"v_xor_b32 v{T+2}, v{T+2}, v{T+1}")
    P(f"v_lshlrev_b32 v{T+2}, 4, v{T+2}")
    P(f"v_lshl_add_u32 v{T+2}, v{T}, 9, v{T+2}")
    P(f"v_add_u32 v{A_VD}, s{S_T1}, v{T+2}")
    P(f"v_xor_b32 v{A_VD+1}, 128, v{A_VD}")
    P(f"v_add_u32 v{A_KR}, s{S_M4}, v{V_L16}")
    P(f"v_bfe_u32 v{T+1}, v{V_LANE}, 4, 1")
    P(f"v_bfe_u32 v{T+2}, v{V_LANE}, 1, 1")
    P(f"v_lshl_add_u32 v{T+3}, v{T+1}, 1, v{T+2}")
    P(f"v_lshlrev_b32 v{T+4}, 9, v{T+3}")
    P(f"v_xor_b32 v{T+3}, v{T+3}, v{T}")
    P(f"v_lshl_add_u32 v{T+4}, v{T+3}, 6, v{T+4}")
    P(f"v_bfe_u32 v{T+3}, v{V_LANE}, 2, 2")
    P(f"v_lshl_add_u32 v{T+4}, v{T+3}, 4, v{T+4}")
    P(f"v_and_b32 v{T+3}, 1, v{V_LANE}")
    P(f"v_lshl_add_u32 v{T+4}, v{T+3}, 3, v{T+4}")
    P(f"s_add_u32 s{S_T1}, s{S_M4}, 2048")
    P(f"v_add_u32 v{A_VR}, s{S_T1}, v{T+4}")
    P(f"v_xor_b32 v{A_VR+1}, 128, v{A_VR}")
    P(f"v_and_b32 v{T+1}, 31, v{V_LANE}")
    P(f"v_mul_u32_u24 v{T+2}, 12, v{T}")
    P(f"s_cmp_eq_u32 s{S_PAR}, 0")
    P(f"s_cselect_b32 s{S_T1}, -1, 0")
    P(f"s_cselect_b32 s{S_T2}, 1544, 0")
    P(f"v_and_b32 v{T+2}, s{S_T1}, v{T+2}")
    P(f"v_xor_b32 v{T+1}, v{T+1}, v{T+2}")
    P(f"v_lshlrev_b32 v{T+1}, 4, v{T+1}")
    P(f"v_lshl_add_u32 v{T+1}, v{T}, 11, v{T+1}")
    P(f"s_mul_i32 s{S_T3}, s{S_WAVE}, {3*4096}")
    P(f"s_add_u32 s{S_T2}, s{S_T2}, s{S_T3}")
    P(f"v_add_u32 v{A_PA}, s{S_T2}, v{T+1}")
    P(f"s_mul_i32 s{S_T1}, s{S_WAVE}, 3")
    P(f"s_lshl2_add_u32 s{S_T1}, s{S_ARB}, s{S_T1}")
    P(f"v_mov_b32 v{T+1}, 0x3f80")
    for k in range(3):
        P(f"s_add_u32 s{S_T2}, s{S_T1}, {k}")
        P(f"s_cmp_lt_u32 s{S_T2}, 8")
        P(f"s_cselect_b32 s{S_T2}, 0xf14a, 0")
        P(f"v_mov_b32 v{A_PV+k}, s{S_T2}")
    P(f"v_cmp_gt_u32 vcc, 32, v{V_LANE}")
    for k in range(3): P(f"v_cndmask_b32 v{A_PV+k}, v{T+1}, v{A_PV+k}, vcc")

def att_masks(P, o):
    T = V_T
    P(f"v_lshrrev_b32 v{T+1}, 5, v{V_LANE}")
    P(f"v_mul_u32_u24 v{T+1}, 36, v{T+1}")
    P(f"v_sub_u32 v{T+1}, v{V_LANE}, v{T+1}")
    for r in range(16):
        P(f"v_cmp_le_i32_e64 {sr(S_MASK+2*r)}, {(r & 3) + 8 * (r >> 2)}, v{T+1}")
    P(f"v_mov_b32 v{T+1}, 0xffff")
    P(f"v_mov_b32 v{T+2}, 0xffff0000")
    for i in range(8):
        P(f"v_cndmask_b32_e64 v{T+3}, 0, v{T+1}, {sr(S_MASK+4*i)}")
        P(f"v_cndmask_b32_e64 v{T+4}, 0, v{T+2}, {sr(S_MASK+4*i+2)}")
        P(f"v_or_b32 v{AM+i}, v{T+3}, v{T+4}")

def att_kvoff(P, o):
    P(f"s_mul_i32 s{S_T1}, s{S_WAVE}, 3")
    P(f"s_lshl2_add_u32 s{S_T1}, s{S_ARB}, s{S_T1}")
    for k in range(3):
        P(f"s_add_i32 s{S_T2}, s{S_T1}, {k-8}")
        P(f"s_max_i32 s{S_T2}, s{S_T2}, 0")
        P(f"s_mul_i32 s{S_T2}, s{S_T2}, {QKV_TB}")
        P(f"s_add_u32 s{S_KV[k]}, s{S_T2}, {QKV_OFF}")
    P(f"s_mul_i32 s{S_T0}, s{S_J}, 7")
    P(f"s_lshr_b32 s{S_T0}, s{S_T0}, 1")
    P(f"s_lshl_b32 s{S_T0}, s{S_T0}, 9")
    P(f"s_mul_i32 s{S_T2}, s{S_ATB}, {QKV_TB}")
    P(f"s_add_u32 s{S_T2}, s{S_T2}, s{S_T0}")
    P(f"s_add_u32 s{S_KV[3]}, s{S_T2}, {QKV_OFF}")

def att_loads(o, last_g=True):
    T = V_T
    L = [[f"s_mul_i32 s{S_T3}, s{S_WAVE}, {3*4096}"]]
    for k in range(3):
        g = [f"s_add_u32 m0, s{S_T3}, {LKV + k*4096}"]
        for t in range(2):
            g.append((f"buffer_load_dwordx4 v{A_KD}, {sr(SRD_WS,4)}, s{S_KV[k]} offen offset:{t*1024} {SC} lds", 'kv'))
        for t in range(2):
            g.append((f"buffer_load_dwordx4 v{A_VD+t}, {sr(SRD_WS,4)}, s{S_KV[k]} offen offset:{2048+t*1024} {SC} lds", 'kv'))
        L += [[x] for x in g]
    for t in range(2):
        L.append([f"buffer_load_dwordx4 {vr(AQ+4*t,4)}, v{V_L16}, {sr(SRD_WS,4)}, s{S_KV[3]} offen offset:{t*1024} {SC}"])
    G = [f"v_and_b32 v{T+1}, 31, v{V_LANE}", f"v_lshlrev_b32 v{T+1}, 2, v{T+1}",
         f"s_lshl_b32 s{S_T2}, s{S_ATB}, 7", f"s_add_u32 s{S_T2}, s{S_T2}, {G_OFF}",
         f"buffer_load_dword v{A_G}, v{T+1}, {sr(SRD_WS,4)}, s{S_T2} offen {SC}"]
    if last_g:
        G += [f"s_and_b32 s{S_T1}, s{S_WAVE}, 1", f"s_lshl_b32 s{S_T0}, s{S_R}, 8", f"s_add_u32 s{S_T0}, s{S_T0}, {G_OFF}",
              f"s_lshl_b32 s{S_T2}, s{S_T1}, 7", f"s_xor_b32 s{S_T3}, s{S_T2}, 128", f"s_add_u32 s{S_T2}, s{S_T2}, s{S_T0}",
              f"s_add_u32 s{S_T3}, s{S_T3}, s{S_T0}",
              f"buffer_load_dword v{L_G}, v{T+1}, {sr(SRD_WS,4)}, s{S_T3} offen {SC}",
              f"buffer_load_dword v{L_G+1}, v{T+1}, {sr(SRD_WS,4)}, s{S_T2} offen {SC}"]
    return L + [[x] for x in G]

def att_patch():
    T = V_T
    L = [[WVM('kv')]]
    L += [[f"ds_write_b16 v{A_PA}, v{A_PV+k} offset:{LKV + k*4096}"] for k in range(3)]
    L += [[f"s_cmp_eq_u32 s{S_PAR}, 0\ns_cselect_b32 s{S_T0}, 0, -1\ns_cselect_b32 s{S_T3}, -1, 0"],
          [f"s_mov_b32 s{S_T1}, 0"], [f"s_mov_b32 s{S_T2}, 0"], [f"v_mov_b32 v{T}, 0x3f80"],
          [f"v_cndmask_b32_e64 v{AQ}, v{AQ}, v{T}, {sr(S_T0)}"], [f"v_cndmask_b32_e64 v{AQ+1}, v{AQ+1}, 0, {sr(S_T0)}"],
          [f"v_cndmask_b32_e64 v{AQ+6}, v{AQ+6}, v{T}, {sr(S_T2)}"], [f"v_cndmask_b32_e64 v{AQ+7}, v{AQ+7}, 0, {sr(S_T2)}"]]
    return L

ORDER = [0, 8, 1, 2, 3, 4, 5, 6, 7]
def kread(i, buf):
    return [f"ds_read_b128 {vr(AK+8*buf+4*t,4)}, v{A_KR} offset:{LKV + i*4096 + t*1024}" for t in range(2)]
def vread(i, buf):
    return [f"ds_read_b64_tr_b16 {vr(AV+8*buf+4*t+2*rho,2)}, v{A_VR+rho} offset:{LKV + i*4096 + t*256}" for t in range(2) for rho in range(2)]

def attention(P, o, hooks, kpre=False):
    T = V_T
    order = ORDER
    stamp(P, o, 'att_go')
    gi = [0]
    def hk():
        gi[0] += 1
        return [Slot(f'a{gi[0] - 1}')] if hooks is None else []
    if not kpre: P.add(kread(order[0], 0)); P.add(kread(order[1], 1))
    SM = AS + 16
    buf1 = [AS, SM, AS + 32, AO, AS, AS + 32, AO, AS, AS + 32]
    def qkx(s, kbuf, c): return [mfma(s, AK + 8 * kbuf, AQ, c), mfma(s, AK + 8 * kbuf + 4, AQ + 4, s)]
    def maxops(s, first=False):
        return [f"v_max_f32 v{A_MX}, v{s}, v{s+1}" if (first and i == 0) else f"v_max3_f32 v{A_MX}, v{s+2*i}, v{s+2*i+1}, v{A_MX}" for i in range(8)]
    merge = [f"v_cndmask_b32_e64 v{SM+r}, v{AS+r}, v{SM+r}, {sr(S_MASK+2*r)}" for r in range(16)]
    for n in range(9):
        m = qkx(buf1[n], n & 1, None)
        post = []
        if n == 3: post = merge
        if n == 4: post = maxops(SM, True) + maxops(buf1[2])
        if n >= 5: post = maxops(buf1[n - 2])
        nxt = kread(order[n + 2 if n + 2 < 9 else n - 5], n & 1)
        h = len(post) // 2
        P.add([m[0]] + hk() + post[:h] + [m[1]] + nxt + (vread(0, 0) + vread(8, 1) if n == 8 else []) + hk() + post[h:])
    P.add(maxops(buf1[7]))
    P.add(maxops(buf1[8]))
    P(f"v_mov_b32 v{T}, v{A_MX}")
    P(f"v_permlane32_swap_b32 v{A_MX}, v{T}")
    P(f"v_max_f32 v{A_MX}, v{A_MX}, v{T}")
    P(f"v_sub_f32 v{AN}, 0, v{A_MX}")
    P(f"v_sub_f32 v{AN+1}, 0, v{A_MX}")
    for i in range(1, 8): P(f"v_mov_b64 {vr(AN+2*i,2)}, {vr(AN,2)}")
    stamp(P, o, 'att_p1')
    kb = lambda n: (n + 1) & 1
    buf2 = lambda n: AS + 16 * [0, 2, 1][(n - 2) % 3]
    def expcvt(s, p):
        L = []
        for i in range(8):
            L += [f"v_exp_f32 v{s+2*i}, v{s+2*i}", f"v_exp_f32 v{s+2*i+1}, v{s+2*i+1}"]
            if i >= 1: L.append(f"v_cvt_pk_bf16_f32 v{p+i-1}, v{s+2*i-2}, v{s+2*i-1}")
        L.append(f"v_cvt_pk_bf16_f32 v{p+7}, v{s+14}, v{s+15}")
        return L
    def pv(p, vbuf, first=False):
        return [mfma(AO, AV + 8 * vbuf, p, None if first else AO), mfma(AO, AV + 8 * vbuf + 4, p + 4, AO)]
    m2 = qkx(buf2(2), kb(2), AN); m3 = qkx(buf2(3), kb(3), AN)
    sub = [f"v_sub_f32 v{SM+r}, v{SM+r}, v{A_MX}" for r in range(16)]
    ec = expcvt(SM, AP)
    sp = []
    for i in range(8):
        sp += [f"v_and_b32 v{AP+8+i}, v{AP+i}, v{AM+i}", f"v_xor_b32 v{AP+16+i}, v{AP+i}, v{AP+8+i}"]
    P.add([m2[0]] + hk() + sub[:8] + [m2[1]] + kread(order[4], kb(4)) + hk() + sub[8:] + [m3[0]] + hk() + ec[:5] +
          [m3[1]] + kread(order[5], kb(5)) + hk() + ec[5:] + sp)
    pend = pv(AP + 16, 0, True) + pv(AP + 8, 1)
    pend_rd = vread(order[2], 0) + vread(order[3], 1)
    for n in range(2, 9):
        p = AP + 16 if n == 3 else (AP if (n & 1) == 0 else AP + 8)
        ec = expcvt(buf2(n), p)
        mq = qkx(buf2(n + 2), kb(n + 2), AN) if n + 2 < 9 else []
        kr = kread(order[n + 4], kb(n + 4)) if n + 4 < 9 else []
        ms = pend + mq
        seq = []
        k = len(ms)
        step = max(1, len(ec) // max(k, 1))
        ei = 0
        for j, mm in enumerate(ms):
            seq.append(mm)
            if j == len(pend) - 1: seq += pend_rd
            if j == k - 1 and mq: seq += kr
            seq += hk()
            take = ec[ei:ei + step] if j < k - 1 else ec[ei:]
            seq += take; ei += len(take)
        P.add(seq)
        vb = n & 1
        pend = pv(p, vb)
        pend_rd = vread(order[n + 2], vb) if n + 2 < 9 else []
    P.add([pend[0]] + hk() + [pend[1]] + hk())
    stamp(P, o, 'att_p2')

def att_epilogue(P, o):
    T = V_T
    P(f"s_cmp_eq_u32 s{S_PAR}, 0")
    P(f"s_cselect_b64 {sr(S_T0)}, -1, 0")
    P(f"s_cselect_b32 s{S_MASK}, 0, -1")
    P(f"s_cselect_b32 s{S_MASK+3}, -1, 0")
    P(f"s_mov_b32 s{S_MASK+1}, 0")
    P(f"s_mov_b32 s{S_MASK+2}, 0")
    P(f"v_cndmask_b32_e64 v{T}, v{AO}, v{AO+12}, {sr(S_T0)}")
    P(f"v_mov_b32 v{T+1}, v{T}")
    P(f"v_permlane32_swap_b32 v{T}, v{T+1}")
    P(f"v_cndmask_b32_e64 v{T}, v{T}, v{T+1}, {sr(S_T0)}")
    P(f"v_rcp_f32 v{T}, v{T}")
    P(f"v_mul_f32 v{T+1}, v{T}, v{A_G}")
    for t in range(2):
        for i in range(8 * t, 8 * t + 8): P(f"v_mul_f32 v{AO+i}, v{T+1}, v{AO+i}")
        for i in range(4 * t, 4 * t + 4): P(f"v_cvt_pk_bf16_f32 v{AP+i}, v{AO+2*i}, v{AO+2*i+1}")
        for r in ((0, 1), (6, 7))[t]: P(f"v_cndmask_b32_e64 v{AP+r}, v{AP+r}, 0, {sr(S_MASK + 2*t)}")
        P(f"buffer_store_dwordx4 {vr(AP+4*t,4)}, v{V_L16}, {sr(SRD_WS,4)}, s{S_OST} offen offset:{t*1024} {SC}", tag='ost')

LACC = 16
EARLY = [('a', r) for r in range(32, 112, 4)] + list(range(160, 200, 4)) + list(range(204, 216, 4))
LATE = list(range(80, 120, 4)) + list(range(144, 160, 4)) + list(range(236, 252, 4)) + list(range(120, 144, 4))

def last_baddr(P, o):
    T = V_T
    P(f"s_mov_b64 {sr(SRD_W2)}, {sr(S_W2)}")
    srd_rest(P, [(SRD_W2, 1792*896)])
    P(f"s_mul_i32 s{S_BOF}, s{S_WAVE}, {448*896}")
    P(f"s_lshl_b32 s{S_T3}, s{S_C}, 7")
    P(f"s_add_u32 s{S_BOF}, s{S_BOF}, s{S_T3}")
    if ROT[0]:
        P(f"s_add_u32 s{S_AG}, s{S_C}, s{S_RBL}")
        if o.rcls == 2: P(f"s_and_b32 s{S_AG}, s{S_AG}, 1")
        else:
            P(f"s_lshl_b32 s{S_AG}, s{S_AG}, 1")
            P(f"s_lshr_b32 s{S_AG}, 0x24924, s{S_AG}")
            P(f"s_and_b32 s{S_AG}, s{S_AG}, 3")
        P(f"s_mul_i32 s{S_AG}, s{S_AG}, {ROT[0]}")
        P(f"s_lshl_b32 s{S_BG}, s{S_AG}, 1")
        P(f"s_mul_i32 s{S_T3}, s{S_AG}, {64*896}")
        P(f"s_add_u32 s{S_BOF}, s{S_BOF}, s{S_T3}")
    P(f"v_lshrrev_b32 v{T}, 3, v{V_LANE}")
    P(f"v_bfe_u32 v{T+1}, v{V_LANE}, 4, 1")
    P(f"v_lshlrev_b32 v{T+1}, 2, v{T+1}")
    P(f"v_xor_b32 v{T+1}, v{T+1}, v{V_LANE}")
    P(f"v_and_b32 v{T+1}, 7, v{T+1}")
    P(f"v_mul_u32_u24 v{T}, 896, v{T}")
    P(f"v_lshl_add_u32 v{V_BA}, v{T+1}, 4, v{T}")
    for i in range(1, 4): P(f"v_add_u32 v{V_BA+i}, {i*(8*896-1024)}, v{V_BA}")
    P(f"v_bfe_u32 v{T}, v{V_LANE}, 2, 2")
    P(f"v_lshrrev_b32 v{T+1}, 5, v{V_LANE}")
    P(f"v_lshl_add_u32 v{T+1}, v{T+1}, 2, v{T}")
    P(f"v_lshlrev_b32 v{T+1}, 7, v{T+1}")
    P(f"v_bfe_u32 v{T+2}, v{V_LANE}, 4, 1")
    P(f"v_lshl_add_u32 v{T+1}, v{T+2}, 5, v{T+1}")
    P(f"v_and_b32 v{T+2}, 3, v{V_LANE}")
    P(f"v_lshl_add_u32 v{T+1}, v{T+2}, 3, v{T+1}")
    P(f"v_lshrrev_b32 v{T}, 1, v{T}")
    P(f"v_lshl_add_u32 v{T}, v{T}, 6, v{T+1}")
    P(f"v_add_u32 v{T}, s{S_M4}, v{T}")
    P(f"s_lshr_b32 s{S_T0}, s{S_WAVE}, 1")
    P(f"s_lshl_b32 s{S_T0}, s{S_T0}, 6")
    P(f"v_xor_b32 v{V_BR[0][1]}, s{S_T0}, v{T}")
    P(f"v_xor_b32 v{V_BR[0][0]}, 64, v{V_BR[0][1]}")
    for k in range(2): P(f"v_add_u32 v{V_BR[1][k]}, 0x10000, v{V_BR[0][k]}")

V_AT = 201
def last_baddr2(P, o):
    P(f"v_lshrrev_b32 v{V_T}, 5, v{V_LANE}")
    P(f"v_mul_u32_u24 v{V_T}, {A_TB - 4096}, v{V_T}")
    P(f"v_lshl_add_u32 v{V_T}, v{V_LANE}, 7, v{V_T}")
    P(f"s_lshl_b32 s{S_T0}, s{S_C}, 12")
    P(f"v_add_u32 v{V_AT}, s{S_T0}, v{V_T}")
    for k in range(2): P(f"v_add_u32 v{V_BR[2][k]}, 0x20000, v{V_BR[0][k]}")

def last_setup(P, o):
    T = V_T
    P(f"s_lshl_b32 s{S_T0}, s{S_C}, 7")
    P(f"v_and_b32 v{T}, 31, v{V_LANE}")
    P(f"v_lshl_add_u32 v{T+1}, v{T}, 2, s{S_T0}")
    P(f"global_load_dword v{V_DUM}, v{T+1}, {sr(S_B2)}")
    P(f"s_and_b32 s{S_T1}, s{S_WAVE}, 1")
    P(f"s_mul_i32 s{S_T2}, s{S_T1}, {A_TB}")
    P(f"s_sub_u32 s{S_T3}, {A_TB}, s{S_T2}")
    P(f"v_add_u32 v{V_AA}, s{S_T3}, v{V_L16}")
    P(f"v_add_u32 v{V_AA+1}, s{S_T2}, v{V_L16}")
    P(f"v_and_b32 v{T+1}, 1, v{V_LANE}")
    P(f"s_lshl_b32 s{S_T0}, s{S_R}, 1")
    P(f"v_add_u32 v{T+1}, s{S_T0}, v{T+1}")
    P(f"v_lshlrev_b32 v{T+1}, 4, v{T+1}")
    P(f"v_bfe_u32 v{T+2}, v{V_LANE}, 1, 2")
    P(f"v_add_u32 v{T+1}, v{T+1}, v{T+2}")
    P(f"v_lshlrev_b32 v{T+1}, 7, v{T+1}")
    P(f"s_mul_i32 s{S_T0}, s{S_WAVE}, 7")
    P(f"s_lshr_b32 s{S_T0}, s{S_T0}, 1")
    P(f"s_lshl_b32 s{S_T0}, s{S_T0}, 7")
    P(f"s_add_u32 s{S_T0}, s{S_T0}, {FL_H}")
    P(f"v_add_u32 v{V_PH}, s{S_T0}, v{T+1}")
    P(f"s_lshl_b32 s{S_T0}, s{S_WAVE}, 9")
    P(f"s_add_u32 s{S_T0}, s{S_T0}, {FL_O}")
    P(f"v_add_u32 v{V_PO}, s{S_T0}, v{T+1}")
    for d in range(1, 4):
        P(f"s_xor_b32 s{S_T0}, s{S_WAVE}, {d}")
        P(f"s_lshl_b32 s{S_T0}, s{S_T0}, 12")
        P(f"s_add_u32 s{S_T0}, s{S_T0}, {LP[d]}")
        P(f"v_add_u32 v{L_RW+d-1}, s{S_T0}, v{V_L16}")
    P(f"s_add_u32 s{S_T0}, s{S_M4}, {LP[1]}")
    P(f"v_add_u32 v{L_RR}, s{S_T0}, v{V_L16}")
    P(f"s_lshl_b32 s{S_T0}, s{S_R}, 6")
    P(f"s_lshl_b32 s{S_T2}, s{S_T1}, 5")
    P(f"s_add_u32 s{S_T0}, s{S_T0}, s{S_T2}")
    P(f"v_add_u32 v{T+1}, s{S_T0}, v{T}")
    P(f"v_mul_u32_u24 v{T+1}, 896, v{T+1}")
    P(f"v_lshrrev_b32 v{T+2}, 5, v{V_LANE}")
    P(f"v_lshl_add_u32 v{T+1}, v{T+2}, 4, v{T+1}")
    P(f"s_lshl_b32 s{S_T0}, s{S_C}, 7")
    P(f"s_lshr_b32 s{S_T2}, s{S_WAVE}, 1")
    P(f"s_lshl_b32 s{S_T2}, s{S_T2}, 6")
    P(f"s_add_u32 s{S_T0}, s{S_T0}, s{S_T2}")
    P(f"v_add_u32 v{L_OA}, s{S_T0}, v{T+1}")

def last_soff(P, o):
    P(f"s_mul_i32 s{S_T0}, s{S_R}, {2*A_TB}")
    P(f"s_add_u32 s{S_T0}, s{S_T0}, {A_OFF}")
    P(f"s_lshl_b32 s{S_T2}, s{S_WAVE}, 13")
    P(f"s_add_u32 s{S_AO2}, s{S_T0}, s{S_T2}")
    P(f"s_add_u32 s{S_AO2}, s{S_AO2}, {112*1024}")
    P(f"s_mul_i32 s{S_T2}, s{S_WAVE}, {28*1024}")
    P(f"s_add_u32 s{S_AOF}, s{S_T0}, s{S_T2}")
    if ROT[0]:
        P(f"s_lshl_b32 s{S_T2}, s{S_AG}, 12")
        P(f"s_add_u32 s{S_AOF}, s{S_AOF}, s{S_T2}")
    P(f"s_mov_b64 {sr(SRD_WO)}, {sr(S_WO)}")
    P(f"s_mov_b32 s{SRD_WO+2}, {448*896}")
    P(f"s_mul_i32 s{S_BO}, s{S_WAVE}, {112*896}")
    P(f"s_lshl_b32 s{S_T3}, s{S_C}, 7")
    P(f"s_add_u32 s{S_BO}, s{S_BO}, s{S_T3}")

def bias2(P, o):
    P(f"s_add_u32 s{S_T0}, s{S_M4}, {LP[PIECE[11]]}")
    bias_expand(P, V_DUM, 12, L_BA, S_T0)
    P(f"s_lshr_b32 s{S_T2}, s{S_WAVE}, 1")
    P(f"s_lshl_b32 s{S_T2}, s{S_T2}, 7")
    P(f"v_add_u32 v{L_BA}, s{S_T2}, v{L_BA}")
    P(f"v_sub_f32 v{L_G}, 1.0, v{L_G}")
    P(f"v_sub_f32 v{L_G+1}, 1.0, v{L_G+1}")

def a_slots(o):
    ne = o.nearly * 2
    sl = EARLY[:ne] + LATE + EARLY[ne:]
    ring = len(sl) // 2 * 2
    return [sl[i % ring] for i in range(72)], ring // 2

def a_load(o, n):
    sl, _ = a_slots(o)
    so, m = (S_AOF, n) if n < 28 else (S_AO2, n - 28)
    L = [rot_step(so, S_AG, 4096, 7) if (ROT[0] and n < 28) else f"s_add_u32 s{so}, s{so}, 4096"] if (m and m % 4 == 0) else []
    for ttl in range(2):
        L.append((f"buffer_load_dwordx4 {xr(sl[2*n+ttl])}, v{V_AA+ttl}, {sr(SRD_WS,4)}, s{so} offen offset:{(m&3)*1024} {SC}", 'ald'))
    return L

def last(P, o):
    q = lambda ttl, ctl: LACC + 32 * ttl + 16 * ctl
    sl, depth = a_slots(o)
    mm = lambda n, ttl, ctl: mfma(q(ttl, ctl), breg(n, ctl), sl[2 * n + ttl], None if n == 0 else q(ttl, ctl))
    assert o.nearly > 0 and PIECE[11] not in (1, 2, 3)
    nxt = o.nearly
    D = Prog(); att_epilogue(D, o); epi = atomic_groups(D.L)
    if not o.epin:
        for g in epi: P.add(g)
        epi = []
        while nxt < max(o.lead, o.nearly): P.add(a_load(o, nxt)); nxt += 1
    EP = {}
    if epi: spread(EP, epi, list(range(o.epin)), False)
    stamp(P, o, 'last_go')
    opolled = False
    ol = lambda m, ttl: [(f"buffer_load_dwordx4 {xr(sl[2*(28+m)+ttl])}, v{V_AA+ttl}, {sr(SRD_WS,4)}, s{S_AO2 if m < 4 else S_BO} offen offset:{(m&3)*1024} {SC}", 'ald')]
    oq = [ol(m, ttl) for ttl in range(2) for m in range(8)]
    oq[0] = [f"s_add_u32 s{S_BO}, s{S_AO2}, 4096"] + oq[0]
    assert depth >= 36 - o.ocheck_at and not o.left
    sc = lambda ttl, ctl: [f"v_mul_f32 v{q(ttl,ctl)+i}, v{L_G+ttl}, v{q(ttl,ctl)+i}" for i in range(16)]
    D = Prog(); bias2(D, o); b2l = [[x] for x in D.L]
    for n in range(28):
        M = [mm(n, ttl, ctl) for ttl in range(2) for ctl in range(2)]
        ex = []; cnt = 0
        top = (36 if opolled else 28)
        if o.left and n < o.left_steps:
            k = -(-len(o.left) // (o.left_steps - n)); ex += o.left[:k]; o.left = o.left[k:]
        while nxt < min(n + min(depth, o.lead + 1), 28) and cnt < 2:
            ex += merge_salu([[e] for e in a_load(o, nxt)]); nxt += 1; cnt += 1
        if opolled and oq:
            k = -(-len(oq) // max(1, o.oend - n)); ex += oq[:k]; oq = oq[k:]
        if o.jit0 <= n < o.jit0 + 14 and not o.drop & 32:
            k = n - o.jit0 + 22
            ex += [[WVM(f'bp{k >> 1}')] + b_reads(k)[:2], b_reads(k)[2:]]
        if o.jit0 + 3 <= n < o.jit0 + 6: ex += b2l[((n - o.jit0 - 3) * len(b2l)) // 3:((n - o.jit0 - 2) * len(b2l)) // 3]
        if n == o.oflag_at and o.nearly > 0:
            D0 = Prog(); D1 = Prog()
            if o.fine: stamp(D0, o, 'of0'); stamp(D1, o, 'of1')
            ex = ex + [D0.L + [WVM('ost')] + D1.L + flag_store(S_OFL)]
        if n == o.opoll_at: ex += [poll_issue(V_PO)]
        if n == o.ocheck_at:
            D0 = Prog(); D1 = Prog()
            if o.fine: stamp(D0, o, 'oc0'); stamp(D1, o, 'oc1')
            ex = [D0.L + poll_check(V_PO) + D1.L] + ex; opolled = True
        if o.hst and n % 4 == 0 and n: stamp(P, o, f'h{n}')
        hh = {}
        isv = lambda it: any((isinstance(x, tuple) and x[0].startswith('buffer')) or (isinstance(x, str) and x.startswith('buffer')) for x in it)
        vm_ = [it for it in ex if isv(it) or any(isinstance(x, str) and 'cbranch' in x for x in it)]
        ot_ = [it for it in ex if it not in vm_]
        if vm_: spread(hh, vm_, list(o.apos) if len(vm_) <= 2 else [0, 1, 2, 3])
        if ot_: spread(hh, ot_, list(o.dpos))
        if n == o.bar_at: P("s_waitcnt lgkmcnt(0)"); P("s_barrier")
        if n == 26: M = [mm(26, 0, 0), mm(26, 0, 1), mm(27, 0, 0), mm(27, 0, 1)]
        if n == 27: M = [mm(26, 1, 0), mm(26, 1, 1), mm(27, 1, 0), mm(27, 1, 1)]
        for t in range(4):
            P.add([M[t]] + sum(hh.get(t, []), []) + sum(EP.get(4 * n + t, []), []))
            if n == 27 and t >= 1: P.add((sc(0, 0) + sc(0, 1))[[0, 0, 10, 21][t]:[0, 10, 21, 32][t]])
    stamp(P, o, 'last_h')
    for it in oq: P.add(it)
    used = set(sl[56:72])
    free = [r for r in sorted(x for x in set(sl) if not isinstance(x, tuple)) if r not in used]
    B2 = [r for r in free if all((r + 4 * k) in free for k in range(4))][0]
    for k in range(4): P(f"ds_read_b128 {vr(B2+4*k,4)}, v{L_BA} offset:{32*k}")
    rest = sc(1, 0) + [f"v_add_f32 v{q(1,1)+i}, v{q(1,1)+i}, v{B2+i}" for i in range(16)] + sc(1, 1)
    M = []
    for n in range(28, 36): M += [[mm(n, 0, 0)], [mm(n, 0, 1)]]
    P.add(interleave(M, rest))
    wr = lambda ttl, ctl: [f"ds_write_b128 v{L_RR}, {vr(q(ttl,ctl)+4*i,4)} offset:{(((1-ttl) | ((1-ctl) << 1)) - 1)*16384 + i*1024}" for i in range(4)]
    w = wr(0, 0) + wr(0, 1)
    seq = []
    for i, n in enumerate(range(28, 36)):
        seq.append(mm(n, 1, 0))
        if i >= 2: seq += w[:2]; w = w[2:]
    seq += w
    w = wr(1, 0)
    for i, n in enumerate(range(28, 36)):
        seq.append(mm(n, 1, 1))
        if i >= 3 and w: seq.append(w.pop(0))
    P.add(seq + w)
    P("s_waitcnt lgkmcnt(0)")
    P("s_barrier")
    stamp(P, o, 'last_o')
    R = 80
    for d in range(3):
        for i in range(4):
            P(f"ds_read_b128 {vr(R+16*d+4*i,4)}, v{L_RW+d} offset:{i*1024}")
    o_ = q(1, 1)
    for d in range(3):
        for i in range(8):
            P(f"v_pk_add_f32 {vr(o_+2*i,2)}, {vr(o_+2*i,2)}, {vr(R+16*d+2*i,2)}")
    p = R + 48
    for i in range(8): P(f"v_cvt_pk_bf16_f32 v{p+i}, v{o_+2*i}, v{o_+2*i+1}")
    for h in range(2):
        P(f"v_permlane32_swap_b32 v{p+4*h}, v{p+4*h+2}")
        P(f"v_permlane32_swap_b32 v{p+4*h+1}, v{p+4*h+3}")
    for h in range(2):
        P(f"buffer_store_dwordx4 {vr(p+4*h,4)}, v{L_OA}, {sr(SRD_OUT,4)}, 0 offen offset:{32*h} {['', 'sc1', 'nt'][o.osc]}")
    stamp(P, o, 'end')

HEADER = open('cdna_kernels/' + NAME + '.s.ref').read().split('; Override launch')[0]

def finish(P, o, name):
    for sp in slow_paths:
        P.forget(); P(sp)
    L = finalize(P, True)
    if o.align:
        L, nf = align_runs(L); print('aligned runs:', nf)
    out = HEADER + f"; @launch grid=(256,1,1) block=(256,1,1) lds={LDS_BYTES}\n"
    out += '.amdgcn_target "amdgcn-amd-amdhsa--gfx950"\n.text\n'
    out += f".globl {name}\n.p2align 8\n.type {name},@function\n{name}:\n" + text(L)
    out += "s_endpgm\n.fill 2048, 4, 0xbf800000\n"
    out += f""".section .rodata,"a"
.p2align 6
.amdhsa_kernel {name}
  .amdhsa_next_free_vgpr 512
  .amdhsa_next_free_sgpr 102
  .amdhsa_accum_offset 256
  .amdhsa_group_segment_fixed_size 0
  .amdhsa_kernarg_size 96
  .amdhsa_user_sgpr_count 2
  .amdhsa_user_sgpr_kernarg_segment_ptr 1
  .amdhsa_system_sgpr_workgroup_id_x 1
.end_amdhsa_kernel
"""
    if o.diag is not None:
        out = out.replace('DIAG_I', str(o.stamp_names.index(o.diag[0]))).replace('DIAG_J', str(o.stamp_names.index(o.diag[1])))
    return out

def stf(o, n):
    D = Prog()
    if o.fine: stamp(D, o, n)
    return D.L

def groups(fn, o):
    D = Prog(); fn(D, o); return atomic_groups(D.L)

def build(o):
    name = NAME + "_kernel"
    R = lambda a, b: list(range(a, b))
    P = Prog(); setup(P, o, "L_end")
    P(f"s_cmp_eq_u32 s{S_C}, 7")
    P("s_cbranch_scc1 L_prep")
    H = Gaps()
    def first(D, o):
        s1_w1_addr(D, o)
        if o.w1t: w1_touch(D, o)
        common2(D, o); s1_misc(D, o)
        D(f"buffer_load_dword v{V_TAG}, v{V_FLAGOFF}, {sr(SRD_WS,4)}, 0 offen")
        last_baddr(D, o)
        att_scalars(D, o)
        if not o.b1late: bias1(D, o)
        att_poll_addr(D, o)
        if not o.glate: gate_flags(D, o, V_PA)
        att_addr(D, o)
        if o.b1late: bias1(D, o)
        if o.mka: att_masks(D, o)
        D(f"v_readfirstlane_b32 s{S_TAG}, v{V_TAG}"); D.add(TAGOPS)
        for i in range(o.wact):
            D(f"s_mul_i32 s{S_T4}, s{S_RBL}, 7")
            D(f"s_add_u32 s{S_T4}, s{S_T4}, s{S_C}")
            D(f"s_lshl2_add_u32 s{S_T4}, s{S_T4}, s{S_WAVE}")
            D(f"s_add_u32 s{S_T4}, s{S_T4}, {16*o.wsp + 112*i}")
            warm_touch(D, S_T4, 161 + i, S_T0, V_L128)
    H.put('v', groups(first, o), 0, o.su_end)
    H.put('m', bias1_reads(), o.b1r, 84)
    def first2(D, o): att_kvoff(D, o); last_soff(D, o)
    H.put('v', groups(first2, o), o.su_end, 84)
    pass_a(P, o, H)
    qkv_epilogue(P, o, merge_salu([it for n in range(o.nba, o.nbe) for it in dma_b(n)]))
    stamp(P, o, 'qkv_epi')
    H = Gaps()
    def second(D, o):
        last_setup(D, o)
        if o.glate: gate_flags(D, o, V_PH)
        if not o.mka: att_masks(D, o)
    H.put('v', groups(second, o), 0, 50)
    for i, g in enumerate(o.l2t):
        D = Prog(); l2_touch(D, o, i); H.put('v', [D.L], g, g + 1)
    dm = lambda a, b: merge_salu([it for p in range(a, b) for it in b_dma(p)])
    rd = lambda a, b: [[WVM(f'bp{n >> 1}')] + b_reads(n)[:2] if k == 0 else b_reads(n)[2:] for n in range(2 * a, 2 * b) for k in range(2)]
    b = o.pb
    kv = merge_salu(att_loads(o))
    gl = []
    if o.glate: kv, gl = kv[:14], kv[14:]
    def put_m0(items, g0, g1):
        own = lambda g: 12 <= g < 52 and (g - 12) % 16 < 8
        free = [g for g in range(g0, g1) if not own(g)]
        runs = []; cur = []
        for it in items:
            if any(isinstance(x, str) and ' m0,' in x for x in it) and cur: runs.append(cur); cur = []
            cur.append(it)
        runs.append(cur)
        n = len(runs)
        for i, r in enumerate(runs):
            sl = free[(i * len(free)) // n:((i + 1) * len(free)) // n]
            keep = [sl[0]]
            for g in sl[1:]:
                if g != keep[-1] + 1: break
                keep.append(g)
            spread(H.m, r, keep)
    if o.nbe < 4: H.put('m', merge_salu([it for n in range(o.nbe, 4) for it in dma_b(n)]), 0, 12)
    for c in range(3): H.put('m', merge_salu(dma_b(c + 4)), 16 * c + 12, 16 * c + 20)
    if not o.drop & 1: put_m0(dm(0, o.n1), b[0], b[1])
    H.put('m', [stf(o, 'qf0') + [WVM('qst')] + stf(o, 'qf1') + flag_store(S_QFL)], o.qflag, o.qflag + 1)
    H.put('m', [poll_issue(V_PA)], o.kpoll, o.kpoll + 1)
    kvl = kv[o.nkv:]
    if not o.drop & 4: put_m0([['s_waitcnt lgkmcnt(0)', 's_barrier'] * (o.n1 > 4) + stf(o, 'kc0') + poll_check(V_PA) + stf(o, 'kc1') + kv[0]] + kv[1:o.nkv], o.kcheck, o.kend)
    if not o.r1late: H.put('m', rd(0, o.n1), b[2], b[3])
    pt = att_patch()
    if o.patch < 112:
        H.put('m', pt[:4], o.patch, o.patch + 2)
        H.put('v', pt[4:], o.patch + 2, 112)
    pass_b(P, o, H)
    P("s_waitcnt lgkmcnt(0)")
    P("s_barrier")
    stamp(P, o, 'pass_b')
    if o.trunc:
        stamp_flush(P, o); P("s_endpgm"); P.forget(); P("L_prep:"); prep(P, o); stamp_flush(P, o); P("L_end:"); P("s_endpgm")
        return finish(P, o, name)
    if o.patch < 112: P.add(kread(ORDER[0], 0) + kread(ORDER[1], 1))
    last_baddr2(P, o)
    na = 11 + (o.n1 - 4)
    Q = Prog(); held = []
    for F in range(4):
        g = gelu_tile(F)
        for i, x in enumerate(g[:-2]):
            if i % 4 == 0: Q.L.append(Slot(f'g{F}_{i}'))
            Q.add([x])
        held += g[-2:]
        if F >= o.kvt - 1:
            Q.L.append(Slot(f'gs{F}')); Q.add(held); held = []
        if F == o.patch_t:
            if o.fine: stamp(Q, o, 'pt0')
            Q.add(pt[0])
            if o.fine: stamp(Q, o, 'pt1')
            for it in pt[1:]: Q.add(it)
        if F == o.bar_t:
            Q("s_waitcnt lgkmcnt(0)"); Q("s_barrier")
            Q.add(kread(ORDER[0], 0) + kread(ORDER[1], 1))
    stamp(Q, o, 'gelu')
    attention(Q, o, None, kpre=True)
    seen = lambda n: (lambda st: n in st['seen'])
    after = lambda key, dt: (lambda st: key in st['done'] and st['t'] >= st['done'][key] + dt)
    both = lambda a, b: (lambda st: a(st) and b(st))
    dstream = [(it, None, f'kv{i}') for i, it in enumerate(kvl)]
    for p in range(o.n1, 18):
        its = merge_salu(b_dma(p))
        for i, it in enumerate(its):
            cond = None
            if p == o.n1 and i == 0: cond = seen(o.ra0)
            lo = 0 if o.r1late else o.n1
            if i == 0 and [q for q in range(lo, p) if PIECE[q] == PIECE[p]]:
                prev = [q for q in range(lo, p) if PIECE[q] == PIECE[p]][-1]
                cond = after(f'rd{prev}', 60); it = [WLG(f'rd{prev}')] + it
            if o.pause:
                c0 = cond
                cond = (lambda c0: lambda st: (c0 is None or c0(st)) and (o.pause_at not in st['seen'] or f'a{o.resume}' in st['seen']))(c0)
            dstream.append((it, cond, f'dm{p}' if i == len(its) - 1 else 'x'))
    rstream = []
    for p in range(0 if o.r1late else o.n1, 11):
        r = b_reads(2 * p) + b_reads(2 * p + 1)
        for k in range(4):
            it = [(x, f'rd{p}') for x in r[2 * k:2 * k + 2]]
            rstream.append(([WVM(f'bp{p}')] * (k == 0) + it, (seen(o.r1at) if p < o.n1 else both(after(f'dm{p}', o.lat), seen('a0'))) if k == 0 else None, f'rd{p}' if k == 3 else 'x'))
    def st_(n):
        D = Prog()
        if o.fine: stamp(D, o, n)
        return D.L
    names0 = list(o.stamp_names)
    fstream = [(st_('hf0') + [WVM('hst')] + st_('hf1') + flag_store(S_HFL), seen(f'a{o.hflag}'), 'hf')]
    if o.nearly > 0:
        fstream.append((poll_issue(V_PH), seen(f'a{o.hpoll}'), 'hp'))
        al = merge_salu([[x] for n in range(o.nearly) for x in a_load(o, n)])
        al = al[:2] + gl + al[2:]
        if o.atouch:
            tch = [f"buffer_load_dword v{V_AT}, v{V_AT}, {sr(SRD_WS,4)}, s{S_AOF} offen {SC}"]
            fstream.append((st_('hc0') + poll_check(V_PH) + st_('hc1') + tch, seen(f'a{o.hcheck}'), 'hc'))
            fstream += [(it, seen(f'a{o.ea0}'), 'ea') for it in al]
        else:
            fstream.append((st_('hc0') + poll_check(V_PH) + st_('hc1') + al[0], seen(f'a{o.hcheck}'), 'hc'))
            fstream += [(it, None, 'ea') for it in al[1:]]
    L, t = place(Q.L, {'f': fstream, 'r': rstream, 'd': dstream}, gap=o.gap, burst=o.burst)
    kvpos = max([i for i, x in enumerate(L) if isinstance(x, I) and x.tag == 'kv'] + [-1]); hpos = min(i for i, x in enumerate(L) if isinstance(x, I) and x.tag == 'hst')
    print('estimated gelu+attention cycles', t, 'left', len(dstream), len(rstream), len(fstream), 'kv before h stores', kvpos < hpos)
    assert not rstream
    P.L += L
    for it, _, _ in fstream: P.add(it)
    o.left = [it for it, _, _ in dstream]
    last(P, o)
    stamp_flush(P, o)
    P("s_endpgm")
    P.forget()
    P("L_prep:")
    prep(P, o)
    att_scalars(P, o); att_poll_addr(P, o); gate_flags(P, o, V_PA); att_addr(P, o); att_masks(P, o); att_kvoff(P, o)
    poll(P, o, V_PA)
    for it in att_loads(o, False) + att_patch(): P.add(it)
    P("s_waitcnt lgkmcnt(0)")
    P("s_barrier")
    if o.pw & 2:
        srd_rest(P, [(SRD_OUT, 2048*896)])
        P(f"v_lshlrev_b32 v{V_T+3}, 18, v{V_LANE}")
        P(f"buffer_load_dword v200, v{V_T+3}, {sr(SRD_OUT,4)}, 0 offen")
    st, o.stamps = o.stamps, False
    attention(P, o, {})
    att_epilogue(P, o)
    o.stamps = st
    P("s_waitcnt vmcnt(0)")
    P.add(flag_store(S_OFL))
    stamp(P, o, 'p_att')
    stamp_flush(P, o)
    P(f"s_cmp_eq_u32 s2, 56")
    P("s_cbranch_scc0 L_end")
    P(f"s_cmp_eq_u32 s{S_WAVE}, 0")
    P("s_cbranch_scc0 L_end")
    P(f"v_lshlrev_b32 v{V_PA}, 7, v{V_LANE}")
    P(f"s_mov_b32 s{S_CNT}, 4000")
    P("L_ep:")
    for i in range(16):
        P(f"s_mov_b32 s{S_T0}, {FL_O + i*8192}")
        P(f"buffer_load_dwordx2 {vr(16+2*i,2)}, v{V_PA}, {sr(SRD_WS,4)}, s{S_T0} offen sc1")
    P("s_waitcnt vmcnt(0)")
    P(f"s_mov_b64 {sr(S_T0)}, 0")
    for i in range(16):
        P(f"v_cmp_ne_u64 vcc, {sr(S_TAG)}, {vr(16+2*i,2)}")
        P(f"s_or_b64 {sr(S_T0)}, {sr(S_T0)}, vcc")
    P(f"s_sub_u32 s{S_CNT}, s{S_CNT}, 1")
    P("s_cbranch_scc1 L_end")
    P(f"s_cmp_eq_u64 {sr(S_T0)}, 0")
    P("s_cbranch_scc0 L_ep")
    P(f"buffer_store_dword v{V_TAG}, v{V_FLAGOFF}, {sr(SRD_WS,4)}, 0 offen sc1")
    P("L_end:")
    P("s_endpgm")
    return finish(P, o, name)

DEFAULTS = dict(osc=0, nba=4, nbe=4, oend=28, r1late=0, r1at='g1_0', apos=(0, 2), dpos=(1, 3), align=1, rot=0, rcls=2, wfirst=0, glate=0, bar_t=3, epin=6, bar_at=3, olead=12, atouch=0, ea0=46, fine=0, pause=1, pause_at='gs1', resume=0, burst=2, gap=64, lat=700, ra0='g0_0', l2t=(), kvt=2, patch_t=1, pw=0, b1late=1, w1t=0, mw=1, drop=0, trunc=0, ncls=3, wsp=0, wact=0, su_end=72, bq_end=84, mka=1, n1=4,
                b1r=60, pb=(52, 84, 88, 104), qflag=24, kpoll=74, kcheck=86, kend=112, nkv=14, patch=112,
                nb_gelu=(0, 0, 3, 3), pa=(0, 22, 20, 32, 50), nrb=20, left_steps=4, hflag=6, nearly=4, hpoll=32, hcheck=44,
                lead=6, jit0=8, oflag_at=5, opoll_at=15, ocheck_at=22, hst=0, code_bytes=32768)

if __name__ == '__main__':
    o = Opt()
    for k, v in DEFAULTS.items(): setattr(o, k, v)
    o.stamps = 'stamps' in sys.argv; o.diag = None; o.stamp_names = []
    o.clk = 's_memtime' if 'cyc' in sys.argv else 's_memrealtime'
    for a in sys.argv[2:]:
        if '=' not in a: continue
        k, v = a.split('=')
        if k == 'diag':
            i, j, K = v.split(','); o.diag = (i, j, int(K)); o.stamps = True
        elif k in ('ra0', 'pause_at', 'r1at'): setattr(o, k, v)
        elif ',' in v: setattr(o, k, tuple(int(x) for x in v.split(',') if x))
        else: setattr(o, k, int(v))
    plan(o.n1, o.r1late); ROT[0] = o.rot
    s = build(o)
    open(sys.argv[1], 'w').write(s)
    if o.stamps: open(sys.argv[1] + '.names', 'w').write('\n'.join(o.stamp_names))
```

```python
import sys, math, struct
from asmlib import *

NAME = "gated_mix__sliding_block__dense_activation_gelu__prompt"
def f2u(x): return struct.unpack('<I', struct.pack('<f', x))[0]

WS_E      = 0
FL_G      = 0x1000
G_OFF     = 0x4000
FL_QKV    = 0x20000
FL_H      = 0x40000
FL_O      = 0x60000
QKV_OFF   = 0x100000
A_OFF     = 0x700000
WS_SIZE   = 0x1000000
BP_OFF    = 0x1000000
STAMP_OFF = 0x1400000
QKV_TB = 168 * 512
A_TB = 144 * 1024

SA = 28672
LQ = 16384
LF = 98304; SF = 16384
LBIAS = 86016
LKV = 0
LRED = 0
LP = [49152 + 16384 * i for i in range(7)] + [0, 16384, 32768]
PIECE = []
def plan(n1, late=0):
    ra = list(range(11 - n1))
    rb = [p for p in range(7) if p not in ra] + ra
    PIECE[:] = [0, 1, 2, 3, 7, 8, 9][:n1] + ra + rb[:7]
    if late: PIECE[:] = [0, 1, 2, 3] + [4, 5, 6, 0, 1, 2, 3] * 2
LDS_BYTES = 160 * 1024

S_WAVE, S_RBL, S_SPARE, S_XCD, S_SLOT = 3, 8, 9, 10, 11
S_XO, S_QO, S_FO, S_CI, S_CJ = 4, 5, 6, 7, 22
S_M4, S_M3 = 23, 24
S_OFL = 25
S_B1, S_W2, S_B2, S_GW, S_WO = 12, 14, 16, 18, 20
S_TAG = 26
SRD_X, SRD_WQ, SRD_W1, SRD_WS, SRD_OUT, SRD_W2 = 28, 32, 36, 40, 44, 48
SRD_WO = 32
S_KV = [28, 29, 30, 31]
S_RB, S_B, S_TB = 52, 53, 54
S_BOF = 55
S_T0, S_T1, S_T2, S_T3 = 56, 57, 58, 59
S_CNT = 60
S_QST, S_HST = 61, 62
S_T4 = 63
S_MASK = 64
S_QFL, S_HFL = 12, 13
S_OST, S_B3 = 18, 19
S_AOF, S_AO2, S_BO = 4, 5, 7
S_ARB, S_ATB = 14, 15
S_R, S_C, S_J, S_PAR = 98, 99, 100, 101
S_AG, S_BG = 52, 54

def sr(b, n=2): return f"s[{b}:{b+n-1}]"
def vr(b, n): return f"v[{b}:{b+n-1}]" if n > 1 else f"v{b}"
def ar(b, n): return f"a[{b}:{b+n-1}]"
def xr(d): return ar(d[1], 4) if isinstance(d, tuple) else vr(d, 4)

V_LANE, V_L16, V_L16H, V_FLAGOFF = 1, 2, 3, 4
V_TAG = 6
V_PD = 8
V_PA = 10
V_T = 11
V_BA = 216
V_AA = 220
L_G = 222
L_RW = 224
L_RR, L_OA, V_PO, V_PH = 227, 228, 229, 231
V_BR = [[232, 233], [0, 230], [202, 234]]
L_BA = 10
V_DUM = 235
V_ST = 255
SC = 'sc1'

class Opt: pass

FAKE = [0]
def mfma(d, a, b, c):
    if FAKE[0]:
        return "\n".join(f"v_mfma_f32_16x16x32_bf16 {vr(d+8*k,4)}, {xr(a)}, {xr(b)}, {'0' if c is None else vr(c+8*k,4)}" for k in range(2))
    C = '0' if c is None else vr(c, 16)
    return f"v_mfma_f32_32x32x16_bf16 {vr(d,16)}, {xr(a)}, {xr(b)}, {C}"

lab = [0]
def stamp(P, o, name):
    if not o.stamps: return
    if name not in o.stamp_names: o.stamp_names.append(name)
    P(f"{o.clk} s[96:97]")
    P("s_waitcnt lgkmcnt(0)")
    P(f"v_writelane_b32 v{V_ST}, s96, {o.stamp_names.index(name)}")

def stamp_flush(P, o):
    if not o.stamps: return
    if o.diag is not None:
        lab[0] += 1
        P(f"v_readlane_b32 s{S_T0}, v{V_ST}, DIAG_I")
        P(f"v_readlane_b32 s{S_T1}, v{V_ST}, DIAG_J")
        P("s_nop 4")
        P(f"s_sub_u32 s{S_T0}, s{S_T1}, s{S_T0}")
        P(f"s_mul_i32 s{S_T0}, s{S_T0}, {o.diag[2]}")
        P(f"s_min_u32 s{S_T0}, s{S_T0}, 20000")
        P(f"s_cmp_eq_u32 s{S_SPARE}, 1")
        P(f"s_cselect_b32 s{S_T0}, 0, s{S_T0}")
        P("s_memrealtime s[96:97]")
        P("s_waitcnt lgkmcnt(0)")
        P(f"s_mov_b32 s{S_T1}, s96")
        P(f"L_dg{lab[0]}:")
        P("s_memrealtime s[96:97]")
        P("s_waitcnt lgkmcnt(0)")
        P(f"s_sub_u32 s{S_T2}, s96, s{S_T1}")
        P(f"s_cmp_lt_u32 s{S_T2}, s{S_T0}")
        P(f"s_cbranch_scc1 L_dg{lab[0]}")
        return
    P("s_waitcnt vmcnt(0)")
    P(f"s_lshl2_add_u32 s{S_T0}, s2, s{S_WAVE}")
    P(f"s_lshl_b32 s{S_T0}, s{S_T0}, 8")
    P(f"s_add_u32 s{S_T0}, s{S_T0}, {STAMP_OFF}")
    P(f"s_mov_b32 s{SRD_WS+2}, {STAMP_OFF + 0x100000}")
    P(f"v_lshlrev_b32 v{V_T}, 2, v{V_LANE}")
    P(f"buffer_store_dword v{V_ST}, v{V_T}, {sr(SRD_WS,4)}, s{S_T0} offen")

def setup(P, o, end_label):
    if o.stamps: P(f"{o.clk} s[94:95]")
    if o.pff: setup_rest(P, o, True)
    P(f"s_load_dwordx2 {sr(SRD_X)}, s[0:1], 0")
    P(f"s_load_dwordx2 {sr(SRD_WQ)}, s[0:1], 8")
    if not o.slim: setup_rest(P, o, False)
    P("s_cmpk_ge_u32 s2, 256")
    P(f"s_cbranch_scc1 {end_label}")
    if not o.slim and not o.pff: setup_rest(P, o, True)
    P(f"v_lshrrev_b32 v5, 6, v0")
    P(f"v_and_b32 v{V_LANE}, 63, v0")
    P(f"v_readfirstlane_b32 s{S_WAVE}, v5")
    P(f"s_and_b32 s{S_XCD}, s2, 7")
    P(f"s_lshr_b32 s{S_RBL}, s2, 6")
    P(f"s_bfe_u32 s{S_C}, s2, 0x30003")
    P(f"s_mov_b32 s{SRD_X+3}, 0x20000")
    P(f"s_mov_b32 s{SRD_X+2}, {2048*896}")

def setup_rest(P, o, pf):
    if not pf:
        P(f"s_load_dwordx2 {sr(SRD_W1)}, s[0:1], 32")
        P(f"s_load_dwordx8 s[12:19], s[0:1], 40")
        P(f"s_load_dwordx2 {sr(SRD_WS)}, s[0:1], 88")
        P(f"s_load_dwordx2 {sr(SRD_OUT)}, s[0:1], 72")
        P(f"s_load_dwordx2 {sr(S_WO)}, s[0:1], 16")
        P(f"s_lshr_b32 s{S_SLOT}, s2, 3")
        return
    P(f"s_getpc_b64 s[{S_T0}:{S_T1}]")
    P(f"v_lshlrev_b32 v15, 7, v0")
    P(f"v_min_u32 v15, {o.code_bytes - 512}, v15")
    P(f"global_load_dword v{V_DUM}, v15, s[{S_T0}:{S_T1}]", tag='pf')

def srd_rest(P, regs):
    for d, size in regs:
        P(f"s_mov_b32 s{d+2}, {size}")
        P(f"s_mov_b32 s{d+3}, 0x20000")

def common2(P, o):
    P(f"v_lshlrev_b32 v{V_L16}, 4, v{V_LANE}")
    P(f"v_cmp_eq_u32 vcc, 0, v{V_LANE}")
    P(f"v_mov_b32 v5, 0x7fff0000")
    P(f"v_add_u32 v{V_L16H}, 0x1000, v{V_L16}")
    P(f"v_cndmask_b32_e64 v{V_FLAGOFF}, v5, 0, vcc")
    P(f"s_lshl2_add_u32 s{S_R}, s{S_XCD}, s{S_RBL}")

TAGOPS = [f"s_mul_i32 s{S_TAG}, s{S_TAG}, 0x9e3779b1",
          f"s_add_u32 s{S_TAG}, s{S_TAG}, 0x7f4a7c15",
          f"s_xor_b32 s{S_TAG+1}, s{S_TAG}, 0x5bd1e995",
          f"v_mov_b32 v{V_TAG}, s{S_TAG}",
          f"v_mov_b32 v{V_TAG+1}, s{S_TAG+1}"]

def warm_touch(P, blk, dst, tb, l128):
    P(f"s_mul_i32 s{tb}, s{S_XCD}, 31")
    P(f"s_min_u32 s{blk}, s{blk}, 244")
    P(f"s_add_u32 s{blk}, s{blk}, s{tb}")
    P(f"s_sub_u32 s{tb}, s{blk}, 245")
    P(f"s_cselect_b32 s{blk}, s{blk}, s{tb}")
    P(f"s_sub_u32 s{tb}, s{blk}, 196")
    P(f"s_cselect_b32 s{blk}, s{blk}, s{tb}")
    P(f"s_cselect_b64 {sr(tb)}, {sr(SRD_W2)}, {sr(S_WO)}")
    P(f"s_lshl_b32 s{blk}, s{blk}, 13")
    P(f"s_add_u32 s{tb}, s{tb}, s{blk}")
    P(f"s_addc_u32 s{tb+1}, s{tb+1}, 0")
    P(f"global_load_dword v{dst}, v{l128}, {sr(tb)}", tag='warm')

def l2_touch(P, o, i):
    P(f"s_mul_i32 s{S_T4}, s{S_RBL}, 7")
    P(f"s_add_u32 s{S_T4}, s{S_T4}, s{S_C}")
    P(f"s_lshl2_add_u32 s{S_T4}, s{S_T4}, s{S_WAVE}")
    if i: P(f"s_add_u32 s{S_T4}, s{S_T4}, {112*i}")
    P(f"s_mul_i32 s{S_T0}, s{S_T4}, 1873")
    P(f"s_lshr_b32 s{S_T0}, s{S_T0}, 16")
    P(f"s_mul_i32 s{S_T0}, s{S_T0}, {128*896}")
    P(f"s_lshl_b32 s{S_T1}, s{S_T4}, 13")
    P(f"s_add_u32 s{S_T0}, s{S_T0}, s{S_T1}")
    P(f"s_add_u32 s{S_T0}, s{S_T0}, {128*896}")
    P(f"s_sub_u32 s{S_T1}, s{S_T1}, {140*8192}")
    P(f"s_cbranch_scc0 L_wo{i}")
    P(f"buffer_load_dword v{184+i}, v{V_L128}, {sr(SRD_W2,4)}, s{S_T0} offen")
    P(f"s_branch L_wj{i}")
    P(f"L_wo{i}:")
    P(f"buffer_load_dword v{186+i}, v{V_L128}, {sr(SRD_WO,4)}, s{S_T1} offen")
    P(f"L_wj{i}:")
    P.L.append(Pseudo('drop_vm'))

def poll(P, o, addr_v, limit=4000):
    lab[0] += 1
    L = f"L_poll{lab[0]}"
    P(f"s_mov_b32 s{S_CNT}, {limit}")
    P(f"{L}:")
    P(f"buffer_load_dwordx2 {vr(V_PD,2)}, v{addr_v}, {sr(SRD_WS,4)}, 0 offen sc1")
    P(f"s_sub_u32 s{S_CNT}, s{S_CNT}, 1")
    P("s_waitcnt vmcnt(0)")
    P(f"v_cmp_ne_u64 vcc, {sr(S_TAG)}, {vr(V_PD,2)}")
    P(f"s_cbranch_scc1 {L}_x")
    P(f"s_cbranch_vccnz {L}")
    P(f"{L}_x:")

slow_paths = []
def poll_issue(addr_v):
    return [f"buffer_load_dwordx2 {vr(V_PD,2)}, v{addr_v}, {sr(SRD_WS,4)}, 0 offen sc1"]
def poll_check(addr_v, limit=4000):
    lab[0] += 1
    L = f"L_pc{lab[0]}"
    slow_paths.append(f"""{L}_slow:
s_mov_b32 s{S_CNT}, {limit}
{L}_loop:
buffer_load_dwordx2 {vr(V_PD,2)}, v{addr_v}, {sr(SRD_WS,4)}, 0 offen sc1
s_sub_u32 s{S_CNT}, s{S_CNT}, 1
s_waitcnt vmcnt(0)
v_cmp_ne_u64 vcc, {sr(S_TAG)}, {vr(V_PD,2)}
s_cbranch_scc1 {L}_back
s_cbranch_vccnz {L}_loop
s_branch {L}_back""")
    return [f"v_cmp_ne_u64 vcc, {sr(S_TAG)}, {vr(V_PD,2)}\ns_cbranch_vccnz {L}_slow\n{L}_back:"]

def flag_store(soff):
    return [f"buffer_store_dwordx2 {vr(V_TAG,2)}, v{V_FLAGOFF}, {sr(SRD_WS,4)}, s{soff} offen sc1"]

ACC_Q, ACC_F = 16, 64
FR = 128
GT = 160
V_XD, V_QD, V_FD = 192, 196, 199
V_XR, V_QR, V_FRD = 203, 207, 208
V_CA, V_CB = 212, 214
V_QR2, V_L128 = 213, 215

def adv(ci):
    return f"s_add_u32 s{ci}, s{ci}, 1\ns_cmp_eq_u32 s{ci}, 7\ns_cselect_b32 s{ci}, 0, s{ci}"

def dma_a(n):
    sl = (n % 3) * SA
    L = []
    if n: L.append([adv(S_CI)])
    L.append([f"s_lshl_b32 s{S_XO}, s{S_CI}, 7", f"s_add_u32 m0, s{S_M4}, {sl}"])
    L.append([f"s_mul_i32 s{S_QO}, s{S_CI}, {64*2688}"])
    for i in range(4):
        L.append([(f"buffer_load_dwordx4 v{V_XD+i}, {sr(SRD_X,4)}, s{S_XO} offen offset:{i*1024} lds", f'da{n}')])
    L.append([f"s_add_u32 m0, s{S_M3}, {sl}"])
    for i in range(3):
        L.append([(f"buffer_load_dwordx4 v{V_QD+i}, {sr(SRD_WQ,4)}, s{S_QO} offen offset:{i*1024} lds", f'da{n}')])
    return L

def dma_b(n):
    L = []
    if n: L.append([adv(S_CJ)])
    L.append([f"s_add_u32 m0, s{S_M4}, {LF + ((n + 1) % 4) * SF}", f"s_mul_i32 s{S_FO}, s{S_CJ}, {64*3584}"])
    for i in range(4):
        L.append([(f"buffer_load_dwordx4 v{V_FD+i}, {sr(SRD_W1,4)}, s{S_FO} offen offset:{i*1024} lds", f'db{n}')])
    return L

def reads_a(g):
    c, s = g >> 2, g & 3
    sl = (c % 3) * SA
    base = FR + 16 * (g & 1)
    L = [f"ds_read_b128 {ar(4*g,4)}, v{V_XR+s} offset:{sl}"]
    q, so = (V_QR2, 0) if c % 3 == 2 else (V_QR, sl)
    for t in range(3):
        for rho in range(2):
            L.append(f"ds_read_b64_tr_b16 {vr(base+4*t+2*rho,2)}, v{q} offset:{so + (16*s+4*rho)*192 + t*64}")
    return L

def reads_b(g):
    c, s = g >> 2, g & 3
    base = FR + 16 * (g & 1)
    return [f"ds_read_b64_tr_b16 {vr(base+4*t+2*rho,2)}, v{V_FRD+t} offset:{((c + 1) % 4)*SF + (16*s+4*rho)*256}" for t in range(4) for rho in range(2)]

def s1_x_addr(P, o):
    T = V_T
    if o.ncls == 3:
        P(f"s_add_u32 s{S_CI}, s{S_C}, s{S_RBL}")
        P(f"s_lshl_b32 s{S_CI}, s{S_CI}, 1")
        P(f"s_lshr_b32 s{S_CI}, 0x24924, s{S_CI}")
        P(f"s_and_b32 s{S_CI}, s{S_CI}, 3")
        P(f"s_lshl_b32 s{S_CI}, s{S_CI}, 1")
    elif o.ncls == 2:
        P(f"s_add_u32 s{S_CI}, s{S_C}, s{S_RBL}")
        P(f"s_and_b32 s{S_CI}, s{S_CI}, 1")
        P(f"s_mul_i32 s{S_CI}, s{S_CI}, 3")
    else:
        P(f"s_mov_b32 s{S_CI}, 0")
    P(f"s_and_b32 s{S_RB}, s{S_XCD}, 3")
    P(f"s_lshl2_add_u32 s{S_RB}, s{S_RB}, s{S_RBL}")
    P(f"s_lshl2_add_u32 s{S_TB}, s{S_RB}, s{S_WAVE}")
    P(f"v_lshrrev_b32 v{T}, 3, v{V_LANE}")
    P(f"v_and_b32 v{T+1}, 7, v{V_LANE}")
    P(f"v_lshrrev_b32 v{T+2}, 4, v{V_LANE}")
    P(f"s_lshl_b32 s{S_T2}, s{S_TB}, 5")
    P(f"v_add_u32 v{T}, s{S_T2}, v{T}")
    P(f"v_mul_u32_u24 v{T}, 896, v{T}")
    P(f"v_xor_b32 v{T+1}, v{T+2}, v{T+1}")
    P(f"v_lshl_add_u32 v{V_XD}, v{T+1}, 4, v{T}")
    P(f"v_xor_b32 v{V_XD+1}, 64, v{V_XD}")
    P(f"s_lshl_b32 s{S_M4}, s{S_WAVE}, 12")
    P(f"v_add_u32 v{V_XD+2}, {2*(8*896-1024)}, v{V_XD}")
    P(f"v_add_u32 v{V_XD+3}, {3*(8*896-1024)}, v{V_XD+1}")
    P(f"v_add_u32 v{V_XD+1}, {1*(8*896-1024)}, v{V_XD+1}")

def s1_wq_addr(P, o):
    T = V_T
    P(f"s_lshr_b32 s{S_B}, s{S_XCD}, 2")
    P(f"s_mul_i32 s{S_B}, s{S_B}, 7")
    P(f"s_add_u32 s{S_B}, s{S_B}, s{S_C}")
    P(f"s_mul_i32 s{S_T2}, s{S_WAVE}, 192")
    P(f"s_mul_i32 s{S_T3}, s{S_B}, 192")
    P(f"v_add_u32 v{T}, s{S_T2}, v{V_LANE}")
    P(f"v_lshl_add_u32 v{T+2}, v{T}, 4, s{S_T3}")
    P(f"v_mul_u32_u24 v{T}, 0xaaab, v{T}")
    P(f"s_movk_i32 s{S_T3}, 2496")
    for i in range(3):
        if i: P(f"v_add_u32 v{T}, {64*0xaaab}, v{T}")
        P(f"v_lshrrev_b32 v{T+1}, 19, v{T}")
        P(f"v_mad_u32_u24 v{V_QD+i}, v{T+1}, s{S_T3}, v{T+2}")
    P(f"s_lshl_b32 s{S_T2}, s{S_T2}, 4")
    P(f"s_add_u32 s{S_M3}, s{S_T2}, {LQ}")
    srd_rest(P, [(SRD_WQ, 448*2688)])

def s1_read_addr(P, o):
    T = V_T
    P(f"v_and_b32 v{T}, 31, v{V_LANE}")
    P(f"v_lshrrev_b32 v{T+1}, 5, v{V_LANE}")
    P(f"v_bfe_u32 v{T+2}, v{V_LANE}, 1, 3")
    P(f"v_xor_b32 v{T+2}, v{T+2}, v{T+1}")
    P(f"v_lshl_add_u32 v{T}, v{T}, 7, s{S_M4}")
    for s in range(4):
        P(f"v_xor_b32 v{T+3}, {2*s}, v{T+2}")
        P(f"v_lshl_add_u32 v{V_XR+s}, v{T+3}, 4, v{T}")
    P(f"v_bfe_u32 v{T}, v{V_LANE}, 2, 2")
    P(f"v_lshl_add_u32 v{T+1}, v{T+1}, 3, v{T}")
    P(f"v_bfe_u32 v{T+2}, v{V_LANE}, 4, 1")
    P(f"v_lshlrev_b32 v{T+2}, 5, v{T+2}")
    P(f"v_and_b32 v{T+3}, 3, v{V_LANE}")
    P(f"v_lshl_add_u32 v{T+2}, v{T+3}, 3, v{T+2}")
    P(f"v_mul_u32_u24 v{T+3}, 192, v{T+1}")
    P(f"v_add_u32 v{T+3}, {LQ}, v{T+3}")
    P(f"v_add_u32 v{V_QR}, v{T+3}, v{T+2}")
    P(f"v_add_u32 v{V_QR2}, {2*SA}, v{V_QR}")
    P(f"v_lshl_add_u32 v{T+2}, v{T+1}, 8, v{T+2}")
    P(f"v_add_u32 v{T+2}, {LF}, v{T+2}")
    for c in range(4):
        P(f"v_xor_b32 v{T+3}, {c}, v{T}")
        P(f"v_lshl_add_u32 v{V_FRD+c}, v{T+3}, 6, v{T+2}")

def s1_w1_addr(P, o):
    T = V_T
    P(f"v_lshrrev_b32 v{T+2}, 4, v{V_LANE}")
    P(f"v_lshlrev_b32 v{T+1}, 2, v{T+2}")
    P(f"v_xor_b32 v{T+1}, v{T+1}, v{V_LANE}")
    P(f"v_and_b32 v{T+1}, 15, v{T+1}")
    P(f"s_lshl_b32 s{S_T2}, s{S_WAVE}, 4")
    P(f"v_add_u32 v{T}, s{S_T2}, v{T+2}")
    P(f"v_mul_u32_u24 v{T}, 3584, v{T}")
    P(f"s_lshl_b32 s{S_T3}, s{S_B}, 8")
    P(f"v_lshl_add_u32 v{T}, v{T+1}, 4, v{T}")
    P(f"v_add_u32 v{V_FD}, s{S_T3}, v{T}")
    for i in range(1, 4):
        P(f"v_add_u32 v{V_FD+i}, {i*(4*3584-1024)}, v{V_FD}")
    srd_rest(P, [(SRD_W1, 448*3584)])
    P(f"v_lshl_add_u32 v{T}, v{V_LANE}, 2, s{S_T3}")
    P(f"global_load_dword v9, v{T}, {sr(S_B1)}")

def w1_touch(P, o):
    T = V_T
    P(f"v_lshrrev_b32 v{T}, 1, v{V_LANE}")
    P(f"v_min_u32 v{T}, 27, v{T}")
    P(f"s_lshl2_add_u32 s{S_T0}, s{S_RBL}, s{S_WAVE}")
    P(f"s_mul_i32 s{S_T0}, s{S_T0}, 28")
    P(f"v_add_u32 v{T}, s{S_T0}, v{T}")
    P(f"v_mul_u32_u24 v{T}, 3584, v{T}")
    P(f"v_and_b32 v{T+1}, 1, v{V_LANE}")
    P(f"v_lshl_add_u32 v{T}, v{T+1}, 7, v{T}")
    P(f"s_lshl_b32 s{S_T0}, s{S_B}, 8")
    P(f"buffer_load_dword v160, v{T}, {sr(SRD_W1,4)}, s{S_T0} offen", tag='warm')

def s1_misc(P, o):
    srd_rest(P, [(SRD_WS, WS_SIZE), (SRD_OUT, 2048*896)])
    A = -2.0 * math.sqrt(2.0 / math.pi) * 0.044715 * math.log2(math.e)
    B = -2.0 * math.sqrt(2.0 / math.pi) * math.log2(math.e)
    P(f"v_mov_b32 v{V_CA}, {hex(f2u(A))}")
    P(f"v_mov_b32 v{V_CB}, {hex(f2u(B))}")
    P(f"v_lshlrev_b32 v{V_L128}, 7, v{V_LANE}")
    P(f"s_mul_i32 s{S_QST}, s{S_TB}, {QKV_TB}")
    P(f"s_mul_i32 s{S_T0}, s{S_B}, {3*2048}")
    P(f"s_add_u32 s{S_QST}, s{S_QST}, s{S_T0}")
    P(f"s_add_u32 s{S_QST}, s{S_QST}, {QKV_OFF}")
    P(f"s_mul_i32 s{S_HST}, s{S_TB}, {A_TB}")
    P(f"s_lshl_b32 s{S_T0}, s{S_B}, 13")
    P(f"s_add_u32 s{S_HST}, s{S_HST}, s{S_T0}")
    P(f"s_add_u32 s{S_HST}, s{S_HST}, {A_OFF}")
    P(f"s_lshl4_add_u32 s{S_T0}, s{S_TB}, s{S_B}")
    P(f"s_lshl_b32 s{S_T0}, s{S_T0}, 7")
    P(f"s_add_u32 s{S_QFL}, s{S_T0}, {FL_QKV}")
    P(f"s_add_u32 s{S_HFL}, s{S_T0}, {FL_H}")
    P(f"s_mul_i32 s{S_B3}, s{S_B}, 3")
    P(f"s_mov_b32 s{S_SPARE}, 0")

def bias_expand(P, src_v, tmp, addr, base):
    P(f"v_lshlrev_b32 v{tmp}, 16, v{src_v}")
    P(f"v_and_b32 v{tmp+1}, 0xffff0000, v{src_v}")
    P(f"v_lshl_add_u32 v{tmp+2}, v{V_LANE}, 3, s{base}")
    P(f"ds_write_b64 v{tmp+2}, {vr(tmp,2)}")
    P(f"v_lshrrev_b32 v{addr}, 5, v{V_LANE}")
    P(f"v_lshl_add_u32 v{addr}, v{addr}, 4, s{base}")

def bias1(P, o):
    P(f"s_lshl_b32 s{S_T0}, s{S_WAVE}, 9")
    P(f"s_add_u32 s{S_T0}, s{S_T0}, {LBIAS}")
    bias_expand(P, 9, 12, 8, S_T0)

def bias1_reads():
    return [[f"ds_read_b128 {vr(ACC_F+16*F+4*q,4)}, v8 offset:{(32*F+8*q)*4}"] for F in range(4) for q in range(4)]

def rot_step(off, cnt, stride, n):
    return (f"s_add_u32 s{off}, s{off}, {stride}\ns_add_u32 s{cnt}, s{cnt}, 1\ns_cmp_eq_u32 s{cnt}, {n}\n"
            f"s_cselect_b32 s{S_CNT}, {n*stride}, 0\ns_sub_u32 s{off}, s{off}, s{S_CNT}")
ROT = [0]

def b_dma(p):
    L = [[f"s_add_u32 m0, s{S_M4}, {LP[PIECE[p]]}"]]
    if p < 14:
        so, sd = S_BOF, SRD_W2
        if p: L[0].append(rot_step(so, S_BG, 32*896, 14) if ROT[0] else f"s_add_u32 s{so}, s{so}, {32*896}")
    else:
        so, sd = S_BO, SRD_WO
        i = p - 14
        if i: L[0].append(f"s_add_u32 s{so}, s{so}, {8*(((7*i)>>1) - ((7*(i-1))>>1))*896}")
    for i in range(4):
        L.append([(f"buffer_load_dwordx4 v{V_BA+i}, {sr(sd,4)}, s{so} offen offset:{i*1024} lds", f'bp{p}')])
    return L

def breg(n, ctl):
    if n >= 22: n -= 22
    return ('a', (112 + 8 * n if n < 18 else 8 * (n - 18)) + 4 * ctl)

def b_reads(n):
    pc = LP[PIECE[n >> 1]]
    hi, so = divmod(pc, 65536)
    return [f"ds_read_b64_tr_b16 {ar(breg(n, ctl)[1]+2*rho,2)}, v{V_BR[hi][ctl]} offset:{so + (n & 1)*2048 + rho*1024}" for ctl in range(2) for rho in range(2)]

class Gaps:
    def __init__(self): self.m = {}; self.v = {}
    def put(self, kind, items, g0, g1):
        d = self.m if kind == 'm' else self.v
        spread(d, items, list(range(g0, g1)), kind == 'm')
    def emit(self, G): return sum(self.m.get(G, []), []) + sum(self.v.get(G, []), [])

def spread(hooks, items, slots, unit=True):
    w = (lambda g: 1) if unit else len
    tot = sum(w(g) for g in items); done = 0
    for g in items:
        s = slots[min(len(slots) - 1, (done * len(slots)) // tot)]
        hooks.setdefault(s, []).append(g); done += w(g)

def merge_salu(items):
    out = []; pend = []
    for it in items:
        pend += it
        if any(isinstance(x, tuple) or (isinstance(x, str) and x.startswith(('buffer', 'global', 'ds_'))) for x in it):
            out.append(pend); pend = []
    if pend: out.append(pend)
    return out

def pass_a(P, o, H):
    s1_x_addr(P, o)
    d0 = dma_a(0)
    P.add(d0[0])
    P("s_waitcnt lgkmcnt(0)")
    if o.stamps:
        o.stamp_names.append('entry'); P(f"v_mov_b32 v{V_ST}, 0"); P(f"v_writelane_b32 v{V_ST}, s94, 0")
    if o.stouch:
        P(f"s_load_dword s{S_CNT}, {sr(SRD_WQ)}, 0")
        if o.stouch > 1:
            P(f"s_load_dword s{S_TAG}, {sr(SRD_WS)}, {WS_E}")
            P(f"s_load_dword s{S_J}, {sr(S_B1)}, 0")
    for it in d0[2:6]: P.add(it)
    if o.slim: setup_rest(P, o, True); setup_rest(P, o, False)
    P.add(d0[1]); P(f"s_mov_b32 s{S_CJ}, s{S_CI}")
    s1_wq_addr(P, o)
    for it in d0[6:]: P.add(it)
    pass
    for it in dma_a(1): P.add(it)
    s1_read_addr(P, o)
    for it in dma_a(2): P.add(it)
    P.wait_vm('da0')
    P("s_waitcnt lgkmcnt(0)")
    P("s_barrier")
    stamp(P, o, 's1_first')
    P.add(reads_a(0))
    for c in range(4): H.put('m', merge_salu(dma_a(c + 3)), 12 * c + 9, 12 * c + 21)
    H.put('m', merge_salu([it for n in range(o.nba) for it in dma_b(n)]), 57, o.bq_end)
    for g in range(28):
        c, s = g >> 2, g & 3
        base = FR + 16 * (g & 1)
        if s == 3 and c < 6:
            P("s_waitcnt lgkmcnt(0)")
            P.wait_vm(f'da{c+1}')
            P("s_barrier")
            if o.trunc: stamp(P, o, f'a{c}')
        rd = reads_a(g + 1) if g < 27 else []
        per = [4, 3, 0] if s == 2 else [3, 2, 2]
        for t in range(3):
            P(mfma(ACC_Q + 16 * t, base + 4 * t, ('a', 4 * g), None if g == 0 else ACC_Q + 16 * t))
            P.add(rd[:per[t]]); rd = rd[per[t]:]
            P.add(H.emit(3 * g + t))
    P("s_waitcnt lgkmcnt(0)")
    P.wait_vm('db0')
    P("s_barrier")
    stamp(P, o, 'pass_a')
    P.add(reads_b(0))

def pass_b(P, o, H):
    for g in range(28):
        c, s = g >> 2, g & 3
        base = FR + 16 * (g & 1)
        if s == 3 and c < 6:
            P("s_waitcnt lgkmcnt(0)")
            P.wait_vm(f'db{c+1}')
            P("s_barrier")
            if o.trunc: stamp(P, o, f'b{c}')
        rd = reads_b(g + 1) if g < 27 else []
        per = [3, 3, 2, 0] if s == 2 else [2, 2, 2, 2]
        for t in range(4):
            P(mfma(ACC_F + 16 * t, base + 4 * t, ('a', 4 * g), ACC_F + 16 * t))
            P.add(rd[:per[t]]); rd = rd[per[t]:]
            P.add(H.emit(4 * g + t))

def qkv_epilogue(P, o, extra):
    c = (28.0 ** -0.5) * math.log2(math.e)
    P(f"s_mov_b32 s{S_T2}, {hex(f2u(c))}")
    for t in range(3):
        acc = ACC_Q + 16 * t
        P(f"s_cmp_lt_u32 s{S_B3}, {14 - t}")
        P(f"s_cbranch_scc0 L_nosc{t}")
        for i in range(8):
            P(f"v_pk_mul_f32 {vr(acc+2*i,2)}, {vr(acc+2*i,2)}, s[{S_T2}:{S_T3}] op_sel_hi:[1,0]")
        P(f"L_nosc{t}:")
        p = GT + 8 * t
        for i in range(8):
            if t == 0 and extra and i % 2 == 0: P.add(extra.pop(0))
            P(f"v_cvt_pk_bf16_f32 v{p+i}, v{acc+2*i}, v{acc+2*i+1}")
        while t == 0 and extra: P.add(extra.pop(0))
        for h in range(2):
            P(f"v_permlane32_swap_b32 v{p+4*h}, v{p+4*h+2}")
            P(f"v_permlane32_swap_b32 v{p+4*h+1}, v{p+4*h+3}")
        for h in range(2):
            off = t * 2048 + h * 1024
            P(f"buffer_store_dwordx4 {vr(p+4*h,4)}, v{V_L16H if off >= 4096 else V_L16}, {sr(SRD_WS,4)}, s{S_QST} offen offset:{off & 4095} {SC}", tag='qst')

def gelu_tile(F):
    u = ACC_F + 16 * F
    t = GT + 16 * (F & 1)
    pk = [192, 204, t, t][F]
    L = []
    pr = lambda b, i: vr(b + 2 * i, 2)
    for i in range(8): L.append(f"v_pk_mul_f32 {pr(t,i)}, {pr(u,i)}, {pr(u,i)}")
    for i in range(8): L.append(f"v_pk_fma_f32 {pr(t,i)}, {pr(t,i)}, {vr(V_CA,2)}, {vr(V_CB,2)} op_sel_hi:[1,0,0]")
    for i in range(8): L.append(f"v_pk_mul_f32 {pr(t,i)}, {pr(t,i)}, {pr(u,i)}")
    for i in range(16): L.append(f"v_exp_f32 v{t+i}, v{t+i}")
    for i in range(8): L.append(f"v_pk_add_f32 {pr(t,i)}, {pr(t,i)}, 1.0 op_sel_hi:[1,0]")
    for i in range(16): L.append(f"v_rcp_f32 v{t+i}, v{t+i}")
    for i in range(8): L.append(f"v_pk_mul_f32 {pr(t,i)}, {pr(t,i)}, {pr(u,i)}")
    for i in range(8): L.append(f"v_cvt_pk_bf16_f32 v{pk+i}, v{t+2*i}, v{t+2*i+1}")
    for h in range(2):
        off = (2 * F + h) * 1024
        L.append((f"buffer_store_dwordx4 {vr(pk+4*h,4)}, v{V_L16H if off >= 4096 else V_L16}, {sr(SRD_WS,4)}, s{S_HST} offen offset:{off & 4095} {SC}", 'hst'))
    return L

def prep(P, o):
    T = V_T
    if o.slim: setup_rest(P, o, False)
    if o.stamps: P(f"v_mov_b32 v{V_ST}, 0")
    common2(P, o)
    srd_rest(P, [(SRD_WS, WS_SIZE)])
    P(f"v_lshlrev_b32 v{V_L128}, 7, v{V_LANE}")
    P(f"s_mov_b32 s{S_SPARE}, 1")
    P(f"s_lshl_b32 s{S_M4}, s{S_WAVE}, 12")
    P(f"v_lshrrev_b32 v{T}, 2, v{V_LANE}")
    P(f"s_lshl2_add_u32 s{S_T0}, s{S_R}, s{S_WAVE}")
    P(f"s_lshl_b32 s{S_T0}, s{S_T0}, 4")
    P(f"v_add_u32 v20, s{S_T0}, v{T}")
    P(f"v_mul_u32_u24 v{T}, 896, v20")
    P(f"v_and_b32 v{T+1}, 3, v{V_LANE}")
    P(f"v_lshlrev_b32 v{T+1}, 4, v{T+1}")
    P(f"v_add_u32 v{T}, v{T}, v{T+1}")
    P("s_waitcnt lgkmcnt(0)")
    if o.stamps: P(f"v_writelane_b32 v{V_ST}, s94, 0")
    P(f"s_load_dword s{S_TAG}, {sr(SRD_WS)}, {WS_E}")
    P(f"s_mov_b64 {sr(SRD_W2)}, {sr(S_W2)}")
    if o.sp:
        P(f"s_load_dword s{S_MASK}, {sr(S_B1)}, 0")
        P(f"s_load_dword s{S_MASK+1}, {sr(S_B2)}, 0")
        P(f"s_load_dword s{S_MASK+2}, {sr(SRD_OUT)}, 0")
        P(f"s_lshl2_add_u32 s{S_T0}, s{S_RBL}, s{S_WAVE}")
        P(f"s_lshl_b32 s{S_T0}, s{S_T0}, 20")
        P(f"s_load_dword s{S_MASK+3}, {sr(SRD_WS)}, s{S_T0}")
    def mallwarm():
        if o.mw:
            srd_rest(P, [(SRD_W1, 448*3584), (SRD_W2, 1792*896), (SRD_WQ, 448*896)])
            P(f"s_mov_b64 {sr(SRD_WQ)}, {sr(S_WO)}")
            P(f"s_lshl2_add_u32 s{S_T0}, s{S_R}, s{S_WAVE}")
            P(f"s_lshl_b32 s{S_T0}, s{S_T0}, 13")
            P(f"s_add_u32 s{S_T1}, s{S_T0}, 0x100000")
            for i, (d, so) in enumerate(((SRD_W1, S_T0), (SRD_W1, S_T1), (SRD_W2, S_T0), (SRD_W2, S_T1), (SRD_WQ, S_T0))):
                P(f"buffer_load_dword v{180+i}, v{V_L128}, {sr(d,4)}, s{so} offen")
    if o.mw == 1: mallwarm()
    if o.pw & 1:
        P(f"v_lshlrev_b32 v{T+3}, 20, v{V_LANE}")
        P(f"buffer_load_dword v177, v{T+3}, {sr(SRD_WS,4)}, 0 offen")
    def touches():
        for i in range(o.wsp):
            P(f"s_lshl2_add_u32 s{S_T4}, s{S_RBL}, s{S_WAVE}")
            P(f"s_add_u32 s{S_T4}, s{S_T4}, {16*i}")
            P(f"s_lshr_b32 s{S_T0}, s{S_T4}, 2")
            P(f"s_lshl_b32 s{S_T0}, s{S_T0}, 13")
            P(f"s_mul_i32 s{S_T1}, s{S_WAVE}, {448*896}")
            P(f"s_add_u32 s{S_T0}, s{S_T0}, s{S_T1}")
            P(f"s_add_u32 s{S_T0}, s{S_T0}, {128*896}")
            if 16 * i + 15 < 140:
                P(f"buffer_load_dword v{160+i}, v{V_L128}, {sr(SRD_W2,4)}, s{S_T0} offen")
            else:
                P(f"s_sub_u32 s{S_T1}, s{S_T4}, 140")
                P(f"s_cbranch_scc0 L_tw{i}")
                P(f"buffer_load_dword v{160+i}, v{V_L128}, {sr(SRD_W2,4)}, s{S_T0} offen")
                P(f"s_branch L_tj{i}")
                P(f"L_tw{i}:")
                P(f"s_lshl_b32 s{S_T1}, s{S_T1}, 13")
                P(f"buffer_load_dword v{190+i}, v{V_L128}, {sr(SRD_WQ,4)}, s{S_T1} offen")
                P(f"L_tj{i}:")
                P.L.append(Pseudo('drop_vm'))
        if o.fine:
            P("s_waitcnt vmcnt(0)"); stamp(P, o, 'p_warm')
    if o.wfirst: touches()
    for i in range(14):
        P(f"buffer_load_dwordx4 {vr(32+4*i,4)}, v{T}, {sr(SRD_X,4)}, 0 offen offset:{64*i}")
        P(f"global_load_dwordx4 {vr(96+4*i,4)}, v{T+1}, {sr(S_GW)} offset:{64*i}")
    if o.mw == 2: mallwarm()
    P.add(TAGOPS)
    P("v_mov_b32 v24, 0")
    P("v_mov_b32 v25, 0")
    for i in range(56):
        P(f"v_dot2_f32_bf16 v{24+(i&1)}, v{32+i}, v{96+i}, v{24+(i&1)}")
    P("s_nop 2")
    P("v_add_f32 v24, v24, v25")
    P("v_add_f32_dpp v24, v24, v24 quad_perm:[1,0,3,2] row_mask:0xf bank_mask:0xf")
    P("v_add_f32_dpp v24, v24, v24 quad_perm:[2,3,0,1] row_mask:0xf bank_mask:0xf")
    P(f"v_mul_f32 v24, {hex(f2u(-math.log2(math.e)))}, v24")
    P("v_exp_f32 v24, v24")
    P("v_add_f32 v24, 1.0, v24")
    P("v_rcp_f32 v24, v24")
    P(f"v_lshlrev_b32 v20, 2, v20")
    P(f"v_and_b32 v25, 3, v{V_LANE}")
    P(f"v_cmp_eq_u32 vcc, 0, v25")
    P(f"v_mov_b32 v27, 0x7fff0000")
    P(f"v_cndmask_b32 v20, v27, v20, vcc")
    P(f"s_mov_b32 s{S_T0}, {G_OFF}")
    P(f"buffer_store_dword v24, v20, {sr(SRD_WS,4)}, s{S_T0} offen {SC}")
    P("s_waitcnt vmcnt(0) lgkmcnt(0)")
    P("s_barrier")
    P(f"s_lshl_b32 s{S_T0}, s{S_R}, 7")
    P(f"s_add_u32 s{S_T0}, s{S_T0}, {FL_G}")
    P(f"s_cmp_eq_u32 s{S_WAVE}, 0")
    P("s_cbranch_scc0 L_prep_nf")
    P.add(flag_store(S_T0))
    P("L_prep_nf:")
    stamp(P, o, 'p_flag')
    if not o.wfirst: touches()

AQ = 16
AK = 24
AV = 40
AS = 56
AN = 104
AO = 120
AP = 136
AM = 236
A_KR, A_VR = 244, 245
A_KD, A_VD = 247, 248
A_PA, A_PV = 250, 251
A_G = 254
A_MX = 5

def att_scalars(P, o):
    P(f"s_and_b32 s{S_ARB}, s{S_SLOT}, 15")
    P(f"s_lshr_b32 s{S_J}, s{S_SLOT}, 4")
    P(f"s_lshl1_add_u32 s{S_J}, s{S_XCD}, s{S_J}")
    P(f"s_lshl2_add_u32 s{S_ATB}, s{S_ARB}, s{S_WAVE}")
    P(f"s_and_b32 s{S_PAR}, s{S_J}, 1")
    P(f"s_lshl4_add_u32 s{S_T0}, s{S_ATB}, s{S_J}")
    P(f"s_lshl_b32 s{S_T0}, s{S_T0}, 7")
    P(f"s_add_u32 s{S_OFL}, s{S_T0}, {FL_O}")
    P(f"s_mul_i32 s{S_T2}, s{S_ATB}, {A_TB}")
    P(f"s_lshl_b32 s{S_T3}, s{S_J}, 11")
    P(f"s_add_u32 s{S_T2}, s{S_T2}, s{S_T3}")
    P(f"s_add_u32 s{S_OST}, s{S_T2}, {A_OFF + 112*1024}")

def att_poll_addr(P, o):
    T = V_T
    P(f"v_min_u32 v{T}, 13, v{V_LANE}")
    P(f"v_lshrrev_b32 v{T+1}, 1, v{T}")
    P(f"v_and_b32 v{T}, 1, v{T}")
    P(f"s_mul_i32 s{S_T0}, s{S_J}, 7")
    P(f"s_lshr_b32 s{S_T0}, s{S_T0}, 1")
    P(f"s_lshl_b32 s{S_T0}, s{S_T0}, 3")
    P(f"v_mad_u32_u24 v{T}, v{T}, 31, s{S_T0}")
    P(f"v_mov_b32 v{T+2}, 896")
    P(f"v_mov_b32 v{T+3}, 448")
    P(f"v_subrev_u32 v{T+4}, 3, v{T+1}")
    P(f"v_cmp_gt_u32 vcc, 3, v{T+1}")
    P(f"v_cndmask_b32 v{T+2}, v{T+2}, v{T+3}, vcc")
    P(f"v_cndmask_b32 v{T+3}, v{T+4}, v{T+1}, vcc")
    P(f"s_mul_i32 s{S_T1}, s{S_WAVE}, 3")
    P(f"s_lshl2_add_u32 s{S_T1}, s{S_ARB}, s{S_T1}")
    P(f"s_sub_u32 s{S_T1}, s{S_T1}, 8")
    P(f"v_add_u32 v{T+3}, s{S_T1}, v{T+3}")
    P(f"v_max_i32 v{T+3}, 0, v{T+3}")
    P(f"v_mov_b32 v{T+4}, s{S_ATB}")
    P(f"v_cmp_eq_u32 vcc, 6, v{T+1}")
    P(f"v_cndmask_b32_e64 v{T+2}, v{T+2}, 0, vcc")
    P(f"v_cndmask_b32 v{T+3}, v{T+3}, v{T+4}, vcc")
    P(f"v_add_u32 v{T}, v{T}, v{T+2}")
    P(f"v_mul_u32_u24 v{T}, 683, v{T}")
    P(f"v_lshrrev_b32 v{T}, 16, v{T}")
    P(f"v_lshl_add_u32 v{T}, v{T+3}, 4, v{T}")
    P(f"v_lshlrev_b32 v{T}, 7, v{T}")
    P(f"v_add_u32 v{V_PA}, {FL_QKV}, v{T}")

def gate_flags(P, o, reg):
    P(f"s_lshr_b32 s{S_T0}, s{S_ATB}, 1")
    P(f"s_lshl_b32 s{S_T0}, s{S_T0}, 7")
    P(f"s_add_u32 s{S_T0}, s{S_T0}, {FL_G}")
    P(f"s_lshl_b32 s{S_T1}, s{S_R}, 7")
    P(f"s_add_u32 s{S_T1}, s{S_T1}, {FL_G}")
    P(f"v_writelane_b32 v{reg}, s{S_T0}, 14")
    P(f"v_writelane_b32 v{reg}, s{S_T1}, 15")

def att_addr(P, o):
    T = V_T
    P(f"s_mul_i32 s{S_T0}, s{S_J}, 7")
    P(f"s_lshr_b32 s{S_T0}, s{S_T0}, 1")
    P(f"s_lshl_b32 s{S_T4}, s{S_T0}, 9")
    P(f"s_add_u32 s{S_T1}, s{S_T4}, {56*512}")
    P(f"v_add_u32 v{A_KD}, s{S_T1}, v{V_L16}")
    P(f"v_lshrrev_b32 v{T}, 5, v{V_LANE}")
    P(f"v_and_b32 v{T+1}, 31, v{V_LANE}")
    P(f"s_add_u32 s{S_T1}, s{S_T4}, {112*512 - 2048}")
    P(f"v_lshlrev_b32 v{T+2}, 2, v{T}")
    P(f"v_xor_b32 v{T+2}, v{T+2}, v{T+1}")
    P(f"v_lshlrev_b32 v{T+2}, 4, v{T+2}")
    P(f"v_lshl_add_u32 v{T+2}, v{T}, 9, v{T+2}")
    P(f"v_add_u32 v{A_VD}, s{S_T1}, v{T+2}")
    P(f"v_xor_b32 v{A_VD+1}, 128, v{A_VD}")
    P(f"v_add_u32 v{A_KR}, s{S_M4}, v{V_L16}")
    P(f"v_bfe_u32 v{T+1}, v{V_LANE}, 4, 1")
    P(f"v_bfe_u32 v{T+2}, v{V_LANE}, 1, 1")
    P(f"v_lshl_add_u32 v{T+3}, v{T+1}, 1, v{T+2}")
    P(f"v_lshlrev_b32 v{T+4}, 9, v{T+3}")
    P(f"v_xor_b32 v{T+3}, v{T+3}, v{T}")
    P(f"v_lshl_add_u32 v{T+4}, v{T+3}, 6, v{T+4}")
    P(f"v_bfe_u32 v{T+3}, v{V_LANE}, 2, 2")
    P(f"v_lshl_add_u32 v{T+4}, v{T+3}, 4, v{T+4}")
    P(f"v_and_b32 v{T+3}, 1, v{V_LANE}")
    P(f"v_lshl_add_u32 v{T+4}, v{T+3}, 3, v{T+4}")
    P(f"s_add_u32 s{S_T1}, s{S_M4}, 2048")
    P(f"v_add_u32 v{A_VR}, s{S_T1}, v{T+4}")
    P(f"v_xor_b32 v{A_VR+1}, 128, v{A_VR}")
    P(f"v_and_b32 v{T+1}, 31, v{V_LANE}")
    P(f"v_mul_u32_u24 v{T+2}, 12, v{T}")
    P(f"s_cmp_eq_u32 s{S_PAR}, 0")
    P(f"s_cselect_b32 s{S_T1}, -1, 0")
    P(f"s_cselect_b32 s{S_T2}, 1544, 0")
    P(f"v_and_b32 v{T+2}, s{S_T1}, v{T+2}")
    P(f"v_xor_b32 v{T+1}, v{T+1}, v{T+2}")
    P(f"v_lshlrev_b32 v{T+1}, 4, v{T+1}")
    P(f"v_lshl_add_u32 v{T+1}, v{T}, 11, v{T+1}")
    P(f"s_mul_i32 s{S_T3}, s{S_WAVE}, {3*4096}")
    P(f"s_add_u32 s{S_T2}, s{S_T2}, s{S_T3}")
    P(f"v_add_u32 v{A_PA}, s{S_T2}, v{T+1}")
    P(f"s_mul_i32 s{S_T1}, s{S_WAVE}, 3")
    P(f"s_lshl2_add_u32 s{S_T1}, s{S_ARB}, s{S_T1}")
    P(f"v_mov_b32 v{T+1}, 0x3f80")
    for k in range(3):
        P(f"s_add_u32 s{S_T2}, s{S_T1}, {k}")
        P(f"s_cmp_lt_u32 s{S_T2}, 8")
        P(f"s_cselect_b32 s{S_T2}, 0xf14a, 0")
        P(f"v_mov_b32 v{A_PV+k}, s{S_T2}")
    P(f"v_cmp_gt_u32 vcc, 32, v{V_LANE}")
    for k in range(3): P(f"v_cndmask_b32 v{A_PV+k}, v{T+1}, v{A_PV+k}, vcc")

def att_masks(P, o):
    T = V_T
    P(f"v_lshrrev_b32 v{T+1}, 5, v{V_LANE}")
    P(f"v_mul_u32_u24 v{T+1}, 36, v{T+1}")
    P(f"v_sub_u32 v{T+1}, v{V_LANE}, v{T+1}")
    for r in range(16):
        P(f"v_cmp_le_i32_e64 {sr(S_MASK+2*r)}, {(r & 3) + 8 * (r >> 2)}, v{T+1}")
    P(f"v_mov_b32 v{T+1}, 0xffff")
    P(f"v_mov_b32 v{T+2}, 0xffff0000")
    for i in range(8):
        P(f"v_cndmask_b32_e64 v{T+3}, 0, v{T+1}, {sr(S_MASK+4*i)}")
        P(f"v_cndmask_b32_e64 v{T+4}, 0, v{T+2}, {sr(S_MASK+4*i+2)}")
        P(f"v_or_b32 v{AM+i}, v{T+3}, v{T+4}")

def att_kvoff(P, o):
    P(f"s_mul_i32 s{S_T1}, s{S_WAVE}, 3")
    P(f"s_lshl2_add_u32 s{S_T1}, s{S_ARB}, s{S_T1}")
    for k in range(3):
        P(f"s_add_i32 s{S_T2}, s{S_T1}, {k-8}")
        P(f"s_max_i32 s{S_T2}, s{S_T2}, 0")
        P(f"s_mul_i32 s{S_T2}, s{S_T2}, {QKV_TB}")
        P(f"s_add_u32 s{S_KV[k]}, s{S_T2}, {QKV_OFF}")
    P(f"s_mul_i32 s{S_T0}, s{S_J}, 7")
    P(f"s_lshr_b32 s{S_T0}, s{S_T0}, 1")
    P(f"s_lshl_b32 s{S_T0}, s{S_T0}, 9")
    P(f"s_mul_i32 s{S_T2}, s{S_ATB}, {QKV_TB}")
    P(f"s_add_u32 s{S_T2}, s{S_T2}, s{S_T0}")
    P(f"s_add_u32 s{S_KV[3]}, s{S_T2}, {QKV_OFF}")

def att_loads(o, last_g=True):
    T = V_T
    L = [[f"s_mul_i32 s{S_T3}, s{S_WAVE}, {3*4096}"]]
    for k in range(3):
        g = [f"s_add_u32 m0, s{S_T3}, {LKV + k*4096}"]
        for t in range(2):
            g.append((f"buffer_load_dwordx4 v{A_KD}, {sr(SRD_WS,4)}, s{S_KV[k]} offen offset:{t*1024} {SC} lds", 'kv'))
        for t in range(2):
            g.append((f"buffer_load_dwordx4 v{A_VD+t}, {sr(SRD_WS,4)}, s{S_KV[k]} offen offset:{2048+t*1024} {SC} lds", 'kv'))
        L += [[x] for x in g]
    for t in range(2):
        L.append([f"buffer_load_dwordx4 {vr(AQ+4*t,4)}, v{V_L16}, {sr(SRD_WS,4)}, s{S_KV[3]} offen offset:{t*1024} {SC}"])
    G = [f"v_and_b32 v{T+1}, 31, v{V_LANE}", f"v_lshlrev_b32 v{T+1}, 2, v{T+1}",
         f"s_lshl_b32 s{S_T2}, s{S_ATB}, 7", f"s_add_u32 s{S_T2}, s{S_T2}, {G_OFF}",
         f"buffer_load_dword v{A_G}, v{T+1}, {sr(SRD_WS,4)}, s{S_T2} offen {SC}"]
    if last_g:
        G += [f"s_and_b32 s{S_T1}, s{S_WAVE}, 1", f"s_lshl_b32 s{S_T0}, s{S_R}, 8", f"s_add_u32 s{S_T0}, s{S_T0}, {G_OFF}",
              f"s_lshl_b32 s{S_T2}, s{S_T1}, 7", f"s_xor_b32 s{S_T3}, s{S_T2}, 128", f"s_add_u32 s{S_T2}, s{S_T2}, s{S_T0}",
              f"s_add_u32 s{S_T3}, s{S_T3}, s{S_T0}",
              f"buffer_load_dword v{L_G}, v{T+1}, {sr(SRD_WS,4)}, s{S_T3} offen {SC}",
              f"buffer_load_dword v{L_G+1}, v{T+1}, {sr(SRD_WS,4)}, s{S_T2} offen {SC}"]
    return L + [[x] for x in G]

def att_patch():
    T = V_T
    L = [[WVM('kv')]]
    L += [[f"ds_write_b16 v{A_PA}, v{A_PV+k} offset:{LKV + k*4096}"] for k in range(3)]
    L += [[f"s_cmp_eq_u32 s{S_PAR}, 0\ns_cselect_b32 s{S_T0}, 0, -1\ns_cselect_b32 s{S_T3}, -1, 0"],
          [f"s_mov_b32 s{S_T1}, 0"], [f"s_mov_b32 s{S_T2}, 0"], [f"v_mov_b32 v{T}, 0x3f80"],
          [f"v_cndmask_b32_e64 v{AQ}, v{AQ}, v{T}, {sr(S_T0)}"], [f"v_cndmask_b32_e64 v{AQ+1}, v{AQ+1}, 0, {sr(S_T0)}"],
          [f"v_cndmask_b32_e64 v{AQ+6}, v{AQ+6}, v{T}, {sr(S_T2)}"], [f"v_cndmask_b32_e64 v{AQ+7}, v{AQ+7}, 0, {sr(S_T2)}"]]
    return L

ORDER = [0, 8, 1, 2, 3, 4, 5, 6, 7]
def kread(i, buf):
    return [f"ds_read_b128 {vr(AK+8*buf+4*t,4)}, v{A_KR} offset:{LKV + i*4096 + t*1024}" for t in range(2)]
def vread(i, buf):
    return [f"ds_read_b64_tr_b16 {vr(AV+8*buf+4*t+2*rho,2)}, v{A_VR+rho} offset:{LKV + i*4096 + t*256}" for t in range(2) for rho in range(2)]

def attention(P, o, hooks, kpre=False):
    T = V_T
    order = ORDER
    stamp(P, o, 'att_go')
    gi = [0]
    def hk():
        gi[0] += 1
        return [Slot(f'a{gi[0] - 1}')] if hooks is None else []
    if not kpre: P.add(kread(order[0], 0)); P.add(kread(order[1], 1))
    SM = AS + 16
    buf1 = [AS, SM, AS + 32, AO, AS, AS + 32, AO, AS, AS + 32]
    def qkx(s, kbuf, c): return [mfma(s, AK + 8 * kbuf, AQ, c), mfma(s, AK + 8 * kbuf + 4, AQ + 4, s)]
    def maxops(s, first=False):
        return [f"v_max_f32 v{A_MX}, v{s}, v{s+1}" if (first and i == 0) else f"v_max3_f32 v{A_MX}, v{s+2*i}, v{s+2*i+1}, v{A_MX}" for i in range(8)]
    merge = [f"v_cndmask_b32_e64 v{SM+r}, v{AS+r}, v{SM+r}, {sr(S_MASK+2*r)}" for r in range(16)]
    for n in range(9):
        m = qkx(buf1[n], n & 1, None)
        post = []
        if n == 3: post = merge
        if n == 4: post = maxops(SM, True) + maxops(buf1[2])
        if n >= 5: post = maxops(buf1[n - 2])
        nxt = kread(order[n + 2 if n + 2 < 9 else n - 5], n & 1)
        h = len(post) // 2
        P.add([m[0]] + hk() + post[:h] + [m[1]] + nxt + (vread(0, 0) + vread(8, 1) if n == 8 else []) + hk() + post[h:])
    P.add(maxops(buf1[7]))
    P.add(maxops(buf1[8]))
    P(f"v_mov_b32 v{T}, v{A_MX}")
    P(f"v_permlane32_swap_b32 v{A_MX}, v{T}")
    P(f"v_max_f32 v{A_MX}, v{A_MX}, v{T}")
    P(f"v_sub_f32 v{AN}, 0, v{A_MX}")
    P(f"v_sub_f32 v{AN+1}, 0, v{A_MX}")
    for i in range(1, 8): P(f"v_mov_b64 {vr(AN+2*i,2)}, {vr(AN,2)}")
    stamp(P, o, 'att_p1')
    kb = lambda n: (n + 1) & 1
    buf2 = lambda n: AS + 16 * [0, 2, 1][(n - 2) % 3]
    def expcvt(s, p):
        L = []
        for i in range(8):
            L += [f"v_exp_f32 v{s+2*i}, v{s+2*i}", f"v_exp_f32 v{s+2*i+1}, v{s+2*i+1}"]
            if i >= 1: L.append(f"v_cvt_pk_bf16_f32 v{p+i-1}, v{s+2*i-2}, v{s+2*i-1}")
        L.append(f"v_cvt_pk_bf16_f32 v{p+7}, v{s+14}, v{s+15}")
        return L
    def pv(p, vbuf, first=False):
        return [mfma(AO, AV + 8 * vbuf, p, None if first else AO), mfma(AO, AV + 8 * vbuf + 4, p + 4, AO)]
    m2 = qkx(buf2(2), kb(2), AN); m3 = qkx(buf2(3), kb(3), AN)
    sub = [f"v_sub_f32 v{SM+r}, v{SM+r}, v{A_MX}" for r in range(16)]
    ec = expcvt(SM, AP)
    sp = []
    for i in range(8):
        sp += [f"v_and_b32 v{AP+8+i}, v{AP+i}, v{AM+i}", f"v_xor_b32 v{AP+16+i}, v{AP+i}, v{AP+8+i}"]
    P.add([m2[0]] + hk() + sub[:8] + [m2[1]] + kread(order[4], kb(4)) + hk() + sub[8:] + [m3[0]] + hk() + ec[:5] +
          [m3[1]] + kread(order[5], kb(5)) + hk() + ec[5:] + sp)
    pend = pv(AP + 16, 0, True) + pv(AP + 8, 1)
    pend_rd = vread(order[2], 0) + vread(order[3], 1)
    for n in range(2, 9):
        p = AP + 16 if n == 3 else (AP if (n & 1) == 0 else AP + 8)
        ec = expcvt(buf2(n), p)
        mq = qkx(buf2(n + 2), kb(n + 2), AN) if n + 2 < 9 else []
        kr = kread(order[n + 4], kb(n + 4)) if n + 4 < 9 else []
        ms = pend + mq
        seq = []
        k = len(ms)
        step = max(1, len(ec) // max(k, 1))
        ei = 0
        for j, mm in enumerate(ms):
            seq.append(mm)
            if j == len(pend) - 1: seq += pend_rd
            if j == k - 1 and mq: seq += kr
            seq += hk()
            take = ec[ei:ei + step] if j < k - 1 else ec[ei:]
            seq += take; ei += len(take)
        P.add(seq)
        vb = n & 1
        pend = pv(p, vb)
        pend_rd = vread(order[n + 2], vb) if n + 2 < 9 else []
    P.add([pend[0]] + hk() + [pend[1]] + hk())
    stamp(P, o, 'att_p2')

def att_epilogue(P, o):
    T = V_T
    P(f"s_cmp_eq_u32 s{S_PAR}, 0")
    P(f"s_cselect_b64 {sr(S_T0)}, -1, 0")
    P(f"s_cselect_b32 s{S_MASK}, 0, -1")
    P(f"s_cselect_b32 s{S_MASK+3}, -1, 0")
    P(f"s_mov_b32 s{S_MASK+1}, 0")
    P(f"s_mov_b32 s{S_MASK+2}, 0")
    P(f"v_cndmask_b32_e64 v{T}, v{AO}, v{AO+12}, {sr(S_T0)}")
    P(f"v_mov_b32 v{T+1}, v{T}")
    P(f"v_permlane32_swap_b32 v{T}, v{T+1}")
    P(f"v_cndmask_b32_e64 v{T}, v{T}, v{T+1}, {sr(S_T0)}")
    P(f"v_rcp_f32 v{T}, v{T}")
    P(f"v_mul_f32 v{T+1}, v{T}, v{A_G}")
    for t in range(2):
        for i in range(8 * t, 8 * t + 8): P(f"v_mul_f32 v{AO+i}, v{T+1}, v{AO+i}")
        for i in range(4 * t, 4 * t + 4): P(f"v_cvt_pk_bf16_f32 v{AP+i}, v{AO+2*i}, v{AO+2*i+1}")
        for r in ((0, 1), (6, 7))[t]: P(f"v_cndmask_b32_e64 v{AP+r}, v{AP+r}, 0, {sr(S_MASK + 2*t)}")
        P(f"buffer_store_dwordx4 {vr(AP+4*t,4)}, v{V_L16}, {sr(SRD_WS,4)}, s{S_OST} offen offset:{t*1024} {SC}", tag='ost')

LACC = 16
EARLY = [('a', r) for r in range(32, 112, 4)] + list(range(160, 200, 4)) + list(range(204, 216, 4))
LATE = list(range(80, 120, 4)) + list(range(144, 160, 4)) + list(range(236, 252, 4)) + list(range(120, 144, 4))

def last_baddr(P, o):
    T = V_T
    P(f"s_mov_b64 {sr(SRD_W2)}, {sr(S_W2)}")
    srd_rest(P, [(SRD_W2, 1792*896)])
    P(f"s_mul_i32 s{S_BOF}, s{S_WAVE}, {448*896}")
    P(f"s_lshl_b32 s{S_T3}, s{S_C}, 7")
    P(f"s_add_u32 s{S_BOF}, s{S_BOF}, s{S_T3}")
    if ROT[0]:
        P(f"s_add_u32 s{S_AG}, s{S_C}, s{S_RBL}")
        if o.rcls == 2: P(f"s_and_b32 s{S_AG}, s{S_AG}, 1")
        else:
            P(f"s_lshl_b32 s{S_AG}, s{S_AG}, 1")
            P(f"s_lshr_b32 s{S_AG}, 0x24924, s{S_AG}")
            P(f"s_and_b32 s{S_AG}, s{S_AG}, 3")
        P(f"s_mul_i32 s{S_AG}, s{S_AG}, {ROT[0]}")
        P(f"s_lshl_b32 s{S_BG}, s{S_AG}, 1")
        P(f"s_mul_i32 s{S_T3}, s{S_AG}, {64*896}")
        P(f"s_add_u32 s{S_BOF}, s{S_BOF}, s{S_T3}")
    P(f"v_lshrrev_b32 v{T}, 3, v{V_LANE}")
    P(f"v_bfe_u32 v{T+1}, v{V_LANE}, 4, 1")
    P(f"v_lshlrev_b32 v{T+1}, 2, v{T+1}")
    P(f"v_xor_b32 v{T+1}, v{T+1}, v{V_LANE}")
    P(f"v_and_b32 v{T+1}, 7, v{T+1}")
    P(f"v_mul_u32_u24 v{T}, 896, v{T}")
    P(f"v_lshl_add_u32 v{V_BA}, v{T+1}, 4, v{T}")
    for i in range(1, 4): P(f"v_add_u32 v{V_BA+i}, {i*(8*896-1024)}, v{V_BA}")
    P(f"v_bfe_u32 v{T}, v{V_LANE}, 2, 2")
    P(f"v_lshrrev_b32 v{T+1}, 5, v{V_LANE}")
    P(f"v_lshl_add_u32 v{T+1}, v{T+1}, 2, v{T}")
    P(f"v_lshlrev_b32 v{T+1}, 7, v{T+1}")
    P(f"v_bfe_u32 v{T+2}, v{V_LANE}, 4, 1")
    P(f"v_lshl_add_u32 v{T+1}, v{T+2}, 5, v{T+1}")
    P(f"v_and_b32 v{T+2}, 3, v{V_LANE}")
    P(f"v_lshl_add_u32 v{T+1}, v{T+2}, 3, v{T+1}")
    P(f"v_lshrrev_b32 v{T}, 1, v{T}")
    P(f"v_lshl_add_u32 v{T}, v{T}, 6, v{T+1}")
    P(f"v_add_u32 v{T}, s{S_M4}, v{T}")
    P(f"s_lshr_b32 s{S_T0}, s{S_WAVE}, 1")
    P(f"s_lshl_b32 s{S_T0}, s{S_T0}, 6")
    P(f"v_xor_b32 v{V_BR[0][1]}, s{S_T0}, v{T}")
    P(f"v_xor_b32 v{V_BR[0][0]}, 64, v{V_BR[0][1]}")
    for k in range(2): P(f"v_add_u32 v{V_BR[1][k]}, 0x10000, v{V_BR[0][k]}")

V_AT = 201
def last_baddr2(P, o):
    P(f"v_lshrrev_b32 v{V_T}, 5, v{V_LANE}")
    P(f"v_mul_u32_u24 v{V_T}, {A_TB - 4096}, v{V_T}")
    P(f"v_lshl_add_u32 v{V_T}, v{V_LANE}, 7, v{V_T}")
    P(f"s_lshl_b32 s{S_T0}, s{S_C}, 12")
    P(f"v_add_u32 v{V_AT}, s{S_T0}, v{V_T}")
    for k in range(2): P(f"v_add_u32 v{V_BR[2][k]}, 0x20000, v{V_BR[0][k]}")

def last_setup(P, o):
    T = V_T
    P(f"s_lshl_b32 s{S_T0}, s{S_C}, 7")
    P(f"v_and_b32 v{T}, 31, v{V_LANE}")
    P(f"v_lshl_add_u32 v{T+1}, v{T}, 2, s{S_T0}")
    P(f"global_load_dword v{V_DUM}, v{T+1}, {sr(S_B2)}")
    P(f"s_and_b32 s{S_T1}, s{S_WAVE}, 1")
    P(f"s_mul_i32 s{S_T2}, s{S_T1}, {A_TB}")
    P(f"s_sub_u32 s{S_T3}, {A_TB}, s{S_T2}")
    P(f"v_add_u32 v{V_AA}, s{S_T3}, v{V_L16}")
    P(f"v_add_u32 v{V_AA+1}, s{S_T2}, v{V_L16}")
    P(f"v_and_b32 v{T+1}, 1, v{V_LANE}")
    P(f"s_lshl_b32 s{S_T0}, s{S_R}, 1")
    P(f"v_add_u32 v{T+1}, s{S_T0}, v{T+1}")
    P(f"v_lshlrev_b32 v{T+1}, 4, v{T+1}")
    P(f"v_bfe_u32 v{T+2}, v{V_LANE}, 1, 2")
    P(f"v_add_u32 v{T+1}, v{T+1}, v{T+2}")
    P(f"v_lshlrev_b32 v{T+1}, 7, v{T+1}")
    P(f"s_mul_i32 s{S_T0}, s{S_WAVE}, 7")
    P(f"s_lshr_b32 s{S_T0}, s{S_T0}, 1")
    P(f"s_lshl_b32 s{S_T0}, s{S_T0}, 7")
    P(f"s_add_u32 s{S_T0}, s{S_T0}, {FL_H}")
    P(f"v_add_u32 v{V_PH}, s{S_T0}, v{T+1}")
    P(f"s_lshl_b32 s{S_T0}, s{S_WAVE}, 9")
    P(f"s_add_u32 s{S_T0}, s{S_T0}, {FL_O}")
    P(f"v_add_u32 v{V_PO}, s{S_T0}, v{T+1}")
    for d in range(1, 4):
        P(f"s_xor_b32 s{S_T0}, s{S_WAVE}, {d}")
        P(f"s_lshl_b32 s{S_T0}, s{S_T0}, 12")
        P(f"s_add_u32 s{S_T0}, s{S_T0}, {LP[d]}")
        P(f"v_add_u32 v{L_RW+d-1}, s{S_T0}, v{V_L16}")
    P(f"s_add_u32 s{S_T0}, s{S_M4}, {LP[1]}")
    P(f"v_add_u32 v{L_RR}, s{S_T0}, v{V_L16}")
    P(f"s_lshl_b32 s{S_T0}, s{S_R}, 6")
    P(f"s_lshl_b32 s{S_T2}, s{S_T1}, 5")
    P(f"s_add_u32 s{S_T0}, s{S_T0}, s{S_T2}")
    P(f"v_add_u32 v{T+1}, s{S_T0}, v{T}")
    P(f"v_mul_u32_u24 v{T+1}, 896, v{T+1}")
    P(f"v_lshrrev_b32 v{T+2}, 5, v{V_LANE}")
    P(f"v_lshl_add_u32 v{T+1}, v{T+2}, 4, v{T+1}")
    P(f"s_lshl_b32 s{S_T0}, s{S_C}, 7")
    P(f"s_lshr_b32 s{S_T2}, s{S_WAVE}, 1")
    P(f"s_lshl_b32 s{S_T2}, s{S_T2}, 6")
    P(f"s_add_u32 s{S_T0}, s{S_T0}, s{S_T2}")
    P(f"v_add_u32 v{L_OA}, s{S_T0}, v{T+1}")

def last_soff(P, o):
    P(f"s_mul_i32 s{S_T0}, s{S_R}, {2*A_TB}")
    P(f"s_add_u32 s{S_T0}, s{S_T0}, {A_OFF}")
    P(f"s_lshl_b32 s{S_T2}, s{S_WAVE}, 13")
    P(f"s_add_u32 s{S_AO2}, s{S_T0}, s{S_T2}")
    P(f"s_add_u32 s{S_AO2}, s{S_AO2}, {112*1024}")
    P(f"s_mul_i32 s{S_T2}, s{S_WAVE}, {28*1024}")
    P(f"s_add_u32 s{S_AOF}, s{S_T0}, s{S_T2}")
    if ROT[0]:
        P(f"s_lshl_b32 s{S_T2}, s{S_AG}, 12")
        P(f"s_add_u32 s{S_AOF}, s{S_AOF}, s{S_T2}")
    P(f"s_mov_b64 {sr(SRD_WO)}, {sr(S_WO)}")
    P(f"s_mov_b32 s{SRD_WO+2}, {448*896}")
    P(f"s_mul_i32 s{S_BO}, s{S_WAVE}, {112*896}")
    P(f"s_lshl_b32 s{S_T3}, s{S_C}, 7")
    P(f"s_add_u32 s{S_BO}, s{S_BO}, s{S_T3}")

def bias2(P, o):
    P(f"s_add_u32 s{S_T0}, s{S_M4}, {LP[PIECE[11]]}")
    bias_expand(P, V_DUM, 12, L_BA, S_T0)
    P(f"s_lshr_b32 s{S_T2}, s{S_WAVE}, 1")
    P(f"s_lshl_b32 s{S_T2}, s{S_T2}, 7")
    P(f"v_add_u32 v{L_BA}, s{S_T2}, v{L_BA}")
    P(f"v_sub_f32 v{L_G}, 1.0, v{L_G}")
    P(f"v_sub_f32 v{L_G+1}, 1.0, v{L_G+1}")

def a_slots(o):
    ne = o.nearly * 2
    sl = EARLY[:ne] + LATE + EARLY[ne:]
    ring = len(sl) // 2 * 2
    return [sl[i % ring] for i in range(72)], ring // 2

def a_load(o, n):
    sl, _ = a_slots(o)
    so, m = (S_AOF, n) if n < 28 else (S_AO2, n - 28)
    L = [rot_step(so, S_AG, 4096, 7) if (ROT[0] and n < 28) else f"s_add_u32 s{so}, s{so}, 4096"] if (m and m % 4 == 0) else []
    for ttl in range(2):
        L.append((f"buffer_load_dwordx4 {xr(sl[2*n+ttl])}, v{V_AA+ttl}, {sr(SRD_WS,4)}, s{so} offen offset:{(m&3)*1024} {SC}", 'ald'))
    return L

def last(P, o):
    q = lambda ttl, ctl: LACC + 32 * ttl + 16 * ctl
    sl, depth = a_slots(o)
    mm = lambda n, ttl, ctl: mfma(q(ttl, ctl), breg(n, ctl), sl[2 * n + ttl], None if n == 0 else q(ttl, ctl))
    assert o.nearly > 0 and PIECE[11] not in (1, 2, 3)
    nxt = o.nearly
    D = Prog(); att_epilogue(D, o); epi = atomic_groups(D.L)
    if not o.epin:
        for g in epi: P.add(g)
        epi = []
        while nxt < max(o.lead, o.nearly): P.add(a_load(o, nxt)); nxt += 1
    EP = {}
    if epi: spread(EP, epi, list(range(o.epin)), False)
    stamp(P, o, 'last_go')
    opolled = False
    ol = lambda m, ttl: [(f"buffer_load_dwordx4 {xr(sl[2*(28+m)+ttl])}, v{V_AA+ttl}, {sr(SRD_WS,4)}, s{S_AO2 if m < 4 else S_BO} offen offset:{(m&3)*1024} {SC}", 'ald')]
    oq = [ol(m, ttl) for ttl in range(2) for m in range(8)]
    oq[0] = [f"s_add_u32 s{S_BO}, s{S_AO2}, 4096"] + oq[0]
    assert depth >= 36 - o.ocheck_at and not o.left
    sc = lambda ttl, ctl: [f"v_mul_f32 v{q(ttl,ctl)+i}, v{L_G+ttl}, v{q(ttl,ctl)+i}" for i in range(16)]
    D = Prog(); bias2(D, o); b2l = [[x] for x in D.L]
    for n in range(28):
        M = [mm(n, ttl, ctl) for ttl in range(2) for ctl in range(2)]
        ex = []; cnt = 0
        top = (36 if opolled else 28)
        if o.left and n < o.left_steps:
            k = -(-len(o.left) // (o.left_steps - n)); ex += o.left[:k]; o.left = o.left[k:]
        while nxt < min(n + min(depth, o.lead + 1), 28) and cnt < 2:
            ex += merge_salu([[e] for e in a_load(o, nxt)]); nxt += 1; cnt += 1
        if opolled and oq:
            k = -(-len(oq) // max(1, o.oend - n)); ex += oq[:k]; oq = oq[k:]
        if o.jit0 <= n < o.jit0 + 14 and not o.drop & 32:
            k = n - o.jit0 + 22
            ex += [[WVM(f'bp{k >> 1}')] + b_reads(k)[:2], b_reads(k)[2:]]
        if o.jit0 + 3 <= n < o.jit0 + 6: ex += b2l[((n - o.jit0 - 3) * len(b2l)) // 3:((n - o.jit0 - 2) * len(b2l)) // 3]
        if n == o.oflag_at and o.nearly > 0:
            D0 = Prog(); D1 = Prog()
            if o.fine: stamp(D0, o, 'of0'); stamp(D1, o, 'of1')
            ex = ex + [D0.L + [WVM('ost')] + D1.L + flag_store(S_OFL)]
        if n == o.opoll_at: ex += [poll_issue(V_PO)]
        if n == o.ocheck_at:
            D0 = Prog(); D1 = Prog()
            if o.fine: stamp(D0, o, 'oc0'); stamp(D1, o, 'oc1')
            ex = [D0.L + poll_check(V_PO) + D1.L] + ex; opolled = True
        if o.hst and n % 4 == 0 and n: stamp(P, o, f'h{n}')
        hh = {}
        isv = lambda it: any((isinstance(x, tuple) and x[0].startswith('buffer')) or (isinstance(x, str) and x.startswith('buffer')) for x in it)
        vm_ = [it for it in ex if isv(it) or any(isinstance(x, str) and 'cbranch' in x for x in it)]
        ot_ = [it for it in ex if it not in vm_]
        if vm_: spread(hh, vm_, list(o.apos) if len(vm_) <= 2 else [0, 1, 2, 3])
        if ot_: spread(hh, ot_, list(o.dpos))
        if n == o.bar_at: P("s_waitcnt lgkmcnt(0)"); P("s_barrier")
        if n == 26: M = [mm(26, 0, 0), mm(26, 0, 1), mm(27, 0, 0), mm(27, 0, 1)]
        if n == 27: M = [mm(26, 1, 0), mm(26, 1, 1), mm(27, 1, 0), mm(27, 1, 1)]
        for t in range(4):
            P.add([M[t]] + sum(hh.get(t, []), []) + sum(EP.get(4 * n + t, []), []))
            if n == 27 and t >= 1: P.add((sc(0, 0) + sc(0, 1))[[0, 0, 10, 21][t]:[0, 10, 21, 32][t]])
    stamp(P, o, 'last_h')
    for it in oq: P.add(it)
    used = set(sl[56:72])
    free = [r for r in sorted(x for x in set(sl) if not isinstance(x, tuple)) if r not in used]
    B2 = [r for r in free if all((r + 4 * k) in free for k in range(4))][0]
    for k in range(4): P(f"ds_read_b128 {vr(B2+4*k,4)}, v{L_BA} offset:{32*k}")
    rest = sc(1, 0) + [f"v_add_f32 v{q(1,1)+i}, v{q(1,1)+i}, v{B2+i}" for i in range(16)] + sc(1, 1)
    M = []
    for n in range(28, 36): M += [[mm(n, 0, 0)], [mm(n, 0, 1)]]
    P.add(interleave(M, rest))
    wr = lambda ttl, ctl: [f"ds_write_b128 v{L_RR}, {vr(q(ttl,ctl)+4*i,4)} offset:{(((1-ttl) | ((1-ctl) << 1)) - 1)*16384 + i*1024}" for i in range(4)]
    w = wr(0, 0) + wr(0, 1)
    seq = []
    for i, n in enumerate(range(28, 36)):
        seq.append(mm(n, 1, 0))
        if i >= 2: seq += w[:2]; w = w[2:]
    seq += w
    w = wr(1, 0)
    for i, n in enumerate(range(28, 36)):
        seq.append(mm(n, 1, 1))
        if i >= 3 and w: seq.append(w.pop(0))
    P.add(seq + w)
    P("s_waitcnt lgkmcnt(0)")
    P("s_barrier")
    stamp(P, o, 'last_o')
    R = 80
    for d in range(3):
        for i in range(4):
            P(f"ds_read_b128 {vr(R+16*d+4*i,4)}, v{L_RW+d} offset:{i*1024}")
    o_ = q(1, 1)
    for d in range(3):
        for i in range(8):
            P(f"v_pk_add_f32 {vr(o_+2*i,2)}, {vr(o_+2*i,2)}, {vr(R+16*d+2*i,2)}")
    p = R + 48
    for i in range(8): P(f"v_cvt_pk_bf16_f32 v{p+i}, v{o_+2*i}, v{o_+2*i+1}")
    for h in range(2):
        P(f"v_permlane32_swap_b32 v{p+4*h}, v{p+4*h+2}")
        P(f"v_permlane32_swap_b32 v{p+4*h+1}, v{p+4*h+3}")
    for h in range(2):
        P(f"buffer_store_dwordx4 {vr(p+4*h,4)}, v{L_OA}, {sr(SRD_OUT,4)}, 0 offen offset:{32*h} {['', 'sc1', 'nt'][o.osc]}")
    stamp(P, o, 'end')

HEADER = open('cdna_kernels/' + NAME + '.s.ref').read().split('; Override launch')[0]

def finish(P, o, name):
    for sp in slow_paths:
        P.forget(); P(sp)
    L = finalize(P, True)
    if o.align:
        L, nf = align_runs(L); print('aligned runs:', nf)
    out = HEADER + f"; @launch grid=(256,1,1) block=(256,1,1) lds={LDS_BYTES}\n"
    out += '.amdgcn_target "amdgcn-amd-amdhsa--gfx950"\n.text\n'
    out += f".globl {name}\n.p2align 8\n.type {name},@function\n{name}:\n" + text(L)
    out += "s_endpgm\n.fill 2048, 4, 0xbf800000\n"
    out += f""".section .rodata,"a"
.p2align 6
.amdhsa_kernel {name}
  .amdhsa_next_free_vgpr 512
  .amdhsa_next_free_sgpr 102
  .amdhsa_accum_offset 256
  .amdhsa_group_segment_fixed_size 0
  .amdhsa_kernarg_size 96
  .amdhsa_user_sgpr_count 2
  .amdhsa_user_sgpr_kernarg_segment_ptr 1
  .amdhsa_system_sgpr_workgroup_id_x 1
.end_amdhsa_kernel
"""
    if o.diag is not None:
        out = out.replace('DIAG_I', str(o.stamp_names.index(o.diag[0]))).replace('DIAG_J', str(o.stamp_names.index(o.diag[1])))
    return out

def stf(o, n):
    D = Prog()
    if o.fine: stamp(D, o, n)
    return D.L

def groups(fn, o):
    D = Prog(); fn(D, o); return atomic_groups(D.L)

def build(o):
    name = NAME + "_kernel"
    R = lambda a, b: list(range(a, b))
    P = Prog(); setup(P, o, "L_end")
    P(f"s_cmp_eq_u32 s{S_C}, 7")
    P("s_cbranch_scc1 L_prep")
    H = Gaps()
    def first(D, o):
        s1_w1_addr(D, o)
        if o.w1t: w1_touch(D, o)
        common2(D, o); s1_misc(D, o)
        if o.stouch < 2: D(f"buffer_load_dword v{V_TAG}, v{V_FLAGOFF}, {sr(SRD_WS,4)}, 0 offen")
        last_baddr(D, o)
        att_scalars(D, o)
        if not o.b1late: bias1(D, o)
        att_poll_addr(D, o)
        if not o.glate: gate_flags(D, o, V_PA)
        att_addr(D, o)
        if o.b1late: bias1(D, o)
        if o.mka: att_masks(D, o)
        if o.stouch < 2: D(f"v_readfirstlane_b32 s{S_TAG}, v{V_TAG}")
        D.add(TAGOPS)
        for i in range(o.wact):
            D(f"s_mul_i32 s{S_T4}, s{S_RBL}, 7")
            D(f"s_add_u32 s{S_T4}, s{S_T4}, s{S_C}")
            D(f"s_lshl2_add_u32 s{S_T4}, s{S_T4}, s{S_WAVE}")
            D(f"s_add_u32 s{S_T4}, s{S_T4}, {16*o.wsp + 112*i}")
            warm_touch(D, S_T4, 161 + i, S_T0, V_L128)
    H.put('v', groups(first, o), 0, o.su_end)
    H.put('m', bias1_reads(), o.b1r, 84)
    def first2(D, o): att_kvoff(D, o); last_soff(D, o)
    H.put('v', groups(first2, o), o.su_end, 84)
    FAKE[0] = o.fake & 1
    pass_a(P, o, H)
    FAKE[0] = 0
    qkv_epilogue(P, o, merge_salu([it for n in range(o.nba, o.nbe) for it in dma_b(n)]))
    stamp(P, o, 'qkv_epi')
    H = Gaps()
    def second(D, o):
        last_setup(D, o)
        if o.glate: gate_flags(D, o, V_PH)
        if not o.mka: att_masks(D, o)
    H.put('v', groups(second, o), 0, 50)
    for i, g in enumerate(o.l2t):
        D = Prog(); l2_touch(D, o, i); H.put('v', [D.L], g, g + 1)
    dm = lambda a, b: merge_salu([it for p in range(a, b) for it in b_dma(p)])
    rd = lambda a, b: [[WVM(f'bp{n >> 1}')] + b_reads(n)[:2] if k == 0 else b_reads(n)[2:] for n in range(2 * a, 2 * b) for k in range(2)]
    b = o.pb
    kv = merge_salu(att_loads(o))
    gl = []
    if o.glate: kv, gl = kv[:14], kv[14:]
    def put_m0(items, g0, g1):
        own = lambda g: 12 <= g < 52 and (g - 12) % 16 < 8
        free = [g for g in range(g0, g1) if not own(g)]
        runs = []; cur = []
        for it in items:
            if any(isinstance(x, str) and ' m0,' in x for x in it) and cur: runs.append(cur); cur = []
            cur.append(it)
        runs.append(cur)
        n = len(runs)
        for i, r in enumerate(runs):
            sl = free[(i * len(free)) // n:((i + 1) * len(free)) // n]
            keep = [sl[0]]
            for g in sl[1:]:
                if g != keep[-1] + 1: break
                keep.append(g)
            spread(H.m, r, keep)
    if o.nbe < 4: H.put('m', merge_salu([it for n in range(o.nbe, 4) for it in dma_b(n)]), 0, 12)
    for c in range(3): H.put('m', merge_salu(dma_b(c + 4)), 16 * c + 12, 16 * c + 20)
    if not o.drop & 1: put_m0(dm(0, o.n1), b[0], b[1])
    H.put('m', [stf(o, 'qf0') + [WVM('qst')] + stf(o, 'qf1') + flag_store(S_QFL)], o.qflag, o.qflag + 1)
    H.put('m', [poll_issue(V_PA)], o.kpoll, o.kpoll + 1)
    kvl = kv[o.nkv:]
    if not o.drop & 4: put_m0([['s_waitcnt lgkmcnt(0)', 's_barrier'] * (o.n1 > 4) + stf(o, 'kc0') + poll_check(V_PA) + stf(o, 'kc1') + kv[0]] + kv[1:o.nkv], o.kcheck, o.kend)
    if not o.r1late: H.put('m', rd(0, o.n1), b[2], b[3])
    pt = att_patch()
    if o.patch < 112:
        H.put('m', pt[:4], o.patch, o.patch + 2)
        H.put('v', pt[4:], o.patch + 2, 112)
    FAKE[0] = o.fake & 2
    pass_b(P, o, H)
    FAKE[0] = 0
    P("s_waitcnt lgkmcnt(0)")
    P("s_barrier")
    stamp(P, o, 'pass_b')
    if o.trunc:
        stamp_flush(P, o); P("s_endpgm"); P.forget(); P("L_prep:"); prep(P, o); stamp_flush(P, o); P("L_end:"); P("s_endpgm")
        return finish(P, o, name)
    if o.patch < 112: P.add(kread(ORDER[0], 0) + kread(ORDER[1], 1))
    last_baddr2(P, o)
    na = 11 + (o.n1 - 4)
    Q = Prog(); held = []; sstream = []
    for F in range(4):
        g = gelu_tile(F)
        for i, x in enumerate(g[:-2]):
            if i % 4 == 0: Q.L.append(Slot(f'g{F}_{i}'))
            Q.add([x])
        held += g[-2:]
        if F >= o.kvt - 1:
            Q.L.append(Slot(f'gs{F}'))
            if o.pst: sstream += [([x], (lambda F: lambda st: f'gs{F}' in st['seen'])(F), 'x') for x in held]
            else: Q.add(held)
            held = []
        if F == o.patch_t:
            if o.fine: stamp(Q, o, 'pt0')
            Q.add(pt[0])
            if o.fine: stamp(Q, o, 'pt1')
            for it in pt[1:]: Q.add(it)
        if F == o.bar_t:
            Q("s_waitcnt lgkmcnt(0)"); Q("s_barrier")
            Q.add(kread(ORDER[0], 0) + kread(ORDER[1], 1))
    stamp(Q, o, 'gelu')
    attention(Q, o, None, kpre=True)
    seen = lambda n: (lambda st: n in st['seen'])
    after = lambda key, dt: (lambda st: key in st['done'] and st['t'] >= st['done'][key] + dt)
    both = lambda a, b: (lambda st: a(st) and b(st))
    dstream = [(it, None, f'kv{i}') for i, it in enumerate(kvl)]
    for p in range(o.n1, 18):
        its = merge_salu(b_dma(p))
        for i, it in enumerate(its):
            cond = None
            if p == o.n1 and i == 0: cond = seen(o.ra0)
            lo = 0 if o.r1late else o.n1
            if i == 0 and [q for q in range(lo, p) if PIECE[q] == PIECE[p]]:
                prev = [q for q in range(lo, p) if PIECE[q] == PIECE[p]][-1]
                cond = after(f'rd{prev}', 60); it = [WLG(f'rd{prev}')] + it
            if o.pause:
                c0 = cond
                cond = (lambda c0: lambda st: (c0 is None or c0(st)) and (o.pause_at not in st['seen'] or f'a{o.resume}' in st['seen']))(c0)
            dstream.append((it, cond, f'dm{p}' if i == len(its) - 1 else 'x'))
    rstream = []
    for p in range(0 if o.r1late else o.n1, 11):
        r = b_reads(2 * p) + b_reads(2 * p + 1)
        for k in range(4):
            it = [(x, f'rd{p}') for x in r[2 * k:2 * k + 2]]
            rstream.append(([WVM(f'bp{p}')] * (k == 0) + it, (seen(o.r1at) if p < o.n1 else both(after(f'dm{p}', o.lat), seen('a0'))) if k == 0 else None, f'rd{p}' if k == 3 else 'x'))
    def st_(n):
        D = Prog()
        if o.fine: stamp(D, o, n)
        return D.L
    names0 = list(o.stamp_names)
    fstream = [(st_('hf0') + [WVM('hst')] + st_('hf1') + flag_store(S_HFL), both(seen(f'a{o.hflag}'), lambda st: not sstream), 'hf')]
    if o.nearly > 0:
        fstream.append((poll_issue(V_PH), seen(f'a{o.hpoll}'), 'hp'))
        al = merge_salu([[x] for n in range(o.nearly) for x in a_load(o, n)])
        al = al[:2] + gl + al[2:]
        if o.atouch:
            tch = [f"buffer_load_dword v{V_AT}, v{V_AT}, {sr(SRD_WS,4)}, s{S_AOF} offen {SC}"]
            fstream.append((st_('hc0') + poll_check(V_PH) + st_('hc1') + tch, seen(f'a{o.hcheck}'), 'hc'))
            fstream += [(it, seen(f'a{o.ea0}'), 'ea') for it in al]
        else:
            fstream.append((st_('hc0') + poll_check(V_PH) + st_('hc1') + al[0], seen(f'a{o.hcheck}'), 'hc'))
            fstream += [(it, None, 'ea') for it in al[1:]]
    L, t = place(Q.L, {'s': sstream, 'f': fstream, 'r': rstream, 'd': dstream}, gap=o.gap, burst=o.burst)
    kvpos = max([i for i, x in enumerate(L) if isinstance(x, I) and x.tag == 'kv'] + [-1]); hpos = min(i for i, x in enumerate(L) if isinstance(x, I) and x.tag == 'hst')
    print('estimated gelu+attention cycles', t, 'left', len(dstream), len(rstream), len(fstream), 'kv before h stores', kvpos < hpos)
    assert not rstream and not sstream
    P.L += L
    for it, _, _ in fstream: P.add(it)
    o.left = [it for it, _, _ in dstream]
    FAKE[0] = o.fake & 4
    last(P, o)
    FAKE[0] = 0
    stamp_flush(P, o)
    P("s_endpgm")
    P.forget()
    P("L_prep:")
    prep(P, o)
    att_scalars(P, o); att_poll_addr(P, o); gate_flags(P, o, V_PA); att_addr(P, o); att_masks(P, o); att_kvoff(P, o)
    poll(P, o, V_PA)
    for it in att_loads(o, False) + att_patch(): P.add(it)
    P("s_waitcnt lgkmcnt(0)")
    P("s_barrier")
    if o.pw & 2:
        srd_rest(P, [(SRD_OUT, 2048*896)])
        P(f"v_lshlrev_b32 v{V_T+3}, 18, v{V_LANE}")
        P(f"buffer_load_dword v200, v{V_T+3}, {sr(SRD_OUT,4)}, 0 offen")
    st, o.stamps = o.stamps, False
    attention(P, o, {})
    att_epilogue(P, o)
    o.stamps = st
    P("s_waitcnt vmcnt(0)")
    P.add(flag_store(S_OFL))
    stamp(P, o, 'p_att')
    stamp_flush(P, o)
    P(f"s_cmp_eq_u32 s2, 56")
    P("s_cbranch_scc0 L_end")
    P(f"s_cmp_eq_u32 s{S_WAVE}, 0")
    P("s_cbranch_scc0 L_end")
    P(f"v_lshlrev_b32 v{V_PA}, 7, v{V_LANE}")
    P(f"s_mov_b32 s{S_CNT}, 4000")
    P("L_ep:")
    for i in range(16):
        P(f"s_mov_b32 s{S_T0}, {FL_O + i*8192}")
        P(f"buffer_load_dwordx2 {vr(16+2*i,2)}, v{V_PA}, {sr(SRD_WS,4)}, s{S_T0} offen sc1")
    P("s_waitcnt vmcnt(0)")
    P(f"s_mov_b64 {sr(S_T0)}, 0")
    for i in range(16):
        P(f"v_cmp_ne_u64 vcc, {sr(S_TAG)}, {vr(16+2*i,2)}")
        P(f"s_or_b64 {sr(S_T0)}, {sr(S_T0)}, vcc")
    P(f"s_sub_u32 s{S_CNT}, s{S_CNT}, 1")
    P("s_cbranch_scc1 L_end")
    P(f"s_cmp_eq_u64 {sr(S_T0)}, 0")
    P("s_cbranch_scc0 L_ep")
    P(f"buffer_store_dword v{V_TAG}, v{V_FLAGOFF}, {sr(SRD_WS,4)}, 0 offen sc1")
    P("L_end:")
    P("s_endpgm")
    return finish(P, o, name)

DEFAULTS = dict(pff=0, slim=0, sp=0, stouch=0, fake=0, pst=0, osc=0, nba=4, nbe=4, oend=28, r1late=0, r1at='g1_0', apos=(0, 2), dpos=(1, 3), align=1, rot=0, rcls=2, wfirst=0, glate=0, bar_t=3, epin=6, bar_at=3, olead=12, atouch=0, ea0=46, fine=0, pause=1, pause_at='gs1', resume=0, burst=2, gap=64, lat=700, ra0='g0_0', l2t=(), kvt=2, patch_t=1, pw=0, b1late=1, w1t=0, mw=1, drop=0, trunc=0, ncls=3, wsp=0, wact=0, su_end=72, bq_end=84, mka=1, n1=4,
                b1r=60, pb=(52, 84, 88, 104), qflag=30, kpoll=74, kcheck=86, kend=112, nkv=14, patch=112,
                nb_gelu=(0, 0, 3, 3), pa=(0, 22, 20, 32, 50), nrb=20, left_steps=4, hflag=6, nearly=4, hpoll=32, hcheck=44,
                lead=6, jit0=8, oflag_at=5, opoll_at=15, ocheck_at=22, hst=0, code_bytes=32768)

if __name__ == '__main__':
    o = Opt()
    for k, v in DEFAULTS.items(): setattr(o, k, v)
    o.stamps = 'stamps' in sys.argv; o.diag = None; o.stamp_names = []
    o.clk = 's_memtime' if 'cyc' in sys.argv else 's_memrealtime'
    for a in sys.argv[2:]:
        if '=' not in a: continue
        k, v = a.split('=')
        if k == 'diag':
            i, j, K = v.split(','); o.diag = (i, j, int(K)); o.stamps = True
        elif k in ('ra0', 'pause_at', 'r1at'): setattr(o, k, v)
        elif ',' in v: setattr(o, k, tuple(int(x) for x in v.split(',') if x))
        else: setattr(o, k, int(v))
    plan(o.n1, o.r1late); ROT[0] = o.rot
    s = build(o)
    open(sys.argv[1], 'w').write(s)
    if o.stamps: open(sys.argv[1] + '.names', 'w').write('\n'.join(o.stamp_names))
```

```python
import sys, math, struct
from asmlib import *

NAME = "gated_mix__sliding_block__dense_activation_gelu__prompt"
def f2u(x): return struct.unpack('<I', struct.pack('<f', x))[0]

WS_E      = 0
FL_G      = 0x1000
G_OFF     = 0x4000
FL_QKV    = 0x20000
FL_H      = 0x40000
FL_O      = 0x60000
QKV_OFF   = 0x100000
A_OFF     = 0x700000
WS_SIZE   = 0x1000000
BP_OFF    = 0x1000000
STAMP_OFF = 0x1400000
QKV_TB = 168 * 512
A_TB = 144 * 1024

SA = 28672
LQ = 16384
LF = 98304; SF = 16384
LBIAS = 86016
LKV = 0
LRED = 0
LP = [49152 + 16384 * i for i in range(7)] + [0, 16384, 32768]
PIECE = []
def plan(n1, late=0):
    ra = list(range(11 - n1))
    rb = [p for p in range(7) if p not in ra] + ra
    PIECE[:] = [0, 1, 2, 3, 7, 8, 9][:n1] + ra + rb[:7]
    if late: PIECE[:] = [0, 1, 2, 3] + [4, 5, 6, 0, 1, 2, 3] * 2
LDS_BYTES = 160 * 1024

S_WAVE, S_RBL, S_SPARE, S_XCD, S_SLOT = 3, 8, 9, 10, 11
S_XO, S_QO, S_FO, S_CI, S_CJ = 4, 5, 6, 7, 22
S_M4, S_M3 = 23, 24
S_OFL = 25
S_B1, S_W2, S_B2, S_GW, S_WO = 12, 14, 16, 18, 20
S_TAG = 26
SRD_X, SRD_WQ, SRD_W1, SRD_WS, SRD_OUT, SRD_W2 = 28, 32, 36, 40, 44, 48
SRD_WO = 32
S_KV = [28, 29, 30, 31]
S_RB, S_B, S_TB = 52, 53, 54
S_BOF = 55
S_T0, S_T1, S_T2, S_T3 = 56, 57, 58, 59
S_CNT = 60
S_QST, S_HST = 61, 62
S_T4 = 63
S_MASK = 64
S_QFL, S_HFL = 12, 13
S_OST, S_B3 = 18, 19
S_AOF, S_AO2, S_BO = 4, 5, 7
S_ARB, S_ATB = 14, 15
S_R, S_C, S_J, S_PAR = 98, 99, 100, 101
S_AG, S_BG = 52, 54

def sr(b, n=2): return f"s[{b}:{b+n-1}]"
def vr(b, n): return f"v[{b}:{b+n-1}]" if n > 1 else f"v{b}"
def ar(b, n): return f"a[{b}:{b+n-1}]"
def xr(d): return ar(d[1], 4) if isinstance(d, tuple) else vr(d, 4)

V_LANE, V_L16, V_L16H, V_FLAGOFF = 1, 2, 3, 4
V_TAG = 6
V_PD = 8
V_PA = 10
V_T = 11
V_BA = 216
V_AA = 220
L_G = 222
L_RW = 224
L_RR, L_OA, V_PO, V_PH = 227, 228, 229, 231
V_BR = [[232, 233], [0, 230], [202, 234]]
L_BA = 10
V_DUM = 235
V_ST = 255
SC = 'sc1'

class Opt: pass

FAKE = [0]
def mfma(d, a, b, c):
    if FAKE[0]:
        return "\n".join(f"v_mfma_f32_16x16x32_bf16 {vr(d+8*k,4)}, {xr(a)}, {xr(b)}, {'0' if c is None else vr(c+8*k,4)}" for k in range(2))
    C = '0' if c is None else vr(c, 16)
    return f"v_mfma_f32_32x32x16_bf16 {vr(d,16)}, {xr(a)}, {xr(b)}, {C}"

lab = [0]
def stamp(P, o, name):
    if not o.stamps: return
    if name not in o.stamp_names: o.stamp_names.append(name)
    P(f"{o.clk} s[96:97]")
    P("s_waitcnt lgkmcnt(0)")
    P(f"v_writelane_b32 v{V_ST}, s96, {o.stamp_names.index(name)}")

def stamp_flush(P, o):
    if not o.stamps: return
    if o.diag is not None:
        lab[0] += 1
        P(f"v_readlane_b32 s{S_T0}, v{V_ST}, DIAG_I")
        P(f"v_readlane_b32 s{S_T1}, v{V_ST}, DIAG_J")
        P("s_nop 4")
        P(f"s_sub_u32 s{S_T0}, s{S_T1}, s{S_T0}")
        P(f"s_mul_i32 s{S_T0}, s{S_T0}, {o.diag[2]}")
        P(f"s_min_u32 s{S_T0}, s{S_T0}, 20000")
        P(f"s_cmp_eq_u32 s{S_SPARE}, 1")
        P(f"s_cselect_b32 s{S_T0}, 0, s{S_T0}")
        P("s_memrealtime s[96:97]")
        P("s_waitcnt lgkmcnt(0)")
        P(f"s_mov_b32 s{S_T1}, s96")
        P(f"L_dg{lab[0]}:")
        P("s_memrealtime s[96:97]")
        P("s_waitcnt lgkmcnt(0)")
        P(f"s_sub_u32 s{S_T2}, s96, s{S_T1}")
        P(f"s_cmp_lt_u32 s{S_T2}, s{S_T0}")
        P(f"s_cbranch_scc1 L_dg{lab[0]}")
        return
    P("s_waitcnt vmcnt(0)")
    P(f"s_lshl2_add_u32 s{S_T0}, s2, s{S_WAVE}")
    P(f"s_lshl_b32 s{S_T0}, s{S_T0}, 8")
    P(f"s_add_u32 s{S_T0}, s{S_T0}, {STAMP_OFF}")
    P(f"s_mov_b32 s{SRD_WS+2}, {STAMP_OFF + 0x100000}")
    P(f"v_lshlrev_b32 v{V_T}, 2, v{V_LANE}")
    P(f"buffer_store_dword v{V_ST}, v{V_T}, {sr(SRD_WS,4)}, s{S_T0} offen")

def setup(P, o, end_label):
    if o.stamps: P(f"{o.clk} s[94:95]")
    if o.pff: setup_rest(P, o, True)
    P(f"s_load_dwordx2 {sr(SRD_X)}, s[0:1], 0")
    P(f"s_load_dwordx2 {sr(SRD_WQ)}, s[0:1], 8")
    if not o.slim: setup_rest(P, o, False)
    P("s_cmpk_ge_u32 s2, 256")
    P(f"s_cbranch_scc1 {end_label}")
    if not o.slim and not o.pff: setup_rest(P, o, True)
    P(f"v_lshrrev_b32 v5, 6, v0")
    P(f"v_and_b32 v{V_LANE}, 63, v0")
    P(f"v_readfirstlane_b32 s{S_WAVE}, v5")
    P(f"s_and_b32 s{S_XCD}, s2, 7")
    P(f"s_lshr_b32 s{S_RBL}, s2, 6")
    P(f"s_bfe_u32 s{S_C}, s2, 0x30003")
    P(f"s_mov_b32 s{SRD_X+3}, 0x20000")
    P(f"s_mov_b32 s{SRD_X+2}, {2048*896}")

def setup_rest(P, o, pf):
    if not pf:
        P(f"s_load_dwordx2 {sr(SRD_W1)}, s[0:1], 32")
        P(f"s_load_dwordx8 s[12:19], s[0:1], 40")
        P(f"s_load_dwordx2 {sr(SRD_WS)}, s[0:1], 88")
        P(f"s_load_dwordx2 {sr(SRD_OUT)}, s[0:1], 72")
        P(f"s_load_dwordx2 {sr(S_WO)}, s[0:1], 16")
        P(f"s_lshr_b32 s{S_SLOT}, s2, 3")
        return
    P(f"s_getpc_b64 s[{S_T0}:{S_T1}]")
    P(f"v_lshlrev_b32 v15, 7, v0")
    P(f"v_min_u32 v15, {o.code_bytes - 512}, v15")
    P(f"global_load_dword v{V_DUM}, v15, s[{S_T0}:{S_T1}]", tag='pf')

def srd_rest(P, regs):
    for d, size in regs:
        P(f"s_mov_b32 s{d+2}, {size}")
        P(f"s_mov_b32 s{d+3}, 0x20000")

def common2(P, o):
    P(f"v_lshlrev_b32 v{V_L16}, 4, v{V_LANE}")
    P(f"v_cmp_eq_u32 vcc, 0, v{V_LANE}")
    P(f"v_mov_b32 v5, 0x7fff0000")
    P(f"v_add_u32 v{V_L16H}, 0x1000, v{V_L16}")
    P(f"v_cndmask_b32_e64 v{V_FLAGOFF}, v5, 0, vcc")
    P(f"s_lshl2_add_u32 s{S_R}, s{S_XCD}, s{S_RBL}")

TAGOPS = [f"s_mul_i32 s{S_TAG}, s{S_TAG}, 0x9e3779b1",
          f"s_add_u32 s{S_TAG}, s{S_TAG}, 0x7f4a7c15",
          f"s_xor_b32 s{S_TAG+1}, s{S_TAG}, 0x5bd1e995",
          f"v_mov_b32 v{V_TAG}, s{S_TAG}",
          f"v_mov_b32 v{V_TAG+1}, s{S_TAG+1}"]

def warm_touch(P, blk, dst, tb, l128):
    P(f"s_mul_i32 s{tb}, s{S_XCD}, 31")
    P(f"s_min_u32 s{blk}, s{blk}, 244")
    P(f"s_add_u32 s{blk}, s{blk}, s{tb}")
    P(f"s_sub_u32 s{tb}, s{blk}, 245")
    P(f"s_cselect_b32 s{blk}, s{blk}, s{tb}")
    P(f"s_sub_u32 s{tb}, s{blk}, 196")
    P(f"s_cselect_b32 s{blk}, s{blk}, s{tb}")
    P(f"s_cselect_b64 {sr(tb)}, {sr(SRD_W2)}, {sr(S_WO)}")
    P(f"s_lshl_b32 s{blk}, s{blk}, 13")
    P(f"s_add_u32 s{tb}, s{tb}, s{blk}")
    P(f"s_addc_u32 s{tb+1}, s{tb+1}, 0")
    P(f"global_load_dword v{dst}, v{l128}, {sr(tb)}", tag='warm')

def l2_touch(P, o, i):
    P(f"s_mul_i32 s{S_T4}, s{S_RBL}, 7")
    P(f"s_add_u32 s{S_T4}, s{S_T4}, s{S_C}")
    P(f"s_lshl2_add_u32 s{S_T4}, s{S_T4}, s{S_WAVE}")
    if i: P(f"s_add_u32 s{S_T4}, s{S_T4}, {112*i}")
    P(f"s_mul_i32 s{S_T0}, s{S_T4}, 1873")
    P(f"s_lshr_b32 s{S_T0}, s{S_T0}, 16")
    P(f"s_mul_i32 s{S_T0}, s{S_T0}, {128*896}")
    P(f"s_lshl_b32 s{S_T1}, s{S_T4}, 13")
    P(f"s_add_u32 s{S_T0}, s{S_T0}, s{S_T1}")
    P(f"s_add_u32 s{S_T0}, s{S_T0}, {128*896}")
    P(f"s_sub_u32 s{S_T1}, s{S_T1}, {140*8192}")
    P(f"s_cbranch_scc0 L_wo{i}")
    P(f"buffer_load_dword v{184+i}, v{V_L128}, {sr(SRD_W2,4)}, s{S_T0} offen")
    P(f"s_branch L_wj{i}")
    P(f"L_wo{i}:")
    P(f"buffer_load_dword v{186+i}, v{V_L128}, {sr(SRD_WO,4)}, s{S_T1} offen")
    P(f"L_wj{i}:")
    P.L.append(Pseudo('drop_vm'))

def poll(P, o, addr_v, limit=4000):
    lab[0] += 1
    L = f"L_poll{lab[0]}"
    P(f"s_mov_b32 s{S_CNT}, {limit}")
    P(f"{L}:")
    P(f"buffer_load_dwordx2 {vr(V_PD,2)}, v{addr_v}, {sr(SRD_WS,4)}, 0 offen sc1")
    P(f"s_sub_u32 s{S_CNT}, s{S_CNT}, 1")
    P("s_waitcnt vmcnt(0)")
    P(f"v_cmp_ne_u64 vcc, {sr(S_TAG)}, {vr(V_PD,2)}")
    P(f"s_cbranch_scc1 {L}_x")
    P(f"s_cbranch_vccnz {L}")
    P(f"{L}_x:")

slow_paths = []
def poll_issue(addr_v):
    return [f"buffer_load_dwordx2 {vr(V_PD,2)}, v{addr_v}, {sr(SRD_WS,4)}, 0 offen sc1"]
def poll_check(addr_v, limit=4000):
    lab[0] += 1
    L = f"L_pc{lab[0]}"
    slow_paths.append(f"""{L}_slow:
s_mov_b32 s{S_CNT}, {limit}
{L}_loop:
buffer_load_dwordx2 {vr(V_PD,2)}, v{addr_v}, {sr(SRD_WS,4)}, 0 offen sc1
s_sub_u32 s{S_CNT}, s{S_CNT}, 1
s_waitcnt vmcnt(0)
v_cmp_ne_u64 vcc, {sr(S_TAG)}, {vr(V_PD,2)}
s_cbranch_scc1 {L}_back
s_cbranch_vccnz {L}_loop
s_branch {L}_back""")
    return [f"v_cmp_ne_u64 vcc, {sr(S_TAG)}, {vr(V_PD,2)}\ns_cbranch_vccnz {L}_slow\n{L}_back:"]

def flag_store(soff):
    return [f"buffer_store_dwordx2 {vr(V_TAG,2)}, v{V_FLAGOFF}, {sr(SRD_WS,4)}, s{soff} offen sc1"]

ACC_Q, ACC_F = 16, 64
FR = 128
GT = 160
V_XD, V_QD, V_FD = 192, 196, 199
V_XR, V_QR, V_FRD = 203, 207, 208
V_CA, V_CB = 212, 214
V_QR2, V_L128 = 213, 215

def adv(ci):
    return f"s_add_u32 s{ci}, s{ci}, 1\ns_cmp_eq_u32 s{ci}, 7\ns_cselect_b32 s{ci}, 0, s{ci}"

def dma_a(n):
    sl = (n % 3) * SA
    L = []
    if n: L.append([adv(S_CI)])
    L.append([f"s_lshl_b32 s{S_XO}, s{S_CI}, 7", f"s_add_u32 m0, s{S_M4}, {sl}"])
    L.append([f"s_mul_i32 s{S_QO}, s{S_CI}, {64*2688}"])
    for i in range(4):
        L.append([(f"buffer_load_dwordx4 v{V_XD+i}, {sr(SRD_X,4)}, s{S_XO} offen offset:{i*1024} lds", f'da{n}')])
    L.append([f"s_add_u32 m0, s{S_M3}, {sl}"])
    for i in range(3):
        L.append([(f"buffer_load_dwordx4 v{V_QD+i}, {sr(SRD_WQ,4)}, s{S_QO} offen offset:{i*1024} lds", f'da{n}')])
    return L

def dma_b(n):
    L = []
    if n: L.append([adv(S_CJ)])
    L.append([f"s_add_u32 m0, s{S_M4}, {LF + ((n + 1) % 4) * SF}", f"s_mul_i32 s{S_FO}, s{S_CJ}, {64*3584}"])
    for i in range(4):
        L.append([(f"buffer_load_dwordx4 v{V_FD+i}, {sr(SRD_W1,4)}, s{S_FO} offen offset:{i*1024} lds", f'db{n}')])
    return L

def reads_a(g):
    c, s = g >> 2, g & 3
    sl = (c % 3) * SA
    base = FR + 16 * (g & 1)
    L = [f"ds_read_b128 {ar(4*g,4)}, v{V_XR+s} offset:{sl}"]
    q, so = (V_QR2, 0) if c % 3 == 2 else (V_QR, sl)
    for t in range(3):
        for rho in range(2):
            L.append(f"ds_read_b64_tr_b16 {vr(base+4*t+2*rho,2)}, v{q} offset:{so + (16*s+4*rho)*192 + t*64}")
    return L

def reads_b(g):
    c, s = g >> 2, g & 3
    base = FR + 16 * (g & 1)
    return [f"ds_read_b64_tr_b16 {vr(base+4*t+2*rho,2)}, v{V_FRD+t} offset:{((c + 1) % 4)*SF + (16*s+4*rho)*256}" for t in range(4) for rho in range(2)]

def s1_x_addr(P, o):
    T = V_T
    if o.ncls == 3:
        P(f"s_add_u32 s{S_CI}, s{S_C}, s{S_RBL}")
        P(f"s_lshl_b32 s{S_CI}, s{S_CI}, 1")
        P(f"s_lshr_b32 s{S_CI}, 0x24924, s{S_CI}")
        P(f"s_and_b32 s{S_CI}, s{S_CI}, 3")
        P(f"s_lshl_b32 s{S_CI}, s{S_CI}, 1")
    elif o.ncls == 2:
        P(f"s_add_u32 s{S_CI}, s{S_C}, s{S_RBL}")
        P(f"s_and_b32 s{S_CI}, s{S_CI}, 1")
        P(f"s_mul_i32 s{S_CI}, s{S_CI}, 3")
    else:
        P(f"s_mov_b32 s{S_CI}, 0")
    P(f"s_and_b32 s{S_RB}, s{S_XCD}, 3")
    P(f"s_lshl2_add_u32 s{S_RB}, s{S_RB}, s{S_RBL}")
    P(f"s_lshl2_add_u32 s{S_TB}, s{S_RB}, s{S_WAVE}")
    P(f"v_lshrrev_b32 v{T}, 3, v{V_LANE}")
    P(f"v_and_b32 v{T+1}, 7, v{V_LANE}")
    P(f"v_lshrrev_b32 v{T+2}, 4, v{V_LANE}")
    P(f"s_lshl_b32 s{S_T2}, s{S_TB}, 5")
    P(f"v_add_u32 v{T}, s{S_T2}, v{T}")
    P(f"v_mul_u32_u24 v{T}, 896, v{T}")
    P(f"v_xor_b32 v{T+1}, v{T+2}, v{T+1}")
    P(f"v_lshl_add_u32 v{V_XD}, v{T+1}, 4, v{T}")
    P(f"v_xor_b32 v{V_XD+1}, 64, v{V_XD}")
    P(f"s_lshl_b32 s{S_M4}, s{S_WAVE}, 12")
    P(f"v_add_u32 v{V_XD+2}, {2*(8*896-1024)}, v{V_XD}")
    P(f"v_add_u32 v{V_XD+3}, {3*(8*896-1024)}, v{V_XD+1}")
    P(f"v_add_u32 v{V_XD+1}, {1*(8*896-1024)}, v{V_XD+1}")

def s1_wq_addr(P, o):
    T = V_T
    P(f"s_lshr_b32 s{S_B}, s{S_XCD}, 2")
    P(f"s_mul_i32 s{S_B}, s{S_B}, 7")
    P(f"s_add_u32 s{S_B}, s{S_B}, s{S_C}")
    P(f"s_mul_i32 s{S_T2}, s{S_WAVE}, 192")
    P(f"s_mul_i32 s{S_T3}, s{S_B}, 192")
    P(f"v_add_u32 v{T}, s{S_T2}, v{V_LANE}")
    P(f"v_lshl_add_u32 v{T+2}, v{T}, 4, s{S_T3}")
    P(f"v_mul_u32_u24 v{T}, 0xaaab, v{T}")
    P(f"s_movk_i32 s{S_T3}, 2496")
    for i in range(3):
        if i: P(f"v_add_u32 v{T}, {64*0xaaab}, v{T}")
        P(f"v_lshrrev_b32 v{T+1}, 19, v{T}")
        P(f"v_mad_u32_u24 v{V_QD+i}, v{T+1}, s{S_T3}, v{T+2}")
    P(f"s_lshl_b32 s{S_T2}, s{S_T2}, 4")
    P(f"s_add_u32 s{S_M3}, s{S_T2}, {LQ}")
    srd_rest(P, [(SRD_WQ, 448*2688)])

def s1_read_addr(P, o):
    T = V_T
    P(f"v_and_b32 v{T}, 31, v{V_LANE}")
    P(f"v_lshrrev_b32 v{T+1}, 5, v{V_LANE}")
    P(f"v_bfe_u32 v{T+2}, v{V_LANE}, 1, 3")
    P(f"v_xor_b32 v{T+2}, v{T+2}, v{T+1}")
    P(f"v_lshl_add_u32 v{T}, v{T}, 7, s{S_M4}")
    for s in range(4):
        P(f"v_xor_b32 v{T+3}, {2*s}, v{T+2}")
        P(f"v_lshl_add_u32 v{V_XR+s}, v{T+3}, 4, v{T}")
    P(f"v_bfe_u32 v{T}, v{V_LANE}, 2, 2")
    P(f"v_lshl_add_u32 v{T+1}, v{T+1}, 3, v{T}")
    P(f"v_bfe_u32 v{T+2}, v{V_LANE}, 4, 1")
    P(f"v_lshlrev_b32 v{T+2}, 5, v{T+2}")
    P(f"v_and_b32 v{T+3}, 3, v{V_LANE}")
    P(f"v_lshl_add_u32 v{T+2}, v{T+3}, 3, v{T+2}")
    P(f"v_mul_u32_u24 v{T+3}, 192, v{T+1}")
    P(f"v_add_u32 v{T+3}, {LQ}, v{T+3}")
    P(f"v_add_u32 v{V_QR}, v{T+3}, v{T+2}")
    P(f"v_add_u32 v{V_QR2}, {2*SA}, v{V_QR}")
    P(f"v_lshl_add_u32 v{T+2}, v{T+1}, 8, v{T+2}")
    P(f"v_add_u32 v{T+2}, {LF}, v{T+2}")
    for c in range(4):
        P(f"v_xor_b32 v{T+3}, {c}, v{T}")
        P(f"v_lshl_add_u32 v{V_FRD+c}, v{T+3}, 6, v{T+2}")

def s1_w1_addr(P, o):
    T = V_T
    P(f"v_lshrrev_b32 v{T+2}, 4, v{V_LANE}")
    P(f"v_lshlrev_b32 v{T+1}, 2, v{T+2}")
    P(f"v_xor_b32 v{T+1}, v{T+1}, v{V_LANE}")
    P(f"v_and_b32 v{T+1}, 15, v{T+1}")
    P(f"s_lshl_b32 s{S_T2}, s{S_WAVE}, 4")
    P(f"v_add_u32 v{T}, s{S_T2}, v{T+2}")
    P(f"v_mul_u32_u24 v{T}, 3584, v{T}")
    P(f"s_lshl_b32 s{S_T3}, s{S_B}, 8")
    P(f"v_lshl_add_u32 v{T}, v{T+1}, 4, v{T}")
    P(f"v_add_u32 v{V_FD}, s{S_T3}, v{T}")
    for i in range(1, 4):
        P(f"v_add_u32 v{V_FD+i}, {i*(4*3584-1024)}, v{V_FD}")
    srd_rest(P, [(SRD_W1, 448*3584)])
    P(f"v_lshl_add_u32 v{T}, v{V_LANE}, 2, s{S_T3}")
    P(f"global_load_dword v9, v{T}, {sr(S_B1)}")

def w1_touch(P, o):
    T = V_T
    P(f"v_lshrrev_b32 v{T}, 1, v{V_LANE}")
    P(f"v_min_u32 v{T}, 27, v{T}")
    P(f"s_lshl2_add_u32 s{S_T0}, s{S_RBL}, s{S_WAVE}")
    P(f"s_mul_i32 s{S_T0}, s{S_T0}, 28")
    P(f"v_add_u32 v{T}, s{S_T0}, v{T}")
    P(f"v_mul_u32_u24 v{T}, 3584, v{T}")
    P(f"v_and_b32 v{T+1}, 1, v{V_LANE}")
    P(f"v_lshl_add_u32 v{T}, v{T+1}, 7, v{T}")
    P(f"s_lshl_b32 s{S_T0}, s{S_B}, 8")
    P(f"buffer_load_dword v160, v{T}, {sr(SRD_W1,4)}, s{S_T0} offen", tag='warm')

def s1_misc(P, o):
    srd_rest(P, [(SRD_WS, WS_SIZE), (SRD_OUT, 2048*896)])
    A = -2.0 * math.sqrt(2.0 / math.pi) * 0.044715 * math.log2(math.e)
    B = -2.0 * math.sqrt(2.0 / math.pi) * math.log2(math.e)
    P(f"v_mov_b32 v{V_CA}, {hex(f2u(A))}")
    P(f"v_mov_b32 v{V_CB}, {hex(f2u(B))}")
    P(f"v_lshlrev_b32 v{V_L128}, 7, v{V_LANE}")
    P(f"s_mul_i32 s{S_QST}, s{S_TB}, {QKV_TB}")
    P(f"s_mul_i32 s{S_T0}, s{S_B}, {3*2048}")
    P(f"s_add_u32 s{S_QST}, s{S_QST}, s{S_T0}")
    P(f"s_add_u32 s{S_QST}, s{S_QST}, {QKV_OFF}")
    P(f"s_mul_i32 s{S_HST}, s{S_TB}, {A_TB}")
    P(f"s_lshl_b32 s{S_T0}, s{S_B}, 13")
    P(f"s_add_u32 s{S_HST}, s{S_HST}, s{S_T0}")
    P(f"s_add_u32 s{S_HST}, s{S_HST}, {A_OFF}")
    P(f"s_lshl4_add_u32 s{S_T0}, s{S_TB}, s{S_B}")
    P(f"s_lshl_b32 s{S_T0}, s{S_T0}, 7")
    P(f"s_add_u32 s{S_QFL}, s{S_T0}, {FL_QKV}")
    P(f"s_add_u32 s{S_HFL}, s{S_T0}, {FL_H}")
    P(f"s_mul_i32 s{S_B3}, s{S_B}, 3")
    P(f"s_mov_b32 s{S_SPARE}, 0")

def bias_expand(P, src_v, tmp, addr, base):
    P(f"v_lshlrev_b32 v{tmp}, 16, v{src_v}")
    P(f"v_and_b32 v{tmp+1}, 0xffff0000, v{src_v}")
    P(f"v_lshl_add_u32 v{tmp+2}, v{V_LANE}, 3, s{base}")
    P(f"ds_write_b64 v{tmp+2}, {vr(tmp,2)}")
    P(f"v_lshrrev_b32 v{addr}, 5, v{V_LANE}")
    P(f"v_lshl_add_u32 v{addr}, v{addr}, 4, s{base}")

def bias1(P, o):
    P(f"s_lshl_b32 s{S_T0}, s{S_WAVE}, 9")
    P(f"s_add_u32 s{S_T0}, s{S_T0}, {LBIAS}")
    bias_expand(P, 9, 12, 8, S_T0)

def bias1_reads():
    return [[f"ds_read_b128 {vr(ACC_F+16*F+4*q,4)}, v8 offset:{(32*F+8*q)*4}"] for F in range(4) for q in range(4)]

def rot_step(off, cnt, stride, n):
    return (f"s_add_u32 s{off}, s{off}, {stride}\ns_add_u32 s{cnt}, s{cnt}, 1\ns_cmp_eq_u32 s{cnt}, {n}\n"
            f"s_cselect_b32 s{S_CNT}, {n*stride}, 0\ns_sub_u32 s{off}, s{off}, s{S_CNT}")
ROT = [0]

def b_dma(p):
    L = [[f"s_add_u32 m0, s{S_M4}, {LP[PIECE[p]]}"]]
    if p < 14:
        so, sd = S_BOF, SRD_W2
        if p: L[0].append(rot_step(so, S_BG, 32*896, 14) if ROT[0] else f"s_add_u32 s{so}, s{so}, {32*896}")
    else:
        so, sd = S_BO, SRD_WO
        i = p - 14
        if i: L[0].append(f"s_add_u32 s{so}, s{so}, {8*(((7*i)>>1) - ((7*(i-1))>>1))*896}")
    for i in range(4):
        L.append([(f"buffer_load_dwordx4 v{V_BA+i}, {sr(sd,4)}, s{so} offen offset:{i*1024} lds", f'bp{p}')])
    return L

def breg(n, ctl):
    if n >= 22: n -= 22
    return ('a', (112 + 8 * n if n < 18 else 8 * (n - 18)) + 4 * ctl)

def b_reads(n):
    pc = LP[PIECE[n >> 1]]
    hi, so = divmod(pc, 65536)
    return [f"ds_read_b64_tr_b16 {ar(breg(n, ctl)[1]+2*rho,2)}, v{V_BR[hi][ctl]} offset:{so + (n & 1)*2048 + rho*1024}" for ctl in range(2) for rho in range(2)]

class Gaps:
    def __init__(self): self.m = {}; self.v = {}
    def put(self, kind, items, g0, g1):
        d = self.m if kind == 'm' else self.v
        spread(d, items, list(range(g0, g1)), kind == 'm')
    def emit(self, G): return sum(self.m.get(G, []), []) + sum(self.v.get(G, []), [])

def spread(hooks, items, slots, unit=True):
    w = (lambda g: 1) if unit else len
    tot = sum(w(g) for g in items); done = 0
    for g in items:
        s = slots[min(len(slots) - 1, (done * len(slots)) // tot)]
        hooks.setdefault(s, []).append(g); done += w(g)

def merge_salu(items):
    out = []; pend = []
    for it in items:
        pend += it
        if any(isinstance(x, tuple) or (isinstance(x, str) and x.startswith(('buffer', 'global', 'ds_'))) for x in it):
            out.append(pend); pend = []
    if pend: out.append(pend)
    return out

def pass_a(P, o, H):
    s1_x_addr(P, o)
    d0 = dma_a(0)
    P.add(d0[0])
    P("s_waitcnt lgkmcnt(0)")
    if o.stamps:
        o.stamp_names.append('entry'); P(f"v_mov_b32 v{V_ST}, 0"); P(f"v_writelane_b32 v{V_ST}, s94, 0")
    if o.stouch:
        P(f"s_load_dword s{S_CNT}, {sr(SRD_WQ)}, 0")
        if o.stouch > 1:
            P(f"s_load_dword s{S_TAG}, {sr(SRD_WS)}, {WS_E}")
            P(f"s_load_dword s{S_J}, {sr(S_B1)}, 0")
    for it in d0[2:6]: P.add(it)
    if o.slim: setup_rest(P, o, True); setup_rest(P, o, False)
    P.add(d0[1]); P(f"s_mov_b32 s{S_CJ}, s{S_CI}")
    s1_wq_addr(P, o)
    for it in d0[6:]: P.add(it)
    pass
    for it in dma_a(1): P.add(it)
    s1_read_addr(P, o)
    for it in dma_a(2): P.add(it)
    P.wait_vm('da0')
    P("s_waitcnt lgkmcnt(0)")
    P("s_barrier")
    stamp(P, o, 's1_first')
    P.add(reads_a(0))
    for c in range(4): H.put('m', merge_salu(dma_a(c + 3)), 12 * c + 9, 12 * c + 21)
    H.put('m', merge_salu([it for n in range(o.nba) for it in dma_b(n)]), 57, o.bq_end)
    for g in range(28):
        c, s = g >> 2, g & 3
        base = FR + 16 * (g & 1)
        if s == 3 and c < 6:
            P("s_waitcnt lgkmcnt(0)")
            P.wait_vm(f'da{c+1}')
            P("s_barrier")
            if o.trunc: stamp(P, o, f'a{c}')
        rd = reads_a(g + 1) if g < 27 else []
        per = [4, 3, 0] if s == 2 else [3, 2, 2]
        for t in range(3):
            P(mfma(ACC_Q + 16 * t, base + 4 * t, ('a', 4 * g), None if g == 0 else ACC_Q + 16 * t))
            P.add(rd[:per[t]]); rd = rd[per[t]:]
            P.add(H.emit(3 * g + t))
    P("s_waitcnt lgkmcnt(0)")
    P.wait_vm('db0')
    P("s_barrier")
    stamp(P, o, 'pass_a')
    P.add(reads_b(0))

def pass_b(P, o, H):
    for g in range(28):
        c, s = g >> 2, g & 3
        base = FR + 16 * (g & 1)
        if s == 3 and c < 6:
            P("s_waitcnt lgkmcnt(0)")
            P.wait_vm(f'db{c+1}')
            P("s_barrier")
            if o.trunc: stamp(P, o, f'b{c}')
        rd = reads_b(g + 1) if g < 27 else []
        per = [3, 3, 2, 0] if s == 2 else [2, 2, 2, 2]
        for t in range(4):
            P(mfma(ACC_F + 16 * t, base + 4 * t, ('a', 4 * g), ACC_F + 16 * t))
            P.add(rd[:per[t]]); rd = rd[per[t]:]
            P.add(H.emit(4 * g + t))

def qkv_epilogue(P, o, extra):
    c = (28.0 ** -0.5) * math.log2(math.e)
    P(f"s_mov_b32 s{S_T2}, {hex(f2u(c))}")
    for t in range(3):
        acc = ACC_Q + 16 * t
        P(f"s_cmp_lt_u32 s{S_B3}, {14 - t}")
        P(f"s_cbranch_scc0 L_nosc{t}")
        for i in range(8):
            P(f"v_pk_mul_f32 {vr(acc+2*i,2)}, {vr(acc+2*i,2)}, s[{S_T2}:{S_T3}] op_sel_hi:[1,0]")
        P(f"L_nosc{t}:")
        p = GT + 8 * t
        for i in range(8):
            if t == 0 and extra and i % 2 == 0: P.add(extra.pop(0))
            P(f"v_cvt_pk_bf16_f32 v{p+i}, v{acc+2*i}, v{acc+2*i+1}")
        while t == 0 and extra: P.add(extra.pop(0))
        for h in range(2):
            P(f"v_permlane32_swap_b32 v{p+4*h}, v{p+4*h+2}")
            P(f"v_permlane32_swap_b32 v{p+4*h+1}, v{p+4*h+3}")
        for h in range(2):
            off = t * 2048 + h * 1024
            P(f"buffer_store_dwordx4 {vr(p+4*h,4)}, v{V_L16H if off >= 4096 else V_L16}, {sr(SRD_WS,4)}, s{S_QST} offen offset:{off & 4095} {SC}", tag='qst')

def gelu_tile(F):
    u = ACC_F + 16 * F
    t = GT + 16 * (F & 1)
    pk = [192, 204, t, t][F]
    L = []
    pr = lambda b, i: vr(b + 2 * i, 2)
    for i in range(8): L.append(f"v_pk_mul_f32 {pr(t,i)}, {pr(u,i)}, {pr(u,i)}")
    for i in range(8): L.append(f"v_pk_fma_f32 {pr(t,i)}, {pr(t,i)}, {vr(V_CA,2)}, {vr(V_CB,2)} op_sel_hi:[1,0,0]")
    for i in range(8): L.append(f"v_pk_mul_f32 {pr(t,i)}, {pr(t,i)}, {pr(u,i)}")
    for i in range(16): L.append(f"v_exp_f32 v{t+i}, v{t+i}")
    for i in range(8): L.append(f"v_pk_add_f32 {pr(t,i)}, {pr(t,i)}, 1.0 op_sel_hi:[1,0]")
    for i in range(16): L.append(f"v_rcp_f32 v{t+i}, v{t+i}")
    for i in range(8): L.append(f"v_pk_mul_f32 {pr(t,i)}, {pr(t,i)}, {pr(u,i)}")
    for i in range(8): L.append(f"v_cvt_pk_bf16_f32 v{pk+i}, v{t+2*i}, v{t+2*i+1}")
    for h in range(2):
        off = (2 * F + h) * 1024
        L.append((f"buffer_store_dwordx4 {vr(pk+4*h,4)}, v{V_L16H if off >= 4096 else V_L16}, {sr(SRD_WS,4)}, s{S_HST} offen offset:{off & 4095} {SC}", 'hst'))
    return L

def prep(P, o):
    T = V_T
    if o.slim: setup_rest(P, o, False)
    if o.stamps: P(f"v_mov_b32 v{V_ST}, 0")
    common2(P, o)
    srd_rest(P, [(SRD_WS, WS_SIZE)])
    P(f"v_lshlrev_b32 v{V_L128}, 7, v{V_LANE}")
    P(f"s_mov_b32 s{S_SPARE}, 1")
    P(f"s_lshl_b32 s{S_M4}, s{S_WAVE}, 12")
    P(f"v_lshrrev_b32 v{T}, 2, v{V_LANE}")
    P(f"s_lshl2_add_u32 s{S_T0}, s{S_R}, s{S_WAVE}")
    P(f"s_lshl_b32 s{S_T0}, s{S_T0}, 4")
    P(f"v_add_u32 v20, s{S_T0}, v{T}")
    P(f"v_mul_u32_u24 v{T}, 896, v20")
    P(f"v_and_b32 v{T+1}, 3, v{V_LANE}")
    P(f"v_lshlrev_b32 v{T+1}, 4, v{T+1}")
    P(f"v_add_u32 v{T}, v{T}, v{T+1}")
    P("s_waitcnt lgkmcnt(0)")
    if o.stamps: P(f"v_writelane_b32 v{V_ST}, s94, 0")
    P(f"s_load_dword s{S_TAG}, {sr(SRD_WS)}, {WS_E}")
    P(f"s_mov_b64 {sr(SRD_W2)}, {sr(S_W2)}")
    if o.sp:
        P(f"s_load_dword s{S_MASK}, {sr(S_B1)}, 0")
        P(f"s_load_dword s{S_MASK+1}, {sr(S_B2)}, 0")
        P(f"s_load_dword s{S_MASK+2}, {sr(SRD_OUT)}, 0")
        P(f"s_lshl2_add_u32 s{S_T0}, s{S_RBL}, s{S_WAVE}")
        P(f"s_lshl_b32 s{S_T0}, s{S_T0}, 20")
        P(f"s_load_dword s{S_MASK+3}, {sr(SRD_WS)}, s{S_T0}")
    def mallwarm():
        P(f"s_lshl2_add_u32 s{S_T4}, s{S_R}, s{S_WAVE}")
        P(f"s_lshl_b32 s{S_T0}, s{S_T4}, 13")
        P(f"s_add_u32 s{S_T1}, s{S_T0}, 0x100000")
        if o.xw:
            k0 = o.xw
            srd_rest(P, [(SRD_WQ, 448*2688)])
            P(f"v_lshrrev_b32 v{T+2}, 2, v{V_LANE}")
            P(f"v_mul_u32_u24 v{T+2}, 896, v{T+2}")
            P(f"v_and_b32 v{T+3}, 3, v{V_LANE}")
            P(f"v_lshl_add_u32 v{T+2}, v{T+3}, 7, v{T+2}")
            P(f"s_mul_i32 s{S_T2}, s{S_T4}, {16*896}")
            P(f"buffer_load_dword v178, v{T+2}, {sr(SRD_X,4)}, s{S_T2} offen offset:{3*128}")
            P(f"s_add_u32 s{S_T2}, s{S_T0}, {k0*64*2688}")
            P(f"buffer_load_dword v179, v{V_L128}, {sr(SRD_WQ,4)}, s{S_T2} offen")
        srd_rest(P, [(SRD_W1, 448*3584), (SRD_W2, 1792*896), (SRD_WQ, 448*896)])
        P(f"s_mov_b64 {sr(SRD_WQ)}, {sr(S_WO)}")
        for i, (d, so) in enumerate(((SRD_W1, S_T0), (SRD_W1, S_T1), (SRD_W2, S_T0), (SRD_W2, S_T1), (SRD_WQ, S_T0))):
            P(f"buffer_load_dword v{180+i}, v{V_L128}, {sr(d,4)}, s{so} offen")
    if o.mw == 1: mallwarm()
    if o.pw & 1:
        P(f"v_lshlrev_b32 v{T+3}, 20, v{V_LANE}")
        P(f"buffer_load_dword v177, v{T+3}, {sr(SRD_WS,4)}, 0 offen")
    def touches():
        for i in range(o.wsp):
            P(f"s_lshl2_add_u32 s{S_T4}, s{S_RBL}, s{S_WAVE}")
            P(f"s_add_u32 s{S_T4}, s{S_T4}, {16*i}")
            P(f"s_lshr_b32 s{S_T0}, s{S_T4}, 2")
            P(f"s_lshl_b32 s{S_T0}, s{S_T0}, 13")
            P(f"s_mul_i32 s{S_T1}, s{S_WAVE}, {448*896}")
            P(f"s_add_u32 s{S_T0}, s{S_T0}, s{S_T1}")
            P(f"s_add_u32 s{S_T0}, s{S_T0}, {128*896}")
            if 16 * i + 15 < 140:
                P(f"buffer_load_dword v{160+i}, v{V_L128}, {sr(SRD_W2,4)}, s{S_T0} offen")
            else:
                P(f"s_sub_u32 s{S_T1}, s{S_T4}, 140")
                P(f"s_cbranch_scc0 L_tw{i}")
                P(f"buffer_load_dword v{160+i}, v{V_L128}, {sr(SRD_W2,4)}, s{S_T0} offen")
                P(f"s_branch L_tj{i}")
                P(f"L_tw{i}:")
                P(f"s_lshl_b32 s{S_T1}, s{S_T1}, 13")
                P(f"buffer_load_dword v{190+i}, v{V_L128}, {sr(SRD_WQ,4)}, s{S_T1} offen")
                P(f"L_tj{i}:")
                P.L.append(Pseudo('drop_vm'))
        if o.fine:
            P("s_waitcnt vmcnt(0)"); stamp(P, o, 'p_warm')
    if o.wfirst: touches()
    for i in range(14):
        P(f"buffer_load_dwordx4 {vr(32+4*i,4)}, v{T}, {sr(SRD_X,4)}, 0 offen offset:{64*i}")
        P(f"global_load_dwordx4 {vr(96+4*i,4)}, v{T+1}, {sr(S_GW)} offset:{64*i}")
    if o.mw == 2: mallwarm()
    P.add(TAGOPS)
    P("v_mov_b32 v24, 0")
    P("v_mov_b32 v25, 0")
    for i in range(56):
        P(f"v_dot2_f32_bf16 v{24+(i&1)}, v{32+i}, v{96+i}, v{24+(i&1)}")
    P("s_nop 2")
    P("v_add_f32 v24, v24, v25")
    P("v_add_f32_dpp v24, v24, v24 quad_perm:[1,0,3,2] row_mask:0xf bank_mask:0xf")
    P("v_add_f32_dpp v24, v24, v24 quad_perm:[2,3,0,1] row_mask:0xf bank_mask:0xf")
    P(f"v_mul_f32 v24, {hex(f2u(-math.log2(math.e)))}, v24")
    P("v_exp_f32 v24, v24")
    P("v_add_f32 v24, 1.0, v24")
    P("v_rcp_f32 v24, v24")
    P(f"v_lshlrev_b32 v20, 2, v20")
    P(f"v_and_b32 v25, 3, v{V_LANE}")
    P(f"v_cmp_eq_u32 vcc, 0, v25")
    P(f"v_mov_b32 v27, 0x7fff0000")
    P(f"v_cndmask_b32 v20, v27, v20, vcc")
    P(f"s_mov_b32 s{S_T0}, {G_OFF}")
    P(f"buffer_store_dword v24, v20, {sr(SRD_WS,4)}, s{S_T0} offen {SC}")
    P("s_waitcnt vmcnt(0) lgkmcnt(0)")
    P("s_barrier")
    P(f"s_lshl_b32 s{S_T0}, s{S_R}, 7")
    P(f"s_add_u32 s{S_T0}, s{S_T0}, {FL_G}")
    P(f"s_cmp_eq_u32 s{S_WAVE}, 0")
    P("s_cbranch_scc0 L_prep_nf")
    P.add(flag_store(S_T0))
    P("L_prep_nf:")
    stamp(P, o, 'p_flag')
    if not o.wfirst: touches()

AQ = 16
AK = 24
AV = 40
AS = 56
AN = 104
AO = 120
AP = 136
AM = 236
A_KR, A_VR = 244, 245
A_KD, A_VD = 247, 248
A_PA, A_PV = 250, 251
A_G = 254
A_MX = 5

def att_scalars(P, o):
    P(f"s_and_b32 s{S_ARB}, s{S_SLOT}, 15")
    P(f"s_lshr_b32 s{S_J}, s{S_SLOT}, 4")
    P(f"s_lshl1_add_u32 s{S_J}, s{S_XCD}, s{S_J}")
    P(f"s_lshl2_add_u32 s{S_ATB}, s{S_ARB}, s{S_WAVE}")
    P(f"s_and_b32 s{S_PAR}, s{S_J}, 1")
    P(f"s_lshl4_add_u32 s{S_T0}, s{S_ATB}, s{S_J}")
    P(f"s_lshl_b32 s{S_T0}, s{S_T0}, 7")
    P(f"s_add_u32 s{S_OFL}, s{S_T0}, {FL_O}")
    P(f"s_mul_i32 s{S_T2}, s{S_ATB}, {A_TB}")
    P(f"s_lshl_b32 s{S_T3}, s{S_J}, 11")
    P(f"s_add_u32 s{S_T2}, s{S_T2}, s{S_T3}")
    P(f"s_add_u32 s{S_OST}, s{S_T2}, {A_OFF + 112*1024}")

def att_poll_addr(P, o):
    T = V_T
    P(f"v_min_u32 v{T}, 13, v{V_LANE}")
    P(f"v_lshrrev_b32 v{T+1}, 1, v{T}")
    P(f"v_and_b32 v{T}, 1, v{T}")
    P(f"s_mul_i32 s{S_T0}, s{S_J}, 7")
    P(f"s_lshr_b32 s{S_T0}, s{S_T0}, 1")
    P(f"s_lshl_b32 s{S_T0}, s{S_T0}, 3")
    P(f"v_mad_u32_u24 v{T}, v{T}, 31, s{S_T0}")
    P(f"v_mov_b32 v{T+2}, 896")
    P(f"v_mov_b32 v{T+3}, 448")
    P(f"v_subrev_u32 v{T+4}, 3, v{T+1}")
    P(f"v_cmp_gt_u32 vcc, 3, v{T+1}")
    P(f"v_cndmask_b32 v{T+2}, v{T+2}, v{T+3}, vcc")
    P(f"v_cndmask_b32 v{T+3}, v{T+4}, v{T+1}, vcc")
    P(f"s_mul_i32 s{S_T1}, s{S_WAVE}, 3")
    P(f"s_lshl2_add_u32 s{S_T1}, s{S_ARB}, s{S_T1}")
    P(f"s_sub_u32 s{S_T1}, s{S_T1}, 8")
    P(f"v_add_u32 v{T+3}, s{S_T1}, v{T+3}")
    P(f"v_max_i32 v{T+3}, 0, v{T+3}")
    P(f"v_mov_b32 v{T+4}, s{S_ATB}")
    P(f"v_cmp_eq_u32 vcc, 6, v{T+1}")
    P(f"v_cndmask_b32_e64 v{T+2}, v{T+2}, 0, vcc")
    P(f"v_cndmask_b32 v{T+3}, v{T+3}, v{T+4}, vcc")
    P(f"v_add_u32 v{T}, v{T}, v{T+2}")
    P(f"v_mul_u32_u24 v{T}, 683, v{T}")
    P(f"v_lshrrev_b32 v{T}, 16, v{T}")
    P(f"v_lshl_add_u32 v{T}, v{T+3}, 4, v{T}")
    P(f"v_lshlrev_b32 v{T}, 7, v{T}")
    P(f"v_add_u32 v{V_PA}, {FL_QKV}, v{T}")

def gate_flags(P, o, reg):
    P(f"s_lshr_b32 s{S_T0}, s{S_ATB}, 1")
    P(f"s_lshl_b32 s{S_T0}, s{S_T0}, 7")
    P(f"s_add_u32 s{S_T0}, s{S_T0}, {FL_G}")
    P(f"s_lshl_b32 s{S_T1}, s{S_R}, 7")
    P(f"s_add_u32 s{S_T1}, s{S_T1}, {FL_G}")
    P(f"v_writelane_b32 v{reg}, s{S_T0}, 14")
    P(f"v_writelane_b32 v{reg}, s{S_T1}, 15")

def att_addr(P, o):
    T = V_T
    P(f"s_mul_i32 s{S_T0}, s{S_J}, 7")
    P(f"s_lshr_b32 s{S_T0}, s{S_T0}, 1")
    P(f"s_lshl_b32 s{S_T4}, s{S_T0}, 9")
    P(f"s_add_u32 s{S_T1}, s{S_T4}, {56*512}")
    P(f"v_add_u32 v{A_KD}, s{S_T1}, v{V_L16}")
    P(f"v_lshrrev_b32 v{T}, 5, v{V_LANE}")
    P(f"v_and_b32 v{T+1}, 31, v{V_LANE}")
    P(f"s_add_u32 s{S_T1}, s{S_T4}, {112*512 - 2048}")
    P(f"v_lshlrev_b32 v{T+2}, 2, v{T}")
    P(f"v_xor_b32 v{T+2}, v{T+2}, v{T+1}")
    P(f"v_lshlrev_b32 v{T+2}, 4, v{T+2}")
    P(f"v_lshl_add_u32 v{T+2}, v{T}, 9, v{T+2}")
    P(f"v_add_u32 v{A_VD}, s{S_T1}, v{T+2}")
    P(f"v_xor_b32 v{A_VD+1}, 128, v{A_VD}")
    P(f"v_add_u32 v{A_KR}, s{S_M4}, v{V_L16}")
    P(f"v_bfe_u32 v{T+1}, v{V_LANE}, 4, 1")
    P(f"v_bfe_u32 v{T+2}, v{V_LANE}, 1, 1")
    P(f"v_lshl_add_u32 v{T+3}, v{T+1}, 1, v{T+2}")
    P(f"v_lshlrev_b32 v{T+4}, 9, v{T+3}")
    P(f"v_xor_b32 v{T+3}, v{T+3}, v{T}")
    P(f"v_lshl_add_u32 v{T+4}, v{T+3}, 6, v{T+4}")
    P(f"v_bfe_u32 v{T+3}, v{V_LANE}, 2, 2")
    P(f"v_lshl_add_u32 v{T+4}, v{T+3}, 4, v{T+4}")
    P(f"v_and_b32 v{T+3}, 1, v{V_LANE}")
    P(f"v_lshl_add_u32 v{T+4}, v{T+3}, 3, v{T+4}")
    P(f"s_add_u32 s{S_T1}, s{S_M4}, 2048")
    P(f"v_add_u32 v{A_VR}, s{S_T1}, v{T+4}")
    P(f"v_xor_b32 v{A_VR+1}, 128, v{A_VR}")
    P(f"v_and_b32 v{T+1}, 31, v{V_LANE}")
    P(f"v_mul_u32_u24 v{T+2}, 12, v{T}")
    P(f"s_cmp_eq_u32 s{S_PAR}, 0")
    P(f"s_cselect_b32 s{S_T1}, -1, 0")
    P(f"s_cselect_b32 s{S_T2}, 1544, 0")
    P(f"v_and_b32 v{T+2}, s{S_T1}, v{T+2}")
    P(f"v_xor_b32 v{T+1}, v{T+1}, v{T+2}")
    P(f"v_lshlrev_b32 v{T+1}, 4, v{T+1}")
    P(f"v_lshl_add_u32 v{T+1}, v{T}, 11, v{T+1}")
    P(f"s_mul_i32 s{S_T3}, s{S_WAVE}, {3*4096}")
    P(f"s_add_u32 s{S_T2}, s{S_T2}, s{S_T3}")
    P(f"v_add_u32 v{A_PA}, s{S_T2}, v{T+1}")
    P(f"s_mul_i32 s{S_T1}, s{S_WAVE}, 3")
    P(f"s_lshl2_add_u32 s{S_T1}, s{S_ARB}, s{S_T1}")
    P(f"v_mov_b32 v{T+1}, 0x3f80")
    for k in range(3):
        P(f"s_add_u32 s{S_T2}, s{S_T1}, {k}")
        P(f"s_cmp_lt_u32 s{S_T2}, 8")
        P(f"s_cselect_b32 s{S_T2}, 0xf14a, 0")
        P(f"v_mov_b32 v{A_PV+k}, s{S_T2}")
    P(f"v_cmp_gt_u32 vcc, 32, v{V_LANE}")
    for k in range(3): P(f"v_cndmask_b32 v{A_PV+k}, v{T+1}, v{A_PV+k}, vcc")

def att_masks(P, o):
    T = V_T
    P(f"v_lshrrev_b32 v{T+1}, 5, v{V_LANE}")
    P(f"v_mul_u32_u24 v{T+1}, 36, v{T+1}")
    P(f"v_sub_u32 v{T+1}, v{V_LANE}, v{T+1}")
    for r in range(16):
        P(f"v_cmp_le_i32_e64 {sr(S_MASK+2*r)}, {(r & 3) + 8 * (r >> 2)}, v{T+1}")
    P(f"v_mov_b32 v{T+1}, 0xffff")
    P(f"v_mov_b32 v{T+2}, 0xffff0000")
    for i in range(8):
        P(f"v_cndmask_b32_e64 v{T+3}, 0, v{T+1}, {sr(S_MASK+4*i)}")
        P(f"v_cndmask_b32_e64 v{T+4}, 0, v{T+2}, {sr(S_MASK+4*i+2)}")
        P(f"v_or_b32 v{AM+i}, v{T+3}, v{T+4}")

def att_kvoff(P, o):
    P(f"s_mul_i32 s{S_T1}, s{S_WAVE}, 3")
    P(f"s_lshl2_add_u32 s{S_T1}, s{S_ARB}, s{S_T1}")
    for k in range(3):
        P(f"s_add_i32 s{S_T2}, s{S_T1}, {k-8}")
        P(f"s_max_i32 s{S_T2}, s{S_T2}, 0")
        P(f"s_mul_i32 s{S_T2}, s{S_T2}, {QKV_TB}")
        P(f"s_add_u32 s{S_KV[k]}, s{S_T2}, {QKV_OFF}")
    P(f"s_mul_i32 s{S_T0}, s{S_J}, 7")
    P(f"s_lshr_b32 s{S_T0}, s{S_T0}, 1")
    P(f"s_lshl_b32 s{S_T0}, s{S_T0}, 9")
    P(f"s_mul_i32 s{S_T2}, s{S_ATB}, {QKV_TB}")
    P(f"s_add_u32 s{S_T2}, s{S_T2}, s{S_T0}")
    P(f"s_add_u32 s{S_KV[3]}, s{S_T2}, {QKV_OFF}")

def att_loads(o, last_g=True):
    T = V_T
    L = [[f"s_mul_i32 s{S_T3}, s{S_WAVE}, {3*4096}"]]
    for k in range(3):
        g = [f"s_add_u32 m0, s{S_T3}, {LKV + k*4096}"]
        for t in range(2):
            g.append((f"buffer_load_dwordx4 v{A_KD}, {sr(SRD_WS,4)}, s{S_KV[k]} offen offset:{t*1024} {SC} lds", 'kv'))
        for t in range(2):
            g.append((f"buffer_load_dwordx4 v{A_VD+t}, {sr(SRD_WS,4)}, s{S_KV[k]} offen offset:{2048+t*1024} {SC} lds", 'kv'))
        L += [[x] for x in g]
    for t in range(2):
        L.append([f"buffer_load_dwordx4 {vr(AQ+4*t,4)}, v{V_L16}, {sr(SRD_WS,4)}, s{S_KV[3]} offen offset:{t*1024} {SC}"])
    G = [f"v_and_b32 v{T+1}, 31, v{V_LANE}", f"v_lshlrev_b32 v{T+1}, 2, v{T+1}",
         f"s_lshl_b32 s{S_T2}, s{S_ATB}, 7", f"s_add_u32 s{S_T2}, s{S_T2}, {G_OFF}",
         f"buffer_load_dword v{A_G}, v{T+1}, {sr(SRD_WS,4)}, s{S_T2} offen {SC}"]
    if last_g:
        G += [f"s_and_b32 s{S_T1}, s{S_WAVE}, 1", f"s_lshl_b32 s{S_T0}, s{S_R}, 8", f"s_add_u32 s{S_T0}, s{S_T0}, {G_OFF}",
              f"s_lshl_b32 s{S_T2}, s{S_T1}, 7", f"s_xor_b32 s{S_T3}, s{S_T2}, 128", f"s_add_u32 s{S_T2}, s{S_T2}, s{S_T0}",
              f"s_add_u32 s{S_T3}, s{S_T3}, s{S_T0}",
              f"buffer_load_dword v{L_G}, v{T+1}, {sr(SRD_WS,4)}, s{S_T3} offen {SC}",
              f"buffer_load_dword v{L_G+1}, v{T+1}, {sr(SRD_WS,4)}, s{S_T2} offen {SC}"]
    return L + [[x] for x in G]

def att_patch():
    T = V_T
    L = [[WVM('kv')]]
    L += [[f"ds_write_b16 v{A_PA}, v{A_PV+k} offset:{LKV + k*4096}"] for k in range(3)]
    L += [[f"s_cmp_eq_u32 s{S_PAR}, 0\ns_cselect_b32 s{S_T0}, 0, -1\ns_cselect_b32 s{S_T3}, -1, 0"],
          [f"s_mov_b32 s{S_T1}, 0"], [f"s_mov_b32 s{S_T2}, 0"], [f"v_mov_b32 v{T}, 0x3f80"],
          [f"v_cndmask_b32_e64 v{AQ}, v{AQ}, v{T}, {sr(S_T0)}"], [f"v_cndmask_b32_e64 v{AQ+1}, v{AQ+1}, 0, {sr(S_T0)}"],
          [f"v_cndmask_b32_e64 v{AQ+6}, v{AQ+6}, v{T}, {sr(S_T2)}"], [f"v_cndmask_b32_e64 v{AQ+7}, v{AQ+7}, 0, {sr(S_T2)}"]]
    return L

ORDER = [0, 8, 1, 2, 3, 4, 5, 6, 7]
def kread(i, buf):
    return [f"ds_read_b128 {vr(AK+8*buf+4*t,4)}, v{A_KR} offset:{LKV + i*4096 + t*1024}" for t in range(2)]
def vread(i, buf):
    return [f"ds_read_b64_tr_b16 {vr(AV+8*buf+4*t+2*rho,2)}, v{A_VR+rho} offset:{LKV + i*4096 + t*256}" for t in range(2) for rho in range(2)]

def attention(P, o, hooks, kpre=False):
    T = V_T
    order = ORDER
    stamp(P, o, 'att_go')
    gi = [0]
    def hk():
        gi[0] += 1
        return [Slot(f'a{gi[0] - 1}')] if hooks is None else []
    if not kpre: P.add(kread(order[0], 0)); P.add(kread(order[1], 1))
    SM = AS + 16
    buf1 = [AS, SM, AS + 32, AO, AS, AS + 32, AO, AS, AS + 32]
    def qkx(s, kbuf, c): return [mfma(s, AK + 8 * kbuf, AQ, c), mfma(s, AK + 8 * kbuf + 4, AQ + 4, s)]
    def maxops(s, first=False):
        return [f"v_max_f32 v{A_MX}, v{s}, v{s+1}" if (first and i == 0) else f"v_max3_f32 v{A_MX}, v{s+2*i}, v{s+2*i+1}, v{A_MX}" for i in range(8)]
    merge = [f"v_cndmask_b32_e64 v{SM+r}, v{AS+r}, v{SM+r}, {sr(S_MASK+2*r)}" for r in range(16)]
    for n in range(9):
        m = qkx(buf1[n], n & 1, None)
        post = []
        if n == 3: post = merge
        if n == 4: post = maxops(SM, True) + maxops(buf1[2])
        if n >= 5: post = maxops(buf1[n - 2])
        nxt = kread(order[n + 2 if n + 2 < 9 else n - 5], n & 1)
        h = len(post) // 2
        P.add([m[0]] + hk() + post[:h] + [m[1]] + nxt + (vread(0, 0) + vread(8, 1) if n == 8 else []) + hk() + post[h:])
    P.add(maxops(buf1[7]))
    P.add(maxops(buf1[8]))
    P(f"v_mov_b32 v{T}, v{A_MX}")
    P(f"v_permlane32_swap_b32 v{A_MX}, v{T}")
    P(f"v_max_f32 v{A_MX}, v{A_MX}, v{T}")
    P(f"v_sub_f32 v{AN}, 0, v{A_MX}")
    P(f"v_sub_f32 v{AN+1}, 0, v{A_MX}")
    for i in range(1, 8): P(f"v_mov_b64 {vr(AN+2*i,2)}, {vr(AN,2)}")
    stamp(P, o, 'att_p1')
    kb = lambda n: (n + 1) & 1
    buf2 = lambda n: AS + 16 * [0, 2, 1][(n - 2) % 3]
    def expcvt(s, p):
        L = []
        for i in range(8):
            L += [f"v_exp_f32 v{s+2*i}, v{s+2*i}", f"v_exp_f32 v{s+2*i+1}, v{s+2*i+1}"]
            if i >= 1: L.append(f"v_cvt_pk_bf16_f32 v{p+i-1}, v{s+2*i-2}, v{s+2*i-1}")
        L.append(f"v_cvt_pk_bf16_f32 v{p+7}, v{s+14}, v{s+15}")
        return L
    def pv(p, vbuf, first=False):
        return [mfma(AO, AV + 8 * vbuf, p, None if first else AO), mfma(AO, AV + 8 * vbuf + 4, p + 4, AO)]
    m2 = qkx(buf2(2), kb(2), AN); m3 = qkx(buf2(3), kb(3), AN)
    sub = [f"v_sub_f32 v{SM+r}, v{SM+r}, v{A_MX}" for r in range(16)]
    ec = expcvt(SM, AP)
    sp = []
    for i in range(8):
        sp += [f"v_and_b32 v{AP+8+i}, v{AP+i}, v{AM+i}", f"v_xor_b32 v{AP+16+i}, v{AP+i}, v{AP+8+i}"]
    P.add([m2[0]] + hk() + sub[:8] + [m2[1]] + kread(order[4], kb(4)) + hk() + sub[8:] + [m3[0]] + hk() + ec[:5] +
          [m3[1]] + kread(order[5], kb(5)) + hk() + ec[5:] + sp)
    pend = pv(AP + 16, 0, True) + pv(AP + 8, 1)
    pend_rd = vread(order[2], 0) + vread(order[3], 1)
    for n in range(2, 9):
        p = AP + 16 if n == 3 else (AP if (n & 1) == 0 else AP + 8)
        ec = expcvt(buf2(n), p)
        mq = qkx(buf2(n + 2), kb(n + 2), AN) if n + 2 < 9 else []
        kr = kread(order[n + 4], kb(n + 4)) if n + 4 < 9 else []
        ms = pend + mq
        seq = []
        k = len(ms)
        step = max(1, len(ec) // max(k, 1))
        ei = 0
        for j, mm in enumerate(ms):
            seq.append(mm)
            if j == len(pend) - 1: seq += pend_rd
            if j == k - 1 and mq: seq += kr
            seq += hk()
            take = ec[ei:ei + step] if j < k - 1 else ec[ei:]
            seq += take; ei += len(take)
        P.add(seq)
        vb = n & 1
        pend = pv(p, vb)
        pend_rd = vread(order[n + 2], vb) if n + 2 < 9 else []
    P.add([pend[0]] + hk() + [pend[1]] + hk())
    stamp(P, o, 'att_p2')

def att_epilogue(P, o):
    T = V_T
    P(f"s_cmp_eq_u32 s{S_PAR}, 0")
    P(f"s_cselect_b64 {sr(S_T0)}, -1, 0")
    P(f"s_cselect_b32 s{S_MASK}, 0, -1")
    P(f"s_cselect_b32 s{S_MASK+3}, -1, 0")
    P(f"s_mov_b32 s{S_MASK+1}, 0")
    P(f"s_mov_b32 s{S_MASK+2}, 0")
    P(f"v_cndmask_b32_e64 v{T}, v{AO}, v{AO+12}, {sr(S_T0)}")
    P(f"v_mov_b32 v{T+1}, v{T}")
    P(f"v_permlane32_swap_b32 v{T}, v{T+1}")
    P(f"v_cndmask_b32_e64 v{T}, v{T}, v{T+1}, {sr(S_T0)}")
    P(f"v_rcp_f32 v{T}, v{T}")
    P(f"v_mul_f32 v{T+1}, v{T}, v{A_G}")
    for t in range(2):
        for i in range(8 * t, 8 * t + 8): P(f"v_mul_f32 v{AO+i}, v{T+1}, v{AO+i}")
        for i in range(4 * t, 4 * t + 4): P(f"v_cvt_pk_bf16_f32 v{AP+i}, v{AO+2*i}, v{AO+2*i+1}")
        for r in ((0, 1), (6, 7))[t]: P(f"v_cndmask_b32_e64 v{AP+r}, v{AP+r}, 0, {sr(S_MASK + 2*t)}")
        P(f"buffer_store_dwordx4 {vr(AP+4*t,4)}, v{V_L16}, {sr(SRD_WS,4)}, s{S_OST} offen offset:{t*1024} {SC}", tag='ost')

LACC = 16
EARLY = [('a', r) for r in range(32, 112, 4)] + list(range(160, 200, 4)) + list(range(204, 216, 4))
LATE = list(range(80, 120, 4)) + list(range(144, 160, 4)) + list(range(236, 252, 4)) + list(range(120, 144, 4))

def last_baddr(P, o):
    T = V_T
    P(f"s_mov_b64 {sr(SRD_W2)}, {sr(S_W2)}")
    srd_rest(P, [(SRD_W2, 1792*896)])
    P(f"s_mul_i32 s{S_BOF}, s{S_WAVE}, {448*896}")
    P(f"s_lshl_b32 s{S_T3}, s{S_C}, 7")
    P(f"s_add_u32 s{S_BOF}, s{S_BOF}, s{S_T3}")
    if ROT[0]:
        P(f"s_add_u32 s{S_AG}, s{S_C}, s{S_RBL}")
        if o.rcls == 2: P(f"s_and_b32 s{S_AG}, s{S_AG}, 1")
        else:
            P(f"s_lshl_b32 s{S_AG}, s{S_AG}, 1")
            P(f"s_lshr_b32 s{S_AG}, 0x24924, s{S_AG}")
            P(f"s_and_b32 s{S_AG}, s{S_AG}, 3")
        P(f"s_mul_i32 s{S_AG}, s{S_AG}, {ROT[0]}")
        P(f"s_lshl_b32 s{S_BG}, s{S_AG}, 1")
        P(f"s_mul_i32 s{S_T3}, s{S_AG}, {64*896}")
        P(f"s_add_u32 s{S_BOF}, s{S_BOF}, s{S_T3}")
    P(f"v_lshrrev_b32 v{T}, 3, v{V_LANE}")
    P(f"v_bfe_u32 v{T+1}, v{V_LANE}, 4, 1")
    P(f"v_lshlrev_b32 v{T+1}, 2, v{T+1}")
    P(f"v_xor_b32 v{T+1}, v{T+1}, v{V_LANE}")
    P(f"v_and_b32 v{T+1}, 7, v{T+1}")
    P(f"v_mul_u32_u24 v{T}, 896, v{T}")
    P(f"v_lshl_add_u32 v{V_BA}, v{T+1}, 4, v{T}")
    for i in range(1, 4): P(f"v_add_u32 v{V_BA+i}, {i*(8*896-1024)}, v{V_BA}")
    P(f"v_bfe_u32 v{T}, v{V_LANE}, 2, 2")
    P(f"v_lshrrev_b32 v{T+1}, 5, v{V_LANE}")
    P(f"v_lshl_add_u32 v{T+1}, v{T+1}, 2, v{T}")
    P(f"v_lshlrev_b32 v{T+1}, 7, v{T+1}")
    P(f"v_bfe_u32 v{T+2}, v{V_LANE}, 4, 1")
    P(f"v_lshl_add_u32 v{T+1}, v{T+2}, 5, v{T+1}")
    P(f"v_and_b32 v{T+2}, 3, v{V_LANE}")
    P(f"v_lshl_add_u32 v{T+1}, v{T+2}, 3, v{T+1}")
    P(f"v_lshrrev_b32 v{T}, 1, v{T}")
    P(f"v_lshl_add_u32 v{T}, v{T}, 6, v{T+1}")
    P(f"v_add_u32 v{T}, s{S_M4}, v{T}")
    P(f"s_lshr_b32 s{S_T0}, s{S_WAVE}, 1")
    P(f"s_lshl_b32 s{S_T0}, s{S_T0}, 6")
    P(f"v_xor_b32 v{V_BR[0][1]}, s{S_T0}, v{T}")
    P(f"v_xor_b32 v{V_BR[0][0]}, 64, v{V_BR[0][1]}")
    for k in range(2): P(f"v_add_u32 v{V_BR[1][k]}, 0x10000, v{V_BR[0][k]}")

V_AT = 201
def last_baddr2(P, o):
    P(f"v_lshrrev_b32 v{V_T}, 5, v{V_LANE}")
    P(f"v_mul_u32_u24 v{V_T}, {A_TB - 4096}, v{V_T}")
    P(f"v_lshl_add_u32 v{V_T}, v{V_LANE}, 7, v{V_T}")
    P(f"s_lshl_b32 s{S_T0}, s{S_C}, 12")
    P(f"v_add_u32 v{V_AT}, s{S_T0}, v{V_T}")
    for k in range(2): P(f"v_add_u32 v{V_BR[2][k]}, 0x20000, v{V_BR[0][k]}")

def last_setup(P, o):
    T = V_T
    P(f"s_lshl_b32 s{S_T0}, s{S_C}, 7")
    P(f"v_and_b32 v{T}, 31, v{V_LANE}")
    P(f"v_lshl_add_u32 v{T+1}, v{T}, 2, s{S_T0}")
    P(f"global_load_dword v{V_DUM}, v{T+1}, {sr(S_B2)}")
    P(f"s_and_b32 s{S_T1}, s{S_WAVE}, 1")
    P(f"s_mul_i32 s{S_T2}, s{S_T1}, {A_TB}")
    P(f"s_sub_u32 s{S_T3}, {A_TB}, s{S_T2}")
    P(f"v_add_u32 v{V_AA}, s{S_T3}, v{V_L16}")
    P(f"v_add_u32 v{V_AA+1}, s{S_T2}, v{V_L16}")
    P(f"v_and_b32 v{T+1}, 1, v{V_LANE}")
    P(f"s_lshl_b32 s{S_T0}, s{S_R}, 1")
    P(f"v_add_u32 v{T+1}, s{S_T0}, v{T+1}")
    P(f"v_lshlrev_b32 v{T+1}, 4, v{T+1}")
    P(f"v_bfe_u32 v{T+2}, v{V_LANE}, 1, 2")
    P(f"v_add_u32 v{T+1}, v{T+1}, v{T+2}")
    P(f"v_lshlrev_b32 v{T+1}, 7, v{T+1}")
    P(f"s_mul_i32 s{S_T0}, s{S_WAVE}, 7")
    P(f"s_lshr_b32 s{S_T0}, s{S_T0}, 1")
    P(f"s_lshl_b32 s{S_T0}, s{S_T0}, 7")
    P(f"s_add_u32 s{S_T0}, s{S_T0}, {FL_H}")
    P(f"v_add_u32 v{V_PH}, s{S_T0}, v{T+1}")
    P(f"s_lshl_b32 s{S_T0}, s{S_WAVE}, 9")
    P(f"s_add_u32 s{S_T0}, s{S_T0}, {FL_O}")
    P(f"v_add_u32 v{V_PO}, s{S_T0}, v{T+1}")
    for d in range(1, 4):
        P(f"s_xor_b32 s{S_T0}, s{S_WAVE}, {d}")
        P(f"s_lshl_b32 s{S_T0}, s{S_T0}, 12")
        P(f"s_add_u32 s{S_T0}, s{S_T0}, {LP[d]}")
        P(f"v_add_u32 v{L_RW+d-1}, s{S_T0}, v{V_L16}")
    P(f"s_add_u32 s{S_T0}, s{S_M4}, {LP[1]}")
    P(f"v_add_u32 v{L_RR}, s{S_T0}, v{V_L16}")
    P(f"s_lshl_b32 s{S_T0}, s{S_R}, 6")
    P(f"s_lshl_b32 s{S_T2}, s{S_T1}, 5")
    P(f"s_add_u32 s{S_T0}, s{S_T0}, s{S_T2}")
    P(f"v_add_u32 v{T+1}, s{S_T0}, v{T}")
    P(f"v_mul_u32_u24 v{T+1}, 896, v{T+1}")
    P(f"v_lshrrev_b32 v{T+2}, 5, v{V_LANE}")
    P(f"v_lshl_add_u32 v{T+1}, v{T+2}, 4, v{T+1}")
    P(f"s_lshl_b32 s{S_T0}, s{S_C}, 7")
    P(f"s_lshr_b32 s{S_T2}, s{S_WAVE}, 1")
    P(f"s_lshl_b32 s{S_T2}, s{S_T2}, 6")
    P(f"s_add_u32 s{S_T0}, s{S_T0}, s{S_T2}")
    P(f"v_add_u32 v{L_OA}, s{S_T0}, v{T+1}")

def last_soff(P, o):
    P(f"s_mul_i32 s{S_T0}, s{S_R}, {2*A_TB}")
    P(f"s_add_u32 s{S_T0}, s{S_T0}, {A_OFF}")
    P(f"s_lshl_b32 s{S_T2}, s{S_WAVE}, 13")
    P(f"s_add_u32 s{S_AO2}, s{S_T0}, s{S_T2}")
    P(f"s_add_u32 s{S_AO2}, s{S_AO2}, {112*1024}")
    P(f"s_mul_i32 s{S_T2}, s{S_WAVE}, {28*1024}")
    P(f"s_add_u32 s{S_AOF}, s{S_T0}, s{S_T2}")
    if ROT[0]:
        P(f"s_lshl_b32 s{S_T2}, s{S_AG}, 12")
        P(f"s_add_u32 s{S_AOF}, s{S_AOF}, s{S_T2}")
    P(f"s_mov_b64 {sr(SRD_WO)}, {sr(S_WO)}")
    P(f"s_mov_b32 s{SRD_WO+2}, {448*896}")
    P(f"s_mul_i32 s{S_BO}, s{S_WAVE}, {112*896}")
    P(f"s_lshl_b32 s{S_T3}, s{S_C}, 7")
    P(f"s_add_u32 s{S_BO}, s{S_BO}, s{S_T3}")

def bias2(P, o):
    P(f"s_add_u32 s{S_T0}, s{S_M4}, {LP[PIECE[11]]}")
    bias_expand(P, V_DUM, 12, L_BA, S_T0)
    P(f"s_lshr_b32 s{S_T2}, s{S_WAVE}, 1")
    P(f"s_lshl_b32 s{S_T2}, s{S_T2}, 7")
    P(f"v_add_u32 v{L_BA}, s{S_T2}, v{L_BA}")
    P(f"v_sub_f32 v{L_G}, 1.0, v{L_G}")
    P(f"v_sub_f32 v{L_G+1}, 1.0, v{L_G+1}")

def a_slots(o):
    ne = o.nearly * 2
    sl = EARLY[:ne] + LATE + EARLY[ne:]
    ring = len(sl) // 2 * 2
    return [sl[i % ring] for i in range(72)], ring // 2

def a_load(o, n):
    sl, _ = a_slots(o)
    so, m = (S_AOF, n) if n < 28 else (S_AO2, n - 28)
    L = [rot_step(so, S_AG, 4096, 7) if (ROT[0] and n < 28) else f"s_add_u32 s{so}, s{so}, 4096"] if (m and m % 4 == 0) else []
    for ttl in range(2):
        L.append((f"buffer_load_dwordx4 {xr(sl[2*n+ttl])}, v{V_AA+ttl}, {sr(SRD_WS,4)}, s{so} offen offset:{(m&3)*1024} {SC}", 'ald'))
    return L

def last(P, o):
    q = lambda ttl, ctl: LACC + 32 * ttl + 16 * ctl
    sl, depth = a_slots(o)
    mm = lambda n, ttl, ctl: mfma(q(ttl, ctl), breg(n, ctl), sl[2 * n + ttl], None if n == 0 else q(ttl, ctl))
    assert o.nearly > 0 and PIECE[11] not in (1, 2, 3)
    nxt = o.nearly
    D = Prog(); att_epilogue(D, o); epi = atomic_groups(D.L)
    if not o.epin:
        for g in epi: P.add(g)
        epi = []
        while nxt < max(o.lead, o.nearly): P.add(a_load(o, nxt)); nxt += 1
    EP = {}
    if epi: spread(EP, epi, list(range(o.epin)), False)
    stamp(P, o, 'last_go')
    opolled = False
    ol = lambda m, ttl: [(f"buffer_load_dwordx4 {xr(sl[2*(28+m)+ttl])}, v{V_AA+ttl}, {sr(SRD_WS,4)}, s{S_AO2 if m < 4 else S_BO} offen offset:{(m&3)*1024} {SC}", 'ald')]
    oq = [ol(m, ttl) for ttl in range(2) for m in range(8)]
    oq[0] = [f"s_add_u32 s{S_BO}, s{S_AO2}, 4096"] + oq[0]
    assert depth >= 36 - o.ocheck_at and not o.left
    sc = lambda ttl, ctl: [f"v_mul_f32 v{q(ttl,ctl)+i}, v{L_G+ttl}, v{q(ttl,ctl)+i}" for i in range(16)]
    D = Prog(); bias2(D, o); b2l = [[x] for x in D.L]
    for n in range(28):
        M = [mm(n, ttl, ctl) for ttl in range(2) for ctl in range(2)]
        ex = []; cnt = 0
        top = (36 if opolled else 28)
        if o.left and n < o.left_steps:
            k = -(-len(o.left) // (o.left_steps - n)); ex += o.left[:k]; o.left = o.left[k:]
        while nxt < min(n + min(depth, o.lead + 1), 28) and cnt < 2:
            ex += merge_salu([[e] for e in a_load(o, nxt)]); nxt += 1; cnt += 1
        if opolled and oq:
            k = -(-len(oq) // max(1, o.oend - n)); ex += oq[:k]; oq = oq[k:]
        if o.jit0 <= n < o.jit0 + 14 and not o.drop & 32:
            k = n - o.jit0 + 22
            ex += [[WVM(f'bp{k >> 1}')] + b_reads(k)[:2], b_reads(k)[2:]]
        if o.jit0 + 3 <= n < o.jit0 + 6: ex += b2l[((n - o.jit0 - 3) * len(b2l)) // 3:((n - o.jit0 - 2) * len(b2l)) // 3]
        if n == o.oflag_at and o.nearly > 0:
            D0 = Prog(); D1 = Prog()
            if o.fine: stamp(D0, o, 'of0'); stamp(D1, o, 'of1')
            ex = ex + [D0.L + [WVM('ost')] + D1.L + flag_store(S_OFL)]
        if n == o.opoll_at: ex += [poll_issue(V_PO)]
        if n == o.ocheck_at:
            D0 = Prog(); D1 = Prog()
            if o.fine: stamp(D0, o, 'oc0'); stamp(D1, o, 'oc1')
            ex = [D0.L + poll_check(V_PO) + D1.L] + ex; opolled = True
        if o.hst and n % 4 == 0 and n: stamp(P, o, f'h{n}')
        hh = {}
        isv = lambda it: any((isinstance(x, tuple) and x[0].startswith('buffer')) or (isinstance(x, str) and x.startswith('buffer')) for x in it)
        vm_ = [it for it in ex if isv(it) or any(isinstance(x, str) and 'cbranch' in x for x in it)]
        ot_ = [it for it in ex if it not in vm_]
        if vm_: spread(hh, vm_, list(o.apos) if len(vm_) <= 2 else [0, 1, 2, 3])
        if ot_: spread(hh, ot_, list(o.dpos))
        if n == o.bar_at: P("s_waitcnt lgkmcnt(0)"); P("s_barrier")
        if n == 26: M = [mm(26, 0, 0), mm(26, 0, 1), mm(27, 0, 0), mm(27, 0, 1)]
        if n == 27: M = [mm(26, 1, 0), mm(26, 1, 1), mm(27, 1, 0), mm(27, 1, 1)]
        for t in range(4):
            P.add([M[t]] + sum(hh.get(t, []), []) + sum(EP.get(4 * n + t, []), []))
            if n == 27 and t >= 1: P.add((sc(0, 0) + sc(0, 1))[[0, 0, 10, 21][t]:[0, 10, 21, 32][t]])
    stamp(P, o, 'last_h')
    for it in oq: P.add(it)
    used = set(sl[56:72])
    free = [r for r in sorted(x for x in set(sl) if not isinstance(x, tuple)) if r not in used]
    B2 = [r for r in free if all((r + 4 * k) in free for k in range(4))][0]
    for k in range(4): P(f"ds_read_b128 {vr(B2+4*k,4)}, v{L_BA} offset:{32*k}")
    rest = sc(1, 0) + [f"v_add_f32 v{q(1,1)+i}, v{q(1,1)+i}, v{B2+i}" for i in range(16)] + sc(1, 1)
    M = []
    for n in range(28, 36): M += [[mm(n, 0, 0)], [mm(n, 0, 1)]]
    P.add(interleave(M, rest))
    wr = lambda ttl, ctl: [f"ds_write_b128 v{L_RR}, {vr(q(ttl,ctl)+4*i,4)} offset:{(((1-ttl) | ((1-ctl) << 1)) - 1)*16384 + i*1024}" for i in range(4)]
    w = wr(0, 0) + wr(0, 1)
    seq = []
    for i, n in enumerate(range(28, 36)):
        seq.append(mm(n, 1, 0))
        if i >= 2: seq += w[:2]; w = w[2:]
    seq += w
    w = wr(1, 0)
    for i, n in enumerate(range(28, 36)):
        seq.append(mm(n, 1, 1))
        if i >= 3 and w: seq.append(w.pop(0))
    P.add(seq + w)
    P("s_waitcnt lgkmcnt(0)")
    P("s_barrier")
    stamp(P, o, 'last_o')
    R = 80
    for d in range(3):
        for i in range(4):
            P(f"ds_read_b128 {vr(R+16*d+4*i,4)}, v{L_RW+d} offset:{i*1024}")
    o_ = q(1, 1)
    for d in range(3):
        for i in range(8):
            P(f"v_pk_add_f32 {vr(o_+2*i,2)}, {vr(o_+2*i,2)}, {vr(R+16*d+2*i,2)}")
    p = R + 48
    for i in range(8): P(f"v_cvt_pk_bf16_f32 v{p+i}, v{o_+2*i}, v{o_+2*i+1}")
    for h in range(2):
        P(f"v_permlane32_swap_b32 v{p+4*h}, v{p+4*h+2}")
        P(f"v_permlane32_swap_b32 v{p+4*h+1}, v{p+4*h+3}")
    for h in range(2):
        P(f"buffer_store_dwordx4 {vr(p+4*h,4)}, v{L_OA}, {sr(SRD_OUT,4)}, 0 offen offset:{32*h} {['', 'sc1', 'nt'][o.osc]}")
    stamp(P, o, 'end')

HEADER = open('cdna_kernels/' + NAME + '.s.ref').read().split('; Override launch')[0]

def finish(P, o, name):
    for sp in slow_paths:
        P.forget(); P(sp)
    L = finalize(P, True)
    if o.align:
        L, nf = align_runs(L); print('aligned runs:', nf)
    out = HEADER + f"; @launch grid=(256,1,1) block=(256,1,1) lds={LDS_BYTES}\n"
    out += '.amdgcn_target "amdgcn-amd-amdhsa--gfx950"\n.text\n'
    out += f".globl {name}\n.p2align 8\n.type {name},@function\n{name}:\n" + text(L)
    out += "s_endpgm\n.fill 2048, 4, 0xbf800000\n"
    out += f""".section .rodata,"a"
.p2align 6
.amdhsa_kernel {name}
  .amdhsa_next_free_vgpr 512
  .amdhsa_next_free_sgpr 102
  .amdhsa_accum_offset 256
  .amdhsa_group_segment_fixed_size 0
  .amdhsa_kernarg_size 96
  .amdhsa_user_sgpr_count 2
  .amdhsa_user_sgpr_kernarg_segment_ptr 1
  .amdhsa_system_sgpr_workgroup_id_x 1
.end_amdhsa_kernel
"""
    if o.diag is not None:
        out = out.replace('DIAG_I', str(o.stamp_names.index(o.diag[0]))).replace('DIAG_J', str(o.stamp_names.index(o.diag[1])))
    return out

def stf(o, n):
    D = Prog()
    if o.fine: stamp(D, o, n)
    return D.L

def groups(fn, o):
    D = Prog(); fn(D, o); return atomic_groups(D.L)

def build(o):
    name = NAME + "_kernel"
    R = lambda a, b: list(range(a, b))
    P = Prog(); setup(P, o, "L_end")
    P(f"s_cmp_eq_u32 s{S_C}, 7")
    P("s_cbranch_scc1 L_prep")
    H = Gaps()
    def first(D, o):
        s1_w1_addr(D, o)
        if o.w1t: w1_touch(D, o)
        common2(D, o); s1_misc(D, o)
        if o.stouch < 2: D(f"buffer_load_dword v{V_TAG}, v{V_FLAGOFF}, {sr(SRD_WS,4)}, 0 offen")
        last_baddr(D, o)
        att_scalars(D, o)
        if not o.b1late: bias1(D, o)
        att_poll_addr(D, o)
        if not o.glate: gate_flags(D, o, V_PA)
        att_addr(D, o)
        if o.b1late: bias1(D, o)
        if o.mka: att_masks(D, o)
        if o.stouch < 2: D(f"v_readfirstlane_b32 s{S_TAG}, v{V_TAG}")
        D.add(TAGOPS)
        for i in range(o.wact):
            D(f"s_mul_i32 s{S_T4}, s{S_RBL}, 7")
            D(f"s_add_u32 s{S_T4}, s{S_T4}, s{S_C}")
            D(f"s_lshl2_add_u32 s{S_T4}, s{S_T4}, s{S_WAVE}")
            D(f"s_add_u32 s{S_T4}, s{S_T4}, {16*o.wsp + 112*i}")
            warm_touch(D, S_T4, 161 + i, S_T0, V_L128)
    H.put('v', groups(first, o), 0, o.su_end)
    H.put('m', bias1_reads(), o.b1r, 84)
    def first2(D, o): att_kvoff(D, o); last_soff(D, o)
    H.put('v', groups(first2, o), o.su_end, 84)
    FAKE[0] = o.fake & 1
    pass_a(P, o, H)
    FAKE[0] = 0
    qkv_epilogue(P, o, merge_salu([it for n in range(o.nba, o.nbe) for it in dma_b(n)]))
    stamp(P, o, 'qkv_epi')
    H = Gaps()
    def second(D, o):
        last_setup(D, o)
        if o.glate: gate_flags(D, o, V_PH)
        if not o.mka: att_masks(D, o)
    H.put('v', groups(second, o), 0, 50)
    for i, g in enumerate(o.l2t):
        D = Prog(); l2_touch(D, o, i); H.put('v', [D.L], g, g + 1)
    dm = lambda a, b: merge_salu([it for p in range(a, b) for it in b_dma(p)])
    rd = lambda a, b: [[WVM(f'bp{n >> 1}')] + b_reads(n)[:2] if k == 0 else b_reads(n)[2:] for n in range(2 * a, 2 * b) for k in range(2)]
    b = o.pb
    kv = merge_salu(att_loads(o))
    gl = []
    if o.glate: kv, gl = kv[:14], kv[14:]
    def put_m0(items, g0, g1):
        own = lambda g: 12 <= g < 52 and (g - 12) % 16 < 8
        free = [g for g in range(g0, g1) if not own(g)]
        runs = []; cur = []
        for it in items:
            if any(isinstance(x, str) and ' m0,' in x for x in it) and cur: runs.append(cur); cur = []
            cur.append(it)
        runs.append(cur)
        n = len(runs)
        for i, r in enumerate(runs):
            sl = free[(i * len(free)) // n:((i + 1) * len(free)) // n]
            keep = [sl[0]]
            for g in sl[1:]:
                if g != keep[-1] + 1: break
                keep.append(g)
            spread(H.m, r, keep)
    if o.nbe < 4: H.put('m', merge_salu([it for n in range(o.nbe, 4) for it in dma_b(n)]), 0, 12)
    for c in range(3): H.put('m', merge_salu(dma_b(c + 4)), 16 * c + 12, 16 * c + 20)
    if not o.drop & 1: put_m0(dm(0, o.n1), b[0], b[1])
    H.put('m', [stf(o, 'qf0') + [WVM('qst')] + stf(o, 'qf1') + flag_store(S_QFL)], o.qflag, o.qflag + 1)
    H.put('m', [poll_issue(V_PA)], o.kpoll, o.kpoll + 1)
    kvl = kv[o.nkv:]
    if not o.drop & 4: put_m0([['s_waitcnt lgkmcnt(0)', 's_barrier'] * (o.n1 > 4) + stf(o, 'kc0') + poll_check(V_PA) + stf(o, 'kc1') + kv[0]] + kv[1:o.nkv], o.kcheck, o.kend)
    if not o.r1late: H.put('m', rd(0, o.n1), b[2], b[3])
    pt = att_patch()
    if o.patch < 112:
        H.put('m', pt[:4], o.patch, o.patch + 2)
        H.put('v', pt[4:], o.patch + 2, 112)
    FAKE[0] = o.fake & 2
    pass_b(P, o, H)
    FAKE[0] = 0
    P("s_waitcnt lgkmcnt(0)")
    P("s_barrier")
    stamp(P, o, 'pass_b')
    if o.trunc:
        stamp_flush(P, o); P("s_endpgm"); P.forget(); P("L_prep:"); prep(P, o); stamp_flush(P, o); P("L_end:"); P("s_endpgm")
        return finish(P, o, name)
    if o.patch < 112: P.add(kread(ORDER[0], 0) + kread(ORDER[1], 1))
    last_baddr2(P, o)
    na = 11 + (o.n1 - 4)
    Q = Prog(); held = []; sstream = []
    for F in range(4):
        g = gelu_tile(F)
        for i, x in enumerate(g[:-2]):
            if i % 4 == 0: Q.L.append(Slot(f'g{F}_{i}'))
            Q.add([x])
        held += g[-2:]
        if F >= o.kvt - 1:
            Q.L.append(Slot(f'gs{F}'))
            if o.pst: sstream += [([x], (lambda F: lambda st: f'gs{F}' in st['seen'])(F), 'x') for x in held]
            else: Q.add(held)
            held = []
        if F == o.patch_t:
            if o.fine: stamp(Q, o, 'pt0')
            Q.add(pt[0])
            if o.fine: stamp(Q, o, 'pt1')
            for it in pt[1:]: Q.add(it)
        if F == o.bar_t:
            Q("s_waitcnt lgkmcnt(0)"); Q("s_barrier")
            Q.add(kread(ORDER[0], 0) + kread(ORDER[1], 1))
    stamp(Q, o, 'gelu')
    attention(Q, o, None, kpre=True)
    seen = lambda n: (lambda st: n in st['seen'])
    after = lambda key, dt: (lambda st: key in st['done'] and st['t'] >= st['done'][key] + dt)
    both = lambda a, b: (lambda st: a(st) and b(st))
    dstream = [(it, None, f'kv{i}') for i, it in enumerate(kvl)]
    for p in range(o.n1, 18):
        its = merge_salu(b_dma(p))
        for i, it in enumerate(its):
            cond = None
            if p == o.n1 and i == 0: cond = seen(o.ra0)
            lo = 0 if o.r1late else o.n1
            if i == 0 and [q for q in range(lo, p) if PIECE[q] == PIECE[p]]:
                prev = [q for q in range(lo, p) if PIECE[q] == PIECE[p]][-1]
                cond = after(f'rd{prev}', 60); it = [WLG(f'rd{prev}')] + it
            if o.pause:
                c0 = cond
                cond = (lambda c0: lambda st: (c0 is None or c0(st)) and (o.pause_at not in st['seen'] or f'a{o.resume}' in st['seen']))(c0)
            dstream.append((it, cond, f'dm{p}' if i == len(its) - 1 else 'x'))
    rstream = []
    for p in range(0 if o.r1late else o.n1, 11):
        r = b_reads(2 * p) + b_reads(2 * p + 1)
        for k in range(4):
            it = [(x, f'rd{p}') for x in r[2 * k:2 * k + 2]]
            rstream.append(([WVM(f'bp{p}')] * (k == 0) + it, (seen(o.r1at) if p < o.n1 else both(after(f'dm{p}', o.lat), seen('a0'))) if k == 0 else None, f'rd{p}' if k == 3 else 'x'))
    def st_(n):
        D = Prog()
        if o.fine: stamp(D, o, n)
        return D.L
    names0 = list(o.stamp_names)
    fstream = [(st_('hf0') + [WVM('hst')] + st_('hf1') + flag_store(S_HFL), both(seen(f'a{o.hflag}'), lambda st: not sstream), 'hf')]
    if o.nearly > 0:
        fstream.append((poll_issue(V_PH), seen(f'a{o.hpoll}'), 'hp'))
        al = merge_salu([[x] for n in range(o.nearly) for x in a_load(o, n)])
        al = al[:2] + gl + al[2:]
        if o.atouch:
            tch = [f"buffer_load_dword v{V_AT}, v{V_AT}, {sr(SRD_WS,4)}, s{S_AOF} offen {SC}"]
            fstream.append((st_('hc0') + poll_check(V_PH) + st_('hc1') + tch, seen(f'a{o.hcheck}'), 'hc'))
            fstream += [(it, seen(f'a{o.ea0}'), 'ea') for it in al]
        else:
            fstream.append((st_('hc0') + poll_check(V_PH) + st_('hc1') + al[0], seen(f'a{o.hcheck}'), 'hc'))
            fstream += [(it, None, 'ea') for it in al[1:]]
    L, t = place(Q.L, {'s': sstream, 'f': fstream, 'r': rstream, 'd': dstream}, gap=o.gap, burst=o.burst)
    kvpos = max([i for i, x in enumerate(L) if isinstance(x, I) and x.tag == 'kv'] + [-1]); hpos = min(i for i, x in enumerate(L) if isinstance(x, I) and x.tag == 'hst')
    print('estimated gelu+attention cycles', t, 'left', len(dstream), len(rstream), len(fstream), 'kv before h stores', kvpos < hpos)
    assert not rstream and not sstream
    P.L += L
    for it, _, _ in fstream: P.add(it)
    o.left = [it for it, _, _ in dstream]
    FAKE[0] = o.fake & 4
    last(P, o)
    FAKE[0] = 0
    stamp_flush(P, o)
    P("s_endpgm")
    P.forget()
    P("L_prep:")
    prep(P, o)
    att_scalars(P, o); att_poll_addr(P, o); gate_flags(P, o, V_PA); att_addr(P, o); att_masks(P, o); att_kvoff(P, o)
    poll(P, o, V_PA)
    for it in att_loads(o, False) + att_patch(): P.add(it)
    P("s_waitcnt lgkmcnt(0)")
    P("s_barrier")
    if o.pw & 2:
        srd_rest(P, [(SRD_OUT, 2048*896)])
        P(f"v_lshlrev_b32 v{V_T+3}, 18, v{V_LANE}")
        P(f"buffer_load_dword v200, v{V_T+3}, {sr(SRD_OUT,4)}, 0 offen")
    st, o.stamps = o.stamps, False
    attention(P, o, {})
    att_epilogue(P, o)
    o.stamps = st
    P("s_waitcnt vmcnt(0)")
    P.add(flag_store(S_OFL))
    stamp(P, o, 'p_att')
    stamp_flush(P, o)
    P(f"s_cmp_eq_u32 s2, 56")
    P("s_cbranch_scc0 L_end")
    P(f"s_cmp_eq_u32 s{S_WAVE}, 0")
    P("s_cbranch_scc0 L_end")
    P(f"v_lshlrev_b32 v{V_PA}, 7, v{V_LANE}")
    P(f"s_mov_b32 s{S_CNT}, 4000")
    P("L_ep:")
    for i in range(16):
        P(f"s_mov_b32 s{S_T0}, {FL_O + i*8192}")
        P(f"buffer_load_dwordx2 {vr(16+2*i,2)}, v{V_PA}, {sr(SRD_WS,4)}, s{S_T0} offen sc1")
    P("s_waitcnt vmcnt(0)")
    P(f"s_mov_b64 {sr(S_T0)}, 0")
    for i in range(16):
        P(f"v_cmp_ne_u64 vcc, {sr(S_TAG)}, {vr(16+2*i,2)}")
        P(f"s_or_b64 {sr(S_T0)}, {sr(S_T0)}, vcc")
    P(f"s_sub_u32 s{S_CNT}, s{S_CNT}, 1")
    P("s_cbranch_scc1 L_end")
    P(f"s_cmp_eq_u64 {sr(S_T0)}, 0")
    P("s_cbranch_scc0 L_ep")
    P(f"buffer_store_dword v{V_TAG}, v{V_FLAGOFF}, {sr(SRD_WS,4)}, 0 offen sc1")
    P("L_end:")
    P("s_endpgm")
    return finish(P, o, name)

DEFAULTS = dict(xw=0, pff=0, slim=0, sp=0, stouch=0, fake=0, pst=0, osc=0, nba=4, nbe=4, oend=28, r1late=0, r1at='g1_0', apos=(0, 2), dpos=(1, 3), align=1, rot=0, rcls=2, wfirst=0, glate=0, bar_t=3, epin=6, bar_at=3, olead=12, atouch=0, ea0=46, fine=0, pause=1, pause_at='gs1', resume=0, burst=2, gap=64, lat=700, ra0='g0_0', l2t=(), kvt=2, patch_t=1, pw=0, b1late=1, w1t=0, mw=1, drop=0, trunc=0, ncls=3, wsp=0, wact=0, su_end=72, bq_end=84, mka=1, n1=4,
                b1r=60, pb=(52, 84, 88, 104), qflag=30, kpoll=74, kcheck=86, kend=112, nkv=14, patch=112,
                nb_gelu=(0, 0, 3, 3), pa=(0, 22, 20, 32, 50), nrb=20, left_steps=4, hflag=6, nearly=4, hpoll=32, hcheck=44,
                lead=6, jit0=8, oflag_at=5, opoll_at=15, ocheck_at=22, hst=0, code_bytes=32768)

if __name__ == '__main__':
    o = Opt()
    for k, v in DEFAULTS.items(): setattr(o, k, v)
    o.stamps = 'stamps' in sys.argv; o.diag = None; o.stamp_names = []
    o.clk = 's_memtime' if 'cyc' in sys.argv else 's_memrealtime'
    for a in sys.argv[2:]:
        if '=' not in a: continue
        k, v = a.split('=')
        if k == 'diag':
            i, j, K = v.split(','); o.diag = (i, j, int(K)); o.stamps = True
        elif k in ('ra0', 'pause_at', 'r1at'): setattr(o, k, v)
        elif ',' in v: setattr(o, k, tuple(int(x) for x in v.split(',') if x))
        else: setattr(o, k, int(v))
    plan(o.n1, o.r1late); ROT[0] = o.rot
    s = build(o)
    open(sys.argv[1], 'w').write(s)
    if o.stamps: open(sys.argv[1] + '.names', 'w').write('\n'.join(o.stamp_names))
```

```python
import sys, math, struct
from asmlib import *

NAME = "gated_mix__sliding_block__dense_activation_gelu__prompt"
def f2u(x): return struct.unpack('<I', struct.pack('<f', x))[0]

WS_E      = 0
FL_G      = 0x1000
G_OFF     = 0x4000
FL_QKV    = 0x20000
FL_H      = 0x40000
FL_O      = 0x60000
QKV_OFF   = 0x100000
A_OFF     = 0x700000
WS_SIZE   = 0x1000000
BP_OFF    = 0x1000000
STAMP_OFF = 0x1400000
QKV_TB = 168 * 512
A_TB = 144 * 1024

SA = 28672
LQ = 16384
LF = 98304; SF = 16384
LBIAS = 86016
LKV = 0
LRED = 0
LP = [49152 + 16384 * i for i in range(7)] + [0, 16384, 32768]
PIECE = []
def plan(n1, late=0):
    ra = list(range(11 - n1))
    rb = [p for p in range(7) if p not in ra] + ra
    PIECE[:] = [0, 1, 2, 3, 7, 8, 9][:n1] + ra + rb[:7]
    if late: PIECE[:] = [0, 1, 2, 3] + [4, 5, 6, 0, 1, 2, 3] * 2
LDS_BYTES = 160 * 1024

S_WAVE, S_RBL, S_SPARE, S_XCD, S_SLOT = 3, 8, 9, 10, 11
S_XO, S_QO, S_FO, S_CI, S_CJ = 4, 5, 6, 7, 22
S_M4, S_M3 = 23, 24
S_OFL = 25
S_B1, S_W2, S_B2, S_GW, S_WO = 12, 14, 16, 18, 20
S_TAG = 26
SRD_X, SRD_WQ, SRD_W1, SRD_WS, SRD_OUT, SRD_W2 = 28, 32, 36, 40, 44, 48
SRD_WO = 32
S_KV = [28, 29, 30, 31]
S_RB, S_B, S_TB = 52, 53, 54
S_BOF = 55
S_T0, S_T1, S_T2, S_T3 = 56, 57, 58, 59
S_CNT = 60
S_QST, S_HST = 61, 62
S_T4 = 63
S_MASK = 64
S_QFL, S_HFL = 12, 13
S_OST, S_B3 = 18, 19
S_AOF, S_AO2, S_BO = 4, 5, 7
S_ARB, S_ATB = 14, 15
S_R, S_C, S_J, S_PAR = 98, 99, 100, 101
S_AG, S_BG = 52, 54

def sr(b, n=2): return f"s[{b}:{b+n-1}]"
def vr(b, n): return f"v[{b}:{b+n-1}]" if n > 1 else f"v{b}"
def ar(b, n): return f"a[{b}:{b+n-1}]"
def xr(d): return ar(d[1], 4) if isinstance(d, tuple) else vr(d, 4)

V_LANE, V_L16, V_L16H, V_FLAGOFF = 1, 2, 3, 4
V_TAG = 6
V_PD = 8
V_PA = 10
V_T = 11
V_BA = 216
V_AA = 220
L_G = 222
L_RW = 224
L_RR, L_OA, V_PO, V_PH = 227, 228, 229, 231
V_BR = [[232, 233], [0, 230], [202, 234]]
L_BA = 10
V_DUM = 235
V_ST = 255
SC = 'sc1'

class Opt: pass

FAKE = [0]
def mfma(d, a, b, c):
    if FAKE[0]:
        return "\n".join(f"v_mfma_f32_16x16x32_bf16 {vr(d+8*k,4)}, {xr(a)}, {xr(b)}, {'0' if c is None else vr(c+8*k,4)}" for k in range(2))
    C = '0' if c is None else vr(c, 16)
    return f"v_mfma_f32_32x32x16_bf16 {vr(d,16)}, {xr(a)}, {xr(b)}, {C}"

lab = [0]
def stamp(P, o, name):
    if not o.stamps: return
    if name not in o.stamp_names: o.stamp_names.append(name)
    P(f"{o.clk} s[96:97]")
    P("s_waitcnt lgkmcnt(0)")
    P(f"v_writelane_b32 v{V_ST}, s96, {o.stamp_names.index(name)}")

def stamp_flush(P, o):
    if not o.stamps: return
    if o.diag is not None:
        lab[0] += 1
        P(f"v_readlane_b32 s{S_T0}, v{V_ST}, DIAG_I")
        P(f"v_readlane_b32 s{S_T1}, v{V_ST}, DIAG_J")
        P("s_nop 4")
        P(f"s_sub_u32 s{S_T0}, s{S_T1}, s{S_T0}")
        P(f"s_mul_i32 s{S_T0}, s{S_T0}, {o.diag[2]}")
        P(f"s_min_u32 s{S_T0}, s{S_T0}, 20000")
        P(f"s_cmp_eq_u32 s{S_SPARE}, 1")
        P(f"s_cselect_b32 s{S_T0}, 0, s{S_T0}")
        P("s_memrealtime s[96:97]")
        P("s_waitcnt lgkmcnt(0)")
        P(f"s_mov_b32 s{S_T1}, s96")
        P(f"L_dg{lab[0]}:")
        P("s_memrealtime s[96:97]")
        P("s_waitcnt lgkmcnt(0)")
        P(f"s_sub_u32 s{S_T2}, s96, s{S_T1}")
        P(f"s_cmp_lt_u32 s{S_T2}, s{S_T0}")
        P(f"s_cbranch_scc1 L_dg{lab[0]}")
        return
    P("s_waitcnt vmcnt(0)")
    P(f"s_lshl2_add_u32 s{S_T0}, s2, s{S_WAVE}")
    P(f"s_lshl_b32 s{S_T0}, s{S_T0}, 8")
    P(f"s_add_u32 s{S_T0}, s{S_T0}, {STAMP_OFF}")
    P(f"s_mov_b32 s{SRD_WS+2}, {STAMP_OFF + 0x100000}")
    P(f"v_lshlrev_b32 v{V_T}, 2, v{V_LANE}")
    P(f"buffer_store_dword v{V_ST}, v{V_T}, {sr(SRD_WS,4)}, s{S_T0} offen")

def setup(P, o, end_label):
    if o.stamps: P(f"{o.clk} s[94:95]")
    if o.pff: setup_rest(P, o, True)
    P(f"s_load_dwordx2 {sr(SRD_X)}, s[0:1], 0")
    P(f"s_load_dwordx2 {sr(SRD_WQ)}, s[0:1], 8")
    if not o.slim: setup_rest(P, o, False)
    P("s_cmpk_ge_u32 s2, 256")
    P(f"s_cbranch_scc1 {end_label}")
    if not o.slim and not o.pff: setup_rest(P, o, True)
    P(f"v_lshrrev_b32 v5, 6, v0")
    P(f"v_and_b32 v{V_LANE}, 63, v0")
    P(f"v_readfirstlane_b32 s{S_WAVE}, v5")
    P(f"s_and_b32 s{S_XCD}, s2, 7")
    P(f"s_lshr_b32 s{S_RBL}, s2, 6")
    P(f"s_bfe_u32 s{S_C}, s2, 0x30003")
    P(f"s_mov_b32 s{SRD_X+3}, 0x20000")
    P(f"s_mov_b32 s{SRD_X+2}, {2048*896}")

def setup_rest(P, o, pf):
    if not pf:
        P(f"s_load_dwordx2 {sr(SRD_W1)}, s[0:1], 32")
        P(f"s_load_dwordx8 s[12:19], s[0:1], 40")
        P(f"s_load_dwordx2 {sr(SRD_WS)}, s[0:1], 88")
        P(f"s_load_dwordx2 {sr(SRD_OUT)}, s[0:1], 72")
        P(f"s_load_dwordx2 {sr(S_WO)}, s[0:1], 16")
        P(f"s_lshr_b32 s{S_SLOT}, s2, 3")
        return
    P(f"s_getpc_b64 s[{S_T0}:{S_T1}]")
    P(f"v_lshlrev_b32 v15, 7, v0")
    P(f"v_min_u32 v15, {o.code_bytes - 512}, v15")
    P(f"global_load_dword v234, v15, s[{S_T0}:{S_T1}]", tag='pf')

def srd_rest(P, regs):
    for d, size in regs:
        P(f"s_mov_b32 s{d+2}, {size}")
        P(f"s_mov_b32 s{d+3}, 0x20000")

def common2(P, o):
    P(f"v_lshlrev_b32 v{V_L16}, 4, v{V_LANE}")
    P(f"v_cmp_eq_u32 vcc, 0, v{V_LANE}")
    P(f"v_mov_b32 v5, 0x7fff0000")
    P(f"v_add_u32 v{V_L16H}, 0x1000, v{V_L16}")
    P(f"v_cndmask_b32_e64 v{V_FLAGOFF}, v5, 0, vcc")
    P(f"s_lshl2_add_u32 s{S_R}, s{S_XCD}, s{S_RBL}")

TAGOPS = [f"s_mul_i32 s{S_TAG}, s{S_TAG}, 0x9e3779b1",
          f"s_add_u32 s{S_TAG}, s{S_TAG}, 0x7f4a7c15",
          f"s_xor_b32 s{S_TAG+1}, s{S_TAG}, 0x5bd1e995",
          f"v_mov_b32 v{V_TAG}, s{S_TAG}",
          f"v_mov_b32 v{V_TAG+1}, s{S_TAG+1}"]

def warm_touch(P, blk, dst, tb, l128):
    P(f"s_mul_i32 s{tb}, s{S_XCD}, 31")
    P(f"s_min_u32 s{blk}, s{blk}, 244")
    P(f"s_add_u32 s{blk}, s{blk}, s{tb}")
    P(f"s_sub_u32 s{tb}, s{blk}, 245")
    P(f"s_cselect_b32 s{blk}, s{blk}, s{tb}")
    P(f"s_sub_u32 s{tb}, s{blk}, 196")
    P(f"s_cselect_b32 s{blk}, s{blk}, s{tb}")
    P(f"s_cselect_b64 {sr(tb)}, {sr(SRD_W2)}, {sr(S_WO)}")
    P(f"s_lshl_b32 s{blk}, s{blk}, 13")
    P(f"s_add_u32 s{tb}, s{tb}, s{blk}")
    P(f"s_addc_u32 s{tb+1}, s{tb+1}, 0")
    P(f"global_load_dword v{dst}, v{l128}, {sr(tb)}", tag='warm')

def l2_touch(P, o, i):
    P(f"s_mul_i32 s{S_T4}, s{S_RBL}, 7")
    P(f"s_add_u32 s{S_T4}, s{S_T4}, s{S_C}")
    P(f"s_lshl2_add_u32 s{S_T4}, s{S_T4}, s{S_WAVE}")
    if i: P(f"s_add_u32 s{S_T4}, s{S_T4}, {112*i}")
    P(f"s_mul_i32 s{S_T0}, s{S_T4}, 1873")
    P(f"s_lshr_b32 s{S_T0}, s{S_T0}, 16")
    P(f"s_mul_i32 s{S_T0}, s{S_T0}, {128*896}")
    P(f"s_lshl_b32 s{S_T1}, s{S_T4}, 13")
    P(f"s_add_u32 s{S_T0}, s{S_T0}, s{S_T1}")
    P(f"s_add_u32 s{S_T0}, s{S_T0}, {128*896}")
    P(f"s_sub_u32 s{S_T1}, s{S_T1}, {140*8192}")
    P(f"s_cbranch_scc0 L_wo{i}")
    P(f"buffer_load_dword v{184+i}, v{V_L128}, {sr(SRD_W2,4)}, s{S_T0} offen")
    P(f"s_branch L_wj{i}")
    P(f"L_wo{i}:")
    P(f"buffer_load_dword v{186+i}, v{V_L128}, {sr(SRD_WO,4)}, s{S_T1} offen")
    P(f"L_wj{i}:")
    P.L.append(Pseudo('drop_vm'))

def poll(P, o, addr_v, limit=4000):
    lab[0] += 1
    L = f"L_poll{lab[0]}"
    P(f"s_mov_b32 s{S_CNT}, {limit}")
    P(f"{L}:")
    P(f"buffer_load_dwordx2 {vr(V_PD,2)}, v{addr_v}, {sr(SRD_WS,4)}, 0 offen sc1")
    P(f"s_sub_u32 s{S_CNT}, s{S_CNT}, 1")
    P("s_waitcnt vmcnt(0)")
    P(f"v_cmp_ne_u64 vcc, {sr(S_TAG)}, {vr(V_PD,2)}")
    P(f"s_cbranch_scc1 {L}_x")
    P(f"s_cbranch_vccnz {L}")
    P(f"{L}_x:")

slow_paths = []
def poll_issue(addr_v):
    return [f"buffer_load_dwordx2 {vr(V_PD,2)}, v{addr_v}, {sr(SRD_WS,4)}, 0 offen sc1"]
def poll_check(addr_v, limit=4000):
    lab[0] += 1
    L = f"L_pc{lab[0]}"
    slow_paths.append(f"""{L}_slow:
s_mov_b32 s{S_CNT}, {limit}
{L}_loop:
buffer_load_dwordx2 {vr(V_PD,2)}, v{addr_v}, {sr(SRD_WS,4)}, 0 offen sc1
s_sub_u32 s{S_CNT}, s{S_CNT}, 1
s_waitcnt vmcnt(0)
v_cmp_ne_u64 vcc, {sr(S_TAG)}, {vr(V_PD,2)}
s_cbranch_scc1 {L}_back
s_cbranch_vccnz {L}_loop
s_branch {L}_back""")
    return [f"v_cmp_ne_u64 vcc, {sr(S_TAG)}, {vr(V_PD,2)}\ns_cbranch_vccnz {L}_slow\n{L}_back:"]

def flag_store(soff):
    return [f"buffer_store_dwordx2 {vr(V_TAG,2)}, v{V_FLAGOFF}, {sr(SRD_WS,4)}, s{soff} offen sc1"]

ACC_Q, ACC_F = 16, 64
FR = 128
GT = 160
V_XD, V_QD, V_FD = 192, 196, 199
V_XR, V_QR, V_FRD = 203, 207, 208
V_CA, V_CB = 212, 214
V_QR2, V_L128 = 213, 215

def adv(ci):
    return f"s_add_u32 s{ci}, s{ci}, 1\ns_cmp_eq_u32 s{ci}, 7\ns_cselect_b32 s{ci}, 0, s{ci}"

def dma_a(n):
    sl = (n % 3) * SA
    L = []
    if n: L.append([adv(S_CI)])
    L.append([f"s_lshl_b32 s{S_XO}, s{S_CI}, 7", f"s_add_u32 m0, s{S_M4}, {sl}"])
    L.append([f"s_mul_i32 s{S_QO}, s{S_CI}, {64*2688}"])
    for i in range(4):
        L.append([(f"buffer_load_dwordx4 v{V_XD+i}, {sr(SRD_X,4)}, s{S_XO} offen offset:{i*1024} lds", f'da{n}')])
    L.append([f"s_add_u32 m0, s{S_M3}, {sl}"])
    for i in range(3):
        L.append([(f"buffer_load_dwordx4 v{V_QD+i}, {sr(SRD_WQ,4)}, s{S_QO} offen offset:{i*1024} lds", f'da{n}')])
    return L

def dma_b(n):
    L = []
    if n: L.append([adv(S_CJ)])
    L.append([f"s_add_u32 m0, s{S_M4}, {LF + ((n + 1) % 4) * SF}", f"s_mul_i32 s{S_FO}, s{S_CJ}, {64*3584}"])
    for i in range(4):
        L.append([(f"buffer_load_dwordx4 v{V_FD+i}, {sr(SRD_W1,4)}, s{S_FO} offen offset:{i*1024} lds", f'db{n}')])
    return L

def reads_a(g):
    c, s = g >> 2, g & 3
    sl = (c % 3) * SA
    base = FR + 16 * (g & 1)
    L = [f"ds_read_b128 {ar(4*g,4)}, v{V_XR+s} offset:{sl}"]
    q, so = (V_QR2, 0) if c % 3 == 2 else (V_QR, sl)
    for t in range(3):
        for rho in range(2):
            L.append(f"ds_read_b64_tr_b16 {vr(base+4*t+2*rho,2)}, v{q} offset:{so + (16*s+4*rho)*192 + t*64}")
    return L

def reads_b(g):
    c, s = g >> 2, g & 3
    base = FR + 16 * (g & 1)
    return [f"ds_read_b64_tr_b16 {vr(base+4*t+2*rho,2)}, v{V_FRD+t} offset:{((c + 1) % 4)*SF + (16*s+4*rho)*256}" for t in range(4) for rho in range(2)]

def s1_x_addr(P, o):
    T = V_T
    if o.ncls == 3:
        P(f"s_add_u32 s{S_CI}, s{S_C}, s{S_RBL}")
        P(f"s_lshl_b32 s{S_CI}, s{S_CI}, 1")
        P(f"s_lshr_b32 s{S_CI}, 0x24924, s{S_CI}")
        P(f"s_and_b32 s{S_CI}, s{S_CI}, 3")
        P(f"s_lshl_b32 s{S_CI}, s{S_CI}, 1")
    elif o.ncls == 2:
        P(f"s_add_u32 s{S_CI}, s{S_C}, s{S_RBL}")
        P(f"s_and_b32 s{S_CI}, s{S_CI}, 1")
        P(f"s_mul_i32 s{S_CI}, s{S_CI}, 3")
    else:
        P(f"s_mov_b32 s{S_CI}, 0")
    P(f"s_and_b32 s{S_RB}, s{S_XCD}, 3")
    P(f"s_lshl2_add_u32 s{S_RB}, s{S_RB}, s{S_RBL}")
    P(f"s_lshl2_add_u32 s{S_TB}, s{S_RB}, s{S_WAVE}")
    P(f"v_lshrrev_b32 v{T}, 3, v{V_LANE}")
    P(f"v_and_b32 v{T+1}, 7, v{V_LANE}")
    P(f"v_lshrrev_b32 v{T+2}, 4, v{V_LANE}")
    P(f"s_lshl_b32 s{S_T2}, s{S_TB}, 5")
    P(f"v_add_u32 v{T}, s{S_T2}, v{T}")
    P(f"v_mul_u32_u24 v{T}, 896, v{T}")
    P(f"v_xor_b32 v{T+1}, v{T+2}, v{T+1}")
    P(f"v_lshl_add_u32 v{V_XD}, v{T+1}, 4, v{T}")
    P(f"v_xor_b32 v{V_XD+1}, 64, v{V_XD}")
    P(f"s_lshl_b32 s{S_M4}, s{S_WAVE}, 12")
    P(f"v_add_u32 v{V_XD+2}, {2*(8*896-1024)}, v{V_XD}")
    P(f"v_add_u32 v{V_XD+3}, {3*(8*896-1024)}, v{V_XD+1}")
    P(f"v_add_u32 v{V_XD+1}, {1*(8*896-1024)}, v{V_XD+1}")

def s1_wq_addr(P, o):
    T = V_T
    P(f"s_lshr_b32 s{S_B}, s{S_XCD}, 2")
    P(f"s_mul_i32 s{S_B}, s{S_B}, 7")
    P(f"s_add_u32 s{S_B}, s{S_B}, s{S_C}")
    P(f"s_mul_i32 s{S_T2}, s{S_WAVE}, 192")
    P(f"s_mul_i32 s{S_T3}, s{S_B}, 192")
    P(f"v_add_u32 v{T}, s{S_T2}, v{V_LANE}")
    P(f"v_lshl_add_u32 v{T+2}, v{T}, 4, s{S_T3}")
    P(f"v_mul_u32_u24 v{T}, 0xaaab, v{T}")
    P(f"s_movk_i32 s{S_T3}, 2496")
    for i in range(3):
        if i: P(f"v_add_u32 v{T}, {64*0xaaab}, v{T}")
        P(f"v_lshrrev_b32 v{T+1}, 19, v{T}")
        P(f"v_mad_u32_u24 v{V_QD+i}, v{T+1}, s{S_T3}, v{T+2}")
    P(f"s_lshl_b32 s{S_T2}, s{S_T2}, 4")
    P(f"s_add_u32 s{S_M3}, s{S_T2}, {LQ}")
    srd_rest(P, [(SRD_WQ, 448*2688)])

def s1_read_addr(P, o):
    T = V_T
    P(f"v_and_b32 v{T}, 31, v{V_LANE}")
    P(f"v_lshrrev_b32 v{T+1}, 5, v{V_LANE}")
    P(f"v_bfe_u32 v{T+2}, v{V_LANE}, 1, 3")
    P(f"v_xor_b32 v{T+2}, v{T+2}, v{T+1}")
    P(f"v_lshl_add_u32 v{T}, v{T}, 7, s{S_M4}")
    for s in range(4):
        P(f"v_xor_b32 v{T+3}, {2*s}, v{T+2}")
        P(f"v_lshl_add_u32 v{V_XR+s}, v{T+3}, 4, v{T}")
    P(f"v_bfe_u32 v{T}, v{V_LANE}, 2, 2")
    P(f"v_lshl_add_u32 v{T+1}, v{T+1}, 3, v{T}")
    P(f"v_bfe_u32 v{T+2}, v{V_LANE}, 4, 1")
    P(f"v_lshlrev_b32 v{T+2}, 5, v{T+2}")
    P(f"v_and_b32 v{T+3}, 3, v{V_LANE}")
    P(f"v_lshl_add_u32 v{T+2}, v{T+3}, 3, v{T+2}")
    P(f"v_mul_u32_u24 v{T+3}, 192, v{T+1}")
    P(f"v_add_u32 v{T+3}, {LQ}, v{T+3}")
    P(f"v_add_u32 v{V_QR}, v{T+3}, v{T+2}")
    P(f"v_add_u32 v{V_QR2}, {2*SA}, v{V_QR}")
    P(f"v_lshl_add_u32 v{T+2}, v{T+1}, 8, v{T+2}")
    P(f"v_add_u32 v{T+2}, {LF}, v{T+2}")
    for c in range(4):
        P(f"v_xor_b32 v{T+3}, {c}, v{T}")
        P(f"v_lshl_add_u32 v{V_FRD+c}, v{T+3}, 6, v{T+2}")

def s1_w1_addr(P, o):
    T = V_T
    P(f"v_lshrrev_b32 v{T+2}, 4, v{V_LANE}")
    P(f"v_lshlrev_b32 v{T+1}, 2, v{T+2}")
    P(f"v_xor_b32 v{T+1}, v{T+1}, v{V_LANE}")
    P(f"v_and_b32 v{T+1}, 15, v{T+1}")
    P(f"s_lshl_b32 s{S_T2}, s{S_WAVE}, 4")
    P(f"v_add_u32 v{T}, s{S_T2}, v{T+2}")
    P(f"v_mul_u32_u24 v{T}, 3584, v{T}")
    P(f"s_lshl_b32 s{S_T3}, s{S_B}, 8")
    P(f"v_lshl_add_u32 v{T}, v{T+1}, 4, v{T}")
    P(f"v_add_u32 v{V_FD}, s{S_T3}, v{T}")
    for i in range(1, 4):
        P(f"v_add_u32 v{V_FD+i}, {i*(4*3584-1024)}, v{V_FD}")
    srd_rest(P, [(SRD_W1, 448*3584)])
    if not o.eb:
        P(f"v_lshl_add_u32 v{T}, v{V_LANE}, 2, s{S_T3}")
        P(f"global_load_dword v9, v{T}, {sr(S_B1)}")

def w1_touch(P, o):
    T = V_T
    P(f"v_lshrrev_b32 v{T}, 1, v{V_LANE}")
    P(f"v_min_u32 v{T}, 27, v{T}")
    P(f"s_lshl2_add_u32 s{S_T0}, s{S_RBL}, s{S_WAVE}")
    P(f"s_mul_i32 s{S_T0}, s{S_T0}, 28")
    P(f"v_add_u32 v{T}, s{S_T0}, v{T}")
    P(f"v_mul_u32_u24 v{T}, 3584, v{T}")
    P(f"v_and_b32 v{T+1}, 1, v{V_LANE}")
    P(f"v_lshl_add_u32 v{T}, v{T+1}, 7, v{T}")
    P(f"s_lshl_b32 s{S_T0}, s{S_B}, 8")
    P(f"buffer_load_dword v160, v{T}, {sr(SRD_W1,4)}, s{S_T0} offen", tag='warm')

def s1_misc(P, o):
    srd_rest(P, [(SRD_WS, WS_SIZE), (SRD_OUT, 2048*896)])
    A = -2.0 * math.sqrt(2.0 / math.pi) * 0.044715 * math.log2(math.e)
    B = -2.0 * math.sqrt(2.0 / math.pi) * math.log2(math.e)
    P(f"v_mov_b32 v{V_CA}, {hex(f2u(A))}")
    P(f"v_mov_b32 v{V_CB}, {hex(f2u(B))}")
    P(f"v_lshlrev_b32 v{V_L128}, 7, v{V_LANE}")
    P(f"s_mul_i32 s{S_QST}, s{S_TB}, {QKV_TB}")
    P(f"s_mul_i32 s{S_T0}, s{S_B}, {3*2048}")
    P(f"s_add_u32 s{S_QST}, s{S_QST}, s{S_T0}")
    P(f"s_add_u32 s{S_QST}, s{S_QST}, {QKV_OFF}")
    P(f"s_mul_i32 s{S_HST}, s{S_TB}, {A_TB}")
    P(f"s_lshl_b32 s{S_T0}, s{S_B}, 13")
    P(f"s_add_u32 s{S_HST}, s{S_HST}, s{S_T0}")
    P(f"s_add_u32 s{S_HST}, s{S_HST}, {A_OFF}")
    P(f"s_lshl4_add_u32 s{S_T0}, s{S_TB}, s{S_B}")
    P(f"s_lshl_b32 s{S_T0}, s{S_T0}, 7")
    P(f"s_add_u32 s{S_QFL}, s{S_T0}, {FL_QKV}")
    P(f"s_add_u32 s{S_HFL}, s{S_T0}, {FL_H}")
    P(f"s_mul_i32 s{S_B3}, s{S_B}, 3")
    P(f"s_mov_b32 s{S_SPARE}, 0")

def bias_expand(P, src_v, tmp, addr, base):
    P(f"v_lshlrev_b32 v{tmp}, 16, v{src_v}")
    P(f"v_and_b32 v{tmp+1}, 0xffff0000, v{src_v}")
    P(f"v_lshl_add_u32 v{tmp+2}, v{V_LANE}, 3, s{base}")
    P(f"ds_write_b64 v{tmp+2}, {vr(tmp,2)}")
    P(f"v_lshrrev_b32 v{addr}, 5, v{V_LANE}")
    P(f"v_lshl_add_u32 v{addr}, v{addr}, 4, s{base}")

def bias1(P, o):
    P(f"s_lshl_b32 s{S_T0}, s{S_WAVE}, 9")
    P(f"s_add_u32 s{S_T0}, s{S_T0}, {LBIAS}")
    bias_expand(P, 9, 12, 8, S_T0)

def bias1_reads():
    return [[f"ds_read_b128 {vr(ACC_F+16*F+4*q,4)}, v8 offset:{(32*F+8*q)*4}"] for F in range(4) for q in range(4)]

def rot_step(off, cnt, stride, n):
    return (f"s_add_u32 s{off}, s{off}, {stride}\ns_add_u32 s{cnt}, s{cnt}, 1\ns_cmp_eq_u32 s{cnt}, {n}\n"
            f"s_cselect_b32 s{S_CNT}, {n*stride}, 0\ns_sub_u32 s{off}, s{off}, s{S_CNT}")
ROT = [0]

def b_dma(p):
    L = [[f"s_add_u32 m0, s{S_M4}, {LP[PIECE[p]]}"]]
    if p < 14:
        so, sd = S_BOF, SRD_W2
        if p: L[0].append(rot_step(so, S_BG, 32*896, 14) if ROT[0] else f"s_add_u32 s{so}, s{so}, {32*896}")
    else:
        so, sd = S_BO, SRD_WO
        i = p - 14
        if i: L[0].append(f"s_add_u32 s{so}, s{so}, {8*(((7*i)>>1) - ((7*(i-1))>>1))*896}")
    for i in range(4):
        L.append([(f"buffer_load_dwordx4 v{V_BA+i}, {sr(sd,4)}, s{so} offen offset:{i*1024} lds", f'bp{p}')])
    return L

def breg(n, ctl):
    if n >= 22: n -= 22
    return ('a', (112 + 8 * n if n < 18 else 8 * (n - 18)) + 4 * ctl)

def b_reads(n):
    pc = LP[PIECE[n >> 1]]
    hi, so = divmod(pc, 65536)
    return [f"ds_read_b64_tr_b16 {ar(breg(n, ctl)[1]+2*rho,2)}, v{V_BR[hi][ctl]} offset:{so + (n & 1)*2048 + rho*1024}" for ctl in range(2) for rho in range(2)]

class Gaps:
    def __init__(self): self.m = {}; self.v = {}
    def put(self, kind, items, g0, g1):
        d = self.m if kind == 'm' else self.v
        spread(d, items, list(range(g0, g1)), kind == 'm')
    def emit(self, G): return sum(self.m.get(G, []), []) + sum(self.v.get(G, []), [])

def spread(hooks, items, slots, unit=True):
    w = (lambda g: 1) if unit else len
    tot = sum(w(g) for g in items); done = 0
    for g in items:
        s = slots[min(len(slots) - 1, (done * len(slots)) // tot)]
        hooks.setdefault(s, []).append(g); done += w(g)

def merge_salu(items):
    out = []; pend = []
    for it in items:
        pend += it
        if any(isinstance(x, tuple) or (isinstance(x, str) and x.startswith(('buffer', 'global', 'ds_'))) for x in it):
            out.append(pend); pend = []
    if pend: out.append(pend)
    return out

def pass_a(P, o, H):
    s1_x_addr(P, o)
    d0 = dma_a(0)
    P.add(d0[0])
    P("s_waitcnt lgkmcnt(0)")
    if o.stamps:
        o.stamp_names.append('entry'); P(f"v_mov_b32 v{V_ST}, 0"); P(f"v_writelane_b32 v{V_ST}, s94, 0")
    if o.stouch:
        P(f"s_load_dword s{S_CNT}, {sr(SRD_WQ)}, 0")
        if o.stouch > 1:
            P(f"s_load_dword s{S_TAG}, {sr(SRD_WS)}, {WS_E}")
            P(f"s_load_dword s{S_J}, {sr(S_B1)}, 0")
    for it in d0[2:6]: P.add(it)
    if o.slim: setup_rest(P, o, True); setup_rest(P, o, False)
    P.add(d0[1]); P(f"s_mov_b32 s{S_CJ}, s{S_CI}")
    s1_wq_addr(P, o)
    for it in d0[6:]: P.add(it)
    if o.eb:
        P(f"s_load_dword s{S_TAG}, {sr(SRD_WS)}, {WS_E}")
        P(f"s_lshl_b32 s{S_T3}, s{S_B}, 8")
        P(f"v_lshl_add_u32 v{V_T}, v{V_LANE}, 2, s{S_T3}")
        P(f"global_load_dword v9, v{V_T}, {sr(S_B1)}")
        P(f"s_lshl_b32 s{S_T3}, s{S_C}, 7")
        P(f"v_and_b32 v{V_T}, 31, v{V_LANE}")
        P(f"v_lshl_add_u32 v{V_T}, v{V_T}, 2, s{S_T3}")
        P(f"global_load_dword v{V_DUM}, v{V_T}, {sr(S_B2)}")
    pass
    for it in dma_a(1): P.add(it)
    s1_read_addr(P, o)
    for it in dma_a(2): P.add(it)
    P.wait_vm('da0')
    P("s_waitcnt lgkmcnt(0)")
    P("s_barrier")
    stamp(P, o, 's1_first')
    P.add(reads_a(0))
    for c in range(4): H.put('m', merge_salu(dma_a(c + 3)), 12 * c + 9, 12 * c + 21)
    H.put('m', merge_salu([it for n in range(o.nba) for it in dma_b(n)]), 57, o.bq_end)
    for g in range(28):
        c, s = g >> 2, g & 3
        base = FR + 16 * (g & 1)
        if s == 3 and c < 6:
            P("s_waitcnt lgkmcnt(0)")
            P.wait_vm(f'da{c+1}')
            P("s_barrier")
            if o.trunc: stamp(P, o, f'a{c}')
        rd = reads_a(g + 1) if g < 27 else []
        per = [4, 3, 0] if s == 2 else [3, 2, 2]
        for t in range(3):
            P(mfma(ACC_Q + 16 * t, base + 4 * t, ('a', 4 * g), None if g == 0 else ACC_Q + 16 * t))
            P.add(rd[:per[t]]); rd = rd[per[t]:]
            P.add(H.emit(3 * g + t))
    P("s_waitcnt lgkmcnt(0)")
    P.wait_vm('db0')
    P("s_barrier")
    stamp(P, o, 'pass_a')
    P.add(reads_b(0))

def pass_b(P, o, H):
    for g in range(28):
        c, s = g >> 2, g & 3
        base = FR + 16 * (g & 1)
        if s == 3 and c < 6:
            P("s_waitcnt lgkmcnt(0)")
            P.wait_vm(f'db{c+1}')
            P("s_barrier")
            if o.trunc: stamp(P, o, f'b{c}')
        rd = reads_b(g + 1) if g < 27 else []
        per = [3, 3, 2, 0] if s == 2 else [2, 2, 2, 2]
        for t in range(4):
            P(mfma(ACC_F + 16 * t, base + 4 * t, ('a', 4 * g), ACC_F + 16 * t))
            P.add(rd[:per[t]]); rd = rd[per[t]:]
            P.add(H.emit(4 * g + t))

def qkv_epilogue(P, o, extra):
    c = (28.0 ** -0.5) * math.log2(math.e)
    P(f"s_mov_b32 s{S_T2}, {hex(f2u(c))}")
    for t in range(3):
        acc = ACC_Q + 16 * t
        P(f"s_cmp_lt_u32 s{S_B3}, {14 - t}")
        P(f"s_cbranch_scc0 L_nosc{t}")
        for i in range(8):
            P(f"v_pk_mul_f32 {vr(acc+2*i,2)}, {vr(acc+2*i,2)}, s[{S_T2}:{S_T3}] op_sel_hi:[1,0]")
        P(f"L_nosc{t}:")
        p = GT + 8 * t
        for i in range(8):
            if t == 0 and extra and i % 2 == 0: P.add(extra.pop(0))
            P(f"v_cvt_pk_bf16_f32 v{p+i}, v{acc+2*i}, v{acc+2*i+1}")
        while t == 0 and extra: P.add(extra.pop(0))
        for h in range(2):
            P(f"v_permlane32_swap_b32 v{p+4*h}, v{p+4*h+2}")
            P(f"v_permlane32_swap_b32 v{p+4*h+1}, v{p+4*h+3}")
        for h in range(2):
            off = t * 2048 + h * 1024
            P(f"buffer_store_dwordx4 {vr(p+4*h,4)}, v{V_L16H if off >= 4096 else V_L16}, {sr(SRD_WS,4)}, s{S_QST} offen offset:{off & 4095} {SC}", tag='qst')

def gelu_tile(F):
    u = ACC_F + 16 * F
    t = GT + 16 * (F & 1)
    pk = [192, 204, t, t][F]
    L = []
    pr = lambda b, i: vr(b + 2 * i, 2)
    for i in range(8): L.append(f"v_pk_mul_f32 {pr(t,i)}, {pr(u,i)}, {pr(u,i)}")
    for i in range(8): L.append(f"v_pk_fma_f32 {pr(t,i)}, {pr(t,i)}, {vr(V_CA,2)}, {vr(V_CB,2)} op_sel_hi:[1,0,0]")
    for i in range(8): L.append(f"v_pk_mul_f32 {pr(t,i)}, {pr(t,i)}, {pr(u,i)}")
    for i in range(16): L.append(f"v_exp_f32 v{t+i}, v{t+i}")
    for i in range(8): L.append(f"v_pk_add_f32 {pr(t,i)}, {pr(t,i)}, 1.0 op_sel_hi:[1,0]")
    for i in range(16): L.append(f"v_rcp_f32 v{t+i}, v{t+i}")
    for i in range(8): L.append(f"v_pk_mul_f32 {pr(t,i)}, {pr(t,i)}, {pr(u,i)}")
    for i in range(8): L.append(f"v_cvt_pk_bf16_f32 v{pk+i}, v{t+2*i}, v{t+2*i+1}")
    for h in range(2):
        off = (2 * F + h) * 1024
        L.append((f"buffer_store_dwordx4 {vr(pk+4*h,4)}, v{V_L16H if off >= 4096 else V_L16}, {sr(SRD_WS,4)}, s{S_HST} offen offset:{off & 4095} {SC}", 'hst'))
    return L

def prep(P, o):
    T = V_T
    if o.slim: setup_rest(P, o, False)
    if o.stamps: P(f"v_mov_b32 v{V_ST}, 0")
    common2(P, o)
    srd_rest(P, [(SRD_WS, WS_SIZE)])
    P(f"v_lshlrev_b32 v{V_L128}, 7, v{V_LANE}")
    P(f"s_mov_b32 s{S_SPARE}, 1")
    P(f"s_lshl_b32 s{S_M4}, s{S_WAVE}, 12")
    P(f"v_lshrrev_b32 v{T}, 2, v{V_LANE}")
    P(f"s_lshl2_add_u32 s{S_T0}, s{S_R}, s{S_WAVE}")
    P(f"s_lshl_b32 s{S_T0}, s{S_T0}, 4")
    P(f"v_add_u32 v20, s{S_T0}, v{T}")
    P(f"v_mul_u32_u24 v{T}, 896, v20")
    P(f"v_and_b32 v{T+1}, 3, v{V_LANE}")
    P(f"v_lshlrev_b32 v{T+1}, 4, v{T+1}")
    P(f"v_add_u32 v{T}, v{T}, v{T+1}")
    P("s_waitcnt lgkmcnt(0)")
    if o.stamps: P(f"v_writelane_b32 v{V_ST}, s94, 0")
    P(f"s_load_dword s{S_TAG}, {sr(SRD_WS)}, {WS_E}")
    P(f"s_mov_b64 {sr(SRD_W2)}, {sr(S_W2)}")
    if o.sp:
        P(f"s_load_dword s{S_MASK}, {sr(S_B1)}, 0")
        P(f"s_load_dword s{S_MASK+1}, {sr(S_B2)}, 0")
        P(f"s_load_dword s{S_MASK+2}, {sr(SRD_OUT)}, 0")
        P(f"s_lshl2_add_u32 s{S_T0}, s{S_RBL}, s{S_WAVE}")
        P(f"s_lshl_b32 s{S_T0}, s{S_T0}, 20")
        P(f"s_load_dword s{S_MASK+3}, {sr(SRD_WS)}, s{S_T0}")
    def mallwarm():
        P(f"s_lshl2_add_u32 s{S_T4}, s{S_R}, s{S_WAVE}")
        P(f"s_lshl_b32 s{S_T0}, s{S_T4}, 13")
        P(f"s_add_u32 s{S_T1}, s{S_T0}, 0x100000")
        if o.xw:
            k0 = o.xw
            srd_rest(P, [(SRD_WQ, 448*2688)])
            P(f"v_lshrrev_b32 v{T+2}, 2, v{V_LANE}")
            P(f"v_mul_u32_u24 v{T+2}, 896, v{T+2}")
            P(f"v_and_b32 v{T+3}, 3, v{V_LANE}")
            P(f"v_lshl_add_u32 v{T+2}, v{T+3}, 7, v{T+2}")
            P(f"s_mul_i32 s{S_T2}, s{S_T4}, {16*896}")
            P(f"buffer_load_dword v178, v{T+2}, {sr(SRD_X,4)}, s{S_T2} offen offset:{3*128}")
            P(f"s_add_u32 s{S_T2}, s{S_T0}, {k0*64*2688}")
            P(f"buffer_load_dword v179, v{V_L128}, {sr(SRD_WQ,4)}, s{S_T2} offen")
        srd_rest(P, [(SRD_W1, 448*3584), (SRD_W2, 1792*896), (SRD_WQ, 448*896)])
        P(f"s_mov_b64 {sr(SRD_WQ)}, {sr(S_WO)}")
        for i, (d, so) in enumerate(((SRD_W1, S_T0), (SRD_W1, S_T1), (SRD_W2, S_T0), (SRD_W2, S_T1), (SRD_WQ, S_T0))):
            P(f"buffer_load_dword v{180+i}, v{V_L128}, {sr(d,4)}, s{so} offen")
    if o.mw == 1: mallwarm()
    if o.pw & 1:
        P(f"v_lshlrev_b32 v{T+3}, 20, v{V_LANE}")
        P(f"buffer_load_dword v177, v{T+3}, {sr(SRD_WS,4)}, 0 offen")
    def touches():
        for i in range(o.wsp):
            P(f"s_lshl2_add_u32 s{S_T4}, s{S_RBL}, s{S_WAVE}")
            P(f"s_add_u32 s{S_T4}, s{S_T4}, {16*i}")
            P(f"s_lshr_b32 s{S_T0}, s{S_T4}, 2")
            P(f"s_lshl_b32 s{S_T0}, s{S_T0}, 13")
            P(f"s_mul_i32 s{S_T1}, s{S_WAVE}, {448*896}")
            P(f"s_add_u32 s{S_T0}, s{S_T0}, s{S_T1}")
            P(f"s_add_u32 s{S_T0}, s{S_T0}, {128*896}")
            if 16 * i + 15 < 140:
                P(f"buffer_load_dword v{160+i}, v{V_L128}, {sr(SRD_W2,4)}, s{S_T0} offen")
            else:
                P(f"s_sub_u32 s{S_T1}, s{S_T4}, 140")
                P(f"s_cbranch_scc0 L_tw{i}")
                P(f"buffer_load_dword v{160+i}, v{V_L128}, {sr(SRD_W2,4)}, s{S_T0} offen")
                P(f"s_branch L_tj{i}")
                P(f"L_tw{i}:")
                P(f"s_lshl_b32 s{S_T1}, s{S_T1}, 13")
                P(f"buffer_load_dword v{190+i}, v{V_L128}, {sr(SRD_WQ,4)}, s{S_T1} offen")
                P(f"L_tj{i}:")
                P.L.append(Pseudo('drop_vm'))
        if o.fine:
            P("s_waitcnt vmcnt(0)"); stamp(P, o, 'p_warm')
    if o.wfirst: touches()
    for i in range(14):
        P(f"buffer_load_dwordx4 {vr(32+4*i,4)}, v{T}, {sr(SRD_X,4)}, 0 offen offset:{64*i}")
        P(f"global_load_dwordx4 {vr(96+4*i,4)}, v{T+1}, {sr(S_GW)} offset:{64*i}")
    if o.mw == 2: mallwarm()
    P.add(TAGOPS)
    P("v_mov_b32 v24, 0")
    P("v_mov_b32 v25, 0")
    for i in range(56):
        P(f"v_dot2_f32_bf16 v{24+(i&1)}, v{32+i}, v{96+i}, v{24+(i&1)}")
    P("s_nop 2")
    P("v_add_f32 v24, v24, v25")
    P("v_add_f32_dpp v24, v24, v24 quad_perm:[1,0,3,2] row_mask:0xf bank_mask:0xf")
    P("v_add_f32_dpp v24, v24, v24 quad_perm:[2,3,0,1] row_mask:0xf bank_mask:0xf")
    P(f"v_mul_f32 v24, {hex(f2u(-math.log2(math.e)))}, v24")
    P("v_exp_f32 v24, v24")
    P("v_add_f32 v24, 1.0, v24")
    P("v_rcp_f32 v24, v24")
    P(f"v_lshlrev_b32 v20, 2, v20")
    P(f"v_and_b32 v25, 3, v{V_LANE}")
    P(f"v_cmp_eq_u32 vcc, 0, v25")
    P(f"v_mov_b32 v27, 0x7fff0000")
    P(f"v_cndmask_b32 v20, v27, v20, vcc")
    P(f"s_mov_b32 s{S_T0}, {G_OFF}")
    P(f"buffer_store_dword v24, v20, {sr(SRD_WS,4)}, s{S_T0} offen {SC}")
    P("s_waitcnt vmcnt(0) lgkmcnt(0)")
    P("s_barrier")
    P(f"s_lshl_b32 s{S_T0}, s{S_R}, 7")
    P(f"s_add_u32 s{S_T0}, s{S_T0}, {FL_G}")
    P(f"s_cmp_eq_u32 s{S_WAVE}, 0")
    P("s_cbranch_scc0 L_prep_nf")
    P.add(flag_store(S_T0))
    P("L_prep_nf:")
    stamp(P, o, 'p_flag')
    if not o.wfirst: touches()

AQ = 16
AK = 24
AV = 40
AS = 56
AN = 104
AO = 120
AP = 136
AM = 236
A_KR, A_VR = 244, 245
A_KD, A_VD = 247, 248
A_PA, A_PV = 250, 251
A_G = 254
A_MX = 5

def att_scalars(P, o):
    P(f"s_and_b32 s{S_ARB}, s{S_SLOT}, 15")
    P(f"s_lshr_b32 s{S_J}, s{S_SLOT}, 4")
    P(f"s_lshl1_add_u32 s{S_J}, s{S_XCD}, s{S_J}")
    P(f"s_lshl2_add_u32 s{S_ATB}, s{S_ARB}, s{S_WAVE}")
    P(f"s_and_b32 s{S_PAR}, s{S_J}, 1")
    P(f"s_lshl4_add_u32 s{S_T0}, s{S_ATB}, s{S_J}")
    P(f"s_lshl_b32 s{S_T0}, s{S_T0}, 7")
    P(f"s_add_u32 s{S_OFL}, s{S_T0}, {FL_O}")
    P(f"s_mul_i32 s{S_T2}, s{S_ATB}, {A_TB}")
    P(f"s_lshl_b32 s{S_T3}, s{S_J}, 11")
    P(f"s_add_u32 s{S_T2}, s{S_T2}, s{S_T3}")
    P(f"s_add_u32 s{S_OST}, s{S_T2}, {A_OFF + 112*1024}")

def att_poll_addr(P, o):
    T = V_T
    P(f"v_min_u32 v{T}, 13, v{V_LANE}")
    P(f"v_lshrrev_b32 v{T+1}, 1, v{T}")
    P(f"v_and_b32 v{T}, 1, v{T}")
    P(f"s_mul_i32 s{S_T0}, s{S_J}, 7")
    P(f"s_lshr_b32 s{S_T0}, s{S_T0}, 1")
    P(f"s_lshl_b32 s{S_T0}, s{S_T0}, 3")
    P(f"v_mad_u32_u24 v{T}, v{T}, 31, s{S_T0}")
    P(f"v_mov_b32 v{T+2}, 896")
    P(f"v_mov_b32 v{T+3}, 448")
    P(f"v_subrev_u32 v{T+4}, 3, v{T+1}")
    P(f"v_cmp_gt_u32 vcc, 3, v{T+1}")
    P(f"v_cndmask_b32 v{T+2}, v{T+2}, v{T+3}, vcc")
    P(f"v_cndmask_b32 v{T+3}, v{T+4}, v{T+1}, vcc")
    P(f"s_mul_i32 s{S_T1}, s{S_WAVE}, 3")
    P(f"s_lshl2_add_u32 s{S_T1}, s{S_ARB}, s{S_T1}")
    P(f"s_sub_u32 s{S_T1}, s{S_T1}, 8")
    P(f"v_add_u32 v{T+3}, s{S_T1}, v{T+3}")
    P(f"v_max_i32 v{T+3}, 0, v{T+3}")
    P(f"v_mov_b32 v{T+4}, s{S_ATB}")
    P(f"v_cmp_eq_u32 vcc, 6, v{T+1}")
    P(f"v_cndmask_b32_e64 v{T+2}, v{T+2}, 0, vcc")
    P(f"v_cndmask_b32 v{T+3}, v{T+3}, v{T+4}, vcc")
    P(f"v_add_u32 v{T}, v{T}, v{T+2}")
    P(f"v_mul_u32_u24 v{T}, 683, v{T}")
    P(f"v_lshrrev_b32 v{T}, 16, v{T}")
    P(f"v_lshl_add_u32 v{T}, v{T+3}, 4, v{T}")
    P(f"v_lshlrev_b32 v{T}, 7, v{T}")
    P(f"v_add_u32 v{V_PA}, {FL_QKV}, v{T}")

def gate_flags(P, o, reg):
    P(f"s_lshr_b32 s{S_T0}, s{S_ATB}, 1")
    P(f"s_lshl_b32 s{S_T0}, s{S_T0}, 7")
    P(f"s_add_u32 s{S_T0}, s{S_T0}, {FL_G}")
    P(f"s_lshl_b32 s{S_T1}, s{S_R}, 7")
    P(f"s_add_u32 s{S_T1}, s{S_T1}, {FL_G}")
    P(f"v_writelane_b32 v{reg}, s{S_T0}, 14")
    P(f"v_writelane_b32 v{reg}, s{S_T1}, 15")

def att_addr(P, o):
    T = V_T
    P(f"s_mul_i32 s{S_T0}, s{S_J}, 7")
    P(f"s_lshr_b32 s{S_T0}, s{S_T0}, 1")
    P(f"s_lshl_b32 s{S_T4}, s{S_T0}, 9")
    P(f"s_add_u32 s{S_T1}, s{S_T4}, {56*512}")
    P(f"v_add_u32 v{A_KD}, s{S_T1}, v{V_L16}")
    P(f"v_lshrrev_b32 v{T}, 5, v{V_LANE}")
    P(f"v_and_b32 v{T+1}, 31, v{V_LANE}")
    P(f"s_add_u32 s{S_T1}, s{S_T4}, {112*512 - 2048}")
    P(f"v_lshlrev_b32 v{T+2}, 2, v{T}")
    P(f"v_xor_b32 v{T+2}, v{T+2}, v{T+1}")
    P(f"v_lshlrev_b32 v{T+2}, 4, v{T+2}")
    P(f"v_lshl_add_u32 v{T+2}, v{T}, 9, v{T+2}")
    P(f"v_add_u32 v{A_VD}, s{S_T1}, v{T+2}")
    P(f"v_xor_b32 v{A_VD+1}, 128, v{A_VD}")
    P(f"v_add_u32 v{A_KR}, s{S_M4}, v{V_L16}")
    P(f"v_bfe_u32 v{T+1}, v{V_LANE}, 4, 1")
    P(f"v_bfe_u32 v{T+2}, v{V_LANE}, 1, 1")
    P(f"v_lshl_add_u32 v{T+3}, v{T+1}, 1, v{T+2}")
    P(f"v_lshlrev_b32 v{T+4}, 9, v{T+3}")
    P(f"v_xor_b32 v{T+3}, v{T+3}, v{T}")
    P(f"v_lshl_add_u32 v{T+4}, v{T+3}, 6, v{T+4}")
    P(f"v_bfe_u32 v{T+3}, v{V_LANE}, 2, 2")
    P(f"v_lshl_add_u32 v{T+4}, v{T+3}, 4, v{T+4}")
    P(f"v_and_b32 v{T+3}, 1, v{V_LANE}")
    P(f"v_lshl_add_u32 v{T+4}, v{T+3}, 3, v{T+4}")
    P(f"s_add_u32 s{S_T1}, s{S_M4}, 2048")
    P(f"v_add_u32 v{A_VR}, s{S_T1}, v{T+4}")
    P(f"v_xor_b32 v{A_VR+1}, 128, v{A_VR}")
    P(f"v_and_b32 v{T+1}, 31, v{V_LANE}")
    P(f"v_mul_u32_u24 v{T+2}, 12, v{T}")
    P(f"s_cmp_eq_u32 s{S_PAR}, 0")
    P(f"s_cselect_b32 s{S_T1}, -1, 0")
    P(f"s_cselect_b32 s{S_T2}, 1544, 0")
    P(f"v_and_b32 v{T+2}, s{S_T1}, v{T+2}")
    P(f"v_xor_b32 v{T+1}, v{T+1}, v{T+2}")
    P(f"v_lshlrev_b32 v{T+1}, 4, v{T+1}")
    P(f"v_lshl_add_u32 v{T+1}, v{T}, 11, v{T+1}")
    P(f"s_mul_i32 s{S_T3}, s{S_WAVE}, {3*4096}")
    P(f"s_add_u32 s{S_T2}, s{S_T2}, s{S_T3}")
    P(f"v_add_u32 v{A_PA}, s{S_T2}, v{T+1}")
    P(f"s_mul_i32 s{S_T1}, s{S_WAVE}, 3")
    P(f"s_lshl2_add_u32 s{S_T1}, s{S_ARB}, s{S_T1}")
    P(f"v_mov_b32 v{T+1}, 0x3f80")
    for k in range(3):
        P(f"s_add_u32 s{S_T2}, s{S_T1}, {k}")
        P(f"s_cmp_lt_u32 s{S_T2}, 8")
        P(f"s_cselect_b32 s{S_T2}, 0xf14a, 0")
        P(f"v_mov_b32 v{A_PV+k}, s{S_T2}")
    P(f"v_cmp_gt_u32 vcc, 32, v{V_LANE}")
    for k in range(3): P(f"v_cndmask_b32 v{A_PV+k}, v{T+1}, v{A_PV+k}, vcc")

def att_masks(P, o):
    T = V_T
    P(f"v_lshrrev_b32 v{T+1}, 5, v{V_LANE}")
    P(f"v_mul_u32_u24 v{T+1}, 36, v{T+1}")
    P(f"v_sub_u32 v{T+1}, v{V_LANE}, v{T+1}")
    for r in range(16):
        P(f"v_cmp_le_i32_e64 {sr(S_MASK+2*r)}, {(r & 3) + 8 * (r >> 2)}, v{T+1}")
    P(f"v_mov_b32 v{T+1}, 0xffff")
    P(f"v_mov_b32 v{T+2}, 0xffff0000")
    for i in range(8):
        P(f"v_cndmask_b32_e64 v{T+3}, 0, v{T+1}, {sr(S_MASK+4*i)}")
        P(f"v_cndmask_b32_e64 v{T+4}, 0, v{T+2}, {sr(S_MASK+4*i+2)}")
        P(f"v_or_b32 v{AM+i}, v{T+3}, v{T+4}")

def att_kvoff(P, o):
    P(f"s_mul_i32 s{S_T1}, s{S_WAVE}, 3")
    P(f"s_lshl2_add_u32 s{S_T1}, s{S_ARB}, s{S_T1}")
    for k in range(3):
        P(f"s_add_i32 s{S_T2}, s{S_T1}, {k-8}")
        P(f"s_max_i32 s{S_T2}, s{S_T2}, 0")
        P(f"s_mul_i32 s{S_T2}, s{S_T2}, {QKV_TB}")
        P(f"s_add_u32 s{S_KV[k]}, s{S_T2}, {QKV_OFF}")
    P(f"s_mul_i32 s{S_T0}, s{S_J}, 7")
    P(f"s_lshr_b32 s{S_T0}, s{S_T0}, 1")
    P(f"s_lshl_b32 s{S_T0}, s{S_T0}, 9")
    P(f"s_mul_i32 s{S_T2}, s{S_ATB}, {QKV_TB}")
    P(f"s_add_u32 s{S_T2}, s{S_T2}, s{S_T0}")
    P(f"s_add_u32 s{S_KV[3]}, s{S_T2}, {QKV_OFF}")

def att_loads(o, last_g=True):
    T = V_T
    L = [[f"s_mul_i32 s{S_T3}, s{S_WAVE}, {3*4096}"]]
    for k in range(3):
        g = [f"s_add_u32 m0, s{S_T3}, {LKV + k*4096}"]
        for t in range(2):
            g.append((f"buffer_load_dwordx4 v{A_KD}, {sr(SRD_WS,4)}, s{S_KV[k]} offen offset:{t*1024} {SC} lds", 'kv'))
        for t in range(2):
            g.append((f"buffer_load_dwordx4 v{A_VD+t}, {sr(SRD_WS,4)}, s{S_KV[k]} offen offset:{2048+t*1024} {SC} lds", 'kv'))
        L += [[x] for x in g]
    for t in range(2):
        L.append([f"buffer_load_dwordx4 {vr(AQ+4*t,4)}, v{V_L16}, {sr(SRD_WS,4)}, s{S_KV[3]} offen offset:{t*1024} {SC}"])
    G = [f"v_and_b32 v{T+1}, 31, v{V_LANE}", f"v_lshlrev_b32 v{T+1}, 2, v{T+1}",
         f"s_lshl_b32 s{S_T2}, s{S_ATB}, 7", f"s_add_u32 s{S_T2}, s{S_T2}, {G_OFF}",
         f"buffer_load_dword v{A_G}, v{T+1}, {sr(SRD_WS,4)}, s{S_T2} offen {SC}"]
    if last_g:
        G += [f"s_and_b32 s{S_T1}, s{S_WAVE}, 1", f"s_lshl_b32 s{S_T0}, s{S_R}, 8", f"s_add_u32 s{S_T0}, s{S_T0}, {G_OFF}",
              f"s_lshl_b32 s{S_T2}, s{S_T1}, 7", f"s_xor_b32 s{S_T3}, s{S_T2}, 128", f"s_add_u32 s{S_T2}, s{S_T2}, s{S_T0}",
              f"s_add_u32 s{S_T3}, s{S_T3}, s{S_T0}",
              f"buffer_load_dword v{L_G}, v{T+1}, {sr(SRD_WS,4)}, s{S_T3} offen {SC}",
              f"buffer_load_dword v{L_G+1}, v{T+1}, {sr(SRD_WS,4)}, s{S_T2} offen {SC}"]
    return L + [[x] for x in G]

def att_patch():
    T = V_T
    L = [[WVM('kv')]]
    L += [[f"ds_write_b16 v{A_PA}, v{A_PV+k} offset:{LKV + k*4096}"] for k in range(3)]
    L += [[f"s_cmp_eq_u32 s{S_PAR}, 0\ns_cselect_b32 s{S_T0}, 0, -1\ns_cselect_b32 s{S_T3}, -1, 0"],
          [f"s_mov_b32 s{S_T1}, 0"], [f"s_mov_b32 s{S_T2}, 0"], [f"v_mov_b32 v{T}, 0x3f80"],
          [f"v_cndmask_b32_e64 v{AQ}, v{AQ}, v{T}, {sr(S_T0)}"], [f"v_cndmask_b32_e64 v{AQ+1}, v{AQ+1}, 0, {sr(S_T0)}"],
          [f"v_cndmask_b32_e64 v{AQ+6}, v{AQ+6}, v{T}, {sr(S_T2)}"], [f"v_cndmask_b32_e64 v{AQ+7}, v{AQ+7}, 0, {sr(S_T2)}"]]
    return L

ORDER = [0, 8, 1, 2, 3, 4, 5, 6, 7]
def kread(i, buf):
    return [f"ds_read_b128 {vr(AK+8*buf+4*t,4)}, v{A_KR} offset:{LKV + i*4096 + t*1024}" for t in range(2)]
def vread(i, buf):
    return [f"ds_read_b64_tr_b16 {vr(AV+8*buf+4*t+2*rho,2)}, v{A_VR+rho} offset:{LKV + i*4096 + t*256}" for t in range(2) for rho in range(2)]

def attention(P, o, hooks, kpre=False):
    T = V_T
    order = ORDER
    stamp(P, o, 'att_go')
    gi = [0]
    def hk():
        gi[0] += 1
        return [Slot(f'a{gi[0] - 1}')] if hooks is None else []
    if not kpre: P.add(kread(order[0], 0)); P.add(kread(order[1], 1))
    SM = AS + 16
    buf1 = [AS, SM, AS + 32, AO, AS, AS + 32, AO, AS, AS + 32]
    def qkx(s, kbuf, c): return [mfma(s, AK + 8 * kbuf, AQ, c), mfma(s, AK + 8 * kbuf + 4, AQ + 4, s)]
    def maxops(s, first=False):
        return [f"v_max_f32 v{A_MX}, v{s}, v{s+1}" if (first and i == 0) else f"v_max3_f32 v{A_MX}, v{s+2*i}, v{s+2*i+1}, v{A_MX}" for i in range(8)]
    merge = [f"v_cndmask_b32_e64 v{SM+r}, v{AS+r}, v{SM+r}, {sr(S_MASK+2*r)}" for r in range(16)]
    for n in range(9):
        m = qkx(buf1[n], n & 1, None)
        post = []
        if n == 3: post = merge
        if n == 4: post = maxops(SM, True) + maxops(buf1[2])
        if n >= 5: post = maxops(buf1[n - 2])
        nxt = kread(order[n + 2 if n + 2 < 9 else n - 5], n & 1)
        h = len(post) // 2
        P.add([m[0]] + hk() + post[:h] + [m[1]] + nxt + (vread(0, 0) + vread(8, 1) if n == 8 else []) + hk() + post[h:])
    P.add(maxops(buf1[7]))
    P.add(maxops(buf1[8]))
    P(f"v_mov_b32 v{T}, v{A_MX}")
    P(f"v_permlane32_swap_b32 v{A_MX}, v{T}")
    P(f"v_max_f32 v{A_MX}, v{A_MX}, v{T}")
    P(f"v_sub_f32 v{AN}, 0, v{A_MX}")
    P(f"v_sub_f32 v{AN+1}, 0, v{A_MX}")
    for i in range(1, 8): P(f"v_mov_b64 {vr(AN+2*i,2)}, {vr(AN,2)}")
    stamp(P, o, 'att_p1')
    kb = lambda n: (n + 1) & 1
    buf2 = lambda n: AS + 16 * [0, 2, 1][(n - 2) % 3]
    def expcvt(s, p):
        L = []
        for i in range(8):
            L += [f"v_exp_f32 v{s+2*i}, v{s+2*i}", f"v_exp_f32 v{s+2*i+1}, v{s+2*i+1}"]
            if i >= 1: L.append(f"v_cvt_pk_bf16_f32 v{p+i-1}, v{s+2*i-2}, v{s+2*i-1}")
        L.append(f"v_cvt_pk_bf16_f32 v{p+7}, v{s+14}, v{s+15}")
        return L
    def pv(p, vbuf, first=False):
        return [mfma(AO, AV + 8 * vbuf, p, None if first else AO), mfma(AO, AV + 8 * vbuf + 4, p + 4, AO)]
    m2 = qkx(buf2(2), kb(2), AN); m3 = qkx(buf2(3), kb(3), AN)
    sub = [f"v_sub_f32 v{SM+r}, v{SM+r}, v{A_MX}" for r in range(16)]
    ec = expcvt(SM, AP)
    sp = []
    for i in range(8):
        sp += [f"v_and_b32 v{AP+8+i}, v{AP+i}, v{AM+i}", f"v_xor_b32 v{AP+16+i}, v{AP+i}, v{AP+8+i}"]
    P.add([m2[0]] + hk() + sub[:8] + [m2[1]] + kread(order[4], kb(4)) + hk() + sub[8:] + [m3[0]] + hk() + ec[:5] +
          [m3[1]] + kread(order[5], kb(5)) + hk() + ec[5:] + sp)
    pend = pv(AP + 16, 0, True) + pv(AP + 8, 1)
    pend_rd = vread(order[2], 0) + vread(order[3], 1)
    for n in range(2, 9):
        p = AP + 16 if n == 3 else (AP if (n & 1) == 0 else AP + 8)
        ec = expcvt(buf2(n), p)
        mq = qkx(buf2(n + 2), kb(n + 2), AN) if n + 2 < 9 else []
        kr = kread(order[n + 4], kb(n + 4)) if n + 4 < 9 else []
        ms = pend + mq
        seq = []
        k = len(ms)
        step = max(1, len(ec) // max(k, 1))
        ei = 0
        for j, mm in enumerate(ms):
            seq.append(mm)
            if j == len(pend) - 1: seq += pend_rd
            if j == k - 1 and mq: seq += kr
            seq += hk()
            take = ec[ei:ei + step] if j < k - 1 else ec[ei:]
            seq += take; ei += len(take)
        P.add(seq)
        vb = n & 1
        pend = pv(p, vb)
        pend_rd = vread(order[n + 2], vb) if n + 2 < 9 else []
    P.add([pend[0]] + hk() + [pend[1]] + hk())
    stamp(P, o, 'att_p2')

def att_epilogue(P, o):
    T = V_T
    P(f"s_cmp_eq_u32 s{S_PAR}, 0")
    P(f"s_cselect_b64 {sr(S_T0)}, -1, 0")
    P(f"s_cselect_b32 s{S_MASK}, 0, -1")
    P(f"s_cselect_b32 s{S_MASK+3}, -1, 0")
    P(f"s_mov_b32 s{S_MASK+1}, 0")
    P(f"s_mov_b32 s{S_MASK+2}, 0")
    P(f"v_cndmask_b32_e64 v{T}, v{AO}, v{AO+12}, {sr(S_T0)}")
    P(f"v_mov_b32 v{T+1}, v{T}")
    P(f"v_permlane32_swap_b32 v{T}, v{T+1}")
    P(f"v_cndmask_b32_e64 v{T}, v{T}, v{T+1}, {sr(S_T0)}")
    P(f"v_rcp_f32 v{T}, v{T}")
    P(f"v_mul_f32 v{T+1}, v{T}, v{A_G}")
    for t in range(2):
        for i in range(8 * t, 8 * t + 8): P(f"v_mul_f32 v{AO+i}, v{T+1}, v{AO+i}")
        for i in range(4 * t, 4 * t + 4): P(f"v_cvt_pk_bf16_f32 v{AP+i}, v{AO+2*i}, v{AO+2*i+1}")
        for r in ((0, 1), (6, 7))[t]: P(f"v_cndmask_b32_e64 v{AP+r}, v{AP+r}, 0, {sr(S_MASK + 2*t)}")
        P(f"buffer_store_dwordx4 {vr(AP+4*t,4)}, v{V_L16}, {sr(SRD_WS,4)}, s{S_OST} offen offset:{t*1024} {SC}", tag='ost')

LACC = 16
EARLY = [('a', r) for r in range(32, 112, 4)] + list(range(160, 200, 4)) + list(range(204, 216, 4))
LATE = list(range(80, 120, 4)) + list(range(144, 160, 4)) + list(range(236, 252, 4)) + list(range(120, 144, 4))

def last_baddr(P, o):
    T = V_T
    P(f"s_mov_b64 {sr(SRD_W2)}, {sr(S_W2)}")
    srd_rest(P, [(SRD_W2, 1792*896)])
    P(f"s_mul_i32 s{S_BOF}, s{S_WAVE}, {448*896}")
    P(f"s_lshl_b32 s{S_T3}, s{S_C}, 7")
    P(f"s_add_u32 s{S_BOF}, s{S_BOF}, s{S_T3}")
    if ROT[0]:
        P(f"s_add_u32 s{S_AG}, s{S_C}, s{S_RBL}")
        if o.rcls == 2: P(f"s_and_b32 s{S_AG}, s{S_AG}, 1")
        else:
            P(f"s_lshl_b32 s{S_AG}, s{S_AG}, 1")
            P(f"s_lshr_b32 s{S_AG}, 0x24924, s{S_AG}")
            P(f"s_and_b32 s{S_AG}, s{S_AG}, 3")
        P(f"s_mul_i32 s{S_AG}, s{S_AG}, {ROT[0]}")
        P(f"s_lshl_b32 s{S_BG}, s{S_AG}, 1")
        P(f"s_mul_i32 s{S_T3}, s{S_AG}, {64*896}")
        P(f"s_add_u32 s{S_BOF}, s{S_BOF}, s{S_T3}")
    P(f"v_lshrrev_b32 v{T}, 3, v{V_LANE}")
    P(f"v_bfe_u32 v{T+1}, v{V_LANE}, 4, 1")
    P(f"v_lshlrev_b32 v{T+1}, 2, v{T+1}")
    P(f"v_xor_b32 v{T+1}, v{T+1}, v{V_LANE}")
    P(f"v_and_b32 v{T+1}, 7, v{T+1}")
    P(f"v_mul_u32_u24 v{T}, 896, v{T}")
    P(f"v_lshl_add_u32 v{V_BA}, v{T+1}, 4, v{T}")
    for i in range(1, 4): P(f"v_add_u32 v{V_BA+i}, {i*(8*896-1024)}, v{V_BA}")
    P(f"v_bfe_u32 v{T}, v{V_LANE}, 2, 2")
    P(f"v_lshrrev_b32 v{T+1}, 5, v{V_LANE}")
    P(f"v_lshl_add_u32 v{T+1}, v{T+1}, 2, v{T}")
    P(f"v_lshlrev_b32 v{T+1}, 7, v{T+1}")
    P(f"v_bfe_u32 v{T+2}, v{V_LANE}, 4, 1")
    P(f"v_lshl_add_u32 v{T+1}, v{T+2}, 5, v{T+1}")
    P(f"v_and_b32 v{T+2}, 3, v{V_LANE}")
    P(f"v_lshl_add_u32 v{T+1}, v{T+2}, 3, v{T+1}")
    P(f"v_lshrrev_b32 v{T}, 1, v{T}")
    P(f"v_lshl_add_u32 v{T}, v{T}, 6, v{T+1}")
    P(f"v_add_u32 v{T}, s{S_M4}, v{T}")
    P(f"s_lshr_b32 s{S_T0}, s{S_WAVE}, 1")
    P(f"s_lshl_b32 s{S_T0}, s{S_T0}, 6")
    P(f"v_xor_b32 v{V_BR[0][1]}, s{S_T0}, v{T}")
    P(f"v_xor_b32 v{V_BR[0][0]}, 64, v{V_BR[0][1]}")
    for k in range(2): P(f"v_add_u32 v{V_BR[1][k]}, 0x10000, v{V_BR[0][k]}")

V_AT = 201
def last_baddr2(P, o):
    P(f"v_lshrrev_b32 v{V_T}, 5, v{V_LANE}")
    P(f"v_mul_u32_u24 v{V_T}, {A_TB - 4096}, v{V_T}")
    P(f"v_lshl_add_u32 v{V_T}, v{V_LANE}, 7, v{V_T}")
    P(f"s_lshl_b32 s{S_T0}, s{S_C}, 12")
    P(f"v_add_u32 v{V_AT}, s{S_T0}, v{V_T}")
    for k in range(2): P(f"v_add_u32 v{V_BR[2][k]}, 0x20000, v{V_BR[0][k]}")

def last_setup(P, o):
    T = V_T
    P(f"s_lshl_b32 s{S_T0}, s{S_C}, 7")
    P(f"v_and_b32 v{T}, 31, v{V_LANE}")
    if not o.eb:
        P(f"v_lshl_add_u32 v{T+1}, v{T}, 2, s{S_T0}")
        P(f"global_load_dword v{V_DUM}, v{T+1}, {sr(S_B2)}")
    P(f"s_and_b32 s{S_T1}, s{S_WAVE}, 1")
    P(f"s_mul_i32 s{S_T2}, s{S_T1}, {A_TB}")
    P(f"s_sub_u32 s{S_T3}, {A_TB}, s{S_T2}")
    P(f"v_add_u32 v{V_AA}, s{S_T3}, v{V_L16}")
    P(f"v_add_u32 v{V_AA+1}, s{S_T2}, v{V_L16}")
    P(f"v_and_b32 v{T+1}, 1, v{V_LANE}")
    P(f"s_lshl_b32 s{S_T0}, s{S_R}, 1")
    P(f"v_add_u32 v{T+1}, s{S_T0}, v{T+1}")
    P(f"v_lshlrev_b32 v{T+1}, 4, v{T+1}")
    P(f"v_bfe_u32 v{T+2}, v{V_LANE}, 1, 2")
    P(f"v_add_u32 v{T+1}, v{T+1}, v{T+2}")
    P(f"v_lshlrev_b32 v{T+1}, 7, v{T+1}")
    P(f"s_mul_i32 s{S_T0}, s{S_WAVE}, 7")
    P(f"s_lshr_b32 s{S_T0}, s{S_T0}, 1")
    P(f"s_lshl_b32 s{S_T0}, s{S_T0}, 7")
    P(f"s_add_u32 s{S_T0}, s{S_T0}, {FL_H}")
    P(f"v_add_u32 v{V_PH}, s{S_T0}, v{T+1}")
    P(f"s_lshl_b32 s{S_T0}, s{S_WAVE}, 9")
    P(f"s_add_u32 s{S_T0}, s{S_T0}, {FL_O}")
    P(f"v_add_u32 v{V_PO}, s{S_T0}, v{T+1}")
    for d in range(1, 4):
        P(f"s_xor_b32 s{S_T0}, s{S_WAVE}, {d}")
        P(f"s_lshl_b32 s{S_T0}, s{S_T0}, 12")
        P(f"s_add_u32 s{S_T0}, s{S_T0}, {LP[d]}")
        P(f"v_add_u32 v{L_RW+d-1}, s{S_T0}, v{V_L16}")
    P(f"s_add_u32 s{S_T0}, s{S_M4}, {LP[1]}")
    P(f"v_add_u32 v{L_RR}, s{S_T0}, v{V_L16}")
    P(f"s_lshl_b32 s{S_T0}, s{S_R}, 6")
    P(f"s_lshl_b32 s{S_T2}, s{S_T1}, 5")
    P(f"s_add_u32 s{S_T0}, s{S_T0}, s{S_T2}")
    P(f"v_add_u32 v{T+1}, s{S_T0}, v{T}")
    P(f"v_mul_u32_u24 v{T+1}, 896, v{T+1}")
    P(f"v_lshrrev_b32 v{T+2}, 5, v{V_LANE}")
    P(f"v_lshl_add_u32 v{T+1}, v{T+2}, 4, v{T+1}")
    P(f"s_lshl_b32 s{S_T0}, s{S_C}, 7")
    P(f"s_lshr_b32 s{S_T2}, s{S_WAVE}, 1")
    P(f"s_lshl_b32 s{S_T2}, s{S_T2}, 6")
    P(f"s_add_u32 s{S_T0}, s{S_T0}, s{S_T2}")
    P(f"v_add_u32 v{L_OA}, s{S_T0}, v{T+1}")

def last_soff(P, o):
    P(f"s_mul_i32 s{S_T0}, s{S_R}, {2*A_TB}")
    P(f"s_add_u32 s{S_T0}, s{S_T0}, {A_OFF}")
    P(f"s_lshl_b32 s{S_T2}, s{S_WAVE}, 13")
    P(f"s_add_u32 s{S_AO2}, s{S_T0}, s{S_T2}")
    P(f"s_add_u32 s{S_AO2}, s{S_AO2}, {112*1024}")
    P(f"s_mul_i32 s{S_T2}, s{S_WAVE}, {28*1024}")
    P(f"s_add_u32 s{S_AOF}, s{S_T0}, s{S_T2}")
    if ROT[0]:
        P(f"s_lshl_b32 s{S_T2}, s{S_AG}, 12")
        P(f"s_add_u32 s{S_AOF}, s{S_AOF}, s{S_T2}")
    P(f"s_mov_b64 {sr(SRD_WO)}, {sr(S_WO)}")
    P(f"s_mov_b32 s{SRD_WO+2}, {448*896}")
    P(f"s_mul_i32 s{S_BO}, s{S_WAVE}, {112*896}")
    P(f"s_lshl_b32 s{S_T3}, s{S_C}, 7")
    P(f"s_add_u32 s{S_BO}, s{S_BO}, s{S_T3}")

def bias2(P, o):
    P(f"s_add_u32 s{S_T0}, s{S_M4}, {LP[PIECE[11]]}")
    bias_expand(P, V_DUM, 12, L_BA, S_T0)
    P(f"s_lshr_b32 s{S_T2}, s{S_WAVE}, 1")
    P(f"s_lshl_b32 s{S_T2}, s{S_T2}, 7")
    P(f"v_add_u32 v{L_BA}, s{S_T2}, v{L_BA}")
    P(f"v_sub_f32 v{L_G}, 1.0, v{L_G}")
    P(f"v_sub_f32 v{L_G+1}, 1.0, v{L_G+1}")

def a_slots(o):
    ne = o.nearly * 2
    sl = EARLY[:ne] + LATE + EARLY[ne:]
    ring = len(sl) // 2 * 2
    return [sl[i % ring] for i in range(72)], ring // 2

def a_load(o, n):
    sl, _ = a_slots(o)
    so, m = (S_AOF, n) if n < 28 else (S_AO2, n - 28)
    L = [rot_step(so, S_AG, 4096, 7) if (ROT[0] and n < 28) else f"s_add_u32 s{so}, s{so}, 4096"] if (m and m % 4 == 0) else []
    for ttl in range(2):
        L.append((f"buffer_load_dwordx4 {xr(sl[2*n+ttl])}, v{V_AA+ttl}, {sr(SRD_WS,4)}, s{so} offen offset:{(m&3)*1024} {SC}", 'ald'))
    return L

def last(P, o):
    q = lambda ttl, ctl: LACC + 32 * ttl + 16 * ctl
    sl, depth = a_slots(o)
    mm = lambda n, ttl, ctl: mfma(q(ttl, ctl), breg(n, ctl), sl[2 * n + ttl], None if n == 0 else q(ttl, ctl))
    assert o.nearly > 0 and PIECE[11] not in (1, 2, 3)
    nxt = o.nearly
    D = Prog(); att_epilogue(D, o); epi = atomic_groups(D.L)
    if not o.epin:
        for g in epi: P.add(g)
        epi = []
        while nxt < max(o.lead, o.nearly): P.add(a_load(o, nxt)); nxt += 1
    EP = {}
    if epi: spread(EP, epi, list(range(o.epin)), False)
    stamp(P, o, 'last_go')
    opolled = False
    ol = lambda m, ttl: [(f"buffer_load_dwordx4 {xr(sl[2*(28+m)+ttl])}, v{V_AA+ttl}, {sr(SRD_WS,4)}, s{S_AO2 if m < 4 else S_BO} offen offset:{(m&3)*1024} {SC}", 'ald')]
    oq = [ol(m, ttl) for ttl in range(2) for m in range(8)]
    oq[0] = [f"s_add_u32 s{S_BO}, s{S_AO2}, 4096"] + oq[0]
    assert depth >= 36 - o.ocheck_at and not o.left
    sc = lambda ttl, ctl: [f"v_mul_f32 v{q(ttl,ctl)+i}, v{L_G+ttl}, v{q(ttl,ctl)+i}" for i in range(16)]
    D = Prog(); bias2(D, o); b2l = [[x] for x in D.L]
    for n in range(28):
        M = [mm(n, ttl, ctl) for ttl in range(2) for ctl in range(2)]
        ex = []; cnt = 0
        top = (36 if opolled else 28)
        if o.left and n < o.left_steps:
            k = -(-len(o.left) // (o.left_steps - n)); ex += o.left[:k]; o.left = o.left[k:]
        while nxt < min(n + min(depth, o.lead + 1), 28) and cnt < 2:
            ex += merge_salu([[e] for e in a_load(o, nxt)]); nxt += 1; cnt += 1
        if opolled and oq:
            k = -(-len(oq) // max(1, o.oend - n)); ex += oq[:k]; oq = oq[k:]
        if o.jit0 <= n < o.jit0 + 14 and not o.drop & 32:
            k = n - o.jit0 + 22
            ex += [[WVM(f'bp{k >> 1}')] + b_reads(k)[:2], b_reads(k)[2:]]
        if o.jit0 + 3 <= n < o.jit0 + 6: ex += b2l[((n - o.jit0 - 3) * len(b2l)) // 3:((n - o.jit0 - 2) * len(b2l)) // 3]
        if n == o.oflag_at and o.nearly > 0:
            D0 = Prog(); D1 = Prog()
            if o.fine: stamp(D0, o, 'of0'); stamp(D1, o, 'of1')
            ex = ex + [D0.L + [WVM('ost')] + D1.L + flag_store(S_OFL)]
        if n == o.opoll_at: ex += [poll_issue(V_PO)]
        if n == o.ocheck_at:
            D0 = Prog(); D1 = Prog()
            if o.fine: stamp(D0, o, 'oc0'); stamp(D1, o, 'oc1')
            ex = [D0.L + poll_check(V_PO) + D1.L] + ex; opolled = True
        if o.hst and n % 4 == 0 and n: stamp(P, o, f'h{n}')
        hh = {}
        isv = lambda it: any((isinstance(x, tuple) and x[0].startswith('buffer')) or (isinstance(x, str) and x.startswith('buffer')) for x in it)
        vm_ = [it for it in ex if isv(it) or any(isinstance(x, str) and 'cbranch' in x for x in it)]
        ot_ = [it for it in ex if it not in vm_]
        if vm_: spread(hh, vm_, list(o.apos) if len(vm_) <= 2 else [0, 1, 2, 3])
        if ot_: spread(hh, ot_, list(o.dpos))
        if n == o.bar_at: P("s_waitcnt lgkmcnt(0)"); P("s_barrier")
        if n == 26: M = [mm(26, 0, 0), mm(26, 0, 1), mm(27, 0, 0), mm(27, 0, 1)]
        if n == 27: M = [mm(26, 1, 0), mm(26, 1, 1), mm(27, 1, 0), mm(27, 1, 1)]
        for t in range(4):
            P.add([M[t]] + sum(hh.get(t, []), []) + sum(EP.get(4 * n + t, []), []))
            if n == 27 and t >= 1: P.add((sc(0, 0) + sc(0, 1))[[0, 0, 10, 21][t]:[0, 10, 21, 32][t]])
    stamp(P, o, 'last_h')
    for it in oq: P.add(it)
    used = set(sl[56:72])
    free = [r for r in sorted(x for x in set(sl) if not isinstance(x, tuple)) if r not in used]
    B2 = [r for r in free if all((r + 4 * k) in free for k in range(4))][0]
    for k in range(4): P(f"ds_read_b128 {vr(B2+4*k,4)}, v{L_BA} offset:{32*k}")
    rest = sc(1, 0) + [f"v_add_f32 v{q(1,1)+i}, v{q(1,1)+i}, v{B2+i}" for i in range(16)] + sc(1, 1)
    M = []
    for n in range(28, 36): M += [[mm(n, 0, 0)], [mm(n, 0, 1)]]
    P.add(interleave(M, rest))
    wr = lambda ttl, ctl: [f"ds_write_b128 v{L_RR}, {vr(q(ttl,ctl)+4*i,4)} offset:{(((1-ttl) | ((1-ctl) << 1)) - 1)*16384 + i*1024}" for i in range(4)]
    w = wr(0, 0) + wr(0, 1)
    seq = []
    for i, n in enumerate(range(28, 36)):
        seq.append(mm(n, 1, 0))
        if i >= 2: seq += w[:2]; w = w[2:]
    seq += w
    w = wr(1, 0)
    for i, n in enumerate(range(28, 36)):
        seq.append(mm(n, 1, 1))
        if i >= 3 and w: seq.append(w.pop(0))
    P.add(seq + w)
    P("s_waitcnt lgkmcnt(0)")
    P("s_barrier")
    stamp(P, o, 'last_o')
    R = 80
    for d in range(3):
        for i in range(4):
            P(f"ds_read_b128 {vr(R+16*d+4*i,4)}, v{L_RW+d} offset:{i*1024}")
    o_ = q(1, 1)
    for d in range(3):
        for i in range(8):
            P(f"v_pk_add_f32 {vr(o_+2*i,2)}, {vr(o_+2*i,2)}, {vr(R+16*d+2*i,2)}")
    p = R + 48
    for i in range(8): P(f"v_cvt_pk_bf16_f32 v{p+i}, v{o_+2*i}, v{o_+2*i+1}")
    for h in range(2):
        P(f"v_permlane32_swap_b32 v{p+4*h}, v{p+4*h+2}")
        P(f"v_permlane32_swap_b32 v{p+4*h+1}, v{p+4*h+3}")
    for h in range(2):
        P(f"buffer_store_dwordx4 {vr(p+4*h,4)}, v{L_OA}, {sr(SRD_OUT,4)}, 0 offen offset:{32*h} {['', 'sc1', 'nt'][o.osc]}")
    stamp(P, o, 'end')

HEADER = open('cdna_kernels/' + NAME + '.s.ref').read().split('; Override launch')[0]

def finish(P, o, name):
    for sp in slow_paths:
        P.forget(); P(sp)
    L = finalize(P, True)
    pos = lambda t: [i for i, x in enumerate(L) if x.text.startswith(t)]
    assert pos('ds_write_b64')[0] < pos('v_lshl_add_u32 v8,')[0] < pos('ds_read_b128 v[64:67], v8')[0], 'b1 scratch read before written'
    if o.align:
        L, nf = align_runs(L); print('aligned runs:', nf)
    out = HEADER + f"; @launch grid=(256,1,1) block=(256,1,1) lds={LDS_BYTES}\n"
    out += '.amdgcn_target "amdgcn-amd-amdhsa--gfx950"\n.text\n'
    out += f".globl {name}\n.p2align 8\n.type {name},@function\n{name}:\n" + text(L)
    out += "s_endpgm\n.fill 2048, 4, 0xbf800000\n"
    out += f""".section .rodata,"a"
.p2align 6
.amdhsa_kernel {name}
  .amdhsa_next_free_vgpr 512
  .amdhsa_next_free_sgpr 102
  .amdhsa_accum_offset 256
  .amdhsa_group_segment_fixed_size 0
  .amdhsa_kernarg_size 96
  .amdhsa_user_sgpr_count 2
  .amdhsa_user_sgpr_kernarg_segment_ptr 1
  .amdhsa_system_sgpr_workgroup_id_x 1
.end_amdhsa_kernel
"""
    if o.diag is not None:
        out = out.replace('DIAG_I', str(o.stamp_names.index(o.diag[0]))).replace('DIAG_J', str(o.stamp_names.index(o.diag[1])))
    return out

def stf(o, n):
    D = Prog()
    if o.fine: stamp(D, o, n)
    return D.L

def groups(fn, o):
    D = Prog(); fn(D, o); return atomic_groups(D.L)

def build(o):
    name = NAME + "_kernel"
    R = lambda a, b: list(range(a, b))
    P = Prog(); setup(P, o, "L_end")
    P(f"s_cmp_eq_u32 s{S_C}, 7")
    P("s_cbranch_scc1 L_prep")
    H = Gaps()
    def first(D, o):
        s1_w1_addr(D, o)
        if o.w1t: w1_touch(D, o)
        common2(D, o); s1_misc(D, o)
        if o.stouch < 2 and not o.eb: D(f"buffer_load_dword v{V_TAG}, v{V_FLAGOFF}, {sr(SRD_WS,4)}, 0 offen")
        last_baddr(D, o)
        att_scalars(D, o)
        if not o.b1late: bias1(D, o)
        att_poll_addr(D, o)
        if not o.glate: gate_flags(D, o, V_PA)
        att_addr(D, o)
        if o.b1late: bias1(D, o)
        if o.mka: att_masks(D, o)
        if o.stouch < 2 and not o.eb: D(f"v_readfirstlane_b32 s{S_TAG}, v{V_TAG}")
        D.add(TAGOPS)
        for i in range(o.wact):
            D(f"s_mul_i32 s{S_T4}, s{S_RBL}, 7")
            D(f"s_add_u32 s{S_T4}, s{S_T4}, s{S_C}")
            D(f"s_lshl2_add_u32 s{S_T4}, s{S_T4}, s{S_WAVE}")
            D(f"s_add_u32 s{S_T4}, s{S_T4}, {16*o.wsp + 112*i}")
            warm_touch(D, S_T4, 161 + i, S_T0, V_L128)
    H.put('v', groups(first, o), 0, o.su_end)
    H.put('m', bias1_reads(), o.b1r, 84)
    def first2(D, o): att_kvoff(D, o); last_soff(D, o)
    H.put('v', groups(first2, o), o.su_end, 84)
    FAKE[0] = o.fake & 1
    pass_a(P, o, H)
    FAKE[0] = 0
    qkv_epilogue(P, o, merge_salu([it for n in range(o.nba, o.nbe) for it in dma_b(n)]))
    stamp(P, o, 'qkv_epi')
    H = Gaps()
    def second(D, o):
        last_setup(D, o)
        if o.glate: gate_flags(D, o, V_PH)
        if not o.mka: att_masks(D, o)
    H.put('v', groups(second, o), 0, 50)
    for i, g in enumerate(o.l2t):
        D = Prog(); l2_touch(D, o, i); H.put('v', [D.L], g, g + 1)
    dm = lambda a, b: merge_salu([it for p in range(a, b) for it in b_dma(p)])
    rd = lambda a, b: [[WVM(f'bp{n >> 1}')] + b_reads(n)[:2] if k == 0 else b_reads(n)[2:] for n in range(2 * a, 2 * b) for k in range(2)]
    b = o.pb
    kv = merge_salu(att_loads(o))
    gl = []
    if o.glate: kv, gl = kv[:14], kv[14:]
    def put_m0(items, g0, g1):
        own = lambda g: 12 <= g < 52 and (g - 12) % 16 < 8
        free = [g for g in range(g0, g1) if not own(g)]
        runs = []; cur = []
        for it in items:
            if any(isinstance(x, str) and ' m0,' in x for x in it) and cur: runs.append(cur); cur = []
            cur.append(it)
        runs.append(cur)
        n = len(runs)
        for i, r in enumerate(runs):
            sl = free[(i * len(free)) // n:((i + 1) * len(free)) // n]
            keep = [sl[0]]
            for g in sl[1:]:
                if g != keep[-1] + 1: break
                keep.append(g)
            spread(H.m, r, keep)
    if o.nbe < 4: H.put('m', merge_salu([it for n in range(o.nbe, 4) for it in dma_b(n)]), 0, 12)
    for c in range(3): H.put('m', merge_salu(dma_b(c + 4)), 16 * c + 12, 16 * c + 20)
    if not o.drop & 1: put_m0(dm(0, o.n1), b[0], b[1])
    H.put('m', [stf(o, 'qf0') + [WVM('qst')] + stf(o, 'qf1') + flag_store(S_QFL) + ([f"v_min_u32 v15, {47*128}, v{V_L128}", f"buffer_load_dword v15, v15, {sr(SRD_WS,4)}, s{S_QST} offen {SC}"] if o.rt & 2 else [])], o.qflag, o.qflag + 1)
    H.put('m', [poll_issue(V_PA)], o.kpoll, o.kpoll + 1)
    kvl = kv[o.nkv:]
    if not o.drop & 4: put_m0([['s_waitcnt lgkmcnt(0)', 's_barrier'] * (o.n1 > 4) + stf(o, 'kc0') + poll_check(V_PA) + stf(o, 'kc1') + kv[0]] + kv[1:o.nkv], o.kcheck, o.kend)
    if not o.r1late: H.put('m', rd(0, o.n1), b[2], b[3])
    pt = att_patch()
    if o.patch < 112:
        H.put('m', pt[:4], o.patch, o.patch + 2)
        H.put('v', pt[4:], o.patch + 2, 112)
    FAKE[0] = o.fake & 2
    pass_b(P, o, H)
    FAKE[0] = 0
    P("s_waitcnt lgkmcnt(0)")
    P("s_barrier")
    stamp(P, o, 'pass_b')
    if o.trunc:
        stamp_flush(P, o); P("s_endpgm"); P.forget(); P("L_prep:"); prep(P, o); stamp_flush(P, o); P("L_end:"); P("s_endpgm")
        return finish(P, o, name)
    if o.patch < 112: P.add(kread(ORDER[0], 0) + kread(ORDER[1], 1))
    last_baddr2(P, o)
    na = 11 + (o.n1 - 4)
    Q = Prog(); held = []; sstream = []
    for F in range(4):
        g = gelu_tile(F)
        for i, x in enumerate(g[:-2]):
            if i % 4 == 0: Q.L.append(Slot(f'g{F}_{i}'))
            Q.add([x])
        held += g[-2:]
        if F >= o.kvt - 1:
            Q.L.append(Slot(f'gs{F}'))
            if o.pst: sstream += [([x], (lambda F: lambda st: f'gs{F}' in st['seen'])(F), 'x') for x in held]
            else: Q.add(held)
            held = []
        if F == o.patch_t:
            if o.fine: stamp(Q, o, 'pt0')
            Q.add(pt[0])
            if o.fine: stamp(Q, o, 'pt1')
            for it in pt[1:]: Q.add(it)
        if F == o.bar_t:
            Q("s_waitcnt lgkmcnt(0)"); Q("s_barrier")
            Q.add(kread(ORDER[0], 0) + kread(ORDER[1], 1))
    stamp(Q, o, 'gelu')
    attention(Q, o, None, kpre=True)
    seen = lambda n: (lambda st: n in st['seen'])
    after = lambda key, dt: (lambda st: key in st['done'] and st['t'] >= st['done'][key] + dt)
    both = lambda a, b: (lambda st: a(st) and b(st))
    dstream = [(it, None, f'kv{i}') for i, it in enumerate(kvl)]
    for p in range(o.n1, 18):
        its = merge_salu(b_dma(p))
        for i, it in enumerate(its):
            cond = None
            if p == o.n1 and i == 0: cond = seen(o.ra0)
            lo = 0 if o.r1late else o.n1
            if i == 0 and [q for q in range(lo, p) if PIECE[q] == PIECE[p]]:
                prev = [q for q in range(lo, p) if PIECE[q] == PIECE[p]][-1]
                cond = after(f'rd{prev}', 60); it = [WLG(f'rd{prev}')] + it
            if o.pause:
                c0 = cond
                cond = (lambda c0: lambda st: (c0 is None or c0(st)) and (o.pause_at not in st['seen'] or f'a{o.resume}' in st['seen']))(c0)
            dstream.append((it, cond, f'dm{p}' if i == len(its) - 1 else 'x'))
    rstream = []
    for p in range(0 if o.r1late else o.n1, 11):
        r = b_reads(2 * p) + b_reads(2 * p + 1)
        for k in range(4):
            it = [(x, f'rd{p}') for x in r[2 * k:2 * k + 2]]
            rstream.append(([WVM(f'bp{p}')] * (k == 0) + it, (seen(o.r1at) if p < o.n1 else both(after(f'dm{p}', o.lat), seen('a0'))) if k == 0 else None, f'rd{p}' if k == 3 else 'x'))
    def st_(n):
        D = Prog()
        if o.fine: stamp(D, o, n)
        return D.L
    names0 = list(o.stamp_names)
    fstream = [(st_('hf0') + [WVM('hst')] + st_('hf1') + flag_store(S_HFL) + ([f"buffer_load_dword v{V_AT-1}, v{V_L128}, {sr(SRD_WS,4)}, s{S_HST} offen {SC}"] if o.rt & 1 else []), both(seen(f'a{o.hflag}'), lambda st: not sstream), 'hf')]
    if o.nearly > 0:
        fstream.append((poll_issue(V_PH), seen(f'a{o.hpoll}'), 'hp'))
        al = merge_salu([[x] for n in range(o.nearly) for x in a_load(o, n)])
        al = al[:2] + gl + al[2:]
        if o.atouch:
            tch = [f"buffer_load_dword v{V_AT}, v{V_AT}, {sr(SRD_WS,4)}, s{S_AOF} offen {SC}"]
            fstream.append((st_('hc0') + poll_check(V_PH) + st_('hc1') + tch, seen(f'a{o.hcheck}'), 'hc'))
            fstream += [(it, seen(f'a{o.ea0}'), 'ea') for it in al]
        else:
            fstream.append((st_('hc0') + poll_check(V_PH) + st_('hc1') + al[0], seen(f'a{o.hcheck}'), 'hc'))
            fstream += [(it, None, 'ea') for it in al[1:]]
    L, t = place(Q.L, {'s': sstream, 'f': fstream, 'r': rstream, 'd': dstream}, gap=o.gap, burst=o.burst)
    kvpos = max([i for i, x in enumerate(L) if isinstance(x, I) and x.tag == 'kv'] + [-1]); hpos = min(i for i, x in enumerate(L) if isinstance(x, I) and x.tag == 'hst')
    print('estimated gelu+attention cycles', t, 'left', len(dstream), len(rstream), len(fstream), 'kv before h stores', kvpos < hpos)
    assert not rstream and not sstream
    P.L += L
    for it, _, _ in fstream: P.add(it)
    o.left = [it for it, _, _ in dstream]
    FAKE[0] = o.fake & 4
    last(P, o)
    FAKE[0] = 0
    stamp_flush(P, o)
    P("s_endpgm")
    P.forget()
    P("L_prep:")
    prep(P, o)
    att_scalars(P, o); att_poll_addr(P, o); gate_flags(P, o, V_PA); att_addr(P, o); att_masks(P, o); att_kvoff(P, o)
    poll(P, o, V_PA)
    for it in att_loads(o, False) + att_patch(): P.add(it)
    P("s_waitcnt lgkmcnt(0)")
    P("s_barrier")
    if o.pw & 2:
        srd_rest(P, [(SRD_OUT, 2048*896)])
        P(f"v_lshlrev_b32 v{V_T+3}, 18, v{V_LANE}")
        P(f"buffer_load_dword v200, v{V_T+3}, {sr(SRD_OUT,4)}, 0 offen")
    st, o.stamps = o.stamps, False
    attention(P, o, {})
    att_epilogue(P, o)
    o.stamps = st
    P("s_waitcnt vmcnt(0)")
    P.add(flag_store(S_OFL))
    stamp(P, o, 'p_att')
    stamp_flush(P, o)
    P(f"s_cmp_eq_u32 s2, 56")
    P("s_cbranch_scc0 L_end")
    P(f"s_cmp_eq_u32 s{S_WAVE}, 0")
    P("s_cbranch_scc0 L_end")
    P(f"v_lshlrev_b32 v{V_PA}, 7, v{V_LANE}")
    P(f"s_mov_b32 s{S_CNT}, 4000")
    P("L_ep:")
    for i in range(16):
        P(f"s_mov_b32 s{S_T0}, {FL_O + i*8192}")
        P(f"buffer_load_dwordx2 {vr(16+2*i,2)}, v{V_PA}, {sr(SRD_WS,4)}, s{S_T0} offen sc1")
    P("s_waitcnt vmcnt(0)")
    P(f"s_mov_b64 {sr(S_T0)}, 0")
    for i in range(16):
        P(f"v_cmp_ne_u64 vcc, {sr(S_TAG)}, {vr(16+2*i,2)}")
        P(f"s_or_b64 {sr(S_T0)}, {sr(S_T0)}, vcc")
    P(f"s_sub_u32 s{S_CNT}, s{S_CNT}, 1")
    P("s_cbranch_scc1 L_end")
    P(f"s_cmp_eq_u64 {sr(S_T0)}, 0")
    P("s_cbranch_scc0 L_ep")
    P(f"buffer_store_dword v{V_TAG}, v{V_FLAGOFF}, {sr(SRD_WS,4)}, 0 offen sc1")
    P("L_end:")
    P("s_endpgm")
    return finish(P, o, name)

DEFAULTS = dict(rt=0, eb=1, xw=0, pff=0, slim=0, sp=0, stouch=0, fake=0, pst=0, osc=0, nba=4, nbe=4, oend=28, r1late=0, r1at='g1_0', apos=(0, 2), dpos=(1, 3), align=1, rot=0, rcls=2, wfirst=0, glate=0, bar_t=3, epin=6, bar_at=3, olead=12, atouch=0, ea0=46, fine=0, pause=1, pause_at='gs1', resume=0, burst=2, gap=64, lat=700, ra0='g0_0', l2t=(), kvt=2, patch_t=1, pw=0, b1late=1, w1t=0, mw=1, drop=0, trunc=0, ncls=3, wsp=0, wact=0, su_end=72, bq_end=84, mka=1, n1=4,
                b1r=60, pb=(52, 84, 88, 104), qflag=30, kpoll=74, kcheck=86, kend=112, nkv=14, patch=112,
                nb_gelu=(0, 0, 3, 3), pa=(0, 22, 20, 32, 50), nrb=20, left_steps=4, hflag=6, nearly=4, hpoll=32, hcheck=44,
                lead=6, jit0=8, oflag_at=5, opoll_at=15, ocheck_at=22, hst=0, code_bytes=32768)

if __name__ == '__main__':
    o = Opt()
    for k, v in DEFAULTS.items(): setattr(o, k, v)
    o.stamps = 'stamps' in sys.argv; o.diag = None; o.stamp_names = []
    o.clk = 's_memtime' if 'cyc' in sys.argv else 's_memrealtime'
    for a in sys.argv[2:]:
        if '=' not in a: continue
        k, v = a.split('=')
        if k == 'diag':
            i, j, K = v.split(','); o.diag = (i, j, int(K)); o.stamps = True
        elif k in ('ra0', 'pause_at', 'r1at'): setattr(o, k, v)
        elif ',' in v: setattr(o, k, tuple(int(x) for x in v.split(',') if x))
        else: setattr(o, k, int(v))
    plan(o.n1, o.r1late); ROT[0] = o.rot
    s = build(o)
    open(sys.argv[1], 'w').write(s)
    if o.stamps: open(sys.argv[1] + '.names', 'w').write('\n'.join(o.stamp_names))
```

```python
import sys, math, struct
from asmlib import *

NAME = "gated_mix__sliding_block__dense_activation_gelu__prompt"
def f2u(x): return struct.unpack('<I', struct.pack('<f', x))[0]

WS_E      = 0
FL_G      = 0x1000
G_OFF     = 0x4000
FL_QKV    = 0x20000
FL_H      = 0x40000
FL_O      = 0x60000
QKV_OFF   = 0x100000
A_OFF     = 0x700000
WS_SIZE   = 0x1000000
BP_OFF    = 0x1000000
STAMP_OFF = 0x1400000
QKV_TB = 168 * 512
A_TB = 144 * 1024

SA = 28672
LQ = 16384
LF = 98304; SF = 16384
LBIAS = 86016
LKV = 0
LRED = 0
LP = [49152 + 16384 * i for i in range(7)] + [0, 16384, 32768]
PIECE = []
def plan(n1, late=0):
    ra = list(range(11 - n1))
    rb = [p for p in range(7) if p not in ra] + ra
    PIECE[:] = [0, 1, 2, 3, 7, 8, 9][:n1] + ra + rb[:7]
    if late: PIECE[:] = [0, 1, 2, 3] + [4, 5, 6, 0, 1, 2, 3] * 2
LDS_BYTES = 160 * 1024

S_WAVE, S_RBL, S_SPARE, S_XCD, S_SLOT = 3, 8, 9, 10, 11
S_XO, S_QO, S_FO, S_CI, S_CJ = 4, 5, 6, 7, 22
S_M4, S_M3 = 23, 24
S_OFL = 25
S_B1, S_W2, S_B2, S_GW, S_WO = 12, 14, 16, 18, 20
S_TAG = 26
SRD_X, SRD_WQ, SRD_W1, SRD_WS, SRD_OUT, SRD_W2 = 28, 32, 36, 40, 44, 48
SRD_WO = 32
S_KV = [28, 29, 30, 31]
S_RB, S_B, S_TB = 52, 53, 54
S_BOF = 55
S_T0, S_T1, S_T2, S_T3 = 56, 57, 58, 59
S_CNT = 60
S_QST, S_HST = 61, 62
S_T4 = 63
S_MASK = 64
S_QFL, S_HFL = 12, 13
S_OST, S_B3 = 18, 19
S_AOF, S_AO2, S_BO = 4, 5, 7
S_ARB, S_ATB = 14, 15
S_R, S_C, S_J, S_PAR = 98, 99, 100, 101
S_AG, S_BG = 52, 54

def sr(b, n=2): return f"s[{b}:{b+n-1}]"
def vr(b, n): return f"v[{b}:{b+n-1}]" if n > 1 else f"v{b}"
def ar(b, n): return f"a[{b}:{b+n-1}]"
def xr(d): return ar(d[1], 4) if isinstance(d, tuple) else vr(d, 4)

V_LANE, V_L16, V_L16H, V_FLAGOFF = 1, 2, 3, 4
V_TAG = 6
V_PD = 8
V_PA = 10
V_T = 11
V_BA = 216
V_AA = 220
L_G = 222
L_RW = 224
L_RR, L_OA, V_PO, V_PH = 227, 228, 229, 231
V_BR = [[232, 233], [0, 230], [202, 234]]
L_BA = 10
V_DUM = 235
V_ST = 255
SC = 'sc1'

class Opt: pass

FAKE = [0]
def mfma(d, a, b, c):
    if FAKE[0]:
        return "\n".join(f"v_mfma_f32_16x16x32_bf16 {vr(d+8*k,4)}, {xr(a)}, {xr(b)}, {'0' if c is None else vr(c+8*k,4)}" for k in range(2))
    C = '0' if c is None else vr(c, 16)
    return f"v_mfma_f32_32x32x16_bf16 {vr(d,16)}, {xr(a)}, {xr(b)}, {C}"

lab = [0]
def stamp(P, o, name):
    if not o.stamps: return
    if name not in o.stamp_names: o.stamp_names.append(name)
    P(f"{o.clk} s[96:97]")
    P("s_waitcnt lgkmcnt(0)")
    P(f"v_writelane_b32 v{V_ST}, s96, {o.stamp_names.index(name)}")

def stamp_flush(P, o):
    if not o.stamps: return
    if o.diag is not None:
        lab[0] += 1
        P(f"v_readlane_b32 s{S_T0}, v{V_ST}, DIAG_I")
        P(f"v_readlane_b32 s{S_T1}, v{V_ST}, DIAG_J")
        P("s_nop 4")
        P(f"s_sub_u32 s{S_T0}, s{S_T1}, s{S_T0}")
        P(f"s_mul_i32 s{S_T0}, s{S_T0}, {o.diag[2]}")
        P(f"s_min_u32 s{S_T0}, s{S_T0}, 20000")
        P(f"s_cmp_eq_u32 s{S_SPARE}, 1")
        P(f"s_cselect_b32 s{S_T0}, 0, s{S_T0}")
        P("s_memrealtime s[96:97]")
        P("s_waitcnt lgkmcnt(0)")
        P(f"s_mov_b32 s{S_T1}, s96")
        P(f"L_dg{lab[0]}:")
        P("s_memrealtime s[96:97]")
        P("s_waitcnt lgkmcnt(0)")
        P(f"s_sub_u32 s{S_T2}, s96, s{S_T1}")
        P(f"s_cmp_lt_u32 s{S_T2}, s{S_T0}")
        P(f"s_cbranch_scc1 L_dg{lab[0]}")
        return
    P("s_waitcnt vmcnt(0)")
    P(f"s_lshl2_add_u32 s{S_T0}, s2, s{S_WAVE}")
    P(f"s_lshl_b32 s{S_T0}, s{S_T0}, 8")
    P(f"s_add_u32 s{S_T0}, s{S_T0}, {STAMP_OFF}")
    P(f"s_mov_b32 s{SRD_WS+2}, {STAMP_OFF + 0x100000}")
    P(f"v_lshlrev_b32 v{V_T}, 2, v{V_LANE}")
    P(f"buffer_store_dword v{V_ST}, v{V_T}, {sr(SRD_WS,4)}, s{S_T0} offen")

def setup(P, o, end_label):
    if o.stamps: P(f"{o.clk} s[94:95]")
    if o.pff: setup_rest(P, o, True)
    P(f"s_load_dwordx2 {sr(SRD_X)}, s[0:1], 0")
    P(f"s_load_dwordx2 {sr(SRD_WQ)}, s[0:1], 8")
    if not o.slim: setup_rest(P, o, False)
    P("s_cmpk_ge_u32 s2, 256")
    P(f"s_cbranch_scc1 {end_label}")
    if not o.slim and not o.pff: setup_rest(P, o, True)
    P(f"v_lshrrev_b32 v5, 6, v0")
    P(f"v_and_b32 v{V_LANE}, 63, v0")
    P(f"v_readfirstlane_b32 s{S_WAVE}, v5")
    P(f"s_and_b32 s{S_XCD}, s2, 7")
    P(f"s_lshr_b32 s{S_RBL}, s2, 6")
    P(f"s_bfe_u32 s{S_C}, s2, 0x30003")
    P(f"s_mov_b32 s{SRD_X+3}, 0x20000")
    P(f"s_mov_b32 s{SRD_X+2}, {2048*896}")

def setup_rest(P, o, pf):
    if not pf:
        P(f"s_load_dwordx2 {sr(SRD_W1)}, s[0:1], 32")
        P(f"s_load_dwordx8 s[12:19], s[0:1], 40")
        P(f"s_load_dwordx2 {sr(SRD_WS)}, s[0:1], 88")
        P(f"s_load_dwordx2 {sr(SRD_OUT)}, s[0:1], 72")
        P(f"s_load_dwordx2 {sr(S_WO)}, s[0:1], 16")
        P(f"s_lshr_b32 s{S_SLOT}, s2, 3")
        return
    P(f"s_getpc_b64 s[{S_T0}:{S_T1}]")
    P(f"v_lshlrev_b32 v15, 7, v0")
    P(f"v_min_u32 v15, {o.code_bytes - 512}, v15")
    P(f"global_load_dword v234, v15, s[{S_T0}:{S_T1}]", tag='pf')

def srd_rest(P, regs):
    for d, size in regs:
        P(f"s_mov_b32 s{d+2}, {size}")
        P(f"s_mov_b32 s{d+3}, 0x20000")

def common2(P, o):
    P(f"v_lshlrev_b32 v{V_L16}, 4, v{V_LANE}")
    P(f"v_cmp_eq_u32 vcc, 0, v{V_LANE}")
    P(f"v_mov_b32 v5, 0x7fff0000")
    P(f"v_add_u32 v{V_L16H}, 0x1000, v{V_L16}")
    P(f"v_cndmask_b32_e64 v{V_FLAGOFF}, v5, 0, vcc")
    P(f"s_lshl2_add_u32 s{S_R}, s{S_XCD}, s{S_RBL}")

TAGOPS = [f"s_mul_i32 s{S_TAG}, s{S_TAG}, 0x9e3779b1",
          f"s_add_u32 s{S_TAG}, s{S_TAG}, 0x7f4a7c15",
          f"s_xor_b32 s{S_TAG+1}, s{S_TAG}, 0x5bd1e995",
          f"v_mov_b32 v{V_TAG}, s{S_TAG}",
          f"v_mov_b32 v{V_TAG+1}, s{S_TAG+1}"]

def warm_touch(P, blk, dst, tb, l128):
    P(f"s_mul_i32 s{tb}, s{S_XCD}, 31")
    P(f"s_min_u32 s{blk}, s{blk}, 244")
    P(f"s_add_u32 s{blk}, s{blk}, s{tb}")
    P(f"s_sub_u32 s{tb}, s{blk}, 245")
    P(f"s_cselect_b32 s{blk}, s{blk}, s{tb}")
    P(f"s_sub_u32 s{tb}, s{blk}, 196")
    P(f"s_cselect_b32 s{blk}, s{blk}, s{tb}")
    P(f"s_cselect_b64 {sr(tb)}, {sr(SRD_W2)}, {sr(S_WO)}")
    P(f"s_lshl_b32 s{blk}, s{blk}, 13")
    P(f"s_add_u32 s{tb}, s{tb}, s{blk}")
    P(f"s_addc_u32 s{tb+1}, s{tb+1}, 0")
    P(f"global_load_dword v{dst}, v{l128}, {sr(tb)}", tag='warm')

def l2_touch(P, o, i):
    P(f"s_mul_i32 s{S_T4}, s{S_RBL}, 7")
    P(f"s_add_u32 s{S_T4}, s{S_T4}, s{S_C}")
    P(f"s_lshl2_add_u32 s{S_T4}, s{S_T4}, s{S_WAVE}")
    if i: P(f"s_add_u32 s{S_T4}, s{S_T4}, {112*i}")
    P(f"s_mul_i32 s{S_T0}, s{S_T4}, 1873")
    P(f"s_lshr_b32 s{S_T0}, s{S_T0}, 16")
    P(f"s_mul_i32 s{S_T0}, s{S_T0}, {128*896}")
    P(f"s_lshl_b32 s{S_T1}, s{S_T4}, 13")
    P(f"s_add_u32 s{S_T0}, s{S_T0}, s{S_T1}")
    P(f"s_add_u32 s{S_T0}, s{S_T0}, {128*896}")
    P(f"s_sub_u32 s{S_T1}, s{S_T1}, {140*8192}")
    P(f"s_cbranch_scc0 L_wo{i}")
    P(f"buffer_load_dword v{184+i}, v{V_L128}, {sr(SRD_W2,4)}, s{S_T0} offen")
    P(f"s_branch L_wj{i}")
    P(f"L_wo{i}:")
    P(f"buffer_load_dword v{186+i}, v{V_L128}, {sr(SRD_WO,4)}, s{S_T1} offen")
    P(f"L_wj{i}:")
    P.L.append(Pseudo('drop_vm'))

def poll(P, o, addr_v, limit=4000):
    lab[0] += 1
    L = f"L_poll{lab[0]}"
    P(f"s_mov_b32 s{S_CNT}, {limit}")
    P(f"{L}:")
    P(f"buffer_load_dwordx2 {vr(V_PD,2)}, v{addr_v}, {sr(SRD_WS,4)}, 0 offen sc1")
    P(f"s_sub_u32 s{S_CNT}, s{S_CNT}, 1")
    P("s_waitcnt vmcnt(0)")
    P(f"v_cmp_ne_u64 vcc, {sr(S_TAG)}, {vr(V_PD,2)}")
    P(f"s_cbranch_scc1 {L}_x")
    P(f"s_cbranch_vccnz {L}")
    P(f"{L}_x:")

slow_paths = []
def poll_issue(addr_v):
    return [f"buffer_load_dwordx2 {vr(V_PD,2)}, v{addr_v}, {sr(SRD_WS,4)}, 0 offen sc1"]
def poll_check(addr_v, limit=4000):
    lab[0] += 1
    L = f"L_pc{lab[0]}"
    slow_paths.append(f"""{L}_slow:
s_mov_b32 s{S_CNT}, {limit}
{L}_loop:
buffer_load_dwordx2 {vr(V_PD,2)}, v{addr_v}, {sr(SRD_WS,4)}, 0 offen sc1
s_sub_u32 s{S_CNT}, s{S_CNT}, 1
s_waitcnt vmcnt(0)
v_cmp_ne_u64 vcc, {sr(S_TAG)}, {vr(V_PD,2)}
s_cbranch_scc1 {L}_back
s_cbranch_vccnz {L}_loop
s_branch {L}_back""")
    return [f"v_cmp_ne_u64 vcc, {sr(S_TAG)}, {vr(V_PD,2)}\ns_cbranch_vccnz {L}_slow\n{L}_back:"]

def flag_store(soff):
    return [f"buffer_store_dwordx2 {vr(V_TAG,2)}, v{V_FLAGOFF}, {sr(SRD_WS,4)}, s{soff} offen sc1"]

ACC_Q, ACC_F = 16, 64
FR = 128
GT = 160
V_XD, V_QD, V_FD = 192, 196, 199
V_XR, V_QR, V_FRD = 203, 207, 208
V_CA, V_CB = 212, 214
V_QR2, V_L128 = 213, 215

def adv(ci):
    return f"s_add_u32 s{ci}, s{ci}, 1\ns_cmp_eq_u32 s{ci}, 7\ns_cselect_b32 s{ci}, 0, s{ci}"

def dma_a(n):
    sl = (n % 3) * SA
    L = []
    if n: L.append([adv(S_CI)])
    L.append([f"s_lshl_b32 s{S_XO}, s{S_CI}, 7", f"s_add_u32 m0, s{S_M4}, {sl}"])
    L.append([f"s_mul_i32 s{S_QO}, s{S_CI}, {64*2688}"])
    for i in range(4):
        L.append([(f"buffer_load_dwordx4 v{V_XD+i}, {sr(SRD_X,4)}, s{S_XO} offen offset:{i*1024} lds", f'da{n}')])
    L.append([f"s_add_u32 m0, s{S_M3}, {sl}"])
    for i in range(3):
        L.append([(f"buffer_load_dwordx4 v{V_QD+i}, {sr(SRD_WQ,4)}, s{S_QO} offen offset:{i*1024} lds", f'da{n}')])
    return L

def dma_b(n):
    L = []
    if n: L.append([adv(S_CJ)])
    L.append([f"s_add_u32 m0, s{S_M4}, {LF + ((n + 1) % 4) * SF}", f"s_mul_i32 s{S_FO}, s{S_CJ}, {64*3584}"])
    for i in range(4):
        L.append([(f"buffer_load_dwordx4 v{V_FD+i}, {sr(SRD_W1,4)}, s{S_FO} offen offset:{i*1024} lds", f'db{n}')])
    return L

def reads_a(g):
    c, s = g >> 2, g & 3
    sl = (c % 3) * SA
    base = FR + 16 * (g & 1)
    L = [f"ds_read_b128 {ar(4*g,4)}, v{V_XR+s} offset:{sl}"]
    q, so = (V_QR2, 0) if c % 3 == 2 else (V_QR, sl)
    for t in range(3):
        for rho in range(2):
            L.append(f"ds_read_b64_tr_b16 {vr(base+4*t+2*rho,2)}, v{q} offset:{so + (16*s+4*rho)*192 + t*64}")
    return L

def reads_b(g):
    c, s = g >> 2, g & 3
    base = FR + 16 * (g & 1)
    return [f"ds_read_b64_tr_b16 {vr(base+4*t+2*rho,2)}, v{V_FRD+t} offset:{((c + 1) % 4)*SF + (16*s+4*rho)*256}" for t in range(4) for rho in range(2)]

def s1_x_addr(P, o):
    T = V_T
    if o.ncls == 3:
        P(f"s_add_u32 s{S_CI}, s{S_C}, s{S_RBL}")
        P(f"s_lshl_b32 s{S_CI}, s{S_CI}, 1")
        P(f"s_lshr_b32 s{S_CI}, 0x24924, s{S_CI}")
        P(f"s_and_b32 s{S_CI}, s{S_CI}, 3")
        P(f"s_lshl_b32 s{S_CI}, s{S_CI}, 1")
    elif o.ncls == 2:
        P(f"s_add_u32 s{S_CI}, s{S_C}, s{S_RBL}")
        P(f"s_and_b32 s{S_CI}, s{S_CI}, 1")
        P(f"s_mul_i32 s{S_CI}, s{S_CI}, 3")
    else:
        P(f"s_mov_b32 s{S_CI}, 0")
    P(f"s_and_b32 s{S_RB}, s{S_XCD}, 3")
    P(f"s_lshl2_add_u32 s{S_RB}, s{S_RB}, s{S_RBL}")
    P(f"s_lshl2_add_u32 s{S_TB}, s{S_RB}, s{S_WAVE}")
    P(f"v_lshrrev_b32 v{T}, 3, v{V_LANE}")
    P(f"v_and_b32 v{T+1}, 7, v{V_LANE}")
    P(f"v_lshrrev_b32 v{T+2}, 4, v{V_LANE}")
    P(f"s_lshl_b32 s{S_T2}, s{S_TB}, 5")
    P(f"v_add_u32 v{T}, s{S_T2}, v{T}")
    P(f"v_mul_u32_u24 v{T}, 896, v{T}")
    P(f"v_xor_b32 v{T+1}, v{T+2}, v{T+1}")
    P(f"v_lshl_add_u32 v{V_XD}, v{T+1}, 4, v{T}")
    P(f"v_xor_b32 v{V_XD+1}, 64, v{V_XD}")
    P(f"s_lshl_b32 s{S_M4}, s{S_WAVE}, 12")
    P(f"v_add_u32 v{V_XD+2}, {2*(8*896-1024)}, v{V_XD}")
    P(f"v_add_u32 v{V_XD+3}, {3*(8*896-1024)}, v{V_XD+1}")
    P(f"v_add_u32 v{V_XD+1}, {1*(8*896-1024)}, v{V_XD+1}")

def s1_wq_addr(P, o):
    T = V_T
    P(f"s_lshr_b32 s{S_B}, s{S_XCD}, 2")
    P(f"s_mul_i32 s{S_B}, s{S_B}, 7")
    P(f"s_add_u32 s{S_B}, s{S_B}, s{S_C}")
    P(f"s_mul_i32 s{S_T2}, s{S_WAVE}, 192")
    P(f"s_mul_i32 s{S_T3}, s{S_B}, 192")
    P(f"v_add_u32 v{T}, s{S_T2}, v{V_LANE}")
    P(f"v_lshl_add_u32 v{T+2}, v{T}, 4, s{S_T3}")
    P(f"v_mul_u32_u24 v{T}, 0xaaab, v{T}")
    P(f"s_movk_i32 s{S_T3}, 2496")
    for i in range(3):
        if i: P(f"v_add_u32 v{T}, {64*0xaaab}, v{T}")
        P(f"v_lshrrev_b32 v{T+1}, 19, v{T}")
        P(f"v_mad_u32_u24 v{V_QD+i}, v{T+1}, s{S_T3}, v{T+2}")
    P(f"s_lshl_b32 s{S_T2}, s{S_T2}, 4")
    P(f"s_add_u32 s{S_M3}, s{S_T2}, {LQ}")
    srd_rest(P, [(SRD_WQ, 448*2688)])

def s1_read_addr(P, o):
    T = V_T
    P(f"v_and_b32 v{T}, 31, v{V_LANE}")
    P(f"v_lshrrev_b32 v{T+1}, 5, v{V_LANE}")
    P(f"v_bfe_u32 v{T+2}, v{V_LANE}, 1, 3")
    P(f"v_xor_b32 v{T+2}, v{T+2}, v{T+1}")
    P(f"v_lshl_add_u32 v{T}, v{T}, 7, s{S_M4}")
    for s in range(4):
        P(f"v_xor_b32 v{T+3}, {2*s}, v{T+2}")
        P(f"v_lshl_add_u32 v{V_XR+s}, v{T+3}, 4, v{T}")
    P(f"v_bfe_u32 v{T}, v{V_LANE}, 2, 2")
    P(f"v_lshl_add_u32 v{T+1}, v{T+1}, 3, v{T}")
    P(f"v_bfe_u32 v{T+2}, v{V_LANE}, 4, 1")
    P(f"v_lshlrev_b32 v{T+2}, 5, v{T+2}")
    P(f"v_and_b32 v{T+3}, 3, v{V_LANE}")
    P(f"v_lshl_add_u32 v{T+2}, v{T+3}, 3, v{T+2}")
    P(f"v_mul_u32_u24 v{T+3}, 192, v{T+1}")
    P(f"v_add_u32 v{T+3}, {LQ}, v{T+3}")
    P(f"v_add_u32 v{V_QR}, v{T+3}, v{T+2}")
    P(f"v_add_u32 v{V_QR2}, {2*SA}, v{V_QR}")
    P(f"v_lshl_add_u32 v{T+2}, v{T+1}, 8, v{T+2}")
    P(f"v_add_u32 v{T+2}, {LF}, v{T+2}")
    for c in range(4):
        P(f"v_xor_b32 v{T+3}, {c}, v{T}")
        P(f"v_lshl_add_u32 v{V_FRD+c}, v{T+3}, 6, v{T+2}")

def s1_w1_addr(P, o):
    T = V_T
    P(f"v_lshrrev_b32 v{T+2}, 4, v{V_LANE}")
    P(f"v_lshlrev_b32 v{T+1}, 2, v{T+2}")
    P(f"v_xor_b32 v{T+1}, v{T+1}, v{V_LANE}")
    P(f"v_and_b32 v{T+1}, 15, v{T+1}")
    P(f"s_lshl_b32 s{S_T2}, s{S_WAVE}, 4")
    P(f"v_add_u32 v{T}, s{S_T2}, v{T+2}")
    P(f"v_mul_u32_u24 v{T}, 3584, v{T}")
    P(f"s_lshl_b32 s{S_T3}, s{S_B}, 8")
    P(f"v_lshl_add_u32 v{T}, v{T+1}, 4, v{T}")
    P(f"v_add_u32 v{V_FD}, s{S_T3}, v{T}")
    for i in range(1, 4):
        P(f"v_add_u32 v{V_FD+i}, {i*(4*3584-1024)}, v{V_FD}")
    srd_rest(P, [(SRD_W1, 448*3584)])
    if not o.eb:
        P(f"v_lshl_add_u32 v{T}, v{V_LANE}, 2, s{S_T3}")
        P(f"global_load_dword v9, v{T}, {sr(S_B1)}")

def w1_touch(P, o):
    T = V_T
    P(f"v_lshrrev_b32 v{T}, 1, v{V_LANE}")
    P(f"v_min_u32 v{T}, 27, v{T}")
    P(f"s_lshl2_add_u32 s{S_T0}, s{S_RBL}, s{S_WAVE}")
    P(f"s_mul_i32 s{S_T0}, s{S_T0}, 28")
    P(f"v_add_u32 v{T}, s{S_T0}, v{T}")
    P(f"v_mul_u32_u24 v{T}, 3584, v{T}")
    P(f"v_and_b32 v{T+1}, 1, v{V_LANE}")
    P(f"v_lshl_add_u32 v{T}, v{T+1}, 7, v{T}")
    P(f"s_lshl_b32 s{S_T0}, s{S_B}, 8")
    P(f"buffer_load_dword v160, v{T}, {sr(SRD_W1,4)}, s{S_T0} offen", tag='warm')

def s1_misc(P, o):
    srd_rest(P, [(SRD_WS, WS_SIZE), (SRD_OUT, 2048*896)])
    A = -2.0 * math.sqrt(2.0 / math.pi) * 0.044715 * math.log2(math.e)
    B = -2.0 * math.sqrt(2.0 / math.pi) * math.log2(math.e)
    P(f"v_mov_b32 v{V_CA}, {hex(f2u(A))}")
    P(f"v_mov_b32 v{V_CB}, {hex(f2u(B))}")
    P(f"v_lshlrev_b32 v{V_L128}, 7, v{V_LANE}")
    P(f"s_mul_i32 s{S_QST}, s{S_TB}, {QKV_TB}")
    P(f"s_mul_i32 s{S_T0}, s{S_B}, {3*2048}")
    P(f"s_add_u32 s{S_QST}, s{S_QST}, s{S_T0}")
    P(f"s_add_u32 s{S_QST}, s{S_QST}, {QKV_OFF}")
    P(f"s_mul_i32 s{S_HST}, s{S_TB}, {A_TB}")
    P(f"s_lshl_b32 s{S_T0}, s{S_B}, 13")
    P(f"s_add_u32 s{S_HST}, s{S_HST}, s{S_T0}")
    P(f"s_add_u32 s{S_HST}, s{S_HST}, {A_OFF}")
    P(f"s_lshl4_add_u32 s{S_T0}, s{S_TB}, s{S_B}")
    P(f"s_lshl_b32 s{S_T0}, s{S_T0}, 7")
    P(f"s_add_u32 s{S_QFL}, s{S_T0}, {FL_QKV}")
    P(f"s_add_u32 s{S_HFL}, s{S_T0}, {FL_H}")
    P(f"s_mul_i32 s{S_B3}, s{S_B}, 3")
    P(f"s_mov_b32 s{S_SPARE}, 0")

def bias_expand(P, src_v, tmp, addr, base):
    P(f"v_lshlrev_b32 v{tmp}, 16, v{src_v}")
    P(f"v_and_b32 v{tmp+1}, 0xffff0000, v{src_v}")
    P(f"v_lshl_add_u32 v{tmp+2}, v{V_LANE}, 3, s{base}")
    P(f"ds_write_b64 v{tmp+2}, {vr(tmp,2)}")
    P(f"v_lshrrev_b32 v{addr}, 5, v{V_LANE}")
    P(f"v_lshl_add_u32 v{addr}, v{addr}, 4, s{base}")

def bias1(P, o):
    P(f"s_lshl_b32 s{S_T0}, s{S_WAVE}, 9")
    P(f"s_add_u32 s{S_T0}, s{S_T0}, {LBIAS}")
    bias_expand(P, 9, 12, 8, S_T0)

def bias1_reads():
    return [[f"ds_read_b128 {vr(ACC_F+16*F+4*q,4)}, v8 offset:{(32*F+8*q)*4}"] for F in range(4) for q in range(4)]

def rot_step(off, cnt, stride, n):
    return (f"s_add_u32 s{off}, s{off}, {stride}\ns_add_u32 s{cnt}, s{cnt}, 1\ns_cmp_eq_u32 s{cnt}, {n}\n"
            f"s_cselect_b32 s{S_CNT}, {n*stride}, 0\ns_sub_u32 s{off}, s{off}, s{S_CNT}")
ROT = [0]

def b_dma(p):
    L = [[f"s_add_u32 m0, s{S_M4}, {LP[PIECE[p]]}"]]
    if p < 14:
        so, sd = S_BOF, SRD_W2
        if p: L[0].append(rot_step(so, S_BG, 32*896, 14) if ROT[0] else f"s_add_u32 s{so}, s{so}, {32*896}")
    else:
        so, sd = S_BO, SRD_WO
        i = p - 14
        if i: L[0].append(f"s_add_u32 s{so}, s{so}, {8*(((7*i)>>1) - ((7*(i-1))>>1))*896}")
    for i in range(4):
        L.append([(f"buffer_load_dwordx4 v{V_BA+i}, {sr(sd,4)}, s{so} offen offset:{i*1024} lds", f'bp{p}')])
    return L

def breg(n, ctl):
    if n >= 22: n -= 22
    return ('a', (112 + 8 * n if n < 18 else 8 * (n - 18)) + 4 * ctl)

def b_reads(n):
    pc = LP[PIECE[n >> 1]]
    hi, so = divmod(pc, 65536)
    return [f"ds_read_b64_tr_b16 {ar(breg(n, ctl)[1]+2*rho,2)}, v{V_BR[hi][ctl]} offset:{so + (n & 1)*2048 + rho*1024}" for ctl in range(2) for rho in range(2)]

class Gaps:
    def __init__(self): self.m = {}; self.v = {}
    def put(self, kind, items, g0, g1):
        d = self.m if kind == 'm' else self.v
        spread(d, items, list(range(g0, g1)), kind == 'm')
    def emit(self, G): return sum(self.m.get(G, []), []) + sum(self.v.get(G, []), [])

def spread(hooks, items, slots, unit=True):
    w = (lambda g: 1) if unit else len
    tot = sum(w(g) for g in items); done = 0
    for g in items:
        s = slots[min(len(slots) - 1, (done * len(slots)) // tot)]
        hooks.setdefault(s, []).append(g); done += w(g)

def merge_salu(items):
    out = []; pend = []
    for it in items:
        pend += it
        if any(isinstance(x, tuple) or (isinstance(x, str) and x.startswith(('buffer', 'global', 'ds_'))) for x in it):
            out.append(pend); pend = []
    if pend: out.append(pend)
    return out

def pass_a(P, o, H):
    s1_x_addr(P, o)
    d0 = dma_a(0)
    P.add(d0[0])
    P("s_waitcnt lgkmcnt(0)")
    if o.stamps:
        o.stamp_names.append('entry'); P(f"v_mov_b32 v{V_ST}, 0"); P(f"v_writelane_b32 v{V_ST}, s94, 0")
    if o.stouch:
        P(f"s_load_dword s{S_CNT}, {sr(SRD_WQ)}, 0")
        if o.stouch > 1:
            P(f"s_load_dword s{S_TAG}, {sr(SRD_WS)}, {WS_E}")
            P(f"s_load_dword s{S_J}, {sr(S_B1)}, 0")
    for it in d0[2:6]: P.add(it)
    if o.slim: setup_rest(P, o, True); setup_rest(P, o, False)
    P.add(d0[1]); P(f"s_mov_b32 s{S_CJ}, s{S_CI}")
    s1_wq_addr(P, o)
    for it in d0[6:]: P.add(it)
    if o.eb:
        P(f"s_load_dword s{S_TAG}, {sr(SRD_WS)}, {WS_E}")
        P(f"s_lshl_b32 s{S_T3}, s{S_B}, 8")
        P(f"v_lshl_add_u32 v{V_T}, v{V_LANE}, 2, s{S_T3}")
        P(f"global_load_dword v9, v{V_T}, {sr(S_B1)}")
        P(f"s_lshl_b32 s{S_T3}, s{S_C}, 7")
        P(f"v_and_b32 v{V_T}, 31, v{V_LANE}")
        P(f"v_lshl_add_u32 v{V_T}, v{V_T}, 2, s{S_T3}")
        P(f"global_load_dword v{V_DUM}, v{V_T}, {sr(S_B2)}")
    pass
    for it in dma_a(1): P.add(it)
    s1_read_addr(P, o)
    for it in dma_a(2): P.add(it)
    P.wait_vm('da0')
    P("s_waitcnt lgkmcnt(0)")
    P("s_barrier")
    stamp(P, o, 's1_first')
    P.add(reads_a(0))
    for c in range(4): H.put('m', merge_salu(dma_a(c + 3)), 12 * c + 9, 12 * c + 21)
    H.put('m', merge_salu([it for n in range(o.nba) for it in dma_b(n)]), 57, o.bq_end)
    for g in range(28):
        c, s = g >> 2, g & 3
        base = FR + 16 * (g & 1)
        if s == 3 and c < 6:
            P("s_waitcnt lgkmcnt(0)")
            P.wait_vm(f'da{c+1}')
            P("s_barrier")
            if o.trunc: stamp(P, o, f'a{c}')
        rd = reads_a(g + 1) if g < 27 else []
        per = [4, 3, 0] if s == 2 else [3, 2, 2]
        for t in range(3):
            P(mfma(ACC_Q + 16 * t, base + 4 * t, ('a', 4 * g), None if g == 0 else ACC_Q + 16 * t))
            P.add(rd[:per[t]]); rd = rd[per[t]:]
            P.add(H.emit(3 * g + t))
    P("s_waitcnt lgkmcnt(0)")
    P.wait_vm('db0')
    P("s_barrier")
    stamp(P, o, 'pass_a')
    P.add(reads_b(0))

def pass_b(P, o, H):
    for g in range(28):
        c, s = g >> 2, g & 3
        base = FR + 16 * (g & 1)
        if s == 3 and c < 6:
            P("s_waitcnt lgkmcnt(0)")
            P.wait_vm(f'db{c+1}')
            P("s_barrier")
            if o.trunc: stamp(P, o, f'b{c}')
        rd = reads_b(g + 1) if g < 27 else []
        per = [3, 3, 2, 0] if s == 2 else [2, 2, 2, 2]
        for t in range(4):
            P(mfma(ACC_F + 16 * t, base + 4 * t, ('a', 4 * g), ACC_F + 16 * t))
            P.add(rd[:per[t]]); rd = rd[per[t]:]
            P.add(H.emit(4 * g + t))

def qkv_epilogue(P, o, extra):
    c = (28.0 ** -0.5) * math.log2(math.e)
    P(f"s_mov_b32 s{S_T2}, {hex(f2u(c))}")
    for t in range(3):
        acc = ACC_Q + 16 * t
        P(f"s_cmp_lt_u32 s{S_B3}, {14 - t}")
        P(f"s_cbranch_scc0 L_nosc{t}")
        for i in range(8):
            P(f"v_pk_mul_f32 {vr(acc+2*i,2)}, {vr(acc+2*i,2)}, s[{S_T2}:{S_T3}] op_sel_hi:[1,0]")
        P(f"L_nosc{t}:")
        p = GT + 8 * t
        for i in range(8):
            if t == 0 and extra and i % 2 == 0: P.add(extra.pop(0))
            P(f"v_cvt_pk_bf16_f32 v{p+i}, v{acc+2*i}, v{acc+2*i+1}")
        while t == 0 and extra: P.add(extra.pop(0))
        for h in range(2):
            P(f"v_permlane32_swap_b32 v{p+4*h}, v{p+4*h+2}")
            P(f"v_permlane32_swap_b32 v{p+4*h+1}, v{p+4*h+3}")
        for h in range(2):
            off = t * 2048 + h * 1024
            P(f"buffer_store_dwordx4 {vr(p+4*h,4)}, v{V_L16H if off >= 4096 else V_L16}, {sr(SRD_WS,4)}, s{S_QST} offen offset:{off & 4095} {SC}", tag='qst')

def gelu_tile(F):
    u = ACC_F + 16 * F
    t = GT + 16 * (F & 1)
    pk = [192, 204, t, t][F]
    L = []
    pr = lambda b, i: vr(b + 2 * i, 2)
    for i in range(8): L.append(f"v_pk_mul_f32 {pr(t,i)}, {pr(u,i)}, {pr(u,i)}")
    for i in range(8): L.append(f"v_pk_fma_f32 {pr(t,i)}, {pr(t,i)}, {vr(V_CA,2)}, {vr(V_CB,2)} op_sel_hi:[1,0,0]")
    for i in range(8): L.append(f"v_pk_mul_f32 {pr(t,i)}, {pr(t,i)}, {pr(u,i)}")
    for i in range(16): L.append(f"v_exp_f32 v{t+i}, v{t+i}")
    for i in range(8): L.append(f"v_pk_add_f32 {pr(t,i)}, {pr(t,i)}, 1.0 op_sel_hi:[1,0]")
    for i in range(16): L.append(f"v_rcp_f32 v{t+i}, v{t+i}")
    for i in range(8): L.append(f"v_pk_mul_f32 {pr(t,i)}, {pr(t,i)}, {pr(u,i)}")
    for i in range(8): L.append(f"v_cvt_pk_bf16_f32 v{pk+i}, v{t+2*i}, v{t+2*i+1}")
    for h in range(2):
        off = (2 * F + h) * 1024
        L.append((f"buffer_store_dwordx4 {vr(pk+4*h,4)}, v{V_L16H if off >= 4096 else V_L16}, {sr(SRD_WS,4)}, s{S_HST} offen offset:{off & 4095} {SC}", 'hst'))
    return L

def prep(P, o):
    T = V_T
    if o.slim: setup_rest(P, o, False)
    if o.stamps: P(f"v_mov_b32 v{V_ST}, 0")
    common2(P, o)
    srd_rest(P, [(SRD_WS, WS_SIZE)])
    P(f"v_lshlrev_b32 v{V_L128}, 7, v{V_LANE}")
    P(f"s_mov_b32 s{S_SPARE}, 1")
    P(f"s_lshl_b32 s{S_M4}, s{S_WAVE}, 12")
    P(f"v_lshrrev_b32 v{T}, 2, v{V_LANE}")
    P(f"s_lshl2_add_u32 s{S_T0}, s{S_R}, s{S_WAVE}")
    P(f"s_lshl_b32 s{S_T0}, s{S_T0}, 4")
    P(f"v_add_u32 v20, s{S_T0}, v{T}")
    P(f"v_mul_u32_u24 v{T}, 896, v20")
    P(f"v_and_b32 v{T+1}, 3, v{V_LANE}")
    P(f"v_lshlrev_b32 v{T+1}, 4, v{T+1}")
    P(f"v_add_u32 v{T}, v{T}, v{T+1}")
    P("s_waitcnt lgkmcnt(0)")
    if o.stamps: P(f"v_writelane_b32 v{V_ST}, s94, 0")
    P(f"s_load_dword s{S_TAG}, {sr(SRD_WS)}, {WS_E}")
    P(f"s_mov_b64 {sr(SRD_W2)}, {sr(S_W2)}")
    if o.sp:
        P(f"s_load_dword s{S_MASK}, {sr(S_B1)}, 0")
        P(f"s_load_dword s{S_MASK+1}, {sr(S_B2)}, 0")
        P(f"s_load_dword s{S_MASK+2}, {sr(SRD_OUT)}, 0")
        P(f"s_lshl2_add_u32 s{S_T0}, s{S_RBL}, s{S_WAVE}")
        P(f"s_lshl_b32 s{S_T0}, s{S_T0}, 20")
        P(f"s_load_dword s{S_MASK+3}, {sr(SRD_WS)}, s{S_T0}")
    def mallwarm():
        P(f"s_lshl2_add_u32 s{S_T4}, s{S_R}, s{S_WAVE}")
        P(f"s_lshl_b32 s{S_T0}, s{S_T4}, 13")
        P(f"s_add_u32 s{S_T1}, s{S_T0}, 0x100000")
        if o.xw:
            k0 = o.xw
            srd_rest(P, [(SRD_WQ, 448*2688)])
            P(f"v_lshrrev_b32 v{T+2}, 2, v{V_LANE}")
            P(f"v_mul_u32_u24 v{T+2}, 896, v{T+2}")
            P(f"v_and_b32 v{T+3}, 3, v{V_LANE}")
            P(f"v_lshl_add_u32 v{T+2}, v{T+3}, 7, v{T+2}")
            P(f"s_mul_i32 s{S_T2}, s{S_T4}, {16*896}")
            P(f"buffer_load_dword v178, v{T+2}, {sr(SRD_X,4)}, s{S_T2} offen offset:{3*128}")
            P(f"s_add_u32 s{S_T2}, s{S_T0}, {k0*64*2688}")
            P(f"buffer_load_dword v179, v{V_L128}, {sr(SRD_WQ,4)}, s{S_T2} offen")
        srd_rest(P, [(SRD_W1, 448*3584), (SRD_W2, 1792*896), (SRD_WQ, 448*896)])
        P(f"s_mov_b64 {sr(SRD_WQ)}, {sr(S_WO)}")
        for i, (d, so) in enumerate(((SRD_W1, S_T0), (SRD_W1, S_T1), (SRD_W2, S_T0), (SRD_W2, S_T1), (SRD_WQ, S_T0))):
            P(f"buffer_load_dword v{180+i}, v{V_L128}, {sr(d,4)}, s{so} offen")
    if o.mw == 1: mallwarm()
    if o.pw & 1:
        P(f"v_lshlrev_b32 v{T+3}, 20, v{V_LANE}")
        P(f"buffer_load_dword v177, v{T+3}, {sr(SRD_WS,4)}, 0 offen")
    def touches():
        for i in range(o.wsp):
            P(f"s_lshl2_add_u32 s{S_T4}, s{S_RBL}, s{S_WAVE}")
            P(f"s_add_u32 s{S_T4}, s{S_T4}, {16*i}")
            P(f"s_lshr_b32 s{S_T0}, s{S_T4}, 2")
            P(f"s_lshl_b32 s{S_T0}, s{S_T0}, 13")
            P(f"s_mul_i32 s{S_T1}, s{S_WAVE}, {448*896}")
            P(f"s_add_u32 s{S_T0}, s{S_T0}, s{S_T1}")
            P(f"s_add_u32 s{S_T0}, s{S_T0}, {128*896}")
            if 16 * i + 15 < 140:
                P(f"buffer_load_dword v{160+i}, v{V_L128}, {sr(SRD_W2,4)}, s{S_T0} offen")
            else:
                P(f"s_sub_u32 s{S_T1}, s{S_T4}, 140")
                P(f"s_cbranch_scc0 L_tw{i}")
                P(f"buffer_load_dword v{160+i}, v{V_L128}, {sr(SRD_W2,4)}, s{S_T0} offen")
                P(f"s_branch L_tj{i}")
                P(f"L_tw{i}:")
                P(f"s_lshl_b32 s{S_T1}, s{S_T1}, 13")
                P(f"buffer_load_dword v{190+i}, v{V_L128}, {sr(SRD_WQ,4)}, s{S_T1} offen")
                P(f"L_tj{i}:")
                P.L.append(Pseudo('drop_vm'))
        if o.fine:
            P("s_waitcnt vmcnt(0)"); stamp(P, o, 'p_warm')
    if o.wfirst: touches()
    for i in range(14):
        P(f"buffer_load_dwordx4 {vr(32+4*i,4)}, v{T}, {sr(SRD_X,4)}, 0 offen offset:{64*i}")
        P(f"global_load_dwordx4 {vr(96+4*i,4)}, v{T+1}, {sr(S_GW)} offset:{64*i}")
    if o.mw == 2: mallwarm()
    P.add(TAGOPS)
    P("v_mov_b32 v24, 0")
    P("v_mov_b32 v25, 0")
    for i in range(56):
        P(f"v_dot2_f32_bf16 v{24+(i&1)}, v{32+i}, v{96+i}, v{24+(i&1)}")
    P("s_nop 2")
    P("v_add_f32 v24, v24, v25")
    P("v_add_f32_dpp v24, v24, v24 quad_perm:[1,0,3,2] row_mask:0xf bank_mask:0xf")
    P("v_add_f32_dpp v24, v24, v24 quad_perm:[2,3,0,1] row_mask:0xf bank_mask:0xf")
    P(f"v_mul_f32 v24, {hex(f2u(-math.log2(math.e)))}, v24")
    P("v_exp_f32 v24, v24")
    P("v_add_f32 v24, 1.0, v24")
    P("v_rcp_f32 v24, v24")
    P(f"v_lshlrev_b32 v20, 2, v20")
    P(f"v_and_b32 v25, 3, v{V_LANE}")
    P(f"v_cmp_eq_u32 vcc, 0, v25")
    P(f"v_mov_b32 v27, 0x7fff0000")
    P(f"v_cndmask_b32 v20, v27, v20, vcc")
    P(f"s_mov_b32 s{S_T0}, {G_OFF}")
    P(f"buffer_store_dword v24, v20, {sr(SRD_WS,4)}, s{S_T0} offen {SC}")
    P("s_waitcnt vmcnt(0) lgkmcnt(0)")
    P("s_barrier")
    P(f"s_lshl_b32 s{S_T0}, s{S_R}, 7")
    P(f"s_add_u32 s{S_T0}, s{S_T0}, {FL_G}")
    P(f"s_cmp_eq_u32 s{S_WAVE}, 0")
    P("s_cbranch_scc0 L_prep_nf")
    P.add(flag_store(S_T0))
    P("L_prep_nf:")
    stamp(P, o, 'p_flag')
    if not o.wfirst: touches()

AQ = 16
AK = 24
AV = 40
AS = 56
AN = 104
AO = 120
AP = 136
AM = 236
A_KR, A_VR = 244, 245
A_KD, A_VD = 247, 248
A_PA, A_PV = 250, 251
A_G = 254
A_MX = 5

def att_scalars(P, o):
    P(f"s_and_b32 s{S_ARB}, s{S_SLOT}, 15")
    P(f"s_lshr_b32 s{S_J}, s{S_SLOT}, 4")
    P(f"s_lshl1_add_u32 s{S_J}, s{S_XCD}, s{S_J}")
    P(f"s_lshl2_add_u32 s{S_ATB}, s{S_ARB}, s{S_WAVE}")
    P(f"s_and_b32 s{S_PAR}, s{S_J}, 1")
    P(f"s_lshl4_add_u32 s{S_T0}, s{S_ATB}, s{S_J}")
    P(f"s_lshl_b32 s{S_T0}, s{S_T0}, 7")
    P(f"s_add_u32 s{S_OFL}, s{S_T0}, {FL_O}")
    P(f"s_mul_i32 s{S_T2}, s{S_ATB}, {A_TB}")
    P(f"s_lshl_b32 s{S_T3}, s{S_J}, 11")
    P(f"s_add_u32 s{S_T2}, s{S_T2}, s{S_T3}")
    P(f"s_add_u32 s{S_OST}, s{S_T2}, {A_OFF + 112*1024}")

def att_poll_addr(P, o):
    T = V_T
    P(f"v_min_u32 v{T}, 13, v{V_LANE}")
    P(f"v_lshrrev_b32 v{T+1}, 1, v{T}")
    P(f"v_and_b32 v{T}, 1, v{T}")
    P(f"s_mul_i32 s{S_T0}, s{S_J}, 7")
    P(f"s_lshr_b32 s{S_T0}, s{S_T0}, 1")
    P(f"s_lshl_b32 s{S_T0}, s{S_T0}, 3")
    P(f"v_mad_u32_u24 v{T}, v{T}, 31, s{S_T0}")
    P(f"v_mov_b32 v{T+2}, 896")
    P(f"v_mov_b32 v{T+3}, 448")
    P(f"v_subrev_u32 v{T+4}, 3, v{T+1}")
    P(f"v_cmp_gt_u32 vcc, 3, v{T+1}")
    P(f"v_cndmask_b32 v{T+2}, v{T+2}, v{T+3}, vcc")
    P(f"v_cndmask_b32 v{T+3}, v{T+4}, v{T+1}, vcc")
    P(f"s_mul_i32 s{S_T1}, s{S_WAVE}, 3")
    P(f"s_lshl2_add_u32 s{S_T1}, s{S_ARB}, s{S_T1}")
    P(f"s_sub_u32 s{S_T1}, s{S_T1}, 8")
    P(f"v_add_u32 v{T+3}, s{S_T1}, v{T+3}")
    P(f"v_max_i32 v{T+3}, 0, v{T+3}")
    P(f"v_mov_b32 v{T+4}, s{S_ATB}")
    P(f"v_cmp_eq_u32 vcc, 6, v{T+1}")
    P(f"v_cndmask_b32_e64 v{T+2}, v{T+2}, 0, vcc")
    P(f"v_cndmask_b32 v{T+3}, v{T+3}, v{T+4}, vcc")
    P(f"v_add_u32 v{T}, v{T}, v{T+2}")
    P(f"v_mul_u32_u24 v{T}, 683, v{T}")
    P(f"v_lshrrev_b32 v{T}, 16, v{T}")
    P(f"v_lshl_add_u32 v{T}, v{T+3}, 4, v{T}")
    P(f"v_lshlrev_b32 v{T}, 7, v{T}")
    P(f"v_add_u32 v{V_PA}, {FL_QKV}, v{T}")

def gate_flags(P, o, reg):
    P(f"s_lshr_b32 s{S_T0}, s{S_ATB}, 1")
    P(f"s_lshl_b32 s{S_T0}, s{S_T0}, 7")
    P(f"s_add_u32 s{S_T0}, s{S_T0}, {FL_G}")
    P(f"s_lshl_b32 s{S_T1}, s{S_R}, 7")
    P(f"s_add_u32 s{S_T1}, s{S_T1}, {FL_G}")
    P(f"v_writelane_b32 v{reg}, s{S_T0}, 14")
    P(f"v_writelane_b32 v{reg}, s{S_T1}, 15")

def att_addr(P, o):
    T = V_T
    P(f"s_mul_i32 s{S_T0}, s{S_J}, 7")
    P(f"s_lshr_b32 s{S_T0}, s{S_T0}, 1")
    P(f"s_lshl_b32 s{S_T4}, s{S_T0}, 9")
    P(f"s_add_u32 s{S_T1}, s{S_T4}, {56*512}")
    P(f"v_add_u32 v{A_KD}, s{S_T1}, v{V_L16}")
    P(f"v_lshrrev_b32 v{T}, 5, v{V_LANE}")
    P(f"v_and_b32 v{T+1}, 31, v{V_LANE}")
    P(f"s_add_u32 s{S_T1}, s{S_T4}, {112*512 - 2048}")
    P(f"v_lshlrev_b32 v{T+2}, 2, v{T}")
    P(f"v_xor_b32 v{T+2}, v{T+2}, v{T+1}")
    P(f"v_lshlrev_b32 v{T+2}, 4, v{T+2}")
    P(f"v_lshl_add_u32 v{T+2}, v{T}, 9, v{T+2}")
    P(f"v_add_u32 v{A_VD}, s{S_T1}, v{T+2}")
    P(f"v_xor_b32 v{A_VD+1}, 128, v{A_VD}")
    P(f"v_add_u32 v{A_KR}, s{S_M4}, v{V_L16}")
    P(f"v_bfe_u32 v{T+1}, v{V_LANE}, 4, 1")
    P(f"v_bfe_u32 v{T+2}, v{V_LANE}, 1, 1")
    P(f"v_lshl_add_u32 v{T+3}, v{T+1}, 1, v{T+2}")
    P(f"v_lshlrev_b32 v{T+4}, 9, v{T+3}")
    P(f"v_xor_b32 v{T+3}, v{T+3}, v{T}")
    P(f"v_lshl_add_u32 v{T+4}, v{T+3}, 6, v{T+4}")
    P(f"v_bfe_u32 v{T+3}, v{V_LANE}, 2, 2")
    P(f"v_lshl_add_u32 v{T+4}, v{T+3}, 4, v{T+4}")
    P(f"v_and_b32 v{T+3}, 1, v{V_LANE}")
    P(f"v_lshl_add_u32 v{T+4}, v{T+3}, 3, v{T+4}")
    P(f"s_add_u32 s{S_T1}, s{S_M4}, 2048")
    P(f"v_add_u32 v{A_VR}, s{S_T1}, v{T+4}")
    P(f"v_xor_b32 v{A_VR+1}, 128, v{A_VR}")
    P(f"v_and_b32 v{T+1}, 31, v{V_LANE}")
    P(f"v_mul_u32_u24 v{T+2}, 12, v{T}")
    P(f"s_cmp_eq_u32 s{S_PAR}, 0")
    P(f"s_cselect_b32 s{S_T1}, -1, 0")
    P(f"s_cselect_b32 s{S_T2}, 1544, 0")
    P(f"v_and_b32 v{T+2}, s{S_T1}, v{T+2}")
    P(f"v_xor_b32 v{T+1}, v{T+1}, v{T+2}")
    P(f"v_lshlrev_b32 v{T+1}, 4, v{T+1}")
    P(f"v_lshl_add_u32 v{T+1}, v{T}, 11, v{T+1}")
    P(f"s_mul_i32 s{S_T3}, s{S_WAVE}, {3*4096}")
    P(f"s_add_u32 s{S_T2}, s{S_T2}, s{S_T3}")
    P(f"v_add_u32 v{A_PA}, s{S_T2}, v{T+1}")
    P(f"s_mul_i32 s{S_T1}, s{S_WAVE}, 3")
    P(f"s_lshl2_add_u32 s{S_T1}, s{S_ARB}, s{S_T1}")
    P(f"v_mov_b32 v{T+1}, 0x3f80")
    for k in range(3):
        P(f"s_add_u32 s{S_T2}, s{S_T1}, {k}")
        P(f"s_cmp_lt_u32 s{S_T2}, 8")
        P(f"s_cselect_b32 s{S_T2}, 0xf14a, 0")
        P(f"v_mov_b32 v{A_PV+k}, s{S_T2}")
    P(f"v_cmp_gt_u32 vcc, 32, v{V_LANE}")
    for k in range(3): P(f"v_cndmask_b32 v{A_PV+k}, v{T+1}, v{A_PV+k}, vcc")

def att_masks(P, o):
    T = V_T
    P(f"v_lshrrev_b32 v{T+1}, 5, v{V_LANE}")
    P(f"v_mul_u32_u24 v{T+1}, 36, v{T+1}")
    P(f"v_sub_u32 v{T+1}, v{V_LANE}, v{T+1}")
    for r in range(16):
        P(f"v_cmp_le_i32_e64 {sr(S_MASK+2*r)}, {(r & 3) + 8 * (r >> 2)}, v{T+1}")
    P(f"v_mov_b32 v{T+1}, 0xffff")
    P(f"v_mov_b32 v{T+2}, 0xffff0000")
    for i in range(8):
        P(f"v_cndmask_b32_e64 v{T+3}, 0, v{T+1}, {sr(S_MASK+4*i)}")
        P(f"v_cndmask_b32_e64 v{T+4}, 0, v{T+2}, {sr(S_MASK+4*i+2)}")
        P(f"v_or_b32 v{AM+i}, v{T+3}, v{T+4}")

def att_kvoff(P, o):
    P(f"s_mul_i32 s{S_T1}, s{S_WAVE}, 3")
    P(f"s_lshl2_add_u32 s{S_T1}, s{S_ARB}, s{S_T1}")
    for k in range(3):
        P(f"s_add_i32 s{S_T2}, s{S_T1}, {k-8}")
        P(f"s_max_i32 s{S_T2}, s{S_T2}, 0")
        P(f"s_mul_i32 s{S_T2}, s{S_T2}, {QKV_TB}")
        P(f"s_add_u32 s{S_KV[k]}, s{S_T2}, {QKV_OFF}")
    P(f"s_mul_i32 s{S_T0}, s{S_J}, 7")
    P(f"s_lshr_b32 s{S_T0}, s{S_T0}, 1")
    P(f"s_lshl_b32 s{S_T0}, s{S_T0}, 9")
    P(f"s_mul_i32 s{S_T2}, s{S_ATB}, {QKV_TB}")
    P(f"s_add_u32 s{S_T2}, s{S_T2}, s{S_T0}")
    P(f"s_add_u32 s{S_KV[3]}, s{S_T2}, {QKV_OFF}")

def att_loads(o, last_g=True):
    T = V_T
    L = [[f"s_mul_i32 s{S_T3}, s{S_WAVE}, {3*4096}"]]
    for k in range(3):
        g = [f"s_add_u32 m0, s{S_T3}, {LKV + k*4096}"]
        for t in range(2):
            g.append((f"buffer_load_dwordx4 v{A_KD}, {sr(SRD_WS,4)}, s{S_KV[k]} offen offset:{t*1024} {SC} lds", 'kv'))
        for t in range(2):
            g.append((f"buffer_load_dwordx4 v{A_VD+t}, {sr(SRD_WS,4)}, s{S_KV[k]} offen offset:{2048+t*1024} {SC} lds", 'kv'))
        L += [[x] for x in g]
    for t in range(2):
        L.append([f"buffer_load_dwordx4 {vr(AQ+4*t,4)}, v{V_L16}, {sr(SRD_WS,4)}, s{S_KV[3]} offen offset:{t*1024} {SC}"])
    G = [f"v_and_b32 v{T+1}, 31, v{V_LANE}", f"v_lshlrev_b32 v{T+1}, 2, v{T+1}",
         f"s_lshl_b32 s{S_T2}, s{S_ATB}, 7", f"s_add_u32 s{S_T2}, s{S_T2}, {G_OFF}",
         f"buffer_load_dword v{A_G}, v{T+1}, {sr(SRD_WS,4)}, s{S_T2} offen {SC}"]
    if last_g:
        G += [f"s_and_b32 s{S_T1}, s{S_WAVE}, 1", f"s_lshl_b32 s{S_T0}, s{S_R}, 8", f"s_add_u32 s{S_T0}, s{S_T0}, {G_OFF}",
              f"s_lshl_b32 s{S_T2}, s{S_T1}, 7", f"s_xor_b32 s{S_T3}, s{S_T2}, 128", f"s_add_u32 s{S_T2}, s{S_T2}, s{S_T0}",
              f"s_add_u32 s{S_T3}, s{S_T3}, s{S_T0}",
              f"buffer_load_dword v{L_G}, v{T+1}, {sr(SRD_WS,4)}, s{S_T3} offen {SC}",
              f"buffer_load_dword v{L_G+1}, v{T+1}, {sr(SRD_WS,4)}, s{S_T2} offen {SC}"]
    return L + [[x] for x in G]

def att_patch():
    T = V_T
    L = [[WVM('kv')]]
    L += [[f"ds_write_b16 v{A_PA}, v{A_PV+k} offset:{LKV + k*4096}"] for k in range(3)]
    L += [[f"s_cmp_eq_u32 s{S_PAR}, 0\ns_cselect_b32 s{S_T0}, 0, -1\ns_cselect_b32 s{S_T3}, -1, 0"],
          [f"s_mov_b32 s{S_T1}, 0"], [f"s_mov_b32 s{S_T2}, 0"], [f"v_mov_b32 v{T}, 0x3f80"],
          [f"v_cndmask_b32_e64 v{AQ}, v{AQ}, v{T}, {sr(S_T0)}"], [f"v_cndmask_b32_e64 v{AQ+1}, v{AQ+1}, 0, {sr(S_T0)}"],
          [f"v_cndmask_b32_e64 v{AQ+6}, v{AQ+6}, v{T}, {sr(S_T2)}"], [f"v_cndmask_b32_e64 v{AQ+7}, v{AQ+7}, 0, {sr(S_T2)}"]]
    return L

ORDER = [0, 8, 1, 2, 3, 4, 5, 6, 7]
def kread(i, buf):
    return [f"ds_read_b128 {vr(AK+8*buf+4*t,4)}, v{A_KR} offset:{LKV + i*4096 + t*1024}" for t in range(2)]
def vread(i, buf):
    return [f"ds_read_b64_tr_b16 {vr(AV+8*buf+4*t+2*rho,2)}, v{A_VR+rho} offset:{LKV + i*4096 + t*256}" for t in range(2) for rho in range(2)]

def attention(P, o, hooks, kpre=False):
    T = V_T
    order = ORDER
    stamp(P, o, 'att_go')
    gi = [0]
    def hk():
        gi[0] += 1
        return [Slot(f'a{gi[0] - 1}')] if hooks is None else []
    if not kpre: P.add(kread(order[0], 0)); P.add(kread(order[1], 1))
    SM = AS + 16
    buf1 = [AS, SM, AS + 32, AO, AS, AS + 32, AO, AS, AS + 32]
    def qkx(s, kbuf, c): return [mfma(s, AK + 8 * kbuf, AQ, c), mfma(s, AK + 8 * kbuf + 4, AQ + 4, s)]
    def maxops(s, first=False):
        return [f"v_max_f32 v{A_MX}, v{s}, v{s+1}" if (first and i == 0) else f"v_max3_f32 v{A_MX}, v{s+2*i}, v{s+2*i+1}, v{A_MX}" for i in range(8)]
    merge = [f"v_cndmask_b32_e64 v{SM+r}, v{AS+r}, v{SM+r}, {sr(S_MASK+2*r)}" for r in range(16)]
    for n in range(9):
        m = qkx(buf1[n], n & 1, None)
        post = []
        if n == 3: post = merge
        if n == 4: post = maxops(SM, True) + maxops(buf1[2])
        if n >= 5: post = maxops(buf1[n - 2])
        nxt = kread(order[n + 2 if n + 2 < 9 else n - 5], n & 1)
        h = len(post) // 2
        P.add([m[0]] + hk() + post[:h] + [m[1]] + nxt + (vread(0, 0) + vread(8, 1) if n == 8 else []) + hk() + post[h:])
    P.add(maxops(buf1[7]))
    P.add(maxops(buf1[8]))
    P(f"v_mov_b32 v{T}, v{A_MX}")
    P(f"v_permlane32_swap_b32 v{A_MX}, v{T}")
    P(f"v_max_f32 v{A_MX}, v{A_MX}, v{T}")
    P(f"v_sub_f32 v{AN}, 0, v{A_MX}")
    P(f"v_sub_f32 v{AN+1}, 0, v{A_MX}")
    for i in range(1, 8): P(f"v_mov_b64 {vr(AN+2*i,2)}, {vr(AN,2)}")
    stamp(P, o, 'att_p1')
    kb = lambda n: (n + 1) & 1
    buf2 = lambda n: AS + 16 * [0, 2, 1][(n - 2) % 3]
    def expcvt(s, p):
        L = []
        for i in range(8):
            L += [f"v_exp_f32 v{s+2*i}, v{s+2*i}", f"v_exp_f32 v{s+2*i+1}, v{s+2*i+1}"]
            if i >= 1: L.append(f"v_cvt_pk_bf16_f32 v{p+i-1}, v{s+2*i-2}, v{s+2*i-1}")
        L.append(f"v_cvt_pk_bf16_f32 v{p+7}, v{s+14}, v{s+15}")
        return L
    def pv(p, vbuf, first=False):
        return [mfma(AO, AV + 8 * vbuf, p, None if first else AO), mfma(AO, AV + 8 * vbuf + 4, p + 4, AO)]
    m2 = qkx(buf2(2), kb(2), AN); m3 = qkx(buf2(3), kb(3), AN)
    sub = [f"v_sub_f32 v{SM+r}, v{SM+r}, v{A_MX}" for r in range(16)]
    ec = expcvt(SM, AP)
    sp = []
    for i in range(8):
        sp += [f"v_and_b32 v{AP+8+i}, v{AP+i}, v{AM+i}", f"v_xor_b32 v{AP+16+i}, v{AP+i}, v{AP+8+i}"]
    P.add([m2[0]] + hk() + sub[:8] + [m2[1]] + kread(order[4], kb(4)) + hk() + sub[8:] + [m3[0]] + hk() + ec[:5] +
          [m3[1]] + kread(order[5], kb(5)) + hk() + ec[5:] + sp)
    pend = pv(AP + 16, 0, True) + pv(AP + 8, 1)
    pend_rd = vread(order[2], 0) + vread(order[3], 1)
    for n in range(2, 9):
        p = AP + 16 if n == 3 else (AP if (n & 1) == 0 else AP + 8)
        ec = expcvt(buf2(n), p)
        mq = qkx(buf2(n + 2), kb(n + 2), AN) if n + 2 < 9 else []
        kr = kread(order[n + 4], kb(n + 4)) if n + 4 < 9 else []
        ms = pend + mq
        seq = []
        k = len(ms)
        step = max(1, len(ec) // max(k, 1))
        ei = 0
        for j, mm in enumerate(ms):
            seq.append(mm)
            if j == len(pend) - 1: seq += pend_rd
            if j == k - 1 and mq: seq += kr
            seq += hk()
            take = ec[ei:ei + step] if j < k - 1 else ec[ei:]
            seq += take; ei += len(take)
        P.add(seq)
        vb = n & 1
        pend = pv(p, vb)
        pend_rd = vread(order[n + 2], vb) if n + 2 < 9 else []
    P.add([pend[0]] + hk() + [pend[1]] + hk())
    stamp(P, o, 'att_p2')

def att_epilogue(P, o):
    T = V_T
    P(f"s_cmp_eq_u32 s{S_PAR}, 0")
    P(f"s_cselect_b64 {sr(S_T0)}, -1, 0")
    P(f"s_cselect_b32 s{S_MASK}, 0, -1")
    P(f"s_cselect_b32 s{S_MASK+3}, -1, 0")
    P(f"s_mov_b32 s{S_MASK+1}, 0")
    P(f"s_mov_b32 s{S_MASK+2}, 0")
    P(f"v_cndmask_b32_e64 v{T}, v{AO}, v{AO+12}, {sr(S_T0)}")
    P(f"v_mov_b32 v{T+1}, v{T}")
    P(f"v_permlane32_swap_b32 v{T}, v{T+1}")
    P(f"v_cndmask_b32_e64 v{T}, v{T}, v{T+1}, {sr(S_T0)}")
    P(f"v_rcp_f32 v{T}, v{T}")
    P(f"v_mul_f32 v{T+1}, v{T}, v{A_G}")
    for t in range(2):
        for i in range(8 * t, 8 * t + 8): P(f"v_mul_f32 v{AO+i}, v{T+1}, v{AO+i}")
        for i in range(4 * t, 4 * t + 4): P(f"v_cvt_pk_bf16_f32 v{AP+i}, v{AO+2*i}, v{AO+2*i+1}")
        for r in ((0, 1), (6, 7))[t]: P(f"v_cndmask_b32_e64 v{AP+r}, v{AP+r}, 0, {sr(S_MASK + 2*t)}")
        P(f"buffer_store_dwordx4 {vr(AP+4*t,4)}, v{V_L16}, {sr(SRD_WS,4)}, s{S_OST} offen offset:{t*1024} {SC}", tag='ost')

LACC = 16
EARLY = [('a', r) for r in range(32, 112, 4)] + list(range(160, 200, 4)) + list(range(204, 216, 4))
LATE = list(range(80, 120, 4)) + list(range(144, 160, 4)) + list(range(236, 252, 4)) + list(range(120, 144, 4))

def last_baddr(P, o):
    T = V_T
    P(f"s_mov_b64 {sr(SRD_W2)}, {sr(S_W2)}")
    srd_rest(P, [(SRD_W2, 1792*896)])
    P(f"s_mul_i32 s{S_BOF}, s{S_WAVE}, {448*896}")
    P(f"s_lshl_b32 s{S_T3}, s{S_C}, 7")
    P(f"s_add_u32 s{S_BOF}, s{S_BOF}, s{S_T3}")
    if ROT[0]:
        P(f"s_add_u32 s{S_AG}, s{S_C}, s{S_RBL}")
        if o.rcls == 2: P(f"s_and_b32 s{S_AG}, s{S_AG}, 1")
        else:
            P(f"s_lshl_b32 s{S_AG}, s{S_AG}, 1")
            P(f"s_lshr_b32 s{S_AG}, 0x24924, s{S_AG}")
            P(f"s_and_b32 s{S_AG}, s{S_AG}, 3")
        P(f"s_mul_i32 s{S_AG}, s{S_AG}, {ROT[0]}")
        P(f"s_lshl_b32 s{S_BG}, s{S_AG}, 1")
        P(f"s_mul_i32 s{S_T3}, s{S_AG}, {64*896}")
        P(f"s_add_u32 s{S_BOF}, s{S_BOF}, s{S_T3}")
    P(f"v_lshrrev_b32 v{T}, 3, v{V_LANE}")
    P(f"v_bfe_u32 v{T+1}, v{V_LANE}, 4, 1")
    P(f"v_lshlrev_b32 v{T+1}, 2, v{T+1}")
    P(f"v_xor_b32 v{T+1}, v{T+1}, v{V_LANE}")
    P(f"v_and_b32 v{T+1}, 7, v{T+1}")
    P(f"v_mul_u32_u24 v{T}, 896, v{T}")
    P(f"v_lshl_add_u32 v{V_BA}, v{T+1}, 4, v{T}")
    for i in range(1, 4): P(f"v_add_u32 v{V_BA+i}, {i*(8*896-1024)}, v{V_BA}")
    P(f"v_bfe_u32 v{T}, v{V_LANE}, 2, 2")
    P(f"v_lshrrev_b32 v{T+1}, 5, v{V_LANE}")
    P(f"v_lshl_add_u32 v{T+1}, v{T+1}, 2, v{T}")
    P(f"v_lshlrev_b32 v{T+1}, 7, v{T+1}")
    P(f"v_bfe_u32 v{T+2}, v{V_LANE}, 4, 1")
    P(f"v_lshl_add_u32 v{T+1}, v{T+2}, 5, v{T+1}")
    P(f"v_and_b32 v{T+2}, 3, v{V_LANE}")
    P(f"v_lshl_add_u32 v{T+1}, v{T+2}, 3, v{T+1}")
    P(f"v_lshrrev_b32 v{T}, 1, v{T}")
    P(f"v_lshl_add_u32 v{T}, v{T}, 6, v{T+1}")
    P(f"v_add_u32 v{T}, s{S_M4}, v{T}")
    P(f"s_lshr_b32 s{S_T0}, s{S_WAVE}, 1")
    P(f"s_lshl_b32 s{S_T0}, s{S_T0}, 6")
    P(f"v_xor_b32 v{V_BR[0][1]}, s{S_T0}, v{T}")
    P(f"v_xor_b32 v{V_BR[0][0]}, 64, v{V_BR[0][1]}")
    for k in range(2): P(f"v_add_u32 v{V_BR[1][k]}, 0x10000, v{V_BR[0][k]}")

V_AT = 201
def last_baddr2(P, o):
    P(f"v_lshrrev_b32 v{V_T}, 5, v{V_LANE}")
    P(f"v_mul_u32_u24 v{V_T}, {A_TB - 4096}, v{V_T}")
    P(f"v_lshl_add_u32 v{V_T}, v{V_LANE}, 7, v{V_T}")
    P(f"s_lshl_b32 s{S_T0}, s{S_C}, 12")
    P(f"v_add_u32 v{V_AT}, s{S_T0}, v{V_T}")
    for k in range(2): P(f"v_add_u32 v{V_BR[2][k]}, 0x20000, v{V_BR[0][k]}")

def last_setup(P, o):
    T = V_T
    P(f"s_lshl_b32 s{S_T0}, s{S_C}, 7")
    P(f"v_and_b32 v{T}, 31, v{V_LANE}")
    if not o.eb:
        P(f"v_lshl_add_u32 v{T+1}, v{T}, 2, s{S_T0}")
        P(f"global_load_dword v{V_DUM}, v{T+1}, {sr(S_B2)}")
    P(f"s_and_b32 s{S_T1}, s{S_WAVE}, 1")
    P(f"s_mul_i32 s{S_T2}, s{S_T1}, {A_TB}")
    P(f"s_sub_u32 s{S_T3}, {A_TB}, s{S_T2}")
    P(f"v_add_u32 v{V_AA}, s{S_T3}, v{V_L16}")
    P(f"v_add_u32 v{V_AA+1}, s{S_T2}, v{V_L16}")
    P(f"v_and_b32 v{T+1}, 1, v{V_LANE}")
    P(f"s_lshl_b32 s{S_T0}, s{S_R}, 1")
    P(f"v_add_u32 v{T+1}, s{S_T0}, v{T+1}")
    P(f"v_lshlrev_b32 v{T+1}, 4, v{T+1}")
    P(f"v_bfe_u32 v{T+2}, v{V_LANE}, 1, 2")
    P(f"v_add_u32 v{T+1}, v{T+1}, v{T+2}")
    P(f"v_lshlrev_b32 v{T+1}, 7, v{T+1}")
    P(f"s_mul_i32 s{S_T0}, s{S_WAVE}, 7")
    P(f"s_lshr_b32 s{S_T0}, s{S_T0}, 1")
    P(f"s_lshl_b32 s{S_T0}, s{S_T0}, 7")
    P(f"s_add_u32 s{S_T0}, s{S_T0}, {FL_H}")
    P(f"v_add_u32 v{V_PH}, s{S_T0}, v{T+1}")
    P(f"s_lshl_b32 s{S_T0}, s{S_WAVE}, 9")
    P(f"s_add_u32 s{S_T0}, s{S_T0}, {FL_O}")
    P(f"v_add_u32 v{V_PO}, s{S_T0}, v{T+1}")
    for d in range(1, 4):
        P(f"s_xor_b32 s{S_T0}, s{S_WAVE}, {d}")
        P(f"s_lshl_b32 s{S_T0}, s{S_T0}, 12")
        P(f"s_add_u32 s{S_T0}, s{S_T0}, {LP[d]}")
        P(f"v_add_u32 v{L_RW+d-1}, s{S_T0}, v{V_L16}")
    P(f"s_add_u32 s{S_T0}, s{S_M4}, {LP[1]}")
    P(f"v_add_u32 v{L_RR}, s{S_T0}, v{V_L16}")
    P(f"s_lshl_b32 s{S_T0}, s{S_R}, 6")
    P(f"s_lshl_b32 s{S_T2}, s{S_T1}, 5")
    P(f"s_add_u32 s{S_T0}, s{S_T0}, s{S_T2}")
    P(f"v_add_u32 v{T+1}, s{S_T0}, v{T}")
    P(f"v_mul_u32_u24 v{T+1}, 896, v{T+1}")
    P(f"v_lshrrev_b32 v{T+2}, 5, v{V_LANE}")
    P(f"v_lshl_add_u32 v{T+1}, v{T+2}, 4, v{T+1}")
    P(f"s_lshl_b32 s{S_T0}, s{S_C}, 7")
    P(f"s_lshr_b32 s{S_T2}, s{S_WAVE}, 1")
    P(f"s_lshl_b32 s{S_T2}, s{S_T2}, 6")
    P(f"s_add_u32 s{S_T0}, s{S_T0}, s{S_T2}")
    P(f"v_add_u32 v{L_OA}, s{S_T0}, v{T+1}")

def last_soff(P, o):
    P(f"s_mul_i32 s{S_T0}, s{S_R}, {2*A_TB}")
    P(f"s_add_u32 s{S_T0}, s{S_T0}, {A_OFF}")
    P(f"s_lshl_b32 s{S_T2}, s{S_WAVE}, 13")
    P(f"s_add_u32 s{S_AO2}, s{S_T0}, s{S_T2}")
    P(f"s_add_u32 s{S_AO2}, s{S_AO2}, {112*1024}")
    P(f"s_mul_i32 s{S_T2}, s{S_WAVE}, {28*1024}")
    P(f"s_add_u32 s{S_AOF}, s{S_T0}, s{S_T2}")
    if ROT[0]:
        P(f"s_lshl_b32 s{S_T2}, s{S_AG}, 12")
        P(f"s_add_u32 s{S_AOF}, s{S_AOF}, s{S_T2}")
    P(f"s_mov_b64 {sr(SRD_WO)}, {sr(S_WO)}")
    P(f"s_mov_b32 s{SRD_WO+2}, {448*896}")
    P(f"s_mul_i32 s{S_BO}, s{S_WAVE}, {112*896}")
    P(f"s_lshl_b32 s{S_T3}, s{S_C}, 7")
    P(f"s_add_u32 s{S_BO}, s{S_BO}, s{S_T3}")

def bias2(P, o):
    P(f"s_add_u32 s{S_T0}, s{S_M4}, {LP[PIECE[11]]}")
    bias_expand(P, V_DUM, 12, L_BA, S_T0)
    P(f"s_lshr_b32 s{S_T2}, s{S_WAVE}, 1")
    P(f"s_lshl_b32 s{S_T2}, s{S_T2}, 7")
    P(f"v_add_u32 v{L_BA}, s{S_T2}, v{L_BA}")
    P(f"v_sub_f32 v{L_G}, 1.0, v{L_G}")
    P(f"v_sub_f32 v{L_G+1}, 1.0, v{L_G+1}")

def a_slots(o):
    ne = o.nearly * 2
    sl = EARLY[:ne] + LATE + EARLY[ne:]
    ring = len(sl) // 2 * 2
    return [sl[i % ring] for i in range(72)], ring // 2

def a_load(o, n):
    sl, _ = a_slots(o)
    so, m = (S_AOF, n) if n < 28 else (S_AO2, n - 28)
    L = [rot_step(so, S_AG, 4096, 7) if (ROT[0] and n < 28) else f"s_add_u32 s{so}, s{so}, 4096"] if (m and m % 4 == 0) else []
    for ttl in range(2):
        L.append((f"buffer_load_dwordx4 {xr(sl[2*n+ttl])}, v{V_AA+ttl}, {sr(SRD_WS,4)}, s{so} offen offset:{(m&3)*1024} {SC}", 'ald'))
    return L

def last(P, o):
    q = lambda ttl, ctl: LACC + 32 * ttl + 16 * ctl
    sl, depth = a_slots(o)
    mm = lambda n, ttl, ctl: mfma(q(ttl, ctl), breg(n, ctl), sl[2 * n + ttl], None if n == 0 else q(ttl, ctl))
    assert o.nearly > 0 and PIECE[11] not in (1, 2, 3)
    nxt = o.nearly
    D = Prog(); att_epilogue(D, o); epi = atomic_groups(D.L)
    if not o.epin:
        for g in epi: P.add(g)
        epi = []
        while nxt < max(o.lead, o.nearly): P.add(a_load(o, nxt)); nxt += 1
    EP = {}
    if epi: spread(EP, epi, list(range(o.epin)), False)
    stamp(P, o, 'last_go')
    opolled = False
    ol = lambda m, ttl: [(f"buffer_load_dwordx4 {xr(sl[2*(28+m)+ttl])}, v{V_AA+ttl}, {sr(SRD_WS,4)}, s{S_AO2 if m < 4 else S_BO} offen offset:{(m&3)*1024} {SC}", 'ald')]
    oq = [ol(m, ttl) for ttl in range(2) for m in range(8)]
    oq[0] = [f"s_add_u32 s{S_BO}, s{S_AO2}, 4096"] + oq[0]
    assert depth >= 36 - o.ocheck_at and not o.left
    sc = lambda ttl, ctl: [f"v_mul_f32 v{q(ttl,ctl)+i}, v{L_G+ttl}, v{q(ttl,ctl)+i}" for i in range(16)]
    D = Prog(); bias2(D, o); b2l = [[x] for x in D.L]
    for n in range(28):
        M = [mm(n, ttl, ctl) for ttl in range(2) for ctl in range(2)]
        ex = []; cnt = 0
        top = (36 if opolled else 28)
        if o.left and n < o.left_steps:
            k = -(-len(o.left) // (o.left_steps - n)); ex += o.left[:k]; o.left = o.left[k:]
        while nxt < min(n + min(depth, o.lead + 1), 28) and cnt < 2:
            ex += merge_salu([[e] for e in a_load(o, nxt)]); nxt += 1; cnt += 1
        if opolled and oq:
            k = -(-len(oq) // max(1, o.oend - n)); ex += oq[:k]; oq = oq[k:]
        if o.jit0 <= n < o.jit0 + 14 and not o.drop & 32:
            k = n - o.jit0 + 22
            ex += [[WVM(f'bp{k >> 1}')] + b_reads(k)[:2], b_reads(k)[2:]]
        if o.jit0 + 3 <= n < o.jit0 + 6: ex += b2l[((n - o.jit0 - 3) * len(b2l)) // 3:((n - o.jit0 - 2) * len(b2l)) // 3]
        if n == o.oflag_at and o.nearly > 0:
            D0 = Prog(); D1 = Prog()
            if o.fine: stamp(D0, o, 'of0'); stamp(D1, o, 'of1')
            ex = ex + [D0.L + [WVM('ost')] + D1.L + flag_store(S_OFL)]
        if n == o.opoll_at: ex += [poll_issue(V_PO)]
        if n == o.ocheck_at:
            D0 = Prog(); D1 = Prog()
            if o.fine: stamp(D0, o, 'oc0'); stamp(D1, o, 'oc1')
            ex = [D0.L + poll_check(V_PO) + D1.L] + ex; opolled = True
        if o.hst and n % 4 == 0 and n: stamp(P, o, f'h{n}')
        hh = {}
        isv = lambda it: any((isinstance(x, tuple) and x[0].startswith('buffer')) or (isinstance(x, str) and x.startswith('buffer')) for x in it)
        vm_ = [it for it in ex if isv(it) or any(isinstance(x, str) and 'cbranch' in x for x in it)]
        ot_ = [it for it in ex if it not in vm_]
        if vm_: spread(hh, vm_, list(o.apos) if len(vm_) <= 2 else [0, 1, 2, 3])
        if ot_: spread(hh, ot_, list(o.dpos))
        if n == o.bar_at: P("s_waitcnt lgkmcnt(0)"); P("s_barrier")
        if n == 26: M = [mm(26, 0, 0), mm(26, 0, 1), mm(27, 0, 0), mm(27, 0, 1)]
        if n == 27: M = [mm(26, 1, 0), mm(26, 1, 1), mm(27, 1, 0), mm(27, 1, 1)]
        for t in range(4):
            P.add([M[t]] + sum(hh.get(t, []), []) + sum(EP.get(4 * n + t, []), []))
            if n == 27 and t >= 1: P.add((sc(0, 0) + sc(0, 1))[[0, 0, 10, 21][t]:[0, 10, 21, 32][t]])
    stamp(P, o, 'last_h')
    for it in oq: P.add(it)
    used = set(sl[56:72])
    free = [r for r in sorted(x for x in set(sl) if not isinstance(x, tuple)) if r not in used]
    B2 = [r for r in free if all((r + 4 * k) in free for k in range(4))][0]
    for k in range(4): P(f"ds_read_b128 {vr(B2+4*k,4)}, v{L_BA} offset:{32*k}")
    rest = sc(1, 0) + [f"v_add_f32 v{q(1,1)+i}, v{q(1,1)+i}, v{B2+i}" for i in range(16)] + sc(1, 1)
    M = []
    for n in range(28, 36): M += [[mm(n, 0, 0)], [mm(n, 0, 1)]]
    P.add(interleave(M, rest))
    wr = lambda ttl, ctl: [f"ds_write_b128 v{L_RR}, {vr(q(ttl,ctl)+4*i,4)} offset:{(((1-ttl) | ((1-ctl) << 1)) - 1)*16384 + i*1024}" for i in range(4)]
    w = wr(0, 0) + wr(0, 1)
    seq = []
    for i, n in enumerate(range(28, 36)):
        seq.append(mm(n, 1, 0))
        if i >= 2: seq += w[:2]; w = w[2:]
    seq += w
    w = wr(1, 0)
    for i, n in enumerate(range(28, 36)):
        seq.append(mm(n, 1, 1))
        if i >= 3 and w: seq.append(w.pop(0))
    P.add(seq + w)
    P("s_waitcnt lgkmcnt(0)")
    P("s_barrier")
    stamp(P, o, 'last_o')
    R = 80
    for d in range(3):
        for i in range(4):
            P(f"ds_read_b128 {vr(R+16*d+4*i,4)}, v{L_RW+d} offset:{i*1024}")
    o_ = q(1, 1)
    for d in range(3):
        for i in range(8):
            P(f"v_pk_add_f32 {vr(o_+2*i,2)}, {vr(o_+2*i,2)}, {vr(R+16*d+2*i,2)}")
    p = R + 48
    for i in range(8): P(f"v_cvt_pk_bf16_f32 v{p+i}, v{o_+2*i}, v{o_+2*i+1}")
    for h in range(2):
        P(f"v_permlane32_swap_b32 v{p+4*h}, v{p+4*h+2}")
        P(f"v_permlane32_swap_b32 v{p+4*h+1}, v{p+4*h+3}")
    for h in range(2):
        P(f"buffer_store_dwordx4 {vr(p+4*h,4)}, v{L_OA}, {sr(SRD_OUT,4)}, 0 offen offset:{32*h} {['', 'sc1', 'nt'][o.osc]}")
    stamp(P, o, 'end')

HEADER = open('cdna_kernels/' + NAME + '.s.ref').read().split('; Override launch')[0]

ABOUT = """;
;   slot%8 != 7 (224 workgroups):
;     pass A   q/k/v = x @ wqkv for 128 tokens x 96 columns (x fragments stay in AGPRs)      -> d_ws, flag per wave
;   slot%8 == 7 (32 workgroups): gate g = sigmoid(x . gate_w), weight warm-up, their attention unit
"""

def finish(P, o, name):
    for sp in slow_paths:
        P.forget(); P(sp)
    L = finalize(P, True)
    pos = lambda t: [i for i, x in enumerate(L) if x.text.startswith(t)]
    assert pos('ds_write_b64')[0] < pos('v_lshl_add_u32 v8,')[0] < pos('ds_read_b128 v[64:67], v8')[0], 'b1 scratch read before written'
    if o.align:
        L, nf = align_runs(L); print('aligned runs:', nf)
    out = HEADER + f"; @launch grid=(256,1,1) block=(256,1,1) lds={LDS_BYTES}\n" + ABOUT
    out += '.amdgcn_target "amdgcn-amd-amdhsa--gfx950"\n.text\n'
    out += f".globl {name}\n.p2align 8\n.type {name},@function\n{name}:\n" + text(L)
    out += "s_endpgm\n.fill 2048, 4, 0xbf800000\n"
    out += f""".section .rodata,"a"
.p2align 6
.amdhsa_kernel {name}
  .amdhsa_next_free_vgpr 512
  .amdhsa_next_free_sgpr 102
  .amdhsa_accum_offset 256
  .amdhsa_group_segment_fixed_size 0
  .amdhsa_kernarg_size 96
  .amdhsa_user_sgpr_count 2
  .amdhsa_user_sgpr_kernarg_segment_ptr 1
  .amdhsa_system_sgpr_workgroup_id_x 1
.end_amdhsa_kernel
"""
    if o.diag is not None:
        out = out.replace('DIAG_I', str(o.stamp_names.index(o.diag[0]))).replace('DIAG_J', str(o.stamp_names.index(o.diag[1])))
    return out

def stf(o, n):
    D = Prog()
    if o.fine: stamp(D, o, n)
    return D.L

def groups(fn, o):
    D = Prog(); fn(D, o); return atomic_groups(D.L)

def build(o):
    name = NAME + "_kernel"
    R = lambda a, b: list(range(a, b))
    P = Prog(); setup(P, o, "L_end")
    P(f"s_cmp_eq_u32 s{S_C}, 7")
    P("s_cbranch_scc1 L_prep")
    H = Gaps()
    def first(D, o):
        s1_w1_addr(D, o)
        if o.w1t: w1_touch(D, o)
        common2(D, o); s1_misc(D, o)
        if o.stouch < 2 and not o.eb: D(f"buffer_load_dword v{V_TAG}, v{V_FLAGOFF}, {sr(SRD_WS,4)}, 0 offen")
        last_baddr(D, o)
        att_scalars(D, o)
        if not o.b1late: bias1(D, o)
        att_poll_addr(D, o)
        if not o.glate: gate_flags(D, o, V_PA)
        att_addr(D, o)
        if o.b1late: bias1(D, o)
        if o.mka: att_masks(D, o)
        if o.stouch < 2 and not o.eb: D(f"v_readfirstlane_b32 s{S_TAG}, v{V_TAG}")
        D.add(TAGOPS)
        for i in range(o.wact):
            D(f"s_mul_i32 s{S_T4}, s{S_RBL}, 7")
            D(f"s_add_u32 s{S_T4}, s{S_T4}, s{S_C}")
            D(f"s_lshl2_add_u32 s{S_T4}, s{S_T4}, s{S_WAVE}")
            D(f"s_add_u32 s{S_T4}, s{S_T4}, {16*o.wsp + 112*i}")
            warm_touch(D, S_T4, 161 + i, S_T0, V_L128)
    H.put('v', groups(first, o), 0, o.su_end)
    H.put('m', bias1_reads(), o.b1r, 84)
    def first2(D, o): att_kvoff(D, o); last_soff(D, o)
    H.put('v', groups(first2, o), o.su_end, 84)
    FAKE[0] = o.fake & 1
    pass_a(P, o, H)
    FAKE[0] = 0
    P('; ---------------- q/k/v epilogue ----------------')
    qkv_epilogue(P, o, merge_salu([it for n in range(o.nba, o.nbe) for it in dma_b(n)]))
    stamp(P, o, 'qkv_epi')
    H = Gaps()
    def second(D, o):
        last_setup(D, o)
        if o.glate: gate_flags(D, o, V_PH)
        if not o.mka: att_masks(D, o)
    H.put('v', groups(second, o), 0, 50)
    for i, g in enumerate(o.l2t):
        D = Prog(); l2_touch(D, o, i); H.put('v', [D.L], g, g + 1)
    dm = lambda a, b: merge_salu([it for p in range(a, b) for it in b_dma(p)])
    rd = lambda a, b: [[WVM(f'bp{n >> 1}')] + b_reads(n)[:2] if k == 0 else b_reads(n)[2:] for n in range(2 * a, 2 * b) for k in range(2)]
    b = o.pb
    kv = merge_salu(att_loads(o))
    gl = []
    if o.glate: kv, gl = kv[:14], kv[14:]
    def put_m0(items, g0, g1):
        own = lambda g: 12 <= g < 52 and (g - 12) % 16 < 8
        free = [g for g in range(g0, g1) if not own(g)]
        runs = []; cur = []
        for it in items:
            if any(isinstance(x, str) and ' m0,' in x for x in it) and cur: runs.append(cur); cur = []
            cur.append(it)
        runs.append(cur)
        n = len(runs)
        for i, r in enumerate(runs):
            sl = free[(i * len(free)) // n:((i + 1) * len(free)) // n]
            keep = [sl[0]]
            for g in sl[1:]:
                if g != keep[-1] + 1: break
                keep.append(g)
            spread(H.m, r, keep)
    if o.nbe < 4: H.put('m', merge_salu([it for n in range(o.nbe, 4) for it in dma_b(n)]), 0, 12)
    for c in range(3): H.put('m', merge_salu(dma_b(c + 4)), 16 * c + 12, 16 * c + 20)
    if not o.drop & 1: put_m0(dm(0, o.n1), b[0], b[1])
    H.put('m', [stf(o, 'qf0') + [WVM('qst')] + stf(o, 'qf1') + flag_store(S_QFL) + ([f"v_min_u32 v15, {47*128}, v{V_L128}", f"buffer_load_dword v15, v15, {sr(SRD_WS,4)}, s{S_QST} offen {SC}"] if o.rt & 2 else [])], o.qflag, o.qflag + 1)
    H.put('m', [poll_issue(V_PA)], o.kpoll, o.kpoll + 1)
    kvl = kv[o.nkv:]
    if not o.drop & 4: put_m0([['s_waitcnt lgkmcnt(0)', 's_barrier'] * (o.n1 > 4) + stf(o, 'kc0') + poll_check(V_PA) + stf(o, 'kc1') + kv[0]] + kv[1:o.nkv], o.kcheck, o.kend)
    if not o.r1late: H.put('m', rd(0, o.n1), b[2], b[3])
    pt = att_patch()
    if o.patch < 112:
        H.put('m', pt[:4], o.patch, o.patch + 2)
        H.put('v', pt[4:], o.patch + 2, 112)
    FAKE[0] = o.fake & 2
    pass_b(P, o, H)
    FAKE[0] = 0
    P("s_waitcnt lgkmcnt(0)")
    P("s_barrier")
    stamp(P, o, 'pass_b')
    if o.trunc:
        stamp_flush(P, o); P("s_endpgm"); P.forget(); P("L_prep:"); prep(P, o); stamp_flush(P, o); P("L_end:"); P("s_endpgm")
        return finish(P, o, name)
    if o.patch < 112: P.add(kread(ORDER[0], 0) + kread(ORDER[1], 1))
    last_baddr2(P, o)
    na = 11 + (o.n1 - 4)
    Q = Prog(); held = []; sstream = []
    for F in range(4):
        g = gelu_tile(F)
        for i, x in enumerate(g[:-2]):
            if i % 4 == 0: Q.L.append(Slot(f'g{F}_{i}'))
            Q.add([x])
        held += g[-2:]
        if F >= o.kvt - 1:
            Q.L.append(Slot(f'gs{F}'))
            if o.pst: sstream += [([x], (lambda F: lambda st: f'gs{F}' in st['seen'])(F), 'x') for x in held]
            else: Q.add(held)
            held = []
        if F == o.patch_t:
            if o.fine: stamp(Q, o, 'pt0')
            Q.add(pt[0])
            if o.fine: stamp(Q, o, 'pt1')
            for it in pt[1:]: Q.add(it)
        if F == o.bar_t:
            Q("s_waitcnt lgkmcnt(0)"); Q("s_barrier")
            Q.add(kread(ORDER[0], 0) + kread(ORDER[1], 1))
    stamp(Q, o, 'gelu')
    attention(Q, o, None, kpre=True)
    seen = lambda n: (lambda st: n in st['seen'])
    after = lambda key, dt: (lambda st: key in st['done'] and st['t'] >= st['done'][key] + dt)
    both = lambda a, b: (lambda st: a(st) and b(st))
    dstream = [(it, None, f'kv{i}') for i, it in enumerate(kvl)]
    for p in range(o.n1, 18):
        its = merge_salu(b_dma(p))
        for i, it in enumerate(its):
            cond = None
            if p == o.n1 and i == 0: cond = seen(o.ra0)
            lo = 0 if o.r1late else o.n1
            if i == 0 and [q for q in range(lo, p) if PIECE[q] == PIECE[p]]:
                prev = [q for q in range(lo, p) if PIECE[q] == PIECE[p]][-1]
                cond = after(f'rd{prev}', 60); it = [WLG(f'rd{prev}')] + it
            if o.pause:
                c0 = cond
                cond = (lambda c0: lambda st: (c0 is None or c0(st)) and (o.pause_at not in st['seen'] or f'a{o.resume}' in st['seen']))(c0)
            dstream.append((it, cond, f'dm{p}' if i == len(its) - 1 else 'x'))
    rstream = []
    for p in range(0 if o.r1late else o.n1, 11):
        r = b_reads(2 * p) + b_reads(2 * p + 1)
        for k in range(4):
            it = [(x, f'rd{p}') for x in r[2 * k:2 * k + 2]]
            rstream.append(([WVM(f'bp{p}')] * (k == 0) + it, (seen(o.r1at) if p < o.n1 else both(after(f'dm{p}', o.lat), seen('a0'))) if k == 0 else None, f'rd{p}' if k == 3 else 'x'))
    def st_(n):
        D = Prog()
        if o.fine: stamp(D, o, n)
        return D.L
    names0 = list(o.stamp_names)
    fstream = [(st_('hf0') + [WVM('hst')] + st_('hf1') + flag_store(S_HFL) + ([f"buffer_load_dword v{V_AT-1}, v{V_L128}, {sr(SRD_WS,4)}, s{S_HST} offen {SC}"] if o.rt & 1 else []), both(seen(f'a{o.hflag}'), lambda st: not sstream), 'hf')]
    if o.nearly > 0:
        fstream.append((poll_issue(V_PH), seen(f'a{o.hpoll}'), 'hp'))
        al = merge_salu([[x] for n in range(o.nearly) for x in a_load(o, n)])
        al = al[:2] + gl + al[2:]
        if o.atouch:
            tch = [f"buffer_load_dword v{V_AT}, v{V_AT}, {sr(SRD_WS,4)}, s{S_AOF} offen {SC}"]
            fstream.append((st_('hc0') + poll_check(V_PH) + st_('hc1') + tch, seen(f'a{o.hcheck}'), 'hc'))
            fstream += [(it, seen(f'a{o.ea0}'), 'ea') for it in al]
        else:
            fstream.append((st_('hc0') + poll_check(V_PH) + st_('hc1') + al[0], seen(f'a{o.hcheck}'), 'hc'))
            fstream += [(it, None, 'ea') for it in al[1:]]
    L, t = place(Q.L, {'s': sstream, 'f': fstream, 'r': rstream, 'd': dstream}, gap=o.gap, burst=o.burst)
    kvpos = max([i for i, x in enumerate(L) if isinstance(x, I) and x.tag == 'kv'] + [-1]); hpos = min(i for i, x in enumerate(L) if isinstance(x, I) and x.tag == 'hst')
    print('estimated gelu+attention cycles', t, 'left', len(dstream), len(rstream), len(fstream), 'kv before h stores', kvpos < hpos)
    assert not rstream and not sstream
    P.L += L
    for it, _, _ in fstream: P.add(it)
    o.left = [it for it, _, _ in dstream]
    FAKE[0] = o.fake & 4
    last(P, o)
    FAKE[0] = 0
    stamp_flush(P, o)
    P("s_endpgm")
    P.forget()
    P("L_prep:")
    prep(P, o)
    att_scalars(P, o); att_poll_addr(P, o); gate_flags(P, o, V_PA); att_addr(P, o); att_masks(P, o); att_kvoff(P, o)
    poll(P, o, V_PA)
    for it in att_loads(o, False) + att_patch(): P.add(it)
    P("s_waitcnt lgkmcnt(0)")
    P("s_barrier")
    if o.pw & 2:
        srd_rest(P, [(SRD_OUT, 2048*896)])
        P(f"v_lshlrev_b32 v{V_T+3}, 18, v{V_LANE}")
        P(f"buffer_load_dword v200, v{V_T+3}, {sr(SRD_OUT,4)}, 0 offen")
    st, o.stamps = o.stamps, False
    attention(P, o, {})
    att_epilogue(P, o)
    o.stamps = st
    P("s_waitcnt vmcnt(0)")
    P.add(flag_store(S_OFL))
    stamp(P, o, 'p_att')
    stamp_flush(P, o)
    P(f"s_cmp_eq_u32 s2, 56")
    P("s_cbranch_scc0 L_end")
    P(f"s_cmp_eq_u32 s{S_WAVE}, 0")
    P("s_cbranch_scc0 L_end")
    P(f"v_lshlrev_b32 v{V_PA}, 7, v{V_LANE}")
    P(f"s_mov_b32 s{S_CNT}, 4000")
    P("L_ep:")
    for i in range(16):
        P(f"s_mov_b32 s{S_T0}, {FL_O + i*8192}")
        P(f"buffer_load_dwordx2 {vr(16+2*i,2)}, v{V_PA}, {sr(SRD_WS,4)}, s{S_T0} offen sc1")
    P("s_waitcnt vmcnt(0)")
    P(f"s_mov_b64 {sr(S_T0)}, 0")
    for i in range(16):
        P(f"v_cmp_ne_u64 vcc, {sr(S_TAG)}, {vr(16+2*i,2)}")
        P(f"s_or_b64 {sr(S_T0)}, {sr(S_T0)}, vcc")
    P(f"s_sub_u32 s{S_CNT}, s{S_CNT}, 1")
    P("s_cbranch_scc1 L_end")
    P(f"s_cmp_eq_u64 {sr(S_T0)}, 0")
    P("s_cbranch_scc0 L_ep")
    P(f"buffer_store_dword v{V_TAG}, v{V_FLAGOFF}, {sr(SRD_WS,4)}, 0 offen sc1")
    P("L_end:")
    P("s_endpgm")
    return finish(P, o, name)

DEFAULTS = dict(rt=0, eb=1, xw=0, pff=0, slim=0, sp=0, stouch=0, fake=0, pst=0, osc=0, nba=4, nbe=4, oend=28, r1late=0, r1at='g1_0', apos=(0, 2), dpos=(1, 3), align=1, rot=0, rcls=2, wfirst=0, glate=0, bar_t=3, epin=6, bar_at=3, olead=12, atouch=0, ea0=46, fine=0, pause=1, pause_at='gs1', resume=0, burst=2, gap=64, lat=700, ra0='g0_0', l2t=(), kvt=2, patch_t=1, pw=0, b1late=1, w1t=0, mw=1, drop=0, trunc=0, ncls=3, wsp=0, wact=0, su_end=72, bq_end=84, mka=1, n1=4,
                b1r=60, pb=(52, 84, 88, 104), qflag=30, kpoll=74, kcheck=86, kend=112, nkv=14, patch=112,
                nb_gelu=(0, 0, 3, 3), pa=(0, 22, 20, 32, 50), nrb=20, left_steps=4, hflag=6, nearly=4, hpoll=32, hcheck=44,
                lead=6, jit0=8, oflag_at=5, opoll_at=15, ocheck_at=22, hst=0, code_bytes=32768)

if __name__ == '__main__':
    o = Opt()
    for k, v in DEFAULTS.items(): setattr(o, k, v)
    o.stamps = 'stamps' in sys.argv; o.diag = None; o.stamp_names = []
    o.clk = 's_memtime' if 'cyc' in sys.argv else 's_memrealtime'
    for a in sys.argv[2:]:
        if '=' not in a: continue
        k, v = a.split('=')
        if k == 'diag':
            i, j, K = v.split(','); o.diag = (i, j, int(K)); o.stamps = True
        elif k in ('ra0', 'pause_at', 'r1at'): setattr(o, k, v)
        elif ',' in v: setattr(o, k, tuple(int(x) for x in v.split(',') if x))
        else: setattr(o, k, int(v))
    plan(o.n1, o.r1late); ROT[0] = o.rot
    s = build(o)
    open(sys.argv[1], 'w').write(s)
    if o.stamps: open(sys.argv[1] + '.names', 'w').write('\n'.join(o.stamp_names))
```

```python
import sys, math, struct
from asmlib import *

NAME = "gated_mix__sliding_block__dense_activation_gelu__prompt"
def f2u(x): return struct.unpack('<I', struct.pack('<f', x))[0]

WS_E      = 0
FL_G      = 0x1000
G_OFF     = 0x4000
FL_QKV    = 0x20000
FL_H      = 0x40000
FL_O      = 0x60000
QKV_OFF   = 0x100000
A_OFF     = 0x680000
WS_SIZE   = 0x1000000
BP_OFF    = 0x1100000
STAMP_OFF = 0x1400000
import os
QKV_TB = 168 * 512 + int(os.environ.get('QPAD', 1024))
A_TB = 144 * 1024 + int(os.environ.get('APAD', 1024))

SA = 28672
LQ = 16384
LF = 98304; SF = 16384
LBIAS = 86016
LKV = 0
LRED = 0
LP = [49152 + 16384 * i for i in range(7)] + [0, 16384, 32768]
PIECE = []
def plan(n1, late=0):
    ra = list(range(11 - n1))
    rb = [p for p in range(7) if p not in ra] + ra
    PIECE[:] = [0, 1, 2, 3, 7, 8, 9][:n1] + ra + rb[:7]
    if late: PIECE[:] = [0, 1, 2, 3] + [4, 5, 6, 0, 1, 2, 3] * 2
LDS_BYTES = 160 * 1024

S_WAVE, S_RBL, S_SPARE, S_XCD, S_SLOT = 3, 8, 9, 10, 11
S_XO, S_QO, S_FO, S_CI, S_CJ = 4, 5, 6, 7, 22
S_M4, S_M3 = 23, 24
S_OFL = 25
S_B1, S_W2, S_B2, S_GW, S_WO = 12, 14, 16, 18, 20
S_TAG = 26
SRD_X, SRD_WQ, SRD_W1, SRD_WS, SRD_OUT, SRD_W2 = 28, 32, 36, 40, 44, 48
SRD_WO = 32
S_KV = [28, 29, 30, 31]
S_RB, S_B, S_TB = 52, 53, 54
S_BOF = 55
S_T0, S_T1, S_T2, S_T3 = 56, 57, 58, 59
S_CNT = 60
S_LQ = 60
S_QST, S_HST = 61, 62
S_T4 = 63
S_MASK = 64
S_QFL, S_HFL = 12, 13
S_OST, S_B3 = 18, 19
S_AOF, S_AO2, S_BO = 4, 5, 7
S_ARB, S_ATB = 14, 15
S_R, S_C, S_J, S_PAR = 98, 99, 100, 101
S_AG, S_BG = 52, 54

def sr(b, n=2): return f"s[{b}:{b+n-1}]"
def vr(b, n): return f"v[{b}:{b+n-1}]" if n > 1 else f"v{b}"
def ar(b, n): return f"a[{b}:{b+n-1}]"
def xr(d): return ar(d[1], 4) if isinstance(d, tuple) else vr(d, 4)

V_LANE, V_L16, V_L16H, V_FLAGOFF = 1, 2, 3, 4
V_TAG = 6
V_PD = 8
V_PA = 10
V_T = 11
V_BA = 216
V_AA = 220
L_G = 222
L_RW = 224
L_RR, L_OA, V_PO, V_PH = 227, 228, 229, 231
V_BR = [[232, 233], [0, 230], [202, 234]]
L_BA = 10
V_DUM = 235
V_ST = 255
SC = 'sc1'

class Opt: pass

FAKE = [0]
def mfma(d, a, b, c):
    if FAKE[0]:
        return "\n".join(f"v_mfma_f32_16x16x32_bf16 {vr(d+8*k,4)}, {xr(a)}, {xr(b)}, {'0' if c is None else vr(c+8*k,4)}" for k in range(2))
    C = '0' if c is None else vr(c, 16)
    return f"v_mfma_f32_32x32x16_bf16 {vr(d,16)}, {xr(a)}, {xr(b)}, {C}"

lab = [0]
def stamp(P, o, name):
    if not o.stamps: return
    if name not in o.stamp_names: o.stamp_names.append(name)
    P(f"{o.clk} s[96:97]")
    P("s_waitcnt lgkmcnt(0)")
    P(f"v_writelane_b32 v{V_ST}, s96, {o.stamp_names.index(name)}")

def stamp_flush(P, o):
    if not o.stamps: return
    if o.diag is not None:
        lab[0] += 1
        P(f"v_readlane_b32 s{S_T0}, v{V_ST}, DIAG_I")
        P(f"v_readlane_b32 s{S_T1}, v{V_ST}, DIAG_J")
        P("s_nop 4")
        P(f"s_sub_u32 s{S_T0}, s{S_T1}, s{S_T0}")
        P(f"s_mul_i32 s{S_T0}, s{S_T0}, {o.diag[2]}")
        P(f"s_min_u32 s{S_T0}, s{S_T0}, 20000")
        P(f"s_cmp_eq_u32 s{S_SPARE}, 1")
        P(f"s_cselect_b32 s{S_T0}, 0, s{S_T0}")
        P("s_memrealtime s[96:97]")
        P("s_waitcnt lgkmcnt(0)")
        P(f"s_mov_b32 s{S_T1}, s96")
        P(f"L_dg{lab[0]}:")
        P("s_memrealtime s[96:97]")
        P("s_waitcnt lgkmcnt(0)")
        P(f"s_sub_u32 s{S_T2}, s96, s{S_T1}")
        P(f"s_cmp_lt_u32 s{S_T2}, s{S_T0}")
        P(f"s_cbranch_scc1 L_dg{lab[0]}")
        return
    P("s_waitcnt vmcnt(0)")
    P(f"s_lshl2_add_u32 s{S_T0}, s2, s{S_WAVE}")
    P(f"s_lshl_b32 s{S_T0}, s{S_T0}, 8")
    P(f"s_add_u32 s{S_T0}, s{S_T0}, {STAMP_OFF}")
    P(f"s_mov_b32 s{SRD_WS+2}, {STAMP_OFF + 0x100000}")
    P(f"v_lshlrev_b32 v{V_T}, 2, v{V_LANE}")
    P(f"buffer_store_dword v{V_ST}, v{V_T}, {sr(SRD_WS,4)}, s{S_T0} offen")

def setup(P, o, end_label):
    if o.stamps: P(f"{o.clk} s[94:95]")
    if o.pff: setup_rest(P, o, True)
    P(f"s_load_dwordx2 {sr(SRD_X)}, s[0:1], 0")
    P(f"s_load_dwordx2 {sr(SRD_WQ)}, s[0:1], 8")
    if not o.slim: setup_rest(P, o, False)
    P("s_cmpk_ge_u32 s2, 256")
    P(f"s_cbranch_scc1 {end_label}")
    if not o.slim and not o.pff: setup_rest(P, o, True)
    P(f"v_lshrrev_b32 v5, 6, v0")
    P(f"v_and_b32 v{V_LANE}, 63, v0")
    P(f"v_readfirstlane_b32 s{S_WAVE}, v5")
    P(f"s_and_b32 s{S_XCD}, s2, 7")
    P(f"s_lshr_b32 s{S_RBL}, s2, 6")
    P(f"s_bfe_u32 s{S_C}, s2, 0x30003")
    P(f"s_mov_b32 s{SRD_X+3}, 0x20000")
    P(f"s_mov_b32 s{SRD_X+2}, {2048*896}")

def setup_rest(P, o, pf):
    if not pf:
        P(f"s_load_dwordx2 {sr(SRD_W1)}, s[0:1], 32")
        P(f"s_load_dwordx8 s[12:19], s[0:1], 40")
        P(f"s_load_dwordx2 {sr(SRD_WS)}, s[0:1], 88")
        P(f"s_load_dwordx2 {sr(SRD_OUT)}, s[0:1], 72")
        P(f"s_load_dwordx2 {sr(S_WO)}, s[0:1], 16")
        P(f"s_lshr_b32 s{S_SLOT}, s2, 3")
        return
    P(f"s_getpc_b64 s[{S_T0}:{S_T1}]")
    P(f"v_lshlrev_b32 v15, 7, v0")
    P(f"v_min_u32 v15, {o.code_bytes - 512}, v15")
    P(f"global_load_dword v234, v15, s[{S_T0}:{S_T1}]", tag='pf')

def srd_rest(P, regs):
    for d, size in regs:
        P(f"s_mov_b32 s{d+2}, {size}")
        P(f"s_mov_b32 s{d+3}, 0x20000")

def common2(P, o):
    P(f"v_lshlrev_b32 v{V_L16}, 4, v{V_LANE}")
    P(f"v_cmp_eq_u32 vcc, 0, v{V_LANE}")
    P(f"v_mov_b32 v5, 0x7fff0000")
    P(f"v_add_u32 v{V_L16H}, 0x1000, v{V_L16}")
    P(f"v_cndmask_b32_e64 v{V_FLAGOFF}, v5, 0, vcc")
    P(f"s_lshl2_add_u32 s{S_R}, s{S_XCD}, s{S_RBL}")

TAGOPS = [f"s_mul_i32 s{S_TAG}, s{S_TAG}, 0x9e3779b1",
          f"s_add_u32 s{S_TAG}, s{S_TAG}, 0x7f4a7c15",
          f"s_xor_b32 s{S_TAG+1}, s{S_TAG}, 0x5bd1e995",
          f"v_mov_b32 v{V_TAG}, s{S_TAG}",
          f"v_mov_b32 v{V_TAG+1}, s{S_TAG+1}"]

def warm_touch(P, blk, dst, tb, l128):
    P(f"s_mul_i32 s{tb}, s{S_XCD}, 31")
    P(f"s_min_u32 s{blk}, s{blk}, 244")
    P(f"s_add_u32 s{blk}, s{blk}, s{tb}")
    P(f"s_sub_u32 s{tb}, s{blk}, 245")
    P(f"s_cselect_b32 s{blk}, s{blk}, s{tb}")
    P(f"s_sub_u32 s{tb}, s{blk}, 196")
    P(f"s_cselect_b32 s{blk}, s{blk}, s{tb}")
    P(f"s_cselect_b64 {sr(tb)}, {sr(SRD_W2)}, {sr(S_WO)}")
    P(f"s_lshl_b32 s{blk}, s{blk}, 13")
    P(f"s_add_u32 s{tb}, s{tb}, s{blk}")
    P(f"s_addc_u32 s{tb+1}, s{tb+1}, 0")
    P(f"global_load_dword v{dst}, v{l128}, {sr(tb)}", tag='warm')

def l2_touch(P, o, i):
    P(f"s_mul_i32 s{S_T4}, s{S_RBL}, 7")
    P(f"s_add_u32 s{S_T4}, s{S_T4}, s{S_C}")
    P(f"s_lshl2_add_u32 s{S_T4}, s{S_T4}, s{S_WAVE}")
    if i: P(f"s_add_u32 s{S_T4}, s{S_T4}, {112*i}")
    P(f"s_mul_i32 s{S_T0}, s{S_T4}, 1873")
    P(f"s_lshr_b32 s{S_T0}, s{S_T0}, 16")
    P(f"s_mul_i32 s{S_T0}, s{S_T0}, {128*896}")
    P(f"s_lshl_b32 s{S_T1}, s{S_T4}, 13")
    P(f"s_add_u32 s{S_T0}, s{S_T0}, s{S_T1}")
    P(f"s_add_u32 s{S_T0}, s{S_T0}, {128*896}")
    P(f"s_sub_u32 s{S_T1}, s{S_T1}, {140*8192}")
    P(f"s_cbranch_scc0 L_wo{i}")
    P(f"buffer_load_dword v{184+i}, v{V_L128}, {sr(SRD_W2,4)}, s{S_T0} offen")
    P(f"s_branch L_wj{i}")
    P(f"L_wo{i}:")
    P(f"buffer_load_dword v{186+i}, v{V_L128}, {sr(SRD_WO,4)}, s{S_T1} offen")
    P(f"L_wj{i}:")
    P.L.append(Pseudo('drop_vm'))

def poll(P, o, addr_v, limit=20000):
    lab[0] += 1
    L = f"L_poll{lab[0]}"
    P(f"s_mov_b32 s{S_CNT}, {limit}")
    P(f"{L}:")
    P(f"buffer_load_dwordx2 {vr(V_PD,2)}, v{addr_v}, {sr(SRD_WS,4)}, 0 offen sc1")
    P(f"s_sub_u32 s{S_CNT}, s{S_CNT}, 1")
    P("s_waitcnt vmcnt(0)")
    P(f"v_cmp_ne_u64 vcc, {sr(S_TAG)}, {vr(V_PD,2)}")
    P(f"s_cbranch_scc1 {L}_x")
    P(f"s_cbranch_vccnz {L}")
    P(f"{L}_x:")

slow_paths = []
def poll_issue(addr_v):
    return [f"buffer_load_dwordx2 {vr(V_PD,2)}, v{addr_v}, {sr(SRD_WS,4)}, 0 offen sc1"]
def poll_check(addr_v, limit=20000):
    lab[0] += 1
    L = f"L_pc{lab[0]}"
    slow_paths.append(f"""{L}_slow:
s_mov_b32 s{S_CNT}, {limit}
{L}_loop:
buffer_load_dwordx2 {vr(V_PD,2)}, v{addr_v}, {sr(SRD_WS,4)}, 0 offen sc1
s_sub_u32 s{S_CNT}, s{S_CNT}, 1
s_waitcnt vmcnt(0)
v_cmp_ne_u64 vcc, {sr(S_TAG)}, {vr(V_PD,2)}
s_cbranch_scc1 {L}_back
s_cbranch_vccnz {L}_loop
s_branch {L}_back""")
    return [f"v_cmp_ne_u64 vcc, {sr(S_TAG)}, {vr(V_PD,2)}\ns_cbranch_vccnz {L}_slow\n{L}_back:"]

def flag_store(soff):
    return [f"buffer_store_dwordx2 {vr(V_TAG,2)}, v{V_FLAGOFF}, {sr(SRD_WS,4)}, s{soff} offen sc1"]

ACC_Q, ACC_F = 16, 64
FR = 128
GT = 160
V_XD, V_QD, V_FD = 192, 196, 199
V_XR, V_QR, V_FRD = 203, 207, 208
V_CA, V_CB = 212, 214
V_QR2, V_L128 = 213, 215

def adv(ci):
    return f"s_add_u32 s{ci}, s{ci}, 1\ns_cmp_eq_u32 s{ci}, 7\ns_cselect_b32 s{ci}, 0, s{ci}"

def dma_a(n):
    sl = (n % 3) * SA
    L = []
    if n: L.append([adv(S_CI)])
    L.append([f"s_lshl_b32 s{S_XO}, s{S_CI}, 7", f"s_add_u32 m0, s{S_M4}, {sl}"])
    L.append([f"s_mul_i32 s{S_QO}, s{S_CI}, {64*2688}"])
    for i in range(4):
        L.append([(f"buffer_load_dwordx4 v{V_XD+i}, {sr(SRD_X,4)}, s{S_XO} offen offset:{i*1024} lds", f'da{n}')])
    L.append([f"s_add_u32 m0, s{S_M3}, {sl}"])
    for i in range(3):
        L.append([(f"buffer_load_dwordx4 v{V_QD+i}, {sr(SRD_WQ,4)}, s{S_QO} offen offset:{i*1024} lds", f'da{n}')])
    return L

def dma_b(n):
    L = []
    if n: L.append([adv(S_CJ)])
    L.append([f"s_add_u32 m0, s{S_M4}, {LF + ((n + 1) % 4) * SF}", f"s_mul_i32 s{S_FO}, s{S_CJ}, {64*3584}"])
    for i in range(4):
        L.append([(f"buffer_load_dwordx4 v{V_FD+i}, {sr(SRD_W1,4)}, s{S_FO} offen offset:{i*1024} lds", f'db{n}')])
    return L

def reads_a(g):
    c, s = g >> 2, g & 3
    sl = (c % 3) * SA
    base = FR + 16 * (g & 1)
    L = [f"ds_read_b128 {ar(4*g,4)}, v{V_XR+s} offset:{sl}"]
    q, so = (V_QR2, 0) if c % 3 == 2 else (V_QR, sl)
    for t in range(3):
        for rho in range(2):
            L.append(f"ds_read_b64_tr_b16 {vr(base+4*t+2*rho,2)}, v{q} offset:{so + (16*s+4*rho)*192 + t*64}")
    return L

def reads_b(g):
    c, s = g >> 2, g & 3
    base = FR + 16 * (g & 1)
    return [f"ds_read_b64_tr_b16 {vr(base+4*t+2*rho,2)}, v{V_FRD+t} offset:{((c + 1) % 4)*SF + (16*s+4*rho)*256}" for t in range(4) for rho in range(2)]

def s1_x_addr(P, o):
    T = V_T
    if o.ncls == 3:
        P(f"s_add_u32 s{S_CI}, s{S_C}, s{S_RBL}")
        P(f"s_lshl_b32 s{S_CI}, s{S_CI}, 1")
        P(f"s_lshr_b32 s{S_CI}, 0x24924, s{S_CI}")
        P(f"s_and_b32 s{S_CI}, s{S_CI}, 3")
        P(f"s_lshl_b32 s{S_CI}, s{S_CI}, 1")
    elif o.ncls == 2:
        P(f"s_add_u32 s{S_CI}, s{S_C}, s{S_RBL}")
        P(f"s_and_b32 s{S_CI}, s{S_CI}, 1")
        P(f"s_mul_i32 s{S_CI}, s{S_CI}, 3")
    else:
        P(f"s_mov_b32 s{S_CI}, 0")
    P(f"s_and_b32 s{S_RB}, s{S_XCD}, 3")
    P(f"s_lshl2_add_u32 s{S_RB}, s{S_RB}, s{S_RBL}")
    P(f"s_lshl2_add_u32 s{S_TB}, s{S_RB}, s{S_WAVE}")
    P(f"v_lshrrev_b32 v{T}, 3, v{V_LANE}")
    P(f"v_and_b32 v{T+1}, 7, v{V_LANE}")
    P(f"v_lshrrev_b32 v{T+2}, 4, v{V_LANE}")
    P(f"s_lshl_b32 s{S_T2}, s{S_TB}, 5")
    P(f"v_add_u32 v{T}, s{S_T2}, v{T}")
    P(f"v_mul_u32_u24 v{T}, 896, v{T}")
    P(f"v_xor_b32 v{T+1}, v{T+2}, v{T+1}")
    P(f"v_lshl_add_u32 v{V_XD}, v{T+1}, 4, v{T}")
    P(f"v_xor_b32 v{V_XD+1}, 64, v{V_XD}")
    P(f"s_lshl_b32 s{S_M4}, s{S_WAVE}, 12")
    P(f"v_add_u32 v{V_XD+2}, {2*(8*896-1024)}, v{V_XD}")
    P(f"v_add_u32 v{V_XD+3}, {3*(8*896-1024)}, v{V_XD+1}")
    P(f"v_add_u32 v{V_XD+1}, {1*(8*896-1024)}, v{V_XD+1}")

def s1_wq_addr(P, o):
    T = V_T
    P(f"s_lshr_b32 s{S_B}, s{S_XCD}, 2")
    P(f"s_mul_i32 s{S_B}, s{S_B}, 7")
    P(f"s_add_u32 s{S_B}, s{S_B}, s{S_C}")
    P(f"s_mul_i32 s{S_T2}, s{S_WAVE}, 192")
    P(f"s_mul_i32 s{S_T3}, s{S_B}, 192")
    P(f"v_add_u32 v{T}, s{S_T2}, v{V_LANE}")
    P(f"v_lshl_add_u32 v{T+2}, v{T}, 4, s{S_T3}")
    P(f"v_mul_u32_u24 v{T}, 0xaaab, v{T}")
    P(f"s_movk_i32 s{S_T3}, 2496")
    for i in range(3):
        if i: P(f"v_add_u32 v{T}, {64*0xaaab}, v{T}")
        P(f"v_lshrrev_b32 v{T+1}, 19, v{T}")
        P(f"v_mad_u32_u24 v{V_QD+i}, v{T+1}, s{S_T3}, v{T+2}")
    P(f"s_lshl_b32 s{S_T2}, s{S_T2}, 4")
    P(f"s_movk_i32 s{S_LQ}, {LQ}")
    P(f"s_add_u32 s{S_M3}, s{S_T2}, s{S_LQ}")
    srd_rest(P, [(SRD_WQ, 448*2688)])

def swap_pieces(P, reg, tmp, c4):
    P(f"v_bfe_u32 v{tmp}, 6, v{c4}, 1")
    P(f"v_mul_u32_u24 v{tmp}, 24, v{tmp}")
    P(f"v_xor_b32 v{reg}, v{reg}, v{tmp}")

def s1_read_addr(P, o):
    T = V_T
    P(f"v_and_b32 v{T}, 31, v{V_LANE}")
    P(f"v_lshrrev_b32 v{T+1}, 5, v{V_LANE}")
    P(f"v_bfe_u32 v{T+2}, v{V_LANE}, 1, 3")
    P(f"v_xor_b32 v{T+2}, v{T+2}, v{T+1}")
    P(f"v_lshl_add_u32 v{T}, v{T}, 7, s{S_M4}")
    for s in range(4):
        P(f"v_xor_b32 v{T+3}, {2*s}, v{T+2}")
        P(f"v_lshl_add_u32 v{V_XR+s}, v{T+3}, 4, v{T}")
    P(f"v_bfe_u32 v{T}, v{V_LANE}, 2, 2")
    P(f"v_lshl_add_u32 v{T+1}, v{T+1}, 3, v{T}")
    P(f"v_bfe_u32 v{T+2}, v{V_LANE}, 4, 1")
    P(f"v_lshlrev_b32 v{T+2}, 5, v{T+2}")
    P(f"v_and_b32 v{T+3}, 3, v{V_LANE}")
    P(f"v_lshl_add_u32 v{T+2}, v{T+3}, 3, v{T+2}")
    P(f"v_mul_u32_u24 v{V_QR}, 192, v{T+1}")
    P(f"v_add3_u32 v{V_QR}, v{V_QR}, v{T+2}, s{S_LQ}")
    swap_pieces(P, V_QR, T + 3, T + 3)
    P(f"v_add_u32 v{V_QR2}, {2*SA}, v{V_QR}")
    P(f"v_lshl_add_u32 v{T+2}, v{T+1}, 8, v{T+2}")
    P(f"v_add_u32 v{T+2}, {LF}, v{T+2}")
    for c in range(4):
        P(f"v_xor_b32 v{T+3}, {c}, v{T}")
        P(f"v_lshl_add_u32 v{V_FRD+c}, v{T+3}, 6, v{T+2}")

def s1_w1_addr(P, o):
    T = V_T
    P(f"v_lshrrev_b32 v{T+2}, 4, v{V_LANE}")
    P(f"v_lshlrev_b32 v{T+1}, 2, v{T+2}")
    P(f"v_xor_b32 v{T+1}, v{T+1}, v{V_LANE}")
    P(f"v_and_b32 v{T+1}, 15, v{T+1}")
    P(f"s_lshl_b32 s{S_T2}, s{S_WAVE}, 4")
    P(f"v_add_u32 v{T}, s{S_T2}, v{T+2}")
    P(f"v_mul_u32_u24 v{T}, 3584, v{T}")
    P(f"s_lshl_b32 s{S_T3}, s{S_B}, 8")
    P(f"v_lshl_add_u32 v{T}, v{T+1}, 4, v{T}")
    P(f"v_add_u32 v{V_FD}, s{S_T3}, v{T}")
    for i in range(1, 4):
        P(f"v_add_u32 v{V_FD+i}, {i*(4*3584-1024)}, v{V_FD}")
    srd_rest(P, [(SRD_W1, 448*3584)])
    if not o.eb:
        P(f"v_lshl_add_u32 v{T}, v{V_LANE}, 2, s{S_T3}")
        P(f"global_load_dword v9, v{T}, {sr(S_B1)}")

def w1_touch(P, o):
    T = V_T
    P(f"v_lshrrev_b32 v{T}, 1, v{V_LANE}")
    P(f"v_min_u32 v{T}, 27, v{T}")
    P(f"s_lshl2_add_u32 s{S_T0}, s{S_RBL}, s{S_WAVE}")
    P(f"s_mul_i32 s{S_T0}, s{S_T0}, 28")
    P(f"v_add_u32 v{T}, s{S_T0}, v{T}")
    P(f"v_mul_u32_u24 v{T}, 3584, v{T}")
    P(f"v_and_b32 v{T+1}, 1, v{V_LANE}")
    P(f"v_lshl_add_u32 v{T}, v{T+1}, 7, v{T}")
    P(f"s_lshl_b32 s{S_T0}, s{S_B}, 8")
    P(f"buffer_load_dword v160, v{T}, {sr(SRD_W1,4)}, s{S_T0} offen", tag='warm')

def s1_misc(P, o):
    srd_rest(P, [(SRD_WS, WS_SIZE), (SRD_OUT, 2048*896)])
    A = -2.0 * math.sqrt(2.0 / math.pi) * 0.044715 * math.log2(math.e)
    B = -2.0 * math.sqrt(2.0 / math.pi) * math.log2(math.e)
    P(f"v_mov_b32 v{V_CA}, {hex(f2u(A))}")
    P(f"v_mov_b32 v{V_CB}, {hex(f2u(B))}")
    P(f"v_lshlrev_b32 v{V_L128}, 7, v{V_LANE}")
    P(f"s_mul_i32 s{S_QST}, s{S_TB}, {QKV_TB}")
    P(f"s_mul_i32 s{S_T0}, s{S_B}, {3*2048}")
    P(f"s_add_u32 s{S_QST}, s{S_QST}, s{S_T0}")
    P(f"s_add_u32 s{S_QST}, s{S_QST}, {QKV_OFF}")
    P(f"s_mul_i32 s{S_HST}, s{S_TB}, {A_TB}")
    P(f"s_lshl_b32 s{S_T0}, s{S_B}, 13")
    P(f"s_add_u32 s{S_HST}, s{S_HST}, s{S_T0}")
    P(f"s_add_u32 s{S_HST}, s{S_HST}, {A_OFF}")
    P(f"s_lshl4_add_u32 s{S_T0}, s{S_TB}, s{S_B}")
    P(f"s_lshl_b32 s{S_T0}, s{S_T0}, 7")
    P(f"s_add_u32 s{S_QFL}, s{S_T0}, {FL_QKV}")
    P(f"s_add_u32 s{S_HFL}, s{S_T0}, {FL_H}")
    P(f"s_mul_i32 s{S_B3}, s{S_B}, 3")
    P(f"s_mov_b32 s{S_SPARE}, 0")

def bias_expand(P, src_v, tmp, addr, base, hs=4):
    P(f"v_lshlrev_b32 v{tmp}, 16, v{src_v}")
    P(f"v_and_b32 v{tmp+1}, 0xffff0000, v{src_v}")
    P(f"v_lshl_add_u32 v{tmp+2}, v{V_LANE}, 3, s{base}")
    P(f"ds_write_b64 v{tmp+2}, {vr(tmp,2)}")
    P(f"v_lshrrev_b32 v{addr}, 5, v{V_LANE}")
    P(f"v_lshl_add_u32 v{addr}, v{addr}, {hs}, s{base}")

def bias1(P, o):
    P(f"s_lshl_b32 s{S_T0}, s{S_WAVE}, 9")
    P(f"s_add_u32 s{S_T0}, s{S_T0}, {LBIAS}")
    bias_expand(P, 9, 12, 8, S_T0)

def bias1_reads():
    return [[f"ds_read_b128 {vr(ACC_F+16*F+4*q,4)}, v8 offset:{(32*F+8*q)*4}"] for F in range(4) for q in range(4)]

def rot_step(off, cnt, stride, n):
    return (f"s_add_u32 s{off}, s{off}, {stride}\ns_add_u32 s{cnt}, s{cnt}, 1\ns_cmp_eq_u32 s{cnt}, {n}\n"
            f"s_cselect_b32 s{S_CNT}, {n*stride}, 0\ns_sub_u32 s{off}, s{off}, s{S_CNT}")
ROT = [0]

def b_dma(p):
    L = [[f"s_add_u32 m0, s{S_M4}, {LP[PIECE[p]]}"]]
    if p < 14:
        so, sd = S_BOF, SRD_W2
        if p: L[0].append(rot_step(so, S_BG, 32*896, 14) if ROT[0] else f"s_add_u32 s{so}, s{so}, {32*896}")
    else:
        so, sd = S_BO, SRD_WO
        i = p - 14
        if i: L[0].append(f"s_add_u32 s{so}, s{so}, {8*(((7*i)>>1) - ((7*(i-1))>>1))*896}")
    for i in range(4):
        L.append([(f"buffer_load_dwordx4 v{V_BA+i}, {sr(sd,4)}, s{so} offen offset:{i*1024} lds", f'bp{p}')])
    return L

def breg(n, ctl):
    if n >= 22: n -= 22
    return ('a', (112 + 8 * n if n < 18 else 8 * (n - 18)) + 4 * ctl)

def b_reads(n):
    pc = LP[PIECE[n >> 1]]
    hi, so = divmod(pc, 65536)
    return [f"ds_read_b64_tr_b16 {ar(breg(n, ctl)[1]+2*rho,2)}, v{V_BR[hi][ctl]} offset:{so + (n & 1)*2048 + rho*1024}" for ctl in range(2) for rho in range(2)]

class Gaps:
    def __init__(self): self.m = {}; self.v = {}
    def put(self, kind, items, g0, g1):
        d = self.m if kind == 'm' else self.v
        spread(d, items, list(range(g0, g1)), kind == 'm')
    def emit(self, G): return sum(self.m.get(G, []), []) + sum(self.v.get(G, []), [])

def spread(hooks, items, slots, unit=True):
    w = (lambda g: 1) if unit else len
    tot = sum(w(g) for g in items); done = 0
    for g in items:
        s = slots[min(len(slots) - 1, (done * len(slots)) // tot)]
        hooks.setdefault(s, []).append(g); done += w(g)

def merge_salu(items):
    out = []; pend = []
    for it in items:
        pend += it
        if any(isinstance(x, tuple) or (isinstance(x, str) and x.startswith(('buffer', 'global', 'ds_'))) for x in it):
            out.append(pend); pend = []
    if pend: out.append(pend)
    return out

def pass_a(P, o, H):
    s1_x_addr(P, o)
    d0 = dma_a(0)
    P.add(d0[0])
    P("s_waitcnt lgkmcnt(0)")
    if o.stamps:
        o.stamp_names.append('entry'); P(f"v_mov_b32 v{V_ST}, 0"); P(f"v_writelane_b32 v{V_ST}, s94, 0")
    if o.stouch:
        P(f"s_load_dword s{S_CNT}, {sr(SRD_WQ)}, 0")
        if o.stouch > 1:
            P(f"s_load_dword s{S_TAG}, {sr(SRD_WS)}, {WS_E}")
            P(f"s_load_dword s{S_J}, {sr(S_B1)}, 0")
    for it in d0[2:6]: P.add(it)
    if o.slim: setup_rest(P, o, True); setup_rest(P, o, False)
    P.add(d0[1]); P(f"s_mov_b32 s{S_CJ}, s{S_CI}")
    s1_wq_addr(P, o)
    for it in d0[6:]: P.add(it)
    if o.eb:
        P(f"s_load_dword s{S_TAG}, {sr(SRD_WS)}, {WS_E}")
        P(f"s_lshl_b32 s{S_T3}, s{S_B}, 8")
        P(f"v_lshl_add_u32 v{V_T}, v{V_LANE}, 2, s{S_T3}")
        P(f"global_load_dword v9, v{V_T}, {sr(S_B1)}")
        P(f"s_lshl_b32 s{S_T3}, s{S_C}, 7")
        P(f"v_and_b32 v{V_T}, 31, v{V_LANE}")
        P(f"v_lshl_add_u32 v{V_T}, v{V_T}, 2, s{S_T3}")
        P(f"global_load_dword v{V_DUM}, v{V_T}, {sr(S_B2)}")
    pass
    for it in dma_a(1): P.add(it)
    s1_read_addr(P, o)
    for it in dma_a(2): P.add(it)
    P.wait_vm('da0')
    P("s_waitcnt lgkmcnt(0)")
    P("s_barrier")
    stamp(P, o, 's1_first')
    P.add(reads_a(0))
    for c in range(4): H.put('m', merge_salu(dma_a(c + 3)), 12 * c + 9, 12 * c + 21)
    H.put('m', merge_salu([it for n in range(o.nba) for it in dma_b(n)]), 57, o.bq_end)
    for g in range(28):
        c, s = g >> 2, g & 3
        base = FR + 16 * (g & 1)
        if s == 3 and c < 6:
            P("s_waitcnt lgkmcnt(0)")
            P.wait_vm(f'da{c+1}')
            P("s_barrier")
            if o.trunc: stamp(P, o, f'a{c}')
        rd = reads_a(g + 1) if g < 27 else []
        per = [4, 3, 0] if s == 2 else [3, 2, 2]
        for t in range(3):
            P(mfma(ACC_Q + 16 * t, base + 4 * t, ('a', 4 * g), None if g == 0 else ACC_Q + 16 * t))
            P.add(rd[:per[t]]); rd = rd[per[t]:]
            P.add(H.emit(3 * g + t))
    P("s_waitcnt lgkmcnt(0)")
    P.wait_vm('db0')
    P("s_barrier")
    stamp(P, o, 'pass_a')
    P.add(reads_b(0))

def pass_b(P, o, H):
    for g in range(28):
        c, s = g >> 2, g & 3
        base = FR + 16 * (g & 1)
        if s == 3 and c < 6:
            P("s_waitcnt lgkmcnt(0)")
            P.wait_vm(f'db{c+1}')
            P("s_barrier")
            if o.trunc: stamp(P, o, f'b{c}')
        rd = reads_b(g + 1) if g < 27 else []
        per = [3, 3, 2, 0] if s == 2 else [2, 2, 2, 2]
        for t in range(4):
            P(mfma(ACC_F + 16 * t, base + 4 * t, ('a', 4 * g), ACC_F + 16 * t))
            P.add(rd[:per[t]]); rd = rd[per[t]:]
            P.add(H.emit(4 * g + t))

def qkv_epilogue(P, o, extra):
    c = (28.0 ** -0.5) * math.log2(math.e)
    P(f"s_mov_b32 s{S_T2}, {hex(f2u(c))}")
    for t in range(3):
        acc = ACC_Q + 16 * t
        P(f"s_cmp_lt_u32 s{S_B3}, {14 - t}")
        P(f"s_cbranch_scc0 L_nosc{t}")
        for i in range(8):
            P(f"v_pk_mul_f32 {vr(acc+2*i,2)}, {vr(acc+2*i,2)}, s[{S_T2}:{S_T3}] op_sel_hi:[1,0]")
        P(f"L_nosc{t}:")
        p = GT + 8 * t
        for i in range(8):
            if t == 0 and extra and i % 2 == 0: P.add(extra.pop(0))
            P(f"v_cvt_pk_bf16_f32 v{p+i}, v{acc+2*i}, v{acc+2*i+1}")
        while t == 0 and extra: P.add(extra.pop(0))
        for h in range(2):
            off = t * 2048 + h * 1024
            P(f"buffer_store_dwordx4 {vr(p+4*h,4)}, v{V_L16H if off >= 4096 else V_L16}, {sr(SRD_WS,4)}, s{S_QST} offen offset:{off & 4095} {SC}", tag='qst')

def gelu_tile(F):
    u = ACC_F + 16 * F
    t = GT + 16 * (F & 1)
    pk = [192, 204, t, t][F]
    L = []
    pr = lambda b, i: vr(b + 2 * i, 2)
    for i in range(8): L.append(f"v_pk_mul_f32 {pr(t,i)}, {pr(u,i)}, {pr(u,i)}")
    for i in range(8): L.append(f"v_pk_fma_f32 {pr(t,i)}, {pr(t,i)}, {vr(V_CA,2)}, {vr(V_CB,2)} op_sel_hi:[1,0,0]")
    for i in range(8): L.append(f"v_pk_mul_f32 {pr(t,i)}, {pr(t,i)}, {pr(u,i)}")
    for i in range(16): L.append(f"v_exp_f32 v{t+i}, v{t+i}")
    for i in range(8): L.append(f"v_pk_add_f32 {pr(t,i)}, {pr(t,i)}, 1.0 op_sel_hi:[1,0]")
    for i in range(16): L.append(f"v_rcp_f32 v{t+i}, v{t+i}")
    for i in range(8): L.append(f"v_pk_mul_f32 {pr(t,i)}, {pr(t,i)}, {pr(u,i)}")
    for i in range(8): L.append(f"v_cvt_pk_bf16_f32 v{pk+i}, v{t+2*i}, v{t+2*i+1}")
    for h in range(2):
        off = (2 * F + h) * 1024
        L.append((f"buffer_store_dwordx4 {vr(pk+4*h,4)}, v{V_L16H if off >= 4096 else V_L16}, {sr(SRD_WS,4)}, s{S_HST} offen offset:{off & 4095} {SC}", 'hst'))
    return L

def prep(P, o):
    T = V_T
    if o.slim: setup_rest(P, o, False)
    if o.stamps: P(f"v_mov_b32 v{V_ST}, 0")
    common2(P, o)
    srd_rest(P, [(SRD_WS, WS_SIZE)])
    P(f"v_lshlrev_b32 v{V_L128}, 7, v{V_LANE}")
    P(f"s_mov_b32 s{S_SPARE}, 1")
    P(f"s_lshl_b32 s{S_M4}, s{S_WAVE}, 12")
    P(f"v_lshrrev_b32 v{T}, 2, v{V_LANE}")
    P(f"s_lshl2_add_u32 s{S_T0}, s{S_R}, s{S_WAVE}")
    P(f"s_lshl_b32 s{S_T0}, s{S_T0}, 4")
    P(f"v_add_u32 v20, s{S_T0}, v{T}")
    P(f"v_mul_u32_u24 v{T}, 896, v20")
    P(f"v_and_b32 v{T+1}, 3, v{V_LANE}")
    P(f"v_lshlrev_b32 v{T+1}, 4, v{T+1}")
    P(f"v_add_u32 v{T}, v{T}, v{T+1}")
    P("s_waitcnt lgkmcnt(0)")
    if o.stamps: P(f"v_writelane_b32 v{V_ST}, s94, 0")
    P(f"s_load_dword s{S_TAG}, {sr(SRD_WS)}, {WS_E}")
    P(f"s_mov_b64 {sr(SRD_W2)}, {sr(S_W2)}")
    if o.sp:
        P(f"s_load_dword s{S_MASK}, {sr(S_B1)}, 0")
        P(f"s_load_dword s{S_MASK+1}, {sr(S_B2)}, 0")
        P(f"s_load_dword s{S_MASK+2}, {sr(SRD_OUT)}, 0")
        P(f"s_lshl2_add_u32 s{S_T0}, s{S_RBL}, s{S_WAVE}")
        P(f"s_lshl_b32 s{S_T0}, s{S_T0}, 20")
        P(f"s_load_dword s{S_MASK+3}, {sr(SRD_WS)}, s{S_T0}")
    def mallwarm():
        P(f"s_lshl2_add_u32 s{S_T4}, s{S_R}, s{S_WAVE}")
        P(f"s_lshl_b32 s{S_T0}, s{S_T4}, 13")
        P(f"s_add_u32 s{S_T1}, s{S_T0}, 0x100000")
        if o.xw:
            k0 = o.xw
            srd_rest(P, [(SRD_WQ, 448*2688)])
            P(f"v_lshrrev_b32 v{T+2}, 2, v{V_LANE}")
            P(f"v_mul_u32_u24 v{T+2}, 896, v{T+2}")
            P(f"v_and_b32 v{T+3}, 3, v{V_LANE}")
            P(f"v_lshl_add_u32 v{T+2}, v{T+3}, 7, v{T+2}")
            P(f"s_mul_i32 s{S_T2}, s{S_T4}, {16*896}")
            P(f"buffer_load_dword v178, v{T+2}, {sr(SRD_X,4)}, s{S_T2} offen offset:{3*128}")
            P(f"s_add_u32 s{S_T2}, s{S_T0}, {k0*64*2688}")
            P(f"buffer_load_dword v179, v{V_L128}, {sr(SRD_WQ,4)}, s{S_T2} offen")
        srd_rest(P, [(SRD_W1, 448*3584), (SRD_W2, 1792*896), (SRD_WQ, 448*896)])
        P(f"s_mov_b64 {sr(SRD_WQ)}, {sr(S_WO)}")
        for i, (d, so) in enumerate(((SRD_W1, S_T0), (SRD_W1, S_T1), (SRD_W2, S_T0), (SRD_W2, S_T1), (SRD_WQ, S_T0))):
            P(f"buffer_load_dword v{180+i}, v{V_L128}, {sr(d,4)}, s{so} offen")
    if o.mw == 1: mallwarm()
    if o.pw & 1:
        P(f"v_lshlrev_b32 v{T+3}, 20, v{V_LANE}")
        P(f"buffer_load_dword v177, v{T+3}, {sr(SRD_WS,4)}, 0 offen")
    def touches():
        for i in range(o.wsp):
            P(f"s_lshl2_add_u32 s{S_T4}, s{S_RBL}, s{S_WAVE}")
            P(f"s_add_u32 s{S_T4}, s{S_T4}, {16*i}")
            P(f"s_lshr_b32 s{S_T0}, s{S_T4}, 2")
            P(f"s_lshl_b32 s{S_T0}, s{S_T0}, 13")
            P(f"s_mul_i32 s{S_T1}, s{S_WAVE}, {448*896}")
            P(f"s_add_u32 s{S_T0}, s{S_T0}, s{S_T1}")
            P(f"s_add_u32 s{S_T0}, s{S_T0}, {128*896}")
            if 16 * i + 15 < 140:
                P(f"buffer_load_dword v{160+i}, v{V_L128}, {sr(SRD_W2,4)}, s{S_T0} offen")
            else:
                P(f"s_sub_u32 s{S_T1}, s{S_T4}, 140")
                P(f"s_cbranch_scc0 L_tw{i}")
                P(f"buffer_load_dword v{160+i}, v{V_L128}, {sr(SRD_W2,4)}, s{S_T0} offen")
                P(f"s_branch L_tj{i}")
                P(f"L_tw{i}:")
                P(f"s_lshl_b32 s{S_T1}, s{S_T1}, 13")
                P(f"buffer_load_dword v{190+i}, v{V_L128}, {sr(SRD_WQ,4)}, s{S_T1} offen")
                P(f"L_tj{i}:")
                P.L.append(Pseudo('drop_vm'))
        if o.fine:
            P("s_waitcnt vmcnt(0)"); stamp(P, o, 'p_warm')
    if o.wfirst: touches()
    for i in range(14):
        P(f"buffer_load_dwordx4 {vr(32+4*i,4)}, v{T}, {sr(SRD_X,4)}, 0 offen offset:{64*i}")
        P(f"global_load_dwordx4 {vr(96+4*i,4)}, v{T+1}, {sr(S_GW)} offset:{64*i}")
    if o.mw == 2: mallwarm()
    P.add(TAGOPS)
    P("v_mov_b32 v24, 0")
    P("v_mov_b32 v25, 0")
    for i in range(56):
        P(f"v_dot2_f32_bf16 v{24+(i&1)}, v{32+i}, v{96+i}, v{24+(i&1)}")
    P("s_nop 2")
    P("v_add_f32 v24, v24, v25")
    P("v_add_f32_dpp v24, v24, v24 quad_perm:[1,0,3,2] row_mask:0xf bank_mask:0xf")
    P("v_add_f32_dpp v24, v24, v24 quad_perm:[2,3,0,1] row_mask:0xf bank_mask:0xf")
    P(f"v_mul_f32 v24, {hex(f2u(-math.log2(math.e)))}, v24")
    P("v_exp_f32 v24, v24")
    P("v_add_f32 v24, 1.0, v24")
    P("v_rcp_f32 v24, v24")
    P(f"v_lshlrev_b32 v20, 2, v20")
    P(f"v_and_b32 v25, 3, v{V_LANE}")
    P(f"v_cmp_eq_u32 vcc, 0, v25")
    P(f"v_mov_b32 v27, 0x7fff0000")
    P(f"v_cndmask_b32 v20, v27, v20, vcc")
    P(f"s_mov_b32 s{S_T0}, {G_OFF}")
    P(f"buffer_store_dword v24, v20, {sr(SRD_WS,4)}, s{S_T0} offen {SC}")
    P("s_waitcnt vmcnt(0) lgkmcnt(0)")
    P("s_barrier")
    P(f"s_lshl_b32 s{S_T0}, s{S_R}, 7")
    P(f"s_add_u32 s{S_T0}, s{S_T0}, {FL_G}")
    P(f"s_cmp_eq_u32 s{S_WAVE}, 0")
    P("s_cbranch_scc0 L_prep_nf")
    P.add(flag_store(S_T0))
    P("L_prep_nf:")
    stamp(P, o, 'p_flag')
    if not o.wfirst: touches()

AQ = 16
AK = 24
AV = 40
AS = 56
AN = 104
AO = 120
AP = 136
AM = 236
A_KR, A_VR = 244, 245
A_KD, A_VD = 247, 248
A_PA, A_PV = 250, 251
A_G = 254
A_MX = 5

def att_scalars(P, o):
    P(f"s_and_b32 s{S_ARB}, s{S_SLOT}, 15")
    P(f"s_lshr_b32 s{S_J}, s{S_SLOT}, 4")
    P(f"s_lshl1_add_u32 s{S_J}, s{S_XCD}, s{S_J}")
    P(f"s_lshl2_add_u32 s{S_ATB}, s{S_ARB}, s{S_WAVE}")
    P(f"s_and_b32 s{S_PAR}, s{S_J}, 1")
    P(f"s_lshl4_add_u32 s{S_T0}, s{S_ATB}, s{S_J}")
    P(f"s_lshl_b32 s{S_T0}, s{S_T0}, 7")
    P(f"s_add_u32 s{S_OFL}, s{S_T0}, {FL_O}")
    P(f"s_mul_i32 s{S_T2}, s{S_ATB}, {A_TB}")
    P(f"s_lshl_b32 s{S_T3}, s{S_J}, 11")
    P(f"s_add_u32 s{S_T2}, s{S_T2}, s{S_T3}")
    P(f"s_add_u32 s{S_OST}, s{S_T2}, {A_OFF + 112*1024}")

def att_poll_addr(P, o):
    T = V_T
    P(f"v_min_u32 v{T}, 13, v{V_LANE}")
    P(f"v_lshrrev_b32 v{T+1}, 1, v{T}")
    P(f"v_and_b32 v{T}, 1, v{T}")
    P(f"s_mul_i32 s{S_T0}, s{S_J}, 7")
    P(f"s_lshr_b32 s{S_T0}, s{S_T0}, 1")
    P(f"s_lshl_b32 s{S_T0}, s{S_T0}, 3")
    P(f"v_mad_u32_u24 v{T}, v{T}, 31, s{S_T0}")
    P(f"v_mov_b32 v{T+2}, 896")
    P(f"v_mov_b32 v{T+3}, 448")
    P(f"v_subrev_u32 v{T+4}, 3, v{T+1}")
    P(f"v_cmp_gt_u32 vcc, 3, v{T+1}")
    P(f"v_cndmask_b32 v{T+2}, v{T+2}, v{T+3}, vcc")
    P(f"v_cndmask_b32 v{T+3}, v{T+4}, v{T+1}, vcc")
    P(f"s_mul_i32 s{S_T1}, s{S_WAVE}, 3")
    P(f"s_lshl2_add_u32 s{S_T1}, s{S_ARB}, s{S_T1}")
    P(f"s_sub_u32 s{S_T1}, s{S_T1}, 8")
    P(f"v_add_u32 v{T+3}, s{S_T1}, v{T+3}")
    P(f"v_max_i32 v{T+3}, 0, v{T+3}")
    P(f"v_mov_b32 v{T+4}, s{S_ATB}")
    P(f"v_cmp_eq_u32 vcc, 6, v{T+1}")
    P(f"v_cndmask_b32_e64 v{T+2}, v{T+2}, 0, vcc")
    P(f"v_cndmask_b32 v{T+3}, v{T+3}, v{T+4}, vcc")
    P(f"v_add_u32 v{T}, v{T}, v{T+2}")
    P(f"v_mul_u32_u24 v{T}, 683, v{T}")
    P(f"v_lshrrev_b32 v{T}, 16, v{T}")
    P(f"v_lshl_add_u32 v{T}, v{T+3}, 4, v{T}")
    P(f"v_lshlrev_b32 v{T}, 7, v{T}")
    P(f"v_add_u32 v{V_PA}, {FL_QKV}, v{T}")

def gate_flags(P, o, reg):
    P(f"s_lshr_b32 s{S_T0}, s{S_ATB}, 1")
    P(f"s_lshl_b32 s{S_T0}, s{S_T0}, 7")
    P(f"s_add_u32 s{S_T0}, s{S_T0}, {FL_G}")
    P(f"s_lshl_b32 s{S_T1}, s{S_R}, 7")
    P(f"s_add_u32 s{S_T1}, s{S_T1}, {FL_G}")
    P(f"v_writelane_b32 v{reg}, s{S_T0}, 14")
    P(f"v_writelane_b32 v{reg}, s{S_T1}, 15")

def att_addr(P, o):
    T = V_T
    P(f"s_mul_i32 s{S_T0}, s{S_J}, 7")
    P(f"s_lshr_b32 s{S_T0}, s{S_T0}, 1")
    P(f"s_lshl_b32 s{S_T4}, s{S_T0}, 9")
    P(f"s_add_u32 s{S_T1}, s{S_T4}, {56*512}")
    P(f"v_add_u32 v{A_KD}, s{S_T1}, v{V_L16}")
    P(f"v_lshrrev_b32 v{T}, 5, v{V_LANE}")
    P(f"v_and_b32 v{T+1}, 31, v{V_LANE}")
    P(f"s_add_u32 s{S_T1}, s{S_T4}, {112*512 - 2048}")
    P(f"v_lshlrev_b32 v{T+2}, 2, v{T}")
    P(f"v_xor_b32 v{T+2}, v{T+2}, v{T+1}")
    P(f"v_lshlrev_b32 v{T+2}, 4, v{T+2}")
    P(f"v_lshl_add_u32 v{T+2}, v{T}, 9, v{T+2}")
    P(f"v_add_u32 v{A_VD}, s{S_T1}, v{T+2}")
    P(f"v_xor_b32 v{A_VD+1}, 128, v{A_VD}")
    P(f"v_add_u32 v{A_KR}, s{S_M4}, v{V_L16}")
    P(f"v_bfe_u32 v{T+1}, v{V_LANE}, 4, 1")
    P(f"v_bfe_u32 v{T+2}, v{V_LANE}, 1, 1")
    P(f"v_lshl_add_u32 v{T+3}, v{T+1}, 1, v{T+2}")
    P(f"v_lshlrev_b32 v{T+4}, 9, v{T+3}")
    P(f"v_xor_b32 v{T+3}, v{T+3}, v{T}")
    P(f"v_lshl_add_u32 v{T+4}, v{T+3}, 6, v{T+4}")
    P(f"v_bfe_u32 v{T+3}, v{V_LANE}, 2, 2")
    P(f"v_lshl_add_u32 v{T+4}, v{T+3}, 4, v{T+4}")
    P(f"v_and_b32 v{T+3}, 1, v{V_LANE}")
    P(f"v_lshl_add_u32 v{T+4}, v{T+3}, 3, v{T+4}")
    P(f"s_add_u32 s{S_T1}, s{S_M4}, 2048")
    P(f"v_add_u32 v{A_VR}, s{S_T1}, v{T+4}")
    P(f"v_xor_b32 v{A_VR+1}, 128, v{A_VR}")
    P(f"v_and_b32 v{T+1}, 31, v{V_LANE}")
    P(f"v_mul_u32_u24 v{T+2}, 12, v{T}")
    P(f"s_cmp_eq_u32 s{S_PAR}, 0")
    P(f"s_cselect_b32 s{S_T1}, -1, 0")
    P(f"s_cselect_b32 s{S_T2}, 1544, 0")
    P(f"v_and_b32 v{T+2}, s{S_T1}, v{T+2}")
    P(f"v_xor_b32 v{T+1}, v{T+1}, v{T+2}")
    P(f"v_lshlrev_b32 v{T+1}, 4, v{T+1}")
    P(f"v_lshl_add_u32 v{T+1}, v{T}, 11, v{T+1}")
    P(f"s_mul_i32 s{S_T3}, s{S_WAVE}, {3*4096}")
    P(f"s_add_u32 s{S_T2}, s{S_T2}, s{S_T3}")
    P(f"v_add_u32 v{A_PA}, s{S_T2}, v{T+1}")
    P(f"s_mul_i32 s{S_T1}, s{S_WAVE}, 3")
    P(f"s_lshl2_add_u32 s{S_T1}, s{S_ARB}, s{S_T1}")
    P(f"v_mov_b32 v{T+1}, 0x3f80")
    for k in range(3):
        P(f"s_add_u32 s{S_T2}, s{S_T1}, {k}")
        P(f"s_cmp_lt_u32 s{S_T2}, 8")
        P(f"s_cselect_b32 s{S_T2}, 0xf14a, 0")
        P(f"v_mov_b32 v{A_PV+k}, s{S_T2}")
    P(f"v_cmp_gt_u32 vcc, 32, v{V_LANE}")
    for k in range(3): P(f"v_cndmask_b32 v{A_PV+k}, v{T+1}, v{A_PV+k}, vcc")

def att_masks(P, o):
    T = V_T
    P(f"v_lshrrev_b32 v{T+1}, 5, v{V_LANE}")
    P(f"v_mul_u32_u24 v{T+1}, 36, v{T+1}")
    P(f"v_sub_u32 v{T+1}, v{V_LANE}, v{T+1}")
    for r in range(16):
        P(f"v_cmp_le_i32_e64 {sr(S_MASK+2*r)}, {(r & 3) + 8 * (r >> 2)}, v{T+1}")
    P(f"v_mov_b32 v{T+1}, 0xffff")
    P(f"v_mov_b32 v{T+2}, 0xffff0000")
    for i in range(8):
        P(f"v_cndmask_b32_e64 v{T+3}, 0, v{T+1}, {sr(S_MASK+4*i)}")
        P(f"v_cndmask_b32_e64 v{T+4}, 0, v{T+2}, {sr(S_MASK+4*i+2)}")
        P(f"v_or_b32 v{AM+i}, v{T+3}, v{T+4}")

def att_kvoff(P, o):
    P(f"s_mul_i32 s{S_T1}, s{S_WAVE}, 3")
    P(f"s_lshl2_add_u32 s{S_T1}, s{S_ARB}, s{S_T1}")
    for k in range(3):
        P(f"s_add_i32 s{S_T2}, s{S_T1}, {k-8}")
        P(f"s_max_i32 s{S_T2}, s{S_T2}, 0")
        P(f"s_mul_i32 s{S_T2}, s{S_T2}, {QKV_TB}")
        P(f"s_add_u32 s{S_KV[k]}, s{S_T2}, {QKV_OFF}")
    P(f"s_mul_i32 s{S_T0}, s{S_J}, 7")
    P(f"s_lshr_b32 s{S_T0}, s{S_T0}, 1")
    P(f"s_lshl_b32 s{S_T0}, s{S_T0}, 9")
    P(f"s_mul_i32 s{S_T2}, s{S_ATB}, {QKV_TB}")
    P(f"s_add_u32 s{S_T2}, s{S_T2}, s{S_T0}")
    P(f"s_add_u32 s{S_KV[3]}, s{S_T2}, {QKV_OFF}")

def att_loads(o, last_g=True):
    T = V_T
    L = [[f"s_mul_i32 s{S_T3}, s{S_WAVE}, {3*4096}"]]
    for k in range(3):
        g = [f"s_add_u32 m0, s{S_T3}, {LKV + k*4096}"]
        for t in range(2):
            g.append((f"buffer_load_dwordx4 v{A_KD}, {sr(SRD_WS,4)}, s{S_KV[k]} offen offset:{t*1024} {SC} lds", 'kv'))
        for t in range(2):
            g.append((f"buffer_load_dwordx4 v{A_VD+t}, {sr(SRD_WS,4)}, s{S_KV[k]} offen offset:{2048+t*1024} {SC} lds", 'kv'))
        L += [[x] for x in g]
    for t in range(2):
        L.append([f"buffer_load_dwordx4 {vr(AQ+4*t,4)}, v{V_L16}, {sr(SRD_WS,4)}, s{S_KV[3]} offen offset:{t*1024} {SC}"])
    G = [f"v_and_b32 v{T+1}, 31, v{V_LANE}", f"v_lshlrev_b32 v{T+1}, 2, v{T+1}",
         f"s_lshl_b32 s{S_T2}, s{S_ATB}, 7", f"s_add_u32 s{S_T2}, s{S_T2}, {G_OFF}",
         f"buffer_load_dword v{A_G}, v{T+1}, {sr(SRD_WS,4)}, s{S_T2} offen {SC}"]
    if last_g:
        G += [f"s_and_b32 s{S_T1}, s{S_WAVE}, 1", f"s_lshl_b32 s{S_T0}, s{S_R}, 8", f"s_add_u32 s{S_T0}, s{S_T0}, {G_OFF}",
              f"s_lshl_b32 s{S_T2}, s{S_T1}, 7", f"s_xor_b32 s{S_T3}, s{S_T2}, 128", f"s_add_u32 s{S_T2}, s{S_T2}, s{S_T0}",
              f"s_add_u32 s{S_T3}, s{S_T3}, s{S_T0}",
              f"buffer_load_dword v{L_G}, v{T+1}, {sr(SRD_WS,4)}, s{S_T3} offen {SC}",
              f"buffer_load_dword v{L_G+1}, v{T+1}, {sr(SRD_WS,4)}, s{S_T2} offen {SC}"]
    return L + [[x] for x in G]

def att_patch():
    T = V_T
    L = [[WVM('kv')]]
    L += [[f"ds_write_b16 v{A_PA}, v{A_PV+k} offset:{LKV + k*4096}"] for k in range(3)]
    L += [[f"s_cmp_eq_u32 s{S_PAR}, 0\ns_cselect_b32 s{S_T0}, 0, -1\ns_cselect_b32 s{S_T3}, -1, 0"],
          [f"s_mov_b32 s{S_T1}, 0"], [f"s_mov_b32 s{S_T2}, 0"], [f"v_mov_b32 v{T}, 0x3f80"],
          [f"v_cndmask_b32_e64 v{AQ}, v{AQ}, v{T}, {sr(S_T0)}"], [f"v_cndmask_b32_e64 v{AQ+1}, v{AQ+1}, 0, {sr(S_T0)}"],
          [f"v_cndmask_b32_e64 v{AQ+6}, v{AQ+6}, v{T}, {sr(S_T2)}"], [f"v_cndmask_b32_e64 v{AQ+7}, v{AQ+7}, 0, {sr(S_T2)}"]]
    return L

ORDER = [0, 8, 1, 2, 3, 4, 5, 6, 7]
def kread(i, buf):
    return [f"ds_read_b128 {vr(AK+8*buf+4*t,4)}, v{A_KR} offset:{LKV + i*4096 + t*1024}" for t in range(2)]
def vread(i, buf):
    return [f"ds_read_b64_tr_b16 {vr(AV+8*buf+4*t+2*rho,2)}, v{A_VR+rho} offset:{LKV + i*4096 + t*256}" for t in range(2) for rho in range(2)]

def attention(P, o, hooks, kpre=False):
    T = V_T
    order = ORDER
    stamp(P, o, 'att_go')
    gi = [0]
    def hk():
        gi[0] += 1
        return [Slot(f'a{gi[0] - 1}')] if hooks is None else []
    if not kpre: P.add(kread(order[0], 0)); P.add(kread(order[1], 1))
    SM = AS + 16
    buf1 = [AS, SM, AS + 32, AO, AS, AS + 32, AO, AS, AS + 32]
    def qkx(s, kbuf, c): return [mfma(s, AK + 8 * kbuf, AQ, c), mfma(s, AK + 8 * kbuf + 4, AQ + 4, s)]
    def maxops(s, first=False):
        return [f"v_max_f32 v{A_MX}, v{s}, v{s+1}" if (first and i == 0) else f"v_max3_f32 v{A_MX}, v{s+2*i}, v{s+2*i+1}, v{A_MX}" for i in range(8)]
    merge = [f"v_cndmask_b32_e64 v{SM+r}, v{AS+r}, v{SM+r}, {sr(S_MASK+2*r)}" for r in range(16)]
    for n in range(9):
        m = qkx(buf1[n], n & 1, None)
        post = []
        if n == 3: post = merge
        if n == 4: post = maxops(SM, True) + maxops(buf1[2])
        if n >= 5: post = maxops(buf1[n - 2])
        nxt = kread(order[n + 2 if n + 2 < 9 else n - 5], n & 1)
        h = len(post) // 2
        P.add([m[0]] + hk() + post[:h] + [m[1]] + nxt + (vread(0, 0) + vread(8, 1) if n == 8 else []) + hk() + post[h:])
    P.add(maxops(buf1[7]))
    P.add(maxops(buf1[8]))
    P(f"v_mov_b32 v{T}, v{A_MX}")
    P(f"v_permlane32_swap_b32 v{A_MX}, v{T}")
    P(f"v_max_f32 v{A_MX}, v{A_MX}, v{T}")
    P(f"v_sub_f32 v{AN}, 0, v{A_MX}")
    P(f"v_sub_f32 v{AN+1}, 0, v{A_MX}")
    for i in range(1, 8): P(f"v_mov_b64 {vr(AN+2*i,2)}, {vr(AN,2)}")
    stamp(P, o, 'att_p1')
    kb = lambda n: (n + 1) & 1
    buf2 = lambda n: AS + 16 * [0, 2, 1][(n - 2) % 3]
    fs = lambda: [Slot()] if (hooks is None and o.fslot) else []
    def expcvt(s, p):
        L = []
        for i in range(8):
            L += [f"v_exp_f32 v{s+2*i}, v{s+2*i}", f"v_exp_f32 v{s+2*i+1}, v{s+2*i+1}"] + fs()
            if i >= 1: L.append(f"v_cvt_pk_bf16_f32 v{p+i-1}, v{s+2*i-2}, v{s+2*i-1}")
        L.append(f"v_cvt_pk_bf16_f32 v{p+7}, v{s+14}, v{s+15}")
        return L
    def pv(p, vbuf, first=False):
        return [mfma(AO, AV + 8 * vbuf, p, None if first else AO), mfma(AO, AV + 8 * vbuf + 4, p + 4, AO)]
    m2 = qkx(buf2(2), kb(2), AN); m3 = qkx(buf2(3), kb(3), AN)
    sub = [f"v_sub_f32 v{SM+r}, v{SM+r}, v{A_MX}" for r in range(16)]
    ec = expcvt(SM, AP)
    sp = []
    for i in range(8):
        sp += [f"v_and_b32 v{AP+8+i}, v{AP+i}, v{AM+i}", f"v_xor_b32 v{AP+16+i}, v{AP+i}, v{AP+8+i}"]
    P.add([m2[0]] + hk() + sub[:8] + [m2[1]] + kread(order[4], kb(4)) + hk() + sub[8:] + [m3[0]] + hk() + ec[:5] +
          [m3[1]] + kread(order[5], kb(5)) + hk() + ec[5:] + sp)
    pend = pv(AP + 16, 0, True) + pv(AP + 8, 1)
    pend_rd = vread(order[2], 0) + vread(order[3], 1)
    for n in range(2, 9):
        p = AP + 16 if n == 3 else (AP if (n & 1) == 0 else AP + 8)
        ec = expcvt(buf2(n), p)
        mq = qkx(buf2(n + 2), kb(n + 2), AN) if n + 2 < 9 else []
        kr = kread(order[n + 4], kb(n + 4)) if n + 4 < 9 else []
        ms = pend + mq
        seq = []
        k = len(ms)
        step = max(1, len(ec) // max(k, 1))
        ei = 0
        for j, mm in enumerate(ms):
            seq.append(mm)
            if j == len(pend) - 1: seq += pend_rd
            if j == k - 1 and mq: seq += kr
            seq += hk()
            take = ec[ei:ei + step] if j < k - 1 else ec[ei:]
            seq += take; ei += len(take)
        P.add(seq)
        vb = n & 1
        pend = pv(p, vb)
        pend_rd = vread(order[n + 2], vb) if n + 2 < 9 else []
    P.add([pend[0]] + hk() + [pend[1]] + hk())
    stamp(P, o, 'att_p2')

def att_epilogue(P, o):
    T = V_T
    P(f"s_cmp_eq_u32 s{S_PAR}, 0")
    P(f"s_cselect_b64 {sr(S_T0)}, -1, 0")
    P(f"s_cselect_b32 s{S_MASK}, 0, -1")
    P(f"s_cselect_b32 s{S_MASK+3}, -1, 0")
    P(f"s_mov_b32 s{S_MASK+1}, 0")
    P(f"s_mov_b32 s{S_MASK+2}, 0")
    P(f"v_cndmask_b32_e64 v{T}, v{AO}, v{AO+12}, {sr(S_T0)}")
    P(f"v_mov_b32 v{T+1}, v{T}")
    P(f"v_permlane32_swap_b32 v{T}, v{T+1}")
    P(f"v_cndmask_b32_e64 v{T}, v{T}, v{T+1}, {sr(S_T0)}")
    P(f"v_rcp_f32 v{T}, v{T}")
    P(f"v_mul_f32 v{T+1}, v{T}, v{A_G}")
    for t in range(2):
        for i in range(8 * t, 8 * t + 8): P(f"v_mul_f32 v{AO+i}, v{T+1}, v{AO+i}")
        for i in range(4 * t, 4 * t + 4): P(f"v_cvt_pk_bf16_f32 v{AP+i}, v{AO+2*i}, v{AO+2*i+1}")
        for r in ((0, 1), (6, 7))[t]: P(f"v_cndmask_b32_e64 v{AP+r}, v{AP+r}, 0, {sr(S_MASK + 2*t)}")
        P(f"buffer_store_dwordx4 {vr(AP+4*t,4)}, v{V_L16}, {sr(SRD_WS,4)}, s{S_OST} offen offset:{t*1024} {SC}", tag='ost')

LACC = 16
EARLY = [('a', r) for r in range(32, 112, 4)] + list(range(160, 200, 4)) + list(range(204, 216, 4))
LATE = list(range(80, 120, 4)) + list(range(144, 160, 4)) + list(range(236, 252, 4)) + list(range(120, 144, 4))

def last_baddr(P, o):
    T = V_T
    P(f"s_mov_b64 {sr(SRD_W2)}, {sr(S_W2)}")
    srd_rest(P, [(SRD_W2, 1792*896)])
    P(f"s_mul_i32 s{S_BOF}, s{S_WAVE}, {448*896}")
    P(f"s_lshl_b32 s{S_T3}, s{S_C}, 7")
    P(f"s_add_u32 s{S_BOF}, s{S_BOF}, s{S_T3}")
    if ROT[0]:
        P(f"s_add_u32 s{S_AG}, s{S_C}, s{S_RBL}")
        if o.rcls == 2: P(f"s_and_b32 s{S_AG}, s{S_AG}, 1")
        else:
            P(f"s_lshl_b32 s{S_AG}, s{S_AG}, 1")
            P(f"s_lshr_b32 s{S_AG}, 0x24924, s{S_AG}")
            P(f"s_and_b32 s{S_AG}, s{S_AG}, 3")
        P(f"s_mul_i32 s{S_AG}, s{S_AG}, {ROT[0]}")
        P(f"s_lshl_b32 s{S_BG}, s{S_AG}, 1")
        P(f"s_mul_i32 s{S_T3}, s{S_AG}, {64*896}")
        P(f"s_add_u32 s{S_BOF}, s{S_BOF}, s{S_T3}")
    P(f"v_lshrrev_b32 v{T}, 3, v{V_LANE}")
    P(f"v_bfe_u32 v{T+1}, v{V_LANE}, 4, 1")
    P(f"v_lshlrev_b32 v{T+1}, 2, v{T+1}")
    P(f"v_xor_b32 v{T+1}, v{T+1}, v{V_LANE}")
    P(f"v_and_b32 v{T+1}, 7, v{T+1}")
    P(f"v_mul_u32_u24 v{T}, 896, v{T}")
    P(f"v_lshl_add_u32 v{V_BA}, v{T+1}, 4, v{T}")
    for i in range(1, 4): P(f"v_add_u32 v{V_BA+i}, {i*(8*896-1024)}, v{V_BA}")
    P(f"v_bfe_u32 v{T}, v{V_LANE}, 2, 2")
    P(f"v_lshrrev_b32 v{T+1}, 5, v{V_LANE}")
    P(f"v_lshl_add_u32 v{T+1}, v{T+1}, 2, v{T}")
    P(f"v_lshlrev_b32 v{T+1}, 7, v{T+1}")
    P(f"v_bfe_u32 v{T+2}, v{V_LANE}, 4, 1")
    P(f"v_lshl_add_u32 v{T+1}, v{T+2}, 5, v{T+1}")
    P(f"v_and_b32 v{T+2}, 3, v{V_LANE}")
    P(f"v_lshl_add_u32 v{T+1}, v{T+2}, 3, v{T+1}")
    P(f"v_lshrrev_b32 v{T}, 1, v{T}")
    P(f"v_lshl_add_u32 v{T}, v{T}, 6, v{T+1}")
    P(f"v_add_u32 v{T}, s{S_M4}, v{T}")
    swap_pieces(P, T, T + 1, T + 2)
    P(f"s_lshr_b32 s{S_T0}, s{S_WAVE}, 1")
    P(f"s_lshl_b32 s{S_T0}, s{S_T0}, 6")
    P(f"v_xor_b32 v{V_BR[0][1]}, s{S_T0}, v{T}")
    P(f"v_xor_b32 v{V_BR[0][0]}, 64, v{V_BR[0][1]}")
    for k in range(2): P(f"v_add_u32 v{V_BR[1][k]}, 0x10000, v{V_BR[0][k]}")

V_AT = 201
def last_baddr2(P, o):
    P(f"v_lshrrev_b32 v{V_T}, 5, v{V_LANE}")
    P(f"v_mul_u32_u24 v{V_T}, {A_TB - 4096}, v{V_T}")
    P(f"v_lshl_add_u32 v{V_T}, v{V_LANE}, 7, v{V_T}")
    P(f"s_lshl_b32 s{S_T0}, s{S_C}, 12")
    P(f"v_add_u32 v{V_AT}, s{S_T0}, v{V_T}")
    for k in range(2): P(f"v_add_u32 v{V_BR[2][k]}, 0x20000, v{V_BR[0][k]}")

def last_setup(P, o):
    T = V_T
    P(f"s_lshl_b32 s{S_T0}, s{S_C}, 7")
    P(f"v_and_b32 v{T}, 31, v{V_LANE}")
    if not o.eb:
        P(f"v_lshl_add_u32 v{T+1}, v{T}, 2, s{S_T0}")
        P(f"global_load_dword v{V_DUM}, v{T+1}, {sr(S_B2)}")
    P(f"s_and_b32 s{S_T1}, s{S_WAVE}, 1")
    P(f"s_mul_i32 s{S_T2}, s{S_T1}, {A_TB}")
    P(f"s_sub_u32 s{S_T3}, {A_TB}, s{S_T2}")
    P(f"v_add_u32 v{V_AA}, s{S_T3}, v{V_L16}")
    P(f"v_add_u32 v{V_AA+1}, s{S_T2}, v{V_L16}")
    P(f"v_and_b32 v{T+1}, 1, v{V_LANE}")
    P(f"s_lshl_b32 s{S_T0}, s{S_R}, 1")
    P(f"v_add_u32 v{T+1}, s{S_T0}, v{T+1}")
    P(f"v_lshlrev_b32 v{T+1}, 4, v{T+1}")
    P(f"v_bfe_u32 v{T+2}, v{V_LANE}, 1, 2")
    P(f"v_add_u32 v{T+1}, v{T+1}, v{T+2}")
    P(f"v_lshlrev_b32 v{T+1}, 7, v{T+1}")
    P(f"s_mul_i32 s{S_T0}, s{S_WAVE}, 7")
    P(f"s_lshr_b32 s{S_T0}, s{S_T0}, 1")
    P(f"s_lshl_b32 s{S_T0}, s{S_T0}, 7")
    P(f"s_add_u32 s{S_T0}, s{S_T0}, {FL_H}")
    P(f"v_add_u32 v{V_PH}, s{S_T0}, v{T+1}")
    P(f"s_lshl_b32 s{S_T0}, s{S_WAVE}, 9")
    P(f"s_add_u32 s{S_T0}, s{S_T0}, {FL_O}")
    P(f"v_add_u32 v{V_PO}, s{S_T0}, v{T+1}")
    for d in range(1, 4):
        P(f"s_xor_b32 s{S_T0}, s{S_WAVE}, {d}")
        P(f"s_lshl_b32 s{S_T0}, s{S_T0}, 12")
        P(f"s_add_u32 s{S_T0}, s{S_T0}, {LP[d]}")
        P(f"v_add_u32 v{L_RW+d-1}, s{S_T0}, v{V_L16}")
    P(f"s_add_u32 s{S_T0}, s{S_M4}, {LP[1]}")
    P(f"v_add_u32 v{L_RR}, s{S_T0}, v{V_L16}")
    P(f"s_lshl_b32 s{S_T0}, s{S_R}, 6")
    P(f"s_lshl_b32 s{S_T2}, s{S_T1}, 5")
    P(f"s_add_u32 s{S_T0}, s{S_T0}, s{S_T2}")
    P(f"v_add_u32 v{T+1}, s{S_T0}, v{T}")
    P(f"v_mul_u32_u24 v{T+1}, 896, v{T+1}")
    P(f"v_lshrrev_b32 v{T+2}, 5, v{V_LANE}")
    P(f"v_lshl_add_u32 v{T+1}, v{T+2}, 4, v{T+1}")
    P(f"s_lshl_b32 s{S_T0}, s{S_C}, 7")
    P(f"s_lshr_b32 s{S_T2}, s{S_WAVE}, 1")
    P(f"s_lshl_b32 s{S_T2}, s{S_T2}, 6")
    P(f"s_add_u32 s{S_T0}, s{S_T0}, s{S_T2}")
    P(f"v_add_u32 v{L_OA}, s{S_T0}, v{T+1}")

def last_soff(P, o):
    P(f"s_mul_i32 s{S_T0}, s{S_R}, {2*A_TB}")
    P(f"s_add_u32 s{S_T0}, s{S_T0}, {A_OFF}")
    P(f"s_lshl_b32 s{S_T2}, s{S_WAVE}, 13")
    P(f"s_add_u32 s{S_AO2}, s{S_T0}, s{S_T2}")
    P(f"s_add_u32 s{S_AO2}, s{S_AO2}, {112*1024}")
    P(f"s_mul_i32 s{S_T2}, s{S_WAVE}, {28*1024}")
    P(f"s_add_u32 s{S_AOF}, s{S_T0}, s{S_T2}")
    if ROT[0]:
        P(f"s_lshl_b32 s{S_T2}, s{S_AG}, 12")
        P(f"s_add_u32 s{S_AOF}, s{S_AOF}, s{S_T2}")
    P(f"s_mov_b64 {sr(SRD_WO)}, {sr(S_WO)}")
    P(f"s_mov_b32 s{SRD_WO+2}, {448*896}")
    P(f"s_mul_i32 s{S_BO}, s{S_WAVE}, {112*896}")
    P(f"s_lshl_b32 s{S_T3}, s{S_C}, 7")
    P(f"s_add_u32 s{S_BO}, s{S_BO}, s{S_T3}")

def bias2(P, o):
    P(f"s_add_u32 s{S_T0}, s{S_M4}, {LP[PIECE[11]]}")
    bias_expand(P, V_DUM, 12, L_BA, S_T0, 5)
    P(f"s_lshr_b32 s{S_T2}, s{S_WAVE}, 1")
    P(f"s_lshl_b32 s{S_T2}, s{S_T2}, 7")
    P(f"v_add_u32 v{L_BA}, s{S_T2}, v{L_BA}")
    P(f"v_sub_f32 v{L_G}, 1.0, v{L_G}")
    P(f"v_sub_f32 v{L_G+1}, 1.0, v{L_G+1}")

def a_slots(o):
    ne = o.nearly * 2
    sl = EARLY[:ne] + LATE + EARLY[ne:]
    ring = len(sl) // 2 * 2
    return [sl[i % ring] for i in range(72)], ring // 2

def a_load(o, n):
    sl, _ = a_slots(o)
    so, m = (S_AOF, n) if n < 28 else (S_AO2, n - 28)
    L = [rot_step(so, S_AG, 4096, 7) if (ROT[0] and n < 28) else f"s_add_u32 s{so}, s{so}, 4096"] if (m and m % 4 == 0) else []
    if o.aexp == 1: L = []
    for ttl in range(2):
        if o.aexp == 2 and n >= o.nearly: continue
        L.append((f"buffer_load_dwordx4 {xr(sl[2*n+ttl])}, v{V_AA+ttl}, {sr(SRD_WS,4)}, s{so} offen offset:{(m&3)*1024} {SC}", 'ald'))
    return L

def last(P, o):
    q = lambda ttl, ctl: LACC + 32 * ttl + 16 * ctl
    sl, depth = a_slots(o)
    mm = lambda n, ttl, ctl: mfma(q(ttl, ctl), breg(n, ctl), sl[2 * n + ttl], None if n == 0 else q(ttl, ctl))
    assert o.nearly > 0 and PIECE[11] not in (1, 2, 3)
    nxt = o.nearly
    D = Prog(); att_epilogue(D, o); epi = atomic_groups(D.L)
    if not o.epin:
        for g in epi: P.add(g)
        epi = []
        while nxt < max(o.lead, o.nearly): P.add(a_load(o, nxt)); nxt += 1
    EP = {}
    if epi: spread(EP, epi, list(range(o.epin)), False)
    stamp(P, o, 'last_go')
    opolled = False
    ol = lambda m, ttl: [(f"buffer_load_dwordx4 {xr(sl[2*(28+m)+ttl])}, v{V_AA+ttl}, {sr(SRD_WS,4)}, s{S_AO2 if m < 4 else S_BO} offen offset:{(m&3)*1024} {SC}", 'ald')]
    oq = [ol(m, ttl) for ttl in range(2) for m in range(8)]
    oq[0] = [f"s_add_u32 s{S_BO}, s{S_AO2}, 4096"] + oq[0]
    assert depth >= 36 - o.ocheck_at and not o.left
    sc = lambda ttl, ctl: [f"v_mul_f32 v{q(ttl,ctl)+i}, v{L_G+ttl}, v{q(ttl,ctl)+i}" for i in range(16)]
    D = Prog(); bias2(D, o); b2l = [[x] for x in D.L]
    for n in range(28):
        M = [mm(n, ttl, ctl) for ttl in range(2) for ctl in range(2)]
        ex = []; cnt = 0
        top = (36 if opolled else 28)
        if o.left and n < o.left_steps:
            k = -(-len(o.left) // (o.left_steps - n)); ex += o.left[:k]; o.left = o.left[k:]
        while nxt < min(n + min(depth, o.lead + 1), 28) and cnt < 2:
            ex += merge_salu([[e] for e in a_load(o, nxt)]); nxt += 1; cnt += 1
        if opolled and oq:
            k = -(-len(oq) // max(1, o.oend - n)); ex += oq[:k]; oq = oq[k:]
        if o.jit0 <= n < o.jit0 + 14 and not o.drop & 32:
            k = n - o.jit0 + 22
            ex += [[WVM(f'bp{k >> 1}')] + b_reads(k)[:2], b_reads(k)[2:]]
        if o.jit0 + 3 <= n < o.jit0 + 6: ex += b2l[((n - o.jit0 - 3) * len(b2l)) // 3:((n - o.jit0 - 2) * len(b2l)) // 3]
        if n == o.oflag_at and o.nearly > 0:
            D0 = Prog(); D1 = Prog()
            if o.fine: stamp(D0, o, 'of0'); stamp(D1, o, 'of1')
            ex = ex + [D0.L + [WVM('ost')] + D1.L + flag_store(S_OFL)]
        if n == o.opoll_at: ex += [poll_issue(V_PO)]
        if n == o.ocheck_at:
            D0 = Prog(); D1 = Prog()
            if o.fine: stamp(D0, o, 'oc0'); stamp(D1, o, 'oc1')
            ex = [D0.L + poll_check(V_PO) + D1.L] + ex; opolled = True
        if o.hst and n % 4 == 0 and n: stamp(P, o, f'h{n}')
        hh = {}
        isv = lambda it: any((isinstance(x, tuple) and x[0].startswith('buffer')) or (isinstance(x, str) and x.startswith('buffer')) for x in it)
        vm_ = [it for it in ex if isv(it) or any(isinstance(x, str) and 'cbranch' in x for x in it)]
        ot_ = [it for it in ex if it not in vm_]
        if vm_: spread(hh, vm_, list(o.apos) if len(vm_) <= 2 else [0, 1, 2, 3])
        if ot_: spread(hh, ot_, list(o.dpos))
        if n == o.bar_at: P("s_waitcnt lgkmcnt(0)"); P("s_barrier")
        if n == 26: M = [mm(26, 0, 0), mm(26, 0, 1), mm(27, 0, 0), mm(27, 0, 1)]
        if n == 27: M = [mm(26, 1, 0), mm(26, 1, 1), mm(27, 1, 0), mm(27, 1, 1)]
        for t in range(4):
            P.add([M[t]] + sum(hh.get(t, []), []) + sum(EP.get(4 * n + t, []), []))
            if n == 27 and t >= 1: P.add((sc(0, 0) + sc(0, 1))[[0, 0, 10, 21][t]:[0, 10, 21, 32][t]])
    stamp(P, o, 'last_h')
    for it in oq: P.add(it)
    used = set(sl[56:72])
    free = [r for r in sorted(x for x in set(sl) if not isinstance(x, tuple)) if r not in used]
    B2 = [r for r in free if all((r + 4 * k) in free for k in range(4))][0]
    for k in range(4): P(f"ds_read_b128 {vr(B2+4*k,4)}, v{L_BA} offset:{[0, 16, 64, 80][k]}")
    rest = sc(1, 0) + [f"v_add_f32 v{q(1,1)+i}, v{q(1,1)+i}, v{B2+i}" for i in range(16)] + sc(1, 1)
    M = []
    for n in range(28, 36): M += [[mm(n, 0, 0)], [mm(n, 0, 1)]]
    P.add(interleave(M, rest))
    wr = lambda ttl, ctl: [f"ds_write_b128 v{L_RR}, {vr(q(ttl,ctl)+4*i,4)} offset:{(((1-ttl) | ((1-ctl) << 1)) - 1)*16384 + i*1024}" for i in range(4)]
    w = wr(0, 0) + wr(0, 1)
    seq = []
    for i, n in enumerate(range(28, 36)):
        seq.append(mm(n, 1, 0))
        if i >= 2: seq += w[:2]; w = w[2:]
    seq += w
    w = wr(1, 0)
    for i, n in enumerate(range(28, 36)):
        seq.append(mm(n, 1, 1))
        if i >= 3 and w: seq.append(w.pop(0))
    P.add(seq + w)
    P("s_waitcnt lgkmcnt(0)")
    P("s_barrier")
    stamp(P, o, 'last_o')
    R = 80
    for d in range(3):
        for i in range(4):
            P(f"ds_read_b128 {vr(R+16*d+4*i,4)}, v{L_RW+d} offset:{i*1024}")
    o_ = q(1, 1)
    for d in range(3):
        for i in range(8):
            P(f"v_pk_add_f32 {vr(o_+2*i,2)}, {vr(o_+2*i,2)}, {vr(R+16*d+2*i,2)}")
    p = R + 48
    for i in range(8): P(f"v_cvt_pk_bf16_f32 v{p+i}, v{o_+2*i}, v{o_+2*i+1}")
    for h in range(2):
        P(f"buffer_store_dwordx4 {vr(p+4*h,4)}, v{L_OA}, {sr(SRD_OUT,4)}, 0 offen offset:{32*h} {['', 'sc1', 'nt'][o.osc]}")
    stamp(P, o, 'end')

HEADER = open('cdna_kernels/' + NAME + '.s.ref').read().split('; Override launch')[0]

ABOUT = """;
;   slot%8 != 7 (224 workgroups):
;     pass A   q/k/v = x @ wqkv for 128 tokens x 96 columns (x fragments stay in AGPRs)      -> d_ws, flag per wave
;   slot%8 == 7 (32 workgroups): gate g = sigmoid(x . gate_w), weight warm-up, their attention unit
"""

def finish(P, o, name):
    for sp in slow_paths:
        P.forget(); P(sp)
    L = finalize(P, True)
    pos = lambda t: [i for i, x in enumerate(L) if x.text.startswith(t)]
    assert pos('ds_write_b64')[0] < pos('v_lshl_add_u32 v8,')[0] < pos('ds_read_b128 v[64:67], v8')[0], 'b1 scratch read before written'
    if o.align:
        L, nf = align_runs(L); print('aligned runs:', nf)
    out = HEADER + f"; @launch grid=(256,1,1) block=(256,1,1) lds={LDS_BYTES}\n" + ABOUT
    out += '.amdgcn_target "amdgcn-amd-amdhsa--gfx950"\n.text\n'
    out += f".globl {name}\n.p2align 8\n.type {name},@function\n{name}:\n" + text(L)
    out += "s_endpgm\n.fill 2048, 4, 0xbf800000\n"
    out += f""".section .rodata,"a"
.p2align 6
.amdhsa_kernel {name}
  .amdhsa_next_free_vgpr 512
  .amdhsa_next_free_sgpr 102
  .amdhsa_accum_offset 256
  .amdhsa_group_segment_fixed_size 0
  .amdhsa_kernarg_size 96
  .amdhsa_user_sgpr_count 2
  .amdhsa_user_sgpr_kernarg_segment_ptr 1
  .amdhsa_system_sgpr_workgroup_id_x 1
.end_amdhsa_kernel
"""
    if o.diag is not None:
        out = out.replace('DIAG_I', str(o.stamp_names.index(o.diag[0]))).replace('DIAG_J', str(o.stamp_names.index(o.diag[1])))
    return out

def stf(o, n):
    D = Prog()
    if o.fine: stamp(D, o, n)
    return D.L

def groups(fn, o):
    D = Prog(); fn(D, o); return atomic_groups(D.L)

def build(o):
    name = NAME + "_kernel"
    R = lambda a, b: list(range(a, b))
    P = Prog(); setup(P, o, "L_end")
    P(f"s_cmp_eq_u32 s{S_C}, 7")
    P("s_cbranch_scc1 L_prep")
    H = Gaps()
    def first(D, o):
        s1_w1_addr(D, o)
        if o.w1t: w1_touch(D, o)
        common2(D, o); s1_misc(D, o)
        if o.stouch < 2 and not o.eb: D(f"buffer_load_dword v{V_TAG}, v{V_FLAGOFF}, {sr(SRD_WS,4)}, 0 offen")
        last_baddr(D, o)
        att_scalars(D, o)
        if not o.b1late: bias1(D, o)
        att_poll_addr(D, o)
        if not o.glate: gate_flags(D, o, V_PA)
        att_addr(D, o)
        if o.b1late: bias1(D, o)
        if o.mka: att_masks(D, o)
        if o.stouch < 2 and not o.eb: D(f"v_readfirstlane_b32 s{S_TAG}, v{V_TAG}")
        D.add(TAGOPS)
        for i in range(o.wact):
            D(f"s_mul_i32 s{S_T4}, s{S_RBL}, 7")
            D(f"s_add_u32 s{S_T4}, s{S_T4}, s{S_C}")
            D(f"s_lshl2_add_u32 s{S_T4}, s{S_T4}, s{S_WAVE}")
            D(f"s_add_u32 s{S_T4}, s{S_T4}, {16*o.wsp + 112*i}")
            warm_touch(D, S_T4, 161 + i, S_T0, V_L128)
    H.put('v', groups(first, o), 0, o.su_end)
    H.put('m', bias1_reads(), o.b1r, 84)
    def first2(D, o): att_kvoff(D, o); last_soff(D, o)
    H.put('v', groups(first2, o), o.su_end, 84)
    FAKE[0] = o.fake & 1
    pass_a(P, o, H)
    FAKE[0] = 0
    P('; ---------------- q/k/v epilogue ----------------')
    qkv_epilogue(P, o, merge_salu([it for n in range(o.nba, o.nbe) for it in dma_b(n)]))
    stamp(P, o, 'qkv_epi')
    H = Gaps()
    def second(D, o):
        last_setup(D, o)
        if o.glate: gate_flags(D, o, V_PH)
        if not o.mka: att_masks(D, o)
    H.put('v', groups(second, o), 0, 50)
    for i, g in enumerate(o.l2t):
        D = Prog(); l2_touch(D, o, i); H.put('v', [D.L], g, g + 1)
    dm = lambda a, b: merge_salu([it for p in range(a, b) for it in b_dma(p)])
    rd = lambda a, b: [[WVM(f'bp{n >> 1}')] + b_reads(n)[:2] if k == 0 else b_reads(n)[2:] for n in range(2 * a, 2 * b) for k in range(2)]
    b = o.pb
    kv = merge_salu(att_loads(o))
    gl = []
    if o.glate: kv, gl = kv[:14], kv[14:]
    def put_m0(items, g0, g1):
        own = lambda g: 12 <= g < 52 and (g - 12) % 16 < 8
        free = [g for g in range(g0, g1) if not own(g)]
        runs = []; cur = []
        for it in items:
            if any(isinstance(x, str) and ' m0,' in x for x in it) and cur: runs.append(cur); cur = []
            cur.append(it)
        runs.append(cur)
        n = len(runs)
        for i, r in enumerate(runs):
            sl = free[(i * len(free)) // n:((i + 1) * len(free)) // n]
            keep = [sl[0]]
            for g in sl[1:]:
                if g != keep[-1] + 1: break
                keep.append(g)
            spread(H.m, r, keep)
    if o.nbe < 4: H.put('m', merge_salu([it for n in range(o.nbe, 4) for it in dma_b(n)]), 0, 12)
    for c in range(3): H.put('m', merge_salu(dma_b(c + 4)), 16 * c + 12, 16 * c + 20)
    if not o.drop & 1: put_m0(dm(0, o.n1), b[0], b[1])
    H.put('m', [stf(o, 'qf0') + [WVM('qst')] + stf(o, 'qf1') + flag_store(S_QFL) + ([f"v_min_u32 v15, {47*128}, v{V_L128}", f"buffer_load_dword v15, v15, {sr(SRD_WS,4)}, s{S_QST} offen {SC}"] if o.rt & 2 else [])], o.qflag, o.qflag + 1)
    H.put('m', [poll_issue(V_PA)], o.kpoll, o.kpoll + 1)
    kvl = kv[o.nkv:]
    if not o.drop & 4: put_m0([['s_waitcnt lgkmcnt(0)', 's_barrier'] * (o.n1 > 4) + stf(o, 'kc0') + poll_check(V_PA) + stf(o, 'kc1') + kv[0]] + kv[1:o.nkv], o.kcheck, o.kend)
    if not o.r1late: H.put('m', rd(0, o.n1), b[2], b[3])
    pt = att_patch()
    if o.patch < 112:
        H.put('m', pt[:4], o.patch, o.patch + 2)
        H.put('v', pt[4:], o.patch + 2, 112)
    FAKE[0] = o.fake & 2
    pass_b(P, o, H)
    FAKE[0] = 0
    P("s_waitcnt lgkmcnt(0)")
    P("s_barrier")
    stamp(P, o, 'pass_b')
    if o.trunc:
        stamp_flush(P, o); P("s_endpgm"); P.forget(); P("L_prep:"); prep(P, o); stamp_flush(P, o); P("L_end:"); P("s_endpgm")
        return finish(P, o, name)
    if o.patch < 112: P.add(kread(ORDER[0], 0) + kread(ORDER[1], 1))
    last_baddr2(P, o)
    na = 11 + (o.n1 - 4)
    Q = Prog(); held = []; sstream = []
    for F in range(4):
        g = gelu_tile(F)
        for i, x in enumerate(g[:-2]):
            if i % 4 == 0: Q.L.append(Slot(f'g{F}_{i}'))
            Q.add([x])
        held += g[-2:]
        if F >= o.kvt - 1:
            Q.L.append(Slot(f'gs{F}'))
            if o.pst: sstream += [([x], (lambda F: lambda st: f'gs{F}' in st['seen'])(F), 'x') for x in held]
            else: Q.add(held)
            held = []
        if F == o.patch_t:
            if o.fine: stamp(Q, o, 'pt0')
            Q.add(pt[0])
            if o.fine: stamp(Q, o, 'pt1')
            for it in pt[1:]: Q.add(it)
        if F == o.bar_t:
            Q("s_waitcnt lgkmcnt(0)"); Q("s_barrier")
            Q.add(kread(ORDER[0], 0) + kread(ORDER[1], 1))
    stamp(Q, o, 'gelu')
    attention(Q, o, None, kpre=True)
    seen = lambda n: (lambda st: n in st['seen'])
    after = lambda key, dt: (lambda st: key in st['done'] and st['t'] >= st['done'][key] + dt)
    both = lambda a, b: (lambda st: a(st) and b(st))
    dstream = [(it, None, f'kv{i}') for i, it in enumerate(kvl)]
    for p in range(o.n1, 18):
        its = merge_salu(b_dma(p))
        for i, it in enumerate(its):
            cond = None
            if p == o.n1 and i == 0: cond = seen(o.ra0)
            lo = 0 if o.r1late else o.n1
            if i == 0 and [q for q in range(lo, p) if PIECE[q] == PIECE[p]]:
                prev = [q for q in range(lo, p) if PIECE[q] == PIECE[p]][-1]
                cond = after(f'rd{prev}', 60); it = [WLG(f'rd{prev}')] + it
            if o.pause:
                c0 = cond
                cond = (lambda c0: lambda st: (c0 is None or c0(st)) and (o.pause_at not in st['seen'] or f'a{o.resume}' in st['seen']))(c0)
            dstream.append((it, cond, f'dm{p}' if i == len(its) - 1 else 'x'))
    rstream = []
    for p in range(0 if o.r1late else o.n1, 11):
        r = b_reads(2 * p) + b_reads(2 * p + 1)
        for k in range(4):
            it = [(x, f'rd{p}') for x in r[2 * k:2 * k + 2]]
            rstream.append(([WVM(f'bp{p}')] * (k == 0) + it, (seen(o.r1at) if p < o.n1 else both(after(f'dm{p}', o.lat), seen('a0'))) if k == 0 else None, f'rd{p}' if k == 3 else 'x'))
    def st_(n):
        D = Prog()
        if o.fine: stamp(D, o, n)
        return D.L
    names0 = list(o.stamp_names)
    fstream = [(st_('hf0') + [WVM('hst')] + st_('hf1') + flag_store(S_HFL) + ([f"buffer_load_dword v{V_AT-1}, v{V_L128}, {sr(SRD_WS,4)}, s{S_HST} offen {SC}"] if o.rt & 1 else []), both(seen(f'a{o.hflag}'), lambda st: not sstream), 'hf')]
    if o.nearly > 0:
        fstream.append((poll_issue(V_PH), seen(f'a{o.hpoll}'), 'hp'))
        al = merge_salu([[x] for n in range(o.nearly) for x in a_load(o, n)])
        al = al[:2] + gl + al[2:]
        if o.atouch:
            tch = [f"buffer_load_dword v{V_AT}, v{V_AT}, {sr(SRD_WS,4)}, s{S_AOF} offen {SC}"]
            fstream.append((st_('hc0') + poll_check(V_PH) + st_('hc1') + tch, seen(f'a{o.hcheck}'), 'hc'))
            fstream += [(it, seen(f'a{o.ea0}'), 'ea') for it in al]
        else:
            fstream.append((st_('hc0') + poll_check(V_PH) + st_('hc1') + al[0], seen(f'a{o.hcheck}'), 'hc'))
            fstream += [(it, None, 'ea') for it in al[1:]]
    L, t = place(Q.L, {'s': sstream, 'f': fstream, 'r': rstream, 'd': dstream}, gap=o.gap, burst=o.burst)
    kvpos = max([i for i, x in enumerate(L) if isinstance(x, I) and x.tag == 'kv'] + [-1]); hpos = min(i for i, x in enumerate(L) if isinstance(x, I) and x.tag == 'hst')
    print('estimated gelu+attention cycles', t, 'left', len(dstream), len(rstream), len(fstream), 'kv before h stores', kvpos < hpos)
    assert not rstream and not sstream
    P.L += L
    for it, _, _ in fstream: P.add(it)
    o.left = [it for it, _, _ in dstream]
    FAKE[0] = o.fake & 4
    last(P, o)
    FAKE[0] = 0
    stamp_flush(P, o)
    P("s_endpgm")
    P.forget()
    P("L_prep:")
    prep(P, o)
    att_scalars(P, o); att_poll_addr(P, o); gate_flags(P, o, V_PA); att_addr(P, o); att_masks(P, o); att_kvoff(P, o)
    poll(P, o, V_PA)
    for it in att_loads(o, False) + att_patch(): P.add(it)
    P("s_waitcnt lgkmcnt(0)")
    P("s_barrier")
    if o.pw & 2:
        srd_rest(P, [(SRD_OUT, 2048*896)])
        P(f"v_lshlrev_b32 v{V_T+3}, 18, v{V_LANE}")
        P(f"buffer_load_dword v200, v{V_T+3}, {sr(SRD_OUT,4)}, 0 offen")
    st, o.stamps = o.stamps, False
    attention(P, o, {})
    att_epilogue(P, o)
    o.stamps = st
    P("s_waitcnt vmcnt(0)")
    P.add(flag_store(S_OFL))
    stamp(P, o, 'p_att')
    stamp_flush(P, o)
    P(f"s_cmp_eq_u32 s2, 56")
    P("s_cbranch_scc0 L_end")
    P(f"s_cmp_eq_u32 s{S_WAVE}, 0")
    P("s_cbranch_scc0 L_end")
    P(f"v_lshlrev_b32 v{V_PA}, 7, v{V_LANE}")
    P(f"s_mov_b32 s{S_CNT}, 20000")
    P("L_ep:")
    for i in range(16):
        P(f"s_mov_b32 s{S_T0}, {FL_O + i*8192}")
        P(f"buffer_load_dwordx2 {vr(16+2*i,2)}, v{V_PA}, {sr(SRD_WS,4)}, s{S_T0} offen sc1")
    P("s_waitcnt vmcnt(0)")
    P(f"s_mov_b64 {sr(S_T0)}, 0")
    for i in range(16):
        P(f"v_cmp_ne_u64 vcc, {sr(S_TAG)}, {vr(16+2*i,2)}")
        P(f"s_or_b64 {sr(S_T0)}, {sr(S_T0)}, vcc")
    P(f"s_sub_u32 s{S_CNT}, s{S_CNT}, 1")
    P("s_cbranch_scc1 L_end")
    P(f"s_cmp_eq_u64 {sr(S_T0)}, 0")
    P("s_cbranch_scc0 L_ep")
    P(f"buffer_store_dword v{V_TAG}, v{V_FLAGOFF}, {sr(SRD_WS,4)}, 0 offen sc1")
    P("L_end:")
    P("s_endpgm")
    return finish(P, o, name)

DEFAULTS = dict(aexp=0, fslot=0, rt=0, eb=1, xw=0, pff=0, slim=0, sp=0, stouch=0, fake=0, pst=0, osc=0, nba=4, nbe=4, oend=28, r1late=0, r1at='g1_0', apos=(0, 2), dpos=(1, 3), align=1, rot=0, rcls=2, wfirst=0, glate=0, bar_t=3, epin=6, bar_at=3, olead=12, atouch=0, ea0=46, fine=0, pause=1, pause_at='gs1', resume=0, burst=2, gap=64, lat=700, ra0='g0_0', l2t=(), kvt=2, patch_t=1, pw=0, b1late=1, w1t=0, mw=1, drop=0, trunc=0, ncls=3, wsp=0, wact=0, su_end=72, bq_end=84, mka=1, n1=4,
                b1r=60, pb=(52, 84, 88, 104), qflag=30, kpoll=74, kcheck=86, kend=112, nkv=14, patch=112,
                nb_gelu=(0, 0, 3, 3), pa=(0, 22, 20, 32, 50), nrb=20, left_steps=4, hflag=6, nearly=4, hpoll=32, hcheck=44,
                lead=6, jit0=8, oflag_at=5, opoll_at=15, ocheck_at=22, hst=0, code_bytes=32768)

if __name__ == '__main__':
    o = Opt()
    for k, v in DEFAULTS.items(): setattr(o, k, v)
    o.stamps = 'stamps' in sys.argv; o.diag = None; o.stamp_names = []
    o.clk = 's_memtime' if 'cyc' in sys.argv else 's_memrealtime'
    for a in sys.argv[2:]:
        if '=' not in a: continue
        k, v = a.split('=')
        if k == 'diag':
            i, j, K = v.split(','); o.diag = (i, j, int(K)); o.stamps = True
        elif k in ('ra0', 'pause_at', 'r1at'): setattr(o, k, v)
        elif ',' in v: setattr(o, k, tuple(int(x) for x in v.split(',') if x))
        else: setattr(o, k, int(v))
    plan(o.n1, o.r1late); ROT[0] = o.rot
    s = build(o)
    open(sys.argv[1], 'w').write(s)
    if o.stamps: open(sys.argv[1] + '.names', 'w').write('\n'.join(o.stamp_names))
```

```python
import sys, math, struct
from asmlib import *

NAME = "gated_mix__sliding_block__dense_activation_gelu__prompt"
def f2u(x): return struct.unpack('<I', struct.pack('<f', x))[0]

WS_E      = 0
FL_G      = 0x1000
G_OFF     = 0x4000
FL_QKV    = 0x20000
FL_H      = 0x40000
FL_O      = 0x60000
QKV_OFF   = 0x100000
A_OFF     = 0x680000
WS_SIZE   = 0x1000000
BP_OFF    = 0x1100000
STAMP_OFF = 0x1400000
import os
QKV_TB = 168 * 512 + int(os.environ.get('QPAD', 1024))
A_TB = 144 * 1024 + int(os.environ.get('APAD', 1024))

SA = 28672
LQ = 16384
LF = 98304; SF = 16384
LBIAS = 86016
LKV = 0
LRED = 0
LP = [49152 + 16384 * i for i in range(7)] + [0, 16384, 32768]
PIECE = []
def plan(n1, late=0):
    ra = list(range(11 - n1))
    rb = [p for p in range(7) if p not in ra] + ra
    PIECE[:] = [0, 1, 2, 3, 7, 8, 9][:n1] + ra + rb[:7]
    if late: PIECE[:] = [0, 1, 2, 3] + [4, 5, 6, 0, 1, 2, 3] * 2
LDS_BYTES = 160 * 1024

S_WAVE, S_RBL, S_SPARE, S_XCD, S_SLOT = 3, 8, 9, 10, 11
S_XO, S_QO, S_FO, S_CI, S_CJ = 4, 5, 6, 7, 22
S_M4, S_M3 = 23, 24
S_OFL = 25
S_B1, S_W2, S_B2, S_GW, S_WO = 12, 14, 16, 18, 20
S_TAG = 26
SRD_X, SRD_WQ, SRD_W1, SRD_WS, SRD_OUT, SRD_W2 = 28, 32, 36, 40, 44, 48
SRD_WO = 32
S_KV = [28, 29, 30, 31]
S_RB, S_B, S_TB = 52, 53, 54
S_BOF = 55
S_T0, S_T1, S_T2, S_T3 = 56, 57, 58, 59
S_CNT = 60
S_LQ = 60
S_QST, S_HST = 61, 62
S_T4 = 63
S_MASK = 64
S_QFL, S_HFL = 12, 13
S_OST, S_B3 = 18, 19
S_AOF, S_AO2, S_BO = 4, 5, 7
S_ARB, S_ATB = 14, 15
S_R, S_C, S_J, S_PAR = 98, 99, 100, 101
S_AG, S_BG = 52, 54

def sr(b, n=2): return f"s[{b}:{b+n-1}]"
def vr(b, n): return f"v[{b}:{b+n-1}]" if n > 1 else f"v{b}"
def ar(b, n): return f"a[{b}:{b+n-1}]"
def xr(d): return ar(d[1], 4) if isinstance(d, tuple) else vr(d, 4)

V_LANE, V_L16, V_L16H, V_FLAGOFF = 1, 2, 3, 4
V_TAG = 6
V_PD = 8
V_PA = 10
V_T = 11
V_BA = 216
V_AA = 220
L_G = 222
L_RW = 224
L_RR, L_OA, V_PO, V_PH = 227, 228, 229, 231
V_BR = [[232, 233], [0, 230], [202, 234]]
L_BA = 10
V_DUM = 235
V_ST = 255
SC = 'sc1'

class Opt: pass

FAKE = [0]
def mfma(d, a, b, c):
    if FAKE[0]:
        return "\n".join(f"v_mfma_f32_16x16x32_bf16 {vr(d+8*k,4)}, {xr(a)}, {xr(b)}, {'0' if c is None else vr(c+8*k,4)}" for k in range(2))
    C = '0' if c is None else vr(c, 16)
    return f"v_mfma_f32_32x32x16_bf16 {vr(d,16)}, {xr(a)}, {xr(b)}, {C}"

lab = [0]
def stamp(P, o, name):
    if not o.stamps: return
    if name not in o.stamp_names: o.stamp_names.append(name)
    P(f"{o.clk} s[96:97]")
    P("s_waitcnt lgkmcnt(0)")
    P(f"v_writelane_b32 v{V_ST}, s96, {o.stamp_names.index(name)}")

def stamp_flush(P, o):
    if not o.stamps: return
    if o.diag is not None:
        lab[0] += 1
        P(f"v_readlane_b32 s{S_T0}, v{V_ST}, DIAG_I")
        P(f"v_readlane_b32 s{S_T1}, v{V_ST}, DIAG_J")
        P("s_nop 4")
        P(f"s_sub_u32 s{S_T0}, s{S_T1}, s{S_T0}")
        P(f"s_mul_i32 s{S_T0}, s{S_T0}, {o.diag[2]}")
        P(f"s_min_u32 s{S_T0}, s{S_T0}, 20000")
        P(f"s_cmp_eq_u32 s{S_SPARE}, 1")
        P(f"s_cselect_b32 s{S_T0}, 0, s{S_T0}")
        P("s_memrealtime s[96:97]")
        P("s_waitcnt lgkmcnt(0)")
        P(f"s_mov_b32 s{S_T1}, s96")
        P(f"L_dg{lab[0]}:")
        P("s_memrealtime s[96:97]")
        P("s_waitcnt lgkmcnt(0)")
        P(f"s_sub_u32 s{S_T2}, s96, s{S_T1}")
        P(f"s_cmp_lt_u32 s{S_T2}, s{S_T0}")
        P(f"s_cbranch_scc1 L_dg{lab[0]}")
        return
    P("s_waitcnt vmcnt(0)")
    P(f"s_lshl2_add_u32 s{S_T0}, s2, s{S_WAVE}")
    P(f"s_lshl_b32 s{S_T0}, s{S_T0}, 8")
    P(f"s_add_u32 s{S_T0}, s{S_T0}, {STAMP_OFF}")
    P(f"s_mov_b32 s{SRD_WS+2}, {STAMP_OFF + 0x100000}")
    P(f"v_lshlrev_b32 v{V_T}, 2, v{V_LANE}")
    P(f"buffer_store_dword v{V_ST}, v{V_T}, {sr(SRD_WS,4)}, s{S_T0} offen")

def setup(P, o, end_label):
    if o.stamps: P(f"{o.clk} s[94:95]")
    if o.pff: setup_rest(P, o, True)
    P(f"s_load_dwordx2 {sr(SRD_X)}, s[0:1], 0")
    P(f"s_load_dwordx2 {sr(SRD_WQ)}, s[0:1], 8")
    if not o.slim: setup_rest(P, o, False)
    P("s_cmpk_ge_u32 s2, 256")
    P(f"s_cbranch_scc1 {end_label}")
    if not o.slim and not o.pff: setup_rest(P, o, True)
    P(f"v_lshrrev_b32 v5, 6, v0")
    P(f"v_and_b32 v{V_LANE}, 63, v0")
    P(f"v_readfirstlane_b32 s{S_WAVE}, v5")
    P(f"s_and_b32 s{S_XCD}, s2, 7")
    P(f"s_lshr_b32 s{S_RBL}, s2, 6")
    P(f"s_bfe_u32 s{S_C}, s2, 0x30003")
    P(f"s_mov_b32 s{SRD_X+3}, 0x20000")
    P(f"s_mov_b32 s{SRD_X+2}, {2048*896}")

def setup_rest(P, o, pf):
    if not pf:
        P(f"s_load_dwordx2 {sr(SRD_W1)}, s[0:1], 32")
        P(f"s_load_dwordx8 s[12:19], s[0:1], 40")
        P(f"s_load_dwordx2 {sr(SRD_WS)}, s[0:1], 88")
        P(f"s_load_dwordx2 {sr(SRD_OUT)}, s[0:1], 72")
        P(f"s_load_dwordx2 {sr(S_WO)}, s[0:1], 16")
        P(f"s_lshr_b32 s{S_SLOT}, s2, 3")
        return
    P(f"s_getpc_b64 s[{S_T0}:{S_T1}]")
    P(f"v_lshlrev_b32 v15, 7, v0")
    P(f"v_min_u32 v15, {o.code_bytes - 512}, v15")
    P(f"global_load_dword v234, v15, s[{S_T0}:{S_T1}]", tag='pf')

def srd_rest(P, regs):
    for d, size in regs:
        P(f"s_mov_b32 s{d+2}, {size}")
        P(f"s_mov_b32 s{d+3}, 0x20000")

def common2(P, o):
    P(f"v_lshlrev_b32 v{V_L16}, 4, v{V_LANE}")
    P(f"v_cmp_eq_u32 vcc, 0, v{V_LANE}")
    P(f"v_mov_b32 v5, 0x7fff0000")
    P(f"v_add_u32 v{V_L16H}, 0x1000, v{V_L16}")
    P(f"v_cndmask_b32_e64 v{V_FLAGOFF}, v5, 0, vcc")
    P(f"s_lshl2_add_u32 s{S_R}, s{S_XCD}, s{S_RBL}")

TAGOPS = [f"s_mul_i32 s{S_TAG}, s{S_TAG}, 0x9e3779b1",
          f"s_add_u32 s{S_TAG}, s{S_TAG}, 0x7f4a7c15",
          f"s_xor_b32 s{S_TAG+1}, s{S_TAG}, 0x5bd1e995",
          f"v_mov_b32 v{V_TAG}, s{S_TAG}",
          f"v_mov_b32 v{V_TAG+1}, s{S_TAG+1}"]

def warm_touch(P, blk, dst, tb, l128):
    P(f"s_mul_i32 s{tb}, s{S_XCD}, 31")
    P(f"s_min_u32 s{blk}, s{blk}, 244")
    P(f"s_add_u32 s{blk}, s{blk}, s{tb}")
    P(f"s_sub_u32 s{tb}, s{blk}, 245")
    P(f"s_cselect_b32 s{blk}, s{blk}, s{tb}")
    P(f"s_sub_u32 s{tb}, s{blk}, 196")
    P(f"s_cselect_b32 s{blk}, s{blk}, s{tb}")
    P(f"s_cselect_b64 {sr(tb)}, {sr(SRD_W2)}, {sr(S_WO)}")
    P(f"s_lshl_b32 s{blk}, s{blk}, 13")
    P(f"s_add_u32 s{tb}, s{tb}, s{blk}")
    P(f"s_addc_u32 s{tb+1}, s{tb+1}, 0")
    P(f"global_load_dword v{dst}, v{l128}, {sr(tb)}", tag='warm')

def l2_touch(P, o, i):
    P(f"s_mul_i32 s{S_T4}, s{S_RBL}, 7")
    P(f"s_add_u32 s{S_T4}, s{S_T4}, s{S_C}")
    P(f"s_lshl2_add_u32 s{S_T4}, s{S_T4}, s{S_WAVE}")
    if i: P(f"s_add_u32 s{S_T4}, s{S_T4}, {112*i}")
    P(f"s_mul_i32 s{S_T0}, s{S_T4}, 1873")
    P(f"s_lshr_b32 s{S_T0}, s{S_T0}, 16")
    P(f"s_mul_i32 s{S_T0}, s{S_T0}, {128*896}")
    P(f"s_lshl_b32 s{S_T1}, s{S_T4}, 13")
    P(f"s_add_u32 s{S_T0}, s{S_T0}, s{S_T1}")
    P(f"s_add_u32 s{S_T0}, s{S_T0}, {128*896}")
    P(f"s_sub_u32 s{S_T1}, s{S_T1}, {140*8192}")
    P(f"s_cbranch_scc0 L_wo{i}")
    P(f"buffer_load_dword v{184+i}, v{V_L128}, {sr(SRD_W2,4)}, s{S_T0} offen")
    P(f"s_branch L_wj{i}")
    P(f"L_wo{i}:")
    P(f"buffer_load_dword v{186+i}, v{V_L128}, {sr(SRD_WO,4)}, s{S_T1} offen")
    P(f"L_wj{i}:")
    P.L.append(Pseudo('drop_vm'))

def poll(P, o, addr_v, limit=20000):
    lab[0] += 1
    L = f"L_poll{lab[0]}"
    P(f"s_mov_b32 s{S_CNT}, {limit}")
    P(f"{L}:")
    P(f"buffer_load_dwordx2 {vr(V_PD,2)}, v{addr_v}, {sr(SRD_WS,4)}, 0 offen sc1")
    P(f"s_sub_u32 s{S_CNT}, s{S_CNT}, 1")
    P("s_waitcnt vmcnt(0)")
    P(f"v_cmp_ne_u64 vcc, {sr(S_TAG)}, {vr(V_PD,2)}")
    P(f"s_cbranch_scc1 {L}_x")
    P(f"s_cbranch_vccnz {L}")
    P(f"{L}_x:")

slow_paths = []
def poll_issue(addr_v):
    return [f"buffer_load_dwordx2 {vr(V_PD,2)}, v{addr_v}, {sr(SRD_WS,4)}, 0 offen sc1"]
def poll_check(addr_v, limit=20000):
    lab[0] += 1
    L = f"L_pc{lab[0]}"
    slow_paths.append(f"""{L}_slow:
s_mov_b32 s{S_CNT}, {limit}
{L}_loop:
buffer_load_dwordx2 {vr(V_PD,2)}, v{addr_v}, {sr(SRD_WS,4)}, 0 offen sc1
s_sub_u32 s{S_CNT}, s{S_CNT}, 1
s_waitcnt vmcnt(0)
v_cmp_ne_u64 vcc, {sr(S_TAG)}, {vr(V_PD,2)}
s_cbranch_scc1 {L}_back
s_cbranch_vccnz {L}_loop
s_branch {L}_back""")
    return [f"v_cmp_ne_u64 vcc, {sr(S_TAG)}, {vr(V_PD,2)}\ns_cbranch_vccnz {L}_slow\n{L}_back:"]

def flag_store(soff):
    return [f"buffer_store_dwordx2 {vr(V_TAG,2)}, v{V_FLAGOFF}, {sr(SRD_WS,4)}, s{soff} offen sc1"]

ACC_Q, ACC_F = 16, 64
FR = 128
GT = 160
V_XD, V_QD, V_FD = 192, 196, 199
V_XR, V_QR, V_FRD = 203, 207, 208
V_CA, V_CB = 212, 214
V_QR2, V_L128 = 213, 215

def adv(ci):
    return f"s_add_u32 s{ci}, s{ci}, 1\ns_cmp_eq_u32 s{ci}, 7\ns_cselect_b32 s{ci}, 0, s{ci}"

NSA = [3]
V_XR2 = 160
def dma_a(n):
    sl = (n % NSA[0]) * SA
    L = []
    if n: L.append([adv(S_CI)])
    L.append([f"s_lshl_b32 s{S_XO}, s{S_CI}, 7", f"s_add_u32 m0, s{S_M4}, {sl}"])
    L.append([f"s_mul_i32 s{S_QO}, s{S_CI}, {64*2688}"])
    for i in range(4):
        L.append([(f"buffer_load_dwordx4 v{V_XD+i}, {sr(SRD_X,4)}, s{S_XO} offen offset:{i*1024} lds", f'da{n}')])
    L.append([f"s_add_u32 m0, s{S_M3}, {sl}"])
    for i in range(3):
        L.append([(f"buffer_load_dwordx4 v{V_QD+i}, {sr(SRD_WQ,4)}, s{S_QO} offen offset:{i*1024} lds", f'da{n}')])
    return L

def dma_b(n):
    L = []
    if n: L.append([adv(S_CJ)])
    L.append([f"s_add_u32 m0, s{S_M4}, {LF + ((n + 1) % 4) * SF}", f"s_mul_i32 s{S_FO}, s{S_CJ}, {64*3584}"])
    for i in range(4):
        L.append([(f"buffer_load_dwordx4 v{V_FD+i}, {sr(SRD_W1,4)}, s{S_FO} offen offset:{i*1024} lds", f'db{n}')])
    return L

def reads_a(g):
    c, s = g >> 2, g & 3
    k = c % NSA[0]
    base = FR + 16 * (g & 1)
    L = [f"ds_read_b128 {ar(4*g,4)}, v{V_XR+s} offset:{k*SA}" if k < 3 else f"ds_read_b128 {ar(4*g,4)}, v{V_XR2+s} offset:0"]
    q, so = (V_QR2, (k - 2) * SA) if k >= 2 else (V_QR, k * SA)
    for t in range(3):
        for rho in range(2):
            L.append(f"ds_read_b64_tr_b16 {vr(base+4*t+2*rho,2)}, v{q} offset:{so + (16*s+4*rho)*192 + t*64}")
    return L

def reads_b(g):
    c, s = g >> 2, g & 3
    base = FR + 16 * (g & 1)
    return [f"ds_read_b64_tr_b16 {vr(base+4*t+2*rho,2)}, v{V_FRD+t} offset:{((c + 1) % 4)*SF + (16*s+4*rho)*256}" for t in range(4) for rho in range(2)]

def s1_x_addr(P, o):
    T = V_T
    if o.ncls == 3:
        P(f"s_add_u32 s{S_CI}, s{S_C}, s{S_RBL}")
        P(f"s_lshl_b32 s{S_CI}, s{S_CI}, 1")
        P(f"s_lshr_b32 s{S_CI}, 0x24924, s{S_CI}")
        P(f"s_and_b32 s{S_CI}, s{S_CI}, 3")
        P(f"s_lshl_b32 s{S_CI}, s{S_CI}, 1")
    elif o.ncls == 2:
        P(f"s_add_u32 s{S_CI}, s{S_C}, s{S_RBL}")
        P(f"s_and_b32 s{S_CI}, s{S_CI}, 1")
        P(f"s_mul_i32 s{S_CI}, s{S_CI}, 3")
    else:
        P(f"s_mov_b32 s{S_CI}, 0")
    P(f"s_and_b32 s{S_RB}, s{S_XCD}, 3")
    P(f"s_lshl2_add_u32 s{S_RB}, s{S_RB}, s{S_RBL}")
    P(f"s_lshl2_add_u32 s{S_TB}, s{S_RB}, s{S_WAVE}")
    P(f"v_lshrrev_b32 v{T}, 3, v{V_LANE}")
    P(f"v_and_b32 v{T+1}, 7, v{V_LANE}")
    P(f"v_lshrrev_b32 v{T+2}, 4, v{V_LANE}")
    P(f"s_lshl_b32 s{S_T2}, s{S_TB}, 5")
    P(f"v_add_u32 v{T}, s{S_T2}, v{T}")
    P(f"v_mul_u32_u24 v{T}, 896, v{T}")
    P(f"v_xor_b32 v{T+1}, v{T+2}, v{T+1}")
    P(f"v_lshl_add_u32 v{V_XD}, v{T+1}, 4, v{T}")
    P(f"v_xor_b32 v{V_XD+1}, 64, v{V_XD}")
    P(f"s_lshl_b32 s{S_M4}, s{S_WAVE}, 12")
    P(f"v_add_u32 v{V_XD+2}, {2*(8*896-1024)}, v{V_XD}")
    P(f"v_add_u32 v{V_XD+3}, {3*(8*896-1024)}, v{V_XD+1}")
    P(f"v_add_u32 v{V_XD+1}, {1*(8*896-1024)}, v{V_XD+1}")

def s1_wq_addr(P, o):
    T = V_T
    P(f"s_lshr_b32 s{S_B}, s{S_XCD}, 2")
    P(f"s_mul_i32 s{S_B}, s{S_B}, 7")
    P(f"s_add_u32 s{S_B}, s{S_B}, s{S_C}")
    P(f"s_mul_i32 s{S_T2}, s{S_WAVE}, 192")
    P(f"s_mul_i32 s{S_T3}, s{S_B}, 192")
    P(f"v_add_u32 v{T}, s{S_T2}, v{V_LANE}")
    P(f"v_lshl_add_u32 v{T+2}, v{T}, 4, s{S_T3}")
    P(f"v_mul_u32_u24 v{T}, 0xaaab, v{T}")
    P(f"s_movk_i32 s{S_T3}, 2496")
    for i in range(3):
        if i: P(f"v_add_u32 v{T}, {64*0xaaab}, v{T}")
        P(f"v_lshrrev_b32 v{T+1}, 19, v{T}")
        P(f"v_mad_u32_u24 v{V_QD+i}, v{T+1}, s{S_T3}, v{T+2}")
    P(f"s_lshl_b32 s{S_T2}, s{S_T2}, 4")
    P(f"s_movk_i32 s{S_LQ}, {LQ}")
    P(f"s_add_u32 s{S_M3}, s{S_T2}, s{S_LQ}")
    srd_rest(P, [(SRD_WQ, 448*2688)])

def swap_pieces(P, reg, tmp, c4):
    P(f"v_bfe_u32 v{tmp}, 6, v{c4}, 1")
    P(f"v_mul_u32_u24 v{tmp}, 24, v{tmp}")
    P(f"v_xor_b32 v{reg}, v{reg}, v{tmp}")

def s1_read_addr(P, o):
    T = V_T
    P(f"v_and_b32 v{T}, 31, v{V_LANE}")
    P(f"v_lshrrev_b32 v{T+1}, 5, v{V_LANE}")
    P(f"v_bfe_u32 v{T+2}, v{V_LANE}, 1, 3")
    P(f"v_xor_b32 v{T+2}, v{T+2}, v{T+1}")
    P(f"v_lshl_add_u32 v{T}, v{T}, 7, s{S_M4}")
    for s in range(4):
        P(f"v_xor_b32 v{T+3}, {2*s}, v{T+2}")
        P(f"v_lshl_add_u32 v{V_XR+s}, v{T+3}, 4, v{T}")
    P(f"v_bfe_u32 v{T}, v{V_LANE}, 2, 2")
    P(f"v_lshl_add_u32 v{T+1}, v{T+1}, 3, v{T}")
    P(f"v_bfe_u32 v{T+2}, v{V_LANE}, 4, 1")
    P(f"v_lshlrev_b32 v{T+2}, 5, v{T+2}")
    P(f"v_and_b32 v{T+3}, 3, v{V_LANE}")
    P(f"v_lshl_add_u32 v{T+2}, v{T+3}, 3, v{T+2}")
    P(f"v_mul_u32_u24 v{V_QR}, 192, v{T+1}")
    P(f"v_add3_u32 v{V_QR}, v{V_QR}, v{T+2}, s{S_LQ}")
    swap_pieces(P, V_QR, T + 3, T + 3)
    P(f"v_add_u32 v{V_QR2}, {2*SA}, v{V_QR}")
    P(f"v_lshl_add_u32 v{T+2}, v{T+1}, 8, v{T+2}")
    P(f"v_add_u32 v{T+2}, {LF}, v{T+2}")
    for c in range(4):
        P(f"v_xor_b32 v{T+3}, {c}, v{T}")
        P(f"v_lshl_add_u32 v{V_FRD+c}, v{T+3}, 6, v{T+2}")

def s1_w1_addr(P, o):
    T = V_T
    P(f"v_lshrrev_b32 v{T+2}, 4, v{V_LANE}")
    P(f"v_lshlrev_b32 v{T+1}, 2, v{T+2}")
    P(f"v_xor_b32 v{T+1}, v{T+1}, v{V_LANE}")
    P(f"v_and_b32 v{T+1}, 15, v{T+1}")
    P(f"s_lshl_b32 s{S_T2}, s{S_WAVE}, 4")
    P(f"v_add_u32 v{T}, s{S_T2}, v{T+2}")
    P(f"v_mul_u32_u24 v{T}, 3584, v{T}")
    P(f"s_lshl_b32 s{S_T3}, s{S_B}, 8")
    P(f"v_lshl_add_u32 v{T}, v{T+1}, 4, v{T}")
    P(f"v_add_u32 v{V_FD}, s{S_T3}, v{T}")
    for i in range(1, 4):
        P(f"v_add_u32 v{V_FD+i}, {i*(4*3584-1024)}, v{V_FD}")
    srd_rest(P, [(SRD_W1, 448*3584)])
    if not o.eb:
        P(f"v_lshl_add_u32 v{T}, v{V_LANE}, 2, s{S_T3}")
        P(f"global_load_dword v9, v{T}, {sr(S_B1)}")

def w1_touch(P, o):
    T = V_T
    P(f"v_lshrrev_b32 v{T}, 1, v{V_LANE}")
    P(f"v_min_u32 v{T}, 27, v{T}")
    P(f"s_lshl2_add_u32 s{S_T0}, s{S_RBL}, s{S_WAVE}")
    P(f"s_mul_i32 s{S_T0}, s{S_T0}, 28")
    P(f"v_add_u32 v{T}, s{S_T0}, v{T}")
    P(f"v_mul_u32_u24 v{T}, 3584, v{T}")
    P(f"v_and_b32 v{T+1}, 1, v{V_LANE}")
    P(f"v_lshl_add_u32 v{T}, v{T+1}, 7, v{T}")
    P(f"s_lshl_b32 s{S_T0}, s{S_B}, 8")
    P(f"buffer_load_dword v164, v{T}, {sr(SRD_W1,4)}, s{S_T0} offen", tag='warm')

def s1_misc(P, o):
    srd_rest(P, [(SRD_WS, WS_SIZE), (SRD_OUT, 2048*896)])
    A = -2.0 * math.sqrt(2.0 / math.pi) * 0.044715 * math.log2(math.e)
    B = -2.0 * math.sqrt(2.0 / math.pi) * math.log2(math.e)
    P(f"v_mov_b32 v{V_CA}, {hex(f2u(A))}")
    P(f"v_mov_b32 v{V_CB}, {hex(f2u(B))}")
    P(f"v_lshlrev_b32 v{V_L128}, 7, v{V_LANE}")
    P(f"s_mul_i32 s{S_QST}, s{S_TB}, {QKV_TB}")
    P(f"s_mul_i32 s{S_T0}, s{S_B}, {3*2048}")
    P(f"s_add_u32 s{S_QST}, s{S_QST}, s{S_T0}")
    P(f"s_add_u32 s{S_QST}, s{S_QST}, {QKV_OFF}")
    P(f"s_mul_i32 s{S_HST}, s{S_TB}, {A_TB}")
    P(f"s_lshl_b32 s{S_T0}, s{S_B}, 13")
    P(f"s_add_u32 s{S_HST}, s{S_HST}, s{S_T0}")
    P(f"s_add_u32 s{S_HST}, s{S_HST}, {A_OFF}")
    P(f"s_lshl4_add_u32 s{S_T0}, s{S_TB}, s{S_B}")
    P(f"s_lshl_b32 s{S_T0}, s{S_T0}, 7")
    P(f"s_add_u32 s{S_QFL}, s{S_T0}, {FL_QKV}")
    P(f"s_add_u32 s{S_HFL}, s{S_T0}, {FL_H}")
    P(f"s_mul_i32 s{S_B3}, s{S_B}, 3")
    P(f"s_mov_b32 s{S_SPARE}, 0")

def bias_expand(P, src_v, tmp, addr, base, hs=4):
    P(f"v_lshlrev_b32 v{tmp}, 16, v{src_v}")
    P(f"v_and_b32 v{tmp+1}, 0xffff0000, v{src_v}")
    P(f"v_lshl_add_u32 v{tmp+2}, v{V_LANE}, 3, s{base}")
    P(f"ds_write_b64 v{tmp+2}, {vr(tmp,2)}")
    P(f"v_lshrrev_b32 v{addr}, 5, v{V_LANE}")
    P(f"v_lshl_add_u32 v{addr}, v{addr}, {hs}, s{base}")

def bias1(P, o):
    P(f"s_lshl_b32 s{S_T0}, s{S_WAVE}, 9")
    P(f"s_add_u32 s{S_T0}, s{S_T0}, {LBIAS}")
    bias_expand(P, 9, 12, 8, S_T0)

def bias1_reads():
    return [[f"ds_read_b128 {vr(ACC_F+16*F+4*q,4)}, v8 offset:{(32*F+8*q)*4}"] for F in range(4) for q in range(4)]

def rot_step(off, cnt, stride, n):
    return (f"s_add_u32 s{off}, s{off}, {stride}\ns_add_u32 s{cnt}, s{cnt}, 1\ns_cmp_eq_u32 s{cnt}, {n}\n"
            f"s_cselect_b32 s{S_CNT}, {n*stride}, 0\ns_sub_u32 s{off}, s{off}, s{S_CNT}")
ROT = [0]

def b_dma(p):
    L = [[f"s_add_u32 m0, s{S_M4}, {LP[PIECE[p]]}"]]
    if p < 14:
        so, sd = S_BOF, SRD_W2
        if p: L[0].append(rot_step(so, S_BG, 32*896, 14) if ROT[0] else f"s_add_u32 s{so}, s{so}, {32*896}")
    else:
        so, sd = S_BO, SRD_WO
        i = p - 14
        if i: L[0].append(f"s_add_u32 s{so}, s{so}, {8*(((7*i)>>1) - ((7*(i-1))>>1))*896}")
    for i in range(4):
        L.append([(f"buffer_load_dwordx4 v{V_BA+i}, {sr(sd,4)}, s{so} offen offset:{i*1024} lds", f'bp{p}')])
    return L

def breg(n, ctl):
    if n >= 22: n -= 22
    return ('a', (112 + 8 * n if n < 18 else 8 * (n - 18)) + 4 * ctl)

def b_reads(n):
    pc = LP[PIECE[n >> 1]]
    hi, so = divmod(pc, 65536)
    return [f"ds_read_b64_tr_b16 {ar(breg(n, ctl)[1]+2*rho,2)}, v{V_BR[hi][ctl]} offset:{so + (n & 1)*2048 + rho*1024}" for ctl in range(2) for rho in range(2)]

class Gaps:
    def __init__(self): self.m = {}; self.v = {}
    def put(self, kind, items, g0, g1):
        d = self.m if kind == 'm' else self.v
        spread(d, items, list(range(g0, g1)), kind == 'm')
    def emit(self, G): return sum(self.m.get(G, []), []) + sum(self.v.get(G, []), [])

def spread(hooks, items, slots, unit=True):
    w = (lambda g: 1) if unit else len
    tot = sum(w(g) for g in items); done = 0
    for g in items:
        s = slots[min(len(slots) - 1, (done * len(slots)) // tot)]
        hooks.setdefault(s, []).append(g); done += w(g)

def merge_salu(items):
    out = []; pend = []
    for it in items:
        pend += it
        if any(isinstance(x, tuple) or (isinstance(x, str) and x.startswith(('buffer', 'global', 'ds_'))) for x in it):
            out.append(pend); pend = []
    if pend: out.append(pend)
    return out

def pass_a(P, o, H):
    s1_x_addr(P, o)
    d0 = dma_a(0)
    P.add(d0[0])
    P("s_waitcnt lgkmcnt(0)")
    if o.stamps:
        o.stamp_names.append('entry'); P(f"v_mov_b32 v{V_ST}, 0"); P(f"v_writelane_b32 v{V_ST}, s94, 0")
    if o.stouch:
        P(f"s_load_dword s{S_CNT}, {sr(SRD_WQ)}, 0")
        if o.stouch > 1:
            P(f"s_load_dword s{S_TAG}, {sr(SRD_WS)}, {WS_E}")
            P(f"s_load_dword s{S_J}, {sr(S_B1)}, 0")
    for it in d0[2:6]: P.add(it)
    if o.slim: setup_rest(P, o, True); setup_rest(P, o, False)
    P.add(d0[1]); P(f"s_mov_b32 s{S_CJ}, s{S_CI}")
    s1_wq_addr(P, o)
    for it in d0[6:]: P.add(it)
    if o.eb:
        P(f"s_load_dword s{S_TAG}, {sr(SRD_WS)}, {WS_E}")
        P(f"s_lshl_b32 s{S_T3}, s{S_B}, 8")
        P(f"v_lshl_add_u32 v{V_T}, v{V_LANE}, 2, s{S_T3}")
        P(f"global_load_dword v9, v{V_T}, {sr(S_B1)}")
        P(f"s_lshl_b32 s{S_T3}, s{S_C}, 7")
        P(f"v_and_b32 v{V_T}, 31, v{V_LANE}")
        P(f"v_lshl_add_u32 v{V_T}, v{V_T}, 2, s{S_T3}")
        P(f"global_load_dword v{V_DUM}, v{V_T}, {sr(S_B2)}")
    pass
    for it in dma_a(1): P.add(it)
    s1_read_addr(P, o)
    for it in dma_a(2): P.add(it)
    if NSA[0] == 4:
        for i in range(4): P(f"v_add_u32 v{V_XR2+i}, {3*SA}, v{V_XR+i}")
        if o.pre3:
            for it in dma_a(3): P.add(it)
        else: H.put('m', merge_salu(dma_a(3)), 0, 9)
    P.wait_vm('da0')
    P("s_waitcnt lgkmcnt(0)")
    P("s_barrier")
    stamp(P, o, 's1_first')
    P.add(reads_a(0))
    for c in range(7 - NSA[0]): H.put('m', merge_salu(dma_a(c + NSA[0])), 12 * c + 9, 12 * c + 21)
    H.put('m', merge_salu([it for n in range(o.nba) for it in dma_b(n)]), o.bq0, o.bq_end)
    for g in range(28):
        c, s = g >> 2, g & 3
        base = FR + 16 * (g & 1)
        if s == 3 and c < 6:
            P("s_waitcnt lgkmcnt(0)")
            P.wait_vm(f'da{c+1}')
            P("s_barrier")
            if o.trunc: stamp(P, o, f'a{c}')
        rd = reads_a(g + 1) if g < 27 else []
        per = [4, 3, 0] if s == 2 else [3, 2, 2]
        for t in range(3):
            P(mfma(ACC_Q + 16 * t, base + 4 * t, ('a', 4 * g), None if g == 0 else ACC_Q + 16 * t))
            P.add(rd[:per[t]]); rd = rd[per[t]:]
            P.add(H.emit(3 * g + t))
    P("s_waitcnt lgkmcnt(0)")
    P.wait_vm('db0')
    P("s_barrier")
    stamp(P, o, 'pass_a')
    P.add(reads_b(0))

def pass_b(P, o, H):
    for g in range(28):
        c, s = g >> 2, g & 3
        base = FR + 16 * (g & 1)
        if s == 3 and c < 6:
            P("s_waitcnt lgkmcnt(0)")
            P.wait_vm(f'db{c+1}')
            P("s_barrier")
            if o.trunc: stamp(P, o, f'b{c}')
        rd = reads_b(g + 1) if g < 27 else []
        per = [3, 3, 2, 0] if s == 2 else [2, 2, 2, 2]
        for t in range(4):
            P(mfma(ACC_F + 16 * t, base + 4 * t, ('a', 4 * g), ACC_F + 16 * t))
            P.add(rd[:per[t]]); rd = rd[per[t]:]
            P.add(H.emit(4 * g + t))

def qkv_epilogue(P, o, extra):
    c = (28.0 ** -0.5) * math.log2(math.e)
    P(f"s_mov_b32 s{S_T2}, {hex(f2u(c))}")
    for t in range(3):
        acc = ACC_Q + 16 * t
        P(f"s_cmp_lt_u32 s{S_B3}, {14 - t}")
        P(f"s_cbranch_scc0 L_nosc{t}")
        for i in range(8):
            P(f"v_pk_mul_f32 {vr(acc+2*i,2)}, {vr(acc+2*i,2)}, s[{S_T2}:{S_T3}] op_sel_hi:[1,0]")
        P(f"L_nosc{t}:")
        p = GT + 8 * t
        for i in range(8):
            if t == 0 and extra and i % 2 == 0: P.add(extra.pop(0))
            P(f"v_cvt_pk_bf16_f32 v{p+i}, v{acc+2*i}, v{acc+2*i+1}")
        while t == 0 and extra: P.add(extra.pop(0))
        for h in range(2):
            off = t * 2048 + h * 1024
            P(f"buffer_store_dwordx4 {vr(p+4*h,4)}, v{V_L16H if off >= 4096 else V_L16}, {sr(SRD_WS,4)}, s{S_QST} offen offset:{off & 4095} {SC}", tag='qst')

def gelu_tile(F):
    u = ACC_F + 16 * F
    t = GT + 16 * (F & 1)
    pk = [192, 204, t, t][F]
    L = []
    pr = lambda b, i: vr(b + 2 * i, 2)
    for i in range(8): L.append(f"v_pk_mul_f32 {pr(t,i)}, {pr(u,i)}, {pr(u,i)}")
    for i in range(8): L.append(f"v_pk_fma_f32 {pr(t,i)}, {pr(t,i)}, {vr(V_CA,2)}, {vr(V_CB,2)} op_sel_hi:[1,0,0]")
    for i in range(8): L.append(f"v_pk_mul_f32 {pr(t,i)}, {pr(t,i)}, {pr(u,i)}")
    for i in range(16): L.append(f"v_exp_f32 v{t+i}, v{t+i}")
    for i in range(8): L.append(f"v_pk_add_f32 {pr(t,i)}, {pr(t,i)}, 1.0 op_sel_hi:[1,0]")
    for i in range(16): L.append(f"v_rcp_f32 v{t+i}, v{t+i}")
    for i in range(8): L.append(f"v_pk_mul_f32 {pr(t,i)}, {pr(t,i)}, {pr(u,i)}")
    for i in range(8): L.append(f"v_cvt_pk_bf16_f32 v{pk+i}, v{t+2*i}, v{t+2*i+1}")
    for h in range(2):
        off = (2 * F + h) * 1024
        L.append((f"buffer_store_dwordx4 {vr(pk+4*h,4)}, v{V_L16H if off >= 4096 else V_L16}, {sr(SRD_WS,4)}, s{S_HST} offen offset:{off & 4095} {SC}", 'hst'))
    return L

def prep(P, o):
    T = V_T
    if o.slim: setup_rest(P, o, False)
    if o.stamps: P(f"v_mov_b32 v{V_ST}, 0")
    common2(P, o)
    srd_rest(P, [(SRD_WS, WS_SIZE)])
    P(f"v_lshlrev_b32 v{V_L128}, 7, v{V_LANE}")
    P(f"s_mov_b32 s{S_SPARE}, 1")
    P(f"s_lshl_b32 s{S_M4}, s{S_WAVE}, 12")
    P(f"v_lshrrev_b32 v{T}, 2, v{V_LANE}")
    P(f"s_lshl2_add_u32 s{S_T0}, s{S_R}, s{S_WAVE}")
    P(f"s_lshl_b32 s{S_T0}, s{S_T0}, 4")
    P(f"v_add_u32 v20, s{S_T0}, v{T}")
    P(f"v_mul_u32_u24 v{T}, 896, v20")
    P(f"v_and_b32 v{T+1}, 3, v{V_LANE}")
    P(f"v_lshlrev_b32 v{T+1}, 4, v{T+1}")
    P(f"v_add_u32 v{T}, v{T}, v{T+1}")
    P("s_waitcnt lgkmcnt(0)")
    if o.stamps: P(f"v_writelane_b32 v{V_ST}, s94, 0")
    P(f"s_load_dword s{S_TAG}, {sr(SRD_WS)}, {WS_E}")
    P(f"s_mov_b64 {sr(SRD_W2)}, {sr(S_W2)}")
    if o.sp:
        P(f"s_load_dword s{S_MASK}, {sr(S_B1)}, 0")
        P(f"s_load_dword s{S_MASK+1}, {sr(S_B2)}, 0")
        P(f"s_load_dword s{S_MASK+2}, {sr(SRD_OUT)}, 0")
        P(f"s_lshl2_add_u32 s{S_T0}, s{S_RBL}, s{S_WAVE}")
        P(f"s_lshl_b32 s{S_T0}, s{S_T0}, 20")
        P(f"s_load_dword s{S_MASK+3}, {sr(SRD_WS)}, s{S_T0}")
    def mallwarm():
        P(f"s_lshl2_add_u32 s{S_T4}, s{S_R}, s{S_WAVE}")
        P(f"s_lshl_b32 s{S_T0}, s{S_T4}, 13")
        P(f"s_add_u32 s{S_T1}, s{S_T0}, 0x100000")
        if o.xw:
            k0 = o.xw
            srd_rest(P, [(SRD_WQ, 448*2688)])
            P(f"v_lshrrev_b32 v{T+2}, 2, v{V_LANE}")
            P(f"v_mul_u32_u24 v{T+2}, 896, v{T+2}")
            P(f"v_and_b32 v{T+3}, 3, v{V_LANE}")
            P(f"v_lshl_add_u32 v{T+2}, v{T+3}, 7, v{T+2}")
            P(f"s_mul_i32 s{S_T2}, s{S_T4}, {16*896}")
            P(f"buffer_load_dword v178, v{T+2}, {sr(SRD_X,4)}, s{S_T2} offen offset:{3*128}")
            P(f"s_add_u32 s{S_T2}, s{S_T0}, {k0*64*2688}")
            P(f"buffer_load_dword v179, v{V_L128}, {sr(SRD_WQ,4)}, s{S_T2} offen")
        srd_rest(P, [(SRD_W1, 448*3584), (SRD_W2, 1792*896), (SRD_WQ, 448*896)])
        P(f"s_mov_b64 {sr(SRD_WQ)}, {sr(S_WO)}")
        for i, (d, so) in enumerate(((SRD_W1, S_T0), (SRD_W1, S_T1), (SRD_W2, S_T0), (SRD_W2, S_T1), (SRD_WQ, S_T0))):
            P(f"buffer_load_dword v{180+i}, v{V_L128}, {sr(d,4)}, s{so} offen")
    if o.mw == 1: mallwarm()
    if o.pw & 1:
        P(f"v_lshlrev_b32 v{T+3}, 20, v{V_LANE}")
        P(f"buffer_load_dword v177, v{T+3}, {sr(SRD_WS,4)}, 0 offen")
    def touches():
        for i in range(o.wsp):
            P(f"s_lshl2_add_u32 s{S_T4}, s{S_RBL}, s{S_WAVE}")
            P(f"s_add_u32 s{S_T4}, s{S_T4}, {16*i}")
            P(f"s_lshr_b32 s{S_T0}, s{S_T4}, 2")
            P(f"s_lshl_b32 s{S_T0}, s{S_T0}, 13")
            P(f"s_mul_i32 s{S_T1}, s{S_WAVE}, {448*896}")
            P(f"s_add_u32 s{S_T0}, s{S_T0}, s{S_T1}")
            P(f"s_add_u32 s{S_T0}, s{S_T0}, {128*896}")
            if 16 * i + 15 < 140:
                P(f"buffer_load_dword v{160+i}, v{V_L128}, {sr(SRD_W2,4)}, s{S_T0} offen")
            else:
                P(f"s_sub_u32 s{S_T1}, s{S_T4}, 140")
                P(f"s_cbranch_scc0 L_tw{i}")
                P(f"buffer_load_dword v{160+i}, v{V_L128}, {sr(SRD_W2,4)}, s{S_T0} offen")
                P(f"s_branch L_tj{i}")
                P(f"L_tw{i}:")
                P(f"s_lshl_b32 s{S_T1}, s{S_T1}, 13")
                P(f"buffer_load_dword v{190+i}, v{V_L128}, {sr(SRD_WQ,4)}, s{S_T1} offen")
                P(f"L_tj{i}:")
                P.L.append(Pseudo('drop_vm'))
        if o.fine:
            P("s_waitcnt vmcnt(0)"); stamp(P, o, 'p_warm')
    if o.wfirst: touches()
    for i in range(14):
        P(f"buffer_load_dwordx4 {vr(32+4*i,4)}, v{T}, {sr(SRD_X,4)}, 0 offen offset:{64*i}")
        P(f"global_load_dwordx4 {vr(96+4*i,4)}, v{T+1}, {sr(S_GW)} offset:{64*i}")
    if o.mw == 2: mallwarm()
    P.add(TAGOPS)
    P("v_mov_b32 v24, 0")
    P("v_mov_b32 v25, 0")
    for i in range(56):
        P(f"v_dot2_f32_bf16 v{24+(i&1)}, v{32+i}, v{96+i}, v{24+(i&1)}")
    P("s_nop 2")
    P("v_add_f32 v24, v24, v25")
    P("v_add_f32_dpp v24, v24, v24 quad_perm:[1,0,3,2] row_mask:0xf bank_mask:0xf")
    P("v_add_f32_dpp v24, v24, v24 quad_perm:[2,3,0,1] row_mask:0xf bank_mask:0xf")
    P(f"v_mul_f32 v24, {hex(f2u(-math.log2(math.e)))}, v24")
    P("v_exp_f32 v24, v24")
    P("v_add_f32 v24, 1.0, v24")
    P("v_rcp_f32 v24, v24")
    P(f"v_lshlrev_b32 v20, 2, v20")
    P(f"v_and_b32 v25, 3, v{V_LANE}")
    P(f"v_cmp_eq_u32 vcc, 0, v25")
    P(f"v_mov_b32 v27, 0x7fff0000")
    P(f"v_cndmask_b32 v20, v27, v20, vcc")
    P(f"s_mov_b32 s{S_T0}, {G_OFF}")
    P(f"buffer_store_dword v24, v20, {sr(SRD_WS,4)}, s{S_T0} offen {SC}")
    P("s_waitcnt vmcnt(0) lgkmcnt(0)")
    P("s_barrier")
    P(f"s_lshl_b32 s{S_T0}, s{S_R}, 7")
    P(f"s_add_u32 s{S_T0}, s{S_T0}, {FL_G}")
    P(f"s_cmp_eq_u32 s{S_WAVE}, 0")
    P("s_cbranch_scc0 L_prep_nf")
    P.add(flag_store(S_T0))
    P("L_prep_nf:")
    stamp(P, o, 'p_flag')
    if not o.wfirst: touches()

AQ = 16
AK = 24
AV = 40
AS = 56
AN = 104
AO = 120
AP = 136
AM = 236
A_KR, A_VR = 244, 245
A_KD, A_VD = 247, 248
A_PA, A_PV = 250, 251
A_G = 254
A_MX = 5

def att_scalars(P, o):
    P(f"s_and_b32 s{S_ARB}, s{S_SLOT}, 15")
    P(f"s_lshr_b32 s{S_J}, s{S_SLOT}, 4")
    P(f"s_lshl1_add_u32 s{S_J}, s{S_XCD}, s{S_J}")
    P(f"s_lshl2_add_u32 s{S_ATB}, s{S_ARB}, s{S_WAVE}")
    P(f"s_and_b32 s{S_PAR}, s{S_J}, 1")
    P(f"s_lshl4_add_u32 s{S_T0}, s{S_ATB}, s{S_J}")
    P(f"s_lshl_b32 s{S_T0}, s{S_T0}, 7")
    P(f"s_add_u32 s{S_OFL}, s{S_T0}, {FL_O}")
    P(f"s_mul_i32 s{S_T2}, s{S_ATB}, {A_TB}")
    P(f"s_lshl_b32 s{S_T3}, s{S_J}, 11")
    P(f"s_add_u32 s{S_T2}, s{S_T2}, s{S_T3}")
    P(f"s_add_u32 s{S_OST}, s{S_T2}, {A_OFF + 112*1024}")

def att_poll_addr(P, o):
    T = V_T
    P(f"v_min_u32 v{T}, 13, v{V_LANE}")
    P(f"v_lshrrev_b32 v{T+1}, 1, v{T}")
    P(f"v_and_b32 v{T}, 1, v{T}")
    P(f"s_mul_i32 s{S_T0}, s{S_J}, 7")
    P(f"s_lshr_b32 s{S_T0}, s{S_T0}, 1")
    P(f"s_lshl_b32 s{S_T0}, s{S_T0}, 3")
    P(f"v_mad_u32_u24 v{T}, v{T}, 31, s{S_T0}")
    P(f"v_mov_b32 v{T+2}, 896")
    P(f"v_mov_b32 v{T+3}, 448")
    P(f"v_subrev_u32 v{T+4}, 3, v{T+1}")
    P(f"v_cmp_gt_u32 vcc, 3, v{T+1}")
    P(f"v_cndmask_b32 v{T+2}, v{T+2}, v{T+3}, vcc")
    P(f"v_cndmask_b32 v{T+3}, v{T+4}, v{T+1}, vcc")
    P(f"s_mul_i32 s{S_T1}, s{S_WAVE}, 3")
    P(f"s_lshl2_add_u32 s{S_T1}, s{S_ARB}, s{S_T1}")
    P(f"s_sub_u32 s{S_T1}, s{S_T1}, 8")
    P(f"v_add_u32 v{T+3}, s{S_T1}, v{T+3}")
    P(f"v_max_i32 v{T+3}, 0, v{T+3}")
    P(f"v_mov_b32 v{T+4}, s{S_ATB}")
    P(f"v_cmp_eq_u32 vcc, 6, v{T+1}")
    P(f"v_cndmask_b32_e64 v{T+2}, v{T+2}, 0, vcc")
    P(f"v_cndmask_b32 v{T+3}, v{T+3}, v{T+4}, vcc")
    P(f"v_add_u32 v{T}, v{T}, v{T+2}")
    P(f"v_mul_u32_u24 v{T}, 683, v{T}")
    P(f"v_lshrrev_b32 v{T}, 16, v{T}")
    P(f"v_lshl_add_u32 v{T}, v{T+3}, 4, v{T}")
    P(f"v_lshlrev_b32 v{T}, 7, v{T}")
    P(f"v_add_u32 v{V_PA}, {FL_QKV}, v{T}")

def gate_flags(P, o, reg):
    P(f"s_lshr_b32 s{S_T0}, s{S_ATB}, 1")
    P(f"s_lshl_b32 s{S_T0}, s{S_T0}, 7")
    P(f"s_add_u32 s{S_T0}, s{S_T0}, {FL_G}")
    P(f"s_lshl_b32 s{S_T1}, s{S_R}, 7")
    P(f"s_add_u32 s{S_T1}, s{S_T1}, {FL_G}")
    P(f"v_writelane_b32 v{reg}, s{S_T0}, 14")
    P(f"v_writelane_b32 v{reg}, s{S_T1}, 15")

def att_addr(P, o):
    T = V_T
    P(f"s_mul_i32 s{S_T0}, s{S_J}, 7")
    P(f"s_lshr_b32 s{S_T0}, s{S_T0}, 1")
    P(f"s_lshl_b32 s{S_T4}, s{S_T0}, 9")
    P(f"s_add_u32 s{S_T1}, s{S_T4}, {56*512}")
    P(f"v_add_u32 v{A_KD}, s{S_T1}, v{V_L16}")
    P(f"v_lshrrev_b32 v{T}, 5, v{V_LANE}")
    P(f"v_and_b32 v{T+1}, 31, v{V_LANE}")
    P(f"s_add_u32 s{S_T1}, s{S_T4}, {112*512 - 2048}")
    P(f"v_lshlrev_b32 v{T+2}, 2, v{T}")
    P(f"v_xor_b32 v{T+2}, v{T+2}, v{T+1}")
    P(f"v_lshlrev_b32 v{T+2}, 4, v{T+2}")
    P(f"v_lshl_add_u32 v{T+2}, v{T}, 9, v{T+2}")
    P(f"v_add_u32 v{A_VD}, s{S_T1}, v{T+2}")
    P(f"v_xor_b32 v{A_VD+1}, 128, v{A_VD}")
    P(f"v_add_u32 v{A_KR}, s{S_M4}, v{V_L16}")
    P(f"v_bfe_u32 v{T+1}, v{V_LANE}, 4, 1")
    P(f"v_bfe_u32 v{T+2}, v{V_LANE}, 1, 1")
    P(f"v_lshl_add_u32 v{T+3}, v{T+1}, 1, v{T+2}")
    P(f"v_lshlrev_b32 v{T+4}, 9, v{T+3}")
    P(f"v_xor_b32 v{T+3}, v{T+3}, v{T}")
    P(f"v_lshl_add_u32 v{T+4}, v{T+3}, 6, v{T+4}")
    P(f"v_bfe_u32 v{T+3}, v{V_LANE}, 2, 2")
    P(f"v_lshl_add_u32 v{T+4}, v{T+3}, 4, v{T+4}")
    P(f"v_and_b32 v{T+3}, 1, v{V_LANE}")
    P(f"v_lshl_add_u32 v{T+4}, v{T+3}, 3, v{T+4}")
    P(f"s_add_u32 s{S_T1}, s{S_M4}, 2048")
    P(f"v_add_u32 v{A_VR}, s{S_T1}, v{T+4}")
    P(f"v_xor_b32 v{A_VR+1}, 128, v{A_VR}")
    P(f"v_and_b32 v{T+1}, 31, v{V_LANE}")
    P(f"v_mul_u32_u24 v{T+2}, 12, v{T}")
    P(f"s_cmp_eq_u32 s{S_PAR}, 0")
    P(f"s_cselect_b32 s{S_T1}, -1, 0")
    P(f"s_cselect_b32 s{S_T2}, 1544, 0")
    P(f"v_and_b32 v{T+2}, s{S_T1}, v{T+2}")
    P(f"v_xor_b32 v{T+1}, v{T+1}, v{T+2}")
    P(f"v_lshlrev_b32 v{T+1}, 4, v{T+1}")
    P(f"v_lshl_add_u32 v{T+1}, v{T}, 11, v{T+1}")
    P(f"s_mul_i32 s{S_T3}, s{S_WAVE}, {3*4096}")
    P(f"s_add_u32 s{S_T2}, s{S_T2}, s{S_T3}")
    P(f"v_add_u32 v{A_PA}, s{S_T2}, v{T+1}")
    P(f"s_mul_i32 s{S_T1}, s{S_WAVE}, 3")
    P(f"s_lshl2_add_u32 s{S_T1}, s{S_ARB}, s{S_T1}")
    P(f"v_mov_b32 v{T+1}, 0x3f80")
    for k in range(3):
        P(f"s_add_u32 s{S_T2}, s{S_T1}, {k}")
        P(f"s_cmp_lt_u32 s{S_T2}, 8")
        P(f"s_cselect_b32 s{S_T2}, 0xf14a, 0")
        P(f"v_mov_b32 v{A_PV+k}, s{S_T2}")
    P(f"v_cmp_gt_u32 vcc, 32, v{V_LANE}")
    for k in range(3): P(f"v_cndmask_b32 v{A_PV+k}, v{T+1}, v{A_PV+k}, vcc")

def att_masks(P, o):
    T = V_T
    P(f"v_lshrrev_b32 v{T+1}, 5, v{V_LANE}")
    P(f"v_mul_u32_u24 v{T+1}, 36, v{T+1}")
    P(f"v_sub_u32 v{T+1}, v{V_LANE}, v{T+1}")
    for r in range(16):
        P(f"v_cmp_le_i32_e64 {sr(S_MASK+2*r)}, {(r & 3) + 8 * (r >> 2)}, v{T+1}")
    P(f"v_mov_b32 v{T+1}, 0xffff")
    P(f"v_mov_b32 v{T+2}, 0xffff0000")
    for i in range(8):
        P(f"v_cndmask_b32_e64 v{T+3}, 0, v{T+1}, {sr(S_MASK+4*i)}")
        P(f"v_cndmask_b32_e64 v{T+4}, 0, v{T+2}, {sr(S_MASK+4*i+2)}")
        P(f"v_or_b32 v{AM+i}, v{T+3}, v{T+4}")

def att_kvoff(P, o):
    P(f"s_mul_i32 s{S_T1}, s{S_WAVE}, 3")
    P(f"s_lshl2_add_u32 s{S_T1}, s{S_ARB}, s{S_T1}")
    for k in range(3):
        P(f"s_add_i32 s{S_T2}, s{S_T1}, {k-8}")
        P(f"s_max_i32 s{S_T2}, s{S_T2}, 0")
        P(f"s_mul_i32 s{S_T2}, s{S_T2}, {QKV_TB}")
        P(f"s_add_u32 s{S_KV[k]}, s{S_T2}, {QKV_OFF}")
    P(f"s_mul_i32 s{S_T0}, s{S_J}, 7")
    P(f"s_lshr_b32 s{S_T0}, s{S_T0}, 1")
    P(f"s_lshl_b32 s{S_T0}, s{S_T0}, 9")
    P(f"s_mul_i32 s{S_T2}, s{S_ATB}, {QKV_TB}")
    P(f"s_add_u32 s{S_T2}, s{S_T2}, s{S_T0}")
    P(f"s_add_u32 s{S_KV[3]}, s{S_T2}, {QKV_OFF}")

def att_loads(o, last_g=True):
    T = V_T
    L = [[f"s_mul_i32 s{S_T3}, s{S_WAVE}, {3*4096}"]]
    for k in range(3):
        g = [f"s_add_u32 m0, s{S_T3}, {LKV + k*4096}"]
        for t in range(2):
            g.append((f"buffer_load_dwordx4 v{A_KD}, {sr(SRD_WS,4)}, s{S_KV[k]} offen offset:{t*1024} {SC} lds", 'kv'))
        for t in range(2):
            g.append((f"buffer_load_dwordx4 v{A_VD+t}, {sr(SRD_WS,4)}, s{S_KV[k]} offen offset:{2048+t*1024} {SC} lds", 'kv'))
        L += [[x] for x in g]
    for t in range(2):
        L.append([f"buffer_load_dwordx4 {vr(AQ+4*t,4)}, v{V_L16}, {sr(SRD_WS,4)}, s{S_KV[3]} offen offset:{t*1024} {SC}"])
    G = [f"v_and_b32 v{T+1}, 31, v{V_LANE}", f"v_lshlrev_b32 v{T+1}, 2, v{T+1}",
         f"s_lshl_b32 s{S_T2}, s{S_ATB}, 7", f"s_add_u32 s{S_T2}, s{S_T2}, {G_OFF}",
         f"buffer_load_dword v{A_G}, v{T+1}, {sr(SRD_WS,4)}, s{S_T2} offen {SC}"]
    if last_g:
        G += [f"s_and_b32 s{S_T1}, s{S_WAVE}, 1", f"s_lshl_b32 s{S_T0}, s{S_R}, 8", f"s_add_u32 s{S_T0}, s{S_T0}, {G_OFF}",
              f"s_lshl_b32 s{S_T2}, s{S_T1}, 7", f"s_xor_b32 s{S_T3}, s{S_T2}, 128", f"s_add_u32 s{S_T2}, s{S_T2}, s{S_T0}",
              f"s_add_u32 s{S_T3}, s{S_T3}, s{S_T0}",
              f"buffer_load_dword v{L_G}, v{T+1}, {sr(SRD_WS,4)}, s{S_T3} offen {SC}",
              f"buffer_load_dword v{L_G+1}, v{T+1}, {sr(SRD_WS,4)}, s{S_T2} offen {SC}"]
    return L + [[x] for x in G]

def att_patch():
    T = V_T
    L = [[WVM('kv')]]
    L += [[f"ds_write_b16 v{A_PA}, v{A_PV+k} offset:{LKV + k*4096}"] for k in range(3)]
    L += [[f"s_cmp_eq_u32 s{S_PAR}, 0\ns_cselect_b32 s{S_T0}, 0, -1\ns_cselect_b32 s{S_T3}, -1, 0"],
          [f"s_mov_b32 s{S_T1}, 0"], [f"s_mov_b32 s{S_T2}, 0"], [f"v_mov_b32 v{T}, 0x3f80"],
          [f"v_cndmask_b32_e64 v{AQ}, v{AQ}, v{T}, {sr(S_T0)}"], [f"v_cndmask_b32_e64 v{AQ+1}, v{AQ+1}, 0, {sr(S_T0)}"],
          [f"v_cndmask_b32_e64 v{AQ+6}, v{AQ+6}, v{T}, {sr(S_T2)}"], [f"v_cndmask_b32_e64 v{AQ+7}, v{AQ+7}, 0, {sr(S_T2)}"]]
    return L

ORDER = [0, 8, 1, 2, 3, 4, 5, 6, 7]
def kread(i, buf):
    return [f"ds_read_b128 {vr(AK+8*buf+4*t,4)}, v{A_KR} offset:{LKV + i*4096 + t*1024}" for t in range(2)]
def vread(i, buf):
    return [f"ds_read_b64_tr_b16 {vr(AV+8*buf+4*t+2*rho,2)}, v{A_VR+rho} offset:{LKV + i*4096 + t*256}" for t in range(2) for rho in range(2)]

def attention(P, o, hooks, kpre=False):
    T = V_T
    order = ORDER
    stamp(P, o, 'att_go')
    gi = [0]
    def hk():
        gi[0] += 1
        return [Slot(f'a{gi[0] - 1}')] if hooks is None else []
    if not kpre: P.add(kread(order[0], 0)); P.add(kread(order[1], 1))
    SM = AS + 16
    buf1 = [AS, SM, AS + 32, AO, AS, AS + 32, AO, AS, AS + 32]
    def qkx(s, kbuf, c): return [mfma(s, AK + 8 * kbuf, AQ, c), mfma(s, AK + 8 * kbuf + 4, AQ + 4, s)]
    def maxops(s, first=False):
        return [f"v_max_f32 v{A_MX}, v{s}, v{s+1}" if (first and i == 0) else f"v_max3_f32 v{A_MX}, v{s+2*i}, v{s+2*i+1}, v{A_MX}" for i in range(8)]
    merge = [f"v_cndmask_b32_e64 v{SM+r}, v{AS+r}, v{SM+r}, {sr(S_MASK+2*r)}" for r in range(16)]
    for n in range(9):
        m = qkx(buf1[n], n & 1, None)
        post = []
        if n == 3: post = merge
        if n == 4: post = maxops(SM, True) + maxops(buf1[2])
        if n >= 5: post = maxops(buf1[n - 2])
        nxt = kread(order[n + 2 if n + 2 < 9 else n - 5], n & 1)
        h = len(post) // 2
        P.add([m[0]] + hk() + post[:h] + [m[1]] + nxt + (vread(0, 0) + vread(8, 1) if n == 8 else []) + hk() + post[h:])
    P.add(maxops(buf1[7]))
    P.add(maxops(buf1[8]))
    P(f"v_mov_b32 v{T}, v{A_MX}")
    P(f"v_permlane32_swap_b32 v{A_MX}, v{T}")
    P(f"v_max_f32 v{A_MX}, v{A_MX}, v{T}")
    P(f"v_sub_f32 v{AN}, 0, v{A_MX}")
    P(f"v_sub_f32 v{AN+1}, 0, v{A_MX}")
    for i in range(1, 8): P(f"v_mov_b64 {vr(AN+2*i,2)}, {vr(AN,2)}")
    stamp(P, o, 'att_p1')
    kb = lambda n: (n + 1) & 1
    buf2 = lambda n: AS + 16 * [0, 2, 1][(n - 2) % 3]
    fs = lambda: [Slot()] if (hooks is None and o.fslot) else []
    def expcvt(s, p):
        L = []
        for i in range(8):
            L += [f"v_exp_f32 v{s+2*i}, v{s+2*i}", f"v_exp_f32 v{s+2*i+1}, v{s+2*i+1}"] + fs()
            if i >= 1: L.append(f"v_cvt_pk_bf16_f32 v{p+i-1}, v{s+2*i-2}, v{s+2*i-1}")
        L.append(f"v_cvt_pk_bf16_f32 v{p+7}, v{s+14}, v{s+15}")
        return L
    def pv(p, vbuf, first=False):
        return [mfma(AO, AV + 8 * vbuf, p, None if first else AO), mfma(AO, AV + 8 * vbuf + 4, p + 4, AO)]
    m2 = qkx(buf2(2), kb(2), AN); m3 = qkx(buf2(3), kb(3), AN)
    sub = [f"v_sub_f32 v{SM+r}, v{SM+r}, v{A_MX}" for r in range(16)]
    ec = expcvt(SM, AP)
    sp = []
    for i in range(8):
        sp += [f"v_and_b32 v{AP+8+i}, v{AP+i}, v{AM+i}", f"v_xor_b32 v{AP+16+i}, v{AP+i}, v{AP+8+i}"]
    P.add([m2[0]] + hk() + sub[:8] + [m2[1]] + kread(order[4], kb(4)) + hk() + sub[8:] + [m3[0]] + hk() + ec[:5] +
          [m3[1]] + kread(order[5], kb(5)) + hk() + ec[5:] + sp)
    pend = pv(AP + 16, 0, True) + pv(AP + 8, 1)
    pend_rd = vread(order[2], 0) + vread(order[3], 1)
    for n in range(2, 9):
        p = AP + 16 if n == 3 else (AP if (n & 1) == 0 else AP + 8)
        ec = expcvt(buf2(n), p)
        mq = qkx(buf2(n + 2), kb(n + 2), AN) if n + 2 < 9 else []
        kr = kread(order[n + 4], kb(n + 4)) if n + 4 < 9 else []
        ms = pend + mq
        seq = []
        k = len(ms)
        step = max(1, len(ec) // max(k, 1))
        ei = 0
        for j, mm in enumerate(ms):
            seq.append(mm)
            if j == len(pend) - 1: seq += pend_rd
            if j == k - 1 and mq: seq += kr
            seq += hk()
            take = ec[ei:ei + step] if j < k - 1 else ec[ei:]
            seq += take; ei += len(take)
        P.add(seq)
        vb = n & 1
        pend = pv(p, vb)
        pend_rd = vread(order[n + 2], vb) if n + 2 < 9 else []
    P.add([pend[0]] + hk() + [pend[1]] + hk())
    stamp(P, o, 'att_p2')

def att_epilogue(P, o):
    T = V_T
    P(f"s_cmp_eq_u32 s{S_PAR}, 0")
    P(f"s_cselect_b64 {sr(S_T0)}, -1, 0")
    P(f"s_cselect_b32 s{S_MASK}, 0, -1")
    P(f"s_cselect_b32 s{S_MASK+3}, -1, 0")
    P(f"s_mov_b32 s{S_MASK+1}, 0")
    P(f"s_mov_b32 s{S_MASK+2}, 0")
    P(f"v_cndmask_b32_e64 v{T}, v{AO}, v{AO+12}, {sr(S_T0)}")
    P(f"v_mov_b32 v{T+1}, v{T}")
    P(f"v_permlane32_swap_b32 v{T}, v{T+1}")
    P(f"v_cndmask_b32_e64 v{T}, v{T}, v{T+1}, {sr(S_T0)}")
    P(f"v_rcp_f32 v{T}, v{T}")
    P(f"v_mul_f32 v{T+1}, v{T}, v{A_G}")
    for t in range(2):
        for i in range(8 * t, 8 * t + 8): P(f"v_mul_f32 v{AO+i}, v{T+1}, v{AO+i}")
        for i in range(4 * t, 4 * t + 4): P(f"v_cvt_pk_bf16_f32 v{AP+i}, v{AO+2*i}, v{AO+2*i+1}")
        for r in ((0, 1), (6, 7))[t]: P(f"v_cndmask_b32_e64 v{AP+r}, v{AP+r}, 0, {sr(S_MASK + 2*t)}")
        P(f"buffer_store_dwordx4 {vr(AP+4*t,4)}, v{V_L16}, {sr(SRD_WS,4)}, s{S_OST} offen offset:{t*1024} {SC}", tag='ost')

LACC = 16
EARLY = [('a', r) for r in range(32, 112, 4)] + list(range(160, 200, 4)) + list(range(204, 216, 4))
LATE = list(range(80, 120, 4)) + list(range(144, 160, 4)) + list(range(236, 252, 4)) + list(range(120, 144, 4))

def last_baddr(P, o):
    T = V_T
    P(f"s_mov_b64 {sr(SRD_W2)}, {sr(S_W2)}")
    srd_rest(P, [(SRD_W2, 1792*896)])
    P(f"s_mul_i32 s{S_BOF}, s{S_WAVE}, {448*896}")
    P(f"s_lshl_b32 s{S_T3}, s{S_C}, 7")
    P(f"s_add_u32 s{S_BOF}, s{S_BOF}, s{S_T3}")
    if ROT[0]:
        P(f"s_add_u32 s{S_AG}, s{S_C}, s{S_RBL}")
        if o.rcls == 2: P(f"s_and_b32 s{S_AG}, s{S_AG}, 1")
        else:
            P(f"s_lshl_b32 s{S_AG}, s{S_AG}, 1")
            P(f"s_lshr_b32 s{S_AG}, 0x24924, s{S_AG}")
            P(f"s_and_b32 s{S_AG}, s{S_AG}, 3")
        P(f"s_mul_i32 s{S_AG}, s{S_AG}, {ROT[0]}")
        P(f"s_lshl_b32 s{S_BG}, s{S_AG}, 1")
        P(f"s_mul_i32 s{S_T3}, s{S_AG}, {64*896}")
        P(f"s_add_u32 s{S_BOF}, s{S_BOF}, s{S_T3}")
    P(f"v_lshrrev_b32 v{T}, 3, v{V_LANE}")
    P(f"v_bfe_u32 v{T+1}, v{V_LANE}, 4, 1")
    P(f"v_lshlrev_b32 v{T+1}, 2, v{T+1}")
    P(f"v_xor_b32 v{T+1}, v{T+1}, v{V_LANE}")
    P(f"v_and_b32 v{T+1}, 7, v{T+1}")
    P(f"v_mul_u32_u24 v{T}, 896, v{T}")
    P(f"v_lshl_add_u32 v{V_BA}, v{T+1}, 4, v{T}")
    for i in range(1, 4): P(f"v_add_u32 v{V_BA+i}, {i*(8*896-1024)}, v{V_BA}")
    P(f"v_bfe_u32 v{T}, v{V_LANE}, 2, 2")
    P(f"v_lshrrev_b32 v{T+1}, 5, v{V_LANE}")
    P(f"v_lshl_add_u32 v{T+1}, v{T+1}, 2, v{T}")
    P(f"v_lshlrev_b32 v{T+1}, 7, v{T+1}")
    P(f"v_bfe_u32 v{T+2}, v{V_LANE}, 4, 1")
    P(f"v_lshl_add_u32 v{T+1}, v{T+2}, 5, v{T+1}")
    P(f"v_and_b32 v{T+2}, 3, v{V_LANE}")
    P(f"v_lshl_add_u32 v{T+1}, v{T+2}, 3, v{T+1}")
    P(f"v_lshrrev_b32 v{T}, 1, v{T}")
    P(f"v_lshl_add_u32 v{T}, v{T}, 6, v{T+1}")
    P(f"v_add_u32 v{T}, s{S_M4}, v{T}")
    swap_pieces(P, T, T + 1, T + 2)
    P(f"s_lshr_b32 s{S_T0}, s{S_WAVE}, 1")
    P(f"s_lshl_b32 s{S_T0}, s{S_T0}, 6")
    P(f"v_xor_b32 v{V_BR[0][1]}, s{S_T0}, v{T}")
    P(f"v_xor_b32 v{V_BR[0][0]}, 64, v{V_BR[0][1]}")
    for k in range(2): P(f"v_add_u32 v{V_BR[1][k]}, 0x10000, v{V_BR[0][k]}")

V_AT = 201
def last_baddr2(P, o):
    P(f"v_lshrrev_b32 v{V_T}, 5, v{V_LANE}")
    P(f"v_mul_u32_u24 v{V_T}, {A_TB - 4096}, v{V_T}")
    P(f"v_lshl_add_u32 v{V_T}, v{V_LANE}, 7, v{V_T}")
    P(f"s_lshl_b32 s{S_T0}, s{S_C}, 12")
    P(f"v_add_u32 v{V_AT}, s{S_T0}, v{V_T}")
    for k in range(2): P(f"v_add_u32 v{V_BR[2][k]}, 0x20000, v{V_BR[0][k]}")

def last_setup(P, o):
    T = V_T
    P(f"s_lshl_b32 s{S_T0}, s{S_C}, 7")
    P(f"v_and_b32 v{T}, 31, v{V_LANE}")
    if not o.eb:
        P(f"v_lshl_add_u32 v{T+1}, v{T}, 2, s{S_T0}")
        P(f"global_load_dword v{V_DUM}, v{T+1}, {sr(S_B2)}")
    P(f"s_and_b32 s{S_T1}, s{S_WAVE}, 1")
    P(f"s_mul_i32 s{S_T2}, s{S_T1}, {A_TB}")
    P(f"s_sub_u32 s{S_T3}, {A_TB}, s{S_T2}")
    P(f"v_add_u32 v{V_AA}, s{S_T3}, v{V_L16}")
    P(f"v_add_u32 v{V_AA+1}, s{S_T2}, v{V_L16}")
    P(f"v_and_b32 v{T+1}, 1, v{V_LANE}")
    P(f"s_lshl_b32 s{S_T0}, s{S_R}, 1")
    P(f"v_add_u32 v{T+1}, s{S_T0}, v{T+1}")
    P(f"v_lshlrev_b32 v{T+1}, 4, v{T+1}")
    P(f"v_bfe_u32 v{T+2}, v{V_LANE}, 1, 2")
    P(f"v_add_u32 v{T+1}, v{T+1}, v{T+2}")
    P(f"v_lshlrev_b32 v{T+1}, 7, v{T+1}")
    P(f"s_mul_i32 s{S_T0}, s{S_WAVE}, 7")
    P(f"s_lshr_b32 s{S_T0}, s{S_T0}, 1")
    P(f"s_lshl_b32 s{S_T0}, s{S_T0}, 7")
    P(f"s_add_u32 s{S_T0}, s{S_T0}, {FL_H}")
    P(f"v_add_u32 v{V_PH}, s{S_T0}, v{T+1}")
    P(f"s_lshl_b32 s{S_T0}, s{S_WAVE}, 9")
    P(f"s_add_u32 s{S_T0}, s{S_T0}, {FL_O}")
    P(f"v_add_u32 v{V_PO}, s{S_T0}, v{T+1}")
    for d in range(1, 4):
        P(f"s_xor_b32 s{S_T0}, s{S_WAVE}, {d}")
        P(f"s_lshl_b32 s{S_T0}, s{S_T0}, 12")
        P(f"s_add_u32 s{S_T0}, s{S_T0}, {LP[d]}")
        P(f"v_add_u32 v{L_RW+d-1}, s{S_T0}, v{V_L16}")
    P(f"s_add_u32 s{S_T0}, s{S_M4}, {LP[1]}")
    P(f"v_add_u32 v{L_RR}, s{S_T0}, v{V_L16}")
    P(f"s_lshl_b32 s{S_T0}, s{S_R}, 6")
    P(f"s_lshl_b32 s{S_T2}, s{S_T1}, 5")
    P(f"s_add_u32 s{S_T0}, s{S_T0}, s{S_T2}")
    P(f"v_add_u32 v{T+1}, s{S_T0}, v{T}")
    P(f"v_mul_u32_u24 v{T+1}, 896, v{T+1}")
    P(f"v_lshrrev_b32 v{T+2}, 5, v{V_LANE}")
    P(f"v_lshl_add_u32 v{T+1}, v{T+2}, 4, v{T+1}")
    P(f"s_lshl_b32 s{S_T0}, s{S_C}, 7")
    P(f"s_lshr_b32 s{S_T2}, s{S_WAVE}, 1")
    P(f"s_lshl_b32 s{S_T2}, s{S_T2}, 6")
    P(f"s_add_u32 s{S_T0}, s{S_T0}, s{S_T2}")
    P(f"v_add_u32 v{L_OA}, s{S_T0}, v{T+1}")

def last_soff(P, o):
    P(f"s_mul_i32 s{S_T0}, s{S_R}, {2*A_TB}")
    P(f"s_add_u32 s{S_T0}, s{S_T0}, {A_OFF}")
    P(f"s_lshl_b32 s{S_T2}, s{S_WAVE}, 13")
    P(f"s_add_u32 s{S_AO2}, s{S_T0}, s{S_T2}")
    P(f"s_add_u32 s{S_AO2}, s{S_AO2}, {112*1024}")
    P(f"s_mul_i32 s{S_T2}, s{S_WAVE}, {28*1024}")
    P(f"s_add_u32 s{S_AOF}, s{S_T0}, s{S_T2}")
    if ROT[0]:
        P(f"s_lshl_b32 s{S_T2}, s{S_AG}, 12")
        P(f"s_add_u32 s{S_AOF}, s{S_AOF}, s{S_T2}")
    P(f"s_mov_b64 {sr(SRD_WO)}, {sr(S_WO)}")
    P(f"s_mov_b32 s{SRD_WO+2}, {448*896}")
    P(f"s_mul_i32 s{S_BO}, s{S_WAVE}, {112*896}")
    P(f"s_lshl_b32 s{S_T3}, s{S_C}, 7")
    P(f"s_add_u32 s{S_BO}, s{S_BO}, s{S_T3}")

def bias2(P, o):
    P(f"s_add_u32 s{S_T0}, s{S_M4}, {LP[PIECE[11]]}")
    bias_expand(P, V_DUM, 12, L_BA, S_T0, 5)
    P(f"s_lshr_b32 s{S_T2}, s{S_WAVE}, 1")
    P(f"s_lshl_b32 s{S_T2}, s{S_T2}, 7")
    P(f"v_add_u32 v{L_BA}, s{S_T2}, v{L_BA}")
    P(f"v_sub_f32 v{L_G}, 1.0, v{L_G}")
    P(f"v_sub_f32 v{L_G+1}, 1.0, v{L_G+1}")

def a_slots(o):
    ne = o.nearly * 2
    sl = EARLY[:ne] + LATE + EARLY[ne:]
    ring = len(sl) // 2 * 2
    return [sl[i % ring] for i in range(72)], ring // 2

def a_load(o, n):
    sl, _ = a_slots(o)
    so, m = (S_AOF, n) if n < 28 else (S_AO2, n - 28)
    L = [rot_step(so, S_AG, 4096, 7) if (ROT[0] and n < 28) else f"s_add_u32 s{so}, s{so}, 4096"] if (m and m % 4 == 0) else []
    if o.aexp == 1: L = []
    for ttl in range(2):
        if o.aexp == 2 and n >= o.nearly: continue
        L.append((f"buffer_load_dwordx4 {xr(sl[2*n+ttl])}, v{V_AA+ttl}, {sr(SRD_WS,4)}, s{so} offen offset:{(m&3)*1024} {SC}", 'ald'))
    return L

def last(P, o):
    q = lambda ttl, ctl: LACC + 32 * ttl + 16 * ctl
    sl, depth = a_slots(o)
    mm = lambda n, ttl, ctl: mfma(q(ttl, ctl), breg(n, ctl), sl[2 * n + ttl], None if n == 0 else q(ttl, ctl))
    assert o.nearly > 0 and PIECE[11] not in (1, 2, 3)
    nxt = o.nearly
    D = Prog(); att_epilogue(D, o); epi = atomic_groups(D.L)
    if not o.epin:
        for g in epi: P.add(g)
        epi = []
        while nxt < max(o.lead, o.nearly): P.add(a_load(o, nxt)); nxt += 1
    EP = {}
    if epi: spread(EP, epi, list(range(o.epin)), False)
    stamp(P, o, 'last_go')
    opolled = False
    ol = lambda m, ttl: [(f"buffer_load_dwordx4 {xr(sl[2*(28+m)+ttl])}, v{V_AA+ttl}, {sr(SRD_WS,4)}, s{S_AO2 if m < 4 else S_BO} offen offset:{(m&3)*1024} {SC}", 'ald')]
    oq = [ol(m, ttl) for ttl in range(2) for m in range(8)]
    oq[0] = [f"s_add_u32 s{S_BO}, s{S_AO2}, 4096"] + oq[0]
    assert depth >= 36 - o.ocheck_at and not o.left
    sc = lambda ttl, ctl: [f"v_mul_f32 v{q(ttl,ctl)+i}, v{L_G+ttl}, v{q(ttl,ctl)+i}" for i in range(16)]
    D = Prog(); bias2(D, o); b2l = [[x] for x in D.L]
    for n in range(28):
        M = [mm(n, ttl, ctl) for ttl in range(2) for ctl in range(2)]
        ex = []; cnt = 0
        top = (36 if opolled else 28)
        if o.left and n < o.left_steps:
            k = -(-len(o.left) // (o.left_steps - n)); ex += o.left[:k]; o.left = o.left[k:]
        while nxt < min(n + min(depth, o.lead + 1), 28) and cnt < 2:
            ex += merge_salu([[e] for e in a_load(o, nxt)]); nxt += 1; cnt += 1
        if opolled and oq:
            k = -(-len(oq) // max(1, o.oend - n)); ex += oq[:k]; oq = oq[k:]
        if o.jit0 <= n < o.jit0 + 14 and not o.drop & 32:
            k = n - o.jit0 + 22
            ex += [[WVM(f'bp{k >> 1}')] + b_reads(k)[:2], b_reads(k)[2:]]
        if o.jit0 + 3 <= n < o.jit0 + 6: ex += b2l[((n - o.jit0 - 3) * len(b2l)) // 3:((n - o.jit0 - 2) * len(b2l)) // 3]
        if n == o.oflag_at and o.nearly > 0:
            D0 = Prog(); D1 = Prog()
            if o.fine: stamp(D0, o, 'of0'); stamp(D1, o, 'of1')
            ex = ex + [D0.L + [WVM('ost')] + D1.L + flag_store(S_OFL)]
        if n == o.opoll_at: ex += [poll_issue(V_PO)]
        if n == o.ocheck_at:
            D0 = Prog(); D1 = Prog()
            if o.fine: stamp(D0, o, 'oc0'); stamp(D1, o, 'oc1')
            ex = [D0.L + poll_check(V_PO) + D1.L] + ex; opolled = True
        if o.hst and n % 4 == 0 and n: stamp(P, o, f'h{n}')
        hh = {}
        isv = lambda it: any((isinstance(x, tuple) and x[0].startswith('buffer')) or (isinstance(x, str) and x.startswith('buffer')) for x in it)
        vm_ = [it for it in ex if isv(it) or any(isinstance(x, str) and 'cbranch' in x for x in it)]
        ot_ = [it for it in ex if it not in vm_]
        if vm_: spread(hh, vm_, list(o.apos) if len(vm_) <= 2 else [0, 1, 2, 3])
        if ot_: spread(hh, ot_, list(o.dpos))
        if n == o.bar_at: P("s_waitcnt lgkmcnt(0)"); P("s_barrier")
        if n == 26: M = [mm(26, 0, 0), mm(26, 0, 1), mm(27, 0, 0), mm(27, 0, 1)]
        if n == 27: M = [mm(26, 1, 0), mm(26, 1, 1), mm(27, 1, 0), mm(27, 1, 1)]
        for t in range(4):
            P.add([M[t]] + sum(hh.get(t, []), []) + sum(EP.get(4 * n + t, []), []))
            if n == 27 and t >= 1: P.add((sc(0, 0) + sc(0, 1))[[0, 0, 10, 21][t]:[0, 10, 21, 32][t]])
    stamp(P, o, 'last_h')
    for it in oq: P.add(it)
    used = set(sl[56:72])
    free = [r for r in sorted(x for x in set(sl) if not isinstance(x, tuple)) if r not in used]
    B2 = [r for r in free if all((r + 4 * k) in free for k in range(4))][0]
    for k in range(4): P(f"ds_read_b128 {vr(B2+4*k,4)}, v{L_BA} offset:{[0, 16, 64, 80][k]}")
    rest = sc(1, 0) + [f"v_add_f32 v{q(1,1)+i}, v{q(1,1)+i}, v{B2+i}" for i in range(16)] + sc(1, 1)
    M = []
    for n in range(28, 36): M += [[mm(n, 0, 0)], [mm(n, 0, 1)]]
    P.add(interleave(M, rest))
    wr = lambda ttl, ctl: [f"ds_write_b128 v{L_RR}, {vr(q(ttl,ctl)+4*i,4)} offset:{(((1-ttl) | ((1-ctl) << 1)) - 1)*16384 + i*1024}" for i in range(4)]
    w = wr(0, 0) + wr(0, 1)
    seq = []
    for i, n in enumerate(range(28, 36)):
        seq.append(mm(n, 1, 0))
        if i >= 2: seq += w[:2]; w = w[2:]
    seq += w
    w = wr(1, 0)
    for i, n in enumerate(range(28, 36)):
        seq.append(mm(n, 1, 1))
        if i >= 3 and w: seq.append(w.pop(0))
    P.add(seq + w)
    P("s_waitcnt lgkmcnt(0)")
    P("s_barrier")
    stamp(P, o, 'last_o')
    R = 80
    for d in range(3):
        for i in range(4):
            P(f"ds_read_b128 {vr(R+16*d+4*i,4)}, v{L_RW+d} offset:{i*1024}")
    o_ = q(1, 1)
    for d in range(3):
        for i in range(8):
            P(f"v_pk_add_f32 {vr(o_+2*i,2)}, {vr(o_+2*i,2)}, {vr(R+16*d+2*i,2)}")
    p = R + 48
    for i in range(8): P(f"v_cvt_pk_bf16_f32 v{p+i}, v{o_+2*i}, v{o_+2*i+1}")
    for h in range(2):
        P(f"buffer_store_dwordx4 {vr(p+4*h,4)}, v{L_OA}, {sr(SRD_OUT,4)}, 0 offen offset:{32*h} {['', 'sc1', 'nt'][o.osc]}")
    stamp(P, o, 'end')

HEADER = open('cdna_kernels/' + NAME + '.s.ref').read().split('; Override launch')[0]

ABOUT = """;
;   slot%8 != 7 (224 workgroups):
;     pass A   q/k/v = x @ wqkv for 128 tokens x 96 columns (x fragments stay in AGPRs)      -> d_ws, flag per wave
;   slot%8 == 7 (32 workgroups): gate g = sigmoid(x . gate_w), weight warm-up, their attention unit
"""

def finish(P, o, name):
    for sp in slow_paths:
        P.forget(); P(sp)
    L = finalize(P, True)
    pos = lambda t: [i for i, x in enumerate(L) if x.text.startswith(t)]
    assert pos('ds_write_b64')[0] < pos('v_lshl_add_u32 v8,')[0] < pos('ds_read_b128 v[64:67], v8')[0], 'b1 scratch read before written'
    if o.nsa == 4: assert pos('s_barrier')[4] < pos('ds_write_b64')[0], 'b1 scratch still holds chunk 3'
    if o.align:
        L, nf = align_runs(L); print('aligned runs:', nf)
    out = HEADER + f"; @launch grid=(256,1,1) block=(256,1,1) lds={LDS_BYTES}\n" + ABOUT
    out += '.amdgcn_target "amdgcn-amd-amdhsa--gfx950"\n.text\n'
    out += f".globl {name}\n.p2align 8\n.type {name},@function\n{name}:\n" + text(L)
    out += "s_endpgm\n.fill 2048, 4, 0xbf800000\n"
    out += f""".section .rodata,"a"
.p2align 6
.amdhsa_kernel {name}
  .amdhsa_next_free_vgpr 512
  .amdhsa_next_free_sgpr 102
  .amdhsa_accum_offset 256
  .amdhsa_group_segment_fixed_size 0
  .amdhsa_kernarg_size 96
  .amdhsa_user_sgpr_count 2
  .amdhsa_user_sgpr_kernarg_segment_ptr 1
  .amdhsa_system_sgpr_workgroup_id_x 1
.end_amdhsa_kernel
"""
    if o.diag is not None:
        out = out.replace('DIAG_I', str(o.stamp_names.index(o.diag[0]))).replace('DIAG_J', str(o.stamp_names.index(o.diag[1])))
    return out

def stf(o, n):
    D = Prog()
    if o.fine: stamp(D, o, n)
    return D.L

def groups(fn, o):
    D = Prog(); fn(D, o); return atomic_groups(D.L)

def build(o):
    name = NAME + "_kernel"
    R = lambda a, b: list(range(a, b))
    P = Prog(); setup(P, o, "L_end")
    P(f"s_cmp_eq_u32 s{S_C}, 7")
    P("s_cbranch_scc1 L_prep")
    H = Gaps()
    def first(D, o):
        s1_w1_addr(D, o)
        if o.w1t: w1_touch(D, o)
        common2(D, o); s1_misc(D, o)
        if o.stouch < 2 and not o.eb: D(f"buffer_load_dword v{V_TAG}, v{V_FLAGOFF}, {sr(SRD_WS,4)}, 0 offen")
        last_baddr(D, o)
        att_scalars(D, o)
        if not o.b1late: bias1(D, o)
        att_poll_addr(D, o)
        if not o.glate: gate_flags(D, o, V_PA)
        att_addr(D, o)
        if o.b1late: bias1(D, o)
        if o.mka: att_masks(D, o)
        if o.stouch < 2 and not o.eb: D(f"v_readfirstlane_b32 s{S_TAG}, v{V_TAG}")
        D.add(TAGOPS)
        for i in range(o.wact):
            D(f"s_mul_i32 s{S_T4}, s{S_RBL}, 7")
            D(f"s_add_u32 s{S_T4}, s{S_T4}, s{S_C}")
            D(f"s_lshl2_add_u32 s{S_T4}, s{S_T4}, s{S_WAVE}")
            D(f"s_add_u32 s{S_T4}, s{S_T4}, {16*o.wsp + 112*i}")
            warm_touch(D, S_T4, 161 + i, S_T0, V_L128)
    H.put('v', groups(first, o), 0, o.su_end)
    H.put('m', bias1_reads(), o.b1r, 84)
    def first2(D, o): att_kvoff(D, o); last_soff(D, o)
    H.put('v', groups(first2, o), o.su_end, 84)
    FAKE[0] = o.fake & 1
    pass_a(P, o, H)
    FAKE[0] = 0
    P('; ---------------- q/k/v epilogue ----------------')
    qkv_epilogue(P, o, merge_salu([it for n in range(o.nba, o.nbe) for it in dma_b(n)]))
    stamp(P, o, 'qkv_epi')
    H = Gaps()
    def second(D, o):
        last_setup(D, o)
        if o.glate: gate_flags(D, o, V_PH)
        if not o.mka: att_masks(D, o)
    H.put('v', groups(second, o), 0, 50)
    for i, g in enumerate(o.l2t):
        D = Prog(); l2_touch(D, o, i); H.put('v', [D.L], g, g + 1)
    dm = lambda a, b: merge_salu([it for p in range(a, b) for it in b_dma(p)])
    rd = lambda a, b: [[WVM(f'bp{n >> 1}')] + b_reads(n)[:2] if k == 0 else b_reads(n)[2:] for n in range(2 * a, 2 * b) for k in range(2)]
    b = o.pb
    kv = merge_salu(att_loads(o))
    gl = []
    if o.glate: kv, gl = kv[:14], kv[14:]
    def put_m0(items, g0, g1):
        own = lambda g: 12 <= g < 52 and (g - 12) % 16 < 8
        free = [g for g in range(g0, g1) if not own(g)]
        runs = []; cur = []
        for it in items:
            if any(isinstance(x, str) and ' m0,' in x for x in it) and cur: runs.append(cur); cur = []
            cur.append(it)
        runs.append(cur)
        n = len(runs)
        for i, r in enumerate(runs):
            sl = free[(i * len(free)) // n:((i + 1) * len(free)) // n]
            keep = [sl[0]]
            for g in sl[1:]:
                if g != keep[-1] + 1: break
                keep.append(g)
            spread(H.m, r, keep)
    if o.nbe < 4: H.put('m', merge_salu([it for n in range(o.nbe, 4) for it in dma_b(n)]), 0, 12)
    for c in range(3): H.put('m', merge_salu(dma_b(c + 4)), 16 * c + 12, 16 * c + 20)
    if not o.drop & 1: put_m0(dm(0, o.n1), b[0], b[1])
    H.put('m', [stf(o, 'qf0') + [WVM('qst')] + stf(o, 'qf1') + flag_store(S_QFL) + ([f"v_min_u32 v15, {47*128}, v{V_L128}", f"buffer_load_dword v15, v15, {sr(SRD_WS,4)}, s{S_QST} offen {SC}"] if o.rt & 2 else [])], o.qflag, o.qflag + 1)
    H.put('m', [poll_issue(V_PA)], o.kpoll, o.kpoll + 1)
    kvl = kv[o.nkv:]
    if not o.drop & 4: put_m0([['s_waitcnt lgkmcnt(0)', 's_barrier'] * (o.n1 > 4) + stf(o, 'kc0') + poll_check(V_PA) + stf(o, 'kc1') + kv[0]] + kv[1:o.nkv], o.kcheck, o.kend)
    if not o.r1late: H.put('m', rd(0, o.n1), b[2], b[3])
    pt = att_patch()
    if o.patch < 112:
        H.put('m', pt[:4], o.patch, o.patch + 2)
        H.put('v', pt[4:], o.patch + 2, 112)
    FAKE[0] = o.fake & 2
    pass_b(P, o, H)
    FAKE[0] = 0
    P("s_waitcnt lgkmcnt(0)")
    P("s_barrier")
    stamp(P, o, 'pass_b')
    if o.trunc:
        stamp_flush(P, o); P("s_endpgm"); P.forget(); P("L_prep:"); prep(P, o); stamp_flush(P, o); P("L_end:"); P("s_endpgm")
        return finish(P, o, name)
    if o.patch < 112: P.add(kread(ORDER[0], 0) + kread(ORDER[1], 1))
    last_baddr2(P, o)
    na = 11 + (o.n1 - 4)
    Q = Prog(); held = []; sstream = []
    for F in range(4):
        g = gelu_tile(F)
        for i, x in enumerate(g[:-2]):
            if i % 4 == 0: Q.L.append(Slot(f'g{F}_{i}'))
            Q.add([x])
        held += g[-2:]
        if F >= o.kvt - 1:
            Q.L.append(Slot(f'gs{F}'))
            if o.pst: sstream += [([x], (lambda F: lambda st: f'gs{F}' in st['seen'])(F), 'x') for x in held]
            else: Q.add(held)
            held = []
        if F == o.patch_t:
            if o.fine: stamp(Q, o, 'pt0')
            Q.add(pt[0])
            if o.fine: stamp(Q, o, 'pt1')
            for it in pt[1:]: Q.add(it)
        if F == o.bar_t:
            Q("s_waitcnt lgkmcnt(0)"); Q("s_barrier")
            Q.add(kread(ORDER[0], 0) + kread(ORDER[1], 1))
    stamp(Q, o, 'gelu')
    attention(Q, o, None, kpre=True)
    seen = lambda n: (lambda st: n in st['seen'])
    after = lambda key, dt: (lambda st: key in st['done'] and st['t'] >= st['done'][key] + dt)
    both = lambda a, b: (lambda st: a(st) and b(st))
    dstream = [(it, None, f'kv{i}') for i, it in enumerate(kvl)]
    for p in range(o.n1, 18):
        its = merge_salu(b_dma(p))
        for i, it in enumerate(its):
            cond = None
            if p == o.n1 and i == 0: cond = seen(o.ra0)
            lo = 0 if o.r1late else o.n1
            if i == 0 and [q for q in range(lo, p) if PIECE[q] == PIECE[p]]:
                prev = [q for q in range(lo, p) if PIECE[q] == PIECE[p]][-1]
                cond = after(f'rd{prev}', 60); it = [WLG(f'rd{prev}')] + it
            if o.pause:
                c0 = cond
                cond = (lambda c0: lambda st: (c0 is None or c0(st)) and (o.pause_at not in st['seen'] or f'a{o.resume}' in st['seen']))(c0)
            dstream.append((it, cond, f'dm{p}' if i == len(its) - 1 else 'x'))
    rstream = []
    for p in range(0 if o.r1late else o.n1, 11):
        r = b_reads(2 * p) + b_reads(2 * p + 1)
        for k in range(4):
            it = [(x, f'rd{p}') for x in r[2 * k:2 * k + 2]]
            rstream.append(([WVM(f'bp{p}')] * (k == 0) + it, (seen(o.r1at) if p < o.n1 else both(after(f'dm{p}', o.lat), seen('a0'))) if k == 0 else None, f'rd{p}' if k == 3 else 'x'))
    def st_(n):
        D = Prog()
        if o.fine: stamp(D, o, n)
        return D.L
    names0 = list(o.stamp_names)
    fstream = [(st_('hf0') + [WVM('hst')] + st_('hf1') + flag_store(S_HFL) + ([f"buffer_load_dword v{V_AT-1}, v{V_L128}, {sr(SRD_WS,4)}, s{S_HST} offen {SC}"] if o.rt & 1 else []), both(seen(f'a{o.hflag}'), lambda st: not sstream), 'hf')]
    if o.nearly > 0:
        fstream.append((poll_issue(V_PH), seen(f'a{o.hpoll}'), 'hp'))
        al = merge_salu([[x] for n in range(o.nearly) for x in a_load(o, n)])
        al = al[:2] + gl + al[2:]
        if o.atouch:
            tch = [f"buffer_load_dword v{V_AT}, v{V_AT}, {sr(SRD_WS,4)}, s{S_AOF} offen {SC}"]
            fstream.append((st_('hc0') + poll_check(V_PH) + st_('hc1') + tch, seen(f'a{o.hcheck}'), 'hc'))
            fstream += [(it, seen(f'a{o.ea0}'), 'ea') for it in al]
        else:
            fstream.append((st_('hc0') + poll_check(V_PH) + st_('hc1') + al[0], seen(f'a{o.hcheck}'), 'hc'))
            fstream += [(it, None, 'ea') for it in al[1:]]
    L, t = place(Q.L, {'s': sstream, 'f': fstream, 'r': rstream, 'd': dstream}, gap=o.gap, burst=o.burst)
    kvpos = max([i for i, x in enumerate(L) if isinstance(x, I) and x.tag == 'kv'] + [-1]); hpos = min(i for i, x in enumerate(L) if isinstance(x, I) and x.tag == 'hst')
    print('estimated gelu+attention cycles', t, 'left', len(dstream), len(rstream), len(fstream), 'kv before h stores', kvpos < hpos)
    assert not rstream and not sstream
    P.L += L
    for it, _, _ in fstream: P.add(it)
    o.left = [it for it, _, _ in dstream]
    FAKE[0] = o.fake & 4
    last(P, o)
    FAKE[0] = 0
    stamp_flush(P, o)
    P("s_endpgm")
    P.forget()
    P("L_prep:")
    prep(P, o)
    att_scalars(P, o); att_poll_addr(P, o); gate_flags(P, o, V_PA); att_addr(P, o); att_masks(P, o); att_kvoff(P, o)
    poll(P, o, V_PA)
    for it in att_loads(o, False) + att_patch(): P.add(it)
    P("s_waitcnt lgkmcnt(0)")
    P("s_barrier")
    if o.pw & 2:
        srd_rest(P, [(SRD_OUT, 2048*896)])
        P(f"v_lshlrev_b32 v{V_T+3}, 18, v{V_LANE}")
        P(f"buffer_load_dword v200, v{V_T+3}, {sr(SRD_OUT,4)}, 0 offen")
    st, o.stamps = o.stamps, False
    attention(P, o, {})
    att_epilogue(P, o)
    o.stamps = st
    P("s_waitcnt vmcnt(0)")
    P.add(flag_store(S_OFL))
    stamp(P, o, 'p_att')
    stamp_flush(P, o)
    P(f"s_cmp_eq_u32 s2, 56")
    P("s_cbranch_scc0 L_end")
    P(f"s_cmp_eq_u32 s{S_WAVE}, 0")
    P("s_cbranch_scc0 L_end")
    P(f"v_lshlrev_b32 v{V_PA}, 7, v{V_LANE}")
    P(f"s_mov_b32 s{S_CNT}, 20000")
    P("L_ep:")
    for i in range(16):
        P(f"s_mov_b32 s{S_T0}, {FL_O + i*8192}")
        P(f"buffer_load_dwordx2 {vr(16+2*i,2)}, v{V_PA}, {sr(SRD_WS,4)}, s{S_T0} offen sc1")
    P("s_waitcnt vmcnt(0)")
    P(f"s_mov_b64 {sr(S_T0)}, 0")
    for i in range(16):
        P(f"v_cmp_ne_u64 vcc, {sr(S_TAG)}, {vr(16+2*i,2)}")
        P(f"s_or_b64 {sr(S_T0)}, {sr(S_T0)}, vcc")
    P(f"s_sub_u32 s{S_CNT}, s{S_CNT}, 1")
    P("s_cbranch_scc1 L_end")
    P(f"s_cmp_eq_u64 {sr(S_T0)}, 0")
    P("s_cbranch_scc0 L_ep")
    P(f"buffer_store_dword v{V_TAG}, v{V_FLAGOFF}, {sr(SRD_WS,4)}, 0 offen sc1")
    P("L_end:")
    P("s_endpgm")
    return finish(P, o, name)

DEFAULTS = dict(nsa=3, pre3=0, bq0=57, aexp=0, fslot=0, rt=0, eb=1, xw=0, pff=0, slim=0, sp=0, stouch=0, fake=0, pst=0, osc=0, nba=4, nbe=4, oend=28, r1late=0, r1at='g1_0', apos=(0, 2), dpos=(1, 3), align=1, rot=0, rcls=2, wfirst=0, glate=0, bar_t=3, epin=6, bar_at=3, olead=12, atouch=0, ea0=46, fine=0, pause=1, pause_at='g2_40', resume=4, burst=2, gap=64, lat=700, ra0='g0_0', l2t=(), kvt=2, patch_t=1, pw=0, b1late=1, w1t=0, mw=1, drop=0, trunc=0, ncls=3, wsp=0, wact=0, su_end=72, bq_end=84, mka=1, n1=4,
                b1r=60, pb=(52, 84, 88, 104), qflag=30, kpoll=74, kcheck=86, kend=112, nkv=14, patch=112,
                nb_gelu=(0, 0, 3, 3), pa=(0, 22, 20, 32, 50), nrb=20, left_steps=4, hflag=6, nearly=4, hpoll=32, hcheck=44,
                lead=6, jit0=8, oflag_at=5, opoll_at=15, ocheck_at=22, hst=0, code_bytes=32768)

if __name__ == '__main__':
    o = Opt()
    for k, v in DEFAULTS.items(): setattr(o, k, v)
    o.stamps = 'stamps' in sys.argv; o.diag = None; o.stamp_names = []
    o.clk = 's_memtime' if 'cyc' in sys.argv else 's_memrealtime'
    for a in sys.argv[2:]:
        if '=' not in a: continue
        k, v = a.split('=')
        if k == 'diag':
            i, j, K = v.split(','); o.diag = (i, j, int(K)); o.stamps = True
        elif k in ('ra0', 'pause_at', 'r1at'): setattr(o, k, v)
        elif ',' in v: setattr(o, k, tuple(int(x) for x in v.split(',') if x))
        else: setattr(o, k, int(v))
    plan(o.n1, o.r1late); ROT[0] = o.rot; NSA[0] = o.nsa
    s = build(o)
    open(sys.argv[1], 'w').write(s)
    if o.stamps: open(sys.argv[1] + '.names', 'w').write('\n'.join(o.stamp_names))
```
